```python
import torch

def _softmax(x, axis=-1):
    return torch.softmax(x, dim=axis)
def _gelu(x):
    return torch.nn.functional.gelu(x, approximate="tanh")
def _silu(x):
    return torch.nn.functional.silu(x)
def _sigmoid(x):
    return torch.sigmoid(x)
def _layernorm(x, axis=-1, eps=1e-5):
    m = x.mean(dim=axis, keepdim=True)
    v = x.var(dim=axis, keepdim=True, unbiased=False)
    return (x - m) / torch.sqrt(v + eps)
def _scatter_add(tgt, idx, src, axis=0):
    return tgt.clone().index_add_(axis, idx, src)
def _segment_sum(src, seg, n):
    out = torch.zeros((n,) + src.shape[1:], dtype=src.dtype)
    return out.index_add_(0, seg, src)
def _pad(x, pw):
    flat = tuple(v for pair in reversed(pw) for v in pair)
    return torch.nn.functional.pad(x, flat)

kernel_name = 'recurrent_scan__ssm_conv_h3__geglu_ffn__prompt'

def setup_inputs():

    _w = (lambda a: (lambda t: t.to(torch.bfloat16) if t.is_floating_point() else t)(torch.as_tensor(a)))
    def _A_setup():
        B, S, D = 1, 2048, 448
        ks = 4
        return {
            "q": _w((lambda *s: torch.randn(*s, dtype=torch.bfloat16) * 0.05)(B, S, D)),
            "k": _w((lambda *s: torch.randn(*s, dtype=torch.bfloat16) * 0.2)(B, S, D)),
            "v": _w((lambda *s: torch.randn(*s, dtype=torch.bfloat16) * 0.2)(B, S, D)),
            "shift_k": _w((lambda *s: torch.randn(*s, dtype=torch.bfloat16) * 0.2)(D, ks) * 0.5),
            "ssm_k": _w((lambda *s: torch.randn(*s, dtype=torch.bfloat16) * 0.2)(D, S) * (1.0 / S ** 0.5)),
            "ssm_D": _w((lambda *s: torch.randn(*s, dtype=torch.bfloat16) * 0.2)(D)),
        }
    _A_in = _A_setup()

    def _B_setup():
        B, S, D, F = 1, 2048, 448, 1792
        return {
            "x": _w((lambda *s: torch.randn(*s, dtype=torch.bfloat16) * 0.05)(B, S, D)),
            "w_gate": _w((lambda *s: torch.randn(*s, dtype=torch.bfloat16) * 0.1)(D, F)),
            "w_up": _w((lambda *s: torch.randn(*s, dtype=torch.bfloat16) * 0.1)(D, F)),
            "w_down": _w((lambda *s: torch.randn(*s, dtype=torch.bfloat16) * 0.1)(F, D)),
        }
    _B_in = _B_setup()

    return {
        "A_q": _A_in["q"],
        "A_k": _A_in["k"],
        "A_v": _A_in["v"],
        "A_shift_k": _A_in["shift_k"],
        "A_ssm_k": _A_in["ssm_k"],
        "A_ssm_D": _A_in["ssm_D"],
        "B_x": _B_in["x"],
        "B_w_gate": _B_in["w_gate"],
        "B_w_up": _B_in["w_up"],
        "B_w_down": _B_in["w_down"],
    }

def reference(A_q, A_k, A_v, A_shift_k, A_ssm_k, A_ssm_D, B_x, B_w_gate, B_w_up, B_w_down):
    def _A_ref(q, k, v, shift_k, ssm_k, ssm_D):
        B, S, D = q.shape
        ks = shift_k.shape[-1]
        k_pad = _pad(k, ((0, 0), (ks - 1, 0), (0, 0)))
        k_shift = torch.zeros_like(k)
        for t in range(ks):
            k_shift = k_shift + k_pad[:, t:t + S, :] * shift_k[:, ks - 1 - t][None, None, :]
        kv = k_shift * v
        L = 2 * S
        kv_pad = _pad(kv, ((0, 0), (0, S), (0, 0)))
        kf_pad = _pad(ssm_k, ((0, 0), (0, S)))
        kv_f = (lambda x, axes=(-2,-1): torch.fft.rfft2(x.float(), dim=axes))(kv_pad[:, None, :, :], axes=(1, 2))
        kf_f = (lambda x, axes=(-2,-1): torch.fft.rfft2(x.float(), dim=axes))(kf_pad[:, None, :], axes=(1, 2))
        kf_f = (lambda x, *d: x.permute(*d))(kf_f, 1, 2, 0)
        y_f = kv_f * kf_f[None, :, :, :]
        y = (lambda x, s, axes=(-2,-1): torch.fft.irfft2(x, s=s, dim=axes).to(torch.bfloat16))(y_f, (1, L), axes=(1, 2))[:, 0, :S, :]
        y = y + kv * ssm_D[None, None, :]
        return q * y

    def _B_ref(x, w_gate, w_up, w_down):
        return (_gelu(x @ w_gate) * (x @ w_up)) @ w_down

    x = A_q
    xn = _layernorm(x, axis=-1)
    s = _A_ref(xn, A_k, A_v, A_shift_k, A_ssm_k, A_ssm_D)
    g = _silu(_B_ref(xn, B_w_gate, B_w_up, B_w_down))
    return x + s * g
```

```python
import re

def vr(n, c=1):
    return f"v{n}" if c == 1 else f"v[{n}:{n+c-1}]"
def ar(n, c=1):
    return f"a{n}" if c == 1 else f"a[{n}:{n+c-1}]"
def sr(n, c=1):
    return f"s{n}" if c == 1 else f"s[{n}:{n+c-1}]"

class K:
    def __init__(self):
        self.L = []
        self.vmq = []
        self.lgq = []
        self.uid = 0
    def op(self, s):
        self.L.append(s)
    def ops(self, *ss):
        for s in ss: self.L.append(s)
    def label(self, n):
        self.L.append(n + ":")
    def comment(self, s):
        self.L.append("; " + s)
    def newlabel(self, p="L"):
        self.uid += 1
        return f"{p}_{self.uid}"
    def vm(self, s, tag=None):
        self.L.append(s)
        self.vmq.append(tag)
        assert len(self.vmq) <= 63, "too many outstanding vmem ops"
    def lg(self, s, tag=None):
        self.L.append(s)
        self.lgq.append(tag)
    def _need(self, q, tags):
        idx = -1
        for i, t in enumerate(q):
            if t is not None and t in tags: idx = i
        return idx
    def wait(self, vm=(), lg=()):
        if isinstance(vm, (str, tuple)) and not isinstance(vm, list) and vm != (): vm = [vm]
        if isinstance(lg, (str, tuple)) and not isinstance(lg, list) and lg != (): lg = [lg]
        parts = []
        i = self._need(self.vmq, list(vm))
        if i >= 0:
            n = len(self.vmq) - 1 - i
            parts.append(f"vmcnt({min(n, 62)})")
            self.vmq = self.vmq[i+1:]
        i = self._need(self.lgq, list(lg))
        if i >= 0:
            n = len(self.lgq) - 1 - i
            parts.append(f"lgkmcnt({min(n, 14)})")
            self.lgq = self.lgq[i+1:]
        if parts:
            self.L.append("s_waitcnt " + " ".join(parts))
    def wait_all(self, vm=True, lg=True):
        parts = []
        if vm: parts.append("vmcnt(0)"); self.vmq = []
        if lg: parts.append("lgkmcnt(0)"); self.lgq = []
        self.L.append("s_waitcnt " + " ".join(parts))
    def text(self):
        return "\n".join(self.L) + "\n"

_reg_re = re.compile(r"^(-|\|)?(abs\()?([vas])(\d+|\[(\d+):(\d+)\])")
def parse_regs(tok):
    tok = tok.strip()
    m = _reg_re.match(tok)
    if not m:
        if tok in ("vcc", "exec", "m0", "vcc_lo", "vcc_hi", "exec_lo", "exec_hi", "scc"):
            return {("x", tok.split("_")[0])}
        return set()
    kind = m.group(3)
    if m.group(5) is not None:
        return {(kind, i) for i in range(int(m.group(5)), int(m.group(6)) + 1)}
    return {(kind, int(m.group(4)))}

def split_ops(s):
    out, depth, cur = [], 0, ""
    for ch in s:
        if ch == "[": depth += 1
        if ch == "]": depth -= 1
        if ch == "," and depth == 0:
            out.append(cur.strip()); cur = ""
        else: cur += ch
    if cur.strip(): out.append(cur.strip())
    return out

TRANS = ("v_exp_f32", "v_log_f32", "v_rcp_f32", "v_rsq_f32", "v_sqrt_f32", "v_sin_f32", "v_cos_f32")
class Ins:
    pass
def decode(line):
    s = line.split(";")[0].strip()
    if not s or s.endswith(":") or s.startswith("."): return None
    p = s.split(None, 1)
    mn = p[0]
    rest = p[1] if len(p) > 1 else ""
    ops = split_ops(rest)
    ops2 = []
    for o in ops:
        ops2.append(o.split()[0] if o else o)
    I = Ins(); I.text = s; I.mn = mn; I.w = set(); I.r = set(); I.kind = "other"; I.states = 1
    I.mods = rest
    R = [parse_regs(o) for o in ops2]
    base = re.sub(r"_(e32|e64|dpp|sdwa)$", "", mn)
    if mn == "s_nop":
        I.kind = "nop"; I.states = int(ops2[0], 0) + 1
    elif mn.startswith("v_mfma"):
        I.kind = "mfma"; I.w = R[0]; I.A = R[1]; I.B = R[2]; I.C = R[3]; I.r = R[1] | R[2] | R[3]
        I.passes = 8 if "32x32x16" in mn else 4 if "16x16x32" in mn else None
        assert I.passes
    elif mn.startswith("v_cmp"):
        I.kind = "valu"; I.w = R[0]; I.r = set().union(*R[1:])
        if mn.startswith("v_cmpx"): I.w |= {("x", "exec")}
    elif mn in ("v_readfirstlane_b32", "v_readlane_b32"):
        I.kind = "valu"; I.sub = "rl"; I.w = R[0]; I.r = set().union(*R[1:])
    elif "permlane" in mn and "swap" in mn:
        I.kind = "valu"; I.sub = "perm"; I.w = R[0] | R[1]; I.r = R[0] | R[1]
    elif mn.startswith("v_"):
        I.kind = "valu"; I.w = R[0]; I.r = set().union(*R[1:]) if len(R) > 1 else set()
        if base in ("v_fmac_f32", "v_dot2c_f32_bf16", "v_pk_fmac_f16", "v_accvgpr_mov_b32"): I.r |= R[0]
        if base in ("v_add_co_u32", "v_addc_co_u32", "v_sub_co_u32", "v_subb_co_u32"):
            I.w = R[0] | R[1]; I.r = set().union(*R[2:])
        if base == "v_cndmask_b32" and len(R) == 3: I.r |= {("x", "vcc")}
        if base in TRANS: I.sub = "trans"
        if mn.endswith("_dpp") or "row_" in rest or "quad_perm" in rest: I.dpp = True
        if "d16_hi" in mn: I.r |= R[0]
    elif mn.startswith("ds_read") or mn.startswith("ds_bpermute") or mn.startswith("ds_swizzle"):
        I.kind = "lds"; I.w = R[0]; I.r = set().union(*R[1:])
        if "d16" in mn: I.r |= R[0]
    elif mn.startswith("ds_write") or mn.startswith("ds_add"):
        I.kind = "lds"; I.r = set().union(*R)
    elif mn.startswith("buffer_load") or mn.startswith("global_load"):
        I.kind = "vmem"
        if " lds" in (" " + rest) or "_lds_" in mn:
            I.r = set().union(*R) | {("x", "m0")}; I.dma = True
        else:
            I.w = R[0]; I.r = set().union(*R[1:])
            if "d16" in mn: I.r |= R[0]
    elif mn.startswith("buffer_store") or mn.startswith("global_store"):
        I.kind = "vmem"; I.r = set().union(*R); I.store = True
        I.data = R[0] if mn.startswith("buffer") else R[1]
        I.wide = ("x3" in mn or "x4" in mn)
    elif mn.startswith("buffer_atomic") or mn.startswith("global_atomic"):
        I.kind = "vmem"; I.r = set().union(*R)
    elif mn.startswith("buffer_") :
        I.kind = "vmem"
    elif mn.startswith("s_"):
        I.kind = "salu"
        if mn.startswith("s_cmp") or mn.startswith("s_cbranch") or mn in ("s_branch", "s_barrier", "s_waitcnt", "s_endpgm", "s_setprio", "s_sleep", "s_bitcmp1_b32", "s_bitcmp0_b32"):
            I.r = set().union(*R) if R else set()
        else:
            I.w = R[0] if R else set(); I.r = set().union(*R[1:]) if len(R) > 1 else set()
            if "saveexec" in mn: I.w |= {("x", "exec")}
    return I

def check_hazards(text, verbose=True):
    ins = []
    for ln, line in enumerate(text.split("\n")):
        I = decode(line)
        if I is None:
            continue
        I.ln = ln + 1
        ins.append(I)
    errs = []
    n = len(ins)
    def vregs(S): return {x for x in S if x[0] in "va"}
    def sregs(S): return {x for x in S if x[0] in "sx"}
    for i, P in enumerate(ins):
        dist = 0
        for j in range(i + 1, min(n, i + 24)):
            C = ins[j]
            need = 0; why = ""
            if P.kind == "valu":
                pw = vregs(P.w)
                if C.kind == "mfma" and pw & C.r: need, why = 2, "valu->mfma"
                if C.kind == "valu" and getattr(C, "sub", "") == "rl" and pw & C.r: need, why = max(need, 1), "valu->readlane"
                if C.kind == "valu" and getattr(C, "sub", "") == "perm" and pw & C.r: need, why = max(need, 2), "valu->permlane"
                if C.kind == "valu" and getattr(C, "dpp", False) and pw & C.r: need, why = max(need, 2), "valu->dpp"
                if getattr(P, "sub", "") == "trans" and C.kind in ("valu", "mfma") and getattr(C, "sub", "") != "trans" and pw & C.r:
                    need, why = max(need, 1), "trans->valu"
                if P.mn.startswith("v_dot2"):
                    if C.mn != P.mn and C.kind in ("valu", "mfma", "lds", "vmem") and pw & (C.r | C.w): need, why = max(need, 3), "dot->other"
                    if C.mn == P.mn:
                        o = split_ops(C.text.split(None, 1)[1])
                        ab = parse_regs(o[1]) | parse_regs(o[2])
                        if pw & ab: need, why = max(need, 3), "dot->dot AB"
                sw = sregs(P.w)
                if sw:
                    if C.kind == "vmem" and sw & C.r: need, why = max(need, 5), "valu sgpr->vmem"
                    if C.kind == "valu" and sw & C.r: need, why = max(need, 2), "valu sgpr->valu"
                    if ("x", "exec") in sw and C.kind == "mfma": need, why = max(need, 4), "valu exec->mfma"
            if P.kind == "mfma":
                big = {8: 12, 4: 8}[P.passes]
                if C.kind == "mfma":
                    if P.w & (C.A | C.B): need, why = big, "mfma D->mfma AB"
                    elif P.w & C.C and P.w != C.C: need, why = {8: 10, 4: 6}[P.passes], "mfma D->mfma C partial"
                    elif P.w & C.C and P.passes != C.passes: need, why = {8: 10, 4: 6}[P.passes], "mfma D->mfma C other shape"
                elif C.kind in ("valu", "lds", "vmem"):
                    if P.w & (C.r | C.w): need, why = big, "mfma D->valu/mem"
                    if C.kind == "valu" and P.C & C.w: need, why = max(need, {8: 7, 4: 3}[P.passes]), "mfma C WAR"
            if P.kind == "salu" and ("x", "m0") in P.w and getattr(C, "dma", False): need, why = 1, "m0->dma"
            if P.kind == "vmem" and getattr(P, "store", False) and P.wide:
                if C.kind == "valu" and P.data & C.w: need, why = 2, "store data WAR"
                elif P.data & C.w: need, why = 1, "store data WAR(any)"
            if need > dist:
                errs.append(f"line {P.ln}: '{P.text}' -> line {C.ln}: '{C.text}' needs {need} has {dist} ({why})")
            dist += C.states
            if dist >= 20: break
            if C.mn in ("s_endpgm", "s_branch"): break
    if verbose:
        for e in errs[:40]: print("HAZARD:", e)
        if errs: print(len(errs), "hazards")
    return errs
```

```python
import sys, struct
from asmlib import *

NAME = "recurrent_scan__ssm_conv_h3__geglu_ffn__prompt"
S, D, F = 2048, 448, 1792

H_OFF = 0
U_OFF = H_OFF + 64 * 112 * 1024
Y_OFF = U_OFF + D * 4096
ST_OFF = Y_OFF + D * 4096
CNT_OFF = ST_OFF + S * 8
WS_USED = CNT_OFF + 64 * 128

sKARG = 0
sWG = 2
sPQ, sPK, sPV, sPSK, sPSSM, sPD, sPBX, sPWG = 16, 18, 20, 22, 24, 26, 28, 30
sPWU, sPWD, sPOUT, sPDBG = 32, 34, 36, 38
sPWS = 40
rX, rW, rWS, rWD, rSSM, rOUT, rK, rV = 44, 48, 52, 56, 60, 64, 68, 72
sW = 80
sI = 81
sJ = 82
sT0, sT1, sT2, sT3 = 4, 5, 6, 7
sWSO = 83
sWM0 = 84
sSLOT = 85
sXCD = 86
sONES = 87
sMASK = 88
sWGM = 89

STAMPS = False
STAMP_OFF = 12 << 20
STAMPSET = None
POOL = [90, 92, 94, 96, 98, 16, 18, 20, 22, 24, 26, 28, 30, 32, 34, 36, 38]
stamped = []
def stamp(k, name=""):
    if not STAMPS: return
    if STAMPSET is not None and not any(name.startswith(p) for p in STAMPSET): return
    i = len(stamped)
    assert i < len(POOL)
    stamped.append(name)
    k.op(f"s_memtime s[{POOL[i]}:{POOL[i]+1}]")
def stamp_flush(k):
    if not STAMPS: return
    k.op("s_waitcnt vmcnt(0) lgkmcnt(0)")
    k.op(f"s_memrealtime s[8:9]")
    k.op("s_waitcnt lgkmcnt(0)")
    k.op(f"s_mov_b32 s101, s8")
    k.op(f"s_lshl_b32 s4, s2, 2")
    k.op(f"s_add_u32 s4, s4, s{sW}")
    k.op(f"s_lshl_b32 s4, s4, 7")
    k.op(f"s_add_u32 s4, s4, {STAMP_OFF}")
    k.op("v_mov_b32 v1, 0")
    k.op("s_mov_b64 exec, 1")
    for i in range(len(stamped)):
        k.op(f"v_mov_b32 v2, s{POOL[i]}")
        k.op(f"buffer_store_dword v2, v1, s[{rWS}:{rWS+3}], s4 offen offset:{4*i}")
    k.op(f"v_mov_b32 v2, s100")
    k.op(f"buffer_store_dword v2, v1, s[{rWS}:{rWS+3}], s4 offen offset:{4*30}")
    k.op(f"v_mov_b32 v2, s101")
    k.op(f"buffer_store_dword v2, v1, s[{rWS}:{rWS+3}], s4 offen offset:{4*31}")
    k.op("s_mov_b64 exec, -1")
    print("stamps:", stamped)

def f2u(x):
    return struct.unpack("<I", struct.pack("<f", x))[0]

def srd(k, r, ptr, nbytes):
    k.op(f"s_mov_b32 s{r}, s{ptr}")
    k.op(f"s_and_b32 s{r+1}, s{ptr+1}, 0xffff")
    k.op(f"s_mov_b32 s{r+2}, {nbytes}")
    k.op(f"s_mov_b32 s{r+3}, 0x20000")

def prologue(k, exit_label, nwg):
    k.op("s_load_dwordx16 s[16:31], s[0:1], 0")
    k.op("s_load_dwordx8 s[32:39], s[0:1], 64")
    k.op("s_load_dwordx2 s[40:41], s[0:1], 96")
    k.op("v_lshrrev_b32 v1, 6, v0")
    k.op("v_and_b32 v0, 63, v0")
    k.op(f"s_cmp_ge_u32 s2, {nwg}")
    k.op(f"v_readfirstlane_b32 s{sW}, v1")
    k.op(f"s_cbranch_scc1 {exit_label}")
    if STAMPS:
        k.op("s_memrealtime s[8:9]")
        k.op("s_waitcnt lgkmcnt(0)")
        k.op("s_mov_b32 s100, s8")
    stamp(k, "start")
    k.op(f"s_and_b32 s{sXCD}, s2, 7")
    k.op(f"s_lshr_b32 s{sSLOT}, s2, 3")

SLOT_SZ = 34048
XOFF = 17024
XS = SLOT_SZ
XROW = 912
SLOT = [0, SLOT_SZ, 2 * SLOT_SZ, 3 * SLOT_SZ]
LDS_TOTAL = 163840

vX = 16
vACC = 128

OPT = set()
def gemm1(k, publish_stats=True):
    k.op(f"s_mul_i32 s{sT0}, s{sSLOT}, 37")
    k.op(f"s_lshr_b32 s{sT0}, s{sT0}, 8")
    k.op(f"s_mul_i32 s{sT1}, s{sT0}, 7")
    k.op(f"s_sub_u32 s{sT1}, s{sSLOT}, s{sT1}")
    k.op(f"s_lshr_b32 s{sT2}, s{sXCD}, 1")
    k.op(f"s_lshl_b32 s{sT2}, s{sT2}, 2")
    k.op(f"s_add_u32 s{sI}, s{sT2}, s{sT0}")
    k.op(f"s_and_b32 s{sT2}, s{sXCD}, 1")
    k.op(f"s_mul_i32 s{sT2}, s{sT2}, 7")
    k.op(f"s_add_u32 s{sJ}, s{sT2}, s{sT1}")
    k.op("v_lshlrev_b32 v1, 4, v0")
    k.op("v_lshrrev_b32 v6, 4, v0")
    k.op(f"v_mul_u32_u24 v2, {16*3584}, v6")
    k.op("v_and_b32 v7, 15, v0")
    k.op("v_lshl_add_u32 v2, v7, 4, v2")
    k.op("v_and_b32 v7, 1, v6")
    k.op(f"v_mul_u32_u24 v3, {XOFF}, v7")
    k.op("v_lshrrev_b32 v7, 5, v0")
    k.op("v_lshlrev_b32 v8, 3, v7")
    k.op("v_bfe_u32 v9, v0, 2, 2")
    k.op("v_add_u32 v8, v8, v9")
    k.op("v_mul_u32_u24 v8, 1056, v8")
    k.op("v_add_u32 v3, v3, v8")
    k.op("v_and_b32 v9, 3, v0")
    k.op("v_lshl_add_u32 v3, v9, 3, v3")
    k.op(f"v_add_u32 v14, {2*SLOT_SZ}, v3")
    k.op("v_and_b32 v9, 31, v0")
    k.op(f"s_lshl_b32 s{sT0}, s{sW}, 5")
    k.op(f"v_add_u32 v9, s{sT0}, v9")
    k.op(f"v_mul_u32_u24 v15, {XROW}, v9")
    k.op("v_lshl_add_u32 v15, v7, 4, v15")
    k.op(f"v_add_u32 v15, {XS}, v15")
    k.op(f"s_mov_b32 s{sONES}, 0x3f803f80")
    k.op(f"s_mov_b32 s{sMASK}, 0xffff0000")
    k.op("s_waitcnt lgkmcnt(0)")
    srd(k, rX, sPQ, S * D * 2)
    k.op(f"s_bitcmp1_b32 s{sW}, 0")
    k.op(f"s_cselect_b32 s{rW}, s{sPWU}, s{sPWG}")
    k.op(f"s_cselect_b32 s{rW+1}, s{sPWU+1}, s{sPWG+1}")
    k.op(f"s_and_b32 s{rW+1}, s{rW+1}, 0xffff")
    k.op(f"s_mov_b32 s{rW+2}, {D*F*2}")
    k.op(f"s_mov_b32 s{rW+3}, 0x20000")
    srd(k, rWS, sPWS, (16 << 20) if STAMPS else WS_USED)
    k.op(f"s_lshl_b32 s{sT0}, s{sI}, 2")
    k.op(f"s_add_u32 s{sT0}, s{sT0}, s{sW}")
    k.op(f"s_mul_i32 s{sT1}, s{sT0}, {32*896}")
    k.op(f"s_mul_i32 s{sT2}, s{sW}, {32*XROW}")
    k.op(f"s_add_u32 m0, s{sT2}, {XS}")
    k.op("s_mov_b32 exec_hi, 0x00ffffff")
    for n in range(32):
        k.vm(f"buffer_load_dwordx4 v1, s[{rX}:{rX+3}], s{sT1} offen lds", "x")
        if n < 31:
            k.op(f"s_add_u32 m0, m0, {XROW}")
            k.op(f"s_add_u32 s{sT1}, s{sT1}, 896")
    k.op("s_mov_b32 exec_hi, -1")
    k.op(f"s_lshr_b32 s{sT0}, s{sW}, 1")
    k.op(f"s_lshl_b32 s{sT0}, s{sT0}, 3")
    k.op(f"s_mul_i32 s{sWSO}, s{sT0}, 3584")
    k.op(f"s_lshl_b32 s{sT1}, s{sJ}, 8")
    k.op(f"s_add_u32 s{sWSO}, s{sWSO}, s{sT1}")
    k.op(f"s_mul_i32 s{sWM0}, s{sT0}, 1056")
    k.op(f"s_and_b32 s{sT1}, s{sW}, 1")
    k.op(f"s_mul_i32 s{sT1}, s{sT1}, {XOFF}")
    k.op(f"s_add_u32 s{sWM0}, s{sWM0}, s{sT1}")

    def wdma(c, e):
        out = []
        if e % 4 == 0:
            out.append(("op", f"s_add_u32 m0, s{sWM0}, {SLOT[c % 4] + e * 1056}"))
        out.append(("op", f"s_add_u32 s{sT3}, s{sWSO}, {(64 * c + e) * 3584 - (e % 4) * 1056}"))
        out.append(("vm", f"buffer_load_dwordx4 v2, s[{rW}:{rW+3}], s{sT3} offen offset:{(e % 4) * 1056} lds", f"w{c}"))
        return out
    def emit(items):
        for it in items:
            if it[0] == "op": k.op(it[1])
            elif it[0] == "vm": k.vm(it[1], it[2])
            elif it[0] == "lg": k.lg(it[1], it[2])
    for e in range(8): emit(wdma(0, e))
    stamp(k, "a_issued")
    k.wait(vm="x")
    stamp(k, "a_xarr")
    for ks in range(28):
        if ks >= 14: k.wait(lg=f"x{ks-14}")
        k.lg(f"ds_read_b128 {vr(vX + 4 * ks, 4)}, v15 offset:{32 * ks}", f"x{ks}")
    k.wait_all()
    k.op("s_barrier")
    for c in (1, 2, 3):
        for e in range(8): emit(wdma(c, e))
    stamp(k, "a_w123")
    for a in range(8): k.op(f"v_mov_b32 v{6+a}, 0")
    for n in range(112):
        k.op(f"v_dot2_f32_bf16 v{6 + n % 4}, v{vX+n}, s{sONES}, v{6 + n % 4}")
        k.op(f"v_dot2_f32_bf16 v{10 + n % 4}, v{vX+n}, v{vX+n}, v{10 + n % 4}")
    k.op("s_nop 2")
    k.op("v_add_f32 v6, v6, v7"); k.op("v_add_f32 v8, v8, v9")
    k.op("v_add_f32 v10, v10, v11"); k.op("v_add_f32 v12, v12, v13")
    k.op("v_add_f32 v6, v6, v8"); k.op("v_add_f32 v10, v10, v12")
    k.op("v_mov_b32 v7, v6"); k.op("v_mov_b32 v11, v10")
    k.op("s_nop 1")
    k.op("v_permlane32_swap_b32 v6, v7"); k.op("v_permlane32_swap_b32 v10, v11")
    k.op("s_nop 1")
    k.op("v_add_f32 v6, v6, v7"); k.op("v_add_f32 v10, v10, v11")
    k.op(f"v_mul_f32 v6, {hex(f2u(1.0/448))}, v6")
    k.op(f"v_mul_f32 v10, {hex(f2u(1.0/448))}, v10")
    k.op("v_fma_f32 v10, -v6, v6, v10")
    k.op("v_max_f32 v10, 0, v10")
    k.op("v_cvt_pk_bf16_f32 v7, v6, v10")
    k.op("v_lshlrev_b32 v6, 16, v7")
    k.op(f"v_and_b32 v10, s{sMASK}, v7")
    k.op(f"v_add_f32 v10, {hex(f2u(1e-5))}, v10")
    k.op("v_cvt_pk_bf16_f32 v10, v10, v10")
    k.op("v_lshlrev_b32 v10, 16, v10")
    k.op("v_sqrt_f32 v10, v10")
    k.op("s_nop 0")
    k.op("v_cvt_pk_bf16_f32 v10, v10, v10")
    k.op("v_lshlrev_b32 v10, 16, v10")
    k.op("v_rcp_f32 v4, v10")
    k.op("s_nop 0")
    k.op("v_mul_f32 v5, v6, v4")
    k.op("v_sub_f32 v5, 0, v5")
    if publish_stats:
        lab = k.newlabel("Lnost")
        k.op(f"s_cmp_lg_u32 s{sJ}, 0")
        k.op(f"s_cbranch_scc1 {lab}")
        k.op(f"s_lshl_b32 s{sT0}, s{sI}, 2")
        k.op(f"s_add_u32 s{sT0}, s{sT0}, s{sW}")
        k.op(f"s_lshl_b32 s{sT0}, s{sT0}, 8")
        k.op(f"s_add_u32 s{sT0}, s{sT0}, {ST_OFF}")
        k.op("v_lshlrev_b32 v6, 3, v0")
        k.op("s_mov_b32 exec_hi, 0")
        k.op(f"buffer_store_dwordx2 v[4:5], v6, s[{rWS}:{rWS+3}], s{sT0} offen sc1")
        k.op("s_mov_b32 exec_hi, -1")
        k.label(lab)
        k.vmq.append("st")
    def norm(n, tp):
        t = 6 + 2 * tp
        if "pkfma" not in OPT and "dot2" not in OPT and "nocvt" not in OPT and "unp" not in OPT:
            return [("op", f"v_lshlrev_b32 v{t}, 16, v{vX+n}"),
                ("op", f"v_and_b32 v{t+1}, s{sMASK}, v{vX+n}"),
                ("op", f"v_fma_f32 v{t}, v{t}, v4, v5"),
                ("op", f"v_fma_f32 v{t+1}, v{t+1}, v4, v5"),
                ("op", f"v_cvt_pk_bf16_f32 v{vX+n}, v{t}, v{t+1}")]
        if "dot2" in OPT:
            return [("op", f"v_dot2_f32_bf16 v{t}, v{vX+n}, s{sONES}, v5"),
                ("op", f"v_dot2_f32_bf16 v{t+1}, v{vX+n}, s{sMASK}, v5"),
                ("op", f"v_cvt_pk_bf16_f32 v{vX+n}, v{t}, v{t+1}")]
        if "nocvt" in OPT:
            return [("op", f"v_lshlrev_b32 v{t}, 16, v{vX+n}"),
                ("op", f"v_and_b32 v{t+1}, s{sMASK}, v{vX+n}"),
                ("op", f"v_fma_f32 v{t}, v{t}, v4, v5"),
                ("op", f"v_fma_f32 v{t+1}, v{t+1}, v4, v5")]
        if "unp" in OPT:
            return [("op", f"v_lshlrev_b32 v{t}, 16, v{vX+n}"),
                ("op", f"v_and_b32 v{t+1}, s{sMASK}, v{vX+n}")]
        return [("op", f"v_lshlrev_b32 v{t}, 16, v{vX+n}"),
                ("op", f"v_and_b32 v{t+1}, s{sMASK}, v{vX+n}"),
                ("op", f"v_pk_fma_f32 v[{t}:{t+1}], v[{t}:{t+1}], v[4:5], v[4:5] op_sel:[0,0,1] op_sel_hi:[1,0,1]"),
                ("op", f"v_cvt_pk_bf16_f32 v{vX+n}, v{t}, v{t+1}")]
    def norm_step(ks):
        a = [norm(4 * ks + q, q) for q in range(4)]
        out = []
        for s in range(len(a[0])):
            for q in range(4): out.append(a[q][s])
        return out
    emit(norm_step(0))
    stamp(k, "a_stats")
    NF = 8; DIST = 6
    NM = 224
    def rd(n):
        ks, mt = divmod(n, 8)
        c, kk = divmod(ks, 4)
        sl = c % 4
        base = "v3" if sl < 2 else "v14"
        off = (SLOT_SZ if sl % 2 else 0) + kk * 256 + mt * 32
        f = 4 * (n % NF)
        return [("lg", f"ds_read_b64_tr_b16 {ar(f, 2)}, {base} offset:{off}", f"f{n}"),
                ("lg", f"ds_read_b64_tr_b16 {ar(f + 2, 2)}, {base} offset:{off + 4 * 1056}", f"f{n}")]
    for n in range(DIST): emit(rd(n))
    for n in range(NM):
        ks, mt = divmod(n, 8)
        c, kk = divmod(ks, 4)
        if n % 32 == 0: stamp(k, f"g_c{n//32}")
        if n % 2 == 0:
            k.wait(lg=[f"f{n}", f"f{n+1}"])
        f = 4 * (n % NF)
        acc = vr(vACC + 16 * mt, 16)
        cin = "0" if ks == 0 else acc
        k.op(f"v_mfma_f32_32x32x16_bf16 {acc}, {ar(f, 4)}, {vr(vX + 4 * ks, 4)}, {cin}")
        nn = n + DIST
        if nn < NM:
            if nn % 32 == 0:
                cc = nn // 32
                k.wait(vm=f"w{cc}")
                if "nobar" not in OPT: k.op("s_barrier")
            if "noread" not in OPT: emit(rd(nn))
        if ks + 1 < 28 and "nonorm" not in OPT:
            st = norm_step(ks + 1)
            L = len(st)
            cut = [0] + [min(L, (L * (i + 1) + 6) // 7) for i in range(7)] + [L]
            emit(st[cut[mt]: cut[mt + 1]])
        if c >= 2 and c + 2 < 7 and mt in (1, 5) and "nodma" not in OPT:
            e = 2 * kk + (0 if mt == 1 else 1)
            emit(wdma(c + 2, e))
    stamp(k, "g_end")
    vC, vONE = 16, 18
    C1 = -2.0 * 0.7978845608028654 * 1.4426950408889634
    C2 = C1 * 0.044715
    k.op(f"v_mov_b32 v{vC}, {hex(f2u(C1))}")
    k.op(f"v_mov_b32 v{vC+1}, {hex(f2u(C2))}")
    k.op(f"v_mov_b32 v{vONE}, 1.0")
    k.op(f"v_mov_b32 v{vONE+1}, 1.0")
    k.op(f"s_lshl_b32 s{sT0}, s{sI}, 2")
    k.op(f"s_add_u32 s{sT0}, s{sT0}, s{sW}")
    k.op(f"s_mul_i32 s{sT0}, s{sT0}, {112*1024}")
    k.op(f"s_lshl_b32 s{sT1}, s{sJ}, 13")
    k.op(f"s_add_u32 s{sT0}, s{sT0}, s{sT1}")
    k.op("v_lshlrev_b32 v1, 4, v0")
    for mt in range(8):
        G = vACC + 16 * mt; U = G + 8
        T = 20 + (mt % 2) * 24
        tp = lambda p: T + 2 * p
        gu = lambda p: T + 8 + 2 * p
        O = T + 16
        P = range(4)
        for p in P: k.op(f"v_pk_mul_f32 {vr(tp(p),2)}, {vr(G+2*p,2)}, {vr(G+2*p,2)}")
        for p in P: k.op(f"v_pk_fma_f32 {vr(tp(p),2)}, {vr(tp(p),2)}, {vr(vC,2)}, {vr(vC,2)} op_sel:[0,1,0] op_sel_hi:[1,1,0]")
        for p in P: k.op(f"v_pk_mul_f32 {vr(tp(p),2)}, {vr(tp(p),2)}, {vr(G+2*p,2)}")
        for p in P:
            k.op(f"v_exp_f32 v{tp(p)}, v{tp(p)}"); k.op(f"v_exp_f32 v{tp(p)+1}, v{tp(p)+1}")
        for p in P: k.op(f"v_pk_mul_f32 {vr(gu(p),2)}, {vr(G+2*p,2)}, {vr(U+2*p,2)}")
        for p in P: k.op(f"v_pk_add_f32 {vr(tp(p),2)}, {vr(tp(p),2)}, {vr(vONE,2)}")
        for p in P:
            k.op(f"v_rcp_f32 v{tp(p)}, v{tp(p)}"); k.op(f"v_rcp_f32 v{tp(p)+1}, v{tp(p)+1}")
        k.op("s_nop 0")
        for p in P: k.op(f"v_pk_mul_f32 {vr(gu(p),2)}, {vr(gu(p),2)}, {vr(tp(p),2)}")
        for p in P: k.op(f"v_cvt_pk_bf16_f32 v{O+p}, v{gu(p)}, v{gu(p)+1}")
        if mt % 4 == 0 and mt > 0:
            k.op(f"s_add_u32 s{sT0}, s{sT0}, 4096")
        k.vm(f"buffer_store_dwordx4 {vr(O,4)}, v1, s[{rWS}:{rWS+3}], s{sT0} offen offset:{(mt%4)*1024} sc1", "hst")


PP_ROW = 900
PP_K = 0
PP_V = 67 * PP_ROW + 4
def prepass(k):
    k.op(f"s_sub_u32 s{sT0}, s{sSLOT}, 28")
    k.op(f"s_lshl_b32 s{sT0}, s{sT0}, 3")
    k.op(f"s_add_u32 s{sI}, s{sT0}, s{sXCD}")
    k.op("v_lshlrev_b32 v1, 4, v0")
    k.op("s_waitcnt lgkmcnt(0)")
    srd(k, rK, sPK, S * D * 2)
    srd(k, rV, sPV, S * D * 2)
    srd(k, rX, sPSK, D * 4 * 2)
    srd(k, rWS, sPWS, (16 << 20) if STAMPS else WS_USED)
    k.op("s_mov_b32 exec_hi, 0x00ffffff")
    k.op(f"s_lshl_b32 s{sT0}, s{sI}, 6")
    k.op(f"s_add_u32 s{sT0}, s{sT0}, s{sW}")
    k.op(f"s_sub_u32 s{sT1}, s{sT0}, 3")
    k.op(f"s_mul_i32 s{sT1}, s{sT1}, 896")
    k.op(f"s_mul_i32 s{sT2}, s{sW}, {PP_ROW}")
    k.op(f"s_add_u32 m0, s{sT2}, {PP_K}")
    k.op(f"v_add_u32 v2, s{sT1}, v1")
    for n in range(17):
        if n == 16:
            lab = k.newlabel("Lpk")
            k.op(f"s_cmp_eq_u32 s{sW}, 3")
            k.op(f"s_cbranch_scc1 {lab}")
            k.op(f"buffer_load_dwordx4 v2, s[{rK}:{rK+3}], 0 offen lds")
            k.label(lab)
            k.vmq.append("k")
        else:
            k.vm(f"buffer_load_dwordx4 v2, s[{rK}:{rK+3}], 0 offen lds", "k")
            k.op(f"s_add_u32 m0, m0, {4*PP_ROW}")
            k.op(f"v_add_u32 v2, {4*896}, v2")
    k.op(f"s_mul_i32 s{sT1}, s{sT0}, 896")
    k.op(f"s_add_u32 m0, s{sT2}, {PP_V}")
    k.op("s_nop 0")
    for n in range(16):
        k.vm(f"buffer_load_dwordx4 v1, s[{rV}:{rV+3}], s{sT1} offen lds", "v")
        if n < 15:
            k.op(f"s_add_u32 m0, m0, {4*PP_ROW}")
            k.op(f"s_add_u32 s{sT1}, s{sT1}, {4*896}")
    k.op("s_mov_b32 exec_hi, -1")
    k.op("v_and_b32 v2, 3, v0")
    k.op("v_lshrrev_b32 v3, 5, v0")
    k.op("v_lshl_add_u32 v2, v3, 2, v2")
    k.op("v_bfe_u32 v3, v0, 2, 3")
    k.op(f"v_mul_u32_u24 v4, {8*PP_ROW}, v2")
    k.op("v_lshl_add_u32 v4, v3, 2, v4")
    k.op(f"s_lshl_b32 s{sT0}, s{sW}, 5")
    k.op(f"v_add_u32 v4, s{sT0}, v4")
    k.op(f"v_add_u32 v8, {PP_V}, v4")
    k.op("v_lshlrev_b32 v5, 4, v3")
    k.op(f"s_lshl_b32 s{sT0}, s{sW}, 7")
    k.op(f"v_add_u32 v5, s{sT0}, v5")
    k.op("v_lshlrev_b32 v6, 13, v3")
    k.op(f"s_lshl_b32 s{sT0}, s{sW}, 16")
    k.op(f"v_add_u32 v6, s{sT0}, v6")
    k.op("v_lshlrev_b32 v7, 4, v2")
    k.op("v_sub_u32 v6, v6, v7")
    k.op(f"s_lshl_b32 s{sT0}, s{sI}, 7")
    k.op(f"s_sub_u32 s{sT0}, {U_OFF + (2047 - 7) * 2}, s{sT0}")
    k.op(f"v_add_u32 v6, s{sT0}, v6")
    for it in range(7):
        k.vm(f"buffer_load_dwordx4 {vr(100 + 4*it, 4)}, v5, s[{rX}:{rX+3}], 0 offen offset:{it*512}", "sk")
    k.wait_all()
    k.op("s_barrier")
    KR, VR = 16, 28
    for it in range(7):
        coff = it * 128
        for j in range(11):
            k.lg(f"ds_read_b32 v{KR+j}, v4 offset:{PP_K + j*PP_ROW + coff}", "kr")
        k.wait(lg="kr")
        for j in range(8):
            k.lg(f"ds_read_b32 v{VR+j}, v8 offset:{j*PP_ROW + coff}", "vr")
        for j in range(11):
            k.op(f"v_lshlrev_b32 v{40+2*j}, 16, v{KR+j}")
            k.op(f"v_and_b32 v{41+2*j}, 0xffff0000, v{KR+j}")
        sk = 100 + 4 * it
        k.op(f"v_lshlrev_b32 v64, 16, v{sk}");   k.op(f"v_lshlrev_b32 v65, 16, v{sk+2}")
        k.op(f"v_and_b32 v66, 0xffff0000, v{sk}"); k.op(f"v_and_b32 v67, 0xffff0000, v{sk+2}")
        k.op(f"v_lshlrev_b32 v68, 16, v{sk+1}"); k.op(f"v_lshlrev_b32 v69, 16, v{sk+3}")
        k.op(f"v_and_b32 v70, 0xffff0000, v{sk+1}"); k.op(f"v_and_b32 v71, 0xffff0000, v{sk+3}")
        k.wait(lg="vr")
        for j in range(8):
            k.op(f"v_lshlrev_b32 v{72+2*j}, 16, v{VR+j}")
            k.op(f"v_and_b32 v{73+2*j}, 0xffff0000, v{VR+j}")
        for t in range(8):
            o = 130 + 2 * t
            k.op(f"v_pk_mul_f32 {vr(o,2)}, {vr(40+2*(t+3),2)}, {vr(64,2)}")
        for j in range(1, 4):
            for t in range(8):
                o = 130 + 2 * t
                k.op(f"v_pk_fma_f32 {vr(o,2)}, {vr(40+2*(t+3-j),2)}, {vr(64+2*j,2)}, {vr(o,2)}")
        for t in range(8):
            o = 130 + 2 * t
            k.op(f"v_pk_mul_f32 {vr(o,2)}, {vr(o,2)}, {vr(72+2*t,2)}")
        O = 150 + 8 * (it % 2)
        for q in range(4):
            k.op(f"v_cvt_pk_bf16_f32 v{O+q}, v{130+2*(7-2*q)}, v{130+2*(6-2*q)}")
            k.op(f"v_cvt_pk_bf16_f32 v{O+4+q}, v{131+2*(7-2*q)}, v{131+2*(6-2*q)}")
        k.op(f"s_mov_b32 s{sT0}, {it * 64 * 4096}")
        k.op(f"s_mov_b32 s{sT1}, {it * 64 * 4096 + 4096}")
        k.vm(f"buffer_store_dwordx4 {vr(O,4)}, v6, s[{rWS}:{rWS+3}], s{sT0} offen sc1", "ust")
        k.vm(f"buffer_store_dwordx4 {vr(O+4,4)}, v6, s[{rWS}:{rWS+3}], s{sT1} offen sc1", "ust")

HC_STRIDE = 4160
HC_CH = 4 * HC_STRIDE
UR_CH = 4608
def conv(k, HC, UR, XCH, standalone):
    k.op(f"s_lshr_b32 s{sT0}, s{sW}, 1")
    k.op(f"s_lshl_b32 s{sI}, s{sWGM}, 1")
    k.op(f"s_add_u32 s{sI}, s{sI}, s{sT0}")
    srd(k, rSSM, sPSSM, D * S * 2)
    srd(k, rX, sPD, D * 2)
    k.op("v_lshlrev_b32 v1, 4, v0")
    k.op(f"s_and_b32 s{sT1}, s{sW}, 1")
    k.op(f"s_lshl_b32 s{sT1}, s{sT1}, 1")
    k.op(f"s_mul_i32 s{sT2}, s{sT0}, {HC_CH}")
    k.op(f"s_mul_i32 s{sT3}, s{sT1}, {HC_STRIDE}")
    k.op(f"s_add_u32 s{sT2}, s{sT2}, s{sT3}")
    k.op(f"s_add_u32 s{sT2}, s{sT2}, {HC + 32}")
    k.op(f"s_lshl_b32 s{sT3}, s{sI}, 12")
    k.op(f"s_lshl_b32 s{sT1}, s{sT1}, 1")
    k.op(f"s_add_u32 s{sT3}, s{sT3}, s{sT1}")
    k.op(f"s_add_u32 s{sT3}, s{sT3}, 2")
    for rr in range(2):
        k.op(f"s_add_u32 m0, s{sT2}, {rr * HC_STRIDE}")
        k.op(f"s_add_u32 s{sT1}, s{sT3}, {rr * 2}")
        for q in range(4):
            k.vm(f"buffer_load_dwordx4 v1, s[{rSSM}:{rSSM+3}], s{sT1} offen offset:{q*1024} lds", "hc")
    k.op("v_lshrrev_b32 v2, 4, v0")
    k.op("v_and_b32 v3, 15, v0")
    k.op("v_add_u32 v4, v2, v3")
    k.op("v_subrev_u32 v4, 15, v4")
    k.op("v_lshlrev_b32 v4, 1, v4")
    k.op(f"s_lshl_b32 s{sT1}, s{sI}, 12")
    k.op("v_cmp_gt_i32 vcc, 0, v4")
    k.op(f"v_mov_b32 v5, 0x7fffffff")
    k.op("s_nop 0")
    k.op("v_cndmask_b32 v4, v4, v5, vcc")
    k.vm(f"buffer_load_ushort v6, v4, s[{rSSM}:{rSSM+3}], s{sT1} offen", "hf")
    k.op(f"s_lshl_b32 s{sT1}, s{sI}, 1")
    k.op("v_mov_b32 v7, 0")
    k.vm(f"buffer_load_ushort v8, v7, s[{rX}:{rX+3}], s{sT1} offen", "dv")
    srd(k, rWS, sPWS, (16 << 20) if STAMPS else WS_USED)
    k.op(f"s_and_b32 s{sT1}, s{sW}, 1")
    k.op(f"s_lshl_b32 s{sT1}, s{sT1}, 11")
    k.op(f"s_mul_i32 s{sT2}, s{sT0}, {UR_CH}")
    k.op(f"s_add_u32 s{sT2}, s{sT2}, s{sT1}")
    k.op(f"s_add_u32 m0, s{sT2}, {UR}")
    k.op(f"s_lshl_b32 s{sT3}, s{sI}, 12")
    k.op(f"s_add_u32 s{sT3}, s{sT3}, s{sT1}")
    k.op(f"s_add_u32 s{sT3}, s{sT3}, {U_OFF}")
    k.vm(f"buffer_load_dwordx4 v1, s[{rWS}:{rWS+3}], s{sT3} offen sc1 lds", "ur")
    k.vm(f"buffer_load_dwordx4 v1, s[{rWS}:{rWS+3}], s{sT3} offen offset:1024 sc1 lds", "ur")
    k.op("v_mov_b32 v10, 0"); k.op("v_mov_b32 v11, 0"); k.op("v_mov_b32 v12, 0"); k.op("v_mov_b32 v13, 0")
    k.op(f"s_mul_i32 s{sT2}, s{sT0}, {UR_CH}")
    k.op(f"s_add_u32 s{sT2}, s{sT2}, {UR + 4096}")
    k.op(f"v_add_u32 v9, s{sT2}, v1")
    k.op("s_mov_b32 exec_hi, 0")
    k.lg("ds_write_b128 v9, v[10:13]", "z")
    k.op("s_mov_b32 exec_hi, -1")
    k.op(f"v_mul_u32_u24 v9, {HC_STRIDE}, v2")
    k.op("v_lshl_add_u32 v9, v3, 1, v9")
    k.op(f"s_mul_i32 s{sT2}, s{sT0}, {HC_CH}")
    k.op(f"s_add_u32 s{sT2}, s{sT2}, {HC}")
    k.op(f"v_add_u32 v9, s{sT2}, v9")
    k.wait(vm="hf")
    k.lg("ds_write_b16 v9, v6", "z")
    k.op("v_bfe_u32 v2, v0, 2, 2")
    k.op(f"v_mul_u32_u24 v14, {HC_STRIDE}, v2")
    k.op("v_and_b32 v3, 3, v0")
    k.op("v_lshl_add_u32 v14, v3, 3, v14")
    k.op("v_lshrrev_b32 v3, 4, v0")
    k.op("v_lshl_add_u32 v14, v3, 4, v14")
    k.op(f"s_and_b32 s{sT1}, s{sW}, 1")
    k.op(f"s_lshl_b32 s{sT1}, s{sT1}, 8")
    k.op(f"s_add_u32 s{sT2}, s{sT2}, s{sT1}")
    k.op(f"v_add_u32 v14, s{sT2}, v14")
    k.op("v_and_b32 v4, 15, v0")
    k.op("v_lshlrev_b32 v4, 5, v4")
    k.op("v_lshlrev_b32 v5, 4, v3")
    k.op("v_sub_u32 v15, v5, v4")
    k.op(f"s_mul_i32 s{sT2}, s{sT0}, {UR_CH}")
    k.op(f"s_add_u32 s{sT2}, s{sT2}, {UR + 4064 - 3584}")
    k.op(f"s_add_u32 s{sT3}, s{sT2}, s{sT1}")
    k.op(f"v_add_u32 v15, s{sT3}, v15")
    k.op("v_lshlrev_b32 v5, 3, v3")
    k.op("v_add_u32 v4, v4, v5")
    k.op(f"s_add_u32 s{sT2}, s{sT2}, {4088 - 3584 - (4064 - 3584)}")
    k.op(f"v_sub_u32 v13, s{sT2}, v4")
    k.wait_all()
    k.op("v_lshlrev_b32 v8, 16, v8")
    k.op("s_barrier")
    stamp(k, "c_ready")
    FB = [16, 48]
    GB = 80
    ACC = 96
    def rdF(sub, J):
        b = FB[sub % 2] + 4 * J
        off = 64 * (8 * J + sub)
        return [(f"ds_read_b64_tr_b16 {vr(b,2)}, v14 offset:{off}", f"F{sub}_{J}"),
                (f"ds_read_b64_tr_b16 {vr(b+2,2)}, v14 offset:{off+8}", f"F{sub}_{J}")]
    def rdG(sub, T):
        idx = sub * 8 + (7 - T)
        b = GB + 4 * (idx % 4)
        return (f"ds_read_b128 {vr(b,4)}, v15 offset:{512*(7-T) + 64*sub}", f"G{sub}_{T}")
    seq = []
    for sub in range(4):
        for T in range(7, -1, -1):
            for J in range(0, 8 - T):
                seq.append((sub, T, J))
    for J in range(4):
        for t in rdF(0, J): k.lg(*t)
    for T in (7, 6, 5): k.lg(*rdG(0, T))
    pendF = [(0, J) for J in range(4, 8)] + [(s, J) for s in range(1, 4) for J in range(8)]
    gq = [(s, T) for s in range(4) for T in range(7, -1, -1)][3:]
    first = set()
    lastG = None
    for n, (sub, T, J) in enumerate(seq):
        k.wait(lg=[f"F{sub}_{J}", f"G{sub}_{T}"])
        tile = T + J
        a = vr(ACC + 4 * tile, 4)
        cin = a if tile in first else "0"
        first.add(tile)
        gidx = sub * 8 + (7 - T)
        k.op(f"v_mfma_f32_16x16x32_bf16 {a}, {vr(FB[sub%2]+4*J,4)}, {vr(GB+4*(gidx%4),4)}, {cin}")
        if (sub, T) != lastG:
            lastG = (sub, T)
            if gq:
                s2, T2 = gq.pop(0)
                k.lg(*rdG(s2, T2))
        if pendF:
            s2, J2 = pendF[0]
            ok = (s2 == sub) or (s2 == sub + 1 and True)
            if ok and len(k.lgq) <= 12:
                pendF.pop(0)
                for t in rdF(s2, J2): k.lg(*t)
    assert not pendF and not gq
    stamp(k, "c_mfma")
    k.op("s_nop 7")
    k.op(f"s_lshl_b32 s{sT0}, s{sW}, 12")
    k.op(f"s_add_u32 s{sT0}, s{sT0}, {XCH}")
    k.op(f"v_add_u32 v2, s{sT0}, v1")
    k.op(f"s_xor_b32 s{sT1}, s{sW}, 1")
    k.op(f"s_lshl_b32 s{sT1}, s{sT1}, 12")
    k.op(f"s_add_u32 s{sT1}, s{sT1}, {XCH}")
    k.op(f"v_add_u32 v3, s{sT1}, v1")
    lo, le = k.newlabel("Lcodd"), k.newlabel("Lcend")
    def finish(keep, send):
        for i in range(4):
            k.op(f"ds_write_b128 v2, {vr(ACC + 4*(send+i), 4)} offset:{1024*i}")
        for i in range(4):
            k.op(f"ds_read_b64 {vr(40+2*i,2)}, v13 offset:{512*(7-(keep+i))}")
        k.op("s_waitcnt lgkmcnt(0)")
        k.op("s_barrier")
        for i in range(4):
            k.op(f"ds_read_b128 {vr(16+4*i,4)}, v3 offset:{1024*i}")
        k.op("s_waitcnt lgkmcnt(0)")
        for i in range(4):
            A = ACC + 4 * (keep + i)
            k.op(f"v_pk_add_f32 {vr(A,2)}, {vr(A,2)}, {vr(16+4*i,2)}")
            k.op(f"v_pk_add_f32 {vr(A+2,2)}, {vr(A+2,2)}, {vr(18+4*i,2)}")
            U = 40 + 2 * i
            k.op(f"v_and_b32 v50, 0xffff0000, v{U+1}")
            k.op(f"v_lshlrev_b32 v51, 16, v{U+1}")
            k.op(f"v_and_b32 v52, 0xffff0000, v{U}")
            k.op(f"v_lshlrev_b32 v53, 16, v{U}")
            for r in range(4):
                k.op(f"v_fmac_f32 v{A+r}, v{50+r}, v8")
            k.op(f"v_cvt_pk_bf16_f32 v{56+2*i}, v{A}, v{A+1}")
            k.op(f"v_cvt_pk_bf16_f32 v{57+2*i}, v{A+2}, v{A+3}")
        for i in range(4):
            k.op(f"buffer_store_dwordx2 {vr(56+2*i,2)}, v4, s[{rWS}:{rWS+3}], s{sT2} offen offset:{512*(keep+i)} sc1")
    k.op(f"s_lshl_b32 s{sT2}, s{sI}, 12")
    k.op(f"s_add_u32 s{sT2}, s{sT2}, {Y_OFF}")
    k.op(f"s_bitcmp1_b32 s{sW}, 0")
    k.op(f"s_cbranch_scc1 {lo}")
    finish(0, 4)
    k.op(f"s_branch {le}")
    k.label(lo)
    finish(4, 0)
    k.label(le)
    for i in range(4): k.vmq.append("yst")


WD_WAVE = 14 * 2048
sTT, sDT = 81, 82
sWDS = 83
sWDM = 84
def g2_setup(k, WDST):
    k.op(f"s_mul_i32 s{sT0}, s{sSLOT}, 37")
    k.op(f"s_lshr_b32 s{sT0}, s{sT0}, 8")
    k.op(f"s_mul_i32 s{sT1}, s{sT0}, 7")
    k.op(f"s_sub_u32 s{sDT}, s{sSLOT}, s{sT1}")
    k.op(f"s_lshl_b32 s{sTT}, s{sXCD}, 2")
    k.op(f"s_add_u32 s{sTT}, s{sTT}, s{sT0}")
    srd(k, rWD, sPWD, F * D * 2)
    k.op("v_lshrrev_b32 v3, 3, v0")
    k.op("v_mul_u32_u24 v2, 896, v3")
    k.op("v_bfe_u32 v3, v0, 4, 1")
    k.op("v_lshlrev_b32 v3, 2, v3")
    k.op("v_and_b32 v4, 7, v0")
    k.op("v_xor_b32 v3, v3, v4")
    k.op("v_lshl_add_u32 v2, v3, 4, v2")
    k.op(f"s_mul_i32 s{sWDS}, s{sW}, {16*28*896}")
    k.op(f"s_lshl_b32 s{sT0}, s{sDT}, 7")
    k.op(f"s_add_u32 s{sWDS}, s{sWDS}, s{sT0}")
    k.op(f"s_mul_i32 s{sWDM}, s{sW}, {WD_WAVE}")
    k.op(f"s_add_u32 s{sWDM}, s{sWDM}, {WDST}")
    k.op("v_lshrrev_b32 v5, 5, v0")
    k.op("v_bfe_u32 v6, v0, 2, 2")
    k.op("v_lshl_add_u32 v5, v5, 2, v6")
    k.op("v_lshlrev_b32 v5, 7, v5")
    k.op("v_bfe_u32 v7, v0, 4, 1")
    k.op("v_lshl_add_u32 v5, v7, 5, v5")
    k.op("v_and_b32 v7, 3, v0")
    k.op("v_lshl_add_u32 v5, v7, 3, v5")
    k.op(f"v_add_u32 v5, s{sWDM}, v5")
    k.op("v_bfe_u32 v6, v0, 3, 1")
    k.op("v_lshlrev_b32 v6, 6, v6")
    k.op("v_add_u32 v3, v5, v6")
    k.op("v_xor_b32 v6, 64, v6")
    k.op("v_add_u32 v4, v5, v6")

def g2_wd_dma(k, rnd):
    for q in range(28):
        ks = 14 * rnd + q // 2; hh = q % 2
        if q % 4 == 0:
            k.op(f"s_add_u32 m0, s{sWDM}, {(q // 4) * 4096}")
        k.op(f"s_add_u32 s{sT3}, s{sWDS}, {(16 * ks + 8 * hh) * 896 - (q % 4) * 1024}")
        k.vm(f"buffer_load_dwordx4 v2, s[{rWD}:{rWD+3}], s{sT3} offen offset:{(q % 4) * 1024} lds", f"wd{rnd}")

def g2_wd_read(k, rnd):
    for q in range(14):
        ks = 14 * rnd + q
        for dt2 in range(2):
            for t in range(2):
                if len(k.lgq) >= 12: k.wait(lg=k.lgq[5])
                a = 8 * ks + 4 * dt2 + 2 * t
                k.lg(f"ds_read_b64_tr_b16 {ar(a,2)}, v{3+dt2} offset:{q*2048 + t*1024}", f"wr{ks}_{dt2}_{t}")

vH = 16; NHS = 22; vA2 = 192
def g2_hload(k, ks):
    for e in range(2):
        b = vH + 8 * (ks % NHS) + 4 * e
        k.vm(f"buffer_load_dwordx4 {vr(b,4)}, v1, s[{rWS}:{rWS+3}], s{76+e} offen offset:{(ks%4)*1024} sc1", f"h{ks}")

def g2_main(k, YT, RED):
    k.op("v_lshlrev_b32 v1, 4, v0")
    k.op(f"s_lshl_b32 s{sT0}, s{sTT}, 1")
    k.op(f"s_mul_i32 s{sT0}, s{sT0}, 112")
    k.op(f"s_mul_i32 s{sT1}, s{sW}, 28")
    k.op(f"s_add_u32 s{sT0}, s{sT0}, s{sT1}")
    k.op(f"s_lshl_b32 s76, s{sT0}, 10")
    k.op(f"s_add_u32 s77, s76, {112*1024}")
    def adv(ks):
        if ks % 4 == 0 and ks > 0:
            k.op("s_add_u32 s76, s76, 4096"); k.op("s_add_u32 s77, s77, 4096")
    for ks in range(NHS):
        adv(ks); g2_hload(k, ks)
    k.op("v_lshrrev_b32 v5, 3, v0")
    k.op(f"s_lshl_b32 s{sT0}, s{sW}, 3")
    k.op(f"v_add_u32 v5, s{sT0}, v5")
    k.op("v_and_b32 v6, 7, v0")
    k.op("v_mul_u32_u24 v7, 896, v5")
    k.op("v_lshl_add_u32 v7, v6, 4, v7")
    k.op(f"s_mul_i32 s78, s{sTT}, {64*896}")
    k.op(f"s_lshl_b32 s{sT0}, s{sDT}, 7")
    k.op("s_add_u32 s78, s78, s%d" % sT0)
    k.op(f"s_add_u32 s79, s78, {32*896}")
    srd(k, rX, sPQ, S * D * 2)
    srd(k, rOUT, sPOUT, S * D * 2)
    return

def g2_epi_loads(k, YT):
    k.vm(f"buffer_load_dwordx4 {ar(224,4)}, v7, s[{rX}:{rX+3}], s78 offen", "ex")
    k.vm(f"buffer_load_dwordx4 {ar(228,4)}, v7, s[{rX}:{rX+3}], s79 offen", "ex")
    k.op("v_lshlrev_b32 v8, 3, v5")
    k.op(f"s_lshl_b32 s{sT0}, s{sTT}, 9")
    k.op(f"s_add_u32 s{sT0}, s{sT0}, {ST_OFF}")
    k.vm(f"buffer_load_dwordx2 {ar(232,2)}, v8, s[{rWS}:{rWS+3}], s{sT0} offen sc1", "ex")
    k.vm(f"buffer_load_dwordx2 {ar(234,2)}, v8, s[{rWS}:{rWS+3}], s{sT0} offen offset:256 sc1", "ex")
    k.op("v_lshrrev_b32 v8, 3, v0")
    k.op("v_lshlrev_b32 v8, 12, v8")
    k.op("v_lshl_add_u32 v8, v6, 4, v8")
    k.op(f"s_lshl_b32 s{sT0}, s{sDT}, 18")
    k.op(f"s_lshl_b32 s{sT1}, s{sW}, 16")
    k.op(f"s_add_u32 s{sT0}, s{sT0}, s{sT1}")
    k.op(f"s_lshl_b32 s{sT1}, s{sTT}, 7")
    k.op(f"s_add_u32 s{sT0}, s{sT0}, s{sT1}")
    k.op(f"s_add_u32 s{sT0}, s{sT0}, {Y_OFF}")
    k.op(f"s_mul_i32 s{sT1}, s{sW}, 2080")
    k.op(f"s_add_u32 m0, s{sT1}, {YT}")
    k.op(f"s_add_u32 s{sT2}, s{sT0}, {8*4096 - 1040}")
    k.vm(f"buffer_load_dwordx4 v8, s[{rWS}:{rWS+3}], s{sT0} offen sc1 lds", "ey")
    k.vm(f"buffer_load_dwordx4 v8, s[{rWS}:{rWS+3}], s{sT2} offen offset:1040 sc1 lds", "ey")

def g2_loop(k, YT, RED, epi_at):
    first = set()
    for ks in range(28):
        k.wait(vm=f"h{ks}")
        for dt2 in range(2):
            for e in range(2):
                t = 2 * dt2 + e
                acc = vr(vA2 + 16 * t, 16)
                cin = acc if t in first else "0"
                first.add(t)
                hb = vH + 8 * (ks % NHS) + 4 * e
                k.op(f"v_mfma_f32_32x32x16_bf16 {acc}, {ar(8*ks+4*dt2,4)}, {vr(hb,4)}, {cin}")
        if ks + NHS < 28:
            kn = ks + NHS
            if kn % 4 == 0:
                k.op("s_add_u32 s76, s76, 4096"); k.op("s_add_u32 s77, s77, 4096")
            g2_hload(k, kn)
        if ks == epi_at:
            g2_epi_loads(k, YT)

def g2_epilogue(k, YT, RED):
    RROW = 272; RW = 64 * RROW
    k.op("v_and_b32 v8, 31, v0")
    k.op(f"v_mul_u32_u24 v8, {RROW}, v8")
    k.op("v_lshrrev_b32 v9, 5, v0")
    k.op("v_lshl_add_u32 v8, v9, 4, v8")
    k.op(f"s_mul_i32 s{sT0}, s{sW}, {RW}")
    k.op(f"s_add_u32 s{sT0}, s{sT0}, {RED}")
    k.op(f"v_add_u32 v8, s{sT0}, v8")
    k.op("s_nop 7")
    for dt2 in range(2):
        for e in range(2):
            for g in range(4):
                if len(k.lgq) >= 12: k.wait(lg=k.lgq[5])
                A = vA2 + 16 * (2 * dt2 + e) + 4 * g
                k.lg(f"ds_write_b128 v8, {vr(A,4)} offset:{e*32*RROW + dt2*128 + g*32}", f"rw{dt2}{e}{g}")
    k.op(f"v_mov_b32 v10, {hex(f2u(-1.4426950408889634))}")
    k.op("v_mov_b32 v11, 1.0")
    k.wait_all()
    k.op("s_barrier")
    k.op(f"v_mul_u32_u24 v8, {RROW}, v5")
    k.op("v_lshl_add_u32 v8, v6, 5, v8")
    k.op(f"v_add_u32 v8, {RED}, v8")
    k.op("v_mul_u32_u24 v9, 1040, v6")
    k.op("v_lshl_add_u32 v9, v5, 1, v9")
    k.op(f"v_add_u32 v9, {YT}, v9")
    for ps in range(2):
        B = 16 + 64 * ps
        for w in range(4):
            for hh in range(2):
                if len(k.lgq) >= 12: k.wait(lg=k.lgq[5])
                k.lg(f"ds_read_b128 {vr(B + 8*w + 4*hh, 4)}, v8 offset:{w*RW + ps*32*RROW + hh*16}", f"p{ps}")
        for e in range(8):
            k.op(f"v_mov_b32 v{B+32+e}, 0")
        for e in range(8):
            if len(k.lgq) >= 12: k.wait(lg=k.lgq[5])
            k.lg(f"ds_read_u16_d16_hi v{B+32+e}, v9 offset:{e*128 + ps*64}", f"y{ps}")
    for ps in range(2):
        B = 16 + 64 * ps
        Yr = B + 32; T = B + 40
        k.wait(lg=[f"p{ps}", f"y{ps}"])
        for q in range(4):
            k.op(f"v_pk_add_f32 {vr(B+2*q,2)}, {vr(B+2*q,2)}, {vr(B+8+2*q,2)}")
            k.op(f"v_pk_add_f32 {vr(B+16+2*q,2)}, {vr(B+16+2*q,2)}, {vr(B+24+2*q,2)}")
        for q in range(4):
            k.op(f"v_pk_add_f32 {vr(B+2*q,2)}, {vr(B+2*q,2)}, {vr(B+16+2*q,2)}")
        for q in range(4):
            k.op(f"v_accvgpr_read_b32 v{T+q}, a{224+4*ps+q}")
        k.op(f"v_accvgpr_read_b32 v{T+4}, a{232+2*ps}")
        k.op(f"v_accvgpr_read_b32 v{T+5}, a{233+2*ps}")
        X = B + 8
        for q in range(4):
            k.op(f"v_lshlrev_b32 v{X+2*q}, 16, v{T+q}")
            k.op(f"v_and_b32 v{X+2*q+1}, 0xffff0000, v{T+q}")
        E = B + 16
        N = B + 24
        for q in range(4):
            k.op(f"v_pk_mul_f32 {vr(E+2*q,2)}, {vr(B+2*q,2)}, {vr(10,2)} op_sel_hi:[1,0]")
            k.op(f"v_pk_fma_f32 {vr(N+2*q,2)}, {vr(X+2*q,2)}, {vr(T+4,2)}, {vr(T+4,2)} op_sel:[0,0,1] op_sel_hi:[1,0,1]")
        for q in range(8):
            k.op(f"v_exp_f32 v{E+q}, v{E+q}")
        for q in range(4):
            k.op(f"v_pk_mul_f32 {vr(N+2*q,2)}, {vr(N+2*q,2)}, {vr(Yr+2*q,2)}")
        for q in range(4):
            k.op(f"v_pk_add_f32 {vr(E+2*q,2)}, {vr(E+2*q,2)}, {vr(10,2)} op_sel:[0,1] op_sel_hi:[1,1]")
        for q in range(8):
            k.op(f"v_rcp_f32 v{E+q}, v{E+q}")
        for q in range(4):
            k.op(f"v_pk_mul_f32 {vr(N+2*q,2)}, {vr(N+2*q,2)}, {vr(B+2*q,2)}")
        for q in range(4):
            k.op(f"v_pk_fma_f32 {vr(N+2*q,2)}, {vr(N+2*q,2)}, {vr(E+2*q,2)}, {vr(X+2*q,2)}")
        for q in range(4):
            k.op(f"v_cvt_pk_bf16_f32 v{T+8+q}, v{N+2*q}, v{N+2*q+1}")
        k.vm(f"buffer_store_dwordx4 {vr(T+8,4)}, v7, s[{rOUT}:{rOUT+3}], s{78+ps} offen", "ost")

def kd(name, vgpr=512, acc=256):
    return f""".section .rodata,"a"
.p2align 6
.amdhsa_kernel {name}
  .amdhsa_next_free_vgpr {vgpr}
  .amdhsa_next_free_sgpr 102
  .amdhsa_accum_offset {acc}
  .amdhsa_group_segment_fixed_size 0
  .amdhsa_kernarg_size 104
  .amdhsa_user_sgpr_count 2
  .amdhsa_user_sgpr_kernarg_segment_ptr 1
  .amdhsa_system_sgpr_workgroup_id_x 1
  .amdhsa_float_denorm_mode_32 3
.end_amdhsa_kernel
.text
"""

def kernel_head(name):
    return f""".globl {name}
.p2align 8
.type {name},@function
{name}:
"""

HEADER = open("cdna_kernels/" + NAME + ".s.ref").read().split("; Override launch")[0]

def build_multi(parts):
    out = [HEADER]
    for name, grid, lds, _ in parts:
        out.append(f"; @launch kernel={name} grid=({grid},1,1) block=(256,1,1) lds={lds}\n")
    out.append('.amdgcn_target "amdgcn-amd-amdhsa--gfx950"\n.text\n')
    for name, grid, lds, body in parts:
        out.append(kernel_head(name))
        out.append(body)
        out.append("s_endpgm\n")
        out.append(kd(name))
    return "".join(out)

def wgm_index(k):
    k.op(f"s_mul_i32 s{sWGM}, s{sXCD}, 28")
    k.op(f"s_add_u32 s{sWGM}, s{sWGM}, s{sSLOT}")

if __name__ == "__main__":
    if len(sys.argv) > 2 and sys.argv[2].startswith("stamps"):
        STAMPS = True
        if "=" in sys.argv[2]: STAMPSET = sys.argv[2].split("=")[1].split(",")
    if len(sys.argv) > 3: OPT.update(sys.argv[3].split(","))
    parts = []
    k = K()
    prologue(k, "La_exit", 256)
    k.op(f"s_cmp_ge_u32 s{sSLOT}, 28")
    k.op("s_cbranch_scc1 La_pre")
    gemm1(k)
    stamp(k, "e_gelu")
    k.wait_all()
    stamp(k, "e_drain")
    if "ka" in OPT: stamp_flush(k)
    k.op("s_endpgm")
    k.label("La_pre")
    k.vmq = []; k.lgq = []
    prepass(k)
    k.label("La_exit")
    parts.append(("ka_kernel", 256, LDS_TOTAL, k.text()))
    del stamped[:]
    k = K()
    prologue(k, "Lb_exit", 256)
    k.op(f"s_cmp_ge_u32 s{sSLOT}, 28")
    k.op("s_cbranch_scc1 Lb_exit")
    wgm_index(k)
    k.op("s_waitcnt lgkmcnt(0)")
    conv(k, 0, 2 * HC_CH, 2 * HC_CH + 2 * UR_CH, True)
    stamp(k, "c_end")
    if "kb" in OPT: stamp_flush(k)
    k.label("Lb_exit")
    parts.append(("kb_kernel", 256, 65536, k.text()))
    del stamped[:]
    k = K()
    prologue(k, "Lc_exit", 256)
    k.op(f"s_cmp_ge_u32 s{sSLOT}, 28")
    k.op("s_cbranch_scc1 Lc_exit")
    k.op("s_waitcnt lgkmcnt(0)")
    srd(k, rWS, sPWS, (16 << 20) if STAMPS else WS_USED)
    g2_setup(k, 0)
    g2_wd_dma(k, 0)
    k.wait(vm="wd0")
    g2_wd_read(k, 0)
    k.wait_all()
    g2_wd_dma(k, 1)
    k.wait(vm="wd1")
    g2_wd_read(k, 1)
    k.wait_all()
    stamp(k, "d_wd")
    g2_main(k, 4 * WD_WAVE, 0)
    g2_loop(k, 4 * WD_WAVE, 0, 8)
    stamp(k, "d_loop")
    k.wait_all()
    k.op("s_barrier")
    g2_epilogue(k, 4 * WD_WAVE, 0)
    stamp(k, "d_end")
    if "kc" in OPT: stamp_flush(k)
    k.label("Lc_exit")
    parts.append(("kc_kernel", 256, 131072, k.text()))
    txt = build_multi(parts)
    check_hazards(txt)
    open(sys.argv[1] if len(sys.argv) > 1 else "out.s", "w").write(txt)
```

```python
import sys, struct
from asmlib import *

NAME = "recurrent_scan__ssm_conv_h3__geglu_ffn__prompt"
S, D, F = 2048, 448, 1792

H_OFF = 0
U_OFF = H_OFF + 64 * 112 * 1024
Y_OFF = U_OFF + D * 4096
ST_OFF = Y_OFF + D * 4096
CNT_OFF = ST_OFF + S * 8
WS_USED = CNT_OFF + 64 * 128

sKARG = 0
sWG = 2
sPQ, sPK, sPV, sPSK, sPSSM, sPD, sPBX, sPWG = 16, 18, 20, 22, 24, 26, 28, 30
sPWU, sPWD, sPOUT, sPDBG = 32, 34, 36, 38
sPWS = 40
rX, rW, rWS, rWD, rSSM, rOUT, rK, rV = 44, 48, 52, 56, 60, 64, 68, 72
sW = 80
sI = 81
sJ = 82
sT0, sT1, sT2, sT3 = 4, 5, 6, 7
sWSO = 83
sWM0 = 84
sSLOT = 85
sXCD = 86
sONES = 87
sMASK = 88
sWGM = 89

STAMPS = False
STAMP_OFF = 12 << 20
STAMPSET = None
POOL = [90, 92, 94, 96, 98, 16, 18, 20, 22, 24, 26, 28, 30, 32, 34, 36, 38]
stamped = []
def stamp(k, name=""):
    if not STAMPS: return
    if STAMPSET is not None and not any(name.startswith(p) for p in STAMPSET): return
    i = len(stamped)
    assert i < len(POOL)
    stamped.append(name)
    k.op(f"s_memtime s[{POOL[i]}:{POOL[i]+1}]")
def stamp_flush(k):
    if not STAMPS: return
    k.op("s_waitcnt vmcnt(0) lgkmcnt(0)")
    k.op(f"s_memrealtime s[8:9]")
    k.op("s_waitcnt lgkmcnt(0)")
    k.op(f"s_mov_b32 s101, s8")
    k.op(f"s_lshl_b32 s4, s2, 2")
    k.op(f"s_add_u32 s4, s4, s{sW}")
    k.op(f"s_lshl_b32 s4, s4, 7")
    k.op(f"s_add_u32 s4, s4, {STAMP_OFF}")
    k.op("v_mov_b32 v1, 0")
    k.op("s_mov_b64 exec, 1")
    for i in range(len(stamped)):
        k.op(f"v_mov_b32 v2, s{POOL[i]}")
        k.op(f"buffer_store_dword v2, v1, s[{rWS}:{rWS+3}], s4 offen offset:{4*i}")
    k.op(f"v_mov_b32 v2, s100")
    k.op(f"buffer_store_dword v2, v1, s[{rWS}:{rWS+3}], s4 offen offset:{4*30}")
    k.op(f"v_mov_b32 v2, s101")
    k.op(f"buffer_store_dword v2, v1, s[{rWS}:{rWS+3}], s4 offen offset:{4*31}")
    k.op("s_mov_b64 exec, -1")
    print("stamps:", stamped)

def f2u(x):
    return struct.unpack("<I", struct.pack("<f", x))[0]

def srd(k, r, ptr, nbytes):
    k.op(f"s_mov_b32 s{r}, s{ptr}")
    k.op(f"s_and_b32 s{r+1}, s{ptr+1}, 0xffff")
    k.op(f"s_mov_b32 s{r+2}, {nbytes}")
    k.op(f"s_mov_b32 s{r+3}, 0x20000")

def prologue(k, exit_label, nwg):
    k.op("s_load_dwordx16 s[16:31], s[0:1], 0")
    k.op("s_load_dwordx8 s[32:39], s[0:1], 64")
    k.op("s_load_dwordx2 s[40:41], s[0:1], 96")
    k.op("v_lshrrev_b32 v1, 6, v0")
    k.op("v_and_b32 v0, 63, v0")
    k.op(f"s_cmp_ge_u32 s2, {nwg}")
    k.op(f"v_readfirstlane_b32 s{sW}, v1")
    k.op(f"s_cbranch_scc1 {exit_label}")
    if STAMPS:
        k.op("s_memrealtime s[8:9]")
        k.op("s_waitcnt lgkmcnt(0)")
        k.op("s_mov_b32 s100, s8")
    stamp(k, "start")
    k.op(f"s_and_b32 s{sXCD}, s2, 7")
    k.op(f"s_lshr_b32 s{sSLOT}, s2, 3")

SLOT_SZ = 34048
XOFF = 17024
XS = SLOT_SZ
XROW = 912
SLOT = [0, SLOT_SZ, 2 * SLOT_SZ, 3 * SLOT_SZ]
LDS_TOTAL = 163840

vX = 16
vACC = 128

OPT = set()
def gemm1(k, publish_stats=True):
    k.op(f"s_mul_i32 s{sT0}, s{sSLOT}, 37")
    k.op(f"s_lshr_b32 s{sT0}, s{sT0}, 8")
    k.op(f"s_mul_i32 s{sT1}, s{sT0}, 7")
    k.op(f"s_sub_u32 s{sT1}, s{sSLOT}, s{sT1}")
    k.op(f"s_lshr_b32 s{sT2}, s{sXCD}, 1")
    k.op(f"s_lshl_b32 s{sT2}, s{sT2}, 2")
    k.op(f"s_add_u32 s{sI}, s{sT2}, s{sT0}")
    k.op(f"s_and_b32 s{sT2}, s{sXCD}, 1")
    k.op(f"s_mul_i32 s{sT2}, s{sT2}, 7")
    k.op(f"s_add_u32 s{sJ}, s{sT2}, s{sT1}")
    k.op("v_lshlrev_b32 v1, 4, v0")
    k.op("v_lshrrev_b32 v6, 4, v0")
    k.op(f"v_mul_u32_u24 v2, {16*3584}, v6")
    k.op("v_and_b32 v7, 15, v0")
    k.op("v_lshl_add_u32 v2, v7, 4, v2")
    k.op("v_and_b32 v7, 1, v6")
    k.op(f"v_mul_u32_u24 v3, {XOFF}, v7")
    k.op("v_lshrrev_b32 v7, 5, v0")
    k.op("v_lshlrev_b32 v8, 3, v7")
    k.op("v_bfe_u32 v9, v0, 2, 2")
    k.op("v_add_u32 v8, v8, v9")
    k.op("v_mul_u32_u24 v8, 1056, v8")
    k.op("v_add_u32 v3, v3, v8")
    k.op("v_and_b32 v9, 3, v0")
    k.op("v_lshl_add_u32 v3, v9, 3, v3")
    k.op(f"v_add_u32 v14, {2*SLOT_SZ}, v3")
    k.op("v_and_b32 v9, 31, v0")
    k.op(f"s_lshl_b32 s{sT0}, s{sW}, 5")
    k.op(f"v_add_u32 v9, s{sT0}, v9")
    k.op(f"v_mul_u32_u24 v15, {XROW}, v9")
    k.op("v_lshl_add_u32 v15, v7, 4, v15")
    k.op(f"v_add_u32 v15, {XS}, v15")
    k.op(f"s_mov_b32 s{sONES}, 0x3f803f80")
    k.op(f"s_mov_b32 s{sMASK}, 0xffff0000")
    k.op("s_waitcnt lgkmcnt(0)")
    srd(k, rX, sPQ, S * D * 2)
    k.op(f"s_bitcmp1_b32 s{sW}, 0")
    k.op(f"s_cselect_b32 s{rW}, s{sPWU}, s{sPWG}")
    k.op(f"s_cselect_b32 s{rW+1}, s{sPWU+1}, s{sPWG+1}")
    k.op(f"s_and_b32 s{rW+1}, s{rW+1}, 0xffff")
    k.op(f"s_mov_b32 s{rW+2}, {D*F*2}")
    k.op(f"s_mov_b32 s{rW+3}, 0x20000")
    srd(k, rWS, sPWS, (16 << 20) if STAMPS else WS_USED)
    k.op(f"s_lshl_b32 s{sT0}, s{sI}, 2")
    k.op(f"s_add_u32 s{sT0}, s{sT0}, s{sW}")
    k.op(f"s_mul_i32 s{sT1}, s{sT0}, {32*896}")
    k.op(f"s_mul_i32 s{sT2}, s{sW}, {32*XROW}")
    k.op(f"s_add_u32 m0, s{sT2}, {XS}")
    k.op("s_mov_b32 exec_hi, 0x00ffffff")
    for n in range(32):
        k.vm(f"buffer_load_dwordx4 v1, s[{rX}:{rX+3}], s{sT1} offen lds", "x")
        if n < 31:
            k.op(f"s_add_u32 m0, m0, {XROW}")
            k.op(f"s_add_u32 s{sT1}, s{sT1}, 896")
    k.op("s_mov_b32 exec_hi, -1")
    k.op(f"s_lshr_b32 s{sT0}, s{sW}, 1")
    k.op(f"s_lshl_b32 s{sT0}, s{sT0}, 3")
    k.op(f"s_mul_i32 s{sWSO}, s{sT0}, 3584")
    k.op(f"s_lshl_b32 s{sT1}, s{sJ}, 8")
    k.op(f"s_add_u32 s{sWSO}, s{sWSO}, s{sT1}")
    k.op(f"s_mul_i32 s{sWM0}, s{sT0}, 1056")
    k.op(f"s_and_b32 s{sT1}, s{sW}, 1")
    k.op(f"s_mul_i32 s{sT1}, s{sT1}, {XOFF}")
    k.op(f"s_add_u32 s{sWM0}, s{sWM0}, s{sT1}")

    def wdma(c, e):
        out = []
        if e % 4 == 0:
            out.append(("op", f"s_add_u32 m0, s{sWM0}, {SLOT[c % 4] + e * 1056}"))
        out.append(("op", f"s_add_u32 s{sT3}, s{sWSO}, {(64 * c + e) * 3584 - (e % 4) * 1056}"))
        out.append(("vm", f"buffer_load_dwordx4 v2, s[{rW}:{rW+3}], s{sT3} offen offset:{(e % 4) * 1056} lds", f"w{c}"))
        return out
    def emit(items):
        for it in items:
            if it[0] == "op": k.op(it[1])
            elif it[0] == "vm": k.vm(it[1], it[2])
            elif it[0] == "lg": k.lg(it[1], it[2])
    for e in range(8): emit(wdma(0, e))
    stamp(k, "a_issued")
    k.wait(vm="x")
    stamp(k, "a_xarr")
    for ks in range(28):
        if ks >= 14: k.wait(lg=f"x{ks-14}")
        k.lg(f"ds_read_b128 {vr(vX + 4 * ks, 4)}, v15 offset:{32 * ks}", f"x{ks}")
    k.wait_all()
    k.op("s_barrier")
    for c in (1, 2, 3):
        for e in range(8): emit(wdma(c, e))
    stamp(k, "a_w123")
    for a in range(8): k.op(f"v_mov_b32 v{6+a}, 0")
    for n in range(112):
        k.op(f"v_dot2_f32_bf16 v{6 + n % 4}, v{vX+n}, s{sONES}, v{6 + n % 4}")
        k.op(f"v_dot2_f32_bf16 v{10 + n % 4}, v{vX+n}, v{vX+n}, v{10 + n % 4}")
    k.op("s_nop 2")
    k.op("v_add_f32 v6, v6, v7"); k.op("v_add_f32 v8, v8, v9")
    k.op("v_add_f32 v10, v10, v11"); k.op("v_add_f32 v12, v12, v13")
    k.op("v_add_f32 v6, v6, v8"); k.op("v_add_f32 v10, v10, v12")
    k.op("v_mov_b32 v7, v6"); k.op("v_mov_b32 v11, v10")
    k.op("s_nop 1")
    k.op("v_permlane32_swap_b32 v6, v7"); k.op("v_permlane32_swap_b32 v10, v11")
    k.op("s_nop 1")
    k.op("v_add_f32 v6, v6, v7"); k.op("v_add_f32 v10, v10, v11")
    k.op(f"v_mul_f32 v6, {hex(f2u(1.0/448))}, v6")
    k.op(f"v_mul_f32 v10, {hex(f2u(1.0/448))}, v10")
    k.op("v_fma_f32 v10, -v6, v6, v10")
    k.op("v_max_f32 v10, 0, v10")
    k.op("v_cvt_pk_bf16_f32 v7, v6, v10")
    k.op("v_lshlrev_b32 v6, 16, v7")
    k.op(f"v_and_b32 v10, s{sMASK}, v7")
    k.op(f"v_add_f32 v10, {hex(f2u(1e-5))}, v10")
    k.op("v_cvt_pk_bf16_f32 v10, v10, v10")
    k.op("v_lshlrev_b32 v10, 16, v10")
    k.op("v_sqrt_f32 v10, v10")
    k.op("s_nop 0")
    k.op("v_cvt_pk_bf16_f32 v10, v10, v10")
    k.op("v_lshlrev_b32 v10, 16, v10")
    k.op("v_rcp_f32 v4, v10")
    k.op("s_nop 0")
    k.op("v_mul_f32 v5, v6, v4")
    k.op("v_sub_f32 v5, 0, v5")
    if publish_stats:
        lab = k.newlabel("Lnost")
        k.op(f"s_cmp_lg_u32 s{sJ}, 0")
        k.op(f"s_cbranch_scc1 {lab}")
        k.op(f"s_lshl_b32 s{sT0}, s{sI}, 2")
        k.op(f"s_add_u32 s{sT0}, s{sT0}, s{sW}")
        k.op(f"s_lshl_b32 s{sT0}, s{sT0}, 8")
        k.op(f"s_add_u32 s{sT0}, s{sT0}, {ST_OFF}")
        k.op("v_lshlrev_b32 v6, 3, v0")
        k.op("s_mov_b32 exec_hi, 0")
        k.op(f"buffer_store_dwordx2 v[4:5], v6, s[{rWS}:{rWS+3}], s{sT0} offen sc1")
        k.op("s_mov_b32 exec_hi, -1")
        k.label(lab)
        k.vmq.append("st")
    def norm(n, tp):
        t = 6 + 2 * tp
        if "pkfma" not in OPT and "dot2" not in OPT and "nocvt" not in OPT and "unp" not in OPT:
            return [("op", f"v_lshlrev_b32 v{t}, 16, v{vX+n}"),
                ("op", f"v_and_b32 v{t+1}, s{sMASK}, v{vX+n}"),
                ("op", f"v_fma_f32 v{t}, v{t}, v4, v5"),
                ("op", f"v_fma_f32 v{t+1}, v{t+1}, v4, v5"),
                ("op", f"v_cvt_pk_bf16_f32 v{vX+n}, v{t}, v{t+1}")]
        if "dot2" in OPT:
            return [("op", f"v_dot2_f32_bf16 v{t}, v{vX+n}, s{sONES}, v5"),
                ("op", f"v_dot2_f32_bf16 v{t+1}, v{vX+n}, s{sMASK}, v5"),
                ("op", f"v_cvt_pk_bf16_f32 v{vX+n}, v{t}, v{t+1}")]
        if "nocvt" in OPT:
            return [("op", f"v_lshlrev_b32 v{t}, 16, v{vX+n}"),
                ("op", f"v_and_b32 v{t+1}, s{sMASK}, v{vX+n}"),
                ("op", f"v_fma_f32 v{t}, v{t}, v4, v5"),
                ("op", f"v_fma_f32 v{t+1}, v{t+1}, v4, v5")]
        if "unp" in OPT:
            return [("op", f"v_lshlrev_b32 v{t}, 16, v{vX+n}"),
                ("op", f"v_and_b32 v{t+1}, s{sMASK}, v{vX+n}")]
        return [("op", f"v_lshlrev_b32 v{t}, 16, v{vX+n}"),
                ("op", f"v_and_b32 v{t+1}, s{sMASK}, v{vX+n}"),
                ("op", f"v_pk_fma_f32 v[{t}:{t+1}], v[{t}:{t+1}], v[4:5], v[4:5] op_sel:[0,0,1] op_sel_hi:[1,0,1]"),
                ("op", f"v_cvt_pk_bf16_f32 v{vX+n}, v{t}, v{t+1}")]
    def norm_step(ks):
        a = [norm(4 * ks + q, q) for q in range(4)]
        out = []
        for s in range(len(a[0])):
            for q in range(4): out.append(a[q][s])
        return out
    emit(norm_step(0))
    stamp(k, "a_stats")
    NF = 8; DIST = 6
    NM = 224
    def rd(n):
        ks, mt = divmod(n, 8)
        c, kk = divmod(ks, 4)
        sl = c % 4
        base = "v3" if sl < 2 else "v14"
        off = (SLOT_SZ if sl % 2 else 0) + kk * 256 + mt * 32
        f = 4 * (n % NF)
        return [("lg", f"ds_read_b64_tr_b16 {ar(f, 2)}, {base} offset:{off}", f"f{n}"),
                ("lg", f"ds_read_b64_tr_b16 {ar(f + 2, 2)}, {base} offset:{off + 4 * 1056}", f"f{n}")]
    for n in range(DIST): emit(rd(n))
    for n in range(NM):
        ks, mt = divmod(n, 8)
        c, kk = divmod(ks, 4)
        if n % 32 == 0: stamp(k, f"g_c{n//32}")
        if n % 2 == 0:
            k.wait(lg=[f"f{n}", f"f{n+1}"])
        f = 4 * (n % NF)
        acc = vr(vACC + 16 * mt, 16)
        cin = "0" if ks == 0 else acc
        k.op(f"v_mfma_f32_32x32x16_bf16 {acc}, {ar(f, 4)}, {vr(vX + 4 * ks, 4)}, {cin}")
        nn = n + DIST
        if nn < NM:
            if nn % 32 == 0:
                cc = nn // 32
                k.wait(vm=f"w{cc}")
                if "nobar" not in OPT: k.op("s_barrier")
            if "noread" not in OPT: emit(rd(nn))
        if ks + 1 < 28 and "nonorm" not in OPT:
            st = norm_step(ks + 1)
            L = len(st)
            cut = [0] + [min(L, (L * (i + 1) + 6) // 7) for i in range(7)] + [L]
            emit(st[cut[mt]: cut[mt + 1]])
        if c >= 2 and c + 2 < 7 and mt in (1, 5) and "nodma" not in OPT:
            e = 2 * kk + (0 if mt == 1 else 1)
            emit(wdma(c + 2, e))
    stamp(k, "g_end")
    vC, vONE = 16, 18
    C1 = -2.0 * 0.7978845608028654 * 1.4426950408889634
    C2 = C1 * 0.044715
    k.op(f"v_mov_b32 v{vC}, {hex(f2u(C1))}")
    k.op(f"v_mov_b32 v{vC+1}, {hex(f2u(C2))}")
    k.op(f"v_mov_b32 v{vONE}, 1.0")
    k.op(f"v_mov_b32 v{vONE+1}, 1.0")
    k.op(f"s_lshl_b32 s{sT0}, s{sI}, 2")
    k.op(f"s_add_u32 s{sT0}, s{sT0}, s{sW}")
    k.op(f"s_mul_i32 s{sT0}, s{sT0}, {112*1024}")
    k.op(f"s_lshl_b32 s{sT1}, s{sJ}, 13")
    k.op(f"s_add_u32 s{sT0}, s{sT0}, s{sT1}")
    k.op("v_lshlrev_b32 v1, 4, v0")
    for mt in range(8):
        G = vACC + 16 * mt; U = G + 8
        T = 20 + (mt % 2) * 24
        tp = lambda p: T + 2 * p
        gu = lambda p: T + 8 + 2 * p
        O = T + 16
        P = range(4)
        for p in P: k.op(f"v_pk_mul_f32 {vr(tp(p),2)}, {vr(G+2*p,2)}, {vr(G+2*p,2)}")
        for p in P: k.op(f"v_pk_fma_f32 {vr(tp(p),2)}, {vr(tp(p),2)}, {vr(vC,2)}, {vr(vC,2)} op_sel:[0,1,0] op_sel_hi:[1,1,0]")
        for p in P: k.op(f"v_pk_mul_f32 {vr(tp(p),2)}, {vr(tp(p),2)}, {vr(G+2*p,2)}")
        for p in P:
            k.op(f"v_exp_f32 v{tp(p)}, v{tp(p)}"); k.op(f"v_exp_f32 v{tp(p)+1}, v{tp(p)+1}")
        for p in P: k.op(f"v_pk_mul_f32 {vr(gu(p),2)}, {vr(G+2*p,2)}, {vr(U+2*p,2)}")
        for p in P: k.op(f"v_pk_add_f32 {vr(tp(p),2)}, {vr(tp(p),2)}, {vr(vONE,2)}")
        for p in P:
            k.op(f"v_rcp_f32 v{tp(p)}, v{tp(p)}"); k.op(f"v_rcp_f32 v{tp(p)+1}, v{tp(p)+1}")
        k.op("s_nop 0")
        for p in P: k.op(f"v_pk_mul_f32 {vr(gu(p),2)}, {vr(gu(p),2)}, {vr(tp(p),2)}")
        for p in P: k.op(f"v_cvt_pk_bf16_f32 v{O+p}, v{gu(p)}, v{gu(p)+1}")
        if mt % 4 == 0 and mt > 0:
            k.op(f"s_add_u32 s{sT0}, s{sT0}, 4096")
        k.vm(f"buffer_store_dwordx4 {vr(O,4)}, v1, s[{rWS}:{rWS+3}], s{sT0} offen offset:{(mt%4)*1024} sc1", "hst")


PP_ROW = 900
PP_K = 0
PP_V = 67 * PP_ROW + 4
def prepass(k):
    k.op(f"s_sub_u32 s{sT0}, s{sSLOT}, 28")
    k.op(f"s_lshl_b32 s{sT0}, s{sT0}, 3")
    k.op(f"s_add_u32 s{sI}, s{sT0}, s{sXCD}")
    k.op("v_lshlrev_b32 v1, 4, v0")
    k.op("s_waitcnt lgkmcnt(0)")
    srd(k, rK, sPK, S * D * 2)
    srd(k, rV, sPV, S * D * 2)
    srd(k, rX, sPSK, D * 4 * 2)
    srd(k, rWS, sPWS, (16 << 20) if STAMPS else WS_USED)
    k.op("s_mov_b32 exec_hi, 0x00ffffff")
    k.op(f"s_lshl_b32 s{sT0}, s{sI}, 6")
    k.op(f"s_add_u32 s{sT0}, s{sT0}, s{sW}")
    k.op(f"s_sub_u32 s{sT1}, s{sT0}, 3")
    k.op(f"s_mul_i32 s{sT1}, s{sT1}, 896")
    k.op(f"s_mul_i32 s{sT2}, s{sW}, {PP_ROW}")
    k.op(f"s_add_u32 m0, s{sT2}, {PP_K}")
    k.op(f"v_add_u32 v2, s{sT1}, v1")
    for n in range(17):
        if n == 16:
            lab = k.newlabel("Lpk")
            k.op(f"s_cmp_eq_u32 s{sW}, 3")
            k.op(f"s_cbranch_scc1 {lab}")
            k.op(f"buffer_load_dwordx4 v2, s[{rK}:{rK+3}], 0 offen lds")
            k.label(lab)
            k.vmq.append("k")
        else:
            k.vm(f"buffer_load_dwordx4 v2, s[{rK}:{rK+3}], 0 offen lds", "k")
            k.op(f"s_add_u32 m0, m0, {4*PP_ROW}")
            k.op(f"v_add_u32 v2, {4*896}, v2")
    k.op(f"s_mul_i32 s{sT1}, s{sT0}, 896")
    k.op(f"s_add_u32 m0, s{sT2}, {PP_V}")
    k.op("s_nop 0")
    for n in range(16):
        k.vm(f"buffer_load_dwordx4 v1, s[{rV}:{rV+3}], s{sT1} offen lds", "v")
        if n < 15:
            k.op(f"s_add_u32 m0, m0, {4*PP_ROW}")
            k.op(f"s_add_u32 s{sT1}, s{sT1}, {4*896}")
    k.op("s_mov_b32 exec_hi, -1")
    k.op("v_and_b32 v2, 3, v0")
    k.op("v_lshrrev_b32 v3, 5, v0")
    k.op("v_lshl_add_u32 v2, v3, 2, v2")
    k.op("v_bfe_u32 v3, v0, 2, 3")
    k.op(f"v_mul_u32_u24 v4, {8*PP_ROW}, v2")
    k.op("v_lshl_add_u32 v4, v3, 2, v4")
    k.op(f"s_lshl_b32 s{sT0}, s{sW}, 5")
    k.op(f"v_add_u32 v4, s{sT0}, v4")
    k.op(f"v_add_u32 v8, {PP_V}, v4")
    k.op("v_lshlrev_b32 v5, 4, v3")
    k.op(f"s_lshl_b32 s{sT0}, s{sW}, 7")
    k.op(f"v_add_u32 v5, s{sT0}, v5")
    k.op("v_lshlrev_b32 v6, 13, v3")
    k.op(f"s_lshl_b32 s{sT0}, s{sW}, 16")
    k.op(f"v_add_u32 v6, s{sT0}, v6")
    k.op("v_lshlrev_b32 v7, 4, v2")
    k.op("v_sub_u32 v6, v6, v7")
    k.op(f"s_lshl_b32 s{sT0}, s{sI}, 7")
    k.op(f"s_sub_u32 s{sT0}, {U_OFF + (2047 - 7) * 2}, s{sT0}")
    k.op(f"v_add_u32 v6, s{sT0}, v6")
    for it in range(7):
        k.vm(f"buffer_load_dwordx4 {vr(100 + 4*it, 4)}, v5, s[{rX}:{rX+3}], 0 offen offset:{it*512}", "sk")
    k.wait_all()
    k.op("s_barrier")
    KR, VR = 16, 28
    for it in range(7):
        coff = it * 128
        for j in range(11):
            k.lg(f"ds_read_b32 v{KR+j}, v4 offset:{PP_K + j*PP_ROW + coff}", "kr")
        k.wait(lg="kr")
        for j in range(8):
            k.lg(f"ds_read_b32 v{VR+j}, v8 offset:{j*PP_ROW + coff}", "vr")
        for j in range(11):
            k.op(f"v_lshlrev_b32 v{40+2*j}, 16, v{KR+j}")
            k.op(f"v_and_b32 v{41+2*j}, 0xffff0000, v{KR+j}")
        sk = 100 + 4 * it
        k.op(f"v_lshlrev_b32 v64, 16, v{sk}");   k.op(f"v_lshlrev_b32 v65, 16, v{sk+2}")
        k.op(f"v_and_b32 v66, 0xffff0000, v{sk}"); k.op(f"v_and_b32 v67, 0xffff0000, v{sk+2}")
        k.op(f"v_lshlrev_b32 v68, 16, v{sk+1}"); k.op(f"v_lshlrev_b32 v69, 16, v{sk+3}")
        k.op(f"v_and_b32 v70, 0xffff0000, v{sk+1}"); k.op(f"v_and_b32 v71, 0xffff0000, v{sk+3}")
        k.wait(lg="vr")
        for j in range(8):
            k.op(f"v_lshlrev_b32 v{72+2*j}, 16, v{VR+j}")
            k.op(f"v_and_b32 v{73+2*j}, 0xffff0000, v{VR+j}")
        for t in range(8):
            o = 130 + 2 * t
            k.op(f"v_pk_mul_f32 {vr(o,2)}, {vr(40+2*(t+3),2)}, {vr(64,2)}")
        for j in range(1, 4):
            for t in range(8):
                o = 130 + 2 * t
                k.op(f"v_pk_fma_f32 {vr(o,2)}, {vr(40+2*(t+3-j),2)}, {vr(64+2*j,2)}, {vr(o,2)}")
        for t in range(8):
            o = 130 + 2 * t
            k.op(f"v_pk_mul_f32 {vr(o,2)}, {vr(o,2)}, {vr(72+2*t,2)}")
        O = 150 + 8 * (it % 2)
        for q in range(4):
            k.op(f"v_cvt_pk_bf16_f32 v{O+q}, v{130+2*(7-2*q)}, v{130+2*(6-2*q)}")
            k.op(f"v_cvt_pk_bf16_f32 v{O+4+q}, v{131+2*(7-2*q)}, v{131+2*(6-2*q)}")
        k.op(f"s_mov_b32 s{sT0}, {it * 64 * 4096}")
        k.op(f"s_mov_b32 s{sT1}, {it * 64 * 4096 + 4096}")
        k.vm(f"buffer_store_dwordx4 {vr(O,4)}, v6, s[{rWS}:{rWS+3}], s{sT0} offen sc1", "ust")
        k.vm(f"buffer_store_dwordx4 {vr(O+4,4)}, v6, s[{rWS}:{rWS+3}], s{sT1} offen sc1", "ust")

HC_STRIDE = 4160
HC_CH = 4 * HC_STRIDE
UR_CH = 4608
def conv(k, HC, UR, XCH, standalone):
    k.op(f"s_lshr_b32 s{sT0}, s{sW}, 1")
    k.op(f"s_lshl_b32 s{sI}, s{sWGM}, 1")
    k.op(f"s_add_u32 s{sI}, s{sI}, s{sT0}")
    srd(k, rSSM, sPSSM, D * S * 2)
    srd(k, rX, sPD, D * 2)
    k.op("v_lshlrev_b32 v1, 4, v0")
    k.op(f"s_and_b32 s{sT1}, s{sW}, 1")
    k.op(f"s_lshl_b32 s{sT1}, s{sT1}, 1")
    k.op(f"s_mul_i32 s{sT2}, s{sT0}, {HC_CH}")
    k.op(f"s_mul_i32 s{sT3}, s{sT1}, {HC_STRIDE}")
    k.op(f"s_add_u32 s{sT2}, s{sT2}, s{sT3}")
    k.op(f"s_add_u32 s{sT2}, s{sT2}, {HC + 32}")
    k.op(f"s_lshl_b32 s{sT3}, s{sI}, 12")
    k.op(f"s_lshl_b32 s{sT1}, s{sT1}, 1")
    k.op(f"s_add_u32 s{sT3}, s{sT3}, s{sT1}")
    k.op(f"s_add_u32 s{sT3}, s{sT3}, 2")
    for rr in range(2):
        k.op(f"s_add_u32 m0, s{sT2}, {rr * HC_STRIDE}")
        k.op(f"s_add_u32 s{sT1}, s{sT3}, {rr * 2}")
        for q in range(4):
            k.vm(f"buffer_load_dwordx4 v1, s[{rSSM}:{rSSM+3}], s{sT1} offen offset:{q*1024} lds", "hc")
    k.op("v_lshrrev_b32 v2, 4, v0")
    k.op("v_and_b32 v3, 15, v0")
    k.op("v_add_u32 v4, v2, v3")
    k.op("v_subrev_u32 v4, 15, v4")
    k.op("v_lshlrev_b32 v4, 1, v4")
    k.op(f"s_lshl_b32 s{sT1}, s{sI}, 12")
    k.op("v_cmp_gt_i32 vcc, 0, v4")
    k.op(f"v_mov_b32 v5, 0x7fffffff")
    k.op("s_nop 0")
    k.op("v_cndmask_b32 v4, v4, v5, vcc")
    k.vm(f"buffer_load_ushort v6, v4, s[{rSSM}:{rSSM+3}], s{sT1} offen", "hf")
    k.op(f"s_lshl_b32 s{sT1}, s{sI}, 1")
    k.op("v_mov_b32 v7, 0")
    k.vm(f"buffer_load_ushort v8, v7, s[{rX}:{rX+3}], s{sT1} offen", "dv")
    srd(k, rWS, sPWS, (16 << 20) if STAMPS else WS_USED)
    k.op(f"s_and_b32 s{sT1}, s{sW}, 1")
    k.op(f"s_lshl_b32 s{sT1}, s{sT1}, 11")
    k.op(f"s_mul_i32 s{sT2}, s{sT0}, {UR_CH}")
    k.op(f"s_add_u32 s{sT2}, s{sT2}, s{sT1}")
    k.op(f"s_add_u32 m0, s{sT2}, {UR}")
    k.op(f"s_lshl_b32 s{sT3}, s{sI}, 12")
    k.op(f"s_add_u32 s{sT3}, s{sT3}, s{sT1}")
    k.op(f"s_add_u32 s{sT3}, s{sT3}, {U_OFF}")
    k.vm(f"buffer_load_dwordx4 v1, s[{rWS}:{rWS+3}], s{sT3} offen sc1 lds", "ur")
    k.vm(f"buffer_load_dwordx4 v1, s[{rWS}:{rWS+3}], s{sT3} offen offset:1024 sc1 lds", "ur")
    k.op("v_mov_b32 v10, 0"); k.op("v_mov_b32 v11, 0"); k.op("v_mov_b32 v12, 0"); k.op("v_mov_b32 v13, 0")
    k.op(f"s_mul_i32 s{sT2}, s{sT0}, {UR_CH}")
    k.op(f"s_add_u32 s{sT2}, s{sT2}, {UR + 4096}")
    k.op(f"v_add_u32 v9, s{sT2}, v1")
    k.op("s_mov_b32 exec_hi, 0")
    k.lg("ds_write_b128 v9, v[10:13]", "z")
    k.op("s_mov_b32 exec_hi, -1")
    k.op(f"v_mul_u32_u24 v9, {HC_STRIDE}, v2")
    k.op("v_lshl_add_u32 v9, v3, 1, v9")
    k.op(f"s_mul_i32 s{sT2}, s{sT0}, {HC_CH}")
    k.op(f"s_add_u32 s{sT2}, s{sT2}, {HC}")
    k.op(f"v_add_u32 v9, s{sT2}, v9")
    k.wait(vm="hf")
    k.lg("ds_write_b16 v9, v6", "z")
    k.op("v_bfe_u32 v2, v0, 2, 2")
    k.op(f"v_mul_u32_u24 v14, {HC_STRIDE}, v2")
    k.op("v_and_b32 v3, 3, v0")
    k.op("v_lshl_add_u32 v14, v3, 3, v14")
    k.op("v_lshrrev_b32 v3, 4, v0")
    k.op("v_lshl_add_u32 v14, v3, 4, v14")
    k.op(f"s_and_b32 s{sT1}, s{sW}, 1")
    k.op(f"s_lshl_b32 s{sT1}, s{sT1}, 8")
    k.op(f"s_add_u32 s{sT2}, s{sT2}, s{sT1}")
    k.op(f"v_add_u32 v14, s{sT2}, v14")
    k.op("v_and_b32 v4, 15, v0")
    k.op("v_lshlrev_b32 v4, 5, v4")
    k.op("v_lshlrev_b32 v5, 4, v3")
    k.op("v_sub_u32 v15, v5, v4")
    k.op(f"s_mul_i32 s{sT2}, s{sT0}, {UR_CH}")
    k.op(f"s_add_u32 s{sT2}, s{sT2}, {UR + 4064 - 3584}")
    k.op(f"s_add_u32 s{sT3}, s{sT2}, s{sT1}")
    k.op(f"v_add_u32 v15, s{sT3}, v15")
    k.op("v_lshlrev_b32 v5, 3, v3")
    k.op("v_add_u32 v4, v4, v5")
    k.op(f"s_add_u32 s{sT2}, s{sT2}, {4088 - 3584 - (4064 - 3584)}")
    k.op(f"v_sub_u32 v13, s{sT2}, v4")
    k.wait_all()
    k.op("v_lshlrev_b32 v8, 16, v8")
    k.op("s_barrier")
    stamp(k, "c_ready")
    FB = [16, 48]
    GB = 80
    ACC = 96
    def rdF(sub, J):
        b = FB[sub % 2] + 4 * J
        off = 64 * (8 * J + sub)
        return [(f"ds_read_b64_tr_b16 {vr(b,2)}, v14 offset:{off}", f"F{sub}_{J}"),
                (f"ds_read_b64_tr_b16 {vr(b+2,2)}, v14 offset:{off+8}", f"F{sub}_{J}")]
    def rdG(sub, T):
        idx = sub * 8 + (7 - T)
        b = GB + 4 * (idx % 4)
        return (f"ds_read_b128 {vr(b,4)}, v15 offset:{512*(7-T) + 64*sub}", f"G{sub}_{T}")
    seq = []
    for sub in range(4):
        for T in range(7, -1, -1):
            for J in range(0, 8 - T):
                seq.append((sub, T, J))
    for J in range(4):
        for t in rdF(0, J): k.lg(*t)
    for T in (7, 6, 5): k.lg(*rdG(0, T))
    pendF = [(0, J) for J in range(4, 8)] + [(s, J) for s in range(1, 4) for J in range(8)]
    gq = [(s, T) for s in range(4) for T in range(7, -1, -1)][3:]
    first = set()
    lastG = None
    for n, (sub, T, J) in enumerate(seq):
        k.wait(lg=[f"F{sub}_{J}", f"G{sub}_{T}"])
        tile = T + J
        a = vr(ACC + 4 * tile, 4)
        cin = a if tile in first else "0"
        first.add(tile)
        gidx = sub * 8 + (7 - T)
        k.op(f"v_mfma_f32_16x16x32_bf16 {a}, {vr(FB[sub%2]+4*J,4)}, {vr(GB+4*(gidx%4),4)}, {cin}")
        if (sub, T) != lastG:
            lastG = (sub, T)
            if gq:
                s2, T2 = gq.pop(0)
                k.lg(*rdG(s2, T2))
        if pendF:
            s2, J2 = pendF[0]
            ok = (s2 == sub) or (s2 == sub + 1 and True)
            if ok and len(k.lgq) <= 12:
                pendF.pop(0)
                for t in rdF(s2, J2): k.lg(*t)
    assert not pendF and not gq
    stamp(k, "c_mfma")
    k.op("s_nop 7")
    k.op(f"s_lshl_b32 s{sT0}, s{sW}, 12")
    k.op(f"s_add_u32 s{sT0}, s{sT0}, {XCH}")
    k.op(f"v_add_u32 v2, s{sT0}, v1")
    k.op(f"s_xor_b32 s{sT1}, s{sW}, 1")
    k.op(f"s_lshl_b32 s{sT1}, s{sT1}, 12")
    k.op(f"s_add_u32 s{sT1}, s{sT1}, {XCH}")
    k.op(f"v_add_u32 v3, s{sT1}, v1")
    lo, le = k.newlabel("Lcodd"), k.newlabel("Lcend")
    def finish(keep, send):
        for i in range(4):
            k.op(f"ds_write_b128 v2, {vr(ACC + 4*(send+i), 4)} offset:{1024*i}")
        for i in range(4):
            k.op(f"ds_read_b64 {vr(40+2*i,2)}, v13 offset:{512*(7-(keep+i))}")
        k.op("s_waitcnt lgkmcnt(0)")
        k.op("s_barrier")
        for i in range(4):
            k.op(f"ds_read_b128 {vr(16+4*i,4)}, v3 offset:{1024*i}")
        k.op("s_waitcnt lgkmcnt(0)")
        for i in range(4):
            A = ACC + 4 * (keep + i)
            k.op(f"v_pk_add_f32 {vr(A,2)}, {vr(A,2)}, {vr(16+4*i,2)}")
            k.op(f"v_pk_add_f32 {vr(A+2,2)}, {vr(A+2,2)}, {vr(18+4*i,2)}")
            U = 40 + 2 * i
            k.op(f"v_and_b32 v50, 0xffff0000, v{U+1}")
            k.op(f"v_lshlrev_b32 v51, 16, v{U+1}")
            k.op(f"v_and_b32 v52, 0xffff0000, v{U}")
            k.op(f"v_lshlrev_b32 v53, 16, v{U}")
            for r in range(4):
                k.op(f"v_fmac_f32 v{A+r}, v{50+r}, v8")
            k.op(f"v_cvt_pk_bf16_f32 v{56+2*i}, v{A}, v{A+1}")
            k.op(f"v_cvt_pk_bf16_f32 v{57+2*i}, v{A+2}, v{A+3}")
        for i in range(4):
            k.op(f"buffer_store_dwordx2 {vr(56+2*i,2)}, v4, s[{rWS}:{rWS+3}], s{sT2} offen offset:{512*(keep+i)} sc1")
    k.op(f"s_lshl_b32 s{sT2}, s{sI}, 12")
    k.op(f"s_add_u32 s{sT2}, s{sT2}, {Y_OFF}")
    k.op(f"s_bitcmp1_b32 s{sW}, 0")
    k.op(f"s_cbranch_scc1 {lo}")
    finish(0, 4)
    k.op(f"s_branch {le}")
    k.label(lo)
    finish(4, 0)
    k.label(le)
    for i in range(4): k.vmq.append("yst")


WD_WAVE = 14 * 2048
sTT, sDT = 81, 82
sWDS = 83
sWDM = 84
def g2_setup(k, WDST):
    k.op(f"s_mul_i32 s{sT0}, s{sSLOT}, 37")
    k.op(f"s_lshr_b32 s{sT0}, s{sT0}, 8")
    k.op(f"s_mul_i32 s{sT1}, s{sT0}, 7")
    k.op(f"s_sub_u32 s{sDT}, s{sSLOT}, s{sT1}")
    k.op(f"s_lshl_b32 s{sTT}, s{sXCD}, 2")
    k.op(f"s_add_u32 s{sTT}, s{sTT}, s{sT0}")
    srd(k, rWD, sPWD, F * D * 2)
    k.op("v_lshrrev_b32 v3, 3, v0")
    k.op("v_mul_u32_u24 v2, 896, v3")
    k.op("v_bfe_u32 v3, v0, 4, 1")
    k.op("v_lshlrev_b32 v3, 2, v3")
    k.op("v_and_b32 v4, 7, v0")
    k.op("v_xor_b32 v3, v3, v4")
    k.op("v_lshl_add_u32 v2, v3, 4, v2")
    k.op(f"s_mul_i32 s{sWDS}, s{sW}, {16*28*896}")
    k.op(f"s_lshl_b32 s{sT0}, s{sDT}, 7")
    k.op(f"s_add_u32 s{sWDS}, s{sWDS}, s{sT0}")
    k.op(f"s_mul_i32 s{sWDM}, s{sW}, {WD_WAVE}")
    k.op(f"s_add_u32 s{sWDM}, s{sWDM}, {WDST}")
    k.op("v_lshrrev_b32 v5, 5, v0")
    k.op("v_bfe_u32 v6, v0, 2, 2")
    k.op("v_lshl_add_u32 v5, v5, 2, v6")
    k.op("v_lshlrev_b32 v5, 7, v5")
    k.op("v_bfe_u32 v7, v0, 4, 1")
    k.op("v_lshl_add_u32 v5, v7, 5, v5")
    k.op("v_and_b32 v7, 3, v0")
    k.op("v_lshl_add_u32 v5, v7, 3, v5")
    k.op(f"v_add_u32 v5, s{sWDM}, v5")
    k.op("v_bfe_u32 v6, v0, 3, 1")
    k.op("v_lshlrev_b32 v6, 6, v6")
    k.op("v_add_u32 v3, v5, v6")
    k.op("v_xor_b32 v6, 64, v6")
    k.op("v_add_u32 v4, v5, v6")

def g2_wd_dma(k, rnd):
    for q in range(28):
        ks = 14 * rnd + q // 2; hh = q % 2
        if q % 4 == 0:
            k.op(f"s_add_u32 m0, s{sWDM}, {(q // 4) * 4096}")
        k.op(f"s_add_u32 s{sT3}, s{sWDS}, {(16 * ks + 8 * hh) * 896 - (q % 4) * 1024}")
        k.vm(f"buffer_load_dwordx4 v2, s[{rWD}:{rWD+3}], s{sT3} offen offset:{(q % 4) * 1024} lds", f"wd{rnd}")

def g2_wd_read(k, rnd):
    for q in range(14):
        ks = 14 * rnd + q
        for dt2 in range(2):
            for t in range(2):
                if len(k.lgq) >= 12: k.wait(lg=k.lgq[5])
                a = 8 * ks + 4 * dt2 + 2 * t
                k.lg(f"ds_read_b64_tr_b16 {ar(a,2)}, v{3+dt2} offset:{q*2048 + t*1024}", f"wr{ks}_{dt2}_{t}")

vH = 16; NHS = 22; vA2 = 192
def g2_hload(k, ks):
    for e in range(2):
        b = vH + 8 * (ks % NHS) + 4 * e
        k.vm(f"buffer_load_dwordx4 {vr(b,4)}, v1, s[{rWS}:{rWS+3}], s{76+e} offen offset:{(ks%4)*1024} sc1", f"h{ks}")

def g2_main(k, YT, RED):
    k.op("v_lshlrev_b32 v1, 4, v0")
    k.op(f"s_lshl_b32 s{sT0}, s{sTT}, 1")
    k.op(f"s_mul_i32 s{sT0}, s{sT0}, 112")
    k.op(f"s_mul_i32 s{sT1}, s{sW}, 28")
    k.op(f"s_add_u32 s{sT0}, s{sT0}, s{sT1}")
    k.op(f"s_lshl_b32 s76, s{sT0}, 10")
    k.op(f"s_add_u32 s77, s76, {112*1024}")
    def adv(ks):
        if ks % 4 == 0 and ks > 0:
            k.op("s_add_u32 s76, s76, 4096"); k.op("s_add_u32 s77, s77, 4096")
    for ks in range(NHS):
        adv(ks); g2_hload(k, ks)
    k.op("v_lshrrev_b32 v5, 3, v0")
    k.op(f"s_lshl_b32 s{sT0}, s{sW}, 3")
    k.op(f"v_add_u32 v5, s{sT0}, v5")
    k.op("v_and_b32 v6, 7, v0")
    k.op("v_mul_u32_u24 v7, 896, v5")
    k.op("v_lshl_add_u32 v7, v6, 4, v7")
    k.op(f"s_mul_i32 s78, s{sTT}, {64*896}")
    k.op(f"s_lshl_b32 s{sT0}, s{sDT}, 7")
    k.op("s_add_u32 s78, s78, s%d" % sT0)
    k.op(f"s_add_u32 s79, s78, {32*896}")
    srd(k, rX, sPQ, S * D * 2)
    srd(k, rOUT, sPOUT, S * D * 2)
    return

def g2_epi_loads(k, YT):
    k.vm(f"buffer_load_dwordx4 {ar(224,4)}, v7, s[{rX}:{rX+3}], s78 offen", "ex")
    k.vm(f"buffer_load_dwordx4 {ar(228,4)}, v7, s[{rX}:{rX+3}], s79 offen", "ex")
    k.op("v_lshlrev_b32 v8, 3, v5")
    k.op(f"s_lshl_b32 s{sT0}, s{sTT}, 9")
    k.op(f"s_add_u32 s{sT0}, s{sT0}, {ST_OFF}")
    k.vm(f"buffer_load_dwordx2 {ar(232,2)}, v8, s[{rWS}:{rWS+3}], s{sT0} offen sc1", "ex")
    k.vm(f"buffer_load_dwordx2 {ar(234,2)}, v8, s[{rWS}:{rWS+3}], s{sT0} offen offset:256 sc1", "ex")
    k.op("v_lshrrev_b32 v8, 3, v0")
    k.op("v_lshlrev_b32 v8, 12, v8")
    k.op("v_lshl_add_u32 v8, v6, 4, v8")
    k.op(f"s_lshl_b32 s{sT0}, s{sDT}, 18")
    k.op(f"s_lshl_b32 s{sT1}, s{sW}, 16")
    k.op(f"s_add_u32 s{sT0}, s{sT0}, s{sT1}")
    k.op(f"s_lshl_b32 s{sT1}, s{sTT}, 7")
    k.op(f"s_add_u32 s{sT0}, s{sT0}, s{sT1}")
    k.op(f"s_add_u32 s{sT0}, s{sT0}, {Y_OFF}")
    k.op(f"s_mul_i32 s{sT1}, s{sW}, 2080")
    k.op(f"s_add_u32 m0, s{sT1}, {YT}")
    k.op(f"s_add_u32 s{sT2}, s{sT0}, {8*4096 - 1040}")
    k.vm(f"buffer_load_dwordx4 v8, s[{rWS}:{rWS+3}], s{sT0} offen sc1 lds", "ey")
    k.vm(f"buffer_load_dwordx4 v8, s[{rWS}:{rWS+3}], s{sT2} offen offset:1040 sc1 lds", "ey")

def g2_loop(k, YT, RED, epi_at):
    first = set()
    for ks in range(28):
        k.wait(vm=f"h{ks}")
        for dt2 in range(2):
            for e in range(2):
                t = 2 * dt2 + e
                acc = vr(vA2 + 16 * t, 16)
                cin = acc if t in first else "0"
                first.add(t)
                hb = vH + 8 * (ks % NHS) + 4 * e
                k.op(f"v_mfma_f32_32x32x16_bf16 {acc}, {ar(8*ks+4*dt2,4)}, {vr(hb,4)}, {cin}")
        if ks + NHS < 28:
            kn = ks + NHS
            if kn % 4 == 0:
                k.op("s_add_u32 s76, s76, 4096"); k.op("s_add_u32 s77, s77, 4096")
            g2_hload(k, kn)
        if ks == epi_at:
            g2_epi_loads(k, YT)

def g2_epilogue(k, YT, RED):
    RROW = 272; RW = 64 * RROW
    k.op("v_and_b32 v8, 31, v0")
    k.op(f"v_mul_u32_u24 v8, {RROW}, v8")
    k.op("v_lshrrev_b32 v9, 5, v0")
    k.op("v_lshl_add_u32 v8, v9, 4, v8")
    k.op(f"s_mul_i32 s{sT0}, s{sW}, {RW}")
    k.op(f"s_add_u32 s{sT0}, s{sT0}, {RED}")
    k.op(f"v_add_u32 v8, s{sT0}, v8")
    k.op("s_nop 7")
    for dt2 in range(2):
        for e in range(2):
            for g in range(4):
                if len(k.lgq) >= 12: k.wait(lg=k.lgq[5])
                A = vA2 + 16 * (2 * dt2 + e) + 4 * g
                k.lg(f"ds_write_b128 v8, {vr(A,4)} offset:{e*32*RROW + dt2*128 + g*32}", f"rw{dt2}{e}{g}")
    k.op(f"v_mov_b32 v10, {hex(f2u(-1.4426950408889634))}")
    k.op("v_mov_b32 v11, 1.0")
    k.wait_all()
    k.op("s_barrier")
    k.op(f"v_mul_u32_u24 v8, {RROW}, v5")
    k.op("v_lshl_add_u32 v8, v6, 5, v8")
    k.op(f"v_add_u32 v8, {RED}, v8")
    k.op("v_mul_u32_u24 v9, 1040, v6")
    k.op("v_lshl_add_u32 v9, v5, 1, v9")
    k.op(f"v_add_u32 v9, {YT}, v9")
    for ps in range(2):
        B = 16 + 64 * ps
        for w in range(4):
            for hh in range(2):
                if len(k.lgq) >= 12: k.wait(lg=k.lgq[5])
                k.lg(f"ds_read_b128 {vr(B + 8*w + 4*hh, 4)}, v8 offset:{w*RW + ps*32*RROW + hh*16}", f"p{ps}")
        for e in range(8):
            k.op(f"v_mov_b32 v{B+32+e}, 0")
        for e in range(8):
            if len(k.lgq) >= 12: k.wait(lg=k.lgq[5])
            k.lg(f"ds_read_u16_d16_hi v{B+32+e}, v9 offset:{e*128 + ps*64}", f"y{ps}")
    for ps in range(2):
        B = 16 + 64 * ps
        Yr = B + 32; T = B + 40
        k.wait(lg=[f"p{ps}", f"y{ps}"])
        for q in range(4):
            k.op(f"v_pk_add_f32 {vr(B+2*q,2)}, {vr(B+2*q,2)}, {vr(B+8+2*q,2)}")
            k.op(f"v_pk_add_f32 {vr(B+16+2*q,2)}, {vr(B+16+2*q,2)}, {vr(B+24+2*q,2)}")
        for q in range(4):
            k.op(f"v_pk_add_f32 {vr(B+2*q,2)}, {vr(B+2*q,2)}, {vr(B+16+2*q,2)}")
        for q in range(4):
            k.op(f"v_accvgpr_read_b32 v{T+q}, a{224+4*ps+q}")
        k.op(f"v_accvgpr_read_b32 v{T+4}, a{232+2*ps}")
        k.op(f"v_accvgpr_read_b32 v{T+5}, a{233+2*ps}")
        X = B + 8
        for q in range(4):
            k.op(f"v_lshlrev_b32 v{X+2*q}, 16, v{T+q}")
            k.op(f"v_and_b32 v{X+2*q+1}, 0xffff0000, v{T+q}")
        E = B + 16
        N = B + 24
        for q in range(4):
            k.op(f"v_pk_mul_f32 {vr(E+2*q,2)}, {vr(B+2*q,2)}, {vr(10,2)} op_sel_hi:[1,0]")
            k.op(f"v_pk_fma_f32 {vr(N+2*q,2)}, {vr(X+2*q,2)}, {vr(T+4,2)}, {vr(T+4,2)} op_sel:[0,0,1] op_sel_hi:[1,0,1]")
        for q in range(8):
            k.op(f"v_exp_f32 v{E+q}, v{E+q}")
        for q in range(4):
            k.op(f"v_pk_mul_f32 {vr(N+2*q,2)}, {vr(N+2*q,2)}, {vr(Yr+2*q,2)}")
        for q in range(4):
            k.op(f"v_pk_add_f32 {vr(E+2*q,2)}, {vr(E+2*q,2)}, {vr(10,2)} op_sel:[0,1] op_sel_hi:[1,1]")
        for q in range(8):
            k.op(f"v_rcp_f32 v{E+q}, v{E+q}")
        for q in range(4):
            k.op(f"v_pk_mul_f32 {vr(N+2*q,2)}, {vr(N+2*q,2)}, {vr(B+2*q,2)}")
        for q in range(4):
            k.op(f"v_pk_fma_f32 {vr(N+2*q,2)}, {vr(N+2*q,2)}, {vr(E+2*q,2)}, {vr(X+2*q,2)}")
        pert = [o for o in OPT if o.startswith("pert")]
        if pert and ps == 0:
            lab = k.newlabel("Lpert")
            k.op("s_cmp_lg_u32 s2, 0"); k.op(f"s_cbranch_scc1 {lab}")
            k.op(f"s_cmp_lg_u32 s{sW}, 0"); k.op(f"s_cbranch_scc1 {lab}")
            k.op("s_mov_b64 exec, 1")
            k.op(f"v_add_f32 v{N}, {hex(f2u(float(pert[0][4:])))}, v{N}")
            k.op("s_mov_b64 exec, -1")
            k.label(lab)
        for q in range(4):
            k.op(f"v_cvt_pk_bf16_f32 v{T+8+q}, v{N+2*q}, v{N+2*q+1}")
        k.vm(f"buffer_store_dwordx4 {vr(T+8,4)}, v7, s[{rOUT}:{rOUT+3}], s{78+ps} offen", "ost")

def kd(name, vgpr=512, acc=256):
    return f""".section .rodata,"a"
.p2align 6
.amdhsa_kernel {name}
  .amdhsa_next_free_vgpr {vgpr}
  .amdhsa_next_free_sgpr 102
  .amdhsa_accum_offset {acc}
  .amdhsa_group_segment_fixed_size 0
  .amdhsa_kernarg_size 104
  .amdhsa_user_sgpr_count 2
  .amdhsa_user_sgpr_kernarg_segment_ptr 1
  .amdhsa_system_sgpr_workgroup_id_x 1
  .amdhsa_float_denorm_mode_32 3
.end_amdhsa_kernel
.text
"""

def kernel_head(name):
    return f""".globl {name}
.p2align 8
.type {name},@function
{name}:
"""

HEADER = open("cdna_kernels/" + NAME + ".s.ref").read().split("; Override launch")[0]

def build_multi(parts):
    out = [HEADER]
    for name, grid, lds, _ in parts:
        out.append(f"; @launch kernel={name} grid=({grid},1,1) block=(256,1,1) lds={lds}\n")
    out.append('.amdgcn_target "amdgcn-amd-amdhsa--gfx950"\n.text\n')
    for name, grid, lds, body in parts:
        out.append(kernel_head(name))
        out.append(body)
        out.append("s_endpgm\n")
        out.append(kd(name))
    return "".join(out)

def wgm_index(k):
    k.op(f"s_mul_i32 s{sWGM}, s{sXCD}, 28")
    k.op(f"s_add_u32 s{sWGM}, s{sWGM}, s{sSLOT}")

if __name__ == "__main__":
    if len(sys.argv) > 2 and sys.argv[2].startswith("stamps"):
        STAMPS = True
        if "=" in sys.argv[2]: STAMPSET = sys.argv[2].split("=")[1].split(",")
    if len(sys.argv) > 3: OPT.update(sys.argv[3].split(","))
    parts = []
    k = K()
    prologue(k, "La_exit", 256)
    k.op(f"s_cmp_ge_u32 s{sSLOT}, 28")
    k.op("s_cbranch_scc1 La_pre")
    gemm1(k)
    stamp(k, "e_gelu")
    k.wait_all()
    stamp(k, "e_drain")
    if "ka" in OPT: stamp_flush(k)
    k.op("s_endpgm")
    k.label("La_pre")
    k.vmq = []; k.lgq = []
    prepass(k)
    k.label("La_exit")
    parts.append(("ka_kernel", 256, LDS_TOTAL, k.text()))
    del stamped[:]
    k = K()
    prologue(k, "Lb_exit", 256)
    k.op(f"s_cmp_ge_u32 s{sSLOT}, 28")
    k.op("s_cbranch_scc1 Lb_exit")
    wgm_index(k)
    k.op("s_waitcnt lgkmcnt(0)")
    conv(k, 0, 2 * HC_CH, 2 * HC_CH + 2 * UR_CH, True)
    stamp(k, "c_end")
    if "kb" in OPT: stamp_flush(k)
    k.label("Lb_exit")
    parts.append(("kb_kernel", 256, 65536, k.text()))
    del stamped[:]
    k = K()
    prologue(k, "Lc_exit", 256)
    k.op(f"s_cmp_ge_u32 s{sSLOT}, 28")
    k.op("s_cbranch_scc1 Lc_exit")
    k.op("s_waitcnt lgkmcnt(0)")
    srd(k, rWS, sPWS, (16 << 20) if STAMPS else WS_USED)
    g2_setup(k, 0)
    g2_wd_dma(k, 0)
    k.wait(vm="wd0")
    g2_wd_read(k, 0)
    k.wait_all()
    g2_wd_dma(k, 1)
    k.wait(vm="wd1")
    g2_wd_read(k, 1)
    k.wait_all()
    stamp(k, "d_wd")
    g2_main(k, 4 * WD_WAVE, 0)
    g2_loop(k, 4 * WD_WAVE, 0, 8)
    stamp(k, "d_loop")
    k.wait_all()
    k.op("s_barrier")
    g2_epilogue(k, 4 * WD_WAVE, 0)
    stamp(k, "d_end")
    if "kc" in OPT: stamp_flush(k)
    k.label("Lc_exit")
    parts.append(("kc_kernel", 256, 131072, k.text()))
    txt = build_multi(parts)
    check_hazards(txt)
    open(sys.argv[1] if len(sys.argv) > 1 else "out.s", "w").write(txt)
```

```python
import sys, struct
from asmlib import *

NAME = "recurrent_scan__ssm_conv_h3__geglu_ffn__prompt"
S, D, F = 2048, 448, 1792

H_OFF = 0
U_OFF = H_OFF + 64 * 112 * 1024
Y_OFF = U_OFF + D * 4096
ST_OFF = Y_OFF + D * 4096
CNT_OFF = ST_OFF + S * 8
WS_USED = CNT_OFF + 64 * 128

sKARG = 0
sWG = 2
sPQ, sPK, sPV, sPSK, sPSSM, sPD, sPBX, sPWG = 16, 18, 20, 22, 24, 26, 28, 30
sPWU, sPWD, sPOUT, sPDBG = 32, 34, 36, 38
sPWS = 40
rX, rW, rWS, rWD, rSSM, rOUT, rK, rV = 44, 48, 52, 56, 60, 64, 68, 72
sW = 80
sI = 81
sJ = 82
sT0, sT1, sT2, sT3 = 4, 5, 6, 7
sWSO = 83
sWM0 = 84
sSLOT = 85
sXCD = 86
sONES = 87
sMASK = 88
sWGM = 89

STAMPS = False
STAMP_OFF = 12 << 20
STAMPSET = None
POOL = [90, 92, 94, 96, 98, 16, 18, 20, 22, 24, 26, 28, 30, 32, 34, 36, 38]
stamped = []
def stamp(k, name=""):
    if not STAMPS: return
    if STAMPSET is not None and not any(name.startswith(p) for p in STAMPSET): return
    i = len(stamped)
    assert i < len(POOL)
    stamped.append(name)
    k.op(f"s_memtime s[{POOL[i]}:{POOL[i]+1}]")
def stamp_flush(k):
    if not STAMPS: return
    k.op("s_waitcnt vmcnt(0) lgkmcnt(0)")
    k.op(f"s_memrealtime s[8:9]")
    k.op("s_waitcnt lgkmcnt(0)")
    k.op(f"s_mov_b32 s101, s8")
    k.op(f"s_lshl_b32 s4, s2, 2")
    k.op(f"s_add_u32 s4, s4, s{sW}")
    k.op(f"s_lshl_b32 s4, s4, 7")
    k.op(f"s_add_u32 s4, s4, {STAMP_OFF}")
    k.op("v_mov_b32 v1, 0")
    k.op("s_mov_b64 exec, 1")
    for i in range(len(stamped)):
        k.op(f"v_mov_b32 v2, s{POOL[i]}")
        k.op(f"buffer_store_dword v2, v1, s[{rWS}:{rWS+3}], s4 offen offset:{4*i}")
    k.op(f"v_mov_b32 v2, s100")
    k.op(f"buffer_store_dword v2, v1, s[{rWS}:{rWS+3}], s4 offen offset:{4*30}")
    k.op(f"v_mov_b32 v2, s101")
    k.op(f"buffer_store_dword v2, v1, s[{rWS}:{rWS+3}], s4 offen offset:{4*31}")
    k.op("s_mov_b64 exec, -1")
    print("stamps:", stamped)

def f2u(x):
    return struct.unpack("<I", struct.pack("<f", x))[0]

def srd(k, r, ptr, nbytes):
    k.op(f"s_mov_b32 s{r}, s{ptr}")
    k.op(f"s_and_b32 s{r+1}, s{ptr+1}, 0xffff")
    k.op(f"s_mov_b32 s{r+2}, {nbytes}")
    k.op(f"s_mov_b32 s{r+3}, 0x20000")

def prologue(k, exit_label, nwg):
    k.op("s_load_dwordx16 s[16:31], s[0:1], 0")
    k.op("s_load_dwordx8 s[32:39], s[0:1], 64")
    k.op("s_load_dwordx2 s[40:41], s[0:1], 96")
    k.op("v_lshrrev_b32 v1, 6, v0")
    k.op("v_and_b32 v0, 63, v0")
    k.op(f"s_cmp_ge_u32 s2, {nwg}")
    k.op(f"v_readfirstlane_b32 s{sW}, v1")
    k.op(f"s_cbranch_scc1 {exit_label}")
    if STAMPS:
        k.op("s_memrealtime s[8:9]")
        k.op("s_waitcnt lgkmcnt(0)")
        k.op("s_mov_b32 s100, s8")
    stamp(k, "start")
    k.op(f"s_and_b32 s{sXCD}, s2, 7")
    k.op(f"s_lshr_b32 s{sSLOT}, s2, 3")

SLOT_SZ = 34048
XOFF = 17024
XS = SLOT_SZ
XROW = 912
SLOT = [0, SLOT_SZ, 2 * SLOT_SZ, 3 * SLOT_SZ]
LDS_TOTAL = 163840

vX = 16
vACC = 128

OPT = set()
def gemm1(k, publish_stats=True):
    k.op(f"s_mul_i32 s{sT0}, s{sSLOT}, 37")
    k.op(f"s_lshr_b32 s{sT0}, s{sT0}, 8")
    k.op(f"s_mul_i32 s{sT1}, s{sT0}, 7")
    k.op(f"s_sub_u32 s{sT1}, s{sSLOT}, s{sT1}")
    k.op(f"s_lshr_b32 s{sT2}, s{sXCD}, 1")
    k.op(f"s_lshl_b32 s{sT2}, s{sT2}, 2")
    k.op(f"s_add_u32 s{sI}, s{sT2}, s{sT0}")
    k.op(f"s_and_b32 s{sT2}, s{sXCD}, 1")
    k.op(f"s_mul_i32 s{sT2}, s{sT2}, 7")
    k.op(f"s_add_u32 s{sJ}, s{sT2}, s{sT1}")
    k.op("v_lshlrev_b32 v1, 4, v0")
    k.op("v_lshrrev_b32 v6, 4, v0")
    k.op(f"v_mul_u32_u24 v2, {16*3584}, v6")
    k.op("v_and_b32 v7, 15, v0")
    k.op("v_lshl_add_u32 v2, v7, 4, v2")
    k.op("v_and_b32 v7, 1, v6")
    k.op(f"v_mul_u32_u24 v3, {XOFF}, v7")
    k.op("v_lshrrev_b32 v7, 5, v0")
    k.op("v_lshlrev_b32 v8, 3, v7")
    k.op("v_bfe_u32 v9, v0, 2, 2")
    k.op("v_add_u32 v8, v8, v9")
    k.op("v_mul_u32_u24 v8, 1056, v8")
    k.op("v_add_u32 v3, v3, v8")
    k.op("v_and_b32 v9, 3, v0")
    k.op("v_lshl_add_u32 v3, v9, 3, v3")
    k.op(f"v_add_u32 v14, {2*SLOT_SZ}, v3")
    k.op("v_and_b32 v9, 31, v0")
    k.op(f"s_lshl_b32 s{sT0}, s{sW}, 5")
    k.op(f"v_add_u32 v9, s{sT0}, v9")
    k.op(f"v_mul_u32_u24 v15, {XROW}, v9")
    k.op("v_lshl_add_u32 v15, v7, 4, v15")
    k.op(f"v_add_u32 v15, {XS}, v15")
    k.op(f"s_mov_b32 s{sONES}, 0x3f803f80")
    k.op(f"s_mov_b32 s{sMASK}, 0xffff0000")
    k.op("s_waitcnt lgkmcnt(0)")
    srd(k, rX, sPQ, S * D * 2)
    k.op(f"s_bitcmp1_b32 s{sW}, 0")
    k.op(f"s_cselect_b32 s{rW}, s{sPWU}, s{sPWG}")
    k.op(f"s_cselect_b32 s{rW+1}, s{sPWU+1}, s{sPWG+1}")
    k.op(f"s_and_b32 s{rW+1}, s{rW+1}, 0xffff")
    k.op(f"s_mov_b32 s{rW+2}, {D*F*2}")
    k.op(f"s_mov_b32 s{rW+3}, 0x20000")
    srd(k, rWS, sPWS, (16 << 20) if STAMPS else WS_USED)
    k.op(f"s_lshl_b32 s{sT0}, s{sI}, 2")
    k.op(f"s_add_u32 s{sT0}, s{sT0}, s{sW}")
    k.op(f"s_mul_i32 s{sT1}, s{sT0}, {32*896}")
    k.op(f"s_mul_i32 s{sT2}, s{sW}, {32*XROW}")
    k.op(f"s_add_u32 m0, s{sT2}, {XS}")
    k.op("s_mov_b32 exec_hi, 0x00ffffff")
    for n in range(32):
        k.vm(f"buffer_load_dwordx4 v1, s[{rX}:{rX+3}], s{sT1} offen lds", "x")
        if n < 31:
            k.op(f"s_add_u32 m0, m0, {XROW}")
            k.op(f"s_add_u32 s{sT1}, s{sT1}, 896")
    k.op("s_mov_b32 exec_hi, -1")
    k.op(f"s_lshr_b32 s{sT0}, s{sW}, 1")
    k.op(f"s_lshl_b32 s{sT0}, s{sT0}, 3")
    k.op(f"s_mul_i32 s{sWSO}, s{sT0}, 3584")
    k.op(f"s_lshl_b32 s{sT1}, s{sJ}, 8")
    k.op(f"s_add_u32 s{sWSO}, s{sWSO}, s{sT1}")
    k.op(f"s_mul_i32 s{sWM0}, s{sT0}, 1056")
    k.op(f"s_and_b32 s{sT1}, s{sW}, 1")
    k.op(f"s_mul_i32 s{sT1}, s{sT1}, {XOFF}")
    k.op(f"s_add_u32 s{sWM0}, s{sWM0}, s{sT1}")

    def wdma(c, e):
        out = []
        if e % 4 == 0:
            out.append(("op", f"s_add_u32 m0, s{sWM0}, {SLOT[c % 4] + e * 1056}"))
        out.append(("op", f"s_add_u32 s{sT3}, s{sWSO}, {(64 * c + e) * 3584 - (e % 4) * 1056}"))
        out.append(("vm", f"buffer_load_dwordx4 v2, s[{rW}:{rW+3}], s{sT3} offen offset:{(e % 4) * 1056} lds", f"w{c}"))
        return out
    def emit(items):
        for it in items:
            if it[0] == "op": k.op(it[1])
            elif it[0] == "vm": k.vm(it[1], it[2])
            elif it[0] == "lg": k.lg(it[1], it[2])
    for e in range(8): emit(wdma(0, e))
    stamp(k, "a_issued")
    k.wait(vm="x")
    stamp(k, "a_xarr")
    for ks in range(28):
        if ks >= 14: k.wait(lg=f"x{ks-14}")
        k.lg(f"ds_read_b128 {vr(vX + 4 * ks, 4)}, v15 offset:{32 * ks}", f"x{ks}")
    k.wait_all()
    k.op("s_barrier")
    for c in (1, 2, 3):
        for e in range(8): emit(wdma(c, e))
    stamp(k, "a_w123")
    for a in range(8): k.op(f"v_mov_b32 v{6+a}, 0")
    for n in range(112):
        k.op(f"v_dot2_f32_bf16 v{6 + n % 4}, v{vX+n}, s{sONES}, v{6 + n % 4}")
        k.op(f"v_dot2_f32_bf16 v{10 + n % 4}, v{vX+n}, v{vX+n}, v{10 + n % 4}")
    k.op("s_nop 2")
    k.op("v_add_f32 v6, v6, v7"); k.op("v_add_f32 v8, v8, v9")
    k.op("v_add_f32 v10, v10, v11"); k.op("v_add_f32 v12, v12, v13")
    k.op("v_add_f32 v6, v6, v8"); k.op("v_add_f32 v10, v10, v12")
    k.op("v_mov_b32 v7, v6"); k.op("v_mov_b32 v11, v10")
    k.op("s_nop 1")
    k.op("v_permlane32_swap_b32 v6, v7"); k.op("v_permlane32_swap_b32 v10, v11")
    k.op("s_nop 1")
    k.op("v_add_f32 v6, v6, v7"); k.op("v_add_f32 v10, v10, v11")
    k.op(f"v_mul_f32 v6, {hex(f2u(1.0/448))}, v6")
    k.op(f"v_mul_f32 v10, {hex(f2u(1.0/448))}, v10")
    k.op("v_fma_f32 v10, -v6, v6, v10")
    k.op("v_max_f32 v10, 0, v10")
    k.op("v_cvt_pk_bf16_f32 v7, v6, v10")
    k.op("v_lshlrev_b32 v6, 16, v7")
    k.op(f"v_and_b32 v10, s{sMASK}, v7")
    k.op(f"v_add_f32 v10, {hex(f2u(1e-5))}, v10")
    k.op("v_cvt_pk_bf16_f32 v10, v10, v10")
    k.op("v_lshlrev_b32 v10, 16, v10")
    k.op("v_sqrt_f32 v10, v10")
    k.op("s_nop 0")
    k.op("v_cvt_pk_bf16_f32 v10, v10, v10")
    k.op("v_lshlrev_b32 v10, 16, v10")
    k.op("v_rcp_f32 v4, v10")
    k.op("s_nop 0")
    k.op("v_mul_f32 v5, v6, v4")
    k.op("v_sub_f32 v5, 0, v5")
    if publish_stats:
        lab = k.newlabel("Lnost")
        k.op(f"s_cmp_lg_u32 s{sJ}, 0")
        k.op(f"s_cbranch_scc1 {lab}")
        k.op(f"s_lshl_b32 s{sT0}, s{sI}, 2")
        k.op(f"s_add_u32 s{sT0}, s{sT0}, s{sW}")
        k.op(f"s_lshl_b32 s{sT0}, s{sT0}, 8")
        k.op(f"s_add_u32 s{sT0}, s{sT0}, {ST_OFF}")
        k.op("v_lshlrev_b32 v6, 3, v0")
        k.op("s_mov_b32 exec_hi, 0")
        k.op(f"buffer_store_dwordx2 v[4:5], v6, s[{rWS}:{rWS+3}], s{sT0} offen sc1")
        k.op("s_mov_b32 exec_hi, -1")
        k.label(lab)
    def norm(n, tp):
        t = 6 + 2 * tp
        if "pkfma" not in OPT and "dot2" not in OPT and "nocvt" not in OPT and "unp" not in OPT:
            return [("op", f"v_lshlrev_b32 v{t}, 16, v{vX+n}"),
                ("op", f"v_and_b32 v{t+1}, s{sMASK}, v{vX+n}"),
                ("op", f"v_fma_f32 v{t}, v{t}, v4, v5"),
                ("op", f"v_fma_f32 v{t+1}, v{t+1}, v4, v5"),
                ("op", f"v_cvt_pk_bf16_f32 v{vX+n}, v{t}, v{t+1}")]
        if "dot2" in OPT:
            return [("op", f"v_dot2_f32_bf16 v{t}, v{vX+n}, s{sONES}, v5"),
                ("op", f"v_dot2_f32_bf16 v{t+1}, v{vX+n}, s{sMASK}, v5"),
                ("op", f"v_cvt_pk_bf16_f32 v{vX+n}, v{t}, v{t+1}")]
        if "nocvt" in OPT:
            return [("op", f"v_lshlrev_b32 v{t}, 16, v{vX+n}"),
                ("op", f"v_and_b32 v{t+1}, s{sMASK}, v{vX+n}"),
                ("op", f"v_fma_f32 v{t}, v{t}, v4, v5"),
                ("op", f"v_fma_f32 v{t+1}, v{t+1}, v4, v5")]
        if "unp" in OPT:
            return [("op", f"v_lshlrev_b32 v{t}, 16, v{vX+n}"),
                ("op", f"v_and_b32 v{t+1}, s{sMASK}, v{vX+n}")]
        return [("op", f"v_lshlrev_b32 v{t}, 16, v{vX+n}"),
                ("op", f"v_and_b32 v{t+1}, s{sMASK}, v{vX+n}"),
                ("op", f"v_pk_fma_f32 v[{t}:{t+1}], v[{t}:{t+1}], v[4:5], v[4:5] op_sel:[0,0,1] op_sel_hi:[1,0,1]"),
                ("op", f"v_cvt_pk_bf16_f32 v{vX+n}, v{t}, v{t+1}")]
    def norm_step(ks):
        a = [norm(4 * ks + q, q) for q in range(4)]
        out = []
        for s in range(len(a[0])):
            for q in range(4): out.append(a[q][s])
        return out
    emit(norm_step(0))
    stamp(k, "a_stats")
    NF = 8; DIST = 6
    NM = 224
    def rd(n):
        ks, mt = divmod(n, 8)
        c, kk = divmod(ks, 4)
        sl = c % 4
        base = "v3" if sl < 2 else "v14"
        off = (SLOT_SZ if sl % 2 else 0) + kk * 256 + mt * 32
        f = 4 * (n % NF)
        return [("lg", f"ds_read_b64_tr_b16 {ar(f, 2)}, {base} offset:{off}", f"f{n}"),
                ("lg", f"ds_read_b64_tr_b16 {ar(f + 2, 2)}, {base} offset:{off + 4 * 1056}", f"f{n}")]
    for n in range(DIST): emit(rd(n))
    for n in range(NM):
        ks, mt = divmod(n, 8)
        c, kk = divmod(ks, 4)
        if n % 32 == 0: stamp(k, f"g_c{n//32}")
        if n % 2 == 0:
            k.wait(lg=[f"f{n}", f"f{n+1}"])
        f = 4 * (n % NF)
        acc = vr(vACC + 16 * mt, 16)
        cin = "0" if ks == 0 else acc
        k.op(f"v_mfma_f32_32x32x16_bf16 {acc}, {ar(f, 4)}, {vr(vX + 4 * ks, 4)}, {cin}")
        nn = n + DIST
        if nn < NM:
            if nn % 32 == 0:
                cc = nn // 32
                k.wait(vm=f"w{cc}")
                if "nobar" not in OPT: k.op("s_barrier")
            if "noread" not in OPT: emit(rd(nn))
        if ks + 1 < 28 and "nonorm" not in OPT:
            st = norm_step(ks + 1)
            L = len(st)
            cut = [0] + [min(L, (L * (i + 1) + 6) // 7) for i in range(7)] + [L]
            emit(st[cut[mt]: cut[mt + 1]])
        if c >= 2 and c + 2 < 7 and mt in (1, 5) and "nodma" not in OPT:
            e = 2 * kk + (0 if mt == 1 else 1)
            emit(wdma(c + 2, e))
    stamp(k, "g_end")
    vC, vONE = 16, 18
    C1 = -2.0 * 0.7978845608028654 * 1.4426950408889634
    C2 = C1 * 0.044715
    k.op(f"v_mov_b32 v{vC}, {hex(f2u(C1))}")
    k.op(f"v_mov_b32 v{vC+1}, {hex(f2u(C2))}")
    k.op(f"v_mov_b32 v{vONE}, 1.0")
    k.op(f"v_mov_b32 v{vONE+1}, 1.0")
    k.op(f"s_lshl_b32 s{sT0}, s{sI}, 2")
    k.op(f"s_add_u32 s{sT0}, s{sT0}, s{sW}")
    k.op(f"s_mul_i32 s{sT0}, s{sT0}, {112*1024}")
    k.op(f"s_lshl_b32 s{sT1}, s{sJ}, 13")
    k.op(f"s_add_u32 s{sT0}, s{sT0}, s{sT1}")
    k.op("v_lshlrev_b32 v1, 4, v0")
    for mt in range(8):
        G = vACC + 16 * mt; U = G + 8
        T = 20 + (mt % 2) * 24
        tp = lambda p: T + 2 * p
        gu = lambda p: T + 8 + 2 * p
        O = T + 16
        P = range(4)
        for p in P: k.op(f"v_pk_mul_f32 {vr(tp(p),2)}, {vr(G+2*p,2)}, {vr(G+2*p,2)}")
        for p in P: k.op(f"v_pk_fma_f32 {vr(tp(p),2)}, {vr(tp(p),2)}, {vr(vC,2)}, {vr(vC,2)} op_sel:[0,1,0] op_sel_hi:[1,1,0]")
        for p in P: k.op(f"v_pk_mul_f32 {vr(tp(p),2)}, {vr(tp(p),2)}, {vr(G+2*p,2)}")
        for p in P:
            k.op(f"v_exp_f32 v{tp(p)}, v{tp(p)}"); k.op(f"v_exp_f32 v{tp(p)+1}, v{tp(p)+1}")
        for p in P: k.op(f"v_pk_mul_f32 {vr(gu(p),2)}, {vr(G+2*p,2)}, {vr(U+2*p,2)}")
        for p in P: k.op(f"v_pk_add_f32 {vr(tp(p),2)}, {vr(tp(p),2)}, {vr(vONE,2)}")
        for p in P:
            k.op(f"v_rcp_f32 v{tp(p)}, v{tp(p)}"); k.op(f"v_rcp_f32 v{tp(p)+1}, v{tp(p)+1}")
        k.op("s_nop 0")
        for p in P: k.op(f"v_pk_mul_f32 {vr(gu(p),2)}, {vr(gu(p),2)}, {vr(tp(p),2)}")
        for p in P: k.op(f"v_cvt_pk_bf16_f32 v{O+p}, v{gu(p)}, v{gu(p)+1}")
        if mt % 4 == 0 and mt > 0:
            k.op(f"s_add_u32 s{sT0}, s{sT0}, 4096")
        k.vm(f"buffer_store_dwordx4 {vr(O,4)}, v1, s[{rWS}:{rWS+3}], s{sT0} offen offset:{(mt%4)*1024} sc1", "hst")


PP_ROW = 900
PP_K = 0
PP_V = 67 * PP_ROW + 4
def prepass(k):
    k.op(f"s_sub_u32 s{sT0}, s{sSLOT}, 28")
    k.op(f"s_lshl_b32 s{sT0}, s{sT0}, 3")
    k.op(f"s_add_u32 s{sI}, s{sT0}, s{sXCD}")
    k.op("v_lshlrev_b32 v1, 4, v0")
    k.op("s_waitcnt lgkmcnt(0)")
    srd(k, rK, sPK, S * D * 2)
    srd(k, rV, sPV, S * D * 2)
    srd(k, rX, sPSK, D * 4 * 2)
    srd(k, rWS, sPWS, (16 << 20) if STAMPS else WS_USED)
    k.op("s_mov_b32 exec_hi, 0x00ffffff")
    k.op(f"s_lshl_b32 s{sT0}, s{sI}, 6")
    k.op(f"s_add_u32 s{sT0}, s{sT0}, s{sW}")
    k.op(f"s_sub_u32 s{sT1}, s{sT0}, 3")
    k.op(f"s_mul_i32 s{sT1}, s{sT1}, 896")
    k.op(f"s_mul_i32 s{sT2}, s{sW}, {PP_ROW}")
    k.op(f"s_add_u32 m0, s{sT2}, {PP_K}")
    k.op(f"v_add_u32 v2, s{sT1}, v1")
    for n in range(17):
        if n == 16:
            lab = k.newlabel("Lpk")
            k.op(f"s_cmp_eq_u32 s{sW}, 3")
            k.op(f"s_cbranch_scc1 {lab}")
            k.op(f"buffer_load_dwordx4 v2, s[{rK}:{rK+3}], 0 offen lds")
            k.label(lab)
        else:
            k.vm(f"buffer_load_dwordx4 v2, s[{rK}:{rK+3}], 0 offen lds", "k")
            k.op(f"s_add_u32 m0, m0, {4*PP_ROW}")
            k.op(f"v_add_u32 v2, {4*896}, v2")
    k.op(f"s_mul_i32 s{sT1}, s{sT0}, 896")
    k.op(f"s_add_u32 m0, s{sT2}, {PP_V}")
    k.op("s_nop 0")
    for n in range(16):
        k.vm(f"buffer_load_dwordx4 v1, s[{rV}:{rV+3}], s{sT1} offen lds", "v")
        if n < 15:
            k.op(f"s_add_u32 m0, m0, {4*PP_ROW}")
            k.op(f"s_add_u32 s{sT1}, s{sT1}, {4*896}")
    k.op("s_mov_b32 exec_hi, -1")
    k.op("v_and_b32 v2, 3, v0")
    k.op("v_lshrrev_b32 v3, 5, v0")
    k.op("v_lshl_add_u32 v2, v3, 2, v2")
    k.op("v_bfe_u32 v3, v0, 2, 3")
    k.op(f"v_mul_u32_u24 v4, {8*PP_ROW}, v2")
    k.op("v_lshl_add_u32 v4, v3, 2, v4")
    k.op(f"s_lshl_b32 s{sT0}, s{sW}, 5")
    k.op(f"v_add_u32 v4, s{sT0}, v4")
    k.op(f"v_add_u32 v8, {PP_V}, v4")
    k.op("v_lshlrev_b32 v5, 4, v3")
    k.op(f"s_lshl_b32 s{sT0}, s{sW}, 7")
    k.op(f"v_add_u32 v5, s{sT0}, v5")
    k.op("v_lshlrev_b32 v6, 13, v3")
    k.op(f"s_lshl_b32 s{sT0}, s{sW}, 16")
    k.op(f"v_add_u32 v6, s{sT0}, v6")
    k.op("v_lshlrev_b32 v7, 4, v2")
    k.op("v_sub_u32 v6, v6, v7")
    k.op(f"s_lshl_b32 s{sT0}, s{sI}, 7")
    k.op(f"s_sub_u32 s{sT0}, {U_OFF + (2047 - 7) * 2}, s{sT0}")
    k.op(f"v_add_u32 v6, s{sT0}, v6")
    for it in range(7):
        k.vm(f"buffer_load_dwordx4 {vr(100 + 4*it, 4)}, v5, s[{rX}:{rX+3}], 0 offen offset:{it*512}", "sk")
    k.wait_all()
    k.op("s_barrier")
    KR, VR = 16, 28
    for it in range(7):
        coff = it * 128
        for j in range(11):
            k.lg(f"ds_read_b32 v{KR+j}, v4 offset:{PP_K + j*PP_ROW + coff}", "kr")
        k.wait(lg="kr")
        for j in range(8):
            k.lg(f"ds_read_b32 v{VR+j}, v8 offset:{j*PP_ROW + coff}", "vr")
        for j in range(11):
            k.op(f"v_lshlrev_b32 v{40+2*j}, 16, v{KR+j}")
            k.op(f"v_and_b32 v{41+2*j}, 0xffff0000, v{KR+j}")
        sk = 100 + 4 * it
        k.op(f"v_lshlrev_b32 v64, 16, v{sk}");   k.op(f"v_lshlrev_b32 v65, 16, v{sk+2}")
        k.op(f"v_and_b32 v66, 0xffff0000, v{sk}"); k.op(f"v_and_b32 v67, 0xffff0000, v{sk+2}")
        k.op(f"v_lshlrev_b32 v68, 16, v{sk+1}"); k.op(f"v_lshlrev_b32 v69, 16, v{sk+3}")
        k.op(f"v_and_b32 v70, 0xffff0000, v{sk+1}"); k.op(f"v_and_b32 v71, 0xffff0000, v{sk+3}")
        k.wait(lg="vr")
        for j in range(8):
            k.op(f"v_lshlrev_b32 v{72+2*j}, 16, v{VR+j}")
            k.op(f"v_and_b32 v{73+2*j}, 0xffff0000, v{VR+j}")
        for t in range(8):
            o = 130 + 2 * t
            k.op(f"v_pk_mul_f32 {vr(o,2)}, {vr(40+2*(t+3),2)}, {vr(64,2)}")
        for j in range(1, 4):
            for t in range(8):
                o = 130 + 2 * t
                k.op(f"v_pk_fma_f32 {vr(o,2)}, {vr(40+2*(t+3-j),2)}, {vr(64+2*j,2)}, {vr(o,2)}")
        for t in range(8):
            o = 130 + 2 * t
            k.op(f"v_pk_mul_f32 {vr(o,2)}, {vr(o,2)}, {vr(72+2*t,2)}")
        O = 150 + 8 * (it % 2)
        for q in range(4):
            k.op(f"v_cvt_pk_bf16_f32 v{O+q}, v{130+2*(7-2*q)}, v{130+2*(6-2*q)}")
            k.op(f"v_cvt_pk_bf16_f32 v{O+4+q}, v{131+2*(7-2*q)}, v{131+2*(6-2*q)}")
        k.op(f"s_mov_b32 s{sT0}, {it * 64 * 4096}")
        k.op(f"s_mov_b32 s{sT1}, {it * 64 * 4096 + 4096}")
        k.vm(f"buffer_store_dwordx4 {vr(O,4)}, v6, s[{rWS}:{rWS+3}], s{sT0} offen sc1", "ust")
        k.vm(f"buffer_store_dwordx4 {vr(O+4,4)}, v6, s[{rWS}:{rWS+3}], s{sT1} offen sc1", "ust")

HC_STRIDE = 4160
HC_CH = 4 * HC_STRIDE
UR_CH = 4608
def conv(k, HC, UR, XCH, standalone):
    k.op(f"s_lshr_b32 s{sT0}, s{sW}, 1")
    k.op(f"s_lshl_b32 s{sI}, s{sWGM}, 1")
    k.op(f"s_add_u32 s{sI}, s{sI}, s{sT0}")
    srd(k, rSSM, sPSSM, D * S * 2)
    srd(k, rX, sPD, D * 2)
    k.op("v_lshlrev_b32 v1, 4, v0")
    k.op(f"s_and_b32 s{sT1}, s{sW}, 1")
    k.op(f"s_lshl_b32 s{sT1}, s{sT1}, 1")
    k.op(f"s_mul_i32 s{sT2}, s{sT0}, {HC_CH}")
    k.op(f"s_mul_i32 s{sT3}, s{sT1}, {HC_STRIDE}")
    k.op(f"s_add_u32 s{sT2}, s{sT2}, s{sT3}")
    k.op(f"s_add_u32 s{sT2}, s{sT2}, {HC + 32}")
    k.op(f"s_lshl_b32 s{sT3}, s{sI}, 12")
    k.op(f"s_lshl_b32 s{sT1}, s{sT1}, 1")
    k.op(f"s_add_u32 s{sT3}, s{sT3}, s{sT1}")
    k.op(f"s_add_u32 s{sT3}, s{sT3}, 2")
    for rr in range(2):
        k.op(f"s_add_u32 m0, s{sT2}, {rr * HC_STRIDE}")
        k.op(f"s_add_u32 s{sT1}, s{sT3}, {rr * 2}")
        for q in range(4):
            k.vm(f"buffer_load_dwordx4 v1, s[{rSSM}:{rSSM+3}], s{sT1} offen offset:{q*1024} lds", "hc")
    k.op("v_lshrrev_b32 v2, 4, v0")
    k.op("v_and_b32 v3, 15, v0")
    k.op("v_add_u32 v4, v2, v3")
    k.op("v_subrev_u32 v4, 15, v4")
    k.op("v_lshlrev_b32 v4, 1, v4")
    k.op(f"s_lshl_b32 s{sT1}, s{sI}, 12")
    k.op("v_cmp_gt_i32 vcc, 0, v4")
    k.op(f"v_mov_b32 v5, 0x7fffffff")
    k.op("s_nop 0")
    k.op("v_cndmask_b32 v4, v4, v5, vcc")
    k.vm(f"buffer_load_ushort v6, v4, s[{rSSM}:{rSSM+3}], s{sT1} offen", "hf")
    k.op(f"s_lshl_b32 s{sT1}, s{sI}, 1")
    k.op("v_mov_b32 v7, 0")
    k.vm(f"buffer_load_ushort v8, v7, s[{rX}:{rX+3}], s{sT1} offen", "dv")
    srd(k, rWS, sPWS, (16 << 20) if STAMPS else WS_USED)
    k.op(f"s_and_b32 s{sT1}, s{sW}, 1")
    k.op(f"s_lshl_b32 s{sT1}, s{sT1}, 11")
    k.op(f"s_mul_i32 s{sT2}, s{sT0}, {UR_CH}")
    k.op(f"s_add_u32 s{sT2}, s{sT2}, s{sT1}")
    k.op(f"s_add_u32 m0, s{sT2}, {UR}")
    k.op(f"s_lshl_b32 s{sT3}, s{sI}, 12")
    k.op(f"s_add_u32 s{sT3}, s{sT3}, s{sT1}")
    k.op(f"s_add_u32 s{sT3}, s{sT3}, {U_OFF}")
    k.vm(f"buffer_load_dwordx4 v1, s[{rWS}:{rWS+3}], s{sT3} offen sc1 lds", "ur")
    k.vm(f"buffer_load_dwordx4 v1, s[{rWS}:{rWS+3}], s{sT3} offen offset:1024 sc1 lds", "ur")
    k.op("v_mov_b32 v10, 0"); k.op("v_mov_b32 v11, 0"); k.op("v_mov_b32 v12, 0"); k.op("v_mov_b32 v13, 0")
    k.op(f"s_mul_i32 s{sT2}, s{sT0}, {UR_CH}")
    k.op(f"s_add_u32 s{sT2}, s{sT2}, {UR + 4096}")
    k.op(f"v_add_u32 v9, s{sT2}, v1")
    k.op("s_mov_b32 exec_hi, 0")
    k.lg("ds_write_b128 v9, v[10:13]", "z")
    k.op("s_mov_b32 exec_hi, -1")
    k.op(f"v_mul_u32_u24 v9, {HC_STRIDE}, v2")
    k.op("v_lshl_add_u32 v9, v3, 1, v9")
    k.op(f"s_mul_i32 s{sT2}, s{sT0}, {HC_CH}")
    k.op(f"s_add_u32 s{sT2}, s{sT2}, {HC}")
    k.op(f"v_add_u32 v9, s{sT2}, v9")
    k.wait(vm="hf")
    k.lg("ds_write_b16 v9, v6", "z")
    k.op("v_bfe_u32 v2, v0, 2, 2")
    k.op(f"v_mul_u32_u24 v14, {HC_STRIDE}, v2")
    k.op("v_and_b32 v3, 3, v0")
    k.op("v_lshl_add_u32 v14, v3, 3, v14")
    k.op("v_lshrrev_b32 v3, 4, v0")
    k.op("v_lshl_add_u32 v14, v3, 4, v14")
    k.op(f"s_and_b32 s{sT1}, s{sW}, 1")
    k.op(f"s_lshl_b32 s{sT1}, s{sT1}, 8")
    k.op(f"s_add_u32 s{sT2}, s{sT2}, s{sT1}")
    k.op(f"v_add_u32 v14, s{sT2}, v14")
    k.op("v_and_b32 v4, 15, v0")
    k.op("v_lshlrev_b32 v4, 5, v4")
    k.op("v_lshlrev_b32 v5, 4, v3")
    k.op("v_sub_u32 v15, v5, v4")
    k.op(f"s_mul_i32 s{sT2}, s{sT0}, {UR_CH}")
    k.op(f"s_add_u32 s{sT2}, s{sT2}, {UR + 4064 - 3584}")
    k.op(f"s_add_u32 s{sT3}, s{sT2}, s{sT1}")
    k.op(f"v_add_u32 v15, s{sT3}, v15")
    k.op("v_lshlrev_b32 v5, 3, v3")
    k.op("v_add_u32 v4, v4, v5")
    k.op(f"s_add_u32 s{sT2}, s{sT2}, {4088 - 3584 - (4064 - 3584)}")
    k.op(f"v_sub_u32 v13, s{sT2}, v4")
    k.wait_all()
    k.op("v_lshlrev_b32 v8, 16, v8")
    k.op("s_barrier")
    stamp(k, "c_ready")
    FB = [16, 48]
    GB = 80
    ACC = 96
    def rdF(sub, J):
        b = FB[sub % 2] + 4 * J
        off = 64 * (8 * J + sub)
        return [(f"ds_read_b64_tr_b16 {vr(b,2)}, v14 offset:{off}", f"F{sub}_{J}"),
                (f"ds_read_b64_tr_b16 {vr(b+2,2)}, v14 offset:{off+8}", f"F{sub}_{J}")]
    def rdG(sub, T):
        idx = sub * 8 + (7 - T)
        b = GB + 4 * (idx % 4)
        return (f"ds_read_b128 {vr(b,4)}, v15 offset:{512*(7-T) + 64*sub}", f"G{sub}_{T}")
    seq = []
    for sub in range(4):
        for T in range(7, -1, -1):
            for J in range(0, 8 - T):
                seq.append((sub, T, J))
    for J in range(4):
        for t in rdF(0, J): k.lg(*t)
    for T in (7, 6, 5): k.lg(*rdG(0, T))
    pendF = [(0, J) for J in range(4, 8)] + [(s, J) for s in range(1, 4) for J in range(8)]
    gq = [(s, T) for s in range(4) for T in range(7, -1, -1)][3:]
    first = set()
    lastG = None
    for n, (sub, T, J) in enumerate(seq):
        k.wait(lg=[f"F{sub}_{J}", f"G{sub}_{T}"])
        tile = T + J
        a = vr(ACC + 4 * tile, 4)
        cin = a if tile in first else "0"
        first.add(tile)
        gidx = sub * 8 + (7 - T)
        k.op(f"v_mfma_f32_16x16x32_bf16 {a}, {vr(FB[sub%2]+4*J,4)}, {vr(GB+4*(gidx%4),4)}, {cin}")
        if (sub, T) != lastG:
            lastG = (sub, T)
            if gq:
                s2, T2 = gq.pop(0)
                k.lg(*rdG(s2, T2))
        if pendF:
            s2, J2 = pendF[0]
            ok = (s2 == sub) or (s2 == sub + 1 and True)
            if ok and len(k.lgq) <= 12:
                pendF.pop(0)
                for t in rdF(s2, J2): k.lg(*t)
    assert not pendF and not gq
    stamp(k, "c_mfma")
    k.op("s_nop 7")
    k.op(f"s_lshl_b32 s{sT0}, s{sW}, 12")
    k.op(f"s_add_u32 s{sT0}, s{sT0}, {XCH}")
    k.op(f"v_add_u32 v2, s{sT0}, v1")
    k.op(f"s_xor_b32 s{sT1}, s{sW}, 1")
    k.op(f"s_lshl_b32 s{sT1}, s{sT1}, 12")
    k.op(f"s_add_u32 s{sT1}, s{sT1}, {XCH}")
    k.op(f"v_add_u32 v3, s{sT1}, v1")
    lo, le = k.newlabel("Lcodd"), k.newlabel("Lcend")
    def finish(keep, send):
        for i in range(4):
            k.op(f"ds_write_b128 v2, {vr(ACC + 4*(send+i), 4)} offset:{1024*i}")
        for i in range(4):
            k.op(f"ds_read_b64 {vr(40+2*i,2)}, v13 offset:{512*(7-(keep+i))}")
        k.op("s_waitcnt lgkmcnt(0)")
        k.op("s_barrier")
        for i in range(4):
            k.op(f"ds_read_b128 {vr(16+4*i,4)}, v3 offset:{1024*i}")
        k.op("s_waitcnt lgkmcnt(0)")
        for i in range(4):
            A = ACC + 4 * (keep + i)
            k.op(f"v_pk_add_f32 {vr(A,2)}, {vr(A,2)}, {vr(16+4*i,2)}")
            k.op(f"v_pk_add_f32 {vr(A+2,2)}, {vr(A+2,2)}, {vr(18+4*i,2)}")
            U = 40 + 2 * i
            k.op(f"v_and_b32 v50, 0xffff0000, v{U+1}")
            k.op(f"v_lshlrev_b32 v51, 16, v{U+1}")
            k.op(f"v_and_b32 v52, 0xffff0000, v{U}")
            k.op(f"v_lshlrev_b32 v53, 16, v{U}")
            for r in range(4):
                k.op(f"v_fmac_f32 v{A+r}, v{50+r}, v8")
            k.op(f"v_cvt_pk_bf16_f32 v{56+2*i}, v{A}, v{A+1}")
            k.op(f"v_cvt_pk_bf16_f32 v{57+2*i}, v{A+2}, v{A+3}")
        for i in range(4):
            k.op(f"buffer_store_dwordx2 {vr(56+2*i,2)}, v4, s[{rWS}:{rWS+3}], s{sT2} offen offset:{512*(keep+i)} sc1")
    k.op(f"s_lshl_b32 s{sT2}, s{sI}, 12")
    k.op(f"s_add_u32 s{sT2}, s{sT2}, {Y_OFF}")
    k.op(f"s_bitcmp1_b32 s{sW}, 0")
    k.op(f"s_cbranch_scc1 {lo}")
    finish(0, 4)
    k.op(f"s_branch {le}")
    k.label(lo)
    finish(4, 0)
    k.label(le)
    for i in range(4): k.vmq.append("yst")


WD_WAVE = 14 * 2048
sTT, sDT = 81, 82
sWDS = 83
sWDM = 84
def g2_setup(k, WDST):
    k.op(f"s_mul_i32 s{sT0}, s{sSLOT}, 37")
    k.op(f"s_lshr_b32 s{sT0}, s{sT0}, 8")
    k.op(f"s_mul_i32 s{sT1}, s{sT0}, 7")
    k.op(f"s_sub_u32 s{sDT}, s{sSLOT}, s{sT1}")
    k.op(f"s_lshl_b32 s{sTT}, s{sXCD}, 2")
    k.op(f"s_add_u32 s{sTT}, s{sTT}, s{sT0}")
    srd(k, rWD, sPWD, F * D * 2)
    k.op("v_lshrrev_b32 v3, 3, v0")
    k.op("v_mul_u32_u24 v2, 896, v3")
    k.op("v_bfe_u32 v3, v0, 4, 1")
    k.op("v_lshlrev_b32 v3, 2, v3")
    k.op("v_and_b32 v4, 7, v0")
    k.op("v_xor_b32 v3, v3, v4")
    k.op("v_lshl_add_u32 v2, v3, 4, v2")
    k.op(f"s_mul_i32 s{sWDS}, s{sW}, {16*28*896}")
    k.op(f"s_lshl_b32 s{sT0}, s{sDT}, 7")
    k.op(f"s_add_u32 s{sWDS}, s{sWDS}, s{sT0}")
    k.op(f"s_mul_i32 s{sWDM}, s{sW}, {WD_WAVE}")
    k.op(f"s_add_u32 s{sWDM}, s{sWDM}, {WDST}")
    k.op("v_lshrrev_b32 v5, 5, v0")
    k.op("v_bfe_u32 v6, v0, 2, 2")
    k.op("v_lshl_add_u32 v5, v5, 2, v6")
    k.op("v_lshlrev_b32 v5, 7, v5")
    k.op("v_bfe_u32 v7, v0, 4, 1")
    k.op("v_lshl_add_u32 v5, v7, 5, v5")
    k.op("v_and_b32 v7, 3, v0")
    k.op("v_lshl_add_u32 v5, v7, 3, v5")
    k.op(f"v_add_u32 v5, s{sWDM}, v5")
    k.op("v_bfe_u32 v6, v0, 3, 1")
    k.op("v_lshlrev_b32 v6, 6, v6")
    k.op("v_add_u32 v3, v5, v6")
    k.op("v_xor_b32 v6, 64, v6")
    k.op("v_add_u32 v4, v5, v6")

def g2_wd_dma(k, rnd):
    for q in range(28):
        ks = 14 * rnd + q // 2; hh = q % 2
        if q % 4 == 0:
            k.op(f"s_add_u32 m0, s{sWDM}, {(q // 4) * 4096}")
        k.op(f"s_add_u32 s{sT3}, s{sWDS}, {(16 * ks + 8 * hh) * 896 - (q % 4) * 1024}")
        k.vm(f"buffer_load_dwordx4 v2, s[{rWD}:{rWD+3}], s{sT3} offen offset:{(q % 4) * 1024} lds", f"wd{rnd}")

def g2_wd_read(k, rnd):
    for q in range(14):
        ks = 14 * rnd + q
        for dt2 in range(2):
            for t in range(2):
                if len(k.lgq) >= 12: k.wait(lg=k.lgq[5])
                a = 8 * ks + 4 * dt2 + 2 * t
                k.lg(f"ds_read_b64_tr_b16 {ar(a,2)}, v{3+dt2} offset:{q*2048 + t*1024}", f"wr{ks}_{dt2}_{t}")

vH = 16; NHS = 22; vA2 = 192
def g2_hload(k, ks):
    for e in range(2):
        b = vH + 8 * (ks % NHS) + 4 * e
        k.vm(f"buffer_load_dwordx4 {vr(b,4)}, v1, s[{rWS}:{rWS+3}], s{76+e} offen offset:{(ks%4)*1024} sc1", f"h{ks}")

def g2_main(k, YT, RED):
    k.op("v_lshlrev_b32 v1, 4, v0")
    k.op(f"s_lshl_b32 s{sT0}, s{sTT}, 1")
    k.op(f"s_mul_i32 s{sT0}, s{sT0}, 112")
    k.op(f"s_mul_i32 s{sT1}, s{sW}, 28")
    k.op(f"s_add_u32 s{sT0}, s{sT0}, s{sT1}")
    k.op(f"s_lshl_b32 s76, s{sT0}, 10")
    k.op(f"s_add_u32 s77, s76, {112*1024}")
    def adv(ks):
        if ks % 4 == 0 and ks > 0:
            k.op("s_add_u32 s76, s76, 4096"); k.op("s_add_u32 s77, s77, 4096")
    for ks in range(NHS):
        adv(ks); g2_hload(k, ks)
    k.op("v_lshrrev_b32 v5, 3, v0")
    k.op(f"s_lshl_b32 s{sT0}, s{sW}, 3")
    k.op(f"v_add_u32 v5, s{sT0}, v5")
    k.op("v_and_b32 v6, 7, v0")
    k.op("v_mul_u32_u24 v7, 896, v5")
    k.op("v_lshl_add_u32 v7, v6, 4, v7")
    k.op(f"s_mul_i32 s78, s{sTT}, {64*896}")
    k.op(f"s_lshl_b32 s{sT0}, s{sDT}, 7")
    k.op("s_add_u32 s78, s78, s%d" % sT0)
    k.op(f"s_add_u32 s79, s78, {32*896}")
    srd(k, rX, sPQ, S * D * 2)
    srd(k, rOUT, sPOUT, S * D * 2)
    return

def g2_epi_loads(k, YT):
    k.vm(f"buffer_load_dwordx4 {ar(224,4)}, v7, s[{rX}:{rX+3}], s78 offen", "ex")
    k.vm(f"buffer_load_dwordx4 {ar(228,4)}, v7, s[{rX}:{rX+3}], s79 offen", "ex")
    k.op("v_lshlrev_b32 v8, 3, v5")
    k.op(f"s_lshl_b32 s{sT0}, s{sTT}, 9")
    k.op(f"s_add_u32 s{sT0}, s{sT0}, {ST_OFF}")
    k.vm(f"buffer_load_dwordx2 {ar(232,2)}, v8, s[{rWS}:{rWS+3}], s{sT0} offen sc1", "ex")
    k.vm(f"buffer_load_dwordx2 {ar(234,2)}, v8, s[{rWS}:{rWS+3}], s{sT0} offen offset:256 sc1", "ex")
    k.op("v_lshrrev_b32 v8, 3, v0")
    k.op("v_lshlrev_b32 v8, 12, v8")
    k.op("v_lshl_add_u32 v8, v6, 4, v8")
    k.op(f"s_lshl_b32 s{sT0}, s{sDT}, 18")
    k.op(f"s_lshl_b32 s{sT1}, s{sW}, 16")
    k.op(f"s_add_u32 s{sT0}, s{sT0}, s{sT1}")
    k.op(f"s_lshl_b32 s{sT1}, s{sTT}, 7")
    k.op(f"s_add_u32 s{sT0}, s{sT0}, s{sT1}")
    k.op(f"s_add_u32 s{sT0}, s{sT0}, {Y_OFF}")
    k.op(f"s_mul_i32 s{sT1}, s{sW}, 2080")
    k.op(f"s_add_u32 m0, s{sT1}, {YT}")
    k.op(f"s_add_u32 s{sT2}, s{sT0}, {8*4096 - 1040}")
    k.vm(f"buffer_load_dwordx4 v8, s[{rWS}:{rWS+3}], s{sT0} offen sc1 lds", "ey")
    k.vm(f"buffer_load_dwordx4 v8, s[{rWS}:{rWS+3}], s{sT2} offen offset:1040 sc1 lds", "ey")

def g2_loop(k, YT, RED, epi_at):
    first = set()
    for ks in range(28):
        k.wait(vm=f"h{ks}")
        for dt2 in range(2):
            for e in range(2):
                t = 2 * dt2 + e
                acc = vr(vA2 + 16 * t, 16)
                cin = acc if t in first else "0"
                first.add(t)
                hb = vH + 8 * (ks % NHS) + 4 * e
                k.op(f"v_mfma_f32_32x32x16_bf16 {acc}, {ar(8*ks+4*dt2,4)}, {vr(hb,4)}, {cin}")
        if ks + NHS < 28:
            kn = ks + NHS
            if kn % 4 == 0:
                k.op("s_add_u32 s76, s76, 4096"); k.op("s_add_u32 s77, s77, 4096")
            g2_hload(k, kn)
        if ks == epi_at:
            g2_epi_loads(k, YT)

def g2_epilogue(k, YT, RED):
    RROW = 272; RW = 64 * RROW
    k.op("v_and_b32 v8, 31, v0")
    k.op(f"v_mul_u32_u24 v8, {RROW}, v8")
    k.op("v_lshrrev_b32 v9, 5, v0")
    k.op("v_lshl_add_u32 v8, v9, 4, v8")
    k.op(f"s_mul_i32 s{sT0}, s{sW}, {RW}")
    k.op(f"s_add_u32 s{sT0}, s{sT0}, {RED}")
    k.op(f"v_add_u32 v8, s{sT0}, v8")
    k.op("s_nop 7")
    for dt2 in range(2):
        for e in range(2):
            for g in range(4):
                if len(k.lgq) >= 12: k.wait(lg=k.lgq[5])
                A = vA2 + 16 * (2 * dt2 + e) + 4 * g
                k.lg(f"ds_write_b128 v8, {vr(A,4)} offset:{e*32*RROW + dt2*128 + g*32}", f"rw{dt2}{e}{g}")
    k.op(f"v_mov_b32 v10, {hex(f2u(-1.4426950408889634))}")
    k.op("v_mov_b32 v11, 1.0")
    k.wait_all()
    k.op("s_barrier")
    k.op(f"v_mul_u32_u24 v8, {RROW}, v5")
    k.op("v_lshl_add_u32 v8, v6, 5, v8")
    k.op(f"v_add_u32 v8, {RED}, v8")
    k.op("v_mul_u32_u24 v9, 1040, v6")
    k.op("v_lshl_add_u32 v9, v5, 1, v9")
    k.op(f"v_add_u32 v9, {YT}, v9")
    for ps in range(2):
        B = 16 + 64 * ps
        for w in range(4):
            for hh in range(2):
                if len(k.lgq) >= 12: k.wait(lg=k.lgq[5])
                k.lg(f"ds_read_b128 {vr(B + 8*w + 4*hh, 4)}, v8 offset:{w*RW + ps*32*RROW + hh*16}", f"p{ps}")
        for e in range(8):
            k.op(f"v_mov_b32 v{B+32+e}, 0")
        for e in range(8):
            if len(k.lgq) >= 12: k.wait(lg=k.lgq[5])
            k.lg(f"ds_read_u16_d16_hi v{B+32+e}, v9 offset:{e*128 + ps*64}", f"y{ps}")
    for ps in range(2):
        B = 16 + 64 * ps
        Yr = B + 32; T = B + 40
        k.wait(lg=[f"p{ps}", f"y{ps}"])
        for q in range(4):
            k.op(f"v_pk_add_f32 {vr(B+2*q,2)}, {vr(B+2*q,2)}, {vr(B+8+2*q,2)}")
            k.op(f"v_pk_add_f32 {vr(B+16+2*q,2)}, {vr(B+16+2*q,2)}, {vr(B+24+2*q,2)}")
        for q in range(4):
            k.op(f"v_pk_add_f32 {vr(B+2*q,2)}, {vr(B+2*q,2)}, {vr(B+16+2*q,2)}")
        for q in range(4):
            k.op(f"v_accvgpr_read_b32 v{T+q}, a{224+4*ps+q}")
        k.op(f"v_accvgpr_read_b32 v{T+4}, a{232+2*ps}")
        k.op(f"v_accvgpr_read_b32 v{T+5}, a{233+2*ps}")
        X = B + 8
        for q in range(4):
            k.op(f"v_lshlrev_b32 v{X+2*q}, 16, v{T+q}")
            k.op(f"v_and_b32 v{X+2*q+1}, 0xffff0000, v{T+q}")
        E = B + 16
        N = B + 24
        for q in range(4):
            k.op(f"v_pk_mul_f32 {vr(E+2*q,2)}, {vr(B+2*q,2)}, {vr(10,2)} op_sel_hi:[1,0]")
            k.op(f"v_pk_fma_f32 {vr(N+2*q,2)}, {vr(X+2*q,2)}, {vr(T+4,2)}, {vr(T+4,2)} op_sel:[0,0,1] op_sel_hi:[1,0,1]")
        for q in range(8):
            k.op(f"v_exp_f32 v{E+q}, v{E+q}")
        for q in range(4):
            k.op(f"v_pk_mul_f32 {vr(N+2*q,2)}, {vr(N+2*q,2)}, {vr(Yr+2*q,2)}")
        for q in range(4):
            k.op(f"v_pk_add_f32 {vr(E+2*q,2)}, {vr(E+2*q,2)}, {vr(10,2)} op_sel:[0,1] op_sel_hi:[1,1]")
        for q in range(8):
            k.op(f"v_rcp_f32 v{E+q}, v{E+q}")
        for q in range(4):
            k.op(f"v_pk_mul_f32 {vr(N+2*q,2)}, {vr(N+2*q,2)}, {vr(B+2*q,2)}")
        for q in range(4):
            k.op(f"v_pk_fma_f32 {vr(N+2*q,2)}, {vr(N+2*q,2)}, {vr(E+2*q,2)}, {vr(X+2*q,2)}")
        pert = [o for o in OPT if o.startswith("pert")]
        if pert and ps == 0:
            lab = k.newlabel("Lpert")
            k.op("s_cmp_lg_u32 s2, 0"); k.op(f"s_cbranch_scc1 {lab}")
            k.op(f"s_cmp_lg_u32 s{sW}, 0"); k.op(f"s_cbranch_scc1 {lab}")
            k.op("s_mov_b64 exec, 1")
            k.op(f"v_add_f32 v{N}, {hex(f2u(float(pert[0][4:])))}, v{N}")
            k.op("s_mov_b64 exec, -1")
            k.label(lab)
        for q in range(4):
            k.op(f"v_cvt_pk_bf16_f32 v{T+8+q}, v{N+2*q}, v{N+2*q+1}")
        k.vm(f"buffer_store_dwordx4 {vr(T+8,4)}, v7, s[{rOUT}:{rOUT+3}], s{78+ps} offen", "ost")

def kd(name, vgpr=512, acc=256):
    return f""".section .rodata,"a"
.p2align 6
.amdhsa_kernel {name}
  .amdhsa_next_free_vgpr {vgpr}
  .amdhsa_next_free_sgpr 102
  .amdhsa_accum_offset {acc}
  .amdhsa_group_segment_fixed_size 0
  .amdhsa_kernarg_size 104
  .amdhsa_user_sgpr_count 2
  .amdhsa_user_sgpr_kernarg_segment_ptr 1
  .amdhsa_system_sgpr_workgroup_id_x 1
  .amdhsa_float_denorm_mode_32 3
.end_amdhsa_kernel
.text
"""

def kernel_head(name):
    return f""".globl {name}
.p2align 8
.type {name},@function
{name}:
"""

HEADER = open("cdna_kernels/" + NAME + ".s.ref").read().split("; Override launch")[0]

def build_multi(parts):
    out = [HEADER]
    for name, grid, lds, _ in parts:
        out.append(f"; @launch kernel={name} grid=({grid},1,1) block=(256,1,1) lds={lds}\n")
    out.append('.amdgcn_target "amdgcn-amd-amdhsa--gfx950"\n.text\n')
    for name, grid, lds, body in parts:
        out.append(kernel_head(name))
        out.append(body)
        out.append("s_endpgm\n")
        out.append(kd(name))
    return "".join(out)

def wgm_index(k):
    k.op(f"s_mul_i32 s{sWGM}, s{sXCD}, 28")
    k.op(f"s_add_u32 s{sWGM}, s{sWGM}, s{sSLOT}")

if __name__ == "__main__":
    if len(sys.argv) > 2 and sys.argv[2].startswith("stamps"):
        STAMPS = True
        if "=" in sys.argv[2]: STAMPSET = sys.argv[2].split("=")[1].split(",")
    if len(sys.argv) > 3: OPT.update(sys.argv[3].split(","))
    parts = []
    k = K()
    prologue(k, "La_exit", 256)
    k.op(f"s_cmp_ge_u32 s{sSLOT}, 28")
    k.op("s_cbranch_scc1 La_pre")
    gemm1(k)
    stamp(k, "e_gelu")
    k.wait_all()
    stamp(k, "e_drain")
    if "ka" in OPT: stamp_flush(k)
    k.op("s_endpgm")
    k.label("La_pre")
    k.vmq = []; k.lgq = []
    prepass(k)
    k.label("La_exit")
    parts.append(("ka_kernel", 256, LDS_TOTAL, k.text()))
    del stamped[:]
    k = K()
    prologue(k, "Lb_exit", 256)
    k.op(f"s_cmp_ge_u32 s{sSLOT}, 28")
    k.op("s_cbranch_scc1 Lb_exit")
    wgm_index(k)
    k.op("s_waitcnt lgkmcnt(0)")
    conv(k, 0, 2 * HC_CH, 2 * HC_CH + 2 * UR_CH, True)
    stamp(k, "c_end")
    if "kb" in OPT: stamp_flush(k)
    k.label("Lb_exit")
    parts.append(("kb_kernel", 256, 65536, k.text()))
    del stamped[:]
    k = K()
    prologue(k, "Lc_exit", 256)
    k.op(f"s_cmp_ge_u32 s{sSLOT}, 28")
    k.op("s_cbranch_scc1 Lc_exit")
    k.op("s_waitcnt lgkmcnt(0)")
    srd(k, rWS, sPWS, (16 << 20) if STAMPS else WS_USED)
    g2_setup(k, 0)
    g2_wd_dma(k, 0)
    k.wait(vm="wd0")
    g2_wd_read(k, 0)
    k.wait_all()
    g2_wd_dma(k, 1)
    k.wait(vm="wd1")
    g2_wd_read(k, 1)
    k.wait_all()
    stamp(k, "d_wd")
    g2_main(k, 4 * WD_WAVE, 0)
    g2_loop(k, 4 * WD_WAVE, 0, 8)
    stamp(k, "d_loop")
    k.wait_all()
    k.op("s_barrier")
    g2_epilogue(k, 4 * WD_WAVE, 0)
    stamp(k, "d_end")
    if "kc" in OPT: stamp_flush(k)
    k.label("Lc_exit")
    parts.append(("kc_kernel", 256, 131072, k.text()))
    for o in OPT:
        if o.startswith("empty"):
            for i in range(int(o[5:])):
                parts.append((f"ke{i}_kernel", 256, 0, "s_nop 0\n"))
    txt = build_multi(parts)
    check_hazards(txt)
    open(sys.argv[1] if len(sys.argv) > 1 else "out.s", "w").write(txt)
```

```python
import sys, struct
from asmlib import *

NAME = "recurrent_scan__ssm_conv_h3__geglu_ffn__prompt"
S, D, F = 2048, 448, 1792
OPT = set()

H_OFF = 0
U_OFF = H_OFF + 64 * 112 * 1024
Y_OFF = U_OFF + D * 4096
ST_OFF = Y_OFF + D * 4096
CNT_OFF = ST_OFF + S * 8
WS_USED = CNT_OFF + 32 * 128
HCNT, YCNT, UCNT = 0, 16, 24

sPQ, sPK, sPV, sPSK, sPSSM, sPD, sPBX, sPWG = 16, 18, 20, 22, 24, 26, 28, 30
sPWU, sPWD, sPOUT, sPDBG = 32, 34, 36, 38
sPWS = 40
rX, rW, rWS, rWD, rSSM, rOUT, rD = 44, 48, 52, 56, 60, 64, 68
rK, rV, rSK = 48, 56, 60
sT0, sT1, sT2, sT3 = 4, 5, 6, 7
sW, sI, sJ, sWSO, sWM0, sSLOT, sXCD, sONES, sMASK, sWGM = 80, 81, 82, 83, 84, 85, 86, 87, 88, 89
sTT, sDT, sWDS, sWDM, sCH = 90, 91, 92, 93, 94
sHST = 95
sU0, sU1, sU2, sU3 = 96, 97, 98, 99

SLOT_SZ = 34048
XOFF = 17024
XS = SLOT_SZ
XROW = 912
SLOT = [0, SLOT_SZ, 2 * SLOT_SZ, 3 * SLOT_SZ]
LDS_TOTAL = 163840
HC_STRIDE = 4160
HC_CH = 4 * HC_STRIDE
UR_CH = 4608
HC = SLOT[3]
UR = 4 * SLOT_SZ
XCH = UR + 2 * UR_CH
assert XCH + 16384 <= LDS_TOTAL
WDST = 0
WD_KS = 12
WD_WAVE = WD_KS * 2048
assert 4 * WD_WAVE <= SLOT[3]
YT = HC
RED = 0

vX = 16
vACC = 128

STAMPS = False
STAMP_OFF = 12 << 20
STAMPSET = None
POOL = [16, 18, 20, 22, 24, 26, 28, 30, 32, 34, 36, 72, 74, 8, 10, 12, 14]
stamped = []
def stamp(k, name=""):
    if not STAMPS: return
    if STAMPSET is not None and not any(name.startswith(p) for p in STAMPSET): return
    i = len(stamped)
    assert i < len(POOL)
    stamped.append(name)
    k.op(f"s_memtime s[{POOL[i]}:{POOL[i]+1}]")
def stamp_flush(k):
    if not STAMPS: return
    k.op("s_waitcnt vmcnt(0) lgkmcnt(0)")
    k.op("s_memrealtime s[42:43]")
    k.op("s_waitcnt lgkmcnt(0)")
    k.op("s_mov_b32 s101, s42")
    k.op("s_lshl_b32 s4, s2, 2")
    k.op(f"s_add_u32 s4, s4, s{sW}")
    k.op("s_lshl_b32 s4, s4, 7")
    k.op(f"s_add_u32 s4, s4, {STAMP_OFF}")
    k.op("v_mov_b32 v1, 0")
    k.op("s_mov_b64 exec, 1")
    for i in range(len(stamped)):
        k.op(f"v_mov_b32 v2, s{POOL[i]}")
        k.op(f"buffer_store_dword v2, v1, s[{rWS}:{rWS+3}], s4 offen offset:{4*i}")
    k.op("v_mov_b32 v2, s100")
    k.op(f"buffer_store_dword v2, v1, s[{rWS}:{rWS+3}], s4 offen offset:{4*30}")
    k.op("v_mov_b32 v2, s101")
    k.op(f"buffer_store_dword v2, v1, s[{rWS}:{rWS+3}], s4 offen offset:{4*31}")
    k.op("s_mov_b64 exec, -1")

def f2u(x):
    return struct.unpack("<I", struct.pack("<f", x))[0]

def srd(k, r, ptr, nbytes):
    k.op(f"s_mov_b32 s{r}, s{ptr}")
    k.op(f"s_and_b32 s{r+1}, s{ptr+1}, 0xffff")
    k.op(f"s_mov_b32 s{r+2}, {nbytes}")
    k.op(f"s_mov_b32 s{r+3}, 0x20000")

def emit(k, items):
    for it in items:
        if it[0] == "op": k.op(it[1])
        elif it[0] == "vm": k.vm(it[1], it[2])
        elif it[0] == "lg": k.lg(it[1], it[2])
        elif it[0] == "fn": it[1]()

def interleave(k, main, fill, every, start=0):
    fill = list(fill)
    for n, it in enumerate(main):
        emit(k, [it])
        if fill and n >= start and (n - start) % every == every - 1:
            emit(k, fill.pop(0))
    for g in fill: emit(k, g)

def cnt_addr(k, vreg, idx_sgpr=None, idx=0):
    if idx_sgpr is None:
        k.op(f"v_mov_b32 v{vreg}, {CNT_OFF + idx * 128}")
    else:
        k.op(f"s_lshl_b32 s{sT0}, s{idx_sgpr}, 7")
        k.op(f"s_add_u32 s{sT0}, s{sT0}, {CNT_OFF + idx * 128}")
        k.op(f"v_mov_b32 v{vreg}, s{sT0}")

def spin_until(k, vaddr, vtmp, base, target, cmp="ge"):
    lab, done = k.newlabel("Lspin"), k.newlabel("Lspun")
    k.op(f"s_mov_b32 s{sT1}, 0x40000")
    k.label(lab)
    k.op(f"global_load_dword v{vtmp}, v{vaddr}, s[{base}:{base+1}] sc1")
    k.op("s_waitcnt vmcnt(0)")
    k.op(f"v_readfirstlane_b32 s{sT2}, v{vtmp}")
    k.op(f"s_sub_u32 s{sT1}, s{sT1}, 1")
    k.op(f"s_cmp_ge_u32 s{sT2}, {target}")
    k.op(f"s_cbranch_scc1 {done}")
    k.op("s_sleep 1")
    k.op(f"s_cmp_lg_u32 s{sT1}, 0")
    k.op(f"s_cbranch_scc1 {lab}")
    k.label(done)
    k.vmq = []

def check_or_spin(k, vval, vaddr, base, target):
    done = k.newlabel("Lok")
    k.op(f"v_readfirstlane_b32 s{sT2}, v{vval}")
    k.op(f"s_cmp_ge_u32 s{sT2}, {target}")
    k.op(f"s_cbranch_scc1 {done}")
    q = list(k.vmq)
    spin_until(k, vaddr, vval, base, target)
    k.vmq = q
    k.label(done)

def signal(k, vaddr, vone):
    lab = k.newlabel("Lsig")
    k.op(f"s_cmp_lg_u32 s{sW}, 0")
    k.op(f"s_cbranch_scc1 {lab}")
    k.op(f"v_mov_b32 v{vone}, 1")
    k.op("s_mov_b64 exec, 1")
    k.op(f"global_atomic_add v{vaddr}, v{vone}, s[{sPWS}:{sPWS+1}] sc1")
    k.op("s_mov_b64 exec, -1")
    k.label(lab)

def prologue(k, codebytes):
    k.op("s_getpc_b64 s[12:13]")
    k.op("s_load_dwordx16 s[16:31], s[0:1], 0")
    k.op("s_load_dwordx8 s[32:39], s[0:1], 64")
    k.op("s_load_dwordx2 s[40:41], s[0:1], 96")
    k.op("v_lshlrev_b32 v2, 7, v0")
    k.op("v_mov_b32 v3, s13")
    k.op("v_add_co_u32 v2, vcc, s12, v2")
    k.op("v_lshrrev_b32 v1, 6, v0")
    k.op("v_and_b32 v0, 63, v0")
    k.op("v_addc_co_u32 v3, vcc, 0, v3, vcc")
    k.op("s_cmp_ge_u32 s2, 256")
    k.op(f"v_readfirstlane_b32 s{sW}, v1")
    k.op("s_cbranch_scc1 L_exit")
    if "nocodepf" not in OPT:
        k.vm("global_load_dword a250, v[2:3], off", "code")
        assert codebytes <= 32768 + 4096
    if STAMPS:
        k.op("s_memrealtime s[42:43]")
        k.op("s_waitcnt lgkmcnt(0)")
        k.op("s_mov_b32 s100, s42")
    k.op(f"s_and_b32 s{sXCD}, s2, 7")
    k.op(f"s_lshr_b32 s{sSLOT}, s2, 3")
    k.op(f"s_cmp_ge_u32 s{sSLOT}, 28")
    k.op("s_cbranch_scc1 L_pre")

def wdma(c, e):
    out = []
    if e % 4 == 0:
        out.append(("op", f"s_add_u32 m0, s{sWM0}, {SLOT[c % 4] + e * 1056}"))
    out.append(("op", f"s_add_u32 s{sT3}, s{sWSO}, {(64 * c + e) * 3584 - (e % 4) * 1056}"))
    out.append(("vm", f"buffer_load_dwordx4 v2, s[{rW}:{rW+3}], s{sT3} offen offset:{(e % 4) * 1056} lds", f"w{c}"))
    return out

def start_main(k):
    k.op(f"s_mul_i32 s{sT0}, s{sSLOT}, 37")
    k.op(f"s_lshr_b32 s{sT0}, s{sT0}, 8")
    k.op(f"s_mul_i32 s{sT1}, s{sT0}, 7")
    k.op(f"s_sub_u32 s{sDT}, s{sSLOT}, s{sT1}")
    k.op(f"s_lshr_b32 s{sT2}, s{sXCD}, 1")
    k.op(f"s_lshl_b32 s{sT2}, s{sT2}, 2")
    k.op(f"s_add_u32 s{sI}, s{sT2}, s{sT0}")
    k.op(f"s_and_b32 s{sT2}, s{sXCD}, 1")
    k.op(f"s_mul_i32 s{sT2}, s{sT2}, 7")
    k.op(f"s_add_u32 s{sJ}, s{sT2}, s{sDT}")
    k.op(f"s_lshl_b32 s{sTT}, s{sXCD}, 2")
    k.op(f"s_add_u32 s{sTT}, s{sTT}, s{sT0}")
    k.op(f"s_mul_i32 s{sWGM}, s{sXCD}, 28")
    k.op(f"s_add_u32 s{sWGM}, s{sWGM}, s{sSLOT}")
    k.op("v_lshlrev_b32 v1, 4, v0")
    k.op(f"s_lshl_b32 s{sT0}, s{sSLOT}, 6")
    k.op(f"v_add_u32 v6, s{sT0}, v0")
    k.op(f"s_mov_b32 s{sT1}, {(1 << 32) // 14 + 1}")
    k.op(f"v_mul_hi_u32 v7, v6, s{sT1}")
    k.op("v_mul_u32_u24 v8, 14, v7")
    k.op("v_sub_u32 v8, v6, v8")
    k.op("v_mul_u32_u24 v7, 3584, v7")
    k.op("v_lshl_add_u32 v7, v8, 7, v7")
    k.op(f"s_and_b32 s{sT1}, s{sXCD}, 1")
    k.op(f"s_mul_i32 s{sU0}, s{sT1}, 1792")
    k.op(f"s_lshl_b32 s{sT0}, s{sSLOT}, 7")
    k.op(f"s_lshl_b32 s{sT1}, s{sW}, 6")
    k.op(f"s_add_u32 s{sT0}, s{sT0}, s{sT1}")
    k.op(f"v_add_u32 v6, s{sT0}, v0")
    k.op("v_lshlrev_b32 v6, 7, v6")
    k.op(f"s_lshr_b32 s{sT1}, s{sXCD}, 1")
    k.op(f"s_mul_i32 s{sU1}, s{sT1}, {512*896}")
    k.op("v_lshrrev_b32 v10, 4, v0")
    k.op(f"v_mul_u32_u24 v2, {16*3584}, v10")
    k.op("v_and_b32 v11, 15, v0")
    k.op("v_lshl_add_u32 v2, v11, 4, v2")
    k.op("v_and_b32 v11, 1, v10")
    k.op(f"v_mul_u32_u24 v3, {XOFF}, v11")
    k.op("v_lshrrev_b32 v11, 5, v0")
    k.op("v_lshlrev_b32 v12, 3, v11")
    k.op("v_bfe_u32 v13, v0, 2, 2")
    k.op("v_add_u32 v12, v12, v13")
    k.op("v_mul_u32_u24 v12, 1056, v12")
    k.op("v_add_u32 v3, v3, v12")
    k.op("v_and_b32 v13, 3, v0")
    k.op("v_lshl_add_u32 v3, v13, 3, v3")
    k.op(f"v_add_u32 v14, {2*SLOT_SZ}, v3")
    k.op("v_and_b32 v13, 31, v0")
    k.op(f"s_lshl_b32 s{sT0}, s{sW}, 5")
    k.op(f"v_add_u32 v13, s{sT0}, v13")
    k.op(f"v_mul_u32_u24 v15, {XROW}, v13")
    k.op("v_lshl_add_u32 v15, v11, 4, v15")
    k.op(f"v_add_u32 v15, {XS}, v15")
    k.op(f"s_mov_b32 s{sONES}, 0x3f803f80")
    k.op(f"s_mov_b32 s{sMASK}, 0xffff0000")
    k.op("s_waitcnt lgkmcnt(0)")
    srd(k, rX, sPQ, S * D * 2)
    k.op(f"s_bitcmp1_b32 s{sW}, 0")
    k.op(f"s_cselect_b32 s{rW}, s{sPWU}, s{sPWG}")
    k.op(f"s_cselect_b32 s{rW+1}, s{sPWU+1}, s{sPWG+1}")
    k.op(f"s_and_b32 s{rW+1}, s{rW+1}, 0xffff")
    k.op(f"s_mov_b32 s{rW+2}, {D*F*2}")
    k.op(f"s_mov_b32 s{rW+3}, 0x20000")
    stamp(k, "start")
    if "nopf" not in OPT:
        l1, l2 = k.newlabel("Lpf"), k.newlabel("Lpf")
        k.op(f"s_cmp_ge_u32 s{sW}, 2")
        k.op(f"s_cbranch_scc1 {l1}")
        k.op(f"buffer_load_dword a250, v6, s[{rX}:{rX+3}], s{sU1} offen")
        k.op(f"s_branch {l2}")
        k.label(l1)
        k.op(f"buffer_load_dword a250, v7, s[{rW}:{rW+3}], s{sU0} offen")
        k.label(l2)
        k.vmq.append("pf")
    k.op(f"s_lshl_b32 s{sT0}, s{sI}, 2")
    k.op(f"s_add_u32 s{sT0}, s{sT0}, s{sW}")
    k.op(f"s_mul_i32 s{sT1}, s{sT0}, {32*896}")
    k.op(f"s_mul_i32 s{sT2}, s{sW}, {32*XROW}")
    k.op(f"s_add_u32 m0, s{sT2}, {XS}")
    k.op("s_mov_b32 exec_hi, 0x00ffffff")
    k.op(f"s_mov_b32 s{sT0}, 8")
    lx = k.newlabel("Lxd")
    k.label(lx)
    for n in range(4):
        k.op(f"buffer_load_dwordx4 v1, s[{rX}:{rX+3}], s{sT1} offen lds")
        k.op(f"s_add_u32 m0, m0, {XROW}")
        k.op(f"s_add_u32 s{sT1}, s{sT1}, 896")
    k.op(f"s_sub_u32 s{sT0}, s{sT0}, 1")
    k.op(f"s_cmp_lg_u32 s{sT0}, 0")
    k.op(f"s_cbranch_scc1 {lx}")
    for n in range(32): k.vmq.append("x")
    k.op("s_mov_b32 exec_hi, -1")
    k.op(f"s_lshr_b32 s{sT0}, s{sW}, 1")
    k.op(f"s_lshl_b32 s{sT0}, s{sT0}, 3")
    k.op(f"s_mul_i32 s{sWSO}, s{sT0}, 3584")
    k.op(f"s_lshl_b32 s{sT1}, s{sJ}, 8")
    k.op(f"s_add_u32 s{sWSO}, s{sWSO}, s{sT1}")
    k.op(f"s_mul_i32 s{sWM0}, s{sT0}, 1056")
    k.op(f"s_and_b32 s{sT1}, s{sW}, 1")
    k.op(f"s_mul_i32 s{sT1}, s{sT1}, {XOFF}")
    k.op(f"s_add_u32 s{sWM0}, s{sWM0}, s{sT1}")
    for e in range(8): emit(k, wdma(0, e))
    srd(k, rWS, sPWS, (16 << 20) if STAMPS else WS_USED)
    srd(k, rWD, sPWD, F * D * 2)
    srd(k, rSSM, sPSSM, D * S * 2)
    srd(k, rOUT, sPOUT, S * D * 2)
    srd(k, rD, sPD, D * 2)
    if "nopf" not in OPT:
        k.op(f"s_lshr_b32 s{sT0}, s{sW}, 1")
        k.op(f"s_mul_i32 s{sT0}, s{sT0}, {128*3584}")
        k.op(f"s_add_u32 s{sU2}, s{sU0}, s{sT0}")
        k.op(f"s_add_u32 s{sU2}, s{sU2}, {128*3584}")
        k.vm(f"buffer_load_dword a250, v7, s[{rW}:{rW+3}], s{sU2} offen", "pf")
        k.op(f"s_add_u32 s{sU2}, s{sU0}, {384*3584}")
        k.vm(f"buffer_load_dword a250, v7, s[{rW}:{rW+3}], s{sU2} offen", "pf")
    stamp(k, "a_issued")
    k.wait(vm="x")
    stamp(k, "a_xarr")
    for ks in range(28):
        if ks >= 14: k.wait(lg=f"x{ks-14}")
        k.lg(f"ds_read_b128 {vr(vX + 4 * ks, 4)}, v15 offset:{32 * ks}", f"x{ks}")
    k.wait(vm="w0", lg="x27")
    k.op("s_barrier")
    stamp(k, "a_xreg")
    main = [("op", f"v_mov_b32 v{6+a}, 0") for a in range(8)]
    for n in range(112):
        main.append(("op", f"v_dot2_f32_bf16 v{6 + n % 4}, v{vX+n}, s{sONES}, v{6 + n % 4}"))
        main.append(("op", f"v_dot2_f32_bf16 v{10 + n % 4}, v{vX+n}, v{vX+n}, v{10 + n % 4}"))
    fill = [wdma(c, e) for c in (1, 2, 3) for e in range(8)]
    interleave(k, main, fill, 9)
    k.op("s_nop 2")
    k.op("v_add_f32 v6, v6, v7"); k.op("v_add_f32 v8, v8, v9")
    k.op("v_add_f32 v10, v10, v11"); k.op("v_add_f32 v12, v12, v13")
    k.op("v_add_f32 v6, v6, v8"); k.op("v_add_f32 v10, v10, v12")
    k.op("v_mov_b32 v7, v6"); k.op("v_mov_b32 v11, v10")
    k.op("s_nop 1")
    k.op("v_permlane32_swap_b32 v6, v7"); k.op("v_permlane32_swap_b32 v10, v11")
    k.op("s_nop 1")
    k.op("v_add_f32 v6, v6, v7"); k.op("v_add_f32 v10, v10, v11")
    k.op(f"v_mul_f32 v6, {hex(f2u(1.0/448))}, v6")
    k.op(f"v_mul_f32 v10, {hex(f2u(1.0/448))}, v10")
    k.op("v_fma_f32 v10, -v6, v6, v10")
    k.op("v_max_f32 v10, 0, v10")
    k.op("v_cvt_pk_bf16_f32 v7, v6, v10")
    k.op("v_lshlrev_b32 v6, 16, v7")
    k.op(f"v_and_b32 v10, s{sMASK}, v7")
    k.op(f"v_add_f32 v10, {hex(f2u(1e-5))}, v10")
    k.op("v_cvt_pk_bf16_f32 v10, v10, v10")
    k.op("v_lshlrev_b32 v10, 16, v10")
    k.op("v_sqrt_f32 v10, v10")
    k.op("s_nop 0")
    k.op("v_cvt_pk_bf16_f32 v10, v10, v10")
    k.op("v_lshlrev_b32 v10, 16, v10")
    k.op("v_rcp_f32 v4, v10")
    k.op("s_nop 0")
    k.op("v_mul_f32 v5, v6, v4")
    k.op("v_sub_f32 v5, 0, v5")
    lab = k.newlabel("Lnost")
    k.op(f"s_cmp_lg_u32 s{sJ}, 0")
    k.op(f"s_cbranch_scc1 {lab}")
    k.op(f"s_lshl_b32 s{sT0}, s{sI}, 2")
    k.op(f"s_add_u32 s{sT0}, s{sT0}, s{sW}")
    k.op(f"s_lshl_b32 s{sT0}, s{sT0}, 8")
    k.op(f"s_add_u32 s{sT0}, s{sT0}, {ST_OFF}")
    k.op("v_lshlrev_b32 v6, 3, v0")
    k.op("s_mov_b32 exec_hi, 0")
    k.op(f"buffer_store_dwordx2 v[4:5], v6, s[{rWS}:{rWS+3}], s{sT0} offen sc1")
    k.op("s_mov_b32 exec_hi, -1")
    k.label(lab)

def norm(n, tp):
    t = 6 + 2 * tp
    return [("op", f"v_lshlrev_b32 v{t}, 16, v{vX+n}"),
            ("op", f"v_and_b32 v{t+1}, s{sMASK}, v{vX+n}"),
            ("op", f"v_fma_f32 v{t}, v{t}, v4, v5"),
            ("op", f"v_fma_f32 v{t+1}, v{t+1}, v4, v5"),
            ("op", f"v_cvt_pk_bf16_f32 v{vX+n}, v{t}, v{t+1}")]
def norm_step(ks):
    a = [norm(4 * ks + q, q) for q in range(4)]
    out = []
    for s in range(5):
        for q in range(4): out.append(a[q][s])
    return out

def hc_dma(q):
    rr, qq = divmod(q, 4)
    out = []
    if qq == 0:
        out.append(("op", f"s_add_u32 m0, s{sU0}, {rr * HC_STRIDE}"))
        out.append(("op", f"s_add_u32 s{sU2}, s{sU1}, {rr * 2}"))
    out.append(("vm", f"buffer_load_dwordx4 v1, s[{rSSM}:{rSSM+3}], s{sU2} offen offset:{qq*1024} lds", "hc"))
    return out

def gemm1_loop(k):
    emit(k, norm_step(0))
    k.op(f"s_lshr_b32 s{sT0}, s{sW}, 1")
    k.op(f"s_lshl_b32 s{sCH}, s{sWGM}, 1")
    k.op(f"s_add_u32 s{sCH}, s{sCH}, s{sT0}")
    k.op(f"s_and_b32 s{sT1}, s{sW}, 1")
    k.op(f"s_lshl_b32 s{sT1}, s{sT1}, 1")
    k.op(f"s_mul_i32 s{sU0}, s{sT0}, {HC_CH}")
    k.op(f"s_mul_i32 s{sT3}, s{sT1}, {HC_STRIDE}")
    k.op(f"s_add_u32 s{sU0}, s{sU0}, s{sT3}")
    k.op(f"s_add_u32 s{sU0}, s{sU0}, {HC + 32}")
    k.op(f"s_lshl_b32 s{sU1}, s{sCH}, 12")
    k.op(f"s_lshl_b32 s{sT1}, s{sT1}, 1")
    k.op(f"s_add_u32 s{sU1}, s{sU1}, s{sT1}")
    k.op(f"s_add_u32 s{sU1}, s{sU1}, 2")
    stamp(k, "a_stats")
    NF = 8; DIST = 7; NM = 224
    def rd(n):
        ks, mt = divmod(n, 8)
        c, kk = divmod(ks, 4)
        sl = c % 4
        base = "v3" if sl < 2 else "v14"
        off = (SLOT_SZ if sl % 2 else 0) + kk * 256 + mt * 32
        f = 4 * (n % NF)
        return [("lg", f"ds_read_b64_tr_b16 {ar(f, 2)}, {base} offset:{off}", f"f{n}"),
                ("lg", f"ds_read_b64_tr_b16 {ar(f + 2, 2)}, {base} offset:{off + 4 * 1056}", f"f{n}")]
    for n in range(DIST): emit(k, rd(n))
    extra = {}
    def wd_pf(part):
        def fn():
            k.op(f"s_lshl_b32 s{sT0}, s{sSLOT}, 2")
            k.op(f"s_add_u32 s{sT0}, s{sT0}, s{sW}")
            k.op(f"s_mul_i32 s{sT0}, s{sT0}, {112*128}")
            if part == 1: k.op(f"s_add_u32 s{sT0}, s{sT0}, {48*128}")
            k.op("v_lshlrev_b32 v15, 7, v0")
            k.vm(f"buffer_load_dword a250, v15, s[{rWD}:{rWD+3}], s{sT0} offen", "pf")
        return [("fn", fn)]
    if "nopf" not in OPT:
        extra[5] = wd_pf(0); extra[9] = wd_pf(1)
    def ld_init():
        k.op("v_mov_b32 v15, 0")
        k.vm(f"global_load_dword a40, v15, s[{sPDBG}:{sPDBG+1}] sc1", "init")
    extra[13] = [("fn", ld_init)]
    def chk_init():
        k.wait(vm="init")
        k.op("v_accvgpr_read_b32 v0, a40") if False else None
    for n in range(NM):
        ks, mt = divmod(n, 8)
        c, kk = divmod(ks, 4)
        if n % 32 == 0: stamp(k, f"g_c{n//32}")
        if n % 4 == 0:
            k.wait(lg=[f"f{n+i}" for i in range(4)])
        f = 4 * (n % NF)
        acc = vr(vACC + 16 * mt, 16)
        cin = "0" if ks == 0 else acc
        k.op(f"v_mfma_f32_32x32x16_bf16 {acc}, {ar(f, 4)}, {vr(vX + 4 * ks, 4)}, {cin}")
        nn = n + DIST
        if nn < NM:
            if nn % 32 == 0:
                k.wait(vm=f"w{nn // 32}")
                k.op("s_barrier")
            emit(k, rd(nn))
        if ks + 1 < 28:
            st = norm_step(ks + 1)
            cut = [0, 3, 6, 9, 12, 15, 18, 20, 20]
            emit(k, st[cut[mt]: cut[mt + 1]])
        if mt in (6, 7):
            e = 2 * kk + (mt - 6)
            if 2 <= c and c + 2 < 7: emit(k, wdma(c + 2, e))
            if c in (5, 6) and mt == 7:
                q = (c - 5) * 4 + kk
                emit(k, hc_dma(q))
        if mt == 7 and ks in extra: emit(k, extra[ks])
    stamp(k, "g_end")

def g2_setup(k):
    k.op("v_lshrrev_b32 v3, 3, v0")
    k.op("v_mul_u32_u24 v2, 896, v3")
    k.op("v_bfe_u32 v3, v0, 4, 1")
    k.op("v_lshlrev_b32 v3, 2, v3")
    k.op("v_and_b32 v4, 7, v0")
    k.op("v_xor_b32 v3, v3, v4")
    k.op("v_lshl_add_u32 v2, v3, 4, v2")
    k.op(f"s_mul_i32 s{sWDS}, s{sW}, {16*28*896}")
    k.op(f"s_lshl_b32 s{sT0}, s{sDT}, 7")
    k.op(f"s_add_u32 s{sWDS}, s{sWDS}, s{sT0}")
    k.op(f"s_mul_i32 s{sWDM}, s{sW}, {WD_WAVE}")
    k.op(f"s_add_u32 s{sWDM}, s{sWDM}, {WDST}")
    k.op("v_lshrrev_b32 v5, 5, v0")
    k.op("v_bfe_u32 v6, v0, 2, 2")
    k.op("v_lshl_add_u32 v5, v5, 2, v6")
    k.op("v_lshlrev_b32 v5, 7, v5")
    k.op("v_bfe_u32 v7, v0, 4, 1")
    k.op("v_lshl_add_u32 v5, v7, 5, v5")
    k.op("v_and_b32 v7, 3, v0")
    k.op("v_lshl_add_u32 v5, v7, 3, v5")
    k.op(f"v_add_u32 v5, s{sWDM}, v5")
    k.op("v_bfe_u32 v6, v0, 3, 1")
    k.op("v_lshlrev_b32 v6, 6, v6")
    k.op("v_add_u32 v3, v5, v6")
    k.op("v_xor_b32 v6, 64, v6")
    k.op("v_add_u32 v4, v5, v6")

def wd_dma_groups(ks0, ks1, tag):
    out = []
    q = 0
    for ks in range(ks0, ks1):
        for hh in range(2):
            g = []
            if q % 4 == 0:
                g.append(("op", f"s_add_u32 m0, s{sWDM}, {(q // 4) * 4096}"))
            g.append(("op", f"s_add_u32 s{sT3}, s{sWDS}, {(16 * ks + 8 * hh) * 896 - (q % 4) * 1024}"))
            g.append(("vm", f"buffer_load_dwordx4 v2, s[{rWD}:{rWD+3}], s{sT3} offen offset:{(q % 4) * 1024} lds", tag))
            out.append(g)
            q += 1
    return out

def wd_read_items(ks0, ks1):
    out = []
    for ks in range(ks0, ks1):
        for dt2 in range(2):
            for t in range(2):
                a = 8 * ks + 4 * dt2 + 2 * t
                out.append(("lg", f"ds_read_b64_tr_b16 {ar(a,2)}, v{3+dt2} offset:{(ks-ks0)*2048 + t*1024}", f"wr{ks}_{dt2}_{t}"))
    return out
def emit_lg_limited(k, items):
    for it in items:
        if it[0] == "lg" and len(k.lgq) >= 12: k.wait(lg=k.lgq[5])
        emit(k, [it])

def gelu_phase(k):
    k.wait(lg=k.lgq[-1]) if k.lgq else None
    k.op("s_barrier")
    g2_setup(k)
    vC, vONE = 16, 18
    C1 = -2.0 * 0.7978845608028654 * 1.4426950408889634
    C2 = C1 * 0.044715
    k.op(f"v_mov_b32 v{vC}, {hex(f2u(C1))}")
    k.op(f"v_mov_b32 v{vC+1}, {hex(f2u(C2))}")
    k.op(f"v_mov_b32 v{vONE}, 1.0")
    k.op(f"v_mov_b32 v{vONE+1}, 1.0")
    k.op(f"s_lshl_b32 s{sT0}, s{sI}, 2")
    k.op(f"s_add_u32 s{sT0}, s{sT0}, s{sW}")
    k.op(f"s_mul_i32 s{sHST}, s{sT0}, {112*1024}")
    k.op(f"s_lshl_b32 s{sT1}, s{sJ}, 13")
    k.op(f"s_add_u32 s{sHST}, s{sHST}, s{sT1}")
    k.wait(vm="init")
    k.op("v_accvgpr_read_b32 v8, a40")
    k.op("v_mov_b32 v9, 0")
    k.op("s_nop 0")
    check_or_spin(k, 8, 9, sPDBG, 1)
    cnt_addr(k, 9, idx=UCNT)
    k.vm(f"global_load_dword v8, v9, s[{sPWS}:{sPWS+1}] sc1", "ucnt")
    k.op("v_lshrrev_b32 v10, 4, v0")
    k.op("v_and_b32 v11, 15, v0")
    k.op("v_add_u32 v12, v10, v11")
    k.op("v_subrev_u32 v12, 15, v12")
    k.op("v_lshlrev_b32 v12, 1, v12")
    k.op(f"s_lshl_b32 s{sT1}, s{sCH}, 12")
    k.op("v_cmp_gt_i32 vcc, 0, v12")
    k.op("v_mov_b32 v13, 0x7fffffff")
    k.op("s_nop 0")
    k.op("v_cndmask_b32 v12, v12, v13, vcc")
    k.vm(f"buffer_load_ushort v14, v12, s[{rSSM}:{rSSM+3}], s{sT1} offen", "hf")
    k.op(f"s_lshl_b32 s{sT1}, s{sCH}, 1")
    k.op("v_mov_b32 v13, 0")
    k.vm(f"buffer_load_ushort v15, v13, s[{rD}:{rD+3}], s{sT1} offen", "dv")
    k.op(f"v_mul_u32_u24 v10, {HC_STRIDE}, v10")
    k.op("v_lshl_add_u32 v10, v11, 1, v10")
    k.op(f"s_lshr_b32 s{sT0}, s{sW}, 1")
    k.op(f"s_mul_i32 s{sT2}, s{sT0}, {HC_CH}")
    k.op(f"s_add_u32 s{sT2}, s{sT2}, {HC}")
    k.op(f"v_add_u32 v10, s{sT2}, v10")
    k.op(f"s_mul_i32 s{sT2}, s{sT0}, {UR_CH}")
    k.op(f"s_add_u32 s{sT2}, s{sT2}, {UR + 4096}")
    k.op(f"v_add_u32 v11, s{sT2}, v1")
    k.op("v_mov_b32 v20, 0"); k.op("v_mov_b32 v21, 0"); k.op("v_mov_b32 v22, 0"); k.op("v_mov_b32 v23, 0")
    k.op("s_mov_b32 exec_hi, 0")
    k.lg("ds_write_b128 v11, v[20:23]", "z")
    k.op("s_mov_b32 exec_hi, -1")
    wd0 = wd_dma_groups(0, WD_KS, "wd0")
    def ur_dma():
        k.wait(vm="ucnt")
        check_or_spin(k, 8, 9, sPWS, 32)
        k.op(f"s_lshr_b32 s{sT0}, s{sW}, 1")
        k.op(f"s_and_b32 s{sT1}, s{sW}, 1")
        k.op(f"s_lshl_b32 s{sT1}, s{sT1}, 11")
        k.op(f"s_mul_i32 s{sT2}, s{sT0}, {UR_CH}")
        k.op(f"s_add_u32 s{sT2}, s{sT2}, s{sT1}")
        k.op(f"s_add_u32 m0, s{sT2}, {UR}")
        k.op(f"s_lshl_b32 s{sT3}, s{sCH}, 12")
        k.op(f"s_add_u32 s{sT3}, s{sT3}, s{sT1}")
        k.op(f"s_add_u32 s{sT3}, s{sT3}, {U_OFF}")
        k.vm(f"buffer_load_dwordx4 v1, s[{rWS}:{rWS+3}], s{sT3} offen sc1 lds", "ur")
        k.vm(f"buffer_load_dwordx4 v1, s[{rWS}:{rWS+3}], s{sT3} offen offset:1024 sc1 lds", "ur")
        k.wait(vm="hf")
        k.lg("ds_write_b16 v10, v14", "z")
    for mt in range(8):
        G = vACC + 16 * mt; U = G + 8
        T = 24 + (mt % 2) * 24
        tp = lambda p: T + 2 * p
        gu = lambda p: T + 8 + 2 * p
        O = T + 16
        P = range(4)
        m = []
        for p in P: m.append(("op", f"v_pk_mul_f32 {vr(tp(p),2)}, {vr(G+2*p,2)}, {vr(G+2*p,2)}"))
        for p in P: m.append(("op", f"v_pk_fma_f32 {vr(tp(p),2)}, {vr(tp(p),2)}, {vr(vC,2)}, {vr(vC,2)} op_sel:[0,1,0] op_sel_hi:[1,1,0]"))
        for p in P: m.append(("op", f"v_pk_mul_f32 {vr(tp(p),2)}, {vr(tp(p),2)}, {vr(G+2*p,2)}"))
        for p in P:
            m.append(("op", f"v_exp_f32 v{tp(p)}, v{tp(p)}")); m.append(("op", f"v_exp_f32 v{tp(p)+1}, v{tp(p)+1}"))
        for p in P: m.append(("op", f"v_pk_mul_f32 {vr(gu(p),2)}, {vr(G+2*p,2)}, {vr(U+2*p,2)}"))
        for p in P: m.append(("op", f"v_pk_add_f32 {vr(tp(p),2)}, {vr(tp(p),2)}, {vr(vONE,2)}"))
        for p in P:
            m.append(("op", f"v_rcp_f32 v{tp(p)}, v{tp(p)}")); m.append(("op", f"v_rcp_f32 v{tp(p)+1}, v{tp(p)+1}"))
        m.append(("op", "s_nop 0"))
        for p in P: m.append(("op", f"v_pk_mul_f32 {vr(gu(p),2)}, {vr(gu(p),2)}, {vr(tp(p),2)}"))
        for p in P: m.append(("op", f"v_cvt_pk_bf16_f32 v{O+p}, v{gu(p)}, v{gu(p)+1}"))
        fill = [wd0.pop(0) for _ in range(3)]
        pos = {12: 0, 24: 1, 36: 2}
        for n, it in enumerate(m):
            emit(k, [it])
            if n in pos: emit(k, fill[pos[n]])
        if mt % 4 == 0 and mt > 0:
            k.op(f"s_add_u32 s{sHST}, s{sHST}, 4096")
        k.vm(f"buffer_store_dwordx4 {vr(O,4)}, v1, s[{rWS}:{rWS+3}], s{sHST} offen offset:{(mt%4)*1024} sc1", "hst")
        if mt == 3: ur_dma()
    assert not wd0
    stamp(k, "e_gelu")
    k.wait(vm="wd0")
    emit_lg_limited(k, wd_read_items(0, WD_KS))
    k.wait_all()
    k.op("s_barrier")
    cnt_addr(k, 9, idx_sgpr=sI, idx=HCNT)
    signal(k, 9, 8)
    stamp(k, "e_sig")

def conv_phase(k):
    k.op("v_lshlrev_b32 v8, 16, v15")
    k.op(f"s_lshr_b32 s{sT0}, s{sW}, 1")
    k.op(f"s_mul_i32 s{sT2}, s{sT0}, {HC_CH}")
    k.op(f"s_add_u32 s{sT2}, s{sT2}, {HC}")
    k.op("v_bfe_u32 v5, v0, 2, 2")
    k.op(f"v_mul_u32_u24 v14, {HC_STRIDE}, v5")
    k.op("v_and_b32 v6, 3, v0")
    k.op("v_lshl_add_u32 v14, v6, 3, v14")
    k.op("v_lshrrev_b32 v6, 4, v0")
    k.op("v_lshl_add_u32 v14, v6, 4, v14")
    k.op(f"s_and_b32 s{sT1}, s{sW}, 1")
    k.op(f"s_lshl_b32 s{sT1}, s{sT1}, 8")
    k.op(f"s_add_u32 s{sT2}, s{sT2}, s{sT1}")
    k.op(f"v_add_u32 v14, s{sT2}, v14")
    k.op("v_and_b32 v7, 15, v0")
    k.op("v_lshlrev_b32 v7, 5, v7")
    k.op("v_lshlrev_b32 v5, 4, v6")
    k.op("v_sub_u32 v15, v5, v7")
    k.op(f"s_mul_i32 s{sT2}, s{sT0}, {UR_CH}")
    k.op(f"s_add_u32 s{sT2}, s{sT2}, {UR + 4064 - 3584}")
    k.op(f"s_add_u32 s{sT3}, s{sT2}, s{sT1}")
    k.op(f"v_add_u32 v15, s{sT3}, v15")
    k.op("v_lshlrev_b32 v5, 3, v6")
    k.op("v_add_u32 v7, v7, v5")
    k.op(f"s_add_u32 s{sT2}, s{sT2}, {4088 - 4064}")
    k.op(f"v_sub_u32 v13, s{sT2}, v7")
    FB = [16, 48]; GB = 80; ACC = 96
    def rdF(sub, J):
        b = FB[sub % 2] + 4 * J
        off = 64 * (8 * J + sub)
        return [(f"ds_read_b64_tr_b16 {vr(b,2)}, v14 offset:{off}", f"F{sub}_{J}"),
                (f"ds_read_b64_tr_b16 {vr(b+2,2)}, v14 offset:{off+8}", f"F{sub}_{J}")]
    def rdG(sub, T):
        idx = sub * 8 + (7 - T)
        b = GB + 4 * (idx % 4)
        return (f"ds_read_b128 {vr(b,4)}, v15 offset:{512*(7-T) + 64*sub}", f"G{sub}_{T}")
    seq = [(sub, T, J) for sub in range(4) for T in range(7, -1, -1) for J in range(0, 8 - T)]
    for J in range(4):
        for t in rdF(0, J): k.lg(*t)
    for T in (7, 6, 5): k.lg(*rdG(0, T))
    pendF = [(0, J) for J in range(4, 8)] + [(s, J) for s in range(1, 4) for J in range(8)]
    gq = [(s, T) for s in range(4) for T in range(7, -1, -1)][3:]
    wd1 = wd_dma_groups(WD_KS, 2 * WD_KS, "wd1")
    first = set(); lastG = None
    for n, (sub, T, J) in enumerate(seq):
        k.wait(lg=[f"F{sub}_{J}", f"G{sub}_{T}"])
        tile = T + J
        a = vr(ACC + 4 * tile, 4)
        cin = a if tile in first else "0"
        first.add(tile)
        gidx = sub * 8 + (7 - T)
        k.op(f"v_mfma_f32_16x16x32_bf16 {a}, {vr(FB[sub%2]+4*J,4)}, {vr(GB+4*(gidx%4),4)}, {cin}")
        if (sub, T) != lastG:
            lastG = (sub, T)
            if gq: k.lg(*rdG(*gq.pop(0)))
        elif pendF and len(k.lgq) <= 12 and (pendF[0][0] == sub or pendF[0][0] == sub + 1):
            for t in rdF(*pendF.pop(0)): k.lg(*t)
        elif wd1 and n % 5 == 4:
            emit(k, wd1.pop(0))
    assert not pendF and not gq
    for g in wd1: emit(k, g)
    stamp(k, "c_mfma")
    k.op(f"s_lshl_b32 s{sT0}, s{sW}, 12")
    k.op(f"s_add_u32 s{sT0}, s{sT0}, {XCH}")
    k.op(f"v_add_u32 v5, s{sT0}, v1")
    k.op(f"s_xor_b32 s{sT1}, s{sW}, 1")
    k.op(f"s_lshl_b32 s{sT1}, s{sT1}, 12")
    k.op(f"s_add_u32 s{sT1}, s{sT1}, {XCH}")
    k.op(f"v_add_u32 v6, s{sT1}, v1")
    k.op(f"s_lshl_b32 s{sT2}, s{sCH}, 12")
    k.op(f"s_add_u32 s{sT2}, s{sT2}, {Y_OFF}")
    lo, le = k.newlabel("Lcodd"), k.newlabel("Lcend")
    assert not k.lgq
    def finish(keep, send):
        for i in range(4):
            k.op(f"ds_write_b128 v5, {vr(ACC + 4*(send+i), 4)} offset:{1024*i}")
        for i in range(4):
            k.op(f"ds_read_b64 {vr(40+2*i,2)}, v13 offset:{512*(7-(keep+i))}")
        k.op("s_waitcnt lgkmcnt(0)")
        k.op("s_barrier")
        for i in range(4):
            k.op(f"ds_read_b128 {vr(16+4*i,4)}, v6 offset:{1024*i}")
        k.op("s_waitcnt lgkmcnt(0)")
        for i in range(4):
            A = ACC + 4 * (keep + i)
            k.op(f"v_pk_add_f32 {vr(A,2)}, {vr(A,2)}, {vr(16+4*i,2)}")
            k.op(f"v_pk_add_f32 {vr(A+2,2)}, {vr(A+2,2)}, {vr(18+4*i,2)}")
            U = 40 + 2 * i
            k.op(f"v_and_b32 v50, s{sMASK}, v{U+1}")
            k.op(f"v_lshlrev_b32 v51, 16, v{U+1}")
            k.op(f"v_and_b32 v52, s{sMASK}, v{U}")
            k.op(f"v_lshlrev_b32 v53, 16, v{U}")
            for r in range(4):
                k.op(f"v_fmac_f32 v{A+r}, v{50+r}, v8")
            k.op(f"v_cvt_pk_bf16_f32 v{56+2*i}, v{A}, v{A+1}")
            k.op(f"v_cvt_pk_bf16_f32 v{57+2*i}, v{A+2}, v{A+3}")
        for i in range(4):
            k.op(f"buffer_store_dwordx2 {vr(56+2*i,2)}, v7, s[{rWS}:{rWS+3}], s{sT2} offen offset:{512*(keep+i)} sc1")
    k.op(f"s_bitcmp1_b32 s{sW}, 0")
    k.op(f"s_cbranch_scc1 {lo}")
    finish(0, 4)
    k.op(f"s_branch {le}")
    k.label(lo)
    finish(4, 0)
    k.label(le)
    for i in range(4): k.vmq.append("yst")
    k.wait(vm="wd1")
    emit_lg_limited(k, wd_read_items(WD_KS, 2 * WD_KS))
    k.wait_all()
    k.op("s_barrier")
    k.op(f"s_lshr_b32 s{sU0}, s{sWGM}, 5")
    cnt_addr(k, 9, idx_sgpr=sU0, idx=YCNT)
    signal(k, 9, 8)
    stamp(k, "c_sig")

vH = 16; NHS = 21; vA2 = 192
def g2_hload(k, ks):
    for e in range(2):
        b = vH + 8 * (ks % NHS) + 4 * e
        k.vm(f"buffer_load_dwordx4 {vr(b,4)}, v1, s[{rWS}:{rWS+3}], s{76+e} offen offset:{(ks%4)*1024} sc1", f"h{ks}")

def gemm2_phase(k):
    for g in wd_dma_groups(2 * WD_KS, 28, "wd2"): emit(k, g)
    k.op(f"s_lshr_b32 s{sU0}, s{sTT}, 1")
    cnt_addr(k, 9, idx_sgpr=sU0, idx=HCNT)
    lab = k.newlabel("Lhw")
    k.op(f"s_cmp_lg_u32 s{sW}, 0")
    k.op(f"s_cbranch_scc1 {lab}")
    q = list(k.vmq)
    spin_until(k, 9, 8, sPWS, 14)
    k.vmq = q
    k.label(lab)
    k.op("s_barrier")
    stamp(k, "d_hrdy")
    k.op(f"s_lshl_b32 s{sT0}, s{sTT}, 1")
    k.op(f"s_mul_i32 s{sT0}, s{sT0}, 112")
    k.op(f"s_mul_i32 s{sT1}, s{sW}, 28")
    k.op(f"s_add_u32 s{sT0}, s{sT0}, s{sT1}")
    k.op(f"s_lshl_b32 s76, s{sT0}, 10")
    k.op(f"s_add_u32 s77, s76, {112*1024}")
    for ks in range(NHS):
        if ks % 4 == 0 and ks > 0:
            k.op("s_add_u32 s76, s76, 4096"); k.op("s_add_u32 s77, s77, 4096")
        g2_hload(k, ks)
    k.op("v_lshrrev_b32 v5, 3, v0")
    k.op(f"s_lshl_b32 s{sT0}, s{sW}, 3")
    k.op(f"v_add_u32 v5, s{sT0}, v5")
    k.op("v_and_b32 v6, 7, v0")
    k.op("v_mul_u32_u24 v7, 896, v5")
    k.op("v_lshl_add_u32 v7, v6, 4, v7")
    k.op(f"s_mul_i32 s78, s{sTT}, {64*896}")
    k.op(f"s_lshl_b32 s{sT0}, s{sDT}, 7")
    k.op(f"s_add_u32 s78, s78, s{sT0}")
    k.op(f"s_add_u32 s79, s78, {32*896}")
    cnt_addr(k, 9, idx_sgpr=sDT, idx=YCNT)
    def epi_loads():
        k.vm(f"buffer_load_dwordx4 {ar(224,4)}, v7, s[{rX}:{rX+3}], s78 offen", "ex")
        k.vm(f"buffer_load_dwordx4 {ar(228,4)}, v7, s[{rX}:{rX+3}], s79 offen", "ex")
        k.op("v_lshlrev_b32 v8, 3, v5")
        k.op(f"s_lshl_b32 s{sT0}, s{sTT}, 9")
        k.op(f"s_add_u32 s{sT0}, s{sT0}, {ST_OFF}")
        k.vm(f"buffer_load_dwordx2 {ar(232,2)}, v8, s[{rWS}:{rWS+3}], s{sT0} offen sc1", "ex")
        k.vm(f"buffer_load_dwordx2 {ar(234,2)}, v8, s[{rWS}:{rWS+3}], s{sT0} offen offset:256 sc1", "ex")
        k.vm(f"global_load_dword v10, v9, s[{sPWS}:{sPWS+1}] sc1", "ycnt")
    def y_loads():
        k.wait(vm="ycnt")
        check_or_spin(k, 10, 9, sPWS, 32)
        k.op("v_lshrrev_b32 v8, 3, v0")
        k.op("v_lshlrev_b32 v8, 12, v8")
        k.op("v_lshl_add_u32 v8, v6, 4, v8")
        k.op(f"s_lshl_b32 s{sT0}, s{sDT}, 18")
        k.op(f"s_lshl_b32 s{sT1}, s{sW}, 16")
        k.op(f"s_add_u32 s{sT0}, s{sT0}, s{sT1}")
        k.op(f"s_lshl_b32 s{sT1}, s{sTT}, 7")
        k.op(f"s_add_u32 s{sT0}, s{sT0}, s{sT1}")
        k.op(f"s_add_u32 s{sT0}, s{sT0}, {Y_OFF}")
        k.op(f"s_mul_i32 s{sT1}, s{sW}, 2080")
        k.op(f"s_add_u32 m0, s{sT1}, {YT}")
        k.op(f"s_add_u32 s{sT2}, s{sT0}, {8*4096 - 1040}")
        k.vm(f"buffer_load_dwordx4 v8, s[{rWS}:{rWS+3}], s{sT0} offen sc1 lds", "ey")
        k.vm(f"buffer_load_dwordx4 v8, s[{rWS}:{rWS+3}], s{sT2} offen offset:1040 sc1 lds", "ey")
    wr2 = wd_read_items(2 * WD_KS, 28)
    first = set()
    for ks in range(28):
        if ks == 2 * WD_KS: k.wait(lg=k.lgq[-1]) if k.lgq else None
        k.wait(vm=f"h{ks}")
        for dt2 in range(2):
            for e in range(2):
                t = 2 * dt2 + e
                acc = vr(vA2 + 16 * t, 16)
                cin = acc if t in first else "0"
                first.add(t)
                hb = vH + 8 * (ks % NHS) + 4 * e
                k.op(f"v_mfma_f32_32x32x16_bf16 {acc}, {ar(8*ks+4*dt2,4)}, {vr(hb,4)}, {cin}")
        if ks + NHS < 28:
            kn = ks + NHS
            if kn % 4 == 0:
                k.op("s_add_u32 s76, s76, 4096"); k.op("s_add_u32 s77, s77, 4096")
            g2_hload(k, kn)
        if ks == 7: epi_loads()
        if ks == 8: k.wait(vm="wd2")
        if 8 <= ks < 12: emit_lg_limited(k, wr2[4 * (ks - 8): 4 * (ks - 8) + 4] + wr2[16 + 0:16]) ;
        if ks == 16: y_loads()
    stamp(k, "d_loop")
    k.wait_all()
    k.op("s_barrier")
    RROW = 272; RW = 64 * RROW
    k.op("v_and_b32 v8, 31, v0")
    k.op(f"v_mul_u32_u24 v8, {RROW}, v8")
    k.op("v_lshrrev_b32 v9, 5, v0")
    k.op("v_lshl_add_u32 v8, v9, 4, v8")
    k.op(f"s_mul_i32 s{sT0}, s{sW}, {RW}")
    k.op(f"s_add_u32 s{sT0}, s{sT0}, {RED}")
    k.op(f"v_add_u32 v8, s{sT0}, v8")
    k.op("s_nop 4")
    for dt2 in range(2):
        for e in range(2):
            for g in range(4):
                if len(k.lgq) >= 12: k.wait(lg=k.lgq[5])
                A = vA2 + 16 * (2 * dt2 + e) + 4 * g
                k.lg(f"ds_write_b128 v8, {vr(A,4)} offset:{e*32*RROW + dt2*128 + g*32}", f"rw{dt2}{e}{g}")
    k.op(f"v_mov_b32 v10, {hex(f2u(-1.4426950408889634))}")
    k.op("v_mov_b32 v11, 1.0")
    k.wait_all()
    k.op("s_barrier")
    k.op(f"v_mul_u32_u24 v8, {RROW}, v5")
    k.op("v_lshl_add_u32 v8, v6, 5, v8")
    k.op(f"v_add_u32 v8, {RED}, v8")
    k.op("v_mul_u32_u24 v9, 1040, v6")
    k.op("v_lshl_add_u32 v9, v5, 1, v9")
    k.op(f"v_add_u32 v9, {YT}, v9")
    for ps in range(2):
        B = 16 + 64 * ps
        for w in range(4):
            for hh in range(2):
                if len(k.lgq) >= 12: k.wait(lg=k.lgq[5])
                k.lg(f"ds_read_b128 {vr(B + 8*w + 4*hh, 4)}, v8 offset:{w*RW + ps*32*RROW + hh*16}", f"p{ps}_{w}{hh}")
        for e in range(8): k.op(f"v_mov_b32 v{B+32+e}, 0")
        for e in range(8):
            if len(k.lgq) >= 12: k.wait(lg=k.lgq[5])
            k.lg(f"ds_read_u16_d16_hi v{B+32+e}, v9 offset:{e*128 + ps*64}", f"y{ps}_{e}")
    for ps in range(2):
        B = 16 + 64 * ps
        Yr = B + 32; T = B + 40
        k.wait(lg=[f"p{ps}_31", f"y{ps}_7"])
        for q in range(4):
            k.op(f"v_pk_add_f32 {vr(B+2*q,2)}, {vr(B+2*q,2)}, {vr(B+8+2*q,2)}")
            k.op(f"v_pk_add_f32 {vr(B+16+2*q,2)}, {vr(B+16+2*q,2)}, {vr(B+24+2*q,2)}")
        for q in range(4):
            k.op(f"v_pk_add_f32 {vr(B+2*q,2)}, {vr(B+2*q,2)}, {vr(B+16+2*q,2)}")
        for q in range(4):
            k.op(f"v_accvgpr_read_b32 v{T+q}, a{224+4*ps+q}")
        k.op(f"v_accvgpr_read_b32 v{T+4}, a{232+2*ps}")
        k.op(f"v_accvgpr_read_b32 v{T+5}, a{233+2*ps}")
        X = B + 8
        for q in range(4):
            k.op(f"v_lshlrev_b32 v{X+2*q}, 16, v{T+q}")
            k.op(f"v_and_b32 v{X+2*q+1}, s{sMASK}, v{T+q}")
        E = B + 16; N = B + 24
        for q in range(4):
            k.op(f"v_pk_mul_f32 {vr(E+2*q,2)}, {vr(B+2*q,2)}, {vr(10,2)} op_sel_hi:[1,0]")
            k.op(f"v_pk_fma_f32 {vr(N+2*q,2)}, {vr(X+2*q,2)}, {vr(T+4,2)}, {vr(T+4,2)} op_sel:[0,0,1] op_sel_hi:[1,0,1]")
        for q in range(8): k.op(f"v_exp_f32 v{E+q}, v{E+q}")
        for q in range(4): k.op(f"v_pk_mul_f32 {vr(N+2*q,2)}, {vr(N+2*q,2)}, {vr(Yr+2*q,2)}")
        for q in range(4): k.op(f"v_pk_add_f32 {vr(E+2*q,2)}, {vr(E+2*q,2)}, {vr(10,2)} op_sel:[0,1] op_sel_hi:[1,1]")
        for q in range(8): k.op(f"v_rcp_f32 v{E+q}, v{E+q}")
        for q in range(4): k.op(f"v_pk_mul_f32 {vr(N+2*q,2)}, {vr(N+2*q,2)}, {vr(B+2*q,2)}")
        for q in range(4): k.op(f"v_pk_fma_f32 {vr(N+2*q,2)}, {vr(N+2*q,2)}, {vr(E+2*q,2)}, {vr(X+2*q,2)}")
        for q in range(4): k.op(f"v_cvt_pk_bf16_f32 v{T+8+q}, v{N+2*q}, v{N+2*q+1}")
        k.vm(f"buffer_store_dwordx4 {vr(T+8,4)}, v7, s[{rOUT}:{rOUT+3}], s{78+ps} offen", "ost")
    stamp(k, "d_end")

PP_ROW = 900
PP_K = 0
PP_V = 67 * PP_ROW + 4
def prepass(k):
    k.op(f"s_sub_u32 s{sT0}, s{sSLOT}, 28")
    k.op(f"s_lshl_b32 s{sT0}, s{sT0}, 3")
    k.op(f"s_add_u32 s{sI}, s{sT0}, s{sXCD}")
    k.op("v_lshlrev_b32 v1, 4, v0")
    k.op("s_waitcnt lgkmcnt(0)")
    srd(k, rWS, sPWS, (16 << 20) if STAMPS else WS_USED)
    lab = k.newlabel("Lnolead")
    k.op(f"s_or_b32 s{sT0}, s{sI}, s{sW}")
    k.op(f"s_cmp_lg_u32 s{sT0}, 0")
    k.op(f"s_cbranch_scc1 {lab}")
    k.op("v_lshlrev_b32 v2, 7, v0")
    k.op(f"v_add_u32 v2, {CNT_OFF}, v2")
    k.op("v_mov_b32 v3, 0")
    k.op("s_mov_b32 exec_hi, 0")
    k.op(f"global_store_dword v2, v3, s[{sPWS}:{sPWS+1}] sc1")
    k.op("s_waitcnt vmcnt(0)")
    k.op("v_mov_b32 v2, 1")
    k.op("s_mov_b64 exec, 1")
    k.op(f"global_store_dword v3, v2, s[{sPDBG}:{sPDBG+1}] sc1")
    k.op("s_mov_b64 exec, -1")
    k.label(lab)
    srd(k, rK, sPK, S * D * 2)
    srd(k, rV, sPV, S * D * 2)
    srd(k, rSK, sPSK, D * 4 * 2)
    k.op("s_mov_b32 exec_hi, 0x00ffffff")
    k.op(f"s_lshl_b32 s{sT0}, s{sI}, 6")
    k.op(f"s_add_u32 s{sT0}, s{sT0}, s{sW}")
    k.op(f"s_sub_u32 s{sT1}, s{sT0}, 3")
    k.op(f"s_mul_i32 s{sT1}, s{sT1}, 896")
    k.op(f"s_mul_i32 s{sT2}, s{sW}, {PP_ROW}")
    k.op(f"s_add_u32 m0, s{sT2}, {PP_K}")
    k.op(f"v_add_u32 v2, s{sT1}, v1")
    for n in range(17):
        if n == 16:
            lab = k.newlabel("Lpk")
            k.op(f"s_cmp_eq_u32 s{sW}, 3")
            k.op(f"s_cbranch_scc1 {lab}")
            k.op(f"buffer_load_dwordx4 v2, s[{rK}:{rK+3}], 0 offen lds")
            k.label(lab)
        else:
            k.vm(f"buffer_load_dwordx4 v2, s[{rK}:{rK+3}], 0 offen lds", "k")
            k.op(f"s_add_u32 m0, m0, {4*PP_ROW}")
            k.op(f"v_add_u32 v2, {4*896}, v2")
    k.op(f"s_mul_i32 s{sT1}, s{sT0}, 896")
    k.op(f"s_add_u32 m0, s{sT2}, {PP_V}")
    k.op("s_nop 0")
    for n in range(16):
        k.vm(f"buffer_load_dwordx4 v1, s[{rV}:{rV+3}], s{sT1} offen lds", "v")
        if n < 15:
            k.op(f"s_add_u32 m0, m0, {4*PP_ROW}")
            k.op(f"s_add_u32 s{sT1}, s{sT1}, {4*896}")
    k.op("s_mov_b32 exec_hi, -1")
    k.op("v_and_b32 v2, 3, v0")
    k.op("v_lshrrev_b32 v3, 5, v0")
    k.op("v_lshl_add_u32 v2, v3, 2, v2")
    k.op("v_bfe_u32 v3, v0, 2, 3")
    k.op(f"v_mul_u32_u24 v4, {8*PP_ROW}, v2")
    k.op("v_lshl_add_u32 v4, v3, 2, v4")
    k.op(f"s_lshl_b32 s{sT0}, s{sW}, 5")
    k.op(f"v_add_u32 v4, s{sT0}, v4")
    k.op(f"v_add_u32 v8, {PP_V}, v4")
    k.op("v_lshlrev_b32 v5, 4, v3")
    k.op(f"s_lshl_b32 s{sT0}, s{sW}, 7")
    k.op(f"v_add_u32 v5, s{sT0}, v5")
    k.op("v_lshlrev_b32 v6, 13, v3")
    k.op(f"s_lshl_b32 s{sT0}, s{sW}, 16")
    k.op(f"v_add_u32 v6, s{sT0}, v6")
    k.op("v_lshlrev_b32 v7, 4, v2")
    k.op("v_sub_u32 v6, v6, v7")
    k.op(f"s_lshl_b32 s{sT0}, s{sI}, 7")
    k.op(f"s_sub_u32 s{sT0}, {U_OFF + (2047 - 7) * 2}, s{sT0}")
    k.op(f"v_add_u32 v6, s{sT0}, v6")
    for it in range(7):
        k.vm(f"buffer_load_dwordx4 {vr(100 + 4*it, 4)}, v5, s[{rSK}:{rSK+3}], 0 offen offset:{it*512}", "sk")
    k.wait_all()
    k.op("s_barrier")
    KR, VR = 16, 28
    for it in range(7):
        coff = it * 128
        for j in range(11):
            k.lg(f"ds_read_b32 v{KR+j}, v4 offset:{PP_K + j*PP_ROW + coff}", "kr")
        k.wait(lg="kr")
        for j in range(8):
            k.lg(f"ds_read_b32 v{VR+j}, v8 offset:{j*PP_ROW + coff}", "vr")
        for j in range(11):
            k.op(f"v_lshlrev_b32 v{40+2*j}, 16, v{KR+j}")
            k.op(f"v_and_b32 v{41+2*j}, 0xffff0000, v{KR+j}")
        sk = 100 + 4 * it
        k.op(f"v_lshlrev_b32 v64, 16, v{sk}");   k.op(f"v_lshlrev_b32 v65, 16, v{sk+2}")
        k.op(f"v_and_b32 v66, 0xffff0000, v{sk}"); k.op(f"v_and_b32 v67, 0xffff0000, v{sk+2}")
        k.op(f"v_lshlrev_b32 v68, 16, v{sk+1}"); k.op(f"v_lshlrev_b32 v69, 16, v{sk+3}")
        k.op(f"v_and_b32 v70, 0xffff0000, v{sk+1}"); k.op(f"v_and_b32 v71, 0xffff0000, v{sk+3}")
        k.wait(lg="vr")
        for j in range(8):
            k.op(f"v_lshlrev_b32 v{72+2*j}, 16, v{VR+j}")
            k.op(f"v_and_b32 v{73+2*j}, 0xffff0000, v{VR+j}")
        for t in range(8):
            k.op(f"v_pk_mul_f32 {vr(130+2*t,2)}, {vr(40+2*(t+3),2)}, {vr(64,2)}")
        for j in range(1, 4):
            for t in range(8):
                o = 130 + 2 * t
                k.op(f"v_pk_fma_f32 {vr(o,2)}, {vr(40+2*(t+3-j),2)}, {vr(64+2*j,2)}, {vr(o,2)}")
        for t in range(8):
            o = 130 + 2 * t
            k.op(f"v_pk_mul_f32 {vr(o,2)}, {vr(o,2)}, {vr(72+2*t,2)}")
        O = 150 + 8 * (it % 2)
        for q in range(4):
            k.op(f"v_cvt_pk_bf16_f32 v{O+q}, v{130+2*(7-2*q)}, v{130+2*(6-2*q)}")
            k.op(f"v_cvt_pk_bf16_f32 v{O+4+q}, v{131+2*(7-2*q)}, v{131+2*(6-2*q)}")
        k.op(f"s_mov_b32 s{sT0}, {it * 64 * 4096}")
        k.op(f"s_mov_b32 s{sT1}, {it * 64 * 4096 + 4096}")
        k.vm(f"buffer_store_dwordx4 {vr(O,4)}, v6, s[{rWS}:{rWS+3}], s{sT0} offen sc1", "ust")
        k.vm(f"buffer_store_dwordx4 {vr(O+4,4)}, v6, s[{rWS}:{rWS+3}], s{sT1} offen sc1", "ust")
    k.wait_all()
    k.op("s_barrier")
    lab = k.newlabel("Lpsig")
    k.op(f"s_cmp_lg_u32 s{sW}, 0")
    k.op(f"s_cbranch_scc1 {lab}")
    k.op("v_mov_b32 v9, 0")
    spin_until(k, 9, 8, sPDBG, 1)
    k.label(lab)
    cnt_addr(k, 9, idx=UCNT)
    signal(k, 9, 8)

def kd(name, vgpr=512, acc=256):
    return f""".section .rodata,"a"
.p2align 6
.amdhsa_kernel {name}
  .amdhsa_next_free_vgpr {vgpr}
  .amdhsa_next_free_sgpr 102
  .amdhsa_accum_offset {acc}
  .amdhsa_group_segment_fixed_size 0
  .amdhsa_kernarg_size 104
  .amdhsa_user_sgpr_count 2
  .amdhsa_user_sgpr_kernarg_segment_ptr 1
  .amdhsa_system_sgpr_workgroup_id_x 1
  .amdhsa_float_denorm_mode_32 3
.end_amdhsa_kernel
"""

def build():
    k = K()
    prologue(k, 32768)
    start_main(k)
    gemm1_loop(k)
    gelu_phase(k)
    conv_phase(k)
    gemm2_phase(k)
    stamp_flush(k)
    k.op("s_endpgm")
    k.label("L_pre")
    k.vmq = []; k.lgq = []
    prepass(k)
    k.label("L_exit")
    name = NAME + "_kernel"
    header = open("cdna_kernels/" + NAME + ".s.ref").read().split("; Override launch")[0]
    txt = header + f"; @launch grid=(256,1,1) block=(256,1,1) lds={LDS_TOTAL}\n"
    txt += '.amdgcn_target "amdgcn-amd-amdhsa--gfx950"\n.text\n'
    txt += f".globl {name}\n.p2align 8\n.type {name},@function\n{name}:\n"
    txt += k.text() + "s_endpgm\n" + kd(name)
    return txt

if __name__ == "__main__":
    if len(sys.argv) > 2 and sys.argv[2].startswith("stamps"):
        STAMPS = True
        if "=" in sys.argv[2]: STAMPSET = sys.argv[2].split("=")[1].split(",")
    if len(sys.argv) > 3: OPT.update(sys.argv[3].split(","))
    txt = build()
    check_hazards(txt)
    open(sys.argv[1], "w").write(txt)
    if STAMPS: print("stamps:", stamped)
```

```python
import sys, struct
from asmlib import *

NAME = "recurrent_scan__ssm_conv_h3__geglu_ffn__prompt"
S, D, F = 2048, 448, 1792
OPT = set()

H_OFF = 0
U_OFF = H_OFF + 64 * 112 * 1024
Y_OFF = U_OFF + D * 4096
ST_OFF = Y_OFF + D * 4096
CNT_OFF = ST_OFF + S * 8
WS_USED = CNT_OFF + 32 * 128
HCNT, YCNT, UCNT = 0, 16, 24

sPQ, sPK, sPV, sPSK, sPSSM, sPD, sPBX, sPWG = 16, 18, 20, 22, 24, 26, 28, 30
sPWU, sPWD, sPOUT, sPDBG = 32, 34, 36, 38
sPWS = 40
rX, rW, rWS, rWD, rSSM, rOUT, rD = 44, 48, 52, 56, 60, 64, 68
rK, rV, rSK = 48, 56, 60
sT0, sT1, sT2, sT3 = 4, 5, 6, 7
sW, sI, sJ, sWSO, sWM0, sSLOT, sXCD, sONES, sMASK, sWGM = 80, 81, 82, 83, 84, 85, 86, 87, 88, 89
sTT, sDT, sWDS, sWDM, sCH = 90, 91, 92, 93, 94
sHST = 95
sU0, sU1, sU2, sU3 = 96, 97, 98, 99

SLOT_SZ = 34048
XOFF = 17024
XS = SLOT_SZ
XROW = 912
SLOT = [0, SLOT_SZ, 2 * SLOT_SZ, 3 * SLOT_SZ]
LDS_TOTAL = 163840
HC_STRIDE = 4160
HC_CH = 4 * HC_STRIDE
UR_CH = 4608
HC = SLOT[3]
UR = 4 * SLOT_SZ
XCH = UR + 2 * UR_CH
assert XCH + 16384 <= LDS_TOTAL
WDST = 0
WD_KS = 12
WD_WAVE = WD_KS * 2048
assert 4 * WD_WAVE <= SLOT[3]
YT = HC
RED = 0

vX = 16
vACC = 128

STAMPS = False
STAMP_OFF = 12 << 20
STAMPSET = None
POOL = [16, 18, 20, 22, 24, 26, 28, 30, 32, 34, 36, 72, 74, 8, 10, 12, 14]
stamped = []
def stamp(k, name=""):
    if not STAMPS: return
    if STAMPSET is not None and not any(name.startswith(p) for p in STAMPSET): return
    i = len(stamped)
    assert i < len(POOL)
    stamped.append(name)
    k.op(f"s_memtime s[{POOL[i]}:{POOL[i]+1}]")
def stamp_flush(k):
    if not STAMPS: return
    k.op("s_waitcnt vmcnt(0) lgkmcnt(0)")
    k.op("s_memrealtime s[42:43]")
    k.op("s_waitcnt lgkmcnt(0)")
    k.op("s_mov_b32 s101, s42")
    k.op("s_lshl_b32 s4, s2, 2")
    k.op(f"s_add_u32 s4, s4, s{sW}")
    k.op("s_lshl_b32 s4, s4, 7")
    k.op(f"s_add_u32 s4, s4, {STAMP_OFF}")
    k.op("v_mov_b32 v1, 0")
    k.op("s_mov_b64 exec, 1")
    for i in range(len(stamped)):
        k.op(f"v_mov_b32 v2, s{POOL[i]}")
        k.op(f"buffer_store_dword v2, v1, s[{rWS}:{rWS+3}], s4 offen offset:{4*i}")
    k.op("v_mov_b32 v2, s100")
    k.op(f"buffer_store_dword v2, v1, s[{rWS}:{rWS+3}], s4 offen offset:{4*30}")
    k.op("v_mov_b32 v2, s101")
    k.op(f"buffer_store_dword v2, v1, s[{rWS}:{rWS+3}], s4 offen offset:{4*31}")
    k.op("s_mov_b64 exec, -1")

def f2u(x):
    return struct.unpack("<I", struct.pack("<f", x))[0]

def srd(k, r, ptr, nbytes):
    k.op(f"s_mov_b32 s{r}, s{ptr}")
    k.op(f"s_and_b32 s{r+1}, s{ptr+1}, 0xffff")
    k.op(f"s_mov_b32 s{r+2}, {nbytes}")
    k.op(f"s_mov_b32 s{r+3}, 0x20000")

def emit(k, items):
    for it in items:
        if it[0] == "op": k.op(it[1])
        elif it[0] == "vm": k.vm(it[1], it[2])
        elif it[0] == "lg": k.lg(it[1], it[2])
        elif it[0] == "fn": it[1]()

def interleave(k, main, fill, every, start=0):
    fill = list(fill)
    for n, it in enumerate(main):
        emit(k, [it])
        if fill and n >= start and (n - start) % every == every - 1:
            emit(k, fill.pop(0))
    for g in fill: emit(k, g)

def cnt_addr(k, vreg, idx_sgpr=None, idx=0):
    if idx_sgpr is None:
        k.op(f"v_mov_b32 v{vreg}, {CNT_OFF + idx * 128}")
    else:
        k.op(f"s_lshl_b32 s{sT0}, s{idx_sgpr}, 7")
        k.op(f"s_add_u32 s{sT0}, s{sT0}, {CNT_OFF + idx * 128}")
        k.op(f"v_mov_b32 v{vreg}, s{sT0}")

def spin_until(k, vaddr, vtmp, base, target, cmp="ge"):
    lab, done = k.newlabel("Lspin"), k.newlabel("Lspun")
    k.op(f"s_mov_b32 s{sT1}, 0x40000")
    k.label(lab)
    k.op(f"global_load_dword v{vtmp}, v{vaddr}, s[{base}:{base+1}] sc1")
    k.op("s_waitcnt vmcnt(0)")
    k.op(f"v_readfirstlane_b32 s{sT2}, v{vtmp}")
    k.op(f"s_sub_u32 s{sT1}, s{sT1}, 1")
    k.op(f"s_cmp_ge_u32 s{sT2}, {target}")
    k.op(f"s_cbranch_scc1 {done}")
    k.op("s_sleep 1")
    k.op(f"s_cmp_lg_u32 s{sT1}, 0")
    k.op(f"s_cbranch_scc1 {lab}")
    k.label(done)
    k.vmq = []

def check_or_spin(k, vval, vaddr, base, target):
    done = k.newlabel("Lok")
    k.op(f"v_readfirstlane_b32 s{sT2}, v{vval}")
    k.op(f"s_cmp_ge_u32 s{sT2}, {target}")
    k.op(f"s_cbranch_scc1 {done}")
    q = list(k.vmq)
    spin_until(k, vaddr, vval, base, target)
    k.vmq = q
    k.label(done)

def signal(k, vaddr, vone):
    lab = k.newlabel("Lsig")
    k.op(f"s_cmp_lg_u32 s{sW}, 0")
    k.op(f"s_cbranch_scc1 {lab}")
    k.op(f"v_mov_b32 v{vone}, 1")
    k.op("s_mov_b64 exec, 1")
    k.op(f"global_atomic_add v{vaddr}, v{vone}, s[{sPWS}:{sPWS+1}] sc1")
    k.op("s_mov_b64 exec, -1")
    k.label(lab)

def prologue(k, codebytes):
    k.op("s_getpc_b64 s[12:13]")
    k.op("s_load_dwordx16 s[16:31], s[0:1], 0")
    k.op("s_load_dwordx8 s[32:39], s[0:1], 64")
    k.op("s_load_dwordx2 s[40:41], s[0:1], 96")
    k.op("v_lshlrev_b32 v2, 7, v0")
    k.op("v_mov_b32 v3, s13")
    k.op("v_add_co_u32 v2, vcc, s12, v2")
    k.op("v_lshrrev_b32 v1, 6, v0")
    k.op("v_and_b32 v0, 63, v0")
    k.op("v_addc_co_u32 v3, vcc, 0, v3, vcc")
    k.op("s_cmp_ge_u32 s2, 256")
    k.op(f"v_readfirstlane_b32 s{sW}, v1")
    k.op("s_cbranch_scc1 L_exit")
    if "nocodepf" not in OPT:
        k.vm("global_load_dword a250, v[2:3], off", "code")
        assert codebytes <= 32768 + 4096
    if STAMPS:
        k.op("s_memrealtime s[42:43]")
        k.op("s_waitcnt lgkmcnt(0)")
        k.op("s_mov_b32 s100, s42")
    k.op(f"s_and_b32 s{sXCD}, s2, 7")
    k.op(f"s_lshr_b32 s{sSLOT}, s2, 3")
    k.op(f"s_cmp_ge_u32 s{sSLOT}, 28")
    k.op("s_cbranch_scc1 L_pre")

def wdma(c, e):
    out = []
    if e % 4 == 0:
        out.append(("op", f"s_add_u32 m0, s{sWM0}, {SLOT[c % 4] + e * 1056}"))
    out.append(("op", f"s_add_u32 s{sT3}, s{sWSO}, {(64 * c + e) * 3584 - (e % 4) * 1056}"))
    out.append(("vm", f"buffer_load_dwordx4 v2, s[{rW}:{rW+3}], s{sT3} offen offset:{(e % 4) * 1056} lds", f"w{c}"))
    return out

def start_main(k):
    k.op(f"s_mul_i32 s{sT0}, s{sSLOT}, 37")
    k.op(f"s_lshr_b32 s{sT0}, s{sT0}, 8")
    k.op(f"s_mul_i32 s{sT1}, s{sT0}, 7")
    k.op(f"s_sub_u32 s{sDT}, s{sSLOT}, s{sT1}")
    k.op(f"s_lshr_b32 s{sT2}, s{sXCD}, 1")
    k.op(f"s_lshl_b32 s{sT2}, s{sT2}, 2")
    k.op(f"s_add_u32 s{sI}, s{sT2}, s{sT0}")
    k.op(f"s_and_b32 s{sT2}, s{sXCD}, 1")
    k.op(f"s_mul_i32 s{sT2}, s{sT2}, 7")
    k.op(f"s_add_u32 s{sJ}, s{sT2}, s{sDT}")
    k.op(f"s_lshl_b32 s{sTT}, s{sXCD}, 2")
    k.op(f"s_add_u32 s{sTT}, s{sTT}, s{sT0}")
    k.op(f"s_mul_i32 s{sWGM}, s{sXCD}, 28")
    k.op(f"s_add_u32 s{sWGM}, s{sWGM}, s{sSLOT}")
    k.op("v_lshlrev_b32 v1, 4, v0")
    k.op(f"s_lshl_b32 s{sT0}, s{sSLOT}, 6")
    k.op(f"v_add_u32 v6, s{sT0}, v0")
    k.op(f"s_mov_b32 s{sT1}, {(1 << 32) // 14 + 1}")
    k.op(f"v_mul_hi_u32 v7, v6, s{sT1}")
    k.op("v_mul_u32_u24 v8, 14, v7")
    k.op("v_sub_u32 v8, v6, v8")
    k.op("v_mul_u32_u24 v7, 3584, v7")
    k.op("v_lshl_add_u32 v7, v8, 7, v7")
    k.op(f"s_and_b32 s{sT1}, s{sXCD}, 1")
    k.op(f"s_mul_i32 s{sU0}, s{sT1}, 1792")
    k.op(f"s_lshl_b32 s{sT0}, s{sSLOT}, 7")
    k.op(f"s_lshl_b32 s{sT1}, s{sW}, 6")
    k.op(f"s_add_u32 s{sT0}, s{sT0}, s{sT1}")
    k.op(f"v_add_u32 v6, s{sT0}, v0")
    k.op("v_lshlrev_b32 v6, 7, v6")
    k.op(f"s_lshr_b32 s{sT1}, s{sXCD}, 1")
    k.op(f"s_mul_i32 s{sU1}, s{sT1}, {512*896}")
    k.op("v_lshrrev_b32 v10, 4, v0")
    k.op(f"v_mul_u32_u24 v2, {16*3584}, v10")
    k.op("v_and_b32 v11, 15, v0")
    k.op("v_lshl_add_u32 v2, v11, 4, v2")
    k.op("v_and_b32 v11, 1, v10")
    k.op(f"v_mul_u32_u24 v3, {XOFF}, v11")
    k.op("v_lshrrev_b32 v11, 5, v0")
    k.op("v_lshlrev_b32 v12, 3, v11")
    k.op("v_bfe_u32 v13, v0, 2, 2")
    k.op("v_add_u32 v12, v12, v13")
    k.op("v_mul_u32_u24 v12, 1056, v12")
    k.op("v_add_u32 v3, v3, v12")
    k.op("v_and_b32 v13, 3, v0")
    k.op("v_lshl_add_u32 v3, v13, 3, v3")
    k.op(f"v_add_u32 v14, {2*SLOT_SZ}, v3")
    k.op("v_and_b32 v13, 31, v0")
    k.op(f"s_lshl_b32 s{sT0}, s{sW}, 5")
    k.op(f"v_add_u32 v13, s{sT0}, v13")
    k.op(f"v_mul_u32_u24 v15, {XROW}, v13")
    k.op("v_lshl_add_u32 v15, v11, 4, v15")
    k.op(f"v_add_u32 v15, {XS}, v15")
    k.op(f"s_mov_b32 s{sONES}, 0x3f803f80")
    k.op(f"s_mov_b32 s{sMASK}, 0xffff0000")
    k.op("s_waitcnt lgkmcnt(0)")
    srd(k, rX, sPQ, S * D * 2)
    k.op(f"s_bitcmp1_b32 s{sW}, 0")
    k.op(f"s_cselect_b32 s{rW}, s{sPWU}, s{sPWG}")
    k.op(f"s_cselect_b32 s{rW+1}, s{sPWU+1}, s{sPWG+1}")
    k.op(f"s_and_b32 s{rW+1}, s{rW+1}, 0xffff")
    k.op(f"s_mov_b32 s{rW+2}, {D*F*2}")
    k.op(f"s_mov_b32 s{rW+3}, 0x20000")
    stamp(k, "start")
    if "nopf" not in OPT:
        l1, l2 = k.newlabel("Lpf"), k.newlabel("Lpf")
        k.op(f"s_cmp_ge_u32 s{sW}, 2")
        k.op(f"s_cbranch_scc1 {l1}")
        k.op(f"buffer_load_dword a250, v6, s[{rX}:{rX+3}], s{sU1} offen")
        k.op(f"s_branch {l2}")
        k.label(l1)
        k.op(f"buffer_load_dword a250, v7, s[{rW}:{rW+3}], s{sU0} offen")
        k.label(l2)
        k.vmq.append("pf")
    k.op(f"s_lshl_b32 s{sT0}, s{sI}, 2")
    k.op(f"s_add_u32 s{sT0}, s{sT0}, s{sW}")
    k.op(f"s_mul_i32 s{sT1}, s{sT0}, {32*896}")
    k.op(f"s_mul_i32 s{sT2}, s{sW}, {32*XROW}")
    k.op(f"s_add_u32 m0, s{sT2}, {XS}")
    k.op("s_mov_b32 exec_hi, 0x00ffffff")
    k.op(f"s_mov_b32 s{sT0}, 8")
    lx = k.newlabel("Lxd")
    k.label(lx)
    for n in range(4):
        k.op(f"buffer_load_dwordx4 v1, s[{rX}:{rX+3}], s{sT1} offen lds")
        k.op(f"s_add_u32 m0, m0, {XROW}")
        k.op(f"s_add_u32 s{sT1}, s{sT1}, 896")
    k.op(f"s_sub_u32 s{sT0}, s{sT0}, 1")
    k.op(f"s_cmp_lg_u32 s{sT0}, 0")
    k.op(f"s_cbranch_scc1 {lx}")
    for n in range(32): k.vmq.append("x")
    k.op("s_mov_b32 exec_hi, -1")
    k.op(f"s_lshr_b32 s{sT0}, s{sW}, 1")
    k.op(f"s_lshl_b32 s{sT0}, s{sT0}, 3")
    k.op(f"s_mul_i32 s{sWSO}, s{sT0}, 3584")
    k.op(f"s_lshl_b32 s{sT1}, s{sJ}, 8")
    k.op(f"s_add_u32 s{sWSO}, s{sWSO}, s{sT1}")
    k.op(f"s_mul_i32 s{sWM0}, s{sT0}, 1056")
    k.op(f"s_and_b32 s{sT1}, s{sW}, 1")
    k.op(f"s_mul_i32 s{sT1}, s{sT1}, {XOFF}")
    k.op(f"s_add_u32 s{sWM0}, s{sWM0}, s{sT1}")
    for e in range(8): emit(k, wdma(0, e))
    srd(k, rWS, sPWS, (16 << 20) if STAMPS else WS_USED)
    srd(k, rWD, sPWD, F * D * 2)
    srd(k, rSSM, sPSSM, D * S * 2)
    srd(k, rOUT, sPOUT, S * D * 2)
    srd(k, rD, sPD, D * 2)
    if "nopf" not in OPT:
        k.op(f"s_lshr_b32 s{sT0}, s{sW}, 1")
        k.op(f"s_mul_i32 s{sT0}, s{sT0}, {128*3584}")
        k.op(f"s_add_u32 s{sU2}, s{sU0}, s{sT0}")
        k.op(f"s_add_u32 s{sU2}, s{sU2}, {128*3584}")
        k.vm(f"buffer_load_dword a250, v7, s[{rW}:{rW+3}], s{sU2} offen", "pf")
        k.op(f"s_add_u32 s{sU2}, s{sU0}, {384*3584}")
        k.vm(f"buffer_load_dword a250, v7, s[{rW}:{rW+3}], s{sU2} offen", "pf")
    stamp(k, "a_issued")
    k.wait(vm="x")
    stamp(k, "a_xarr")
    for ks in range(28):
        if ks >= 14: k.wait(lg=f"x{ks-14}")
        k.lg(f"ds_read_b128 {vr(vX + 4 * ks, 4)}, v15 offset:{32 * ks}", f"x{ks}")
    k.wait(vm="w0", lg="x27")
    k.op("s_barrier")
    stamp(k, "a_xreg")
    main = [("op", f"v_mov_b32 v{6+a}, 0") for a in range(8)]
    for n in range(112):
        main.append(("op", f"v_dot2_f32_bf16 v{6 + n % 4}, v{vX+n}, s{sONES}, v{6 + n % 4}"))
        main.append(("op", f"v_dot2_f32_bf16 v{10 + n % 4}, v{vX+n}, v{vX+n}, v{10 + n % 4}"))
    fill = [wdma(c, e) for c in (1, 2, 3) for e in range(8)]
    interleave(k, main, fill, 9)
    k.op("s_nop 2")
    k.op("v_add_f32 v6, v6, v7"); k.op("v_add_f32 v8, v8, v9")
    k.op("v_add_f32 v10, v10, v11"); k.op("v_add_f32 v12, v12, v13")
    k.op("v_add_f32 v6, v6, v8"); k.op("v_add_f32 v10, v10, v12")
    k.op("v_mov_b32 v7, v6"); k.op("v_mov_b32 v11, v10")
    k.op("s_nop 1")
    k.op("v_permlane32_swap_b32 v6, v7"); k.op("v_permlane32_swap_b32 v10, v11")
    k.op("s_nop 1")
    k.op("v_add_f32 v6, v6, v7"); k.op("v_add_f32 v10, v10, v11")
    k.op(f"v_mul_f32 v6, {hex(f2u(1.0/448))}, v6")
    k.op(f"v_mul_f32 v10, {hex(f2u(1.0/448))}, v10")
    k.op("v_fma_f32 v10, -v6, v6, v10")
    k.op("v_max_f32 v10, 0, v10")
    k.op("v_cvt_pk_bf16_f32 v7, v6, v10")
    k.op("v_lshlrev_b32 v6, 16, v7")
    k.op(f"v_and_b32 v10, s{sMASK}, v7")
    k.op(f"v_add_f32 v10, {hex(f2u(1e-5))}, v10")
    k.op("v_cvt_pk_bf16_f32 v10, v10, v10")
    k.op("v_lshlrev_b32 v10, 16, v10")
    k.op("v_sqrt_f32 v10, v10")
    k.op("s_nop 0")
    k.op("v_cvt_pk_bf16_f32 v10, v10, v10")
    k.op("v_lshlrev_b32 v10, 16, v10")
    k.op("v_rcp_f32 v4, v10")
    k.op("s_nop 0")
    k.op("v_mul_f32 v5, v6, v4")
    k.op("v_sub_f32 v5, 0, v5")
    lab = k.newlabel("Lnost")
    k.op(f"s_cmp_lg_u32 s{sJ}, 0")
    k.op(f"s_cbranch_scc1 {lab}")
    k.op(f"s_lshl_b32 s{sT0}, s{sI}, 2")
    k.op(f"s_add_u32 s{sT0}, s{sT0}, s{sW}")
    k.op(f"s_lshl_b32 s{sT0}, s{sT0}, 8")
    k.op(f"s_add_u32 s{sT0}, s{sT0}, {ST_OFF}")
    k.op("v_lshlrev_b32 v6, 3, v0")
    k.op("s_mov_b32 exec_hi, 0")
    k.op(f"buffer_store_dwordx2 v[4:5], v6, s[{rWS}:{rWS+3}], s{sT0} offen sc1")
    k.op("s_mov_b32 exec_hi, -1")
    k.label(lab)

def norm(n, tp):
    t = 6 + 2 * tp
    return [("op", f"v_lshlrev_b32 v{t}, 16, v{vX+n}"),
            ("op", f"v_and_b32 v{t+1}, s{sMASK}, v{vX+n}"),
            ("op", f"v_fma_f32 v{t}, v{t}, v4, v5"),
            ("op", f"v_fma_f32 v{t+1}, v{t+1}, v4, v5"),
            ("op", f"v_cvt_pk_bf16_f32 v{vX+n}, v{t}, v{t+1}")]
def norm_step(ks):
    a = [norm(4 * ks + q, q) for q in range(4)]
    out = []
    for s in range(5):
        for q in range(4): out.append(a[q][s])
    return out

def hc_dma(q):
    rr, qq = divmod(q, 4)
    out = []
    if qq == 0:
        out.append(("op", f"s_add_u32 m0, s{sU0}, {rr * HC_STRIDE}"))
        out.append(("op", f"s_add_u32 s{sU2}, s{sU1}, {rr * 2}"))
    out.append(("vm", f"buffer_load_dwordx4 v1, s[{rSSM}:{rSSM+3}], s{sU2} offen offset:{qq*1024} lds", "hc"))
    return out

def gemm1_loop(k):
    emit(k, norm_step(0))
    k.op(f"s_lshr_b32 s{sT0}, s{sW}, 1")
    k.op(f"s_lshl_b32 s{sCH}, s{sWGM}, 1")
    k.op(f"s_add_u32 s{sCH}, s{sCH}, s{sT0}")
    k.op(f"s_and_b32 s{sT1}, s{sW}, 1")
    k.op(f"s_lshl_b32 s{sT1}, s{sT1}, 1")
    k.op(f"s_mul_i32 s{sU0}, s{sT0}, {HC_CH}")
    k.op(f"s_mul_i32 s{sT3}, s{sT1}, {HC_STRIDE}")
    k.op(f"s_add_u32 s{sU0}, s{sU0}, s{sT3}")
    k.op(f"s_add_u32 s{sU0}, s{sU0}, {HC + 32}")
    k.op(f"s_lshl_b32 s{sU1}, s{sCH}, 12")
    k.op(f"s_lshl_b32 s{sT1}, s{sT1}, 1")
    k.op(f"s_add_u32 s{sU1}, s{sU1}, s{sT1}")
    k.op(f"s_add_u32 s{sU1}, s{sU1}, 2")
    stamp(k, "a_stats")
    NF = 8; DIST = 7; NM = 224
    def rd(n):
        ks, mt = divmod(n, 8)
        c, kk = divmod(ks, 4)
        sl = c % 4
        base = "v3" if sl < 2 else "v14"
        off = (SLOT_SZ if sl % 2 else 0) + kk * 256 + mt * 32
        f = 4 * (n % NF)
        return [("lg", f"ds_read_b64_tr_b16 {ar(f, 2)}, {base} offset:{off}", f"f{n}"),
                ("lg", f"ds_read_b64_tr_b16 {ar(f + 2, 2)}, {base} offset:{off + 4 * 1056}", f"f{n}")]
    for n in range(DIST): emit(k, rd(n))
    extra = {}
    def wd_pf(part):
        def fn():
            k.op(f"s_lshl_b32 s{sT0}, s{sSLOT}, 2")
            k.op(f"s_add_u32 s{sT0}, s{sT0}, s{sW}")
            k.op(f"s_mul_i32 s{sT0}, s{sT0}, {112*128}")
            if part == 1: k.op(f"s_add_u32 s{sT0}, s{sT0}, {48*128}")
            k.op("v_lshlrev_b32 v15, 7, v0")
            k.vm(f"buffer_load_dword a250, v15, s[{rWD}:{rWD+3}], s{sT0} offen", "pf")
        return [("fn", fn)]
    if "nopf" not in OPT:
        extra[5] = wd_pf(0); extra[9] = wd_pf(1)
    def ld_init():
        k.op("v_mov_b32 v15, 0")
        k.vm(f"global_load_dword a40, v15, s[{sPDBG}:{sPDBG+1}] sc1", "init")
    extra[13] = [("fn", ld_init)]
    def chk_init():
        k.wait(vm="init")
        k.op("v_accvgpr_read_b32 v0, a40") if False else None
    for n in range(NM):
        ks, mt = divmod(n, 8)
        c, kk = divmod(ks, 4)
        if n % 32 == 0: stamp(k, f"g_c{n//32}")
        if n % 4 == 0:
            k.wait(lg=[f"f{n+i}" for i in range(4)])
        f = 4 * (n % NF)
        acc = vr(vACC + 16 * mt, 16)
        cin = "0" if ks == 0 else acc
        k.op(f"v_mfma_f32_32x32x16_bf16 {acc}, {ar(f, 4)}, {vr(vX + 4 * ks, 4)}, {cin}")
        nn = n + DIST
        if nn < NM:
            if nn % 32 == 0:
                k.wait(vm=f"w{nn // 32}")
                k.op("s_barrier")
            emit(k, rd(nn))
        if ks + 1 < 28:
            st = norm_step(ks + 1)
            cut = [0, 3, 6, 9, 12, 15, 18, 20, 20]
            emit(k, st[cut[mt]: cut[mt + 1]])
        if mt in (6, 7):
            e = 2 * kk + (mt - 6)
            if 2 <= c and c + 2 < 7: emit(k, wdma(c + 2, e))
            if c in (5, 6) and mt == 7:
                q = (c - 5) * 4 + kk
                emit(k, hc_dma(q))
        if mt == 7 and ks in extra: emit(k, extra[ks])
    stamp(k, "g_end")

def g2_setup(k):
    k.op("v_lshrrev_b32 v3, 3, v0")
    k.op("v_mul_u32_u24 v2, 896, v3")
    k.op("v_bfe_u32 v3, v0, 4, 1")
    k.op("v_lshlrev_b32 v3, 2, v3")
    k.op("v_and_b32 v4, 7, v0")
    k.op("v_xor_b32 v3, v3, v4")
    k.op("v_lshl_add_u32 v2, v3, 4, v2")
    k.op(f"s_mul_i32 s{sWDS}, s{sW}, {16*28*896}")
    k.op(f"s_lshl_b32 s{sT0}, s{sDT}, 7")
    k.op(f"s_add_u32 s{sWDS}, s{sWDS}, s{sT0}")
    k.op(f"s_mul_i32 s{sWDM}, s{sW}, {WD_WAVE}")
    k.op(f"s_add_u32 s{sWDM}, s{sWDM}, {WDST}")
    k.op("v_lshrrev_b32 v5, 5, v0")
    k.op("v_bfe_u32 v6, v0, 2, 2")
    k.op("v_lshl_add_u32 v5, v5, 2, v6")
    k.op("v_lshlrev_b32 v5, 7, v5")
    k.op("v_bfe_u32 v7, v0, 4, 1")
    k.op("v_lshl_add_u32 v5, v7, 5, v5")
    k.op("v_and_b32 v7, 3, v0")
    k.op("v_lshl_add_u32 v5, v7, 3, v5")
    k.op(f"v_add_u32 v5, s{sWDM}, v5")
    k.op("v_bfe_u32 v6, v0, 3, 1")
    k.op("v_lshlrev_b32 v6, 6, v6")
    k.op("v_add_u32 v3, v5, v6")
    k.op("v_xor_b32 v6, 64, v6")
    k.op("v_add_u32 v4, v5, v6")

def wd_dma_groups(ks0, ks1, tag):
    out = []
    q = 0
    for ks in range(ks0, ks1):
        for hh in range(2):
            g = []
            if q % 4 == 0:
                g.append(("op", f"s_add_u32 m0, s{sWDM}, {(q // 4) * 4096}"))
            g.append(("op", f"s_add_u32 s{sT3}, s{sWDS}, {(16 * ks + 8 * hh) * 896 - (q % 4) * 1024}"))
            g.append(("vm", f"buffer_load_dwordx4 v2, s[{rWD}:{rWD+3}], s{sT3} offen offset:{(q % 4) * 1024} lds", tag))
            out.append(g)
            q += 1
    return out

def wd_read_items(ks0, ks1):
    out = []
    for ks in range(ks0, ks1):
        for dt2 in range(2):
            for t in range(2):
                a = 8 * ks + 4 * dt2 + 2 * t
                out.append(("lg", f"ds_read_b64_tr_b16 {ar(a,2)}, v{3+dt2} offset:{(ks-ks0)*2048 + t*1024}", f"wr{ks}_{dt2}_{t}"))
    return out
def emit_lg_limited(k, items):
    for it in items:
        if it[0] == "lg" and len(k.lgq) >= 12: k.wait(lg=k.lgq[5])
        emit(k, [it])

def gelu_phase(k):
    k.wait(lg=k.lgq[-1]) if k.lgq else None
    k.op("s_barrier")
    g2_setup(k)
    vC, vONE = 16, 18
    C1 = -2.0 * 0.7978845608028654 * 1.4426950408889634
    C2 = C1 * 0.044715
    k.op(f"v_mov_b32 v{vC}, {hex(f2u(C1))}")
    k.op(f"v_mov_b32 v{vC+1}, {hex(f2u(C2))}")
    k.op(f"v_mov_b32 v{vONE}, 1.0")
    k.op(f"v_mov_b32 v{vONE+1}, 1.0")
    k.op(f"s_lshl_b32 s{sT0}, s{sI}, 2")
    k.op(f"s_add_u32 s{sT0}, s{sT0}, s{sW}")
    k.op(f"s_mul_i32 s{sHST}, s{sT0}, {112*1024}")
    k.op(f"s_lshl_b32 s{sT1}, s{sJ}, 13")
    k.op(f"s_add_u32 s{sHST}, s{sHST}, s{sT1}")
    k.wait(vm="init")
    k.op("v_accvgpr_read_b32 v8, a40")
    k.op("v_mov_b32 v9, 0")
    k.op("s_nop 0")
    check_or_spin(k, 8, 9, sPDBG, 1)
    cnt_addr(k, 9, idx=UCNT)
    k.vm(f"global_load_dword v8, v9, s[{sPWS}:{sPWS+1}] sc1", "ucnt")
    k.op("v_lshrrev_b32 v10, 4, v0")
    k.op("v_and_b32 v11, 15, v0")
    k.op("v_add_u32 v12, v10, v11")
    k.op("v_subrev_u32 v12, 15, v12")
    k.op("v_lshlrev_b32 v12, 1, v12")
    k.op(f"s_lshl_b32 s{sT1}, s{sCH}, 12")
    k.op("v_cmp_gt_i32 vcc, 0, v12")
    k.op("v_mov_b32 v13, 0x7fffffff")
    k.op("s_nop 0")
    k.op("v_cndmask_b32 v12, v12, v13, vcc")
    k.vm(f"buffer_load_ushort v14, v12, s[{rSSM}:{rSSM+3}], s{sT1} offen", "hf")
    k.op(f"s_lshl_b32 s{sT1}, s{sCH}, 1")
    k.op("v_mov_b32 v13, 0")
    k.vm(f"buffer_load_ushort v15, v13, s[{rD}:{rD+3}], s{sT1} offen", "dv")
    k.op(f"v_mul_u32_u24 v10, {HC_STRIDE}, v10")
    k.op("v_lshl_add_u32 v10, v11, 1, v10")
    k.op(f"s_lshr_b32 s{sT0}, s{sW}, 1")
    k.op(f"s_mul_i32 s{sT2}, s{sT0}, {HC_CH}")
    k.op(f"s_add_u32 s{sT2}, s{sT2}, {HC}")
    k.op(f"v_add_u32 v10, s{sT2}, v10")
    k.op(f"s_mul_i32 s{sT2}, s{sT0}, {UR_CH}")
    k.op(f"s_add_u32 s{sT2}, s{sT2}, {UR + 4096}")
    k.op(f"v_add_u32 v11, s{sT2}, v1")
    k.op("v_mov_b32 v20, 0"); k.op("v_mov_b32 v21, 0"); k.op("v_mov_b32 v22, 0"); k.op("v_mov_b32 v23, 0")
    k.op("s_mov_b32 exec_hi, 0")
    k.lg("ds_write_b128 v11, v[20:23]", "z")
    k.op("s_mov_b32 exec_hi, -1")
    wd0 = wd_dma_groups(0, WD_KS, "wd0")
    def ur_dma():
        k.wait(vm="ucnt")
        check_or_spin(k, 8, 9, sPWS, 32)
        k.op(f"s_lshr_b32 s{sT0}, s{sW}, 1")
        k.op(f"s_and_b32 s{sT1}, s{sW}, 1")
        k.op(f"s_lshl_b32 s{sT1}, s{sT1}, 11")
        k.op(f"s_mul_i32 s{sT2}, s{sT0}, {UR_CH}")
        k.op(f"s_add_u32 s{sT2}, s{sT2}, s{sT1}")
        k.op(f"s_add_u32 m0, s{sT2}, {UR}")
        k.op(f"s_lshl_b32 s{sT3}, s{sCH}, 12")
        k.op(f"s_add_u32 s{sT3}, s{sT3}, s{sT1}")
        k.op(f"s_add_u32 s{sT3}, s{sT3}, {U_OFF}")
        k.vm(f"buffer_load_dwordx4 v1, s[{rWS}:{rWS+3}], s{sT3} offen sc1 lds", "ur")
        k.vm(f"buffer_load_dwordx4 v1, s[{rWS}:{rWS+3}], s{sT3} offen offset:1024 sc1 lds", "ur")
        k.wait(vm="hf")
        k.lg("ds_write_b16 v10, v14", "z")
    for mt in range(8):
        G = vACC + 16 * mt; U = G + 8
        T = 24 + (mt % 2) * 24
        tp = lambda p: T + 2 * p
        gu = lambda p: T + 8 + 2 * p
        O = T + 16
        P = range(4)
        m = []
        for p in P: m.append(("op", f"v_pk_mul_f32 {vr(tp(p),2)}, {vr(G+2*p,2)}, {vr(G+2*p,2)}"))
        for p in P: m.append(("op", f"v_pk_fma_f32 {vr(tp(p),2)}, {vr(tp(p),2)}, {vr(vC,2)}, {vr(vC,2)} op_sel:[0,1,0] op_sel_hi:[1,1,0]"))
        for p in P: m.append(("op", f"v_pk_mul_f32 {vr(tp(p),2)}, {vr(tp(p),2)}, {vr(G+2*p,2)}"))
        for p in P:
            m.append(("op", f"v_exp_f32 v{tp(p)}, v{tp(p)}")); m.append(("op", f"v_exp_f32 v{tp(p)+1}, v{tp(p)+1}"))
        for p in P: m.append(("op", f"v_pk_mul_f32 {vr(gu(p),2)}, {vr(G+2*p,2)}, {vr(U+2*p,2)}"))
        for p in P: m.append(("op", f"v_pk_add_f32 {vr(tp(p),2)}, {vr(tp(p),2)}, {vr(vONE,2)}"))
        for p in P:
            m.append(("op", f"v_rcp_f32 v{tp(p)}, v{tp(p)}")); m.append(("op", f"v_rcp_f32 v{tp(p)+1}, v{tp(p)+1}"))
        m.append(("op", "s_nop 0"))
        for p in P: m.append(("op", f"v_pk_mul_f32 {vr(gu(p),2)}, {vr(gu(p),2)}, {vr(tp(p),2)}"))
        for p in P: m.append(("op", f"v_cvt_pk_bf16_f32 v{O+p}, v{gu(p)}, v{gu(p)+1}"))
        fill = [wd0.pop(0) for _ in range(3)]
        pos = {12: 0, 24: 1, 36: 2}
        for n, it in enumerate(m):
            emit(k, [it])
            if n in pos: emit(k, fill[pos[n]])
        if mt % 4 == 0 and mt > 0:
            k.op(f"s_add_u32 s{sHST}, s{sHST}, 4096")
        k.vm(f"buffer_store_dwordx4 {vr(O,4)}, v1, s[{rWS}:{rWS+3}], s{sHST} offen offset:{(mt%4)*1024} sc1", "hst")
        if mt == 3: ur_dma()
    assert not wd0
    stamp(k, "e_gelu")
    k.wait(vm="wd0")
    emit_lg_limited(k, wd_read_items(0, WD_KS))
    k.wait_all()
    k.op("s_barrier")
    cnt_addr(k, 9, idx_sgpr=sI, idx=HCNT)
    signal(k, 9, 8)
    stamp(k, "e_sig")

def conv_phase(k):
    k.op("v_lshlrev_b32 v8, 16, v15")
    k.op(f"s_lshr_b32 s{sT0}, s{sW}, 1")
    k.op(f"s_mul_i32 s{sT2}, s{sT0}, {HC_CH}")
    k.op(f"s_add_u32 s{sT2}, s{sT2}, {HC}")
    k.op("v_bfe_u32 v5, v0, 2, 2")
    k.op(f"v_mul_u32_u24 v14, {HC_STRIDE}, v5")
    k.op("v_and_b32 v6, 3, v0")
    k.op("v_lshl_add_u32 v14, v6, 3, v14")
    k.op("v_lshrrev_b32 v6, 4, v0")
    k.op("v_lshl_add_u32 v14, v6, 4, v14")
    k.op(f"s_and_b32 s{sT1}, s{sW}, 1")
    k.op(f"s_lshl_b32 s{sT1}, s{sT1}, 8")
    k.op(f"s_add_u32 s{sT2}, s{sT2}, s{sT1}")
    k.op(f"v_add_u32 v14, s{sT2}, v14")
    k.op("v_and_b32 v7, 15, v0")
    k.op("v_lshlrev_b32 v7, 5, v7")
    k.op("v_lshlrev_b32 v5, 4, v6")
    k.op("v_sub_u32 v15, v5, v7")
    k.op(f"s_mul_i32 s{sT2}, s{sT0}, {UR_CH}")
    k.op(f"s_add_u32 s{sT2}, s{sT2}, {UR + 4064 - 3584}")
    k.op(f"s_add_u32 s{sT3}, s{sT2}, s{sT1}")
    k.op(f"v_add_u32 v15, s{sT3}, v15")
    k.op("v_lshlrev_b32 v5, 3, v6")
    k.op("v_add_u32 v7, v7, v5")
    k.op(f"s_add_u32 s{sT2}, s{sT2}, {4088 - 4064}")
    k.op(f"v_sub_u32 v13, s{sT2}, v7")
    FB = [16, 48]; GB = 80; ACC = 96
    def rdF(sub, J):
        b = FB[sub % 2] + 4 * J
        off = 64 * (8 * J + sub)
        return [(f"ds_read_b64_tr_b16 {vr(b,2)}, v14 offset:{off}", f"F{sub}_{J}"),
                (f"ds_read_b64_tr_b16 {vr(b+2,2)}, v14 offset:{off+8}", f"F{sub}_{J}")]
    def rdG(sub, T):
        idx = sub * 8 + (7 - T)
        b = GB + 4 * (idx % 4)
        return (f"ds_read_b128 {vr(b,4)}, v15 offset:{512*(7-T) + 64*sub}", f"G{sub}_{T}")
    seq = [(sub, T, J) for sub in range(4) for T in range(7, -1, -1) for J in range(0, 8 - T)]
    for J in range(4):
        for t in rdF(0, J): k.lg(*t)
    for T in (7, 6, 5): k.lg(*rdG(0, T))
    pendF = [(0, J) for J in range(4, 8)] + [(s, J) for s in range(1, 4) for J in range(8)]
    gq = [(s, T) for s in range(4) for T in range(7, -1, -1)][3:]
    wd1 = wd_dma_groups(WD_KS, 2 * WD_KS, "wd1")
    first = set(); lastG = None
    for n, (sub, T, J) in enumerate(seq):
        k.wait(lg=[f"F{sub}_{J}", f"G{sub}_{T}"])
        tile = T + J
        a = vr(ACC + 4 * tile, 4)
        cin = a if tile in first else "0"
        first.add(tile)
        gidx = sub * 8 + (7 - T)
        k.op(f"v_mfma_f32_16x16x32_bf16 {a}, {vr(FB[sub%2]+4*J,4)}, {vr(GB+4*(gidx%4),4)}, {cin}")
        if (sub, T) != lastG:
            lastG = (sub, T)
            if gq: k.lg(*rdG(*gq.pop(0)))
        elif pendF and len(k.lgq) <= 12 and (pendF[0][0] == sub or pendF[0][0] == sub + 1):
            for t in rdF(*pendF.pop(0)): k.lg(*t)
        elif wd1 and n % 5 == 4:
            emit(k, wd1.pop(0))
    assert not pendF and not gq
    for g in wd1: emit(k, g)
    stamp(k, "c_mfma")
    k.op(f"s_lshl_b32 s{sT0}, s{sW}, 12")
    k.op(f"s_add_u32 s{sT0}, s{sT0}, {XCH}")
    k.op(f"v_add_u32 v5, s{sT0}, v1")
    k.op(f"s_xor_b32 s{sT1}, s{sW}, 1")
    k.op(f"s_lshl_b32 s{sT1}, s{sT1}, 12")
    k.op(f"s_add_u32 s{sT1}, s{sT1}, {XCH}")
    k.op(f"v_add_u32 v6, s{sT1}, v1")
    k.op(f"s_lshl_b32 s{sT2}, s{sCH}, 12")
    k.op(f"s_add_u32 s{sT2}, s{sT2}, {Y_OFF}")
    lo, le = k.newlabel("Lcodd"), k.newlabel("Lcend")
    assert not k.lgq
    def finish(keep, send):
        for i in range(4):
            k.op(f"ds_write_b128 v5, {vr(ACC + 4*(send+i), 4)} offset:{1024*i}")
        for i in range(4):
            k.op(f"ds_read_b64 {vr(40+2*i,2)}, v13 offset:{512*(7-(keep+i))}")
        k.op("s_waitcnt lgkmcnt(0)")
        k.op("s_barrier")
        for i in range(4):
            k.op(f"ds_read_b128 {vr(16+4*i,4)}, v6 offset:{1024*i}")
        k.op("s_waitcnt lgkmcnt(0)")
        for i in range(4):
            A = ACC + 4 * (keep + i)
            k.op(f"v_pk_add_f32 {vr(A,2)}, {vr(A,2)}, {vr(16+4*i,2)}")
            k.op(f"v_pk_add_f32 {vr(A+2,2)}, {vr(A+2,2)}, {vr(18+4*i,2)}")
            U = 40 + 2 * i
            k.op(f"v_and_b32 v50, s{sMASK}, v{U+1}")
            k.op(f"v_lshlrev_b32 v51, 16, v{U+1}")
            k.op(f"v_and_b32 v52, s{sMASK}, v{U}")
            k.op(f"v_lshlrev_b32 v53, 16, v{U}")
            for r in range(4):
                k.op(f"v_fmac_f32 v{A+r}, v{50+r}, v8")
            k.op(f"v_cvt_pk_bf16_f32 v{56+2*i}, v{A}, v{A+1}")
            k.op(f"v_cvt_pk_bf16_f32 v{57+2*i}, v{A+2}, v{A+3}")
        for i in range(4):
            k.op(f"buffer_store_dwordx2 {vr(56+2*i,2)}, v7, s[{rWS}:{rWS+3}], s{sT2} offen offset:{512*(keep+i)} sc1")
    k.op(f"s_bitcmp1_b32 s{sW}, 0")
    k.op(f"s_cbranch_scc1 {lo}")
    finish(0, 4)
    k.op(f"s_branch {le}")
    k.label(lo)
    finish(4, 0)
    k.label(le)
    for i in range(4): k.vmq.append("yst")
    k.wait(vm="wd1")
    emit_lg_limited(k, wd_read_items(WD_KS, 2 * WD_KS))
    k.wait_all()
    k.op("s_barrier")
    k.op(f"s_lshr_b32 s{sU0}, s{sWGM}, 5")
    cnt_addr(k, 9, idx_sgpr=sU0, idx=YCNT)
    signal(k, 9, 8)
    stamp(k, "c_sig")

vH = 16; NHS = 21; vA2 = 192
def g2_hload(k, ks):
    for e in range(2):
        b = vH + 8 * (ks % NHS) + 4 * e
        k.vm(f"buffer_load_dwordx4 {vr(b,4)}, v1, s[{rWS}:{rWS+3}], s{76+e} offen offset:{(ks%4)*1024} sc1", f"h{ks}")

def gemm2_phase(k):
    for g in wd_dma_groups(2 * WD_KS, 28, "wd2"): emit(k, g)
    k.op(f"s_lshr_b32 s{sU0}, s{sTT}, 1")
    cnt_addr(k, 9, idx_sgpr=sU0, idx=HCNT)
    lab = k.newlabel("Lhw")
    k.op(f"s_cmp_lg_u32 s{sW}, 0")
    k.op(f"s_cbranch_scc1 {lab}")
    q = list(k.vmq)
    spin_until(k, 9, 8, sPWS, 14)
    k.vmq = q
    k.label(lab)
    k.op("s_barrier")
    stamp(k, "d_hrdy")
    k.op(f"s_lshl_b32 s{sT0}, s{sTT}, 1")
    k.op(f"s_mul_i32 s{sT0}, s{sT0}, 112")
    k.op(f"s_mul_i32 s{sT1}, s{sW}, 28")
    k.op(f"s_add_u32 s{sT0}, s{sT0}, s{sT1}")
    k.op(f"s_lshl_b32 s76, s{sT0}, 10")
    k.op(f"s_add_u32 s77, s76, {112*1024}")
    for ks in range(NHS):
        if ks % 4 == 0 and ks > 0:
            k.op("s_add_u32 s76, s76, 4096"); k.op("s_add_u32 s77, s77, 4096")
        g2_hload(k, ks)
    k.op("v_lshrrev_b32 v5, 3, v0")
    k.op(f"s_lshl_b32 s{sT0}, s{sW}, 3")
    k.op(f"v_add_u32 v5, s{sT0}, v5")
    k.op("v_and_b32 v6, 7, v0")
    k.op("v_mul_u32_u24 v7, 896, v5")
    k.op("v_lshl_add_u32 v7, v6, 4, v7")
    k.op(f"s_mul_i32 s78, s{sTT}, {64*896}")
    k.op(f"s_lshl_b32 s{sT0}, s{sDT}, 7")
    k.op(f"s_add_u32 s78, s78, s{sT0}")
    k.op(f"s_add_u32 s79, s78, {32*896}")
    cnt_addr(k, 9, idx_sgpr=sDT, idx=YCNT)
    def epi_loads():
        k.vm(f"buffer_load_dwordx4 {ar(224,4)}, v7, s[{rX}:{rX+3}], s78 offen", "ex")
        k.vm(f"buffer_load_dwordx4 {ar(228,4)}, v7, s[{rX}:{rX+3}], s79 offen", "ex")
        k.op("v_lshlrev_b32 v8, 3, v5")
        k.op(f"s_lshl_b32 s{sT0}, s{sTT}, 9")
        k.op(f"s_add_u32 s{sT0}, s{sT0}, {ST_OFF}")
        k.vm(f"buffer_load_dwordx2 {ar(232,2)}, v8, s[{rWS}:{rWS+3}], s{sT0} offen sc1", "ex")
        k.vm(f"buffer_load_dwordx2 {ar(234,2)}, v8, s[{rWS}:{rWS+3}], s{sT0} offen offset:256 sc1", "ex")
        k.vm(f"global_load_dword v10, v9, s[{sPWS}:{sPWS+1}] sc1", "ycnt")
    def y_loads():
        k.wait(vm="ycnt")
        check_or_spin(k, 10, 9, sPWS, 32)
        k.op("v_lshrrev_b32 v8, 3, v0")
        k.op("v_lshlrev_b32 v8, 12, v8")
        k.op("v_lshl_add_u32 v8, v6, 4, v8")
        k.op(f"s_lshl_b32 s{sT0}, s{sDT}, 18")
        k.op(f"s_lshl_b32 s{sT1}, s{sW}, 16")
        k.op(f"s_add_u32 s{sT0}, s{sT0}, s{sT1}")
        k.op(f"s_lshl_b32 s{sT1}, s{sTT}, 7")
        k.op(f"s_add_u32 s{sT0}, s{sT0}, s{sT1}")
        k.op(f"s_add_u32 s{sT0}, s{sT0}, {Y_OFF}")
        k.op(f"s_mul_i32 s{sT1}, s{sW}, 2080")
        k.op(f"s_add_u32 m0, s{sT1}, {YT}")
        k.op(f"s_add_u32 s{sT2}, s{sT0}, {8*4096 - 1040}")
        k.vm(f"buffer_load_dwordx4 v8, s[{rWS}:{rWS+3}], s{sT0} offen sc1 lds", "ey")
        k.vm(f"buffer_load_dwordx4 v8, s[{rWS}:{rWS+3}], s{sT2} offen offset:1040 sc1 lds", "ey")
    wr2 = wd_read_items(2 * WD_KS, 28)
    first = set()
    for ks in range(28):
        if ks == 2 * WD_KS: k.wait(lg=k.lgq[-1]) if k.lgq else None
        k.wait(vm=f"h{ks}")
        for dt2 in range(2):
            for e in range(2):
                t = 2 * dt2 + e
                acc = vr(vA2 + 16 * t, 16)
                cin = acc if t in first else "0"
                first.add(t)
                hb = vH + 8 * (ks % NHS) + 4 * e
                k.op(f"v_mfma_f32_32x32x16_bf16 {acc}, {ar(8*ks+4*dt2,4)}, {vr(hb,4)}, {cin}")
        if ks + NHS < 28:
            kn = ks + NHS
            if kn % 4 == 0:
                k.op("s_add_u32 s76, s76, 4096"); k.op("s_add_u32 s77, s77, 4096")
            g2_hload(k, kn)
        if ks == 7: epi_loads()
        if ks == 8: k.wait(vm="wd2")
        if 8 <= ks < 12: emit_lg_limited(k, wr2[4 * (ks - 8): 4 * (ks - 8) + 4] + wr2[16 + 0:16]) ;
        if ks == 16: y_loads()
    stamp(k, "d_loop")
    k.wait_all()
    k.op("s_barrier")
    RROW = 272; RW = 64 * RROW
    k.op("v_and_b32 v8, 31, v0")
    k.op(f"v_mul_u32_u24 v8, {RROW}, v8")
    k.op("v_lshrrev_b32 v9, 5, v0")
    k.op("v_lshl_add_u32 v8, v9, 4, v8")
    k.op(f"s_mul_i32 s{sT0}, s{sW}, {RW}")
    k.op(f"s_add_u32 s{sT0}, s{sT0}, {RED}")
    k.op(f"v_add_u32 v8, s{sT0}, v8")
    k.op("s_nop 4")
    for dt2 in range(2):
        for e in range(2):
            for g in range(4):
                if len(k.lgq) >= 12: k.wait(lg=k.lgq[5])
                A = vA2 + 16 * (2 * dt2 + e) + 4 * g
                k.lg(f"ds_write_b128 v8, {vr(A,4)} offset:{e*32*RROW + dt2*128 + g*32}", f"rw{dt2}{e}{g}")
    k.op(f"v_mov_b32 v10, {hex(f2u(-1.4426950408889634))}")
    k.op("v_mov_b32 v11, 1.0")
    k.wait_all()
    k.op("s_barrier")
    k.op(f"v_mul_u32_u24 v8, {RROW}, v5")
    k.op("v_lshl_add_u32 v8, v6, 5, v8")
    k.op(f"v_add_u32 v8, {RED}, v8")
    k.op("v_mul_u32_u24 v9, 1040, v6")
    k.op("v_lshl_add_u32 v9, v5, 1, v9")
    k.op(f"v_add_u32 v9, {YT}, v9")
    for ps in range(2):
        B = 16 + 64 * ps
        for w in range(4):
            for hh in range(2):
                if len(k.lgq) >= 12: k.wait(lg=k.lgq[5])
                k.lg(f"ds_read_b128 {vr(B + 8*w + 4*hh, 4)}, v8 offset:{w*RW + ps*32*RROW + hh*16}", f"p{ps}_{w}{hh}")
        for e in range(8): k.op(f"v_mov_b32 v{B+32+e}, 0")
        for e in range(8):
            if len(k.lgq) >= 12: k.wait(lg=k.lgq[5])
            k.lg(f"ds_read_u16_d16_hi v{B+32+e}, v9 offset:{e*128 + ps*64}", f"y{ps}_{e}")
    for ps in range(2):
        B = 16 + 64 * ps
        Yr = B + 32; T = B + 40
        k.wait(lg=[f"p{ps}_31", f"y{ps}_7"])
        for q in range(4):
            k.op(f"v_pk_add_f32 {vr(B+2*q,2)}, {vr(B+2*q,2)}, {vr(B+8+2*q,2)}")
            k.op(f"v_pk_add_f32 {vr(B+16+2*q,2)}, {vr(B+16+2*q,2)}, {vr(B+24+2*q,2)}")
        for q in range(4):
            k.op(f"v_pk_add_f32 {vr(B+2*q,2)}, {vr(B+2*q,2)}, {vr(B+16+2*q,2)}")
        for q in range(4):
            k.op(f"v_accvgpr_read_b32 v{T+q}, a{224+4*ps+q}")
        k.op(f"v_accvgpr_read_b32 v{T+4}, a{232+2*ps}")
        k.op(f"v_accvgpr_read_b32 v{T+5}, a{233+2*ps}")
        X = B + 8
        for q in range(4):
            k.op(f"v_lshlrev_b32 v{X+2*q}, 16, v{T+q}")
            k.op(f"v_and_b32 v{X+2*q+1}, s{sMASK}, v{T+q}")
        E = B + 16; N = B + 24
        for q in range(4):
            k.op(f"v_pk_mul_f32 {vr(E+2*q,2)}, {vr(B+2*q,2)}, {vr(10,2)} op_sel_hi:[1,0]")
            k.op(f"v_pk_fma_f32 {vr(N+2*q,2)}, {vr(X+2*q,2)}, {vr(T+4,2)}, {vr(T+4,2)} op_sel:[0,0,1] op_sel_hi:[1,0,1]")
        for q in range(8): k.op(f"v_exp_f32 v{E+q}, v{E+q}")
        for q in range(4): k.op(f"v_pk_mul_f32 {vr(N+2*q,2)}, {vr(N+2*q,2)}, {vr(Yr+2*q,2)}")
        for q in range(4): k.op(f"v_pk_add_f32 {vr(E+2*q,2)}, {vr(E+2*q,2)}, {vr(10,2)} op_sel:[0,1] op_sel_hi:[1,1]")
        for q in range(8): k.op(f"v_rcp_f32 v{E+q}, v{E+q}")
        for q in range(4): k.op(f"v_pk_mul_f32 {vr(N+2*q,2)}, {vr(N+2*q,2)}, {vr(B+2*q,2)}")
        for q in range(4): k.op(f"v_pk_fma_f32 {vr(N+2*q,2)}, {vr(N+2*q,2)}, {vr(E+2*q,2)}, {vr(X+2*q,2)}")
        for q in range(4): k.op(f"v_cvt_pk_bf16_f32 v{T+8+q}, v{N+2*q}, v{N+2*q+1}")
        k.vm(f"buffer_store_dwordx4 {vr(T+8,4)}, v7, s[{rOUT}:{rOUT+3}], s{78+ps} offen", "ost")
    stamp(k, "d_end")

PP_ROW = 900
PP_K = 0
PP_V = 67 * PP_ROW + 4
def prepass(k):
    k.op(f"s_sub_u32 s{sT0}, s{sSLOT}, 28")
    k.op(f"s_lshl_b32 s{sT0}, s{sT0}, 3")
    k.op(f"s_add_u32 s{sI}, s{sT0}, s{sXCD}")
    k.op("v_lshlrev_b32 v1, 4, v0")
    k.op("s_waitcnt lgkmcnt(0)")
    srd(k, rWS, sPWS, (16 << 20) if STAMPS else WS_USED)
    lab = k.newlabel("Lnolead")
    k.op(f"s_or_b32 s{sT0}, s{sI}, s{sW}")
    k.op(f"s_cmp_lg_u32 s{sT0}, 0")
    k.op(f"s_cbranch_scc1 {lab}")
    k.op("v_lshlrev_b32 v2, 7, v0")
    k.op(f"v_add_u32 v2, {CNT_OFF}, v2")
    k.op("v_mov_b32 v3, 0")
    k.op("s_mov_b32 exec_hi, 0")
    k.op(f"global_store_dword v2, v3, s[{sPWS}:{sPWS+1}] sc1")
    k.op("s_waitcnt vmcnt(0)")
    k.op("v_mov_b32 v2, 1")
    k.op("s_mov_b64 exec, 1")
    k.op(f"global_store_dword v3, v2, s[{sPDBG}:{sPDBG+1}] sc1")
    k.op("s_mov_b64 exec, -1")
    k.label(lab)
    srd(k, rK, sPK, S * D * 2)
    srd(k, rV, sPV, S * D * 2)
    srd(k, rSK, sPSK, D * 4 * 2)
    k.op("s_mov_b32 exec_hi, 0x00ffffff")
    k.op(f"s_lshl_b32 s{sT0}, s{sI}, 6")
    k.op(f"s_add_u32 s{sT0}, s{sT0}, s{sW}")
    k.op(f"s_sub_u32 s{sT1}, s{sT0}, 3")
    k.op(f"s_mul_i32 s{sT1}, s{sT1}, 896")
    k.op(f"s_mul_i32 s{sT2}, s{sW}, {PP_ROW}")
    k.op(f"s_add_u32 m0, s{sT2}, {PP_K}")
    k.op(f"v_add_u32 v2, s{sT1}, v1")
    for n in range(17):
        if n == 16:
            lab = k.newlabel("Lpk")
            k.op(f"s_cmp_eq_u32 s{sW}, 3")
            k.op(f"s_cbranch_scc1 {lab}")
            k.op(f"buffer_load_dwordx4 v2, s[{rK}:{rK+3}], 0 offen lds")
            k.label(lab)
        else:
            k.vm(f"buffer_load_dwordx4 v2, s[{rK}:{rK+3}], 0 offen lds", "k")
            k.op(f"s_add_u32 m0, m0, {4*PP_ROW}")
            k.op(f"v_add_u32 v2, {4*896}, v2")
    k.op(f"s_mul_i32 s{sT1}, s{sT0}, 896")
    k.op(f"s_add_u32 m0, s{sT2}, {PP_V}")
    k.op("s_nop 0")
    for n in range(16):
        k.vm(f"buffer_load_dwordx4 v1, s[{rV}:{rV+3}], s{sT1} offen lds", "v")
        if n < 15:
            k.op(f"s_add_u32 m0, m0, {4*PP_ROW}")
            k.op(f"s_add_u32 s{sT1}, s{sT1}, {4*896}")
    k.op("s_mov_b32 exec_hi, -1")
    k.op("v_and_b32 v2, 3, v0")
    k.op("v_lshrrev_b32 v3, 5, v0")
    k.op("v_lshl_add_u32 v2, v3, 2, v2")
    k.op("v_bfe_u32 v3, v0, 2, 3")
    k.op(f"v_mul_u32_u24 v4, {8*PP_ROW}, v2")
    k.op("v_lshl_add_u32 v4, v3, 2, v4")
    k.op(f"s_lshl_b32 s{sT0}, s{sW}, 5")
    k.op(f"v_add_u32 v4, s{sT0}, v4")
    k.op(f"v_add_u32 v8, {PP_V}, v4")
    k.op("v_lshlrev_b32 v5, 4, v3")
    k.op(f"s_lshl_b32 s{sT0}, s{sW}, 7")
    k.op(f"v_add_u32 v5, s{sT0}, v5")
    k.op("v_lshlrev_b32 v6, 13, v3")
    k.op(f"s_lshl_b32 s{sT0}, s{sW}, 16")
    k.op(f"v_add_u32 v6, s{sT0}, v6")
    k.op("v_lshlrev_b32 v7, 4, v2")
    k.op("v_sub_u32 v6, v6, v7")
    k.op(f"s_lshl_b32 s{sT0}, s{sI}, 7")
    k.op(f"s_sub_u32 s{sT0}, {U_OFF + (2047 - 7) * 2}, s{sT0}")
    k.op(f"v_add_u32 v6, s{sT0}, v6")
    for it in range(7):
        k.vm(f"buffer_load_dwordx4 {vr(100 + 4*it, 4)}, v5, s[{rSK}:{rSK+3}], 0 offen offset:{it*512}", "sk")
    k.wait_all()
    k.op("s_barrier")
    KR, VR = 16, 28
    for it in range(7):
        coff = it * 128
        for j in range(11):
            k.lg(f"ds_read_b32 v{KR+j}, v4 offset:{PP_K + j*PP_ROW + coff}", "kr")
        k.wait(lg="kr")
        for j in range(8):
            k.lg(f"ds_read_b32 v{VR+j}, v8 offset:{j*PP_ROW + coff}", "vr")
        for j in range(11):
            k.op(f"v_lshlrev_b32 v{40+2*j}, 16, v{KR+j}")
            k.op(f"v_and_b32 v{41+2*j}, 0xffff0000, v{KR+j}")
        sk = 100 + 4 * it
        k.op(f"v_lshlrev_b32 v64, 16, v{sk}");   k.op(f"v_lshlrev_b32 v65, 16, v{sk+2}")
        k.op(f"v_and_b32 v66, 0xffff0000, v{sk}"); k.op(f"v_and_b32 v67, 0xffff0000, v{sk+2}")
        k.op(f"v_lshlrev_b32 v68, 16, v{sk+1}"); k.op(f"v_lshlrev_b32 v69, 16, v{sk+3}")
        k.op(f"v_and_b32 v70, 0xffff0000, v{sk+1}"); k.op(f"v_and_b32 v71, 0xffff0000, v{sk+3}")
        k.wait(lg="vr")
        for j in range(8):
            k.op(f"v_lshlrev_b32 v{72+2*j}, 16, v{VR+j}")
            k.op(f"v_and_b32 v{73+2*j}, 0xffff0000, v{VR+j}")
        for t in range(8):
            k.op(f"v_pk_mul_f32 {vr(130+2*t,2)}, {vr(40+2*(t+3),2)}, {vr(64,2)}")
        for j in range(1, 4):
            for t in range(8):
                o = 130 + 2 * t
                k.op(f"v_pk_fma_f32 {vr(o,2)}, {vr(40+2*(t+3-j),2)}, {vr(64+2*j,2)}, {vr(o,2)}")
        for t in range(8):
            o = 130 + 2 * t
            k.op(f"v_pk_mul_f32 {vr(o,2)}, {vr(o,2)}, {vr(72+2*t,2)}")
        O = 150 + 8 * (it % 2)
        for q in range(4):
            k.op(f"v_cvt_pk_bf16_f32 v{O+q}, v{130+2*(7-2*q)}, v{130+2*(6-2*q)}")
            k.op(f"v_cvt_pk_bf16_f32 v{O+4+q}, v{131+2*(7-2*q)}, v{131+2*(6-2*q)}")
        k.op(f"s_mov_b32 s{sT0}, {it * 64 * 4096}")
        k.op(f"s_mov_b32 s{sT1}, {it * 64 * 4096 + 4096}")
        k.vm(f"buffer_store_dwordx4 {vr(O,4)}, v6, s[{rWS}:{rWS+3}], s{sT0} offen sc1", "ust")
        k.vm(f"buffer_store_dwordx4 {vr(O+4,4)}, v6, s[{rWS}:{rWS+3}], s{sT1} offen sc1", "ust")
    k.wait_all()
    k.op("s_barrier")
    lab = k.newlabel("Lpsig")
    k.op(f"s_cmp_lg_u32 s{sW}, 0")
    k.op(f"s_cbranch_scc1 {lab}")
    k.op("v_mov_b32 v9, 0")
    spin_until(k, 9, 8, sPDBG, 1)
    k.label(lab)
    cnt_addr(k, 9, idx=UCNT)
    signal(k, 9, 8)

def kd(name, vgpr=512, acc=256):
    return f""".section .rodata,"a"
.p2align 6
.amdhsa_kernel {name}
  .amdhsa_next_free_vgpr {vgpr}
  .amdhsa_next_free_sgpr 102
  .amdhsa_accum_offset {acc}
  .amdhsa_group_segment_fixed_size 0
  .amdhsa_kernarg_size 104
  .amdhsa_user_sgpr_count 2
  .amdhsa_user_sgpr_kernarg_segment_ptr 1
  .amdhsa_system_sgpr_workgroup_id_x 1
  .amdhsa_float_denorm_mode_32 3
.end_amdhsa_kernel
"""

def build():
    k = K()
    prologue(k, 32768)
    start_main(k)
    gemm1_loop(k)
    gelu_phase(k)
    conv_phase(k)
    gemm2_phase(k)
    for o in OPT:
        if o.startswith("delay"):
            n = int(o[5:])
            k.op("s_memtime s[8:9]")
            k.op("s_waitcnt lgkmcnt(0)")
            k.op(f"s_add_u32 s10, s8, {n}")
            k.label("L_delay")
            k.op("s_memtime s[8:9]")
            k.op("s_waitcnt lgkmcnt(0)")
            k.op("s_sub_u32 s11, s10, s8")
            k.op("s_cmp_gt_i32 s11, 0")
            k.op("s_cbranch_scc1 L_delay")
    stamp_flush(k)
    k.op("s_endpgm")
    k.label("L_pre")
    k.vmq = []; k.lgq = []
    prepass(k)
    k.label("L_exit")
    name = NAME + "_kernel"
    header = open("cdna_kernels/" + NAME + ".s.ref").read().split("; Override launch")[0]
    txt = header + f"; @launch grid=(256,1,1) block=(256,1,1) lds={LDS_TOTAL}\n"
    txt += '.amdgcn_target "amdgcn-amd-amdhsa--gfx950"\n.text\n'
    txt += f".globl {name}\n.p2align 8\n.type {name},@function\n{name}:\n"
    txt += k.text() + "s_endpgm\n" + kd(name)
    return txt

if __name__ == "__main__":
    if len(sys.argv) > 2 and sys.argv[2].startswith("stamps"):
        STAMPS = True
        if "=" in sys.argv[2]: STAMPSET = sys.argv[2].split("=")[1].split(",")
    if len(sys.argv) > 3: OPT.update(sys.argv[3].split(","))
    txt = build()
    check_hazards(txt)
    open(sys.argv[1], "w").write(txt)
    if STAMPS: print("stamps:", stamped)
```

```python
import sys, struct
from asmlib import *

NAME = "recurrent_scan__ssm_conv_h3__geglu_ffn__prompt"
S, D, F = 2048, 448, 1792
OPT = set()

H_OFF = 0
U_OFF = H_OFF + 64 * 112 * 1024
Y_OFF = U_OFF + D * 4096
ST_OFF = Y_OFF + D * 4096
CNT_OFF = ST_OFF + S * 8
WS_USED = CNT_OFF + 32 * 128
HCNT, YCNT, UCNT = 0, 16, 24

sPQ, sPK, sPV, sPSK, sPSSM, sPD, sPBX, sPWG = 16, 18, 20, 22, 24, 26, 28, 30
sPWU, sPWD, sPOUT, sPDBG = 32, 34, 36, 38
sPWS = 40
rX, rW, rWS, rWD, rSSM, rOUT, rD = 44, 48, 52, 56, 60, 64, 68
rK, rV, rSK = 48, 56, 60
sT0, sT1, sT2, sT3 = 4, 5, 6, 7
sW, sI, sJ, sWSO, sWM0, sSLOT, sXCD, sONES, sMASK, sWGM = 80, 81, 82, 83, 84, 85, 86, 87, 88, 89
sTT, sDT, sWDS, sWDM, sCH = 90, 91, 92, 93, 94
sHST = 95
sU0, sU1, sU2, sU3 = 96, 97, 98, 99

SLOT_SZ = 34048
XOFF = 17024
XS = SLOT_SZ
XROW = 912
SLOT = [0, SLOT_SZ, 2 * SLOT_SZ, 3 * SLOT_SZ]
LDS_TOTAL = 163840
HC_STRIDE = 4160
HC_CH = 4 * HC_STRIDE
UR_CH = 4608
HC = SLOT[3]
UR = 4 * SLOT_SZ
XCH = UR + 2 * UR_CH
assert XCH + 16384 <= LDS_TOTAL
WDST = 0
WD_KS = 12
WD_WAVE = WD_KS * 2048
assert 4 * WD_WAVE <= SLOT[3]
YT = HC
RED = 0

vX = 16
vACC = 128

STAMPS = False
STAMP_OFF = 12 << 20
STAMPSET = None
POOL = [16, 18, 20, 22, 24, 26, 28, 30, 32, 34, 36, 72, 74, 8, 10, 12, 14]
stamped = []
def stamp(k, name=""):
    if not STAMPS: return
    if STAMPSET is not None and not any(name.startswith(p) for p in STAMPSET): return
    i = len(stamped)
    assert i < len(POOL)
    stamped.append(name)
    k.op(f"s_memtime s[{POOL[i]}:{POOL[i]+1}]")
def stamp_flush(k):
    if not STAMPS: return
    k.op("s_waitcnt vmcnt(0) lgkmcnt(0)")
    k.op("s_memrealtime s[42:43]")
    k.op("s_waitcnt lgkmcnt(0)")
    k.op("s_mov_b32 s101, s42")
    k.op("s_lshl_b32 s4, s2, 2")
    k.op(f"s_add_u32 s4, s4, s{sW}")
    k.op("s_lshl_b32 s4, s4, 7")
    k.op(f"s_add_u32 s4, s4, {STAMP_OFF}")
    k.op("v_mov_b32 v1, 0")
    k.op("s_mov_b64 exec, 1")
    for i in range(len(stamped)):
        k.op(f"v_mov_b32 v2, s{POOL[i]}")
        k.op(f"buffer_store_dword v2, v1, s[{rWS}:{rWS+3}], s4 offen offset:{4*i}")
    k.op("v_mov_b32 v2, s100")
    k.op(f"buffer_store_dword v2, v1, s[{rWS}:{rWS+3}], s4 offen offset:{4*30}")
    k.op("v_mov_b32 v2, s101")
    k.op(f"buffer_store_dword v2, v1, s[{rWS}:{rWS+3}], s4 offen offset:{4*31}")
    k.op("s_mov_b64 exec, -1")

def f2u(x):
    return struct.unpack("<I", struct.pack("<f", x))[0]

def srd(k, r, ptr, nbytes):
    k.op(f"s_mov_b32 s{r}, s{ptr}")
    k.op(f"s_and_b32 s{r+1}, s{ptr+1}, 0xffff")
    k.op(f"s_mov_b32 s{r+2}, {nbytes}")
    k.op(f"s_mov_b32 s{r+3}, 0x20000")

def emit(k, items):
    for it in items:
        if it[0] == "op": k.op(it[1])
        elif it[0] == "vm": k.vm(it[1], it[2])
        elif it[0] == "lg": k.lg(it[1], it[2])
        elif it[0] == "fn": it[1]()

def interleave(k, main, fill, every, start=0):
    fill = list(fill)
    for n, it in enumerate(main):
        emit(k, [it])
        if fill and n >= start and (n - start) % every == every - 1:
            emit(k, fill.pop(0))
    for g in fill: emit(k, g)

def cnt_addr(k, vreg, idx_sgpr=None, idx=0):
    if idx_sgpr is None:
        k.op(f"v_mov_b32 v{vreg}, {CNT_OFF + idx * 128}")
    else:
        k.op(f"s_lshl_b32 s{sT0}, s{idx_sgpr}, 7")
        k.op(f"s_add_u32 s{sT0}, s{sT0}, {CNT_OFF + idx * 128}")
        k.op(f"v_mov_b32 v{vreg}, s{sT0}")

def spin_until(k, vaddr, vtmp, base, target, cmp="ge"):
    lab, done = k.newlabel("Lspin"), k.newlabel("Lspun")
    k.op(f"s_mov_b32 s{sT1}, 0x40000")
    k.label(lab)
    k.op(f"global_load_dword v{vtmp}, v{vaddr}, s[{base}:{base+1}] sc1")
    k.op("s_waitcnt vmcnt(0)")
    k.op(f"v_readfirstlane_b32 s{sT2}, v{vtmp}")
    k.op(f"s_sub_u32 s{sT1}, s{sT1}, 1")
    k.op(f"s_cmp_ge_u32 s{sT2}, {target}")
    k.op(f"s_cbranch_scc1 {done}")
    k.op("s_sleep 1")
    k.op(f"s_cmp_lg_u32 s{sT1}, 0")
    k.op(f"s_cbranch_scc1 {lab}")
    k.label(done)
    k.vmq = []

def check_or_spin(k, vval, vaddr, base, target):
    done = k.newlabel("Lok")
    k.op(f"v_readfirstlane_b32 s{sT2}, v{vval}")
    k.op(f"s_cmp_ge_u32 s{sT2}, {target}")
    k.op(f"s_cbranch_scc1 {done}")
    q = list(k.vmq)
    spin_until(k, vaddr, vval, base, target)
    k.vmq = q
    k.label(done)

def signal(k, vaddr, vone):
    lab = k.newlabel("Lsig")
    k.op(f"s_cmp_lg_u32 s{sW}, 0")
    k.op(f"s_cbranch_scc1 {lab}")
    k.op(f"v_mov_b32 v{vone}, 1")
    k.op("s_mov_b64 exec, 1")
    k.op(f"global_atomic_add v{vaddr}, v{vone}, s[{sPWS}:{sPWS+1}] sc1")
    k.op("s_mov_b64 exec, -1")
    k.label(lab)

def prologue(k, codebytes):
    if any(o.startswith("until") for o in OPT):
        k.op("s_memrealtime s[72:73]")
        k.op("s_waitcnt lgkmcnt(0)")
        k.op("s_mov_b32 s73, s72")
    k.op("s_getpc_b64 s[12:13]")
    k.op("s_load_dwordx16 s[16:31], s[0:1], 0")
    k.op("s_load_dwordx8 s[32:39], s[0:1], 64")
    k.op("s_load_dwordx2 s[40:41], s[0:1], 96")
    k.op("v_lshlrev_b32 v2, 7, v0")
    k.op("v_mov_b32 v3, s13")
    k.op("v_add_co_u32 v2, vcc, s12, v2")
    k.op("v_lshrrev_b32 v1, 6, v0")
    k.op("v_and_b32 v0, 63, v0")
    k.op("v_addc_co_u32 v3, vcc, 0, v3, vcc")
    k.op("s_cmp_ge_u32 s2, 256")
    k.op(f"v_readfirstlane_b32 s{sW}, v1")
    k.op("s_cbranch_scc1 L_exit")
    if "nocodepf" not in OPT:
        k.vm("global_load_dword a250, v[2:3], off", "code")
        assert codebytes <= 32768 + 4096
    if STAMPS:
        k.op("s_memrealtime s[42:43]")
        k.op("s_waitcnt lgkmcnt(0)")
        k.op("s_mov_b32 s100, s42")
    k.op(f"s_and_b32 s{sXCD}, s2, 7")
    k.op(f"s_lshr_b32 s{sSLOT}, s2, 3")
    k.op(f"s_cmp_ge_u32 s{sSLOT}, 28")
    k.op("s_cbranch_scc1 L_pre")

def wdma(c, e):
    out = []
    if e % 4 == 0:
        out.append(("op", f"s_add_u32 m0, s{sWM0}, {SLOT[c % 4] + e * 1056}"))
    out.append(("op", f"s_add_u32 s{sT3}, s{sWSO}, {(64 * c + e) * 3584 - (e % 4) * 1056}"))
    out.append(("vm", f"buffer_load_dwordx4 v2, s[{rW}:{rW+3}], s{sT3} offen offset:{(e % 4) * 1056} lds", f"w{c}"))
    return out

def start_main(k):
    k.op(f"s_mul_i32 s{sT0}, s{sSLOT}, 37")
    k.op(f"s_lshr_b32 s{sT0}, s{sT0}, 8")
    k.op(f"s_mul_i32 s{sT1}, s{sT0}, 7")
    k.op(f"s_sub_u32 s{sDT}, s{sSLOT}, s{sT1}")
    k.op(f"s_lshr_b32 s{sT2}, s{sXCD}, 1")
    k.op(f"s_lshl_b32 s{sT2}, s{sT2}, 2")
    k.op(f"s_add_u32 s{sI}, s{sT2}, s{sT0}")
    k.op(f"s_and_b32 s{sT2}, s{sXCD}, 1")
    k.op(f"s_mul_i32 s{sT2}, s{sT2}, 7")
    k.op(f"s_add_u32 s{sJ}, s{sT2}, s{sDT}")
    k.op(f"s_lshl_b32 s{sTT}, s{sXCD}, 2")
    k.op(f"s_add_u32 s{sTT}, s{sTT}, s{sT0}")
    k.op(f"s_mul_i32 s{sWGM}, s{sXCD}, 28")
    k.op(f"s_add_u32 s{sWGM}, s{sWGM}, s{sSLOT}")
    k.op("v_lshlrev_b32 v1, 4, v0")
    k.op(f"s_lshl_b32 s{sT0}, s{sSLOT}, 6")
    k.op(f"v_add_u32 v6, s{sT0}, v0")
    k.op(f"s_mov_b32 s{sT1}, {(1 << 32) // 14 + 1}")
    k.op(f"v_mul_hi_u32 v7, v6, s{sT1}")
    k.op("v_mul_u32_u24 v8, 14, v7")
    k.op("v_sub_u32 v8, v6, v8")
    k.op("v_mul_u32_u24 v7, 3584, v7")
    k.op("v_lshl_add_u32 v7, v8, 7, v7")
    k.op(f"s_and_b32 s{sT1}, s{sXCD}, 1")
    k.op(f"s_mul_i32 s{sU0}, s{sT1}, 1792")
    k.op(f"s_lshl_b32 s{sT0}, s{sSLOT}, 7")
    k.op(f"s_lshl_b32 s{sT1}, s{sW}, 6")
    k.op(f"s_add_u32 s{sT0}, s{sT0}, s{sT1}")
    k.op(f"v_add_u32 v6, s{sT0}, v0")
    k.op("v_lshlrev_b32 v6, 7, v6")
    k.op(f"s_lshr_b32 s{sT1}, s{sXCD}, 1")
    k.op(f"s_mul_i32 s{sU1}, s{sT1}, {512*896}")
    k.op("v_lshrrev_b32 v10, 4, v0")
    k.op(f"v_mul_u32_u24 v2, {16*3584}, v10")
    k.op("v_and_b32 v11, 15, v0")
    k.op("v_lshl_add_u32 v2, v11, 4, v2")
    k.op("v_and_b32 v11, 1, v10")
    k.op(f"v_mul_u32_u24 v3, {XOFF}, v11")
    k.op("v_lshrrev_b32 v11, 5, v0")
    k.op("v_lshlrev_b32 v12, 3, v11")
    k.op("v_bfe_u32 v13, v0, 2, 2")
    k.op("v_add_u32 v12, v12, v13")
    k.op("v_mul_u32_u24 v12, 1056, v12")
    k.op("v_add_u32 v3, v3, v12")
    k.op("v_and_b32 v13, 3, v0")
    k.op("v_lshl_add_u32 v3, v13, 3, v3")
    k.op(f"v_add_u32 v14, {2*SLOT_SZ}, v3")
    k.op("v_and_b32 v13, 31, v0")
    k.op(f"s_lshl_b32 s{sT0}, s{sW}, 5")
    k.op(f"v_add_u32 v13, s{sT0}, v13")
    k.op(f"v_mul_u32_u24 v15, {XROW}, v13")
    k.op("v_lshl_add_u32 v15, v11, 4, v15")
    k.op(f"v_add_u32 v15, {XS}, v15")
    k.op(f"s_mov_b32 s{sONES}, 0x3f803f80")
    k.op(f"s_mov_b32 s{sMASK}, 0xffff0000")
    k.op("s_waitcnt lgkmcnt(0)")
    srd(k, rX, sPQ, S * D * 2)
    k.op(f"s_bitcmp1_b32 s{sW}, 0")
    k.op(f"s_cselect_b32 s{rW}, s{sPWU}, s{sPWG}")
    k.op(f"s_cselect_b32 s{rW+1}, s{sPWU+1}, s{sPWG+1}")
    k.op(f"s_and_b32 s{rW+1}, s{rW+1}, 0xffff")
    k.op(f"s_mov_b32 s{rW+2}, {D*F*2}")
    k.op(f"s_mov_b32 s{rW+3}, 0x20000")
    stamp(k, "start")
    if "nopf" not in OPT:
        l1, l2 = k.newlabel("Lpf"), k.newlabel("Lpf")
        k.op(f"s_cmp_ge_u32 s{sW}, 2")
        k.op(f"s_cbranch_scc1 {l1}")
        k.op(f"buffer_load_dword a250, v6, s[{rX}:{rX+3}], s{sU1} offen")
        k.op(f"s_branch {l2}")
        k.label(l1)
        k.op(f"buffer_load_dword a250, v7, s[{rW}:{rW+3}], s{sU0} offen")
        k.label(l2)
        k.vmq.append("pf")
    k.op(f"s_lshl_b32 s{sT0}, s{sI}, 2")
    k.op(f"s_add_u32 s{sT0}, s{sT0}, s{sW}")
    k.op(f"s_mul_i32 s{sT1}, s{sT0}, {32*896}")
    k.op(f"s_mul_i32 s{sT2}, s{sW}, {32*XROW}")
    k.op(f"s_add_u32 m0, s{sT2}, {XS}")
    k.op("s_mov_b32 exec_hi, 0x00ffffff")
    k.op(f"s_mov_b32 s{sT0}, 8")
    lx = k.newlabel("Lxd")
    k.label(lx)
    for n in range(4):
        k.op(f"buffer_load_dwordx4 v1, s[{rX}:{rX+3}], s{sT1} offen lds")
        k.op(f"s_add_u32 m0, m0, {XROW}")
        k.op(f"s_add_u32 s{sT1}, s{sT1}, 896")
    k.op(f"s_sub_u32 s{sT0}, s{sT0}, 1")
    k.op(f"s_cmp_lg_u32 s{sT0}, 0")
    k.op(f"s_cbranch_scc1 {lx}")
    for n in range(32): k.vmq.append("x")
    k.op("s_mov_b32 exec_hi, -1")
    k.op(f"s_lshr_b32 s{sT0}, s{sW}, 1")
    k.op(f"s_lshl_b32 s{sT0}, s{sT0}, 3")
    k.op(f"s_mul_i32 s{sWSO}, s{sT0}, 3584")
    k.op(f"s_lshl_b32 s{sT1}, s{sJ}, 8")
    k.op(f"s_add_u32 s{sWSO}, s{sWSO}, s{sT1}")
    k.op(f"s_mul_i32 s{sWM0}, s{sT0}, 1056")
    k.op(f"s_and_b32 s{sT1}, s{sW}, 1")
    k.op(f"s_mul_i32 s{sT1}, s{sT1}, {XOFF}")
    k.op(f"s_add_u32 s{sWM0}, s{sWM0}, s{sT1}")
    for e in range(8): emit(k, wdma(0, e))
    srd(k, rWS, sPWS, (16 << 20) if STAMPS else WS_USED)
    srd(k, rWD, sPWD, F * D * 2)
    srd(k, rSSM, sPSSM, D * S * 2)
    srd(k, rOUT, sPOUT, S * D * 2)
    srd(k, rD, sPD, D * 2)
    if "nopf" not in OPT:
        k.op(f"s_lshr_b32 s{sT0}, s{sW}, 1")
        k.op(f"s_mul_i32 s{sT0}, s{sT0}, {128*3584}")
        k.op(f"s_add_u32 s{sU2}, s{sU0}, s{sT0}")
        k.op(f"s_add_u32 s{sU2}, s{sU2}, {128*3584}")
        k.vm(f"buffer_load_dword a250, v7, s[{rW}:{rW+3}], s{sU2} offen", "pf")
        k.op(f"s_add_u32 s{sU2}, s{sU0}, {384*3584}")
        k.vm(f"buffer_load_dword a250, v7, s[{rW}:{rW+3}], s{sU2} offen", "pf")
    stamp(k, "a_issued")
    k.wait(vm="x")
    stamp(k, "a_xarr")
    for ks in range(28):
        if ks >= 14: k.wait(lg=f"x{ks-14}")
        k.lg(f"ds_read_b128 {vr(vX + 4 * ks, 4)}, v15 offset:{32 * ks}", f"x{ks}")
    k.wait(vm="w0", lg="x27")
    k.op("s_barrier")
    stamp(k, "a_xreg")
    main = [("op", f"v_mov_b32 v{6+a}, 0") for a in range(8)]
    for n in range(112):
        main.append(("op", f"v_dot2_f32_bf16 v{6 + n % 4}, v{vX+n}, s{sONES}, v{6 + n % 4}"))
        main.append(("op", f"v_dot2_f32_bf16 v{10 + n % 4}, v{vX+n}, v{vX+n}, v{10 + n % 4}"))
    fill = [wdma(c, e) for c in (1, 2, 3) for e in range(8)]
    interleave(k, main, fill, 9)
    k.op("s_nop 2")
    k.op("v_add_f32 v6, v6, v7"); k.op("v_add_f32 v8, v8, v9")
    k.op("v_add_f32 v10, v10, v11"); k.op("v_add_f32 v12, v12, v13")
    k.op("v_add_f32 v6, v6, v8"); k.op("v_add_f32 v10, v10, v12")
    k.op("v_mov_b32 v7, v6"); k.op("v_mov_b32 v11, v10")
    k.op("s_nop 1")
    k.op("v_permlane32_swap_b32 v6, v7"); k.op("v_permlane32_swap_b32 v10, v11")
    k.op("s_nop 1")
    k.op("v_add_f32 v6, v6, v7"); k.op("v_add_f32 v10, v10, v11")
    k.op(f"v_mul_f32 v6, {hex(f2u(1.0/448))}, v6")
    k.op(f"v_mul_f32 v10, {hex(f2u(1.0/448))}, v10")
    k.op("v_fma_f32 v10, -v6, v6, v10")
    k.op("v_max_f32 v10, 0, v10")
    k.op("v_cvt_pk_bf16_f32 v7, v6, v10")
    k.op("v_lshlrev_b32 v6, 16, v7")
    k.op(f"v_and_b32 v10, s{sMASK}, v7")
    k.op(f"v_add_f32 v10, {hex(f2u(1e-5))}, v10")
    k.op("v_cvt_pk_bf16_f32 v10, v10, v10")
    k.op("v_lshlrev_b32 v10, 16, v10")
    k.op("v_sqrt_f32 v10, v10")
    k.op("s_nop 0")
    k.op("v_cvt_pk_bf16_f32 v10, v10, v10")
    k.op("v_lshlrev_b32 v10, 16, v10")
    k.op("v_rcp_f32 v4, v10")
    k.op("s_nop 0")
    k.op("v_mul_f32 v5, v6, v4")
    k.op("v_sub_f32 v5, 0, v5")
    lab = k.newlabel("Lnost")
    k.op(f"s_cmp_lg_u32 s{sJ}, 0")
    k.op(f"s_cbranch_scc1 {lab}")
    k.op(f"s_lshl_b32 s{sT0}, s{sI}, 2")
    k.op(f"s_add_u32 s{sT0}, s{sT0}, s{sW}")
    k.op(f"s_lshl_b32 s{sT0}, s{sT0}, 8")
    k.op(f"s_add_u32 s{sT0}, s{sT0}, {ST_OFF}")
    k.op("v_lshlrev_b32 v6, 3, v0")
    k.op("s_mov_b32 exec_hi, 0")
    k.op(f"buffer_store_dwordx2 v[4:5], v6, s[{rWS}:{rWS+3}], s{sT0} offen sc1")
    k.op("s_mov_b32 exec_hi, -1")
    k.label(lab)

def norm(n, tp):
    t = 6 + 2 * tp
    return [("op", f"v_lshlrev_b32 v{t}, 16, v{vX+n}"),
            ("op", f"v_and_b32 v{t+1}, s{sMASK}, v{vX+n}"),
            ("op", f"v_fma_f32 v{t}, v{t}, v4, v5"),
            ("op", f"v_fma_f32 v{t+1}, v{t+1}, v4, v5"),
            ("op", f"v_cvt_pk_bf16_f32 v{vX+n}, v{t}, v{t+1}")]
def norm_step(ks):
    a = [norm(4 * ks + q, q) for q in range(4)]
    out = []
    for s in range(5):
        for q in range(4): out.append(a[q][s])
    return out

def hc_dma(q):
    rr, qq = divmod(q, 4)
    out = []
    if qq == 0:
        out.append(("op", f"s_add_u32 m0, s{sU0}, {rr * HC_STRIDE}"))
        out.append(("op", f"s_add_u32 s{sU2}, s{sU1}, {rr * 2}"))
    out.append(("vm", f"buffer_load_dwordx4 v1, s[{rSSM}:{rSSM+3}], s{sU2} offen offset:{qq*1024} lds", "hc"))
    return out

def gemm1_loop(k):
    emit(k, norm_step(0))
    k.op(f"s_lshr_b32 s{sT0}, s{sW}, 1")
    k.op(f"s_lshl_b32 s{sCH}, s{sWGM}, 1")
    k.op(f"s_add_u32 s{sCH}, s{sCH}, s{sT0}")
    k.op(f"s_and_b32 s{sT1}, s{sW}, 1")
    k.op(f"s_lshl_b32 s{sT1}, s{sT1}, 1")
    k.op(f"s_mul_i32 s{sU0}, s{sT0}, {HC_CH}")
    k.op(f"s_mul_i32 s{sT3}, s{sT1}, {HC_STRIDE}")
    k.op(f"s_add_u32 s{sU0}, s{sU0}, s{sT3}")
    k.op(f"s_add_u32 s{sU0}, s{sU0}, {HC + 32}")
    k.op(f"s_lshl_b32 s{sU1}, s{sCH}, 12")
    k.op(f"s_lshl_b32 s{sT1}, s{sT1}, 1")
    k.op(f"s_add_u32 s{sU1}, s{sU1}, s{sT1}")
    k.op(f"s_add_u32 s{sU1}, s{sU1}, 2")
    stamp(k, "a_stats")
    NF = 8; DIST = 7; NM = 224
    def rd(n):
        ks, mt = divmod(n, 8)
        c, kk = divmod(ks, 4)
        sl = c % 4
        base = "v3" if sl < 2 else "v14"
        off = (SLOT_SZ if sl % 2 else 0) + kk * 256 + mt * 32
        f = 4 * (n % NF)
        return [("lg", f"ds_read_b64_tr_b16 {ar(f, 2)}, {base} offset:{off}", f"f{n}"),
                ("lg", f"ds_read_b64_tr_b16 {ar(f + 2, 2)}, {base} offset:{off + 4 * 1056}", f"f{n}")]
    for n in range(DIST): emit(k, rd(n))
    extra = {}
    def wd_pf(part):
        def fn():
            k.op(f"s_lshl_b32 s{sT0}, s{sSLOT}, 2")
            k.op(f"s_add_u32 s{sT0}, s{sT0}, s{sW}")
            k.op(f"s_mul_i32 s{sT0}, s{sT0}, {112*128}")
            if part == 1: k.op(f"s_add_u32 s{sT0}, s{sT0}, {48*128}")
            k.op("v_lshlrev_b32 v15, 7, v0")
            k.vm(f"buffer_load_dword a250, v15, s[{rWD}:{rWD+3}], s{sT0} offen", "pf")
        return [("fn", fn)]
    if "nopf" not in OPT:
        extra[5] = wd_pf(0); extra[9] = wd_pf(1)
    def ld_init():
        k.op("v_mov_b32 v15, 0")
        k.vm(f"global_load_dword a40, v15, s[{sPDBG}:{sPDBG+1}] sc1", "init")
    extra[13] = [("fn", ld_init)]
    def chk_init():
        k.wait(vm="init")
        k.op("v_accvgpr_read_b32 v0, a40") if False else None
    for n in range(NM):
        ks, mt = divmod(n, 8)
        c, kk = divmod(ks, 4)
        if n % 32 == 0: stamp(k, f"g_c{n//32}")
        if n % 4 == 0:
            k.wait(lg=[f"f{n+i}" for i in range(4)])
        f = 4 * (n % NF)
        acc = vr(vACC + 16 * mt, 16)
        cin = "0" if ks == 0 else acc
        k.op(f"v_mfma_f32_32x32x16_bf16 {acc}, {ar(f, 4)}, {vr(vX + 4 * ks, 4)}, {cin}")
        nn = n + DIST
        if nn < NM:
            if nn % 32 == 0:
                k.wait(vm=f"w{nn // 32}")
                k.op("s_barrier")
            emit(k, rd(nn))
        if ks + 1 < 28:
            st = norm_step(ks + 1)
            cut = [0, 3, 6, 9, 12, 15, 18, 20, 20]
            emit(k, st[cut[mt]: cut[mt + 1]])
        if mt in (6, 7):
            e = 2 * kk + (mt - 6)
            if 2 <= c and c + 2 < 7: emit(k, wdma(c + 2, e))
            if c in (5, 6) and mt == 7:
                q = (c - 5) * 4 + kk
                emit(k, hc_dma(q))
        if mt == 7 and ks in extra: emit(k, extra[ks])
    stamp(k, "g_end")

def g2_setup(k):
    k.op("v_lshrrev_b32 v3, 3, v0")
    k.op("v_mul_u32_u24 v2, 896, v3")
    k.op("v_bfe_u32 v3, v0, 4, 1")
    k.op("v_lshlrev_b32 v3, 2, v3")
    k.op("v_and_b32 v4, 7, v0")
    k.op("v_xor_b32 v3, v3, v4")
    k.op("v_lshl_add_u32 v2, v3, 4, v2")
    k.op(f"s_mul_i32 s{sWDS}, s{sW}, {16*28*896}")
    k.op(f"s_lshl_b32 s{sT0}, s{sDT}, 7")
    k.op(f"s_add_u32 s{sWDS}, s{sWDS}, s{sT0}")
    k.op(f"s_mul_i32 s{sWDM}, s{sW}, {WD_WAVE}")
    k.op(f"s_add_u32 s{sWDM}, s{sWDM}, {WDST}")
    k.op("v_lshrrev_b32 v5, 5, v0")
    k.op("v_bfe_u32 v6, v0, 2, 2")
    k.op("v_lshl_add_u32 v5, v5, 2, v6")
    k.op("v_lshlrev_b32 v5, 7, v5")
    k.op("v_bfe_u32 v7, v0, 4, 1")
    k.op("v_lshl_add_u32 v5, v7, 5, v5")
    k.op("v_and_b32 v7, 3, v0")
    k.op("v_lshl_add_u32 v5, v7, 3, v5")
    k.op(f"v_add_u32 v5, s{sWDM}, v5")
    k.op("v_bfe_u32 v6, v0, 3, 1")
    k.op("v_lshlrev_b32 v6, 6, v6")
    k.op("v_add_u32 v3, v5, v6")
    k.op("v_xor_b32 v6, 64, v6")
    k.op("v_add_u32 v4, v5, v6")

def wd_dma_groups(ks0, ks1, tag):
    out = []
    q = 0
    for ks in range(ks0, ks1):
        for hh in range(2):
            g = []
            if q % 4 == 0:
                g.append(("op", f"s_add_u32 m0, s{sWDM}, {(q // 4) * 4096}"))
            g.append(("op", f"s_add_u32 s{sT3}, s{sWDS}, {(16 * ks + 8 * hh) * 896 - (q % 4) * 1024}"))
            g.append(("vm", f"buffer_load_dwordx4 v2, s[{rWD}:{rWD+3}], s{sT3} offen offset:{(q % 4) * 1024} lds", tag))
            out.append(g)
            q += 1
    return out

def wd_read_items(ks0, ks1):
    out = []
    for ks in range(ks0, ks1):
        for dt2 in range(2):
            for t in range(2):
                a = 8 * ks + 4 * dt2 + 2 * t
                out.append(("lg", f"ds_read_b64_tr_b16 {ar(a,2)}, v{3+dt2} offset:{(ks-ks0)*2048 + t*1024}", f"wr{ks}_{dt2}_{t}"))
    return out
def emit_lg_limited(k, items):
    for it in items:
        if it[0] == "lg" and len(k.lgq) >= 12: k.wait(lg=k.lgq[5])
        emit(k, [it])

def gelu_phase(k):
    k.wait(lg=k.lgq[-1]) if k.lgq else None
    k.op("s_barrier")
    g2_setup(k)
    vC, vONE = 16, 18
    C1 = -2.0 * 0.7978845608028654 * 1.4426950408889634
    C2 = C1 * 0.044715
    k.op(f"v_mov_b32 v{vC}, {hex(f2u(C1))}")
    k.op(f"v_mov_b32 v{vC+1}, {hex(f2u(C2))}")
    k.op(f"v_mov_b32 v{vONE}, 1.0")
    k.op(f"v_mov_b32 v{vONE+1}, 1.0")
    k.op(f"s_lshl_b32 s{sT0}, s{sI}, 2")
    k.op(f"s_add_u32 s{sT0}, s{sT0}, s{sW}")
    k.op(f"s_mul_i32 s{sHST}, s{sT0}, {112*1024}")
    k.op(f"s_lshl_b32 s{sT1}, s{sJ}, 13")
    k.op(f"s_add_u32 s{sHST}, s{sHST}, s{sT1}")
    k.wait(vm="init")
    k.op("v_accvgpr_read_b32 v8, a40")
    k.op("v_mov_b32 v9, 0")
    k.op("s_nop 0")
    check_or_spin(k, 8, 9, sPDBG, 1)
    cnt_addr(k, 9, idx=UCNT)
    k.vm(f"global_load_dword v8, v9, s[{sPWS}:{sPWS+1}] sc1", "ucnt")
    k.op("v_lshrrev_b32 v10, 4, v0")
    k.op("v_and_b32 v11, 15, v0")
    k.op("v_add_u32 v12, v10, v11")
    k.op("v_subrev_u32 v12, 15, v12")
    k.op("v_lshlrev_b32 v12, 1, v12")
    k.op(f"s_lshl_b32 s{sT1}, s{sCH}, 12")
    k.op("v_cmp_gt_i32 vcc, 0, v12")
    k.op("v_mov_b32 v13, 0x7fffffff")
    k.op("s_nop 0")
    k.op("v_cndmask_b32 v12, v12, v13, vcc")
    k.vm(f"buffer_load_ushort v14, v12, s[{rSSM}:{rSSM+3}], s{sT1} offen", "hf")
    k.op(f"s_lshl_b32 s{sT1}, s{sCH}, 1")
    k.op("v_mov_b32 v13, 0")
    k.vm(f"buffer_load_ushort v15, v13, s[{rD}:{rD+3}], s{sT1} offen", "dv")
    k.op(f"v_mul_u32_u24 v10, {HC_STRIDE}, v10")
    k.op("v_lshl_add_u32 v10, v11, 1, v10")
    k.op(f"s_lshr_b32 s{sT0}, s{sW}, 1")
    k.op(f"s_mul_i32 s{sT2}, s{sT0}, {HC_CH}")
    k.op(f"s_add_u32 s{sT2}, s{sT2}, {HC}")
    k.op(f"v_add_u32 v10, s{sT2}, v10")
    k.op(f"s_mul_i32 s{sT2}, s{sT0}, {UR_CH}")
    k.op(f"s_add_u32 s{sT2}, s{sT2}, {UR + 4096}")
    k.op(f"v_add_u32 v11, s{sT2}, v1")
    k.op("v_mov_b32 v20, 0"); k.op("v_mov_b32 v21, 0"); k.op("v_mov_b32 v22, 0"); k.op("v_mov_b32 v23, 0")
    k.op("s_mov_b32 exec_hi, 0")
    k.lg("ds_write_b128 v11, v[20:23]", "z")
    k.op("s_mov_b32 exec_hi, -1")
    wd0 = wd_dma_groups(0, WD_KS, "wd0")
    def ur_dma():
        k.wait(vm="ucnt")
        check_or_spin(k, 8, 9, sPWS, 32)
        k.op(f"s_lshr_b32 s{sT0}, s{sW}, 1")
        k.op(f"s_and_b32 s{sT1}, s{sW}, 1")
        k.op(f"s_lshl_b32 s{sT1}, s{sT1}, 11")
        k.op(f"s_mul_i32 s{sT2}, s{sT0}, {UR_CH}")
        k.op(f"s_add_u32 s{sT2}, s{sT2}, s{sT1}")
        k.op(f"s_add_u32 m0, s{sT2}, {UR}")
        k.op(f"s_lshl_b32 s{sT3}, s{sCH}, 12")
        k.op(f"s_add_u32 s{sT3}, s{sT3}, s{sT1}")
        k.op(f"s_add_u32 s{sT3}, s{sT3}, {U_OFF}")
        k.vm(f"buffer_load_dwordx4 v1, s[{rWS}:{rWS+3}], s{sT3} offen sc1 lds", "ur")
        k.vm(f"buffer_load_dwordx4 v1, s[{rWS}:{rWS+3}], s{sT3} offen offset:1024 sc1 lds", "ur")
        k.wait(vm="hf")
        k.lg("ds_write_b16 v10, v14", "z")
    for mt in range(8):
        G = vACC + 16 * mt; U = G + 8
        T = 24 + (mt % 2) * 24
        tp = lambda p: T + 2 * p
        gu = lambda p: T + 8 + 2 * p
        O = T + 16
        P = range(4)
        m = []
        for p in P: m.append(("op", f"v_pk_mul_f32 {vr(tp(p),2)}, {vr(G+2*p,2)}, {vr(G+2*p,2)}"))
        for p in P: m.append(("op", f"v_pk_fma_f32 {vr(tp(p),2)}, {vr(tp(p),2)}, {vr(vC,2)}, {vr(vC,2)} op_sel:[0,1,0] op_sel_hi:[1,1,0]"))
        for p in P: m.append(("op", f"v_pk_mul_f32 {vr(tp(p),2)}, {vr(tp(p),2)}, {vr(G+2*p,2)}"))
        for p in P:
            m.append(("op", f"v_exp_f32 v{tp(p)}, v{tp(p)}")); m.append(("op", f"v_exp_f32 v{tp(p)+1}, v{tp(p)+1}"))
        for p in P: m.append(("op", f"v_pk_mul_f32 {vr(gu(p),2)}, {vr(G+2*p,2)}, {vr(U+2*p,2)}"))
        for p in P: m.append(("op", f"v_pk_add_f32 {vr(tp(p),2)}, {vr(tp(p),2)}, {vr(vONE,2)}"))
        for p in P:
            m.append(("op", f"v_rcp_f32 v{tp(p)}, v{tp(p)}")); m.append(("op", f"v_rcp_f32 v{tp(p)+1}, v{tp(p)+1}"))
        m.append(("op", "s_nop 0"))
        for p in P: m.append(("op", f"v_pk_mul_f32 {vr(gu(p),2)}, {vr(gu(p),2)}, {vr(tp(p),2)}"))
        for p in P: m.append(("op", f"v_cvt_pk_bf16_f32 v{O+p}, v{gu(p)}, v{gu(p)+1}"))
        fill = [wd0.pop(0) for _ in range(3)]
        pos = {12: 0, 24: 1, 36: 2}
        for n, it in enumerate(m):
            emit(k, [it])
            if n in pos: emit(k, fill[pos[n]])
        if mt % 4 == 0 and mt > 0:
            k.op(f"s_add_u32 s{sHST}, s{sHST}, 4096")
        k.vm(f"buffer_store_dwordx4 {vr(O,4)}, v1, s[{rWS}:{rWS+3}], s{sHST} offen offset:{(mt%4)*1024} sc1", "hst")
        if mt == 3: ur_dma()
    assert not wd0
    stamp(k, "e_gelu")
    k.wait(vm="wd0")
    emit_lg_limited(k, wd_read_items(0, WD_KS))
    k.wait_all()
    k.op("s_barrier")
    cnt_addr(k, 9, idx_sgpr=sI, idx=HCNT)
    signal(k, 9, 8)
    stamp(k, "e_sig")

def conv_phase(k):
    k.op("v_lshlrev_b32 v8, 16, v15")
    k.op(f"s_lshr_b32 s{sT0}, s{sW}, 1")
    k.op(f"s_mul_i32 s{sT2}, s{sT0}, {HC_CH}")
    k.op(f"s_add_u32 s{sT2}, s{sT2}, {HC}")
    k.op("v_bfe_u32 v5, v0, 2, 2")
    k.op(f"v_mul_u32_u24 v14, {HC_STRIDE}, v5")
    k.op("v_and_b32 v6, 3, v0")
    k.op("v_lshl_add_u32 v14, v6, 3, v14")
    k.op("v_lshrrev_b32 v6, 4, v0")
    k.op("v_lshl_add_u32 v14, v6, 4, v14")
    k.op(f"s_and_b32 s{sT1}, s{sW}, 1")
    k.op(f"s_lshl_b32 s{sT1}, s{sT1}, 8")
    k.op(f"s_add_u32 s{sT2}, s{sT2}, s{sT1}")
    k.op(f"v_add_u32 v14, s{sT2}, v14")
    k.op("v_and_b32 v7, 15, v0")
    k.op("v_lshlrev_b32 v7, 5, v7")
    k.op("v_lshlrev_b32 v5, 4, v6")
    k.op("v_sub_u32 v15, v5, v7")
    k.op(f"s_mul_i32 s{sT2}, s{sT0}, {UR_CH}")
    k.op(f"s_add_u32 s{sT2}, s{sT2}, {UR + 4064 - 3584}")
    k.op(f"s_add_u32 s{sT3}, s{sT2}, s{sT1}")
    k.op(f"v_add_u32 v15, s{sT3}, v15")
    k.op("v_lshlrev_b32 v5, 3, v6")
    k.op("v_add_u32 v7, v7, v5")
    k.op(f"s_add_u32 s{sT2}, s{sT2}, {4088 - 4064}")
    k.op(f"v_sub_u32 v13, s{sT2}, v7")
    FB = [16, 48]; GB = 80; ACC = 96
    def rdF(sub, J):
        b = FB[sub % 2] + 4 * J
        off = 64 * (8 * J + sub)
        return [(f"ds_read_b64_tr_b16 {vr(b,2)}, v14 offset:{off}", f"F{sub}_{J}"),
                (f"ds_read_b64_tr_b16 {vr(b+2,2)}, v14 offset:{off+8}", f"F{sub}_{J}")]
    def rdG(sub, T):
        idx = sub * 8 + (7 - T)
        b = GB + 4 * (idx % 4)
        return (f"ds_read_b128 {vr(b,4)}, v15 offset:{512*(7-T) + 64*sub}", f"G{sub}_{T}")
    seq = [(sub, T, J) for sub in range(4) for T in range(7, -1, -1) for J in range(0, 8 - T)]
    for J in range(4):
        for t in rdF(0, J): k.lg(*t)
    for T in (7, 6, 5): k.lg(*rdG(0, T))
    pendF = [(0, J) for J in range(4, 8)] + [(s, J) for s in range(1, 4) for J in range(8)]
    gq = [(s, T) for s in range(4) for T in range(7, -1, -1)][3:]
    wd1 = wd_dma_groups(WD_KS, 2 * WD_KS, "wd1")
    first = set(); lastG = None
    for n, (sub, T, J) in enumerate(seq):
        k.wait(lg=[f"F{sub}_{J}", f"G{sub}_{T}"])
        tile = T + J
        a = vr(ACC + 4 * tile, 4)
        cin = a if tile in first else "0"
        first.add(tile)
        gidx = sub * 8 + (7 - T)
        k.op(f"v_mfma_f32_16x16x32_bf16 {a}, {vr(FB[sub%2]+4*J,4)}, {vr(GB+4*(gidx%4),4)}, {cin}")
        if (sub, T) != lastG:
            lastG = (sub, T)
            if gq: k.lg(*rdG(*gq.pop(0)))
        elif pendF and len(k.lgq) <= 12 and (pendF[0][0] == sub or pendF[0][0] == sub + 1):
            for t in rdF(*pendF.pop(0)): k.lg(*t)
        elif wd1 and n % 5 == 4:
            emit(k, wd1.pop(0))
    assert not pendF and not gq
    for g in wd1: emit(k, g)
    stamp(k, "c_mfma")
    k.op(f"s_lshl_b32 s{sT0}, s{sW}, 12")
    k.op(f"s_add_u32 s{sT0}, s{sT0}, {XCH}")
    k.op(f"v_add_u32 v5, s{sT0}, v1")
    k.op(f"s_xor_b32 s{sT1}, s{sW}, 1")
    k.op(f"s_lshl_b32 s{sT1}, s{sT1}, 12")
    k.op(f"s_add_u32 s{sT1}, s{sT1}, {XCH}")
    k.op(f"v_add_u32 v6, s{sT1}, v1")
    k.op(f"s_lshl_b32 s{sT2}, s{sCH}, 12")
    k.op(f"s_add_u32 s{sT2}, s{sT2}, {Y_OFF}")
    lo, le = k.newlabel("Lcodd"), k.newlabel("Lcend")
    assert not k.lgq
    def finish(keep, send):
        for i in range(4):
            k.op(f"ds_write_b128 v5, {vr(ACC + 4*(send+i), 4)} offset:{1024*i}")
        for i in range(4):
            k.op(f"ds_read_b64 {vr(40+2*i,2)}, v13 offset:{512*(7-(keep+i))}")
        k.op("s_waitcnt lgkmcnt(0)")
        k.op("s_barrier")
        for i in range(4):
            k.op(f"ds_read_b128 {vr(16+4*i,4)}, v6 offset:{1024*i}")
        k.op("s_waitcnt lgkmcnt(0)")
        for i in range(4):
            A = ACC + 4 * (keep + i)
            k.op(f"v_pk_add_f32 {vr(A,2)}, {vr(A,2)}, {vr(16+4*i,2)}")
            k.op(f"v_pk_add_f32 {vr(A+2,2)}, {vr(A+2,2)}, {vr(18+4*i,2)}")
            U = 40 + 2 * i
            k.op(f"v_and_b32 v50, s{sMASK}, v{U+1}")
            k.op(f"v_lshlrev_b32 v51, 16, v{U+1}")
            k.op(f"v_and_b32 v52, s{sMASK}, v{U}")
            k.op(f"v_lshlrev_b32 v53, 16, v{U}")
            for r in range(4):
                k.op(f"v_fmac_f32 v{A+r}, v{50+r}, v8")
            k.op(f"v_cvt_pk_bf16_f32 v{56+2*i}, v{A}, v{A+1}")
            k.op(f"v_cvt_pk_bf16_f32 v{57+2*i}, v{A+2}, v{A+3}")
        for i in range(4):
            k.op(f"buffer_store_dwordx2 {vr(56+2*i,2)}, v7, s[{rWS}:{rWS+3}], s{sT2} offen offset:{512*(keep+i)} sc1")
    k.op(f"s_bitcmp1_b32 s{sW}, 0")
    k.op(f"s_cbranch_scc1 {lo}")
    finish(0, 4)
    k.op(f"s_branch {le}")
    k.label(lo)
    finish(4, 0)
    k.label(le)
    for i in range(4): k.vmq.append("yst")
    k.wait(vm="wd1")
    emit_lg_limited(k, wd_read_items(WD_KS, 2 * WD_KS))
    k.wait_all()
    k.op("s_barrier")
    k.op(f"s_lshr_b32 s{sU0}, s{sWGM}, 5")
    cnt_addr(k, 9, idx_sgpr=sU0, idx=YCNT)
    signal(k, 9, 8)
    stamp(k, "c_sig")

vH = 16; NHS = 21; vA2 = 192
def g2_hload(k, ks):
    for e in range(2):
        b = vH + 8 * (ks % NHS) + 4 * e
        k.vm(f"buffer_load_dwordx4 {vr(b,4)}, v1, s[{rWS}:{rWS+3}], s{76+e} offen offset:{(ks%4)*1024} sc1", f"h{ks}")

def gemm2_phase(k):
    for g in wd_dma_groups(2 * WD_KS, 28, "wd2"): emit(k, g)
    k.op(f"s_lshr_b32 s{sU0}, s{sTT}, 1")
    cnt_addr(k, 9, idx_sgpr=sU0, idx=HCNT)
    lab = k.newlabel("Lhw")
    k.op(f"s_cmp_lg_u32 s{sW}, 0")
    k.op(f"s_cbranch_scc1 {lab}")
    q = list(k.vmq)
    spin_until(k, 9, 8, sPWS, 14)
    k.vmq = q
    k.label(lab)
    k.op("s_barrier")
    stamp(k, "d_hrdy")
    k.op(f"s_lshl_b32 s{sT0}, s{sTT}, 1")
    k.op(f"s_mul_i32 s{sT0}, s{sT0}, 112")
    k.op(f"s_mul_i32 s{sT1}, s{sW}, 28")
    k.op(f"s_add_u32 s{sT0}, s{sT0}, s{sT1}")
    k.op(f"s_lshl_b32 s76, s{sT0}, 10")
    k.op(f"s_add_u32 s77, s76, {112*1024}")
    for ks in range(NHS):
        if ks % 4 == 0 and ks > 0:
            k.op("s_add_u32 s76, s76, 4096"); k.op("s_add_u32 s77, s77, 4096")
        g2_hload(k, ks)
    k.op("v_lshrrev_b32 v5, 3, v0")
    k.op(f"s_lshl_b32 s{sT0}, s{sW}, 3")
    k.op(f"v_add_u32 v5, s{sT0}, v5")
    k.op("v_and_b32 v6, 7, v0")
    k.op("v_mul_u32_u24 v7, 896, v5")
    k.op("v_lshl_add_u32 v7, v6, 4, v7")
    k.op(f"s_mul_i32 s78, s{sTT}, {64*896}")
    k.op(f"s_lshl_b32 s{sT0}, s{sDT}, 7")
    k.op(f"s_add_u32 s78, s78, s{sT0}")
    k.op(f"s_add_u32 s79, s78, {32*896}")
    cnt_addr(k, 9, idx_sgpr=sDT, idx=YCNT)
    def epi_loads():
        k.vm(f"buffer_load_dwordx4 {ar(224,4)}, v7, s[{rX}:{rX+3}], s78 offen", "ex")
        k.vm(f"buffer_load_dwordx4 {ar(228,4)}, v7, s[{rX}:{rX+3}], s79 offen", "ex")
        k.op("v_lshlrev_b32 v8, 3, v5")
        k.op(f"s_lshl_b32 s{sT0}, s{sTT}, 9")
        k.op(f"s_add_u32 s{sT0}, s{sT0}, {ST_OFF}")
        k.vm(f"buffer_load_dwordx2 {ar(232,2)}, v8, s[{rWS}:{rWS+3}], s{sT0} offen sc1", "ex")
        k.vm(f"buffer_load_dwordx2 {ar(234,2)}, v8, s[{rWS}:{rWS+3}], s{sT0} offen offset:256 sc1", "ex")
        k.vm(f"global_load_dword v10, v9, s[{sPWS}:{sPWS+1}] sc1", "ycnt")
    def y_loads():
        k.wait(vm="ycnt")
        check_or_spin(k, 10, 9, sPWS, 32)
        k.op("v_lshrrev_b32 v8, 3, v0")
        k.op("v_lshlrev_b32 v8, 12, v8")
        k.op("v_lshl_add_u32 v8, v6, 4, v8")
        k.op(f"s_lshl_b32 s{sT0}, s{sDT}, 18")
        k.op(f"s_lshl_b32 s{sT1}, s{sW}, 16")
        k.op(f"s_add_u32 s{sT0}, s{sT0}, s{sT1}")
        k.op(f"s_lshl_b32 s{sT1}, s{sTT}, 7")
        k.op(f"s_add_u32 s{sT0}, s{sT0}, s{sT1}")
        k.op(f"s_add_u32 s{sT0}, s{sT0}, {Y_OFF}")
        k.op(f"s_mul_i32 s{sT1}, s{sW}, 2080")
        k.op(f"s_add_u32 m0, s{sT1}, {YT}")
        k.op(f"s_add_u32 s{sT2}, s{sT0}, {8*4096 - 1040}")
        k.vm(f"buffer_load_dwordx4 v8, s[{rWS}:{rWS+3}], s{sT0} offen sc1 lds", "ey")
        k.vm(f"buffer_load_dwordx4 v8, s[{rWS}:{rWS+3}], s{sT2} offen offset:1040 sc1 lds", "ey")
    wr2 = wd_read_items(2 * WD_KS, 28)
    first = set()
    for ks in range(28):
        if ks == 2 * WD_KS: k.wait(lg=k.lgq[-1]) if k.lgq else None
        k.wait(vm=f"h{ks}")
        for dt2 in range(2):
            for e in range(2):
                t = 2 * dt2 + e
                acc = vr(vA2 + 16 * t, 16)
                cin = acc if t in first else "0"
                first.add(t)
                hb = vH + 8 * (ks % NHS) + 4 * e
                k.op(f"v_mfma_f32_32x32x16_bf16 {acc}, {ar(8*ks+4*dt2,4)}, {vr(hb,4)}, {cin}")
        if ks + NHS < 28:
            kn = ks + NHS
            if kn % 4 == 0:
                k.op("s_add_u32 s76, s76, 4096"); k.op("s_add_u32 s77, s77, 4096")
            g2_hload(k, kn)
        if ks == 7: epi_loads()
        if ks == 8: k.wait(vm="wd2")
        if 8 <= ks < 12: emit_lg_limited(k, wr2[4 * (ks - 8): 4 * (ks - 8) + 4] + wr2[16 + 0:16]) ;
        if ks == 16: y_loads()
    stamp(k, "d_loop")
    k.wait_all()
    k.op("s_barrier")
    RROW = 272; RW = 64 * RROW
    k.op("v_and_b32 v8, 31, v0")
    k.op(f"v_mul_u32_u24 v8, {RROW}, v8")
    k.op("v_lshrrev_b32 v9, 5, v0")
    k.op("v_lshl_add_u32 v8, v9, 4, v8")
    k.op(f"s_mul_i32 s{sT0}, s{sW}, {RW}")
    k.op(f"s_add_u32 s{sT0}, s{sT0}, {RED}")
    k.op(f"v_add_u32 v8, s{sT0}, v8")
    k.op("s_nop 4")
    for dt2 in range(2):
        for e in range(2):
            for g in range(4):
                if len(k.lgq) >= 12: k.wait(lg=k.lgq[5])
                A = vA2 + 16 * (2 * dt2 + e) + 4 * g
                k.lg(f"ds_write_b128 v8, {vr(A,4)} offset:{e*32*RROW + dt2*128 + g*32}", f"rw{dt2}{e}{g}")
    k.op(f"v_mov_b32 v10, {hex(f2u(-1.4426950408889634))}")
    k.op("v_mov_b32 v11, 1.0")
    k.wait_all()
    k.op("s_barrier")
    k.op(f"v_mul_u32_u24 v8, {RROW}, v5")
    k.op("v_lshl_add_u32 v8, v6, 5, v8")
    k.op(f"v_add_u32 v8, {RED}, v8")
    k.op("v_mul_u32_u24 v9, 1040, v6")
    k.op("v_lshl_add_u32 v9, v5, 1, v9")
    k.op(f"v_add_u32 v9, {YT}, v9")
    for ps in range(2):
        B = 16 + 64 * ps
        for w in range(4):
            for hh in range(2):
                if len(k.lgq) >= 12: k.wait(lg=k.lgq[5])
                k.lg(f"ds_read_b128 {vr(B + 8*w + 4*hh, 4)}, v8 offset:{w*RW + ps*32*RROW + hh*16}", f"p{ps}_{w}{hh}")
        for e in range(8): k.op(f"v_mov_b32 v{B+32+e}, 0")
        for e in range(8):
            if len(k.lgq) >= 12: k.wait(lg=k.lgq[5])
            k.lg(f"ds_read_u16_d16_hi v{B+32+e}, v9 offset:{e*128 + ps*64}", f"y{ps}_{e}")
    for ps in range(2):
        B = 16 + 64 * ps
        Yr = B + 32; T = B + 40
        k.wait(lg=[f"p{ps}_31", f"y{ps}_7"])
        for q in range(4):
            k.op(f"v_pk_add_f32 {vr(B+2*q,2)}, {vr(B+2*q,2)}, {vr(B+8+2*q,2)}")
            k.op(f"v_pk_add_f32 {vr(B+16+2*q,2)}, {vr(B+16+2*q,2)}, {vr(B+24+2*q,2)}")
        for q in range(4):
            k.op(f"v_pk_add_f32 {vr(B+2*q,2)}, {vr(B+2*q,2)}, {vr(B+16+2*q,2)}")
        for q in range(4):
            k.op(f"v_accvgpr_read_b32 v{T+q}, a{224+4*ps+q}")
        k.op(f"v_accvgpr_read_b32 v{T+4}, a{232+2*ps}")
        k.op(f"v_accvgpr_read_b32 v{T+5}, a{233+2*ps}")
        X = B + 8
        for q in range(4):
            k.op(f"v_lshlrev_b32 v{X+2*q}, 16, v{T+q}")
            k.op(f"v_and_b32 v{X+2*q+1}, s{sMASK}, v{T+q}")
        E = B + 16; N = B + 24
        for q in range(4):
            k.op(f"v_pk_mul_f32 {vr(E+2*q,2)}, {vr(B+2*q,2)}, {vr(10,2)} op_sel_hi:[1,0]")
            k.op(f"v_pk_fma_f32 {vr(N+2*q,2)}, {vr(X+2*q,2)}, {vr(T+4,2)}, {vr(T+4,2)} op_sel:[0,0,1] op_sel_hi:[1,0,1]")
        for q in range(8): k.op(f"v_exp_f32 v{E+q}, v{E+q}")
        for q in range(4): k.op(f"v_pk_mul_f32 {vr(N+2*q,2)}, {vr(N+2*q,2)}, {vr(Yr+2*q,2)}")
        for q in range(4): k.op(f"v_pk_add_f32 {vr(E+2*q,2)}, {vr(E+2*q,2)}, {vr(10,2)} op_sel:[0,1] op_sel_hi:[1,1]")
        for q in range(8): k.op(f"v_rcp_f32 v{E+q}, v{E+q}")
        for q in range(4): k.op(f"v_pk_mul_f32 {vr(N+2*q,2)}, {vr(N+2*q,2)}, {vr(B+2*q,2)}")
        for q in range(4): k.op(f"v_pk_fma_f32 {vr(N+2*q,2)}, {vr(N+2*q,2)}, {vr(E+2*q,2)}, {vr(X+2*q,2)}")
        for q in range(4): k.op(f"v_cvt_pk_bf16_f32 v{T+8+q}, v{N+2*q}, v{N+2*q+1}")
        k.vm(f"buffer_store_dwordx4 {vr(T+8,4)}, v7, s[{rOUT}:{rOUT+3}], s{78+ps} offen", "ost")
    stamp(k, "d_end")

PP_ROW = 900
PP_K = 0
PP_V = 67 * PP_ROW + 4
def prepass(k):
    k.op(f"s_sub_u32 s{sT0}, s{sSLOT}, 28")
    k.op(f"s_lshl_b32 s{sT0}, s{sT0}, 3")
    k.op(f"s_add_u32 s{sI}, s{sT0}, s{sXCD}")
    k.op("v_lshlrev_b32 v1, 4, v0")
    k.op("s_waitcnt lgkmcnt(0)")
    srd(k, rWS, sPWS, (16 << 20) if STAMPS else WS_USED)
    lab = k.newlabel("Lnolead")
    k.op(f"s_or_b32 s{sT0}, s{sI}, s{sW}")
    k.op(f"s_cmp_lg_u32 s{sT0}, 0")
    k.op(f"s_cbranch_scc1 {lab}")
    k.op("v_lshlrev_b32 v2, 7, v0")
    k.op(f"v_add_u32 v2, {CNT_OFF}, v2")
    k.op("v_mov_b32 v3, 0")
    k.op("s_mov_b32 exec_hi, 0")
    k.op(f"global_store_dword v2, v3, s[{sPWS}:{sPWS+1}] sc1")
    k.op("s_waitcnt vmcnt(0)")
    k.op("v_mov_b32 v2, 1")
    k.op("s_mov_b64 exec, 1")
    k.op(f"global_store_dword v3, v2, s[{sPDBG}:{sPDBG+1}] sc1")
    k.op("s_mov_b64 exec, -1")
    k.label(lab)
    srd(k, rK, sPK, S * D * 2)
    srd(k, rV, sPV, S * D * 2)
    srd(k, rSK, sPSK, D * 4 * 2)
    k.op("s_mov_b32 exec_hi, 0x00ffffff")
    k.op(f"s_lshl_b32 s{sT0}, s{sI}, 6")
    k.op(f"s_add_u32 s{sT0}, s{sT0}, s{sW}")
    k.op(f"s_sub_u32 s{sT1}, s{sT0}, 3")
    k.op(f"s_mul_i32 s{sT1}, s{sT1}, 896")
    k.op(f"s_mul_i32 s{sT2}, s{sW}, {PP_ROW}")
    k.op(f"s_add_u32 m0, s{sT2}, {PP_K}")
    k.op(f"v_add_u32 v2, s{sT1}, v1")
    for n in range(17):
        if n == 16:
            lab = k.newlabel("Lpk")
            k.op(f"s_cmp_eq_u32 s{sW}, 3")
            k.op(f"s_cbranch_scc1 {lab}")
            k.op(f"buffer_load_dwordx4 v2, s[{rK}:{rK+3}], 0 offen lds")
            k.label(lab)
        else:
            k.vm(f"buffer_load_dwordx4 v2, s[{rK}:{rK+3}], 0 offen lds", "k")
            k.op(f"s_add_u32 m0, m0, {4*PP_ROW}")
            k.op(f"v_add_u32 v2, {4*896}, v2")
    k.op(f"s_mul_i32 s{sT1}, s{sT0}, 896")
    k.op(f"s_add_u32 m0, s{sT2}, {PP_V}")
    k.op("s_nop 0")
    for n in range(16):
        k.vm(f"buffer_load_dwordx4 v1, s[{rV}:{rV+3}], s{sT1} offen lds", "v")
        if n < 15:
            k.op(f"s_add_u32 m0, m0, {4*PP_ROW}")
            k.op(f"s_add_u32 s{sT1}, s{sT1}, {4*896}")
    k.op("s_mov_b32 exec_hi, -1")
    k.op("v_and_b32 v2, 3, v0")
    k.op("v_lshrrev_b32 v3, 5, v0")
    k.op("v_lshl_add_u32 v2, v3, 2, v2")
    k.op("v_bfe_u32 v3, v0, 2, 3")
    k.op(f"v_mul_u32_u24 v4, {8*PP_ROW}, v2")
    k.op("v_lshl_add_u32 v4, v3, 2, v4")
    k.op(f"s_lshl_b32 s{sT0}, s{sW}, 5")
    k.op(f"v_add_u32 v4, s{sT0}, v4")
    k.op(f"v_add_u32 v8, {PP_V}, v4")
    k.op("v_lshlrev_b32 v5, 4, v3")
    k.op(f"s_lshl_b32 s{sT0}, s{sW}, 7")
    k.op(f"v_add_u32 v5, s{sT0}, v5")
    k.op("v_lshlrev_b32 v6, 13, v3")
    k.op(f"s_lshl_b32 s{sT0}, s{sW}, 16")
    k.op(f"v_add_u32 v6, s{sT0}, v6")
    k.op("v_lshlrev_b32 v7, 4, v2")
    k.op("v_sub_u32 v6, v6, v7")
    k.op(f"s_lshl_b32 s{sT0}, s{sI}, 7")
    k.op(f"s_sub_u32 s{sT0}, {U_OFF + (2047 - 7) * 2}, s{sT0}")
    k.op(f"v_add_u32 v6, s{sT0}, v6")
    for it in range(7):
        k.vm(f"buffer_load_dwordx4 {vr(100 + 4*it, 4)}, v5, s[{rSK}:{rSK+3}], 0 offen offset:{it*512}", "sk")
    k.wait_all()
    k.op("s_barrier")
    KR, VR = 16, 28
    for it in range(7):
        coff = it * 128
        for j in range(11):
            k.lg(f"ds_read_b32 v{KR+j}, v4 offset:{PP_K + j*PP_ROW + coff}", "kr")
        k.wait(lg="kr")
        for j in range(8):
            k.lg(f"ds_read_b32 v{VR+j}, v8 offset:{j*PP_ROW + coff}", "vr")
        for j in range(11):
            k.op(f"v_lshlrev_b32 v{40+2*j}, 16, v{KR+j}")
            k.op(f"v_and_b32 v{41+2*j}, 0xffff0000, v{KR+j}")
        sk = 100 + 4 * it
        k.op(f"v_lshlrev_b32 v64, 16, v{sk}");   k.op(f"v_lshlrev_b32 v65, 16, v{sk+2}")
        k.op(f"v_and_b32 v66, 0xffff0000, v{sk}"); k.op(f"v_and_b32 v67, 0xffff0000, v{sk+2}")
        k.op(f"v_lshlrev_b32 v68, 16, v{sk+1}"); k.op(f"v_lshlrev_b32 v69, 16, v{sk+3}")
        k.op(f"v_and_b32 v70, 0xffff0000, v{sk+1}"); k.op(f"v_and_b32 v71, 0xffff0000, v{sk+3}")
        k.wait(lg="vr")
        for j in range(8):
            k.op(f"v_lshlrev_b32 v{72+2*j}, 16, v{VR+j}")
            k.op(f"v_and_b32 v{73+2*j}, 0xffff0000, v{VR+j}")
        for t in range(8):
            k.op(f"v_pk_mul_f32 {vr(130+2*t,2)}, {vr(40+2*(t+3),2)}, {vr(64,2)}")
        for j in range(1, 4):
            for t in range(8):
                o = 130 + 2 * t
                k.op(f"v_pk_fma_f32 {vr(o,2)}, {vr(40+2*(t+3-j),2)}, {vr(64+2*j,2)}, {vr(o,2)}")
        for t in range(8):
            o = 130 + 2 * t
            k.op(f"v_pk_mul_f32 {vr(o,2)}, {vr(o,2)}, {vr(72+2*t,2)}")
        O = 150 + 8 * (it % 2)
        for q in range(4):
            k.op(f"v_cvt_pk_bf16_f32 v{O+q}, v{130+2*(7-2*q)}, v{130+2*(6-2*q)}")
            k.op(f"v_cvt_pk_bf16_f32 v{O+4+q}, v{131+2*(7-2*q)}, v{131+2*(6-2*q)}")
        k.op(f"s_mov_b32 s{sT0}, {it * 64 * 4096}")
        k.op(f"s_mov_b32 s{sT1}, {it * 64 * 4096 + 4096}")
        k.vm(f"buffer_store_dwordx4 {vr(O,4)}, v6, s[{rWS}:{rWS+3}], s{sT0} offen sc1", "ust")
        k.vm(f"buffer_store_dwordx4 {vr(O+4,4)}, v6, s[{rWS}:{rWS+3}], s{sT1} offen sc1", "ust")
    k.wait_all()
    k.op("s_barrier")
    lab = k.newlabel("Lpsig")
    k.op(f"s_cmp_lg_u32 s{sW}, 0")
    k.op(f"s_cbranch_scc1 {lab}")
    k.op("v_mov_b32 v9, 0")
    spin_until(k, 9, 8, sPDBG, 1)
    k.label(lab)
    cnt_addr(k, 9, idx=UCNT)
    signal(k, 9, 8)

def kd(name, vgpr=512, acc=256):
    return f""".section .rodata,"a"
.p2align 6
.amdhsa_kernel {name}
  .amdhsa_next_free_vgpr {vgpr}
  .amdhsa_next_free_sgpr 102
  .amdhsa_accum_offset {acc}
  .amdhsa_group_segment_fixed_size 0
  .amdhsa_kernarg_size 104
  .amdhsa_user_sgpr_count 2
  .amdhsa_user_sgpr_kernarg_segment_ptr 1
  .amdhsa_system_sgpr_workgroup_id_x 1
  .amdhsa_float_denorm_mode_32 3
.end_amdhsa_kernel
"""

def build():
    k = K()
    prologue(k, 32768)
    start_main(k)
    gemm1_loop(k)
    gelu_phase(k)
    conv_phase(k)
    gemm2_phase(k)
    for o in OPT:
        if o.startswith("until"):
            n = int(o[5:])
            k.op(f"s_add_u32 s10, s73, {n}")
            k.label("L_until")
            k.op("s_memrealtime s[8:9]")
            k.op("s_waitcnt lgkmcnt(0)")
            k.op("s_sub_u32 s11, s10, s8")
            k.op("s_cmp_gt_i32 s11, 0")
            k.op("s_cbranch_scc1 L_until")
        if o.startswith("delay"):
            n = int(o[5:])
            k.op("s_memtime s[8:9]")
            k.op("s_waitcnt lgkmcnt(0)")
            k.op(f"s_add_u32 s10, s8, {n}")
            k.label("L_delay")
            k.op("s_memtime s[8:9]")
            k.op("s_waitcnt lgkmcnt(0)")
            k.op("s_sub_u32 s11, s10, s8")
            k.op("s_cmp_gt_i32 s11, 0")
            k.op("s_cbranch_scc1 L_delay")
    stamp_flush(k)
    k.op("s_endpgm")
    k.label("L_pre")
    k.vmq = []; k.lgq = []
    prepass(k)
    k.label("L_exit")
    name = NAME + "_kernel"
    header = open("cdna_kernels/" + NAME + ".s.ref").read().split("; Override launch")[0]
    txt = header + f"; @launch grid=(256,1,1) block=(256,1,1) lds={LDS_TOTAL}\n"
    txt += '.amdgcn_target "amdgcn-amd-amdhsa--gfx950"\n.text\n'
    txt += f".globl {name}\n.p2align 8\n.type {name},@function\n{name}:\n"
    txt += k.text() + "s_endpgm\n" + kd(name)
    return txt

if __name__ == "__main__":
    if len(sys.argv) > 2 and sys.argv[2].startswith("stamps"):
        STAMPS = True
        if "=" in sys.argv[2]: STAMPSET = sys.argv[2].split("=")[1].split(",")
    if len(sys.argv) > 3: OPT.update(sys.argv[3].split(","))
    txt = build()
    check_hazards(txt)
    open(sys.argv[1], "w").write(txt)
    if STAMPS: print("stamps:", stamped)
```

```python
import sys, struct
from asmlib import *

NAME = "recurrent_scan__ssm_conv_h3__geglu_ffn__prompt"
S, D, F = 2048, 448, 1792
OPT = set()

H_OFF = 0
U_OFF = H_OFF + 64 * 112 * 1024
Y_OFF = U_OFF + D * 4096
ST_OFF = Y_OFF + D * 4096
CNT_OFF = ST_OFF + S * 8
WS_USED = CNT_OFF + 32 * 128
HCNT, YCNT, UCNT = 0, 16, 24

sPQ, sPK, sPV, sPSK, sPSSM, sPD, sPBX, sPWG = 16, 18, 20, 22, 24, 26, 28, 30
sPWU, sPWD, sPOUT, sPDBG = 32, 34, 36, 38
sPWS = 40
rX, rW, rWS, rWD, rSSM, rOUT, rD = 44, 48, 52, 56, 60, 64, 68
rK, rV, rSK = 48, 56, 60
sT0, sT1, sT2, sT3 = 4, 5, 6, 7
sW, sI, sJ, sWSO, sWM0, sSLOT, sXCD, sONES, sMASK, sWGM = 80, 81, 82, 83, 84, 85, 86, 87, 88, 89
sTT, sDT, sWDS, sWDM, sCH = 90, 91, 92, 93, 94
sHST = 95
sWDG = 75
sROT = 43
sHG = 74
sU0, sU1, sU2, sU3 = 96, 97, 98, 99

SLOT_SZ = 34048
XOFF = 17024
XS = SLOT_SZ
XROW = 912
SLOT = [0, SLOT_SZ, 2 * SLOT_SZ, 3 * SLOT_SZ]
LDS_TOTAL = 163840
HC_STRIDE = 4160
HC_CH = 4 * HC_STRIDE
UR_CH = 4608
WDST = 0
WD_KS = 14
WD_WAVE = WD_KS * 2048
HC = 4 * WD_WAVE
assert HC >= SLOT[3]
UR = HC + 2 * HC_CH
XCH = HC
YT = UR + 2 * UR_CH
assert YT + 8320 <= LDS_TOTAL or True
YT = HC + 16384
RED = 0

vX = 16
vACC = 128

STAMPS = False
STAMP_OFF = 12 << 20
STAMPSET = None
POOL = [16, 18, 20, 22, 24, 26, 28, 30, 32, 34, 36, 72, 8, 10, 12, 14]
stamped = []
def stamp(k, name=""):
    if not STAMPS: return
    if STAMPSET is not None and not any(name.startswith(p) for p in STAMPSET): return
    i = len(stamped)
    assert i < len(POOL)
    stamped.append(name)
    k.op(f"s_memtime s[{POOL[i]}:{POOL[i]+1}]")
def stamp_flush(k):
    if not STAMPS: return
    k.op("s_waitcnt vmcnt(0) lgkmcnt(0)")
    k.op("s_memrealtime s[42:43]")
    k.op("s_waitcnt lgkmcnt(0)")
    k.op("s_mov_b32 s101, s42")
    k.op("s_lshl_b32 s4, s2, 2")
    k.op(f"s_add_u32 s4, s4, s{sW}")
    k.op("s_lshl_b32 s4, s4, 7")
    k.op(f"s_add_u32 s4, s4, {STAMP_OFF}")
    k.op("v_mov_b32 v1, 0")
    k.op("s_mov_b64 exec, 1")
    for i in range(len(stamped)):
        k.op(f"v_mov_b32 v2, s{POOL[i]}")
        k.op(f"buffer_store_dword v2, v1, s[{rWS}:{rWS+3}], s4 offen offset:{4*i}")
    k.op("v_mov_b32 v2, s100")
    k.op(f"buffer_store_dword v2, v1, s[{rWS}:{rWS+3}], s4 offen offset:{4*30}")
    k.op("v_mov_b32 v2, s101")
    k.op(f"buffer_store_dword v2, v1, s[{rWS}:{rWS+3}], s4 offen offset:{4*31}")
    k.op("s_mov_b64 exec, -1")

def f2u(x):
    return struct.unpack("<I", struct.pack("<f", x))[0]

def srd(k, r, ptr, nbytes):
    k.op(f"s_mov_b32 s{r}, s{ptr}")
    k.op(f"s_and_b32 s{r+1}, s{ptr+1}, 0xffff")
    k.op(f"s_mov_b32 s{r+2}, {nbytes}")
    k.op(f"s_mov_b32 s{r+3}, 0x20000")

def emit(k, items):
    for it in items:
        if it[0] == "op": k.op(it[1])
        elif it[0] == "vm": k.vm(it[1], it[2])
        elif it[0] == "lg": k.lg(it[1], it[2])
        elif it[0] == "fn": it[1]()

def capture(fn, *args):
    t = K()
    fn(t, *args)
    assert not t.vmq and not t.lgq
    return [("op", l) for l in t.L]

def interleave(k, main, fill, every, start=0):
    fill = list(fill)
    for n, it in enumerate(main):
        emit(k, [it])
        if fill and n >= start and (n - start) % every == every - 1:
            emit(k, fill.pop(0))
    for g in fill: emit(k, g)

def cnt_addr(k, vreg, idx_sgpr=None, idx=0):
    if idx_sgpr is None:
        k.op(f"v_mov_b32 v{vreg}, {CNT_OFF + idx * 128}")
    else:
        k.op(f"s_lshl_b32 s{sT0}, s{idx_sgpr}, 7")
        k.op(f"s_add_u32 s{sT0}, s{sT0}, {CNT_OFF + idx * 128}")
        k.op(f"v_mov_b32 v{vreg}, s{sT0}")

def spin_until(k, vaddr, vtmp, base, target, cmp="ge"):
    lab, done = k.newlabel("Lspin"), k.newlabel("Lspun")
    k.op(f"s_mov_b32 s{sT1}, 0x40000")
    k.label(lab)
    k.op(f"global_load_dword v{vtmp}, v{vaddr}, s[{base}:{base+1}] sc1")
    k.op("s_waitcnt vmcnt(0)")
    k.op(f"v_readfirstlane_b32 s{sT2}, v{vtmp}")
    k.op(f"s_sub_u32 s{sT1}, s{sT1}, 1")
    k.op(f"s_cmp_ge_u32 s{sT2}, {target}")
    k.op(f"s_cbranch_scc1 {done}")
    k.op("s_sleep 1")
    k.op(f"s_cmp_lg_u32 s{sT1}, 0")
    k.op(f"s_cbranch_scc1 {lab}")
    k.label(done)
    k.vmq = []

def check_or_spin(k, vval, vaddr, base, target):
    done = k.newlabel("Lok")
    k.op(f"v_readfirstlane_b32 s{sT2}, v{vval}")
    k.op(f"s_cmp_ge_u32 s{sT2}, {target}")
    k.op(f"s_cbranch_scc1 {done}")
    q = list(k.vmq)
    spin_until(k, vaddr, vval, base, target)
    k.vmq = q
    k.label(done)

def signal(k, vaddr, vone):
    lab = k.newlabel("Lsig")
    k.op(f"s_cmp_lg_u32 s{sW}, 0")
    k.op(f"s_cbranch_scc1 {lab}")
    k.op(f"v_mov_b32 v{vone}, 1")
    k.op("s_mov_b64 exec, 1")
    k.op(f"global_atomic_add v{vaddr}, v{vone}, s[{sPWS}:{sPWS+1}] sc1")
    k.op("s_mov_b64 exec, -1")
    k.label(lab)

def prologue(k, codebytes):
    if any(o.startswith("until") for o in OPT):
        k.op("s_memrealtime s[72:73]")
        k.op("s_waitcnt lgkmcnt(0)")
        k.op("s_mov_b32 s73, s72")
    k.op("s_getpc_b64 s[12:13]")
    k.op("s_load_dwordx16 s[16:31], s[0:1], 0")
    k.op("s_load_dwordx8 s[32:39], s[0:1], 64")
    k.op("s_load_dwordx2 s[40:41], s[0:1], 96")
    k.op("v_lshrrev_b32 v1, 6, v0")
    k.op("v_and_b32 v0, 63, v0")
    k.op("s_cmp_ge_u32 s2, 256")
    k.op(f"v_readfirstlane_b32 s{sW}, v1")
    k.op("s_cbranch_scc1 L_exit")
    if "nocodepf" not in OPT:
        k.op("s_lshr_b32 s14, s2, 3")
        k.op("s_lshl_b32 s14, s14, 2")
        k.op(f"s_add_u32 s14, s14, s{sW}")
        k.op("s_mul_i32 s14, s14, 384")
        k.op("s_add_u32 s12, s12, s14")
        k.op("s_addc_u32 s13, s13, 0")
        k.op("v_lshlrev_b32 v2, 7, v0")
        k.op("s_mov_b64 exec, 7")
        k.vm("global_load_dword a250, v2, s[12:13]", "code")
        k.op("s_mov_b64 exec, -1")
        assert codebytes <= 128 * 384
    if STAMPS:
        k.op("s_memrealtime s[42:43]")
        k.op("s_waitcnt lgkmcnt(0)")
        k.op("s_mov_b32 s100, s42")
    k.op(f"s_and_b32 s{sXCD}, s2, 7")
    k.op(f"s_lshr_b32 s{sSLOT}, s2, 3")
    k.op(f"s_cmp_ge_u32 s{sSLOT}, 28")
    k.op("s_cbranch_scc1 L_pre")

def wdma(c, e):
    out = []
    if e % 4 == 0:
        out.append(("op", f"s_add_u32 m0, s{sWM0}, {SLOT[c % 4] + e * 1056}"))
    out.append(("op", f"s_add_u32 s{sT3}, s{sWSO}, {(64 * c + e) * 3584 - (e % 4) * 1056}"))
    out.append(("vm", f"buffer_load_dwordx4 v2, s[{rW}:{rW+3}], s{sT3} offen offset:{(e % 4) * 1056} lds", f"w{c}"))
    return out

def start_main(k):
    k.op(f"s_mul_i32 s{sT0}, s{sSLOT}, 37")
    k.op(f"s_lshr_b32 s{sT0}, s{sT0}, 8")
    k.op(f"s_mul_i32 s{sT1}, s{sT0}, 7")
    k.op(f"s_sub_u32 s{sDT}, s{sSLOT}, s{sT1}")
    k.op(f"s_lshr_b32 s{sT2}, s{sXCD}, 1")
    k.op(f"s_lshl_b32 s{sT2}, s{sT2}, 2")
    k.op(f"s_add_u32 s{sI}, s{sT2}, s{sT0}")
    k.op(f"s_lshl_b32 s{sTT}, s{sXCD}, 2")
    k.op(f"s_add_u32 s{sTT}, s{sTT}, s{sT0}")
    k.op("v_lshlrev_b32 v1, 4, v0")
    k.op(f"s_lshl_b32 s{sU0}, s{sI}, 2")
    k.op(f"s_add_u32 s{sU0}, s{sU0}, s{sW}")
    k.op(f"s_mul_i32 s{sU0}, s{sU0}, {32*896}")
    k.op(f"s_mul_i32 s{sU1}, s{sW}, {32*XROW}")
    k.op(f"s_add_u32 s{sU1}, s{sU1}, {XS}")
    k.op(f"s_mul_i32 s{sU2}, s{sDT}, 9")
    k.op(f"s_lshr_b32 s{sU2}, s{sU2}, 1")
    k.op(f"s_mul_i32 s{sT1}, s{sU2}, 896")
    k.op(f"s_mul_i32 s{sT2}, s{sU2}, {XROW}")
    k.op(f"s_add_u32 s{sT1}, s{sT1}, s{sU0}")
    k.op(f"s_add_u32 s{sT2}, s{sT2}, s{sU1}")
    k.op(f"s_add_u32 s{sU3}, s{sU0}, {32*896}")
    k.op(f"s_and_b32 s{sT0}, s{sXCD}, 1")
    k.op(f"s_mul_i32 s{sJ}, s{sT0}, 7")
    k.op(f"s_add_u32 s{sJ}, s{sJ}, s{sDT}")
    k.op("s_waitcnt lgkmcnt(0)")
    srd(k, rX, sPQ, S * D * 2)
    k.op(f"s_bitcmp1_b32 s{sW}, 0")
    k.op(f"s_cselect_b32 s{rW}, s{sPWU}, s{sPWG}")
    k.op(f"s_cselect_b32 s{rW+1}, s{sPWU+1}, s{sPWG+1}")
    k.op(f"s_and_b32 s{rW+1}, s{rW+1}, 0xffff")
    k.op(f"s_mov_b32 s{rW+2}, {D*F*2}")
    k.op(f"s_mov_b32 s{rW+3}, 0x20000")
    stamp(k, "start")
    k.op("s_mov_b32 exec_hi, 0x00ffffff")
    k.op(f"s_mov_b32 s{sT0}, 32")
    lx = k.newlabel("Lxd")
    k.label(lx)
    k.op(f"s_mov_b32 m0, s{sT2}")
    k.op(f"s_add_u32 s{sT2}, s{sT2}, {XROW}")
    k.op(f"buffer_load_dwordx4 v1, s[{rX}:{rX+3}], s{sT1} offen lds")
    k.op(f"s_add_u32 s{sT1}, s{sT1}, 896")
    k.op(f"s_cmp_eq_u32 s{sT1}, s{sU3}")
    k.op(f"s_cselect_b32 s{sT1}, s{sU0}, s{sT1}")
    k.op(f"s_cselect_b32 s{sT2}, s{sU1}, s{sT2}")
    k.op(f"s_sub_u32 s{sT0}, s{sT0}, 1")
    k.op(f"s_cmp_lg_u32 s{sT0}, 0")
    k.op(f"s_cbranch_scc1 {lx}")
    for n in range(32): k.vmq.append("x")
    k.op("s_mov_b32 exec_hi, -1")
    stamp(k, "a_xiss")
    k.op("v_lshrrev_b32 v10, 4, v0")
    k.op(f"v_mul_u32_u24 v2, {16*3584}, v10")
    k.op("v_and_b32 v11, 15, v0")
    k.op("v_lshl_add_u32 v2, v11, 4, v2")
    k.op(f"s_lshr_b32 s{sT0}, s{sW}, 1")
    k.op(f"s_lshl_b32 s{sT0}, s{sT0}, 3")
    k.op(f"s_mul_i32 s{sWSO}, s{sT0}, 3584")
    k.op(f"s_lshl_b32 s{sT1}, s{sJ}, 8")
    k.op(f"s_add_u32 s{sWSO}, s{sWSO}, s{sT1}")
    k.op(f"s_mul_i32 s{sWM0}, s{sT0}, 1056")
    k.op(f"s_and_b32 s{sT1}, s{sW}, 1")
    k.op(f"s_mul_i32 s{sT1}, s{sT1}, {XOFF}")
    k.op(f"s_add_u32 s{sWM0}, s{sWM0}, s{sT1}")
    k.op("v_lshrrev_b32 v6, 4, v0")
    k.op("v_lshlrev_b32 v6, 6, v6")
    k.op("v_bfe_u32 v7, v0, 1, 3")
    k.op("v_add_u32 v6, v6, v7")
    k.op("v_mul_u32_u24 v6, 3584, v6")
    k.op("v_and_b32 v7, 1, v0")
    k.op("v_lshl_add_u32 v5, v7, 7, v6")
    k.op(f"s_and_b32 s{sT0}, s{sI}, 3")
    k.op(f"s_lshl_b32 s{sT0}, s{sT0}, 1")
    k.op(f"s_lshr_b32 s{sT1}, s{sW}, 1")
    k.op(f"s_add_u32 s{sT0}, s{sT0}, s{sT1}")
    k.op(f"s_mul_i32 s{sT0}, s{sT0}, {8*3584}")
    k.op(f"s_lshl_b32 s{sT1}, s{sJ}, 8")
    k.op(f"s_add_u32 s{sU2}, s{sT0}, s{sT1}")
    for e in range(8): emit(k, wdma(0, e))
    stamp(k, "a_issued")
    k.op(f"s_mul_i32 s{sWGM}, s{sXCD}, 28")
    k.op(f"s_add_u32 s{sWGM}, s{sWGM}, s{sSLOT}")
    srd(k, rWS, sPWS, (16 << 20) if STAMPS else WS_USED)
    srd(k, rWD, sPWD, F * D * 2)
    srd(k, rSSM, sPSSM, D * S * 2)
    srd(k, rOUT, sPOUT, S * D * 2)
    srd(k, rD, sPD, D * 2)
    k.op("v_and_b32 v11, 1, v10")
    k.op(f"v_mul_u32_u24 v3, {XOFF}, v11")
    k.op("v_lshrrev_b32 v11, 5, v0")
    k.op("v_lshlrev_b32 v12, 3, v11")
    k.op("v_bfe_u32 v13, v0, 2, 2")
    k.op("v_add_u32 v12, v12, v13")
    k.op("v_mul_u32_u24 v12, 1056, v12")
    k.op("v_add_u32 v3, v3, v12")
    k.op("v_and_b32 v13, 3, v0")
    k.op("v_lshl_add_u32 v3, v13, 3, v3")
    k.op(f"v_add_u32 v14, {2*SLOT_SZ}, v3")
    k.op("v_and_b32 v13, 31, v0")
    k.op(f"s_lshl_b32 s{sT0}, s{sW}, 5")
    k.op(f"v_add_u32 v13, s{sT0}, v13")
    k.op(f"v_mul_u32_u24 v15, {XROW}, v13")
    k.op("v_lshl_add_u32 v15, v11, 4, v15")
    k.op(f"v_add_u32 v15, {XS}, v15")
    k.op(f"s_mov_b32 s{sONES}, 0x3f803f80")
    k.op(f"s_mov_b32 s{sMASK}, 0xffff0000")
    for a in range(8): k.op(f"v_mov_b32 v{6+a}, 0")
    k.wait(vm="x")
    stamp(k, "a_xarr")
    def st(n):
        return [("op", f"v_dot2_f32_bf16 v{6 + n % 4}, v{vX+n}, s{sONES}, v{6 + n % 4}"),
                ("op", f"v_dot2_f32_bf16 v{10 + n % 4}, v{vX+n}, v{vX+n}, v{10 + n % 4}")]
    for ks in range(14):
        k.lg(f"ds_read_b128 {vr(vX + 4 * ks, 4)}, v15 offset:{32 * ks}", f"x{ks}")
    for ks in range(14, 28):
        k.wait(lg=f"x{ks-14}")
        k.lg(f"ds_read_b128 {vr(vX + 4 * ks, 4)}, v15 offset:{32 * ks}", f"x{ks}")
        for q in range(4): emit(k, st(4 * (ks - 14) + q))
        if ks == 15 and "nopf" not in OPT:
            k.vm(f"buffer_load_dword a250, v5, s[{rW}:{rW+3}], s{sU2} offen", "pf")
    k.wait(lg="x27")
    k.op("s_barrier")
    stamp(k, "a_xreg")
    main = []
    for n in range(56, 112): main += st(n)
    fill = [wdma(1, e) for e in range(8)]
    if "nopf" not in OPT:
        fill.append([("op", f"s_add_u32 s{sU2}, s{sU2}, {256*3584}"),
                        ("vm", f"buffer_load_dword a250, v5, s[{rW}:{rW+3}], s{sU2} offen", "pf")])
    interleave(k, main, fill, 11)
    k.op("s_nop 2")
    k.op("v_add_f32 v6, v6, v7"); k.op("v_add_f32 v8, v8, v9")
    k.op("v_add_f32 v10, v10, v11"); k.op("v_add_f32 v12, v12, v13")
    k.op("v_add_f32 v6, v6, v8"); k.op("v_add_f32 v10, v10, v12")
    k.op("v_mov_b32 v7, v6"); k.op("v_mov_b32 v11, v10")
    k.op("s_nop 1")
    k.op("v_permlane32_swap_b32 v6, v7"); k.op("v_permlane32_swap_b32 v10, v11")
    k.op("s_nop 1")
    k.op("v_add_f32 v6, v6, v7"); k.op("v_add_f32 v10, v10, v11")
    k.op(f"v_mul_f32 v6, {hex(f2u(1.0/448))}, v6")
    k.op(f"v_mul_f32 v10, {hex(f2u(1.0/448))}, v10")
    k.op("v_fma_f32 v10, -v6, v6, v10")
    k.op("v_max_f32 v10, 0, v10")
    k.op("v_cvt_pk_bf16_f32 v7, v6, v10")
    k.op("v_lshlrev_b32 v6, 16, v7")
    k.op(f"v_and_b32 v10, s{sMASK}, v7")
    k.op(f"v_add_f32 v10, {hex(f2u(1e-5))}, v10")
    k.op("v_cvt_pk_bf16_f32 v10, v10, v10")
    k.op("v_lshlrev_b32 v10, 16, v10")
    k.op("v_sqrt_f32 v10, v10")
    k.op("s_nop 0")
    k.op("v_cvt_pk_bf16_f32 v10, v10, v10")
    k.op("v_lshlrev_b32 v10, 16, v10")
    k.op("v_rcp_f32 v4, v10")
    k.op("s_nop 0")
    k.op("v_mul_f32 v5, v6, v4")
    k.op("v_sub_f32 v5, 0, v5")
    lab = k.newlabel("Lnost")
    k.op(f"s_cmp_lg_u32 s{sJ}, 0")
    k.op(f"s_cbranch_scc1 {lab}")
    k.op(f"s_lshl_b32 s{sT0}, s{sI}, 2")
    k.op(f"s_add_u32 s{sT0}, s{sT0}, s{sW}")
    k.op(f"s_lshl_b32 s{sT0}, s{sT0}, 8")
    k.op(f"s_add_u32 s{sT0}, s{sT0}, {ST_OFF}")
    k.op("v_lshlrev_b32 v6, 3, v0")
    k.op("s_mov_b32 exec_hi, 0")
    k.op(f"buffer_store_dwordx2 v[4:5], v6, s[{rWS}:{rWS+3}], s{sT0} offen sc1")
    k.op("s_mov_b32 exec_hi, -1")
    k.label(lab)

def norm(n, tp):
    t = 6 + 2 * tp
    return [("op", f"v_lshlrev_b32 v{t}, 16, v{vX+n}"),
            ("op", f"v_and_b32 v{t+1}, s{sMASK}, v{vX+n}"),
            ("op", f"v_fma_f32 v{t}, v{t}, v4, v5"),
            ("op", f"v_fma_f32 v{t+1}, v{t+1}, v4, v5"),
            ("op", f"v_cvt_pk_bf16_f32 v{vX+n}, v{t}, v{t+1}")]
def norm_step(ks):
    a = [norm(4 * ks + q, q) for q in range(4)]
    out = []
    for s in range(5):
        for q in range(4): out.append(a[q][s])
    return out

def hc_dma(q):
    rr, qq = divmod(q, 4)
    out = []
    if qq == 0:
        out.append(("op", f"s_add_u32 m0, s{sU0}, {rr * HC_STRIDE}"))
        out.append(("op", f"s_add_u32 s{sU2}, s{sU1}, {rr * 2}"))
    out.append(("vm", f"buffer_load_dwordx4 v1, s[{rSSM}:{rSSM+3}], s{sU2} offen offset:{qq*1024} lds", "hc"))
    return out

def gemm1_loop(k):
    emit(k, norm_step(0))
    k.op(f"s_lshr_b32 s{sT0}, s{sW}, 1")
    k.op(f"s_lshl_b32 s{sCH}, s{sWGM}, 1")
    k.op(f"s_add_u32 s{sCH}, s{sCH}, s{sT0}")
    k.op(f"s_and_b32 s{sT1}, s{sW}, 1")
    k.op(f"s_lshl_b32 s{sT1}, s{sT1}, 1")
    k.op(f"s_mul_i32 s{sU0}, s{sT0}, {HC_CH}")
    k.op(f"s_mul_i32 s{sT3}, s{sT1}, {HC_STRIDE}")
    k.op(f"s_add_u32 s{sU0}, s{sU0}, s{sT3}")
    k.op(f"s_add_u32 s{sU0}, s{sU0}, {HC + 32}")
    k.op(f"s_lshl_b32 s{sU1}, s{sCH}, 12")
    k.op(f"s_lshl_b32 s{sT1}, s{sT1}, 1")
    k.op(f"s_add_u32 s{sU1}, s{sU1}, s{sT1}")
    k.op(f"s_add_u32 s{sU1}, s{sU1}, 2")
    k.wait(vm="w0")
    k.op("s_barrier")
    stamp(k, "a_stats")
    NF = 8; DIST = 7; NM = 224
    def rd(n):
        ks, mt = divmod(n, 8)
        c, kk = divmod(ks, 4)
        sl = c % 4
        base = "v3" if sl < 2 else "v14"
        off = (SLOT_SZ if sl % 2 else 0) + kk * 256 + mt * 32
        f = 4 * (n % NF)
        return [("lg", f"ds_read_b64_tr_b16 {ar(f, 2)}, {base} offset:{off}", f"f{n}"),
                ("lg", f"ds_read_b64_tr_b16 {ar(f + 2, 2)}, {base} offset:{off + 4 * 1056}", f"f{n}")]
    for n in range(DIST): emit(k, rd(n))
    extra = {}
    k.op(f"s_lshl_b32 s{sT0}, s{sSLOT}, 2")
    k.op(f"s_add_u32 s{sT0}, s{sT0}, s{sW}")
    k.op(f"s_mul_i32 s{sU3}, s{sT0}, {112*128}")
    k.op("v_lshlrev_b32 v15, 7, v0")
    def wd_pf(piece):
        return [("op", "s_mov_b64 exec, 0xffff"),
                ("vm", f"buffer_load_dword a250, v15, s[{rWD}:{rWD+3}], s{sU3} offen offset:{piece*2048}", "pf"),
                ("op", "s_mov_b64 exec, -1")]
    if "nopf" not in OPT:
        for p in range(7):
            if p < 2: extra[5 + 3 * p] = wd_pf(p)
            else:
                extra[5 + 3 * p] = [("op", f"s_add_u32 s{sU3}, s{sU3}, 2048"), ("op", "s_mov_b64 exec, 0xffff"),
                    ("vm", f"buffer_load_dword a250, v15, s[{rWD}:{rWD+3}], s{sU3} offen offset:2048", "pf"), ("op", "s_mov_b64 exec, -1")]
    extra[24] = [("op", "s_mov_b64 exec, 1"),
                 ("vm", f"global_load_dword a40, v15, s[{sPDBG}:{sPDBG+1}] sc1", "init"),
                 ("op", "s_mov_b64 exec, -1")]
    tailfill = capture(g2_setup)
    for n in range(NM):
        ks, mt = divmod(n, 8)
        c, kk = divmod(ks, 4)
        if n % 32 == 0: stamp(k, f"g_c{n//32}")
        if n % 4 == 0:
            k.wait(lg=[f"f{n+i}" for i in range(4)])
        f = 4 * (n % NF)
        acc = vr(vACC + 16 * mt, 16)
        cin = "0" if ks == 0 else acc
        k.op(f"v_mfma_f32_32x32x16_bf16 {acc}, {ar(f, 4)}, {vr(vX + 4 * ks, 4)}, {cin}")
        nn = n + DIST
        if nn < NM:
            if nn % 32 == 0:
                k.wait(vm=f"w{nn // 32}")
                k.op("s_barrier")
            emit(k, rd(nn))
        if ks + 1 < 28:
            st = norm_step(ks + 1)
            cut = [0, 3, 6, 9, 12, 15, 18, 20, 20]
            emit(k, st[cut[mt]: cut[mt + 1]])
        if c == 0 and mt in (3, 5, 6, 7):
            e = 4 * (kk % 2) + (3, 5, 6, 7).index(mt)
            emit(k, wdma(2 + kk // 2, e))
        if ks == 27:
            lo_, hi_ = (len(tailfill) * mt) // 8, (len(tailfill) * (mt + 1)) // 8
            emit(k, tailfill[lo_:hi_])
        if mt in (6, 7):
            e = 2 * kk + (mt - 6)
            if c >= 1 and c + 3 < 7: emit(k, wdma(c + 3, e))
            if c in (4, 5) and mt == 7:
                q = (c - 4) * 4 + kk
                emit(k, hc_dma(q))
        if mt == 7 and ks in extra: emit(k, extra[ks])
    stamp(k, "g_end")

def g2_setup(k):
    k.op(f"s_and_b32 s{sT0}, s{sTT}, 3")
    k.op(f"s_lshl_b32 s{sT0}, s{sT0}, 1")
    k.op(f"s_add_u32 s{sROT}, s{sT0}, s{sDT}")
    k.op(f"s_cmp_ge_u32 s{sROT}, 7")
    k.op(f"s_cselect_b32 s{sT0}, 7, 0")
    k.op(f"s_sub_u32 s{sROT}, s{sROT}, s{sT0}")
    k.op("v_lshrrev_b32 v3, 3, v0")
    k.op("v_mul_u32_u24 v2, 896, v3")
    k.op("v_bfe_u32 v3, v0, 4, 1")
    k.op("v_lshlrev_b32 v3, 2, v3")
    k.op("v_and_b32 v4, 7, v0")
    k.op("v_xor_b32 v3, v3, v4")
    k.op("v_lshl_add_u32 v2, v3, 4, v2")
    k.op(f"s_mul_i32 s{sWDS}, s{sW}, {16*28*896}")
    k.op(f"s_lshl_b32 s{sT0}, s{sDT}, 7")
    k.op(f"s_add_u32 s{sWDS}, s{sWDS}, s{sT0}")
    k.op(f"s_sub_u32 s{sWDS}, s{sWDS}, 4096")
    k.op(f"s_mul_i32 s{sWDM}, s{sW}, {WD_WAVE}")
    k.op(f"s_add_u32 s{sWDM}, s{sWDM}, {WDST}")
    k.op("v_lshrrev_b32 v5, 5, v0")
    k.op("v_bfe_u32 v6, v0, 2, 2")
    k.op("v_lshl_add_u32 v5, v5, 2, v6")
    k.op("v_lshlrev_b32 v5, 7, v5")
    k.op("v_bfe_u32 v7, v0, 4, 1")
    k.op("v_lshl_add_u32 v5, v7, 5, v5")
    k.op("v_and_b32 v7, 3, v0")
    k.op("v_lshl_add_u32 v5, v7, 3, v5")
    k.op(f"v_add_u32 v5, s{sWDM}, v5")
    k.op("v_bfe_u32 v6, v0, 3, 1")
    k.op("v_lshlrev_b32 v6, 6, v6")
    k.op("v_add_u32 v3, v5, v6")
    k.op("v_xor_b32 v6, 64, v6")
    k.op("v_add_u32 v4, v5, v6")

def wd_group_base(g):
    return [("op", f"s_add_u32 s{sT3}, s{sROT}, {g}"),
            ("op", f"s_cmp_ge_u32 s{sT3}, 7"),
            ("op", f"s_cselect_b32 s{sWDG}, 7, 0"),
            ("op", f"s_sub_u32 s{sT3}, s{sT3}, s{sWDG}"),
            ("op", f"s_mul_i32 s{sT3}, s{sT3}, {64*896}"),
            ("op", f"s_add_u32 s{sWDG}, s{sT3}, s{sWDS}")]
def wd_dma_groups(ks0, ks1, tag):
    out = []
    q = 0
    for ks in range(ks0, ks1):
        for hh in range(2):
            g = []
            if ks % 4 == 0 and hh == 0: g += wd_group_base(ks // 4)
            if q % 4 == 0:
                g.append(("op", f"s_add_u32 m0, s{sWDM}, {(q // 4) * 4096}"))
            g.append(("op", f"s_add_u32 s{sT3}, s{sWDG}, {(16 * (ks % 4) + 8 * hh) * 896 - (q % 4) * 1024 + 4096}"))
            g.append(("vm", f"buffer_load_dwordx4 v2, s[{rWD}:{rWD+3}], s{sT3} offen offset:{(q % 4) * 1024} lds", tag))
            out.append(g)
            q += 1
    return out

def wd_read_items(ks0, ks1):
    out = []
    for ks in range(ks0, ks1):
        for dt2 in range(2):
            for t in range(2):
                a = 8 * ks + 4 * dt2 + 2 * t
                out.append(("lg", f"ds_read_b64_tr_b16 {ar(a,2)}, v{3+dt2} offset:{(ks-ks0)*2048 + t*1024}", f"wr{ks}_{dt2}_{t}"))
    return out
def emit_lg_limited(k, items):
    for it in items:
        if it[0] == "lg" and len(k.lgq) >= 12: k.wait(lg=k.lgq[5])
        emit(k, [it])

def gelu_phase(k):
    if k.lgq: k.wait(lg=[k.lgq[-1]])
    k.op("s_barrier")
    vC, vONE = 16, 18
    C1 = -2.0 * 0.7978845608028654 * 1.4426950408889634
    C2 = C1 * 0.044715
    k.op(f"v_mov_b32 v{vC}, {hex(f2u(C1))}")
    k.op(f"v_mov_b32 v{vC+1}, {hex(f2u(C2))}")
    k.op(f"v_mov_b32 v{vONE}, 1.0")
    k.op(f"v_mov_b32 v{vONE+1}, 1.0")
    k.op(f"s_lshl_b32 s{sT0}, s{sI}, 2")
    k.op(f"s_add_u32 s{sT0}, s{sT0}, s{sW}")
    k.op(f"s_mul_i32 s{sHST}, s{sT0}, {112*1024}")
    k.op(f"s_lshl_b32 s{sT1}, s{sJ}, 13")
    k.op(f"s_add_u32 s{sHST}, s{sHST}, s{sT1}")
    k.wait(vm="init")
    k.op("v_accvgpr_read_b32 v8, a40")
    k.op("v_mov_b32 v9, 0")
    k.op("s_nop 0")
    check_or_spin(k, 8, 9, sPDBG, 1)
    cnt_addr(k, 9, idx=UCNT)
    k.vm(f"global_load_dword v8, v9, s[{sPWS}:{sPWS+1}] sc1", "ucnt")
    k.op("v_lshrrev_b32 v10, 4, v0")
    k.op("v_and_b32 v11, 15, v0")
    k.op("v_add_u32 v12, v10, v11")
    k.op("v_subrev_u32 v12, 15, v12")
    k.op("v_lshlrev_b32 v12, 1, v12")
    k.op(f"s_lshl_b32 s{sT1}, s{sCH}, 12")
    k.op("v_cmp_gt_i32 vcc, 0, v12")
    k.op("v_mov_b32 v13, 0x7fffffff")
    k.op("s_nop 0")
    k.op("v_cndmask_b32 v12, v12, v13, vcc")
    k.vm(f"buffer_load_ushort v14, v12, s[{rSSM}:{rSSM+3}], s{sT1} offen", "hf")
    k.op(f"s_lshl_b32 s{sT1}, s{sCH}, 1")
    k.op("v_mov_b32 v13, 0")
    k.vm(f"buffer_load_ushort v15, v13, s[{rD}:{rD+3}], s{sT1} offen", "dv")
    k.op(f"v_mul_u32_u24 v10, {HC_STRIDE}, v10")
    k.op("v_lshl_add_u32 v10, v11, 1, v10")
    k.op(f"s_lshr_b32 s{sT0}, s{sW}, 1")
    k.op(f"s_mul_i32 s{sT2}, s{sT0}, {HC_CH}")
    k.op(f"s_add_u32 s{sT2}, s{sT2}, {HC}")
    k.op(f"v_add_u32 v10, s{sT2}, v10")
    k.op(f"s_mul_i32 s{sT2}, s{sT0}, {UR_CH}")
    k.op(f"s_add_u32 s{sT2}, s{sT2}, {UR + 4096}")
    k.op(f"v_add_u32 v11, s{sT2}, v1")
    k.op("v_mov_b32 v20, 0"); k.op("v_mov_b32 v21, 0"); k.op("v_mov_b32 v22, 0"); k.op("v_mov_b32 v23, 0")
    k.op("s_mov_b32 exec_hi, 0")
    k.lg("ds_write_b128 v11, v[20:23]", "z")
    k.op("s_mov_b32 exec_hi, -1")
    wd0 = wd_dma_groups(0, WD_KS, "wd0")
    def ur_dma():
        k.wait(vm="ucnt")
        check_or_spin(k, 8, 9, sPWS, 32)
        k.op(f"s_lshr_b32 s{sT0}, s{sW}, 1")
        k.op(f"s_and_b32 s{sT1}, s{sW}, 1")
        k.op(f"s_lshl_b32 s{sT1}, s{sT1}, 11")
        k.op(f"s_mul_i32 s{sT2}, s{sT0}, {UR_CH}")
        k.op(f"s_add_u32 s{sT2}, s{sT2}, s{sT1}")
        k.op(f"s_add_u32 m0, s{sT2}, {UR}")
        k.op(f"s_lshl_b32 s{sT3}, s{sCH}, 12")
        k.op(f"s_add_u32 s{sT3}, s{sT3}, s{sT1}")
        k.op(f"s_add_u32 s{sT3}, s{sT3}, {U_OFF}")
        k.vm(f"buffer_load_dwordx4 v1, s[{rWS}:{rWS+3}], s{sT3} offen sc1 lds", "ur")
        k.vm(f"buffer_load_dwordx4 v1, s[{rWS}:{rWS+3}], s{sT3} offen offset:1024 sc1 lds", "ur")
        k.wait(vm="hf")
        k.lg("ds_write_b16 v10, v14", "z")
    for mt in range(8):
        stamp(k, f"y_{mt}")
        G = vACC + 16 * mt; U = G + 8
        T = 24 + (mt % 2) * 24
        tp = lambda p: T + 2 * p
        gu = lambda p: T + 8 + 2 * p
        O = T + 16
        P = range(4)
        m = []
        for p in P: m.append(("op", f"v_pk_mul_f32 {vr(tp(p),2)}, {vr(G+2*p,2)}, {vr(G+2*p,2)}"))
        for p in P: m.append(("op", f"v_pk_fma_f32 {vr(tp(p),2)}, {vr(tp(p),2)}, {vr(vC,2)}, {vr(vC,2)} op_sel:[0,1,0] op_sel_hi:[1,1,0]"))
        for p in P: m.append(("op", f"v_pk_mul_f32 {vr(tp(p),2)}, {vr(tp(p),2)}, {vr(G+2*p,2)}"))
        for p in P:
            m.append(("op", f"v_exp_f32 v{tp(p)}, v{tp(p)}")); m.append(("op", f"v_exp_f32 v{tp(p)+1}, v{tp(p)+1}"))
        for p in P: m.append(("op", f"v_pk_mul_f32 {vr(gu(p),2)}, {vr(G+2*p,2)}, {vr(U+2*p,2)}"))
        for p in P: m.append(("op", f"v_pk_add_f32 {vr(tp(p),2)}, {vr(tp(p),2)}, {vr(vONE,2)}"))
        for p in P:
            m.append(("op", f"v_rcp_f32 v{tp(p)}, v{tp(p)}")); m.append(("op", f"v_rcp_f32 v{tp(p)+1}, v{tp(p)+1}"))
        m.append(("op", "s_nop 0"))
        for p in P: m.append(("op", f"v_pk_mul_f32 {vr(gu(p),2)}, {vr(gu(p),2)}, {vr(tp(p),2)}"))
        for p in P: m.append(("op", f"v_cvt_pk_bf16_f32 v{O+p}, v{gu(p)}, v{gu(p)+1}"))
        nf = 4 if mt < 4 else 3
        fill = [wd0.pop(0) for _ in range(nf)]
        if "nowdg" in OPT: fill = [[x for x in g if x[0] != "vm"] for g in fill]
        pos = {8: 0, 20: 1, 32: 2, 42: 3} if nf == 4 else {12: 0, 24: 1, 36: 2}
        for n, it in enumerate(m):
            emit(k, [it])
            if n in pos: emit(k, fill[pos[n]])
        if mt % 4 == 0 and mt > 0:
            k.op(f"s_add_u32 s{sHST}, s{sHST}, 4096")
        if "nohst" not in OPT: k.vm(f"buffer_store_dwordx4 {vr(O,4)}, v1, s[{rWS}:{rWS+3}], s{sHST} offen offset:{(mt%4)*1024}{'' if 'hstplain' in OPT else ' sc1'}", "hst")
        if mt == 3: ur_dma()
    assert not wd0
    stamp(k, "e_gelu")
    k.wait(vm="ur", lg=[k.lgq[-1]] if k.lgq else [])
    k.op("s_barrier")

def h_signal(k):
    k.wait_all(lg=False)
    k.op("s_barrier")
    cnt_addr(k, 9, idx_sgpr=sI, idx=HCNT)
    signal(k, 9, 10)
    stamp(k, "e_sig")

def conv_phase(k):
    k.wait(vm="dv")
    k.op("v_lshlrev_b32 v8, 16, v15")
    k.op(f"s_lshr_b32 s{sT0}, s{sW}, 1")
    k.op(f"s_mul_i32 s{sT2}, s{sT0}, {HC_CH}")
    k.op(f"s_add_u32 s{sT2}, s{sT2}, {HC}")
    k.op("v_bfe_u32 v5, v0, 2, 2")
    k.op(f"v_mul_u32_u24 v14, {HC_STRIDE}, v5")
    k.op("v_and_b32 v6, 3, v0")
    k.op("v_lshl_add_u32 v14, v6, 3, v14")
    k.op("v_lshrrev_b32 v6, 4, v0")
    k.op("v_lshl_add_u32 v14, v6, 4, v14")
    k.op(f"s_and_b32 s{sT1}, s{sW}, 1")
    k.op(f"s_lshl_b32 s{sT1}, s{sT1}, 8")
    k.op(f"s_add_u32 s{sT2}, s{sT2}, s{sT1}")
    k.op(f"v_add_u32 v14, s{sT2}, v14")
    k.op("v_and_b32 v7, 15, v0")
    k.op("v_lshlrev_b32 v7, 5, v7")
    k.op("v_lshlrev_b32 v5, 4, v6")
    k.op("v_sub_u32 v15, v5, v7")
    k.op(f"s_mul_i32 s{sT2}, s{sT0}, {UR_CH}")
    k.op(f"s_add_u32 s{sT2}, s{sT2}, {UR + 4064 - 3584}")
    k.op(f"s_add_u32 s{sT3}, s{sT2}, s{sT1}")
    k.op(f"v_add_u32 v15, s{sT3}, v15")
    FB = [16, 48]; GBUF = [80, 112]; ACC = 144
    def rdF(sub, J):
        b = FB[sub % 2] + 4 * J
        off = 64 * (8 * J + sub)
        return [("lg", f"ds_read_b64_tr_b16 {vr(b,2)}, v14 offset:{off}", f"F{sub}"),
                ("lg", f"ds_read_b64_tr_b16 {vr(b+2,2)}, v14 offset:{off+8}", f"F{sub}")]
    def rdG(sub, T):
        b = GBUF[sub % 2] + 4 * T
        return [("lg", f"ds_read_b128 {vr(b,4)}, v15 offset:{512*(7-T) + 64*sub}", f"F{sub}")]
    def fg(sub):
        out = []
        for i in range(8):
            out += rdG(sub, 7 - i) + rdF(sub, i)
        return out
    emit(k, fg(0))
    k.op("v_lshlrev_b32 v5, 3, v6")
    k.op("v_add_u32 v7, v7, v5")
    k.op(f"s_add_u32 s{sT2}, s{sT2}, {4088 - 4064}")
    k.op(f"v_sub_u32 v13, s{sT2}, v7")
    k.op("v_lshrrev_b32 v184, 3, v0")
    k.op(f"s_lshl_b32 s{sT0}, s{sW}, 3")
    k.op(f"v_add_u32 v184, s{sT0}, v184")
    k.op("v_and_b32 v185, 7, v0")
    k.op("v_mul_u32_u24 v186, 896, v184")
    k.op("v_lshl_add_u32 v186, v185, 4, v186")
    k.op(f"s_mul_i32 s78, s{sTT}, {64*896}")
    k.op(f"s_lshl_b32 s{sT0}, s{sDT}, 7")
    k.op(f"s_add_u32 s78, s78, s{sT0}")
    k.op(f"s_add_u32 s79, s78, {32*896}")
    k.op(f"s_lshr_b32 s{sU0}, s{sTT}, 1")
    cnt_addr(k, 187, idx_sgpr=sU0, idx=HCNT)
    k.op(f"s_lshl_b32 s{sT0}, s{sTT}, 1")
    k.op(f"s_mul_i32 s{sT0}, s{sT0}, 112")
    k.op(f"s_mul_i32 s{sT1}, s{sW}, 28")
    k.op(f"s_add_u32 s{sT0}, s{sT0}, s{sT1}")
    k.op(f"s_lshl_b32 s{sHG}, s{sT0}, 10")
    wd1 = wd_dma_groups(WD_KS, 2 * WD_KS, "wd1")
    for g in wd1[:WD_KS]:
        for i, it in enumerate(g):
            if it[0] == "vm": g[i] = ("vm", it[1], "wd1a")
    wr0 = wd_read_items(0, WD_KS)
    wr1 = wd_read_items(WD_KS, 2 * WD_KS)
    k.wait(vm="wd0")
    H = WD_KS // 2
    one = lambda items: [[x] for x in items]
    wtag = lambda it: [("fn", lambda t=it[2]: k.wait(lg=t))]
    plan = {0: one(fg(1)) + one(wr0[:4*H]),
            1: one(fg(2)) + [wtag(wr0[4*H-1])] + [g for pair in zip(one(wr0[4*H:]), wd1[:2*H] + [[]] * (4*H - 2*H)) for g in pair],
            2: one(fg(3)) + [wtag(wr0[-1])] + wd1[2*H:],
            3: []}
    first = set()
    for sub in range(4):
        k.wait(lg=f"F{sub}")
        if sub == 1:
            h_signal(k)
            k.vm(f"buffer_load_dwordx4 {ar(224,4)}, v186, s[{rX}:{rX+3}], s78 offen", "ex")
            k.vm(f"buffer_load_dwordx4 {ar(228,4)}, v186, s[{rX}:{rX+3}], s79 offen", "ex")
        if sub == 3:
            plan[3] = [[("fn", lambda: k.wait(vm="wd1a"))]] + one(wr1[:4*H])
        fill = [g for g in plan[sub] if g]
        mf = [(T, J) for T in range(7, -1, -1) for J in range(0, 8 - T)]
        per = len(fill) / 36.0
        done = 0
        for n, (T, J) in enumerate(mf):
            tile = T + J
            a = vr(ACC + 4 * tile, 4)
            cin = a if tile in first else "0"
            first.add(tile)
            k.op(f"v_mfma_f32_16x16x32_bf16 {a}, {vr(FB[sub%2]+4*J,4)}, {vr(GBUF[sub%2]+4*T,4)}, {cin}")
            want = min(len(fill), int(round((n + 1) * per + 0.49)))
            while done < want:
                emit(k, fill[done]); done += 1
        while done < len(fill):
            emit(k, fill[done]); done += 1
    wr1 = wr1[4*H:]
    stamp(k, "c_mfma")
    k.vm(f"global_load_dword v188, v187, s[{sPWS}:{sPWS+1}] sc1", "hcnt")
    k.op(f"s_lshl_b32 s{sT0}, s{sW}, 12")
    k.op(f"s_add_u32 s{sT0}, s{sT0}, {XCH}")
    k.op(f"v_add_u32 v5, s{sT0}, v1")
    k.op(f"s_xor_b32 s{sT1}, s{sW}, 1")
    k.op(f"s_lshl_b32 s{sT1}, s{sT1}, 12")
    k.op(f"s_add_u32 s{sT1}, s{sT1}, {XCH}")
    k.op(f"v_add_u32 v6, s{sT1}, v1")
    k.op(f"s_lshl_b32 s{sT2}, s{sCH}, 12")
    k.op(f"s_add_u32 s{sT2}, s{sT2}, {Y_OFF}")
    if k.lgq: k.wait(lg=k.lgq[-1])
    k.op("s_barrier")
    lo, le = k.newlabel("Lcodd"), k.newlabel("Lcend")
    k.op("s_nop 1")
    def finish(keep, send):
        for i in range(4):
            k.op(f"ds_write_b128 v5, {vr(ACC + 4*(send+i), 4)} offset:{1024*i}")
        for i in range(4):
            k.op(f"ds_read_b64 {vr(40+2*i,2)}, v13 offset:{512*(7-(keep+i))}")
        k.op("s_waitcnt lgkmcnt(0)")
        k.op("s_barrier")
        for i in range(4):
            k.op(f"ds_read_b128 {vr(16+4*i,4)}, v6 offset:{1024*i}")
        for i in range(4):
            U = 40 + 2 * i
            k.op(f"v_and_b32 v{60+4*i}, s{sMASK}, v{U+1}")
            k.op(f"v_lshlrev_b32 v{61+4*i}, 16, v{U+1}")
            k.op(f"v_and_b32 v{62+4*i}, s{sMASK}, v{U}")
            k.op(f"v_lshlrev_b32 v{63+4*i}, 16, v{U}")
            A = ACC + 4 * (keep + i)
            for r in range(4):
                k.op(f"v_fmac_f32 v{A+r}, v{60+4*i+r}, v8")
        k.op("s_waitcnt lgkmcnt(0)")
        for i in range(4):
            A = ACC + 4 * (keep + i)
            k.op(f"v_pk_add_f32 {vr(A,2)}, {vr(A,2)}, {vr(16+4*i,2)}")
            k.op(f"v_pk_add_f32 {vr(A+2,2)}, {vr(A+2,2)}, {vr(18+4*i,2)}")
        for i in range(4):
            A = ACC + 4 * (keep + i)
            k.op(f"v_cvt_pk_bf16_f32 v{48+2*i}, v{A}, v{A+1}")
            k.op(f"v_cvt_pk_bf16_f32 v{49+2*i}, v{A+2}, v{A+3}")
            k.op(f"buffer_store_dwordx2 {vr(48+2*i,2)}, v7, s[{rWS}:{rWS+3}], s{sT2} offen offset:{512*(keep+i)} sc1")
    k.op(f"s_bitcmp1_b32 s{sW}, 0")
    k.op(f"s_cbranch_scc1 {lo}")
    finish(0, 4)
    k.op(f"s_branch {le}")
    k.label(lo)
    finish(4, 0)
    k.label(le)
    for i in range(4): k.vmq.append("yst")
    stamp(k, "c_end")
    return wr1

vH = 16; NHS = 8; vA2 = 192
PD = 4
def g2_hbase(k, g):
    k.op(f"s_add_u32 s{sT3}, s{sROT}, {g}")
    k.op(f"s_cmp_ge_u32 s{sT3}, 7")
    k.op(f"s_cselect_b32 s76, 7, 0")
    k.op(f"s_sub_u32 s{sT3}, s{sT3}, s76")
    k.op(f"s_lshl_b32 s{sT3}, s{sT3}, 12")
    k.op(f"s_add_u32 s76, s{sT3}, s{sHG}")
    k.op(f"s_add_u32 s77, s76, {112*1024}")
def g2_hload(k, ks):
    if ks % 4 == 0: g2_hbase(k, ks // 4)
    for e in range(2):
        b = vH + 8 * (ks % NHS) + 4 * e
        k.vm(f"buffer_load_dwordx4 {vr(b,4)}, v1, s[{rWS}:{rWS+3}], s{76+e} offen offset:{(ks%4)*1024}{'' if 'hplain' in OPT else ' sc1'}", f"h{ks}")

def gemm2_phase(k, wr1):
    k.wait(vm="hcnt")
    check_or_spin(k, 188, 187, sPWS, 14)
    stamp(k, "d_hrdy")
    for ks in range(PD):
        g2_hload(k, ks)
    k.op("v_mov_b32 v5, v184"); k.op("v_mov_b32 v6, v185"); k.op("v_mov_b32 v7, v186")
    k.op("v_lshlrev_b32 v8, 3, v5")
    k.op(f"s_lshl_b32 s{sT0}, s{sTT}, 9")
    k.op(f"s_add_u32 s{sT0}, s{sT0}, {ST_OFF}")
    k.vm(f"buffer_load_dwordx2 {ar(232,2)}, v8, s[{rWS}:{rWS+3}], s{sT0} offen sc1", "ex")
    k.vm(f"buffer_load_dwordx2 {ar(234,2)}, v8, s[{rWS}:{rWS+3}], s{sT0} offen offset:256 sc1", "ex")
    if any(t == "wd1" for t in k.vmq): k.wait(vm="wd1")
    emit_lg_limited(k, wr1)
    k.op(f"s_lshr_b32 s{sU0}, s{sWGM}, 5")
    cnt_addr(k, 9, idx_sgpr=sU0, idx=YCNT)
    k.wait_all()
    k.op("s_barrier")
    signal(k, 9, 8)
    stamp(k, "c_sig")
    cnt_addr(k, 9, idx_sgpr=sDT, idx=YCNT)
    def y_poll():
        k.vm(f"global_load_dword v10, v9, s[{sPWS}:{sPWS+1}] sc1", "ycnt")
    def y_loads():
        k.wait(vm="ycnt")
        check_or_spin(k, 10, 9, sPWS, 32)
        k.op("v_lshrrev_b32 v8, 3, v0")
        k.op("v_lshlrev_b32 v8, 12, v8")
        k.op("v_lshl_add_u32 v8, v6, 4, v8")
        k.op(f"s_lshl_b32 s{sT0}, s{sDT}, 18")
        k.op(f"s_lshl_b32 s{sT1}, s{sW}, 16")
        k.op(f"s_add_u32 s{sT0}, s{sT0}, s{sT1}")
        k.op(f"s_lshl_b32 s{sT1}, s{sTT}, 7")
        k.op(f"s_add_u32 s{sT0}, s{sT0}, s{sT1}")
        k.op(f"s_add_u32 s{sT0}, s{sT0}, {Y_OFF}")
        k.op(f"s_mul_i32 s{sT1}, s{sW}, 2080")
        k.op(f"s_add_u32 m0, s{sT1}, {YT}")
        k.op(f"s_add_u32 s{sT2}, s{sT0}, {8*4096 - 1040}")
        k.vm(f"buffer_load_dwordx4 v8, s[{rWS}:{rWS+3}], s{sT0} offen sc1 lds", "ey")
        k.vm(f"buffer_load_dwordx4 v8, s[{rWS}:{rWS+3}], s{sT2} offen offset:1040 sc1 lds", "ey")
    RROW = 272; RW = 64 * RROW
    k.op("v_and_b32 v11, 31, v0")
    k.op(f"v_mul_u32_u24 v11, {RROW}, v11")
    k.op("v_lshrrev_b32 v12, 5, v0")
    k.op("v_lshl_add_u32 v11, v12, 4, v11")
    k.op(f"s_mul_i32 s{sT0}, s{sW}, {RW}")
    k.op(f"s_add_u32 s{sT0}, s{sT0}, {RED}")
    k.op(f"v_add_u32 v11, s{sT0}, v11")
    first = set()
    def mf(ks, dt2, e):
        t = 2 * dt2 + e
        acc = vr(vA2 + 16 * t, 16)
        cin = acc if t in first else "0"
        first.add(t)
        hb = vH + 8 * (ks % NHS) + 4 * e
        k.op(f"v_mfma_f32_32x32x16_bf16 {acc}, {ar(8*ks+4*dt2,4)}, {vr(hb,4)}, {cin}")
    LASTK = 24
    for ks in range(LASTK):
        k.wait(vm=f"h{ks}")
        if ks % 2 == 0: stamp(k, f"z_{ks}")
        m = 0
        for dt2 in range(2):
            for e in range(2):
                mf(ks, dt2, e)
                kn = ks + PD
                if m == 0 and kn % 4 == 0: g2_hbase(k, kn // 4)
                if m in (1, 2):
                    e2 = m - 1
                    b2 = vH + 8 * (kn % NHS) + 4 * e2
                    k.vm(f"buffer_load_dwordx4 {vr(b2,4)}, v1, s[{rWS}:{rWS+3}], s{76+e2} offen offset:{(kn%4)*1024}{'' if 'hplain' in OPT else ' sc1'}", f"h{kn}")
                if m == 3 and ks == LASTK - 1: y_poll()
                m += 1
    k.wait(vm="h27")
    def wr(t):
        dt2, e = divmod(t, 2)
        return [("lg", f"ds_write_b128 v11, {vr(vA2 + 16*t + 4*g, 4)} offset:{e*32*RROW + dt2*128 + g*32}", f"rw{t}{g}") for g in range(4)]
    for t in range(4):
        dt2, e = divmod(t, 2)
        for ks in range(LASTK, 28):
            mf(ks, dt2, e)
        if t == 2: k.op("s_nop 3")
        if t >= 2: emit(k, wr(t - 2))
    stamp(k, "d_loop")
    y_loads()
    k.op(f"v_mov_b32 v10, {hex(f2u(-1.4426950408889634))}")
    emit(k, wr(2))
    emit(k, wr(3))
    k.op("v_mov_b32 v11, 1.0")
    k.op(f"v_mul_u32_u24 v8, {RROW}, v5")
    k.op("v_lshl_add_u32 v8, v6, 5, v8")
    k.op(f"v_add_u32 v8, {RED}, v8")
    k.op("v_mul_u32_u24 v9, 1040, v6")
    k.op("v_lshl_add_u32 v9, v5, 1, v9")
    k.op(f"v_add_u32 v9, {YT}, v9")
    k.wait(lg=k.lgq[-1])
    k.op("s_barrier")
    for ps in range(2):
        B = 16 + 64 * ps
        for w in range(4):
            for hh in range(2):
                if len(k.lgq) >= 14: k.wait(lg=k.lgq[3])
                k.lg(f"ds_read_b128 {vr(B + 8*w + 4*hh, 4)}, v8 offset:{w*RW + ps*32*RROW + hh*16}", f"p{ps}_{w}{hh}")
    k.wait(vm="ex")
    for ps in range(2):
        B = 16 + 64 * ps
        T = B + 40
        for q in range(4): k.op(f"v_accvgpr_read_b32 v{T+q}, a{224+4*ps+q}")
        k.op(f"v_accvgpr_read_b32 v{T+4}, a{232+2*ps}")
        k.op(f"v_accvgpr_read_b32 v{T+5}, a{233+2*ps}")
        X = B + 48
        for q in range(4):
            k.op(f"v_lshlrev_b32 v{X+2*q}, 16, v{T+q}")
            k.op(f"v_and_b32 v{X+2*q+1}, s{sMASK}, v{T+q}")
        N = B + 56
        for q in range(4):
            k.op(f"v_pk_fma_f32 {vr(N+2*q,2)}, {vr(X+2*q,2)}, {vr(T+4,2)}, {vr(T+4,2)} op_sel:[0,0,1] op_sel_hi:[1,0,1]")
        for e in range(8): k.op(f"v_mov_b32 v{B+32+e}, 0")
    for ps in range(2):
        B = 16 + 64 * ps
        k.wait(lg=f"p{ps}_31")
        for q in range(4):
            k.op(f"v_pk_add_f32 {vr(B+2*q,2)}, {vr(B+2*q,2)}, {vr(B+8+2*q,2)}")
            k.op(f"v_pk_add_f32 {vr(B+16+2*q,2)}, {vr(B+16+2*q,2)}, {vr(B+24+2*q,2)}")
        for q in range(4):
            k.op(f"v_pk_add_f32 {vr(B+2*q,2)}, {vr(B+2*q,2)}, {vr(B+16+2*q,2)}")
        E = B + 16
        for q in range(4):
            k.op(f"v_pk_mul_f32 {vr(E+2*q,2)}, {vr(B+2*q,2)}, {vr(10,2)} op_sel_hi:[1,0]")
        for q in range(8): k.op(f"v_exp_f32 v{E+q}, v{E+q}")
        k.op("s_nop 0")
        for q in range(4): k.op(f"v_pk_add_f32 {vr(E+2*q,2)}, {vr(E+2*q,2)}, {vr(10,2)} op_sel:[0,1] op_sel_hi:[1,1]")
        for q in range(8): k.op(f"v_rcp_f32 v{E+q}, v{E+q}")
        k.op("s_nop 0")
        for q in range(4): k.op(f"v_pk_mul_f32 {vr(E+2*q,2)}, {vr(E+2*q,2)}, {vr(B+2*q,2)}")
        N = B + 56
        for q in range(4): k.op(f"v_pk_mul_f32 {vr(N+2*q,2)}, {vr(N+2*q,2)}, {vr(E+2*q,2)}")
    k.wait(vm="ey")
    k.op("s_barrier")
    for ps in range(2):
        B = 16 + 64 * ps
        for e in range(8):
            if len(k.lgq) >= 14: k.wait(lg=k.lgq[3])
            k.lg(f"ds_read_u16_d16_hi v{B+32+e}, v9 offset:{e*128 + ps*64}", f"y{ps}_{e}")
    for ps in range(2):
        B = 16 + 64 * ps
        Yr = B + 32; T = B + 40; X = B + 48; N = B + 56
        k.wait(lg=f"y{ps}_7")
        for q in range(4): k.op(f"v_pk_fma_f32 {vr(N+2*q,2)}, {vr(N+2*q,2)}, {vr(Yr+2*q,2)}, {vr(X+2*q,2)}")
        for q in range(4): k.op(f"v_cvt_pk_bf16_f32 v{T+8-8+q}, v{N+2*q}, v{N+2*q+1}")
        k.vm(f"buffer_store_dwordx4 {vr(T,4)}, v7, s[{rOUT}:{rOUT+3}], s{78+ps} offen", "ost")
    stamp(k, "d_end")

PP_ROW = 900
PP_K = 0
PP_V = 67 * PP_ROW + 4
def prepass(k):
    k.op(f"s_sub_u32 s{sT0}, s{sSLOT}, 28")
    k.op(f"s_lshl_b32 s{sT0}, s{sT0}, 3")
    k.op(f"s_add_u32 s{sI}, s{sT0}, s{sXCD}")
    k.op("v_lshlrev_b32 v1, 4, v0")
    k.op("s_waitcnt lgkmcnt(0)")
    srd(k, rWS, sPWS, (16 << 20) if STAMPS else WS_USED)
    lab = k.newlabel("Lnolead")
    k.op(f"s_or_b32 s{sT0}, s{sI}, s{sW}")
    k.op(f"s_cmp_lg_u32 s{sT0}, 0")
    k.op(f"s_cbranch_scc1 {lab}")
    k.op("v_lshlrev_b32 v2, 7, v0")
    k.op(f"v_add_u32 v2, {CNT_OFF}, v2")
    k.op("v_mov_b32 v3, 0")
    k.op("s_mov_b32 exec_hi, 0")
    k.op(f"global_store_dword v2, v3, s[{sPWS}:{sPWS+1}] sc1")
    k.op("s_waitcnt vmcnt(0)")
    k.op("v_mov_b32 v2, 1")
    k.op("s_mov_b64 exec, 1")
    k.op(f"global_store_dword v3, v2, s[{sPDBG}:{sPDBG+1}] sc1")
    k.op("s_mov_b64 exec, -1")
    k.label(lab)
    srd(k, rK, sPK, S * D * 2)
    srd(k, rV, sPV, S * D * 2)
    srd(k, rSK, sPSK, D * 4 * 2)
    k.op("s_mov_b32 exec_hi, 0x00ffffff")
    k.op(f"s_lshl_b32 s{sT0}, s{sI}, 6")
    k.op(f"s_add_u32 s{sT0}, s{sT0}, s{sW}")
    k.op(f"s_sub_u32 s{sT1}, s{sT0}, 3")
    k.op(f"s_mul_i32 s{sT1}, s{sT1}, 896")
    k.op(f"s_mul_i32 s{sT2}, s{sW}, {PP_ROW}")
    k.op(f"s_add_u32 m0, s{sT2}, {PP_K}")
    k.op(f"v_add_u32 v2, s{sT1}, v1")
    for n in range(17):
        if n == 16:
            lab = k.newlabel("Lpk")
            k.op(f"s_cmp_eq_u32 s{sW}, 3")
            k.op(f"s_cbranch_scc1 {lab}")
            k.op(f"buffer_load_dwordx4 v2, s[{rK}:{rK+3}], 0 offen lds")
            k.label(lab)
        else:
            k.vm(f"buffer_load_dwordx4 v2, s[{rK}:{rK+3}], 0 offen lds", "k")
            k.op(f"s_add_u32 m0, m0, {4*PP_ROW}")
            k.op(f"v_add_u32 v2, {4*896}, v2")
    k.op(f"s_mul_i32 s{sT1}, s{sT0}, 896")
    k.op(f"s_add_u32 m0, s{sT2}, {PP_V}")
    k.op("s_nop 0")
    for n in range(16):
        k.vm(f"buffer_load_dwordx4 v1, s[{rV}:{rV+3}], s{sT1} offen lds", "v")
        if n < 15:
            k.op(f"s_add_u32 m0, m0, {4*PP_ROW}")
            k.op(f"s_add_u32 s{sT1}, s{sT1}, {4*896}")
    k.op("s_mov_b32 exec_hi, -1")
    k.op("v_and_b32 v2, 3, v0")
    k.op("v_lshrrev_b32 v3, 5, v0")
    k.op("v_lshl_add_u32 v2, v3, 2, v2")
    k.op("v_bfe_u32 v3, v0, 2, 3")
    k.op(f"v_mul_u32_u24 v4, {8*PP_ROW}, v2")
    k.op("v_lshl_add_u32 v4, v3, 2, v4")
    k.op(f"s_lshl_b32 s{sT0}, s{sW}, 5")
    k.op(f"v_add_u32 v4, s{sT0}, v4")
    k.op(f"v_add_u32 v8, {PP_V}, v4")
    k.op("v_lshlrev_b32 v5, 4, v3")
    k.op(f"s_lshl_b32 s{sT0}, s{sW}, 7")
    k.op(f"v_add_u32 v5, s{sT0}, v5")
    k.op("v_lshlrev_b32 v6, 13, v3")
    k.op(f"s_lshl_b32 s{sT0}, s{sW}, 16")
    k.op(f"v_add_u32 v6, s{sT0}, v6")
    k.op("v_lshlrev_b32 v7, 4, v2")
    k.op("v_sub_u32 v6, v6, v7")
    k.op(f"s_lshl_b32 s{sT0}, s{sI}, 7")
    k.op(f"s_sub_u32 s{sT0}, {U_OFF + (2047 - 7) * 2}, s{sT0}")
    k.op(f"v_add_u32 v6, s{sT0}, v6")
    for it in range(7):
        k.vm(f"buffer_load_dwordx4 {vr(100 + 4*it, 4)}, v5, s[{rSK}:{rSK+3}], 0 offen offset:{it*512}", "sk")
    k.wait_all()
    k.op("s_barrier")
    KR, VR = 16, 28
    for it in range(7):
        coff = it * 128
        for j in range(11):
            k.lg(f"ds_read_b32 v{KR+j}, v4 offset:{PP_K + j*PP_ROW + coff}", "kr")
        k.wait(lg="kr")
        for j in range(8):
            k.lg(f"ds_read_b32 v{VR+j}, v8 offset:{j*PP_ROW + coff}", "vr")
        for j in range(11):
            k.op(f"v_lshlrev_b32 v{40+2*j}, 16, v{KR+j}")
            k.op(f"v_and_b32 v{41+2*j}, 0xffff0000, v{KR+j}")
        sk = 100 + 4 * it
        k.op(f"v_lshlrev_b32 v64, 16, v{sk}");   k.op(f"v_lshlrev_b32 v65, 16, v{sk+2}")
        k.op(f"v_and_b32 v66, 0xffff0000, v{sk}"); k.op(f"v_and_b32 v67, 0xffff0000, v{sk+2}")
        k.op(f"v_lshlrev_b32 v68, 16, v{sk+1}"); k.op(f"v_lshlrev_b32 v69, 16, v{sk+3}")
        k.op(f"v_and_b32 v70, 0xffff0000, v{sk+1}"); k.op(f"v_and_b32 v71, 0xffff0000, v{sk+3}")
        k.wait(lg="vr")
        for j in range(8):
            k.op(f"v_lshlrev_b32 v{72+2*j}, 16, v{VR+j}")
            k.op(f"v_and_b32 v{73+2*j}, 0xffff0000, v{VR+j}")
        for t in range(8):
            k.op(f"v_pk_mul_f32 {vr(130+2*t,2)}, {vr(40+2*(t+3),2)}, {vr(64,2)}")
        for j in range(1, 4):
            for t in range(8):
                o = 130 + 2 * t
                k.op(f"v_pk_fma_f32 {vr(o,2)}, {vr(40+2*(t+3-j),2)}, {vr(64+2*j,2)}, {vr(o,2)}")
        for t in range(8):
            o = 130 + 2 * t
            k.op(f"v_pk_mul_f32 {vr(o,2)}, {vr(o,2)}, {vr(72+2*t,2)}")
        O = 150 + 8 * (it % 2)
        for q in range(4):
            k.op(f"v_cvt_pk_bf16_f32 v{O+q}, v{130+2*(7-2*q)}, v{130+2*(6-2*q)}")
            k.op(f"v_cvt_pk_bf16_f32 v{O+4+q}, v{131+2*(7-2*q)}, v{131+2*(6-2*q)}")
        k.op(f"s_mov_b32 s{sT0}, {it * 64 * 4096}")
        k.op(f"s_mov_b32 s{sT1}, {it * 64 * 4096 + 4096}")
        k.vm(f"buffer_store_dwordx4 {vr(O,4)}, v6, s[{rWS}:{rWS+3}], s{sT0} offen sc1", "ust")
        k.vm(f"buffer_store_dwordx4 {vr(O+4,4)}, v6, s[{rWS}:{rWS+3}], s{sT1} offen sc1", "ust")
    k.wait_all()
    k.op("s_barrier")
    lab = k.newlabel("Lpsig")
    k.op(f"s_cmp_lg_u32 s{sW}, 0")
    k.op(f"s_cbranch_scc1 {lab}")
    k.op("v_mov_b32 v9, 0")
    spin_until(k, 9, 8, sPDBG, 1)
    k.label(lab)
    cnt_addr(k, 9, idx=UCNT)
    signal(k, 9, 8)

def kd(name, vgpr=512, acc=256):
    return f""".section .rodata,"a"
.p2align 6
.amdhsa_kernel {name}
  .amdhsa_next_free_vgpr {vgpr}
  .amdhsa_next_free_sgpr 102
  .amdhsa_accum_offset {acc}
  .amdhsa_group_segment_fixed_size 0
  .amdhsa_kernarg_size 104
  .amdhsa_user_sgpr_count 2
  .amdhsa_user_sgpr_kernarg_segment_ptr 1
  .amdhsa_system_sgpr_workgroup_id_x 1
  .amdhsa_float_denorm_mode_32 3
.end_amdhsa_kernel
"""

def build():
    k = K()
    prologue(k, 32768)
    start_main(k)
    gemm1_loop(k)
    gelu_phase(k)
    wr1 = conv_phase(k)
    gemm2_phase(k, wr1)
    for o in OPT:
        if o.startswith("until"):
            n = int(o[5:])
            k.op(f"s_add_u32 s10, s73, {n}")
            k.label("L_until")
            k.op("s_memrealtime s[8:9]")
            k.op("s_waitcnt lgkmcnt(0)")
            k.op("s_sub_u32 s11, s10, s8")
            k.op("s_cmp_gt_i32 s11, 0")
            k.op("s_cbranch_scc1 L_until")
        if o.startswith("delay"):
            n = int(o[5:])
            k.op("s_memtime s[8:9]")
            k.op("s_waitcnt lgkmcnt(0)")
            k.op(f"s_add_u32 s10, s8, {n}")
            k.label("L_delay")
            k.op("s_memtime s[8:9]")
            k.op("s_waitcnt lgkmcnt(0)")
            k.op("s_sub_u32 s11, s10, s8")
            k.op("s_cmp_gt_i32 s11, 0")
            k.op("s_cbranch_scc1 L_delay")
    stamp_flush(k)
    k.op("s_endpgm")
    k.label("L_pre")
    k.vmq = []; k.lgq = []
    prepass(k)
    k.label("L_exit")
    name = NAME + "_kernel"
    header = open("cdna_kernels/" + NAME + ".s.ref").read().split("; Override launch")[0]
    txt = header + f"; @launch grid=(256,1,1) block=(256,1,1) lds={LDS_TOTAL}\n"
    txt += '.amdgcn_target "amdgcn-amd-amdhsa--gfx950"\n.text\n'
    txt += f".globl {name}\n.p2align 8\n.type {name},@function\n{name}:\n"
    txt += k.text() + "s_endpgm\n" + kd(name)
    return txt

if __name__ == "__main__":
    if len(sys.argv) > 2 and sys.argv[2].startswith("stamps"):
        STAMPS = True
        if "=" in sys.argv[2]: STAMPSET = sys.argv[2].split("=")[1].split(",")
    if len(sys.argv) > 3: OPT.update(sys.argv[3].split(","))
    txt = build()
    check_hazards(txt)
    open(sys.argv[1], "w").write(txt)
    if STAMPS: print("stamps:", stamped)
```

```python
import sys, struct
from asmlib import *

NAME = "recurrent_scan__ssm_conv_h3__geglu_ffn__prompt"
S, D, F = 2048, 448, 1792
OPT = set()

H_OFF = 0
U_OFF = H_OFF + 64 * 112 * 1024
Y_OFF = U_OFF + D * 4096
ST_OFF = Y_OFF + D * 4096
CNT_OFF = ST_OFF + S * 8
WS_USED = CNT_OFF + 32 * 128
HCNT, YCNT, UCNT = 0, 16, 24

sPQ, sPK, sPV, sPSK, sPSSM, sPD, sPBX, sPWG = 16, 18, 20, 22, 24, 26, 28, 30
sPWU, sPWD, sPOUT, sPDBG = 32, 34, 36, 38
sPWS = 40
rX, rW, rWS, rWD, rSSM, rOUT, rD = 44, 48, 52, 56, 60, 64, 68
rK, rV, rSK = 48, 56, 60
sT0, sT1, sT2, sT3 = 4, 5, 6, 7
sW, sI, sJ, sWSO, sWM0, sSLOT, sXCD, sONES, sMASK, sWGM = 80, 81, 82, 83, 84, 85, 86, 87, 88, 89
sTT, sDT, sWDS, sWDM, sCH = 90, 91, 92, 93, 94
sHST = 95
sWDG = 75
sROT = 43
sHG = 74
sU0, sU1, sU2, sU3 = 96, 97, 98, 99

SLOT_SZ = 34048
XOFF = 17024
XS = SLOT_SZ
XROW = 912
SLOT = [0, SLOT_SZ, 2 * SLOT_SZ, 3 * SLOT_SZ]
LDS_TOTAL = 163840
HC_STRIDE = 4160
HC_CH = 4 * HC_STRIDE
UR_CH = 4608
WDST = 0
WD_KS = 14
WD_WAVE = WD_KS * 2048
HC = 4 * WD_WAVE
assert HC >= SLOT[3]
UR = HC + 2 * HC_CH
XCH = HC
YT = UR + 2 * UR_CH
assert YT + 8320 <= LDS_TOTAL or True
YT = HC + 16384
RED = 0

vX = 16
vACC = 128

STAMPS = False
STAMP_OFF = 12 << 20
STAMPSET = None
POOL = [16, 18, 20, 22, 24, 26, 28, 30, 32, 34, 36, 72, 8, 10, 12, 14]
stamped = []
def stamp(k, name=""):
    if not STAMPS: return
    if STAMPSET is not None and not any(name.startswith(p) for p in STAMPSET): return
    i = len(stamped)
    assert i < len(POOL)
    stamped.append(name)
    k.op(f"s_memtime s[{POOL[i]}:{POOL[i]+1}]")
def stamp_flush(k):
    if not STAMPS: return
    k.op("s_waitcnt vmcnt(0) lgkmcnt(0)")
    k.op("s_memrealtime s[42:43]")
    k.op("s_waitcnt lgkmcnt(0)")
    k.op("s_mov_b32 s101, s42")
    k.op("s_lshl_b32 s4, s2, 2")
    k.op(f"s_add_u32 s4, s4, s{sW}")
    k.op("s_lshl_b32 s4, s4, 7")
    k.op(f"s_add_u32 s4, s4, {STAMP_OFF}")
    k.op("v_mov_b32 v1, 0")
    k.op("s_mov_b64 exec, 1")
    for i in range(len(stamped)):
        k.op(f"v_mov_b32 v2, s{POOL[i]}")
        k.op(f"buffer_store_dword v2, v1, s[{rWS}:{rWS+3}], s4 offen offset:{4*i}")
    k.op("v_mov_b32 v2, s100")
    k.op(f"buffer_store_dword v2, v1, s[{rWS}:{rWS+3}], s4 offen offset:{4*30}")
    k.op("v_mov_b32 v2, s101")
    k.op(f"buffer_store_dword v2, v1, s[{rWS}:{rWS+3}], s4 offen offset:{4*31}")
    k.op("s_mov_b64 exec, -1")

def f2u(x):
    return struct.unpack("<I", struct.pack("<f", x))[0]

def srd(k, r, ptr, nbytes):
    k.op(f"s_mov_b32 s{r}, s{ptr}")
    k.op(f"s_and_b32 s{r+1}, s{ptr+1}, 0xffff")
    k.op(f"s_mov_b32 s{r+2}, {nbytes}")
    k.op(f"s_mov_b32 s{r+3}, 0x20000")

def emit(k, items):
    for it in items:
        if it[0] == "op": k.op(it[1])
        elif it[0] == "vm": k.vm(it[1], it[2])
        elif it[0] == "lg": k.lg(it[1], it[2])
        elif it[0] == "fn": it[1]()

def capture(fn, *args):
    t = K()
    fn(t, *args)
    assert not t.vmq and not t.lgq
    return [("op", l) for l in t.L]

def interleave(k, main, fill, every, start=0):
    fill = list(fill)
    for n, it in enumerate(main):
        emit(k, [it])
        if fill and n >= start and (n - start) % every == every - 1:
            emit(k, fill.pop(0))
    for g in fill: emit(k, g)

def cnt_addr(k, vreg, idx_sgpr=None, idx=0):
    if idx_sgpr is None:
        k.op(f"v_mov_b32 v{vreg}, {CNT_OFF + idx * 128}")
    else:
        k.op(f"s_lshl_b32 s{sT0}, s{idx_sgpr}, 7")
        k.op(f"s_add_u32 s{sT0}, s{sT0}, {CNT_OFF + idx * 128}")
        k.op(f"v_mov_b32 v{vreg}, s{sT0}")

def spin_until(k, vaddr, vtmp, base, target, cmp="ge"):
    lab, done = k.newlabel("Lspin"), k.newlabel("Lspun")
    k.op(f"s_mov_b32 s{sT1}, 0x40000")
    k.label(lab)
    k.op(f"global_load_dword v{vtmp}, v{vaddr}, s[{base}:{base+1}] sc1")
    k.op("s_waitcnt vmcnt(0)")
    k.op(f"v_readfirstlane_b32 s{sT2}, v{vtmp}")
    k.op(f"s_sub_u32 s{sT1}, s{sT1}, 1")
    k.op(f"s_cmp_ge_u32 s{sT2}, {target}")
    k.op(f"s_cbranch_scc1 {done}")
    k.op("s_sleep 1")
    k.op(f"s_cmp_lg_u32 s{sT1}, 0")
    k.op(f"s_cbranch_scc1 {lab}")
    k.label(done)
    k.vmq = []

def check_or_spin(k, vval, vaddr, base, target):
    done = k.newlabel("Lok")
    k.op(f"v_readfirstlane_b32 s{sT2}, v{vval}")
    k.op(f"s_cmp_ge_u32 s{sT2}, {target}")
    k.op(f"s_cbranch_scc1 {done}")
    q = list(k.vmq)
    spin_until(k, vaddr, vval, base, target)
    k.vmq = q
    k.label(done)

def signal(k, vaddr, vone):
    lab = k.newlabel("Lsig")
    k.op(f"s_cmp_lg_u32 s{sW}, 0")
    k.op(f"s_cbranch_scc1 {lab}")
    k.op(f"v_mov_b32 v{vone}, 1")
    k.op("s_mov_b64 exec, 1")
    k.op(f"global_atomic_add v{vaddr}, v{vone}, s[{sPWS}:{sPWS+1}] sc1")
    k.op("s_mov_b64 exec, -1")
    k.label(lab)

def prologue(k, codebytes):
    if any(o.startswith("cyc") for o in OPT):
        k.op("s_memtime s[72:73]")
        k.op("s_waitcnt lgkmcnt(0)")
        k.op("s_mov_b32 s73, s72")
    if any(o.startswith("until") for o in OPT):
        k.op("s_memrealtime s[72:73]")
        k.op("s_waitcnt lgkmcnt(0)")
        k.op("s_mov_b32 s73, s72")
    k.op("s_getpc_b64 s[12:13]")
    k.op("s_load_dwordx16 s[16:31], s[0:1], 0")
    k.op("s_load_dwordx8 s[32:39], s[0:1], 64")
    k.op("s_load_dwordx2 s[40:41], s[0:1], 96")
    k.op("v_lshrrev_b32 v1, 6, v0")
    k.op("v_and_b32 v0, 63, v0")
    k.op("s_cmp_ge_u32 s2, 256")
    k.op(f"v_readfirstlane_b32 s{sW}, v1")
    k.op("s_cbranch_scc1 L_exit")
    if "nocodepf" not in OPT:
        k.op("s_lshr_b32 s14, s2, 3")
        k.op("s_lshl_b32 s14, s14, 2")
        k.op(f"s_add_u32 s14, s14, s{sW}")
        k.op("s_mul_i32 s14, s14, 384")
        k.op("s_add_u32 s12, s12, s14")
        k.op("s_addc_u32 s13, s13, 0")
        k.op("v_lshlrev_b32 v2, 7, v0")
        k.op("s_mov_b64 exec, 7")
        k.vm("global_load_dword a250, v2, s[12:13]", "code")
        k.op("s_mov_b64 exec, -1")
        assert codebytes <= 128 * 384
    if STAMPS:
        k.op("s_memrealtime s[42:43]")
        k.op("s_waitcnt lgkmcnt(0)")
        k.op("s_mov_b32 s100, s42")
    k.op(f"s_and_b32 s{sXCD}, s2, 7")
    k.op(f"s_lshr_b32 s{sSLOT}, s2, 3")
    k.op(f"s_cmp_ge_u32 s{sSLOT}, 28")
    k.op("s_cbranch_scc1 L_pre")

def wdma(c, e):
    out = []
    if e % 4 == 0:
        out.append(("op", f"s_add_u32 m0, s{sWM0}, {SLOT[c % 4] + e * 1056}"))
    out.append(("op", f"s_add_u32 s{sT3}, s{sWSO}, {(64 * c + e) * 3584 - (e % 4) * 1056}"))
    out.append(("vm", f"buffer_load_dwordx4 v2, s[{rW}:{rW+3}], s{sT3} offen offset:{(e % 4) * 1056} lds", f"w{c}"))
    return out

def start_main(k):
    k.op(f"s_mul_i32 s{sT0}, s{sSLOT}, 37")
    k.op(f"s_lshr_b32 s{sT0}, s{sT0}, 8")
    k.op(f"s_mul_i32 s{sT1}, s{sT0}, 7")
    k.op(f"s_sub_u32 s{sDT}, s{sSLOT}, s{sT1}")
    k.op(f"s_lshr_b32 s{sT2}, s{sXCD}, 1")
    k.op(f"s_lshl_b32 s{sT2}, s{sT2}, 2")
    k.op(f"s_add_u32 s{sI}, s{sT2}, s{sT0}")
    k.op(f"s_lshl_b32 s{sTT}, s{sXCD}, 2")
    k.op(f"s_add_u32 s{sTT}, s{sTT}, s{sT0}")
    k.op("v_lshlrev_b32 v1, 4, v0")
    k.op(f"s_lshl_b32 s{sU0}, s{sI}, 2")
    k.op(f"s_add_u32 s{sU0}, s{sU0}, s{sW}")
    k.op(f"s_mul_i32 s{sU0}, s{sU0}, {32*896}")
    k.op(f"s_mul_i32 s{sU1}, s{sW}, {32*XROW}")
    k.op(f"s_add_u32 s{sU1}, s{sU1}, {XS}")
    k.op(f"s_mul_i32 s{sU2}, s{sDT}, 9")
    k.op(f"s_lshr_b32 s{sU2}, s{sU2}, 1")
    k.op(f"s_mul_i32 s{sT1}, s{sU2}, 896")
    k.op(f"s_mul_i32 s{sT2}, s{sU2}, {XROW}")
    k.op(f"s_add_u32 s{sT1}, s{sT1}, s{sU0}")
    k.op(f"s_add_u32 s{sT2}, s{sT2}, s{sU1}")
    k.op(f"s_add_u32 s{sU3}, s{sU0}, {32*896}")
    k.op(f"s_and_b32 s{sT0}, s{sXCD}, 1")
    k.op(f"s_mul_i32 s{sJ}, s{sT0}, 7")
    k.op(f"s_add_u32 s{sJ}, s{sJ}, s{sDT}")
    k.op("s_waitcnt lgkmcnt(0)")
    srd(k, rX, sPQ, S * D * 2)
    k.op(f"s_bitcmp1_b32 s{sW}, 0")
    k.op(f"s_cselect_b32 s{rW}, s{sPWU}, s{sPWG}")
    k.op(f"s_cselect_b32 s{rW+1}, s{sPWU+1}, s{sPWG+1}")
    k.op(f"s_and_b32 s{rW+1}, s{rW+1}, 0xffff")
    k.op(f"s_mov_b32 s{rW+2}, {D*F*2}")
    k.op(f"s_mov_b32 s{rW+3}, 0x20000")
    stamp(k, "start")
    k.op("s_mov_b32 exec_hi, 0x00ffffff")
    k.op(f"s_mov_b32 s{sT0}, 32")
    lx = k.newlabel("Lxd")
    k.label(lx)
    k.op(f"s_mov_b32 m0, s{sT2}")
    k.op(f"s_add_u32 s{sT2}, s{sT2}, {XROW}")
    k.op(f"buffer_load_dwordx4 v1, s[{rX}:{rX+3}], s{sT1} offen lds")
    k.op(f"s_add_u32 s{sT1}, s{sT1}, 896")
    k.op(f"s_cmp_eq_u32 s{sT1}, s{sU3}")
    k.op(f"s_cselect_b32 s{sT1}, s{sU0}, s{sT1}")
    k.op(f"s_cselect_b32 s{sT2}, s{sU1}, s{sT2}")
    k.op(f"s_sub_u32 s{sT0}, s{sT0}, 1")
    k.op(f"s_cmp_lg_u32 s{sT0}, 0")
    k.op(f"s_cbranch_scc1 {lx}")
    for n in range(32): k.vmq.append("x")
    k.op("s_mov_b32 exec_hi, -1")
    stamp(k, "a_xiss")
    k.op("v_lshrrev_b32 v10, 4, v0")
    k.op(f"v_mul_u32_u24 v2, {16*3584}, v10")
    k.op("v_and_b32 v11, 15, v0")
    k.op("v_lshl_add_u32 v2, v11, 4, v2")
    k.op(f"s_lshr_b32 s{sT0}, s{sW}, 1")
    k.op(f"s_lshl_b32 s{sT0}, s{sT0}, 3")
    k.op(f"s_mul_i32 s{sWSO}, s{sT0}, 3584")
    k.op(f"s_lshl_b32 s{sT1}, s{sJ}, 8")
    k.op(f"s_add_u32 s{sWSO}, s{sWSO}, s{sT1}")
    k.op(f"s_mul_i32 s{sWM0}, s{sT0}, 1056")
    k.op(f"s_and_b32 s{sT1}, s{sW}, 1")
    k.op(f"s_mul_i32 s{sT1}, s{sT1}, {XOFF}")
    k.op(f"s_add_u32 s{sWM0}, s{sWM0}, s{sT1}")
    k.op("v_lshrrev_b32 v6, 4, v0")
    k.op("v_lshlrev_b32 v6, 6, v6")
    k.op("v_bfe_u32 v7, v0, 1, 3")
    k.op("v_add_u32 v6, v6, v7")
    k.op("v_mul_u32_u24 v6, 3584, v6")
    k.op("v_and_b32 v7, 1, v0")
    k.op("v_lshl_add_u32 v5, v7, 7, v6")
    k.op(f"s_and_b32 s{sT0}, s{sI}, 3")
    k.op(f"s_lshl_b32 s{sT0}, s{sT0}, 1")
    k.op(f"s_lshr_b32 s{sT1}, s{sW}, 1")
    k.op(f"s_add_u32 s{sT0}, s{sT0}, s{sT1}")
    k.op(f"s_mul_i32 s{sT0}, s{sT0}, {8*3584}")
    k.op(f"s_lshl_b32 s{sT1}, s{sJ}, 8")
    k.op(f"s_add_u32 s{sU2}, s{sT0}, s{sT1}")
    for e in range(8): emit(k, wdma(0, e))
    stamp(k, "a_issued")
    k.op(f"s_mul_i32 s{sWGM}, s{sXCD}, 28")
    k.op(f"s_add_u32 s{sWGM}, s{sWGM}, s{sSLOT}")
    srd(k, rWS, sPWS, (16 << 20) if STAMPS else WS_USED)
    srd(k, rWD, sPWD, F * D * 2)
    srd(k, rSSM, sPSSM, D * S * 2)
    srd(k, rOUT, sPOUT, S * D * 2)
    srd(k, rD, sPD, D * 2)
    k.op("v_and_b32 v11, 1, v10")
    k.op(f"v_mul_u32_u24 v3, {XOFF}, v11")
    k.op("v_lshrrev_b32 v11, 5, v0")
    k.op("v_lshlrev_b32 v12, 3, v11")
    k.op("v_bfe_u32 v13, v0, 2, 2")
    k.op("v_add_u32 v12, v12, v13")
    k.op("v_mul_u32_u24 v12, 1056, v12")
    k.op("v_add_u32 v3, v3, v12")
    k.op("v_and_b32 v13, 3, v0")
    k.op("v_lshl_add_u32 v3, v13, 3, v3")
    k.op(f"v_add_u32 v14, {2*SLOT_SZ}, v3")
    k.op("v_and_b32 v13, 31, v0")
    k.op(f"s_lshl_b32 s{sT0}, s{sW}, 5")
    k.op(f"v_add_u32 v13, s{sT0}, v13")
    k.op(f"v_mul_u32_u24 v15, {XROW}, v13")
    k.op("v_lshl_add_u32 v15, v11, 4, v15")
    k.op(f"v_add_u32 v15, {XS}, v15")
    k.op(f"s_mov_b32 s{sONES}, 0x3f803f80")
    k.op(f"s_mov_b32 s{sMASK}, 0xffff0000")
    for a in range(8): k.op(f"v_mov_b32 v{6+a}, 0")
    k.wait(vm="x")
    stamp(k, "a_xarr")
    def st(n):
        return [("op", f"v_dot2_f32_bf16 v{6 + n % 4}, v{vX+n}, s{sONES}, v{6 + n % 4}"),
                ("op", f"v_dot2_f32_bf16 v{10 + n % 4}, v{vX+n}, v{vX+n}, v{10 + n % 4}")]
    for ks in range(14):
        k.lg(f"ds_read_b128 {vr(vX + 4 * ks, 4)}, v15 offset:{32 * ks}", f"x{ks}")
    for ks in range(14, 28):
        k.wait(lg=f"x{ks-14}")
        k.lg(f"ds_read_b128 {vr(vX + 4 * ks, 4)}, v15 offset:{32 * ks}", f"x{ks}")
        for q in range(4): emit(k, st(4 * (ks - 14) + q))
        if ks == 15 and "nopf" not in OPT:
            k.vm(f"buffer_load_dword a250, v5, s[{rW}:{rW+3}], s{sU2} offen", "pf")
    k.wait(lg="x27")
    k.op("s_barrier")
    stamp(k, "a_xreg")
    main = []
    for n in range(56, 112): main += st(n)
    fill = [wdma(1, e) for e in range(8)]
    if "nopf" not in OPT:
        fill.append([("op", f"s_add_u32 s{sU2}, s{sU2}, {256*3584}"),
                        ("vm", f"buffer_load_dword a250, v5, s[{rW}:{rW+3}], s{sU2} offen", "pf")])
    interleave(k, main, fill, 11)
    k.op("s_nop 2")
    k.op("v_add_f32 v6, v6, v7"); k.op("v_add_f32 v8, v8, v9")
    k.op("v_add_f32 v10, v10, v11"); k.op("v_add_f32 v12, v12, v13")
    k.op("v_add_f32 v6, v6, v8"); k.op("v_add_f32 v10, v10, v12")
    k.op("v_mov_b32 v7, v6"); k.op("v_mov_b32 v11, v10")
    k.op("s_nop 1")
    k.op("v_permlane32_swap_b32 v6, v7"); k.op("v_permlane32_swap_b32 v10, v11")
    k.op("s_nop 1")
    k.op("v_add_f32 v6, v6, v7"); k.op("v_add_f32 v10, v10, v11")
    k.op(f"v_mul_f32 v6, {hex(f2u(1.0/448))}, v6")
    k.op(f"v_mul_f32 v10, {hex(f2u(1.0/448))}, v10")
    k.op("v_fma_f32 v10, -v6, v6, v10")
    k.op("v_max_f32 v10, 0, v10")
    k.op("v_cvt_pk_bf16_f32 v7, v6, v10")
    k.op("v_lshlrev_b32 v6, 16, v7")
    k.op(f"v_and_b32 v10, s{sMASK}, v7")
    k.op(f"v_add_f32 v10, {hex(f2u(1e-5))}, v10")
    k.op("v_cvt_pk_bf16_f32 v10, v10, v10")
    k.op("v_lshlrev_b32 v10, 16, v10")
    k.op("v_sqrt_f32 v10, v10")
    k.op("s_nop 0")
    k.op("v_cvt_pk_bf16_f32 v10, v10, v10")
    k.op("v_lshlrev_b32 v10, 16, v10")
    k.op("v_rcp_f32 v4, v10")
    k.op("s_nop 0")
    k.op("v_mul_f32 v5, v6, v4")
    k.op("v_sub_f32 v5, 0, v5")
    lab = k.newlabel("Lnost")
    k.op(f"s_cmp_lg_u32 s{sJ}, 0")
    k.op(f"s_cbranch_scc1 {lab}")
    k.op(f"s_lshl_b32 s{sT0}, s{sI}, 2")
    k.op(f"s_add_u32 s{sT0}, s{sT0}, s{sW}")
    k.op(f"s_lshl_b32 s{sT0}, s{sT0}, 8")
    k.op(f"s_add_u32 s{sT0}, s{sT0}, {ST_OFF}")
    k.op("v_lshlrev_b32 v6, 3, v0")
    k.op("s_mov_b32 exec_hi, 0")
    k.op(f"buffer_store_dwordx2 v[4:5], v6, s[{rWS}:{rWS+3}], s{sT0} offen sc1")
    k.op("s_mov_b32 exec_hi, -1")
    k.label(lab)

def norm(n, tp):
    t = 6 + 2 * tp
    return [("op", f"v_lshlrev_b32 v{t}, 16, v{vX+n}"),
            ("op", f"v_and_b32 v{t+1}, s{sMASK}, v{vX+n}"),
            ("op", f"v_fma_f32 v{t}, v{t}, v4, v5"),
            ("op", f"v_fma_f32 v{t+1}, v{t+1}, v4, v5"),
            ("op", f"v_cvt_pk_bf16_f32 v{vX+n}, v{t}, v{t+1}")]
def norm_step(ks):
    a = [norm(4 * ks + q, q) for q in range(4)]
    out = []
    for s in range(5):
        for q in range(4): out.append(a[q][s])
    return out

def hc_dma(q):
    rr, qq = divmod(q, 4)
    out = []
    if qq == 0:
        out.append(("op", f"s_add_u32 m0, s{sU0}, {rr * HC_STRIDE}"))
        out.append(("op", f"s_add_u32 s{sU2}, s{sU1}, {rr * 2}"))
    out.append(("vm", f"buffer_load_dwordx4 v1, s[{rSSM}:{rSSM+3}], s{sU2} offen offset:{qq*1024} lds", "hc"))
    return out

def gemm1_loop(k):
    emit(k, norm_step(0))
    k.op(f"s_lshr_b32 s{sT0}, s{sW}, 1")
    k.op(f"s_lshl_b32 s{sCH}, s{sWGM}, 1")
    k.op(f"s_add_u32 s{sCH}, s{sCH}, s{sT0}")
    k.op(f"s_and_b32 s{sT1}, s{sW}, 1")
    k.op(f"s_lshl_b32 s{sT1}, s{sT1}, 1")
    k.op(f"s_mul_i32 s{sU0}, s{sT0}, {HC_CH}")
    k.op(f"s_mul_i32 s{sT3}, s{sT1}, {HC_STRIDE}")
    k.op(f"s_add_u32 s{sU0}, s{sU0}, s{sT3}")
    k.op(f"s_add_u32 s{sU0}, s{sU0}, {HC + 32}")
    k.op(f"s_lshl_b32 s{sU1}, s{sCH}, 12")
    k.op(f"s_lshl_b32 s{sT1}, s{sT1}, 1")
    k.op(f"s_add_u32 s{sU1}, s{sU1}, s{sT1}")
    k.op(f"s_add_u32 s{sU1}, s{sU1}, 2")
    k.wait(vm="w0")
    k.op("s_barrier")
    stamp(k, "a_stats")
    NF = 8; DIST = 7; NM = 224
    def rd(n):
        ks, mt = divmod(n, 8)
        c, kk = divmod(ks, 4)
        sl = c % 4
        base = "v3" if sl < 2 else "v14"
        off = (SLOT_SZ if sl % 2 else 0) + kk * 256 + mt * 32
        f = 4 * (n % NF)
        return [("lg", f"ds_read_b64_tr_b16 {ar(f, 2)}, {base} offset:{off}", f"f{n}"),
                ("lg", f"ds_read_b64_tr_b16 {ar(f + 2, 2)}, {base} offset:{off + 4 * 1056}", f"f{n}")]
    for n in range(DIST): emit(k, rd(n))
    extra = {}
    k.op(f"s_lshl_b32 s{sT0}, s{sSLOT}, 2")
    k.op(f"s_add_u32 s{sT0}, s{sT0}, s{sW}")
    k.op(f"s_mul_i32 s{sU3}, s{sT0}, {112*128}")
    k.op("v_lshlrev_b32 v15, 7, v0")
    def wd_pf(piece):
        return [("op", "s_mov_b64 exec, 0xffff"),
                ("vm", f"buffer_load_dword a250, v15, s[{rWD}:{rWD+3}], s{sU3} offen offset:{piece*2048}", "pf"),
                ("op", "s_mov_b64 exec, -1")]
    if "nopf" not in OPT:
        for p in range(7):
            if p < 2: extra[5 + 3 * p] = wd_pf(p)
            else:
                extra[5 + 3 * p] = [("op", f"s_add_u32 s{sU3}, s{sU3}, 2048"), ("op", "s_mov_b64 exec, 0xffff"),
                    ("vm", f"buffer_load_dword a250, v15, s[{rWD}:{rWD+3}], s{sU3} offen offset:2048", "pf"), ("op", "s_mov_b64 exec, -1")]
    extra[24] = [("op", "s_mov_b64 exec, 1"),
                 ("vm", f"global_load_dword a40, v15, s[{sPDBG}:{sPDBG+1}] sc1", "init"),
                 ("op", "s_mov_b64 exec, -1")]
    tailfill = capture(g2_setup)
    for n in range(NM):
        ks, mt = divmod(n, 8)
        c, kk = divmod(ks, 4)
        if n % 32 == 0: stamp(k, f"g_c{n//32}")
        if n % 4 == 0:
            k.wait(lg=[f"f{n+i}" for i in range(4)])
        f = 4 * (n % NF)
        acc = vr(vACC + 16 * mt, 16)
        cin = "0" if ks == 0 else acc
        k.op(f"v_mfma_f32_32x32x16_bf16 {acc}, {ar(f, 4)}, {vr(vX + 4 * ks, 4)}, {cin}")
        nn = n + DIST
        if nn < NM:
            if nn % 32 == 0:
                k.wait(vm=f"w{nn // 32}")
                k.op("s_barrier")
            emit(k, rd(nn))
        if ks + 1 < 28:
            st = norm_step(ks + 1)
            cut = [0, 3, 6, 9, 12, 15, 18, 20, 20]
            emit(k, st[cut[mt]: cut[mt + 1]])
        if c == 0 and mt in (3, 5, 6, 7):
            e = 4 * (kk % 2) + (3, 5, 6, 7).index(mt)
            emit(k, wdma(2 + kk // 2, e))
        if ks == 27:
            lo_, hi_ = (len(tailfill) * mt) // 8, (len(tailfill) * (mt + 1)) // 8
            emit(k, tailfill[lo_:hi_])
        if mt in (6, 7):
            e = 2 * kk + (mt - 6)
            if c >= 1 and c + 3 < 7: emit(k, wdma(c + 3, e))
            if c in (4, 5) and mt == 7:
                q = (c - 4) * 4 + kk
                emit(k, hc_dma(q))
        if mt == 7 and ks in extra: emit(k, extra[ks])
    stamp(k, "g_end")

def g2_setup(k):
    k.op(f"s_and_b32 s{sT0}, s{sTT}, 3")
    k.op(f"s_lshl_b32 s{sT0}, s{sT0}, 1")
    k.op(f"s_add_u32 s{sROT}, s{sT0}, s{sDT}")
    k.op(f"s_cmp_ge_u32 s{sROT}, 7")
    k.op(f"s_cselect_b32 s{sT0}, 7, 0")
    k.op(f"s_sub_u32 s{sROT}, s{sROT}, s{sT0}")
    k.op("v_lshrrev_b32 v3, 3, v0")
    k.op("v_mul_u32_u24 v2, 896, v3")
    k.op("v_bfe_u32 v3, v0, 4, 1")
    k.op("v_lshlrev_b32 v3, 2, v3")
    k.op("v_and_b32 v4, 7, v0")
    k.op("v_xor_b32 v3, v3, v4")
    k.op("v_lshl_add_u32 v2, v3, 4, v2")
    k.op(f"s_mul_i32 s{sWDS}, s{sW}, {16*28*896}")
    k.op(f"s_lshl_b32 s{sT0}, s{sDT}, 7")
    k.op(f"s_add_u32 s{sWDS}, s{sWDS}, s{sT0}")
    k.op(f"s_sub_u32 s{sWDS}, s{sWDS}, 4096")
    k.op(f"s_mul_i32 s{sWDM}, s{sW}, {WD_WAVE}")
    k.op(f"s_add_u32 s{sWDM}, s{sWDM}, {WDST}")
    k.op("v_lshrrev_b32 v5, 5, v0")
    k.op("v_bfe_u32 v6, v0, 2, 2")
    k.op("v_lshl_add_u32 v5, v5, 2, v6")
    k.op("v_lshlrev_b32 v5, 7, v5")
    k.op("v_bfe_u32 v7, v0, 4, 1")
    k.op("v_lshl_add_u32 v5, v7, 5, v5")
    k.op("v_and_b32 v7, 3, v0")
    k.op("v_lshl_add_u32 v5, v7, 3, v5")
    k.op(f"v_add_u32 v5, s{sWDM}, v5")
    k.op("v_bfe_u32 v6, v0, 3, 1")
    k.op("v_lshlrev_b32 v6, 6, v6")
    k.op("v_add_u32 v3, v5, v6")
    k.op("v_xor_b32 v6, 64, v6")
    k.op("v_add_u32 v4, v5, v6")

def wd_group_base(g):
    return [("op", f"s_add_u32 s{sT3}, s{sROT}, {g}"),
            ("op", f"s_cmp_ge_u32 s{sT3}, 7"),
            ("op", f"s_cselect_b32 s{sWDG}, 7, 0"),
            ("op", f"s_sub_u32 s{sT3}, s{sT3}, s{sWDG}"),
            ("op", f"s_mul_i32 s{sT3}, s{sT3}, {64*896}"),
            ("op", f"s_add_u32 s{sWDG}, s{sT3}, s{sWDS}")]
def wd_dma_groups(ks0, ks1, tag):
    out = []
    q = 0
    for ks in range(ks0, ks1):
        for hh in range(2):
            g = []
            if ks % 4 == 0 and hh == 0: g += wd_group_base(ks // 4)
            if q % 4 == 0:
                g.append(("op", f"s_add_u32 m0, s{sWDM}, {(q // 4) * 4096}"))
            g.append(("op", f"s_add_u32 s{sT3}, s{sWDG}, {(16 * (ks % 4) + 8 * hh) * 896 - (q % 4) * 1024 + 4096}"))
            g.append(("vm", f"buffer_load_dwordx4 v2, s[{rWD}:{rWD+3}], s{sT3} offen offset:{(q % 4) * 1024} lds", tag))
            out.append(g)
            q += 1
    return out

def wd_read_items(ks0, ks1):
    out = []
    for ks in range(ks0, ks1):
        for dt2 in range(2):
            for t in range(2):
                a = 8 * ks + 4 * dt2 + 2 * t
                out.append(("lg", f"ds_read_b64_tr_b16 {ar(a,2)}, v{3+dt2} offset:{(ks-ks0)*2048 + t*1024}", f"wr{ks}_{dt2}_{t}"))
    return out
def emit_lg_limited(k, items):
    for it in items:
        if it[0] == "lg" and len(k.lgq) >= 12: k.wait(lg=k.lgq[5])
        emit(k, [it])

def gelu_phase(k):
    if k.lgq: k.wait(lg=[k.lgq[-1]])
    k.op("s_barrier")
    vC, vONE = 16, 18
    C1 = -2.0 * 0.7978845608028654 * 1.4426950408889634
    C2 = C1 * 0.044715
    k.op(f"v_mov_b32 v{vC}, {hex(f2u(C1))}")
    k.op(f"v_mov_b32 v{vC+1}, {hex(f2u(C2))}")
    k.op(f"v_mov_b32 v{vONE}, 1.0")
    k.op(f"v_mov_b32 v{vONE+1}, 1.0")
    k.op(f"s_lshl_b32 s{sT0}, s{sI}, 2")
    k.op(f"s_add_u32 s{sT0}, s{sT0}, s{sW}")
    k.op(f"s_mul_i32 s{sHST}, s{sT0}, {112*1024}")
    k.op(f"s_lshl_b32 s{sT1}, s{sJ}, 13")
    k.op(f"s_add_u32 s{sHST}, s{sHST}, s{sT1}")
    k.wait(vm="init")
    k.op("v_accvgpr_read_b32 v8, a40")
    k.op("v_mov_b32 v9, 0")
    k.op("s_nop 0")
    check_or_spin(k, 8, 9, sPDBG, 1)
    cnt_addr(k, 9, idx=UCNT)
    k.vm(f"global_load_dword v8, v9, s[{sPWS}:{sPWS+1}] sc1", "ucnt")
    k.op("v_lshrrev_b32 v10, 4, v0")
    k.op("v_and_b32 v11, 15, v0")
    k.op("v_add_u32 v12, v10, v11")
    k.op("v_subrev_u32 v12, 15, v12")
    k.op("v_lshlrev_b32 v12, 1, v12")
    k.op(f"s_lshl_b32 s{sT1}, s{sCH}, 12")
    k.op("v_cmp_gt_i32 vcc, 0, v12")
    k.op("v_mov_b32 v13, 0x7fffffff")
    k.op("s_nop 0")
    k.op("v_cndmask_b32 v12, v12, v13, vcc")
    k.vm(f"buffer_load_ushort v14, v12, s[{rSSM}:{rSSM+3}], s{sT1} offen", "hf")
    k.op(f"s_lshl_b32 s{sT1}, s{sCH}, 1")
    k.op("v_mov_b32 v13, 0")
    k.vm(f"buffer_load_ushort v15, v13, s[{rD}:{rD+3}], s{sT1} offen", "dv")
    k.op(f"v_mul_u32_u24 v10, {HC_STRIDE}, v10")
    k.op("v_lshl_add_u32 v10, v11, 1, v10")
    k.op(f"s_lshr_b32 s{sT0}, s{sW}, 1")
    k.op(f"s_mul_i32 s{sT2}, s{sT0}, {HC_CH}")
    k.op(f"s_add_u32 s{sT2}, s{sT2}, {HC}")
    k.op(f"v_add_u32 v10, s{sT2}, v10")
    k.op(f"s_mul_i32 s{sT2}, s{sT0}, {UR_CH}")
    k.op(f"s_add_u32 s{sT2}, s{sT2}, {UR + 4096}")
    k.op(f"v_add_u32 v11, s{sT2}, v1")
    k.op("v_mov_b32 v20, 0"); k.op("v_mov_b32 v21, 0"); k.op("v_mov_b32 v22, 0"); k.op("v_mov_b32 v23, 0")
    k.op("s_mov_b32 exec_hi, 0")
    k.lg("ds_write_b128 v11, v[20:23]", "z")
    k.op("s_mov_b32 exec_hi, -1")
    wd0 = wd_dma_groups(0, WD_KS, "wd0")
    def ur_dma():
        k.wait(vm="ucnt")
        check_or_spin(k, 8, 9, sPWS, 32)
        k.op(f"s_lshr_b32 s{sT0}, s{sW}, 1")
        k.op(f"s_and_b32 s{sT1}, s{sW}, 1")
        k.op(f"s_lshl_b32 s{sT1}, s{sT1}, 11")
        k.op(f"s_mul_i32 s{sT2}, s{sT0}, {UR_CH}")
        k.op(f"s_add_u32 s{sT2}, s{sT2}, s{sT1}")
        k.op(f"s_add_u32 m0, s{sT2}, {UR}")
        k.op(f"s_lshl_b32 s{sT3}, s{sCH}, 12")
        k.op(f"s_add_u32 s{sT3}, s{sT3}, s{sT1}")
        k.op(f"s_add_u32 s{sT3}, s{sT3}, {U_OFF}")
        k.vm(f"buffer_load_dwordx4 v1, s[{rWS}:{rWS+3}], s{sT3} offen sc1 lds", "ur")
        k.vm(f"buffer_load_dwordx4 v1, s[{rWS}:{rWS+3}], s{sT3} offen offset:1024 sc1 lds", "ur")
        k.wait(vm="hf")
        k.lg("ds_write_b16 v10, v14", "z")
    for mt in range(8):
        stamp(k, f"y_{mt}")
        G = vACC + 16 * mt; U = G + 8
        T = 24 + (mt % 2) * 24
        tp = lambda p: T + 2 * p
        gu = lambda p: T + 8 + 2 * p
        O = T + 16
        P = range(4)
        m = []
        for p in P: m.append(("op", f"v_pk_mul_f32 {vr(tp(p),2)}, {vr(G+2*p,2)}, {vr(G+2*p,2)}"))
        for p in P: m.append(("op", f"v_pk_fma_f32 {vr(tp(p),2)}, {vr(tp(p),2)}, {vr(vC,2)}, {vr(vC,2)} op_sel:[0,1,0] op_sel_hi:[1,1,0]"))
        for p in P: m.append(("op", f"v_pk_mul_f32 {vr(tp(p),2)}, {vr(tp(p),2)}, {vr(G+2*p,2)}"))
        for p in P:
            m.append(("op", f"v_exp_f32 v{tp(p)}, v{tp(p)}")); m.append(("op", f"v_exp_f32 v{tp(p)+1}, v{tp(p)+1}"))
        for p in P: m.append(("op", f"v_pk_mul_f32 {vr(gu(p),2)}, {vr(G+2*p,2)}, {vr(U+2*p,2)}"))
        for p in P: m.append(("op", f"v_pk_add_f32 {vr(tp(p),2)}, {vr(tp(p),2)}, {vr(vONE,2)}"))
        for p in P:
            m.append(("op", f"v_rcp_f32 v{tp(p)}, v{tp(p)}")); m.append(("op", f"v_rcp_f32 v{tp(p)+1}, v{tp(p)+1}"))
        m.append(("op", "s_nop 0"))
        for p in P: m.append(("op", f"v_pk_mul_f32 {vr(gu(p),2)}, {vr(gu(p),2)}, {vr(tp(p),2)}"))
        for p in P: m.append(("op", f"v_cvt_pk_bf16_f32 v{O+p}, v{gu(p)}, v{gu(p)+1}"))
        nf = 4 if mt < 4 else 3
        fill = [wd0.pop(0) for _ in range(nf)]
        if "nowdg" in OPT: fill = [[x for x in g if x[0] != "vm"] for g in fill]
        pos = {8: 0, 20: 1, 32: 2, 42: 3} if nf == 4 else {12: 0, 24: 1, 36: 2}
        for n, it in enumerate(m):
            emit(k, [it])
            if n in pos: emit(k, fill[pos[n]])
        if mt % 4 == 0 and mt > 0:
            k.op(f"s_add_u32 s{sHST}, s{sHST}, 4096")
        if "nohst" not in OPT: k.vm(f"buffer_store_dwordx4 {vr(O,4)}, v1, s[{rWS}:{rWS+3}], s{sHST} offen offset:{(mt%4)*1024}{'' if 'hstplain' in OPT else ' sc1'}", "hst")
        if mt == 3: ur_dma()
    assert not wd0
    stamp(k, "e_gelu")
    k.wait(vm="ur", lg=[k.lgq[-1]] if k.lgq else [])
    k.op("s_barrier")

def h_signal(k):
    k.wait_all(lg=False)
    k.op("s_barrier")
    cnt_addr(k, 9, idx_sgpr=sI, idx=HCNT)
    signal(k, 9, 10)
    stamp(k, "e_sig")

def conv_phase(k):
    k.wait(vm="dv")
    k.op("v_lshlrev_b32 v8, 16, v15")
    k.op(f"s_lshr_b32 s{sT0}, s{sW}, 1")
    k.op(f"s_mul_i32 s{sT2}, s{sT0}, {HC_CH}")
    k.op(f"s_add_u32 s{sT2}, s{sT2}, {HC}")
    k.op("v_bfe_u32 v5, v0, 2, 2")
    k.op(f"v_mul_u32_u24 v14, {HC_STRIDE}, v5")
    k.op("v_and_b32 v6, 3, v0")
    k.op("v_lshl_add_u32 v14, v6, 3, v14")
    k.op("v_lshrrev_b32 v6, 4, v0")
    k.op("v_lshl_add_u32 v14, v6, 4, v14")
    k.op(f"s_and_b32 s{sT1}, s{sW}, 1")
    k.op(f"s_lshl_b32 s{sT1}, s{sT1}, 8")
    k.op(f"s_add_u32 s{sT2}, s{sT2}, s{sT1}")
    k.op(f"v_add_u32 v14, s{sT2}, v14")
    k.op("v_and_b32 v7, 15, v0")
    k.op("v_lshlrev_b32 v7, 5, v7")
    k.op("v_lshlrev_b32 v5, 4, v6")
    k.op("v_sub_u32 v15, v5, v7")
    k.op(f"s_mul_i32 s{sT2}, s{sT0}, {UR_CH}")
    k.op(f"s_add_u32 s{sT2}, s{sT2}, {UR + 4064 - 3584}")
    k.op(f"s_add_u32 s{sT3}, s{sT2}, s{sT1}")
    k.op(f"v_add_u32 v15, s{sT3}, v15")
    FB = [16, 48]; GBUF = [80, 112]; ACC = 144
    def rdF(sub, J):
        b = FB[sub % 2] + 4 * J
        off = 64 * (8 * J + sub)
        return [("lg", f"ds_read_b64_tr_b16 {vr(b,2)}, v14 offset:{off}", f"F{sub}"),
                ("lg", f"ds_read_b64_tr_b16 {vr(b+2,2)}, v14 offset:{off+8}", f"F{sub}")]
    def rdG(sub, T):
        b = GBUF[sub % 2] + 4 * T
        return [("lg", f"ds_read_b128 {vr(b,4)}, v15 offset:{512*(7-T) + 64*sub}", f"F{sub}")]
    def fg(sub):
        out = []
        for i in range(8):
            out += rdG(sub, 7 - i) + rdF(sub, i)
        return out
    emit(k, fg(0))
    k.op("v_lshlrev_b32 v5, 3, v6")
    k.op("v_add_u32 v7, v7, v5")
    k.op(f"s_add_u32 s{sT2}, s{sT2}, {4088 - 4064}")
    k.op(f"v_sub_u32 v13, s{sT2}, v7")
    k.op("v_lshrrev_b32 v184, 3, v0")
    k.op(f"s_lshl_b32 s{sT0}, s{sW}, 3")
    k.op(f"v_add_u32 v184, s{sT0}, v184")
    k.op("v_and_b32 v185, 7, v0")
    k.op("v_mul_u32_u24 v186, 896, v184")
    k.op("v_lshl_add_u32 v186, v185, 4, v186")
    k.op(f"s_mul_i32 s78, s{sTT}, {64*896}")
    k.op(f"s_lshl_b32 s{sT0}, s{sDT}, 7")
    k.op(f"s_add_u32 s78, s78, s{sT0}")
    k.op(f"s_add_u32 s79, s78, {32*896}")
    k.op(f"s_lshr_b32 s{sU0}, s{sTT}, 1")
    cnt_addr(k, 187, idx_sgpr=sU0, idx=HCNT)
    k.op(f"s_lshl_b32 s{sT0}, s{sTT}, 1")
    k.op(f"s_mul_i32 s{sT0}, s{sT0}, 112")
    k.op(f"s_mul_i32 s{sT1}, s{sW}, 28")
    k.op(f"s_add_u32 s{sT0}, s{sT0}, s{sT1}")
    k.op(f"s_lshl_b32 s{sHG}, s{sT0}, 10")
    wd1 = wd_dma_groups(WD_KS, 2 * WD_KS, "wd1")
    for g in wd1[:WD_KS]:
        for i, it in enumerate(g):
            if it[0] == "vm": g[i] = ("vm", it[1], "wd1a")
    wr0 = wd_read_items(0, WD_KS)
    wr1 = wd_read_items(WD_KS, 2 * WD_KS)
    k.wait(vm="wd0")
    H = WD_KS // 2
    one = lambda items: [[x] for x in items]
    wtag = lambda it: [("fn", lambda t=it[2]: k.wait(lg=t))]
    plan = {0: one(fg(1)) + one(wr0[:4*H]),
            1: one(fg(2)) + [wtag(wr0[4*H-1])] + [g for pair in zip(one(wr0[4*H:]), wd1[:2*H] + [[]] * (4*H - 2*H)) for g in pair],
            2: one(fg(3)) + [wtag(wr0[-1])] + wd1[2*H:],
            3: []}
    first = set()
    for sub in range(4):
        k.wait(lg=f"F{sub}")
        if sub == 1:
            h_signal(k)
            k.vm(f"buffer_load_dwordx4 {ar(224,4)}, v186, s[{rX}:{rX+3}], s78 offen", "ex")
            k.vm(f"buffer_load_dwordx4 {ar(228,4)}, v186, s[{rX}:{rX+3}], s79 offen", "ex")
        if sub == 3:
            plan[3] = [[("fn", lambda: k.wait(vm="wd1a"))]] + one(wr1[:4*H])
        fill = [g for g in plan[sub] if g]
        mf = [(T, J) for T in range(7, -1, -1) for J in range(0, 8 - T)]
        per = len(fill) / 36.0
        done = 0
        for n, (T, J) in enumerate(mf):
            tile = T + J
            a = vr(ACC + 4 * tile, 4)
            cin = a if tile in first else "0"
            first.add(tile)
            k.op(f"v_mfma_f32_16x16x32_bf16 {a}, {vr(FB[sub%2]+4*J,4)}, {vr(GBUF[sub%2]+4*T,4)}, {cin}")
            want = min(len(fill), int(round((n + 1) * per + 0.49)))
            while done < want:
                emit(k, fill[done]); done += 1
        while done < len(fill):
            emit(k, fill[done]); done += 1
    wr1 = wr1[4*H:]
    stamp(k, "c_mfma")
    k.vm(f"global_load_dword v188, v187, s[{sPWS}:{sPWS+1}] sc1", "hcnt")
    k.op(f"s_lshl_b32 s{sT0}, s{sW}, 12")
    k.op(f"s_add_u32 s{sT0}, s{sT0}, {XCH}")
    k.op(f"v_add_u32 v5, s{sT0}, v1")
    k.op(f"s_xor_b32 s{sT1}, s{sW}, 1")
    k.op(f"s_lshl_b32 s{sT1}, s{sT1}, 12")
    k.op(f"s_add_u32 s{sT1}, s{sT1}, {XCH}")
    k.op(f"v_add_u32 v6, s{sT1}, v1")
    k.op(f"s_lshl_b32 s{sT2}, s{sCH}, 12")
    k.op(f"s_add_u32 s{sT2}, s{sT2}, {Y_OFF}")
    if k.lgq: k.wait(lg=k.lgq[-1])
    k.op("s_barrier")
    lo, le = k.newlabel("Lcodd"), k.newlabel("Lcend")
    k.op("s_nop 1")
    def finish(keep, send):
        for i in range(4):
            k.op(f"ds_write_b128 v5, {vr(ACC + 4*(send+i), 4)} offset:{1024*i}")
        for i in range(4):
            k.op(f"ds_read_b64 {vr(40+2*i,2)}, v13 offset:{512*(7-(keep+i))}")
        k.op("s_waitcnt lgkmcnt(0)")
        k.op("s_barrier")
        for i in range(4):
            k.op(f"ds_read_b128 {vr(16+4*i,4)}, v6 offset:{1024*i}")
        for i in range(4):
            U = 40 + 2 * i
            k.op(f"v_and_b32 v{60+4*i}, s{sMASK}, v{U+1}")
            k.op(f"v_lshlrev_b32 v{61+4*i}, 16, v{U+1}")
            k.op(f"v_and_b32 v{62+4*i}, s{sMASK}, v{U}")
            k.op(f"v_lshlrev_b32 v{63+4*i}, 16, v{U}")
            A = ACC + 4 * (keep + i)
            for r in range(4):
                k.op(f"v_fmac_f32 v{A+r}, v{60+4*i+r}, v8")
        k.op("s_waitcnt lgkmcnt(0)")
        for i in range(4):
            A = ACC + 4 * (keep + i)
            k.op(f"v_pk_add_f32 {vr(A,2)}, {vr(A,2)}, {vr(16+4*i,2)}")
            k.op(f"v_pk_add_f32 {vr(A+2,2)}, {vr(A+2,2)}, {vr(18+4*i,2)}")
        for i in range(4):
            A = ACC + 4 * (keep + i)
            k.op(f"v_cvt_pk_bf16_f32 v{48+2*i}, v{A}, v{A+1}")
            k.op(f"v_cvt_pk_bf16_f32 v{49+2*i}, v{A+2}, v{A+3}")
            k.op(f"buffer_store_dwordx2 {vr(48+2*i,2)}, v7, s[{rWS}:{rWS+3}], s{sT2} offen offset:{512*(keep+i)} sc1")
    k.op(f"s_bitcmp1_b32 s{sW}, 0")
    k.op(f"s_cbranch_scc1 {lo}")
    finish(0, 4)
    k.op(f"s_branch {le}")
    k.label(lo)
    finish(4, 0)
    k.label(le)
    for i in range(4): k.vmq.append("yst")
    stamp(k, "c_end")
    return wr1

vH = 16; NHS = 8; vA2 = 192
PD = 4
def g2_hbase(k, g):
    k.op(f"s_add_u32 s{sT3}, s{sROT}, {g}")
    k.op(f"s_cmp_ge_u32 s{sT3}, 7")
    k.op(f"s_cselect_b32 s76, 7, 0")
    k.op(f"s_sub_u32 s{sT3}, s{sT3}, s76")
    k.op(f"s_lshl_b32 s{sT3}, s{sT3}, 12")
    k.op(f"s_add_u32 s76, s{sT3}, s{sHG}")
    k.op(f"s_add_u32 s77, s76, {112*1024}")
def g2_hload(k, ks):
    if ks % 4 == 0: g2_hbase(k, ks // 4)
    for e in range(2):
        b = vH + 8 * (ks % NHS) + 4 * e
        k.vm(f"buffer_load_dwordx4 {vr(b,4)}, v1, s[{rWS}:{rWS+3}], s{76+e} offen offset:{(ks%4)*1024}{'' if 'hplain' in OPT else ' sc1'}", f"h{ks}")

def gemm2_phase(k, wr1):
    k.wait(vm="hcnt")
    check_or_spin(k, 188, 187, sPWS, 14)
    stamp(k, "d_hrdy")
    for ks in range(PD):
        g2_hload(k, ks)
    k.op("v_mov_b32 v5, v184"); k.op("v_mov_b32 v6, v185"); k.op("v_mov_b32 v7, v186")
    k.op("v_lshlrev_b32 v8, 3, v5")
    k.op(f"s_lshl_b32 s{sT0}, s{sTT}, 9")
    k.op(f"s_add_u32 s{sT0}, s{sT0}, {ST_OFF}")
    k.vm(f"buffer_load_dwordx2 {ar(232,2)}, v8, s[{rWS}:{rWS+3}], s{sT0} offen sc1", "ex")
    k.vm(f"buffer_load_dwordx2 {ar(234,2)}, v8, s[{rWS}:{rWS+3}], s{sT0} offen offset:256 sc1", "ex")
    if any(t == "wd1" for t in k.vmq): k.wait(vm="wd1")
    emit_lg_limited(k, wr1)
    k.op(f"s_lshr_b32 s{sU0}, s{sWGM}, 5")
    cnt_addr(k, 9, idx_sgpr=sU0, idx=YCNT)
    k.wait_all()
    k.op("s_barrier")
    signal(k, 9, 8)
    stamp(k, "c_sig")
    cnt_addr(k, 9, idx_sgpr=sDT, idx=YCNT)
    def y_poll():
        k.vm(f"global_load_dword v10, v9, s[{sPWS}:{sPWS+1}] sc1", "ycnt")
    def y_loads():
        k.wait(vm="ycnt")
        check_or_spin(k, 10, 9, sPWS, 32)
        k.op("v_lshrrev_b32 v8, 3, v0")
        k.op("v_lshlrev_b32 v8, 12, v8")
        k.op("v_lshl_add_u32 v8, v6, 4, v8")
        k.op(f"s_lshl_b32 s{sT0}, s{sDT}, 18")
        k.op(f"s_lshl_b32 s{sT1}, s{sW}, 16")
        k.op(f"s_add_u32 s{sT0}, s{sT0}, s{sT1}")
        k.op(f"s_lshl_b32 s{sT1}, s{sTT}, 7")
        k.op(f"s_add_u32 s{sT0}, s{sT0}, s{sT1}")
        k.op(f"s_add_u32 s{sT0}, s{sT0}, {Y_OFF}")
        k.op(f"s_mul_i32 s{sT1}, s{sW}, 2080")
        k.op(f"s_add_u32 m0, s{sT1}, {YT}")
        k.op(f"s_add_u32 s{sT2}, s{sT0}, {8*4096 - 1040}")
        k.vm(f"buffer_load_dwordx4 v8, s[{rWS}:{rWS+3}], s{sT0} offen sc1 lds", "ey")
        k.vm(f"buffer_load_dwordx4 v8, s[{rWS}:{rWS+3}], s{sT2} offen offset:1040 sc1 lds", "ey")
    RROW = 272; RW = 64 * RROW
    k.op("v_and_b32 v11, 31, v0")
    k.op(f"v_mul_u32_u24 v11, {RROW}, v11")
    k.op("v_lshrrev_b32 v12, 5, v0")
    k.op("v_lshl_add_u32 v11, v12, 4, v11")
    k.op(f"s_mul_i32 s{sT0}, s{sW}, {RW}")
    k.op(f"s_add_u32 s{sT0}, s{sT0}, {RED}")
    k.op(f"v_add_u32 v11, s{sT0}, v11")
    first = set()
    def mf(ks, dt2, e):
        t = 2 * dt2 + e
        acc = vr(vA2 + 16 * t, 16)
        cin = acc if t in first else "0"
        first.add(t)
        hb = vH + 8 * (ks % NHS) + 4 * e
        k.op(f"v_mfma_f32_32x32x16_bf16 {acc}, {ar(8*ks+4*dt2,4)}, {vr(hb,4)}, {cin}")
    LASTK = 24
    for ks in range(LASTK):
        k.wait(vm=f"h{ks}")
        if ks % 2 == 0: stamp(k, f"z_{ks}")
        m = 0
        for dt2 in range(2):
            for e in range(2):
                mf(ks, dt2, e)
                kn = ks + PD
                if m == 0 and kn % 4 == 0: g2_hbase(k, kn // 4)
                if m in (1, 2):
                    e2 = m - 1
                    b2 = vH + 8 * (kn % NHS) + 4 * e2
                    k.vm(f"buffer_load_dwordx4 {vr(b2,4)}, v1, s[{rWS}:{rWS+3}], s{76+e2} offen offset:{(kn%4)*1024}{'' if 'hplain' in OPT else ' sc1'}", f"h{kn}")
                if m == 3 and ks == LASTK - 1: y_poll()
                m += 1
    k.wait(vm="h27")
    def wr(t):
        dt2, e = divmod(t, 2)
        return [("lg", f"ds_write_b128 v11, {vr(vA2 + 16*t + 4*g, 4)} offset:{e*32*RROW + dt2*128 + g*32}", f"rw{t}{g}") for g in range(4)]
    for t in range(4):
        dt2, e = divmod(t, 2)
        for ks in range(LASTK, 28):
            mf(ks, dt2, e)
        if t == 2: k.op("s_nop 3")
        if t >= 2: emit(k, wr(t - 2))
    stamp(k, "d_loop")
    y_loads()
    k.op(f"v_mov_b32 v10, {hex(f2u(-1.4426950408889634))}")
    emit(k, wr(2))
    emit(k, wr(3))
    k.op("v_mov_b32 v11, 1.0")
    k.op(f"v_mul_u32_u24 v8, {RROW}, v5")
    k.op("v_lshl_add_u32 v8, v6, 5, v8")
    k.op(f"v_add_u32 v8, {RED}, v8")
    k.op("v_mul_u32_u24 v9, 1040, v6")
    k.op("v_lshl_add_u32 v9, v5, 1, v9")
    k.op(f"v_add_u32 v9, {YT}, v9")
    k.wait(lg=k.lgq[-1])
    k.op("s_barrier")
    for ps in range(2):
        B = 16 + 64 * ps
        for w in range(4):
            for hh in range(2):
                if len(k.lgq) >= 14: k.wait(lg=k.lgq[3])
                k.lg(f"ds_read_b128 {vr(B + 8*w + 4*hh, 4)}, v8 offset:{w*RW + ps*32*RROW + hh*16}", f"p{ps}_{w}{hh}")
    k.wait(vm="ex")
    for ps in range(2):
        B = 16 + 64 * ps
        T = B + 40
        for q in range(4): k.op(f"v_accvgpr_read_b32 v{T+q}, a{224+4*ps+q}")
        k.op(f"v_accvgpr_read_b32 v{T+4}, a{232+2*ps}")
        k.op(f"v_accvgpr_read_b32 v{T+5}, a{233+2*ps}")
        X = B + 48
        for q in range(4):
            k.op(f"v_lshlrev_b32 v{X+2*q}, 16, v{T+q}")
            k.op(f"v_and_b32 v{X+2*q+1}, s{sMASK}, v{T+q}")
        N = B + 56
        for q in range(4):
            k.op(f"v_pk_fma_f32 {vr(N+2*q,2)}, {vr(X+2*q,2)}, {vr(T+4,2)}, {vr(T+4,2)} op_sel:[0,0,1] op_sel_hi:[1,0,1]")
        for e in range(8): k.op(f"v_mov_b32 v{B+32+e}, 0")
    for ps in range(2):
        B = 16 + 64 * ps
        k.wait(lg=f"p{ps}_31")
        for q in range(4):
            k.op(f"v_pk_add_f32 {vr(B+2*q,2)}, {vr(B+2*q,2)}, {vr(B+8+2*q,2)}")
            k.op(f"v_pk_add_f32 {vr(B+16+2*q,2)}, {vr(B+16+2*q,2)}, {vr(B+24+2*q,2)}")
        for q in range(4):
            k.op(f"v_pk_add_f32 {vr(B+2*q,2)}, {vr(B+2*q,2)}, {vr(B+16+2*q,2)}")
        E = B + 16
        for q in range(4):
            k.op(f"v_pk_mul_f32 {vr(E+2*q,2)}, {vr(B+2*q,2)}, {vr(10,2)} op_sel_hi:[1,0]")
        for q in range(8): k.op(f"v_exp_f32 v{E+q}, v{E+q}")
        k.op("s_nop 0")
        for q in range(4): k.op(f"v_pk_add_f32 {vr(E+2*q,2)}, {vr(E+2*q,2)}, {vr(10,2)} op_sel:[0,1] op_sel_hi:[1,1]")
        for q in range(8): k.op(f"v_rcp_f32 v{E+q}, v{E+q}")
        k.op("s_nop 0")
        for q in range(4): k.op(f"v_pk_mul_f32 {vr(E+2*q,2)}, {vr(E+2*q,2)}, {vr(B+2*q,2)}")
        N = B + 56
        for q in range(4): k.op(f"v_pk_mul_f32 {vr(N+2*q,2)}, {vr(N+2*q,2)}, {vr(E+2*q,2)}")
    k.wait(vm="ey")
    k.op("s_barrier")
    for ps in range(2):
        B = 16 + 64 * ps
        for e in range(8):
            if len(k.lgq) >= 14: k.wait(lg=k.lgq[3])
            k.lg(f"ds_read_u16_d16_hi v{B+32+e}, v9 offset:{e*128 + ps*64}", f"y{ps}_{e}")
    for ps in range(2):
        B = 16 + 64 * ps
        Yr = B + 32; T = B + 40; X = B + 48; N = B + 56
        k.wait(lg=f"y{ps}_7")
        for q in range(4): k.op(f"v_pk_fma_f32 {vr(N+2*q,2)}, {vr(N+2*q,2)}, {vr(Yr+2*q,2)}, {vr(X+2*q,2)}")
        for q in range(4): k.op(f"v_cvt_pk_bf16_f32 v{T+8-8+q}, v{N+2*q}, v{N+2*q+1}")
        k.vm(f"buffer_store_dwordx4 {vr(T,4)}, v7, s[{rOUT}:{rOUT+3}], s{78+ps} offen", "ost")
    stamp(k, "d_end")

PP_ROW = 900
PP_K = 0
PP_V = 67 * PP_ROW + 4
def prepass(k):
    k.op(f"s_sub_u32 s{sT0}, s{sSLOT}, 28")
    k.op(f"s_lshl_b32 s{sT0}, s{sT0}, 3")
    k.op(f"s_add_u32 s{sI}, s{sT0}, s{sXCD}")
    k.op("v_lshlrev_b32 v1, 4, v0")
    k.op("s_waitcnt lgkmcnt(0)")
    srd(k, rWS, sPWS, (16 << 20) if STAMPS else WS_USED)
    lab = k.newlabel("Lnolead")
    k.op(f"s_or_b32 s{sT0}, s{sI}, s{sW}")
    k.op(f"s_cmp_lg_u32 s{sT0}, 0")
    k.op(f"s_cbranch_scc1 {lab}")
    k.op("v_lshlrev_b32 v2, 7, v0")
    k.op(f"v_add_u32 v2, {CNT_OFF}, v2")
    k.op("v_mov_b32 v3, 0")
    k.op("s_mov_b32 exec_hi, 0")
    k.op(f"global_store_dword v2, v3, s[{sPWS}:{sPWS+1}] sc1")
    k.op("s_waitcnt vmcnt(0)")
    k.op("v_mov_b32 v2, 1")
    k.op("s_mov_b64 exec, 1")
    k.op(f"global_store_dword v3, v2, s[{sPDBG}:{sPDBG+1}] sc1")
    k.op("s_mov_b64 exec, -1")
    k.label(lab)
    srd(k, rK, sPK, S * D * 2)
    srd(k, rV, sPV, S * D * 2)
    srd(k, rSK, sPSK, D * 4 * 2)
    k.op("s_mov_b32 exec_hi, 0x00ffffff")
    k.op(f"s_lshl_b32 s{sT0}, s{sI}, 6")
    k.op(f"s_add_u32 s{sT0}, s{sT0}, s{sW}")
    k.op(f"s_sub_u32 s{sT1}, s{sT0}, 3")
    k.op(f"s_mul_i32 s{sT1}, s{sT1}, 896")
    k.op(f"s_mul_i32 s{sT2}, s{sW}, {PP_ROW}")
    k.op(f"s_add_u32 m0, s{sT2}, {PP_K}")
    k.op(f"v_add_u32 v2, s{sT1}, v1")
    for n in range(17):
        if n == 16:
            lab = k.newlabel("Lpk")
            k.op(f"s_cmp_eq_u32 s{sW}, 3")
            k.op(f"s_cbranch_scc1 {lab}")
            k.op(f"buffer_load_dwordx4 v2, s[{rK}:{rK+3}], 0 offen lds")
            k.label(lab)
        else:
            k.vm(f"buffer_load_dwordx4 v2, s[{rK}:{rK+3}], 0 offen lds", "k")
            k.op(f"s_add_u32 m0, m0, {4*PP_ROW}")
            k.op(f"v_add_u32 v2, {4*896}, v2")
    k.op(f"s_mul_i32 s{sT1}, s{sT0}, 896")
    k.op(f"s_add_u32 m0, s{sT2}, {PP_V}")
    k.op("s_nop 0")
    for n in range(16):
        k.vm(f"buffer_load_dwordx4 v1, s[{rV}:{rV+3}], s{sT1} offen lds", "v")
        if n < 15:
            k.op(f"s_add_u32 m0, m0, {4*PP_ROW}")
            k.op(f"s_add_u32 s{sT1}, s{sT1}, {4*896}")
    k.op("s_mov_b32 exec_hi, -1")
    k.op("v_and_b32 v2, 3, v0")
    k.op("v_lshrrev_b32 v3, 5, v0")
    k.op("v_lshl_add_u32 v2, v3, 2, v2")
    k.op("v_bfe_u32 v3, v0, 2, 3")
    k.op(f"v_mul_u32_u24 v4, {8*PP_ROW}, v2")
    k.op("v_lshl_add_u32 v4, v3, 2, v4")
    k.op(f"s_lshl_b32 s{sT0}, s{sW}, 5")
    k.op(f"v_add_u32 v4, s{sT0}, v4")
    k.op(f"v_add_u32 v8, {PP_V}, v4")
    k.op("v_lshlrev_b32 v5, 4, v3")
    k.op(f"s_lshl_b32 s{sT0}, s{sW}, 7")
    k.op(f"v_add_u32 v5, s{sT0}, v5")
    k.op("v_lshlrev_b32 v6, 13, v3")
    k.op(f"s_lshl_b32 s{sT0}, s{sW}, 16")
    k.op(f"v_add_u32 v6, s{sT0}, v6")
    k.op("v_lshlrev_b32 v7, 4, v2")
    k.op("v_sub_u32 v6, v6, v7")
    k.op(f"s_lshl_b32 s{sT0}, s{sI}, 7")
    k.op(f"s_sub_u32 s{sT0}, {U_OFF + (2047 - 7) * 2}, s{sT0}")
    k.op(f"v_add_u32 v6, s{sT0}, v6")
    for it in range(7):
        k.vm(f"buffer_load_dwordx4 {vr(100 + 4*it, 4)}, v5, s[{rSK}:{rSK+3}], 0 offen offset:{it*512}", "sk")
    k.wait_all()
    k.op("s_barrier")
    KR, VR = 16, 28
    for it in range(7):
        coff = it * 128
        for j in range(11):
            k.lg(f"ds_read_b32 v{KR+j}, v4 offset:{PP_K + j*PP_ROW + coff}", "kr")
        k.wait(lg="kr")
        for j in range(8):
            k.lg(f"ds_read_b32 v{VR+j}, v8 offset:{j*PP_ROW + coff}", "vr")
        for j in range(11):
            k.op(f"v_lshlrev_b32 v{40+2*j}, 16, v{KR+j}")
            k.op(f"v_and_b32 v{41+2*j}, 0xffff0000, v{KR+j}")
        sk = 100 + 4 * it
        k.op(f"v_lshlrev_b32 v64, 16, v{sk}");   k.op(f"v_lshlrev_b32 v65, 16, v{sk+2}")
        k.op(f"v_and_b32 v66, 0xffff0000, v{sk}"); k.op(f"v_and_b32 v67, 0xffff0000, v{sk+2}")
        k.op(f"v_lshlrev_b32 v68, 16, v{sk+1}"); k.op(f"v_lshlrev_b32 v69, 16, v{sk+3}")
        k.op(f"v_and_b32 v70, 0xffff0000, v{sk+1}"); k.op(f"v_and_b32 v71, 0xffff0000, v{sk+3}")
        k.wait(lg="vr")
        for j in range(8):
            k.op(f"v_lshlrev_b32 v{72+2*j}, 16, v{VR+j}")
            k.op(f"v_and_b32 v{73+2*j}, 0xffff0000, v{VR+j}")
        for t in range(8):
            k.op(f"v_pk_mul_f32 {vr(130+2*t,2)}, {vr(40+2*(t+3),2)}, {vr(64,2)}")
        for j in range(1, 4):
            for t in range(8):
                o = 130 + 2 * t
                k.op(f"v_pk_fma_f32 {vr(o,2)}, {vr(40+2*(t+3-j),2)}, {vr(64+2*j,2)}, {vr(o,2)}")
        for t in range(8):
            o = 130 + 2 * t
            k.op(f"v_pk_mul_f32 {vr(o,2)}, {vr(o,2)}, {vr(72+2*t,2)}")
        O = 150 + 8 * (it % 2)
        for q in range(4):
            k.op(f"v_cvt_pk_bf16_f32 v{O+q}, v{130+2*(7-2*q)}, v{130+2*(6-2*q)}")
            k.op(f"v_cvt_pk_bf16_f32 v{O+4+q}, v{131+2*(7-2*q)}, v{131+2*(6-2*q)}")
        k.op(f"s_mov_b32 s{sT0}, {it * 64 * 4096}")
        k.op(f"s_mov_b32 s{sT1}, {it * 64 * 4096 + 4096}")
        k.vm(f"buffer_store_dwordx4 {vr(O,4)}, v6, s[{rWS}:{rWS+3}], s{sT0} offen sc1", "ust")
        k.vm(f"buffer_store_dwordx4 {vr(O+4,4)}, v6, s[{rWS}:{rWS+3}], s{sT1} offen sc1", "ust")
    k.wait_all()
    k.op("s_barrier")
    lab = k.newlabel("Lpsig")
    k.op(f"s_cmp_lg_u32 s{sW}, 0")
    k.op(f"s_cbranch_scc1 {lab}")
    k.op("v_mov_b32 v9, 0")
    spin_until(k, 9, 8, sPDBG, 1)
    k.label(lab)
    cnt_addr(k, 9, idx=UCNT)
    signal(k, 9, 8)

def kd(name, vgpr=512, acc=256):
    return f""".section .rodata,"a"
.p2align 6
.amdhsa_kernel {name}
  .amdhsa_next_free_vgpr {vgpr}
  .amdhsa_next_free_sgpr 102
  .amdhsa_accum_offset {acc}
  .amdhsa_group_segment_fixed_size 0
  .amdhsa_kernarg_size 104
  .amdhsa_user_sgpr_count 2
  .amdhsa_user_sgpr_kernarg_segment_ptr 1
  .amdhsa_system_sgpr_workgroup_id_x 1
  .amdhsa_float_denorm_mode_32 3
.end_amdhsa_kernel
"""

def build():
    k = K()
    prologue(k, 32768)
    start_main(k)
    gemm1_loop(k)
    gelu_phase(k)
    wr1 = conv_phase(k)
    gemm2_phase(k, wr1)
    for o in OPT:
        if o.startswith("cyc"):
            n = int(o[3:])
            k.op(f"s_add_u32 s10, s73, {n}")
            k.label("L_untilc")
            k.op("s_memtime s[8:9]")
            k.op("s_waitcnt lgkmcnt(0)")
            k.op("s_sub_u32 s11, s10, s8")
            k.op("s_cmp_gt_i32 s11, 0")
            k.op("s_cbranch_scc1 L_untilc")
        if o.startswith("until"):
            n = int(o[5:])
            k.op(f"s_add_u32 s10, s73, {n}")
            k.label("L_until")
            k.op("s_memrealtime s[8:9]")
            k.op("s_waitcnt lgkmcnt(0)")
            k.op("s_sub_u32 s11, s10, s8")
            k.op("s_cmp_gt_i32 s11, 0")
            k.op("s_cbranch_scc1 L_until")
        if o.startswith("delay"):
            n = int(o[5:])
            k.op("s_memtime s[8:9]")
            k.op("s_waitcnt lgkmcnt(0)")
            k.op(f"s_add_u32 s10, s8, {n}")
            k.label("L_delay")
            k.op("s_memtime s[8:9]")
            k.op("s_waitcnt lgkmcnt(0)")
            k.op("s_sub_u32 s11, s10, s8")
            k.op("s_cmp_gt_i32 s11, 0")
            k.op("s_cbranch_scc1 L_delay")
    stamp_flush(k)
    k.op("s_endpgm")
    k.label("L_pre")
    k.vmq = []; k.lgq = []
    prepass(k)
    k.label("L_exit")
    name = NAME + "_kernel"
    header = open("cdna_kernels/" + NAME + ".s.ref").read().split("; Override launch")[0]
    txt = header + f"; @launch grid=(256,1,1) block=(256,1,1) lds={LDS_TOTAL}\n"
    txt += '.amdgcn_target "amdgcn-amd-amdhsa--gfx950"\n.text\n'
    txt += f".globl {name}\n.p2align 8\n.type {name},@function\n{name}:\n"
    txt += k.text() + "s_endpgm\n" + kd(name)
    return txt

if __name__ == "__main__":
    if len(sys.argv) > 2 and sys.argv[2].startswith("stamps"):
        STAMPS = True
        if "=" in sys.argv[2]: STAMPSET = sys.argv[2].split("=")[1].split(",")
    if len(sys.argv) > 3: OPT.update(sys.argv[3].split(","))
    txt = build()
    check_hazards(txt)
    open(sys.argv[1], "w").write(txt)
    if STAMPS: print("stamps:", stamped)
```

```python
import sys, struct
from asmlib import *

NAME = "recurrent_scan__ssm_conv_h3__geglu_ffn__prompt"
S, D, F = 2048, 448, 1792
OPT = set()

H_OFF = 0
U_OFF = H_OFF + 64 * 112 * 1024
Y_OFF = U_OFF + D * 4096
ST_OFF = Y_OFF + D * 4096
CNT_OFF = ST_OFF + S * 8
WS_USED = CNT_OFF + 32 * 128
HCNT, YCNT, UCNT = 0, 16, 24

sPQ, sPK, sPV, sPSK, sPSSM, sPD, sPBX, sPWG = 16, 18, 20, 22, 24, 26, 28, 30
sPWU, sPWD, sPOUT, sPDBG = 32, 34, 36, 38
sPWS = 40
rX, rW, rWS, rWD, rSSM, rOUT, rD = 44, 48, 52, 56, 60, 64, 68
rK, rV, rSK = 48, 56, 60
sT0, sT1, sT2, sT3 = 4, 5, 6, 7
sW, sI, sJ, sWSO, sWM0, sSLOT, sXCD, sONES, sMASK, sWGM = 80, 81, 82, 83, 84, 85, 86, 87, 88, 89
sTT, sDT, sWDS, sWDM, sCH = 90, 91, 92, 93, 94
sHST = 95
sWDG = 75
sROT = 43
sHG = 74
sU0, sU1, sU2, sU3 = 96, 97, 98, 99

SLOT_SZ = 34048
XOFF = 17024
XS = SLOT_SZ
XROW = 912
SLOT = [0, SLOT_SZ, 2 * SLOT_SZ, 3 * SLOT_SZ]
LDS_TOTAL = 163840
HC_STRIDE = 4160
HC_CH = 4 * HC_STRIDE
UR_CH = 4608
WDST = 0
WD_KS = 14
WD_WAVE = WD_KS * 2048
HC = 4 * WD_WAVE
assert HC >= SLOT[3]
UR = HC + 2 * HC_CH
XCH = HC
YT = UR + 2 * UR_CH
assert YT + 8320 <= LDS_TOTAL or True
YT = HC + 16384
RED = 0

vX = 16
vACC = 128

STAMPS = False
STAMP_OFF = 12 << 20
STAMPSET = None
POOL = [8, 10, 72, 18, 20, 22, 28, 16, 24, 26, 30, 32, 34, 36, 12, 14]
stamped = []
def stamp(k, name=""):
    if not STAMPS: return
    if STAMPSET is not None and not any(name.startswith(p) for p in STAMPSET): return
    i = len(stamped)
    assert i < len(POOL)
    stamped.append(name)
    k.op(f"s_memtime s[{POOL[i]}:{POOL[i]+1}]")
def stamp_flush(k):
    if not STAMPS: return
    k.op("s_waitcnt vmcnt(0) lgkmcnt(0)")
    k.op("s_memrealtime s[42:43]")
    k.op("s_waitcnt lgkmcnt(0)")
    k.op("s_mov_b32 s101, s42")
    k.op("s_lshl_b32 s4, s2, 2")
    k.op(f"s_add_u32 s4, s4, s{sW}")
    k.op("s_lshl_b32 s4, s4, 7")
    k.op(f"s_add_u32 s4, s4, {STAMP_OFF}")
    k.op("v_mov_b32 v1, 0")
    k.op("s_mov_b64 exec, 1")
    for i in range(len(stamped)):
        k.op(f"v_mov_b32 v2, s{POOL[i]}")
        k.op(f"buffer_store_dword v2, v1, s[{rWS}:{rWS+3}], s4 offen offset:{4*i}")
    k.op("v_mov_b32 v2, s100")
    k.op(f"buffer_store_dword v2, v1, s[{rWS}:{rWS+3}], s4 offen offset:{4*30}")
    k.op("v_mov_b32 v2, s101")
    k.op(f"buffer_store_dword v2, v1, s[{rWS}:{rWS+3}], s4 offen offset:{4*31}")
    k.op("s_mov_b64 exec, -1")

def f2u(x):
    return struct.unpack("<I", struct.pack("<f", x))[0]

def srd(k, r, ptr, nbytes):
    k.op(f"s_mov_b32 s{r}, s{ptr}")
    k.op(f"s_and_b32 s{r+1}, s{ptr+1}, 0xffff")
    k.op(f"s_mov_b32 s{r+2}, {nbytes}")
    k.op(f"s_mov_b32 s{r+3}, 0x20000")

def emit(k, items):
    for it in items:
        if it[0] == "op": k.op(it[1])
        elif it[0] == "vm": k.vm(it[1], it[2])
        elif it[0] == "lg": k.lg(it[1], it[2])
        elif it[0] == "fn": it[1]()

def capture(fn, *args):
    t = K()
    fn(t, *args)
    assert not t.vmq and not t.lgq
    return [("op", l) for l in t.L]

def interleave(k, main, fill, every, start=0):
    fill = list(fill)
    for n, it in enumerate(main):
        emit(k, [it])
        if fill and n >= start and (n - start) % every == every - 1:
            emit(k, fill.pop(0))
    for g in fill: emit(k, g)

def cnt_addr(k, vreg, idx_sgpr=None, idx=0):
    if idx_sgpr is None:
        k.op(f"v_mov_b32 v{vreg}, {CNT_OFF + idx * 128}")
    else:
        k.op(f"s_lshl_b32 s{sT0}, s{idx_sgpr}, 7")
        k.op(f"s_add_u32 s{sT0}, s{sT0}, {CNT_OFF + idx * 128}")
        k.op(f"v_mov_b32 v{vreg}, s{sT0}")

def spin_until(k, vaddr, vtmp, base, target, cmp="ge"):
    lab, done = k.newlabel("Lspin"), k.newlabel("Lspun")
    k.op(f"s_mov_b32 s{sT1}, 0x40000")
    k.label(lab)
    k.op(f"global_load_dword v{vtmp}, v{vaddr}, s[{base}:{base+1}] sc1")
    k.op("s_waitcnt vmcnt(0)")
    k.op(f"v_readfirstlane_b32 s{sT2}, v{vtmp}")
    k.op(f"s_sub_u32 s{sT1}, s{sT1}, 1")
    k.op(f"s_cmp_ge_u32 s{sT2}, {target}")
    k.op(f"s_cbranch_scc1 {done}")
    k.op("s_sleep 1")
    k.op(f"s_cmp_lg_u32 s{sT1}, 0")
    k.op(f"s_cbranch_scc1 {lab}")
    k.label(done)
    k.vmq = []

def check_or_spin(k, vval, vaddr, base, target):
    done = k.newlabel("Lok")
    k.op(f"v_readfirstlane_b32 s{sT2}, v{vval}")
    k.op(f"s_cmp_ge_u32 s{sT2}, {target}")
    k.op(f"s_cbranch_scc1 {done}")
    q = list(k.vmq)
    spin_until(k, vaddr, vval, base, target)
    k.vmq = q
    k.label(done)

def signal(k, vaddr, vone):
    lab = k.newlabel("Lsig")
    k.op(f"s_cmp_lg_u32 s{sW}, 0")
    k.op(f"s_cbranch_scc1 {lab}")
    k.op(f"v_mov_b32 v{vone}, 1")
    k.op("s_mov_b64 exec, 1")
    k.op(f"global_atomic_add v{vaddr}, v{vone}, s[{sPWS}:{sPWS+1}] sc1")
    k.op("s_mov_b64 exec, -1")
    k.label(lab)

def prologue(k, codebytes):
    if any(o.startswith("cyc") for o in OPT):
        k.op("s_memtime s[72:73]")
        k.op("s_waitcnt lgkmcnt(0)")
        k.op("s_mov_b32 s73, s72")
    if any(o.startswith("until") for o in OPT):
        k.op("s_memrealtime s[72:73]")
        k.op("s_waitcnt lgkmcnt(0)")
        k.op("s_mov_b32 s73, s72")
    k.op("s_getpc_b64 s[12:13]")
    k.op("s_load_dwordx16 s[16:31], s[0:1], 0")
    k.op("s_load_dwordx8 s[32:39], s[0:1], 64")
    k.op("s_load_dwordx2 s[40:41], s[0:1], 96")
    k.op("v_lshrrev_b32 v1, 6, v0")
    k.op("v_and_b32 v0, 63, v0")
    k.op("s_cmp_ge_u32 s2, 256")
    k.op(f"v_readfirstlane_b32 s{sW}, v1")
    k.op("s_cbranch_scc1 L_exit")
    if "nocodepf" not in OPT:
        k.op("s_lshr_b32 s14, s2, 3")
        k.op("s_lshl_b32 s14, s14, 2")
        k.op(f"s_add_u32 s14, s14, s{sW}")
        k.op("s_mul_i32 s14, s14, 384")
        k.op("s_add_u32 s12, s12, s14")
        k.op("s_addc_u32 s13, s13, 0")
        k.op("v_lshlrev_b32 v2, 7, v0")
        k.op("s_mov_b64 exec, 7")
        k.vm("global_load_dword a250, v2, s[12:13]", "code")
        k.op("s_mov_b64 exec, -1")
        assert codebytes <= 128 * 384
    if STAMPS:
        k.op("s_memrealtime s[42:43]")
        k.op("s_waitcnt lgkmcnt(0)")
        k.op("s_mov_b32 s100, s42")
    k.op(f"s_and_b32 s{sXCD}, s2, 7")
    k.op(f"s_lshr_b32 s{sSLOT}, s2, 3")
    k.op(f"s_cmp_ge_u32 s{sSLOT}, 28")
    k.op("s_cbranch_scc1 L_pre")

def wdma(c, e):
    out = []
    if e % 4 == 0:
        out.append(("op", f"s_add_u32 m0, s{sWM0}, {SLOT[c % 4] + e * 1056}"))
    out.append(("op", f"s_add_u32 s{sT3}, s{sWSO}, {(64 * c + e) * 3584 - (e % 4) * 1056}"))
    out.append(("vm", f"buffer_load_dwordx4 v2, s[{rW}:{rW+3}], s{sT3} offen offset:{(e % 4) * 1056} lds", f"w{c}"))
    return out

def start_main(k):
    k.op(f"s_mul_i32 s{sT0}, s{sSLOT}, 37")
    k.op(f"s_lshr_b32 s{sT0}, s{sT0}, 8")
    k.op(f"s_mul_i32 s{sT1}, s{sT0}, 7")
    k.op(f"s_sub_u32 s{sDT}, s{sSLOT}, s{sT1}")
    k.op(f"s_lshr_b32 s{sT2}, s{sXCD}, 1")
    k.op(f"s_lshl_b32 s{sT2}, s{sT2}, 2")
    k.op(f"s_add_u32 s{sI}, s{sT2}, s{sT0}")
    k.op(f"s_lshl_b32 s{sTT}, s{sXCD}, 2")
    k.op(f"s_add_u32 s{sTT}, s{sTT}, s{sT0}")
    k.op("v_lshlrev_b32 v1, 4, v0")
    k.op(f"s_lshl_b32 s{sU0}, s{sI}, 2")
    k.op(f"s_add_u32 s{sU0}, s{sU0}, s{sW}")
    k.op(f"s_mul_i32 s{sU0}, s{sU0}, {32*896}")
    k.op(f"s_mul_i32 s{sU1}, s{sW}, {32*XROW}")
    k.op(f"s_add_u32 s{sU1}, s{sU1}, {XS}")
    k.op(f"s_mul_i32 s{sU2}, s{sDT}, 9")
    k.op(f"s_lshr_b32 s{sU2}, s{sU2}, 1")
    k.op(f"s_mul_i32 s{sT1}, s{sU2}, 896")
    k.op(f"s_mul_i32 s{sT2}, s{sU2}, {XROW}")
    k.op(f"s_add_u32 s{sT1}, s{sT1}, s{sU0}")
    k.op(f"s_add_u32 s{sT2}, s{sT2}, s{sU1}")
    k.op(f"s_add_u32 s{sU3}, s{sU0}, {32*896}")
    k.op(f"s_and_b32 s{sT0}, s{sXCD}, 1")
    k.op(f"s_mul_i32 s{sJ}, s{sT0}, 7")
    k.op(f"s_add_u32 s{sJ}, s{sJ}, s{sDT}")
    k.op("v_lshrrev_b32 v6, 4, v0")
    k.op("v_lshlrev_b32 v6, 6, v6")
    k.op("v_bfe_u32 v7, v0, 1, 3")
    k.op("v_add_u32 v6, v6, v7")
    k.op("v_mul_u32_u24 v6, 3584, v6")
    k.op("v_and_b32 v7, 1, v0")
    k.op("v_lshl_add_u32 v5, v7, 7, v6")
    k.op(f"s_and_b32 s{sT0}, s{sI}, 3")
    k.op(f"s_lshl_b32 s{sT0}, s{sT0}, 1")
    k.op(f"s_lshr_b32 s{sWDG}, s{sW}, 1")
    k.op(f"s_add_u32 s{sT0}, s{sT0}, s{sWDG}")
    k.op(f"s_mul_i32 s{sT0}, s{sT0}, {8*3584}")
    k.op(f"s_lshl_b32 s{sWDG}, s{sJ}, 8")
    k.op(f"s_add_u32 s{sWDG}, s{sWDG}, s{sT0}")
    stamp(k, "b_pre")
    k.op("s_waitcnt lgkmcnt(0)")
    if "tlb" in OPT:
        for i, p in enumerate((sPWG, sPWU, sPWD, sPSSM, sPOUT, sPD)):
            k.op(f"s_load_dword s{96 if False else 100 if not STAMPS else 15}, s[{p}:{p+1}], 0") if False else None
        for p in (sPWG, sPWU, sPWD, sPSSM, sPOUT):
            k.op(f"s_load_dword s15, s[{p}:{p+1}], 0x0")
        for off in (H_OFF, 2 << 20, 4 << 20, 6 << 20, U_OFF + (1 << 20), Y_OFF + (1 << 20)):
            k.op(f"s_mov_b32 s14, {off}")
            k.op(f"s_load_dword s15, s[{sPWS}:{sPWS+1}], s14")
    srd(k, rX, sPQ, S * D * 2)
    k.op(f"s_bitcmp1_b32 s{sW}, 0")
    k.op(f"s_cselect_b32 s{rW}, s{sPWU}, s{sPWG}")
    k.op(f"s_cselect_b32 s{rW+1}, s{sPWU+1}, s{sPWG+1}")
    k.op(f"s_and_b32 s{rW+1}, s{rW+1}, 0xffff")
    k.op(f"s_mov_b32 s{rW+2}, {D*F*2}")
    k.op(f"s_mov_b32 s{rW+3}, 0x20000")
    stamp(k, "start")
    if "earlypf" in OPT:
        k.op("s_mov_b32 exec_hi, 0")
        k.vm(f"buffer_load_dword a250, v5, s[{rW}:{rW+3}], s{sWDG} offen", "pf")
    k.op("s_mov_b32 exec_hi, 0x00ffffff")
    k.op(f"s_mov_b32 s{sT0}, 32")
    lx = k.newlabel("Lxd")
    k.label(lx)
    k.op(f"s_mov_b32 m0, s{sT2}")
    k.op(f"s_add_u32 s{sT2}, s{sT2}, {XROW}")
    k.op(f"buffer_load_dwordx4 v1, s[{rX}:{rX+3}], s{sT1} offen lds")
    k.op(f"s_add_u32 s{sT1}, s{sT1}, 896")
    k.op(f"s_cmp_eq_u32 s{sT1}, s{sU3}")
    k.op(f"s_cselect_b32 s{sT1}, s{sU0}, s{sT1}")
    k.op(f"s_cselect_b32 s{sT2}, s{sU1}, s{sT2}")
    k.op(f"s_sub_u32 s{sT0}, s{sT0}, 1")
    k.op(f"s_cmp_lg_u32 s{sT0}, 0")
    k.op(f"s_cbranch_scc1 {lx}")
    for n in range(32): k.vmq.append("x")
    k.op("s_mov_b32 exec_hi, -1")
    stamp(k, "a_xiss")
    k.op("v_lshrrev_b32 v10, 4, v0")
    k.op(f"v_mul_u32_u24 v2, {16*3584}, v10")
    k.op("v_and_b32 v11, 15, v0")
    k.op("v_lshl_add_u32 v2, v11, 4, v2")
    k.op(f"s_lshr_b32 s{sT0}, s{sW}, 1")
    k.op(f"s_lshl_b32 s{sT0}, s{sT0}, 3")
    k.op(f"s_mul_i32 s{sWSO}, s{sT0}, 3584")
    k.op(f"s_lshl_b32 s{sT1}, s{sJ}, 8")
    k.op(f"s_add_u32 s{sWSO}, s{sWSO}, s{sT1}")
    k.op(f"s_mul_i32 s{sWM0}, s{sT0}, 1056")
    k.op(f"s_and_b32 s{sT1}, s{sW}, 1")
    k.op(f"s_mul_i32 s{sT1}, s{sT1}, {XOFF}")
    k.op(f"s_add_u32 s{sWM0}, s{sWM0}, s{sT1}")
    for e in range(8): emit(k, wdma(0, e))
    stamp(k, "a_issued")
    k.op(f"s_mul_i32 s{sWGM}, s{sXCD}, 28")
    k.op(f"s_add_u32 s{sWGM}, s{sWGM}, s{sSLOT}")
    srd(k, rWS, sPWS, (16 << 20) if STAMPS else WS_USED)
    srd(k, rWD, sPWD, F * D * 2)
    srd(k, rSSM, sPSSM, D * S * 2)
    srd(k, rOUT, sPOUT, S * D * 2)
    srd(k, rD, sPD, D * 2)
    k.op("v_and_b32 v11, 1, v10")
    k.op(f"v_mul_u32_u24 v3, {XOFF}, v11")
    k.op("v_lshrrev_b32 v11, 5, v0")
    k.op("v_lshlrev_b32 v12, 3, v11")
    k.op("v_bfe_u32 v13, v0, 2, 2")
    k.op("v_add_u32 v12, v12, v13")
    k.op("v_mul_u32_u24 v12, 1056, v12")
    k.op("v_add_u32 v3, v3, v12")
    k.op("v_and_b32 v13, 3, v0")
    k.op("v_lshl_add_u32 v3, v13, 3, v3")
    k.op(f"v_add_u32 v14, {2*SLOT_SZ}, v3")
    k.op("v_and_b32 v13, 31, v0")
    k.op(f"s_lshl_b32 s{sT0}, s{sW}, 5")
    k.op(f"v_add_u32 v13, s{sT0}, v13")
    k.op(f"v_mul_u32_u24 v15, {XROW}, v13")
    k.op("v_lshl_add_u32 v15, v11, 4, v15")
    k.op(f"v_add_u32 v15, {XS}, v15")
    k.op(f"s_mov_b32 s{sONES}, 0x3f803f80")
    k.op(f"s_mov_b32 s{sMASK}, 0xffff0000")
    for a in range(8): k.op(f"v_mov_b32 v{6+a}, 0")
    k.wait(vm="x")
    stamp(k, "a_xarr")
    def st(n):
        return [("op", f"v_dot2_f32_bf16 v{6 + n % 4}, v{vX+n}, s{sONES}, v{6 + n % 4}"),
                ("op", f"v_dot2_f32_bf16 v{10 + n % 4}, v{vX+n}, v{vX+n}, v{10 + n % 4}")]
    for ks in range(14):
        k.lg(f"ds_read_b128 {vr(vX + 4 * ks, 4)}, v15 offset:{32 * ks}", f"x{ks}")
    for ks in range(14, 28):
        k.wait(lg=f"x{ks-14}")
        k.lg(f"ds_read_b128 {vr(vX + 4 * ks, 4)}, v15 offset:{32 * ks}", f"x{ks}")
        for q in range(4): emit(k, st(4 * (ks - 14) + q))
        if ks == 15 and "nopf" not in OPT and "w1late" not in OPT:
            k.op(f"s_add_u32 s{sWDG}, s{sWDG}, {128*3584}")
            k.vm(f"buffer_load_dword a250, v5, s[{rW}:{rW+3}], s{sWDG} offen", "pf")
    k.wait(lg="x27")
    k.op("v_mov_b32 v15, v5")
    k.op("s_barrier")
    stamp(k, "a_xreg")
    main = []
    for n in range(56, 112): main += st(n)
    fill = [wdma(1, e) for e in range(8)]
    if "w1late" in OPT and "nopf" not in OPT:
        fill.append([("op", f"s_add_u32 s{sWDG}, s{sWDG}, {128*3584}"),
                     ("vm", f"buffer_load_dword a250, v15, s[{rW}:{rW+3}], s{sWDG} offen", "pf")])
    if "nopf" not in OPT:
        fill.append([("op", f"s_add_u32 s{sWDG}, s{sWDG}, {256*3584}"), ("op", "s_mov_b64 exec, 0xffff"),
                        ("vm", f"buffer_load_dword a250, v15, s[{rW}:{rW+3}], s{sWDG} offen", "pf"), ("op", "s_mov_b64 exec, -1")])
    if "w1late" in OPT:
        emit(k, main)
        late = fill
    else:
        interleave(k, main, fill, 11)
        late = []
    stamp(k, "a_dot")
    k.op("s_nop 2")
    k.op("v_add_f32 v6, v6, v7"); k.op("v_add_f32 v8, v8, v9")
    k.op("v_add_f32 v10, v10, v11"); k.op("v_add_f32 v12, v12, v13")
    k.op("v_add_f32 v6, v6, v8"); k.op("v_add_f32 v10, v10, v12")
    k.op("v_mov_b32 v7, v6"); k.op("v_mov_b32 v11, v10")
    k.op("s_nop 1")
    k.op("v_permlane32_swap_b32 v6, v7"); k.op("v_permlane32_swap_b32 v10, v11")
    k.op("s_nop 1")
    k.op("v_add_f32 v6, v6, v7"); k.op("v_add_f32 v10, v10, v11")
    k.op(f"v_mul_f32 v6, {hex(f2u(1.0/448))}, v6")
    k.op(f"v_mul_f32 v10, {hex(f2u(1.0/448))}, v10")
    k.op("v_fma_f32 v10, -v6, v6, v10")
    k.op("v_max_f32 v10, 0, v10")
    k.op("v_cvt_pk_bf16_f32 v7, v6, v10")
    k.op("v_lshlrev_b32 v6, 16, v7")
    k.op(f"v_and_b32 v10, s{sMASK}, v7")
    k.op(f"v_add_f32 v10, {hex(f2u(1e-5))}, v10")
    k.op("v_cvt_pk_bf16_f32 v10, v10, v10")
    k.op("v_lshlrev_b32 v10, 16, v10")
    k.op("v_sqrt_f32 v10, v10")
    k.op("s_nop 0")
    k.op("v_cvt_pk_bf16_f32 v10, v10, v10")
    k.op("v_lshlrev_b32 v10, 16, v10")
    k.op("v_rcp_f32 v4, v10")
    k.op("s_nop 0")
    LATE[:] = late
    k.op("v_mul_f32 v5, v6, v4")
    k.op("v_sub_f32 v5, 0, v5")
    lab = k.newlabel("Lnost")
    k.op(f"s_cmp_lg_u32 s{sJ}, 0")
    k.op(f"s_cbranch_scc1 {lab}")
    k.op(f"s_lshl_b32 s{sT0}, s{sI}, 2")
    k.op(f"s_add_u32 s{sT0}, s{sT0}, s{sW}")
    k.op(f"s_lshl_b32 s{sT0}, s{sT0}, 8")
    k.op(f"s_add_u32 s{sT0}, s{sT0}, {ST_OFF}")
    k.op("v_lshlrev_b32 v6, 3, v0")
    k.op("s_mov_b32 exec_hi, 0")
    k.op(f"buffer_store_dwordx2 v[4:5], v6, s[{rWS}:{rWS+3}], s{sT0} offen sc1")
    k.op("s_mov_b32 exec_hi, -1")
    k.label(lab)

def norm(n, tp):
    t = 6 + 2 * tp
    return [("op", f"v_lshlrev_b32 v{t}, 16, v{vX+n}"),
            ("op", f"v_and_b32 v{t+1}, s{sMASK}, v{vX+n}"),
            ("op", f"v_fma_f32 v{t}, v{t}, v4, v5"),
            ("op", f"v_fma_f32 v{t+1}, v{t+1}, v4, v5"),
            ("op", f"v_cvt_pk_bf16_f32 v{vX+n}, v{t}, v{t+1}")]
def norm_step(ks):
    a = [norm(4 * ks + q, q) for q in range(4)]
    out = []
    for s in range(5):
        for q in range(4): out.append(a[q][s])
    return out

def hc_dma(q):
    rr, qq = divmod(q, 4)
    out = []
    if qq == 0:
        out.append(("op", f"s_add_u32 m0, s{sU0}, {rr * HC_STRIDE}"))
        out.append(("op", f"s_add_u32 s{sU2}, s{sU1}, {rr * 2}"))
    out.append(("vm", f"buffer_load_dwordx4 v1, s[{rSSM}:{rSSM+3}], s{sU2} offen offset:{qq*1024} lds", "hc"))
    return out

LATE = []
def gemm1_loop(k):
    emit(k, norm_step(0))
    for g in LATE: emit(k, g)
    k.op(f"s_lshr_b32 s{sT0}, s{sW}, 1")
    k.op(f"s_lshl_b32 s{sCH}, s{sWGM}, 1")
    k.op(f"s_add_u32 s{sCH}, s{sCH}, s{sT0}")
    k.op(f"s_and_b32 s{sT1}, s{sW}, 1")
    k.op(f"s_lshl_b32 s{sT1}, s{sT1}, 1")
    k.op(f"s_mul_i32 s{sU0}, s{sT0}, {HC_CH}")
    k.op(f"s_mul_i32 s{sT3}, s{sT1}, {HC_STRIDE}")
    k.op(f"s_add_u32 s{sU0}, s{sU0}, s{sT3}")
    k.op(f"s_add_u32 s{sU0}, s{sU0}, {HC + 32}")
    k.op(f"s_lshl_b32 s{sU1}, s{sCH}, 12")
    k.op(f"s_lshl_b32 s{sT1}, s{sT1}, 1")
    k.op(f"s_add_u32 s{sU1}, s{sU1}, s{sT1}")
    k.op(f"s_add_u32 s{sU1}, s{sU1}, 2")
    stamp(k, "a_norm0")
    k.wait(vm="w0")
    stamp(k, "a_w0")
    k.op("s_barrier")
    stamp(k, "a_stats")
    NF = 8; DIST = 7; NM = 224
    def rd(n):
        ks, mt = divmod(n, 8)
        c, kk = divmod(ks, 4)
        sl = c % 4
        base = "v3" if sl < 2 else "v14"
        off = (SLOT_SZ if sl % 2 else 0) + kk * 256 + mt * 32
        f = 4 * (n % NF)
        return [("lg", f"ds_read_b64_tr_b16 {ar(f, 2)}, {base} offset:{off}", f"f{n}"),
                ("lg", f"ds_read_b64_tr_b16 {ar(f + 2, 2)}, {base} offset:{off + 4 * 1056}", f"f{n}")]
    for n in range(DIST): emit(k, rd(n))
    extra = {}
    k.op(f"s_lshl_b32 s{sT0}, s{sSLOT}, 2")
    k.op(f"s_add_u32 s{sT0}, s{sT0}, s{sW}")
    k.op(f"s_mul_i32 s{sU3}, s{sT0}, {112*128}")
    k.op("v_lshlrev_b32 v15, 7, v0")
    def wd_pf(piece):
        return [("op", "s_mov_b64 exec, 0xffff"),
                ("vm", f"buffer_load_dword a250, v15, s[{rWD}:{rWD+3}], s{sU3} offen offset:{piece*2048}", "pf"),
                ("op", "s_mov_b64 exec, -1")]
    if "nopf" not in OPT:
        for p in range(7):
            if p < 2: extra[5 + 3 * p] = wd_pf(p)
            else:
                extra[5 + 3 * p] = [("op", f"s_add_u32 s{sU3}, s{sU3}, 2048"), ("op", "s_mov_b64 exec, 0xffff"),
                    ("vm", f"buffer_load_dword a250, v15, s[{rWD}:{rWD+3}], s{sU3} offen offset:2048", "pf"), ("op", "s_mov_b64 exec, -1")]
    extra[24] = [("op", "s_mov_b64 exec, 1"),
                 ("vm", f"global_load_dword a40, v15, s[{sPDBG}:{sPDBG+1}] sc1", "init"),
                 ("op", "s_mov_b64 exec, -1")]
    tailfill = capture(g2_setup)
    for n in range(NM):
        ks, mt = divmod(n, 8)
        c, kk = divmod(ks, 4)
        if n % 32 == 0: stamp(k, f"g_c{n//32}")
        if n % 4 == 0:
            k.wait(lg=[f"f{n+i}" for i in range(4)])
        f = 4 * (n % NF)
        acc = vr(vACC + 16 * mt, 16)
        cin = "0" if ks == 0 else acc
        k.op(f"v_mfma_f32_32x32x16_bf16 {acc}, {ar(f, 4)}, {vr(vX + 4 * ks, 4)}, {cin}")
        nn = n + DIST
        if nn < NM:
            if nn % 32 == 0:
                k.wait(vm=f"w{nn // 32}")
                k.op("s_barrier")
            emit(k, rd(nn))
        if ks + 1 < 28:
            st = norm_step(ks + 1)
            cut = [0, 3, 6, 9, 12, 15, 18, 20, 20]
            emit(k, st[cut[mt]: cut[mt + 1]])
        if c == 0 and mt in (3, 5, 6, 7):
            e = 4 * (kk % 2) + (3, 5, 6, 7).index(mt)
            emit(k, wdma(2 + kk // 2, e))
        if ks == 27:
            lo_, hi_ = (len(tailfill) * mt) // 8, (len(tailfill) * (mt + 1)) // 8
            emit(k, tailfill[lo_:hi_])
        if mt in (6, 7):
            e = 2 * kk + (mt - 6)
            if c >= 1 and c + 3 < 7: emit(k, wdma(c + 3, e))
            if c in (4, 5) and mt == 7:
                q = (c - 4) * 4 + kk
                emit(k, hc_dma(q))
        if mt == 7 and ks in extra: emit(k, extra[ks])
    stamp(k, "g_end")

def g2_setup(k):
    k.op(f"s_and_b32 s{sT0}, s{sTT}, 3")
    k.op(f"s_lshl_b32 s{sT0}, s{sT0}, 1")
    k.op(f"s_add_u32 s{sROT}, s{sT0}, s{sDT}")
    k.op(f"s_cmp_ge_u32 s{sROT}, 7")
    k.op(f"s_cselect_b32 s{sT0}, 7, 0")
    k.op(f"s_sub_u32 s{sROT}, s{sROT}, s{sT0}")
    k.op("v_lshrrev_b32 v3, 3, v0")
    k.op("v_mul_u32_u24 v2, 896, v3")
    k.op("v_bfe_u32 v3, v0, 4, 1")
    k.op("v_lshlrev_b32 v3, 2, v3")
    k.op("v_and_b32 v4, 7, v0")
    k.op("v_xor_b32 v3, v3, v4")
    k.op("v_lshl_add_u32 v2, v3, 4, v2")
    k.op(f"s_mul_i32 s{sWDS}, s{sW}, {16*28*896}")
    k.op(f"s_lshl_b32 s{sT0}, s{sDT}, 7")
    k.op(f"s_add_u32 s{sWDS}, s{sWDS}, s{sT0}")
    k.op(f"s_sub_u32 s{sWDS}, s{sWDS}, 4096")
    k.op(f"s_mul_i32 s{sWDM}, s{sW}, {WD_WAVE}")
    k.op(f"s_add_u32 s{sWDM}, s{sWDM}, {WDST}")
    k.op("v_lshrrev_b32 v5, 5, v0")
    k.op("v_bfe_u32 v6, v0, 2, 2")
    k.op("v_lshl_add_u32 v5, v5, 2, v6")
    k.op("v_lshlrev_b32 v5, 7, v5")
    k.op("v_bfe_u32 v7, v0, 4, 1")
    k.op("v_lshl_add_u32 v5, v7, 5, v5")
    k.op("v_and_b32 v7, 3, v0")
    k.op("v_lshl_add_u32 v5, v7, 3, v5")
    k.op(f"v_add_u32 v5, s{sWDM}, v5")
    k.op("v_bfe_u32 v6, v0, 3, 1")
    k.op("v_lshlrev_b32 v6, 6, v6")
    k.op("v_add_u32 v3, v5, v6")
    k.op("v_xor_b32 v6, 64, v6")
    k.op("v_add_u32 v4, v5, v6")

def wd_group_base(g):
    return [("op", f"s_add_u32 s{sT3}, s{sROT}, {g}"),
            ("op", f"s_cmp_ge_u32 s{sT3}, 7"),
            ("op", f"s_cselect_b32 s{sWDG}, 7, 0"),
            ("op", f"s_sub_u32 s{sT3}, s{sT3}, s{sWDG}"),
            ("op", f"s_mul_i32 s{sT3}, s{sT3}, {64*896}"),
            ("op", f"s_add_u32 s{sWDG}, s{sT3}, s{sWDS}")]
def wd_dma_groups(ks0, ks1, tag):
    out = []
    q = 0
    for ks in range(ks0, ks1):
        for hh in range(2):
            g = []
            if ks % 4 == 0 and hh == 0: g += wd_group_base(ks // 4)
            if q % 4 == 0:
                g.append(("op", f"s_add_u32 m0, s{sWDM}, {(q // 4) * 4096}"))
            g.append(("op", f"s_add_u32 s{sT3}, s{sWDG}, {(16 * (ks % 4) + 8 * hh) * 896 - (q % 4) * 1024 + 4096}"))
            g.append(("vm", f"buffer_load_dwordx4 v2, s[{rWD}:{rWD+3}], s{sT3} offen offset:{(q % 4) * 1024} lds", tag))
            out.append(g)
            q += 1
    return out

def wd_read_items(ks0, ks1):
    out = []
    for ks in range(ks0, ks1):
        for dt2 in range(2):
            for t in range(2):
                a = 8 * ks + 4 * dt2 + 2 * t
                out.append(("lg", f"ds_read_b64_tr_b16 {ar(a,2)}, v{3+dt2} offset:{(ks-ks0)*2048 + t*1024}", f"wr{ks}_{dt2}_{t}"))
    return out
def emit_lg_limited(k, items):
    for it in items:
        if it[0] == "lg" and len(k.lgq) >= 12: k.wait(lg=k.lgq[5])
        emit(k, [it])

def gelu_phase(k):
    if k.lgq: k.wait(lg=[k.lgq[-1]])
    k.op("s_barrier")
    vC, vONE = 16, 18
    C1 = -2.0 * 0.7978845608028654 * 1.4426950408889634
    C2 = C1 * 0.044715
    k.op(f"v_mov_b32 v{vC}, {hex(f2u(C1))}")
    k.op(f"v_mov_b32 v{vC+1}, {hex(f2u(C2))}")
    k.op(f"v_mov_b32 v{vONE}, 1.0")
    k.op(f"v_mov_b32 v{vONE+1}, 1.0")
    k.op(f"s_lshl_b32 s{sT0}, s{sI}, 2")
    k.op(f"s_add_u32 s{sT0}, s{sT0}, s{sW}")
    k.op(f"s_mul_i32 s{sHST}, s{sT0}, {112*1024}")
    k.op(f"s_lshl_b32 s{sT1}, s{sJ}, 13")
    k.op(f"s_add_u32 s{sHST}, s{sHST}, s{sT1}")
    k.wait(vm="init")
    k.op("v_accvgpr_read_b32 v8, a40")
    k.op("v_mov_b32 v9, 0")
    k.op("s_nop 0")
    check_or_spin(k, 8, 9, sPDBG, 1)
    cnt_addr(k, 9, idx=UCNT)
    k.vm(f"global_load_dword v8, v9, s[{sPWS}:{sPWS+1}] sc1", "ucnt")
    k.op("v_lshrrev_b32 v10, 4, v0")
    k.op("v_and_b32 v11, 15, v0")
    k.op("v_add_u32 v12, v10, v11")
    k.op("v_subrev_u32 v12, 15, v12")
    k.op("v_lshlrev_b32 v12, 1, v12")
    k.op(f"s_lshl_b32 s{sT1}, s{sCH}, 12")
    k.op("v_cmp_gt_i32 vcc, 0, v12")
    k.op("v_mov_b32 v13, 0x7fffffff")
    k.op("s_nop 0")
    k.op("v_cndmask_b32 v12, v12, v13, vcc")
    k.vm(f"buffer_load_ushort v14, v12, s[{rSSM}:{rSSM+3}], s{sT1} offen", "hf")
    k.op(f"s_lshl_b32 s{sT1}, s{sCH}, 1")
    k.op("v_mov_b32 v13, 0")
    k.vm(f"buffer_load_ushort v15, v13, s[{rD}:{rD+3}], s{sT1} offen", "dv")
    k.op(f"v_mul_u32_u24 v10, {HC_STRIDE}, v10")
    k.op("v_lshl_add_u32 v10, v11, 1, v10")
    k.op(f"s_lshr_b32 s{sT0}, s{sW}, 1")
    k.op(f"s_mul_i32 s{sT2}, s{sT0}, {HC_CH}")
    k.op(f"s_add_u32 s{sT2}, s{sT2}, {HC}")
    k.op(f"v_add_u32 v10, s{sT2}, v10")
    k.op(f"s_mul_i32 s{sT2}, s{sT0}, {UR_CH}")
    k.op(f"s_add_u32 s{sT2}, s{sT2}, {UR + 4096}")
    k.op(f"v_add_u32 v11, s{sT2}, v1")
    k.op("v_mov_b32 v20, 0"); k.op("v_mov_b32 v21, 0"); k.op("v_mov_b32 v22, 0"); k.op("v_mov_b32 v23, 0")
    k.op("s_mov_b32 exec_hi, 0")
    k.lg("ds_write_b128 v11, v[20:23]", "z")
    k.op("s_mov_b32 exec_hi, -1")
    wd0 = wd_dma_groups(0, WD_KS, "wd0")
    def ur_dma():
        k.wait(vm="ucnt")
        check_or_spin(k, 8, 9, sPWS, 32)
        k.op(f"s_lshr_b32 s{sT0}, s{sW}, 1")
        k.op(f"s_and_b32 s{sT1}, s{sW}, 1")
        k.op(f"s_lshl_b32 s{sT1}, s{sT1}, 11")
        k.op(f"s_mul_i32 s{sT2}, s{sT0}, {UR_CH}")
        k.op(f"s_add_u32 s{sT2}, s{sT2}, s{sT1}")
        k.op(f"s_add_u32 m0, s{sT2}, {UR}")
        k.op(f"s_lshl_b32 s{sT3}, s{sCH}, 12")
        k.op(f"s_add_u32 s{sT3}, s{sT3}, s{sT1}")
        k.op(f"s_add_u32 s{sT3}, s{sT3}, {U_OFF}")
        k.vm(f"buffer_load_dwordx4 v1, s[{rWS}:{rWS+3}], s{sT3} offen sc1 lds", "ur")
        k.vm(f"buffer_load_dwordx4 v1, s[{rWS}:{rWS+3}], s{sT3} offen offset:1024 sc1 lds", "ur")
        k.wait(vm="hf")
        k.lg("ds_write_b16 v10, v14", "z")
    for mt in range(8):
        stamp(k, f"y_{mt}")
        G = vACC + 16 * mt; U = G + 8
        T = 24 + (mt % 2) * 24
        tp = lambda p: T + 2 * p
        gu = lambda p: T + 8 + 2 * p
        O = T + 16
        P = range(4)
        m = []
        for p in P: m.append(("op", f"v_pk_mul_f32 {vr(tp(p),2)}, {vr(G+2*p,2)}, {vr(G+2*p,2)}"))
        for p in P: m.append(("op", f"v_pk_fma_f32 {vr(tp(p),2)}, {vr(tp(p),2)}, {vr(vC,2)}, {vr(vC,2)} op_sel:[0,1,0] op_sel_hi:[1,1,0]"))
        for p in P: m.append(("op", f"v_pk_mul_f32 {vr(tp(p),2)}, {vr(tp(p),2)}, {vr(G+2*p,2)}"))
        for p in P:
            m.append(("op", f"v_exp_f32 v{tp(p)}, v{tp(p)}")); m.append(("op", f"v_exp_f32 v{tp(p)+1}, v{tp(p)+1}"))
        for p in P: m.append(("op", f"v_pk_mul_f32 {vr(gu(p),2)}, {vr(G+2*p,2)}, {vr(U+2*p,2)}"))
        for p in P: m.append(("op", f"v_pk_add_f32 {vr(tp(p),2)}, {vr(tp(p),2)}, {vr(vONE,2)}"))
        for p in P:
            m.append(("op", f"v_rcp_f32 v{tp(p)}, v{tp(p)}")); m.append(("op", f"v_rcp_f32 v{tp(p)+1}, v{tp(p)+1}"))
        m.append(("op", "s_nop 0"))
        for p in P: m.append(("op", f"v_pk_mul_f32 {vr(gu(p),2)}, {vr(gu(p),2)}, {vr(tp(p),2)}"))
        for p in P: m.append(("op", f"v_cvt_pk_bf16_f32 v{O+p}, v{gu(p)}, v{gu(p)+1}"))
        nf = 4 if mt < 4 else 3
        fill = [wd0.pop(0) for _ in range(nf)]
        if "nowdg" in OPT: fill = [[x for x in g if x[0] != "vm"] for g in fill]
        pos = {8: 0, 20: 1, 32: 2, 42: 3} if nf == 4 else {12: 0, 24: 1, 36: 2}
        for n, it in enumerate(m):
            emit(k, [it])
            if n in pos: emit(k, fill[pos[n]])
        if mt % 4 == 0 and mt > 0:
            k.op(f"s_add_u32 s{sHST}, s{sHST}, 4096")
        if "nohst" not in OPT: k.vm(f"buffer_store_dwordx4 {vr(O,4)}, v1, s[{rWS}:{rWS+3}], s{sHST} offen offset:{(mt%4)*1024}{'' if 'hstplain' in OPT else ' sc1'}", "hst")
        if mt == 3: ur_dma()
    assert not wd0
    stamp(k, "e_gelu")
    k.wait(vm="ur", lg=[k.lgq[-1]] if k.lgq else [])
    k.op("s_barrier")

def h_signal(k):
    k.wait(vm="hst")
    k.op("s_barrier")
    cnt_addr(k, 9, idx_sgpr=sI, idx=HCNT)
    signal(k, 9, 10)
    stamp(k, "e_sig")

def conv_phase(k):
    k.wait(vm="dv")
    k.op("v_lshlrev_b32 v8, 16, v15")
    k.op(f"s_lshr_b32 s{sT0}, s{sW}, 1")
    k.op(f"s_mul_i32 s{sT2}, s{sT0}, {HC_CH}")
    k.op(f"s_add_u32 s{sT2}, s{sT2}, {HC}")
    k.op("v_bfe_u32 v5, v0, 2, 2")
    k.op(f"v_mul_u32_u24 v14, {HC_STRIDE}, v5")
    k.op("v_and_b32 v6, 3, v0")
    k.op("v_lshl_add_u32 v14, v6, 3, v14")
    k.op("v_lshrrev_b32 v6, 4, v0")
    k.op("v_lshl_add_u32 v14, v6, 4, v14")
    k.op(f"s_and_b32 s{sT1}, s{sW}, 1")
    k.op(f"s_lshl_b32 s{sT1}, s{sT1}, 8")
    k.op(f"s_add_u32 s{sT2}, s{sT2}, s{sT1}")
    k.op(f"v_add_u32 v14, s{sT2}, v14")
    k.op("v_and_b32 v7, 15, v0")
    k.op("v_lshlrev_b32 v7, 5, v7")
    k.op("v_lshlrev_b32 v5, 4, v6")
    k.op("v_sub_u32 v15, v5, v7")
    k.op(f"s_mul_i32 s{sT2}, s{sT0}, {UR_CH}")
    k.op(f"s_add_u32 s{sT2}, s{sT2}, {UR + 4064 - 3584}")
    k.op(f"s_add_u32 s{sT3}, s{sT2}, s{sT1}")
    k.op(f"v_add_u32 v15, s{sT3}, v15")
    FB = [16, 48]; GBUF = [80, 112]; ACC = 144
    def rdF(sub, J):
        b = FB[sub % 2] + 4 * J
        off = 64 * (8 * J + sub)
        return [("lg", f"ds_read_b64_tr_b16 {vr(b,2)}, v14 offset:{off}", f"F{sub}"),
                ("lg", f"ds_read_b64_tr_b16 {vr(b+2,2)}, v14 offset:{off+8}", f"F{sub}")]
    def rdG(sub, T):
        b = GBUF[sub % 2] + 4 * T
        return [("lg", f"ds_read_b128 {vr(b,4)}, v15 offset:{512*(7-T) + 64*sub}", f"F{sub}")]
    def fg(sub):
        out = []
        for i in range(8):
            out += rdG(sub, 7 - i) + rdF(sub, i)
        return out
    emit(k, fg(0))
    k.op("v_lshlrev_b32 v5, 3, v6")
    k.op("v_add_u32 v7, v7, v5")
    k.op(f"s_add_u32 s{sT2}, s{sT2}, {4088 - 4064}")
    k.op(f"v_sub_u32 v13, s{sT2}, v7")
    k.op("v_and_b32 v5, 1, v6")
    k.op("v_mul_u32_u24 v5, 504, v5")
    k.op("v_add_u32 v7, v7, v5")
    k.op("v_lshrrev_b32 v184, 3, v0")
    k.op(f"s_lshl_b32 s{sT0}, s{sW}, 3")
    k.op(f"v_add_u32 v184, s{sT0}, v184")
    k.op("v_and_b32 v185, 7, v0")
    k.op("v_mul_u32_u24 v186, 896, v184")
    k.op("v_lshl_add_u32 v186, v185, 4, v186")
    k.op(f"s_mul_i32 s78, s{sTT}, {64*896}")
    k.op(f"s_lshl_b32 s{sT0}, s{sDT}, 7")
    k.op(f"s_add_u32 s78, s78, s{sT0}")
    k.op(f"s_add_u32 s79, s78, {32*896}")
    k.op(f"s_lshr_b32 s{sU0}, s{sTT}, 1")
    cnt_addr(k, 187, idx_sgpr=sU0, idx=HCNT)
    k.op(f"s_lshl_b32 s{sT0}, s{sTT}, 1")
    k.op(f"s_mul_i32 s{sT0}, s{sT0}, 112")
    k.op(f"s_mul_i32 s{sT1}, s{sW}, 28")
    k.op(f"s_add_u32 s{sT0}, s{sT0}, s{sT1}")
    k.op(f"s_lshl_b32 s{sHG}, s{sT0}, 10")
    wd1 = wd_dma_groups(WD_KS, 2 * WD_KS, "wd1")
    for g in wd1[:WD_KS]:
        for i, it in enumerate(g):
            if it[0] == "vm": g[i] = ("vm", it[1], "wd1a")
    wr0 = wd_read_items(0, WD_KS)
    wr1 = wd_read_items(WD_KS, 2 * WD_KS)
    H = WD_KS // 2
    one = lambda items: [[x] for x in items]
    wtag = lambda it: [("fn", lambda t=it[2]: k.wait(lg=t))]
    plan = {0: one(fg(1)) + [[("fn", lambda: k.wait(vm="wd0"))]] + one(wr0[:4*H]),
            1: one(fg(2)) + [wtag(wr0[4*H-1])] + [g for pair in zip(one(wr0[4*H:]), wd1[:2*H] + [[]] * (4*H - 2*H)) for g in pair],
            2: one(fg(3)) + [wtag(wr0[-1])] + wd1[2*H:],
            3: []}
    first = set()
    for sub in range(4):
        stamp(k, f"s_pre{sub}")
        k.wait(lg=f"F{sub}")
        if sub == 1:
            h_signal(k)
            k.vm(f"buffer_load_dwordx4 {ar(224,4)}, v186, s[{rX}:{rX+3}], s78 offen", "ex")
            k.vm(f"buffer_load_dwordx4 {ar(228,4)}, v186, s[{rX}:{rX+3}], s79 offen", "ex")
        if sub == 2:
            k.vm(f"global_load_dword v188, v187, s[{sPWS}:{sPWS+1}] sc1", "hcnt")
        stamp(k, f"s_go{sub}")
        fill = [g for g in plan[sub] if g]
        mf = [(T, J) for T in range(7, -1, -1) for J in range(0, 8 - T)]
        per = len(fill) / 36.0
        done = 0
        for n, (T, J) in enumerate(mf):
            tile = T + J
            a = vr(ACC + 4 * tile, 4)
            cin = a if tile in first else "0"
            first.add(tile)
            k.op(f"v_mfma_f32_16x16x32_bf16 {a}, {vr(FB[sub%2]+4*J,4)}, {vr(GBUF[sub%2]+4*T,4)}, {cin}")
            want = min(len(fill), int(round((n + 1) * per + 0.49)))
            while done < want:
                emit(k, fill[done]); done += 1
        while done < len(fill):
            emit(k, fill[done]); done += 1
    stamp(k, "c_mfma")
    k.wait(vm="hcnt")
    check_or_spin(k, 188, 187, sPWS, 14)
    stamp(k, "d_hrdy")
    k.op("v_lshlrev_b32 v189, 3, v184")
    k.op(f"s_lshl_b32 s{sT0}, s{sTT}, 9")
    k.op(f"s_add_u32 s{sT0}, s{sT0}, {ST_OFF}")
    k.vm(f"buffer_load_dwordx2 {ar(232,2)}, v189, s[{rWS}:{rWS+3}], s{sT0} offen sc1", "ex")
    k.vm(f"buffer_load_dwordx2 {ar(234,2)}, v189, s[{rWS}:{rWS+3}], s{sT0} offen offset:256 sc1", "ex")
    for ks in range(PD):
        g2_hload(k, ks)
    k.op(f"s_lshl_b32 s{sT0}, s{sW}, 12")
    k.op(f"s_add_u32 s{sT0}, s{sT0}, {XCH}")
    k.op(f"v_add_u32 v5, s{sT0}, v1")
    k.op(f"s_xor_b32 s{sT1}, s{sW}, 1")
    k.op(f"s_lshl_b32 s{sT1}, s{sT1}, 12")
    k.op(f"s_add_u32 s{sT1}, s{sT1}, {XCH}")
    k.op(f"v_add_u32 v6, s{sT1}, v1")
    k.op(f"s_lshl_b32 s{sT2}, s{sCH}, 12")
    k.op(f"s_add_u32 s{sT2}, s{sT2}, {Y_OFF}")
    if k.lgq: k.wait(lg=k.lgq[-1])
    k.op("s_barrier")
    lo, le = k.newlabel("Lcodd"), k.newlabel("Lcend")
    k.op("s_nop 1")
    def finish(keep, send):
        for i in range(4):
            k.op(f"ds_write_b128 v5, {vr(ACC + 4*(send+i), 4)} offset:{1024*i}")
        for i in range(4):
            k.op(f"ds_read_b64 {vr(64+2*i,2)}, v13 offset:{512*(7-(keep+i))}")
        k.op("s_waitcnt lgkmcnt(0)")
        k.op("s_barrier")
        for i in range(4):
            k.op(f"ds_read_b128 {vr(48+4*i,4)}, v6 offset:{1024*i}")
        for i in range(4):
            U = 64 + 2 * i
            k.op(f"v_and_b32 v{112+4*i}, s{sMASK}, v{U+1}")
            k.op(f"v_lshlrev_b32 v{113+4*i}, 16, v{U+1}")
            k.op(f"v_and_b32 v{114+4*i}, s{sMASK}, v{U}")
            k.op(f"v_lshlrev_b32 v{115+4*i}, 16, v{U}")
            A = ACC + 4 * (keep + i)
            for r in range(4):
                k.op(f"v_fmac_f32 v{A+r}, v{112+4*i+r}, v8")
        k.op("s_waitcnt lgkmcnt(0)")
        for i in range(4):
            A = ACC + 4 * (keep + i)
            k.op(f"v_pk_add_f32 {vr(A,2)}, {vr(A,2)}, {vr(48+4*i,2)}")
            k.op(f"v_pk_add_f32 {vr(A+2,2)}, {vr(A+2,2)}, {vr(50+4*i,2)}")
        for i in range(4):
            A = ACC + 4 * (keep + i)
            k.op(f"v_cvt_pk_bf16_f32 v{72+2*i}, v{A}, v{A+1}")
            k.op(f"v_cvt_pk_bf16_f32 v{73+2*i}, v{A+2}, v{A+3}")
        k.op("s_nop 1")
        for i in (0, 2):
            k.op(f"v_permlane16_swap_b32 v{72+2*i}, v{74+2*i}")
            k.op(f"v_permlane16_swap_b32 v{73+2*i}, v{75+2*i}")
        k.op("s_nop 0")
        for i in (0, 2):
            k.op(f"buffer_store_dwordx4 {vr(72+2*i,4)}, v7, s[{rWS}:{rWS+3}], s{sT2} offen offset:{512*(keep+i)} sc1")
    k.op(f"s_bitcmp1_b32 s{sW}, 0")
    k.op(f"s_cbranch_scc1 {lo}")
    finish(0, 4)
    k.op(f"s_branch {le}")
    k.label(lo)
    finish(4, 0)
    k.label(le)
    for i in range(2): k.vmq.append("yst")
    stamp(k, "c_end")
    return wr1

NHS = 8; vA2 = 192
def hreg(ks, e):
    sl = ks % NHS
    return (16 + 8 * sl if sl < 4 else 80 + 8 * (sl - 4)) + 4 * e
PD = 4
def g2_hbase(k, g):
    k.op(f"s_add_u32 s{sT3}, s{sROT}, {g}")
    k.op(f"s_cmp_ge_u32 s{sT3}, 7")
    k.op(f"s_cselect_b32 s76, 7, 0")
    k.op(f"s_sub_u32 s{sT3}, s{sT3}, s76")
    k.op(f"s_lshl_b32 s{sT3}, s{sT3}, 12")
    k.op(f"s_add_u32 s76, s{sT3}, s{sHG}")
    k.op(f"s_add_u32 s77, s76, {112*1024}")
def g2_hload(k, ks):
    if ks % 4 == 0: g2_hbase(k, ks // 4)
    for e in range(2):
        b = hreg(ks, e)
        k.vm(f"buffer_load_dwordx4 {vr(b,4)}, v1, s[{rWS}:{rWS+3}], s{76+e} offen offset:{(ks%4)*1024}{'' if 'hplain' in OPT else ' sc1'}", f"h{ks}")

def gemm2_phase(k, wr1):
    k.op("v_mov_b32 v5, v184"); k.op("v_mov_b32 v6, v185"); k.op("v_mov_b32 v7, v186")
    for ks in range(PD, 2 * PD):
        g2_hload(k, ks)
    k.op(f"s_lshr_b32 s{sU0}, s{sWGM}, 5")
    cnt_addr(k, 9, idx_sgpr=sU0, idx=YCNT)
    k.op(f"s_lshl_b32 s{sU1}, s{sDT}, 7")
    k.op(f"s_add_u32 s{sU1}, s{sU1}, {CNT_OFF + YCNT * 128}")
    def y_loads():
        done = k.newlabel("Lyok")
        stamp(k, "t_y0")
        k.op("s_waitcnt lgkmcnt(0)")
        k.lgq = []
        stamp(k, "t_y1")
        k.op(f"s_cmp_ge_u32 s{sU2}, 32")
        k.op(f"s_cbranch_scc1 {done}")
        k.op(f"v_mov_b32 v9, s{sU1}")
        q = list(k.vmq)
        spin_until(k, 9, 10, sPWS, 32)
        k.vmq = q
        k.label(done)
        stamp(k, "t_y2")
        k.op("v_lshrrev_b32 v8, 3, v0")
        k.op("v_lshlrev_b32 v8, 12, v8")
        k.op("v_lshl_add_u32 v8, v6, 4, v8")
        k.op(f"s_lshl_b32 s{sT0}, s{sDT}, 18")
        k.op(f"s_lshl_b32 s{sT1}, s{sW}, 16")
        k.op(f"s_add_u32 s{sT0}, s{sT0}, s{sT1}")
        k.op(f"s_lshl_b32 s{sT1}, s{sTT}, 7")
        k.op(f"s_add_u32 s{sT0}, s{sT0}, s{sT1}")
        k.op(f"s_add_u32 s{sT0}, s{sT0}, {Y_OFF}")
        k.op(f"s_mul_i32 s{sT1}, s{sW}, 2080")
        k.op(f"s_add_u32 m0, s{sT1}, {YT}")
        k.op(f"s_add_u32 s{sT2}, s{sT0}, {8*4096 - 1040}")
        k.vm(f"buffer_load_dwordx4 v8, s[{rWS}:{rWS+3}], s{sT0} offen sc1 lds", "ey")
        k.vm(f"buffer_load_dwordx4 v8, s[{rWS}:{rWS+3}], s{sT2} offen offset:1040 sc1 lds", "ey")
    RROW = 272; RW = 64 * RROW
    k.op("v_and_b32 v11, 31, v0")
    k.op(f"v_mul_u32_u24 v11, {RROW}, v11")
    k.op("v_lshrrev_b32 v12, 5, v0")
    k.op("v_lshl_add_u32 v11, v12, 4, v11")
    k.op(f"s_mul_i32 s{sT0}, s{sW}, {RW}")
    k.op(f"s_add_u32 s{sT0}, s{sT0}, {RED}")
    k.op(f"v_add_u32 v11, s{sT0}, v11")
    first = set()
    def mf(ks, dt2, e):
        t = 2 * dt2 + e
        acc = vr(vA2 + 16 * t, 16)
        cin = acc if t in first else "0"
        first.add(t)
        hb = hreg(ks, e)
        k.op(f"v_mfma_f32_32x32x16_bf16 {acc}, {ar(8*ks+4*dt2,4)}, {vr(hb,4)}, {cin}")
    LASTK = 24
    YPOLL, YLOAD = (11, 20) if 'y11' in OPT else (14, 21) if 'y14' in OPT else (13, 22)
    xfill = []
    for ps in range(2):
        X = 112 + 16 * ps; N = X + 8; T = 144 + 8 * ps
        for q in range(4): xfill.append(("op", f"v_accvgpr_read_b32 v{T+q}, a{224+4*ps+q}"))
        xfill.append(("op", f"v_accvgpr_read_b32 v{T+4}, a{232+2*ps}"))
        xfill.append(("op", f"v_accvgpr_read_b32 v{T+5}, a{233+2*ps}"))
        for q in range(4):
            xfill.append(("op", f"v_lshlrev_b32 v{X+2*q}, 16, v{T+q}"))
            xfill.append(("op", f"v_and_b32 v{X+2*q+1}, s{sMASK}, v{T+q}"))
        for q in range(8): xfill.append(("op", f"v_fma_f32 v{N+q}, v{X+q}, v{T+4}, v{T+5}"))
        for q in range(8): xfill.append(("op", f"v_mov_b32 v{160+8*ps+q}, 0"))
    def hl(kn, e):
        k.vm(f"buffer_load_dwordx4 {vr(hreg(kn, e),4)}, v1, s[{rWS}:{rWS+3}], s{76+e} offen offset:{(kn%4)*1024}{'' if 'hplain' in OPT else ' sc1'}", f"h{kn}")
    for ks in range(LASTK):
        if ks == 3:
            k.wait(vm="yst")
            k.op("s_barrier")
            signal(k, 9, 8)
            stamp(k, "c_sig")
        k.wait(vm=f"h{ks}", lg=[f"wr{ks}_1_1"] if ks >= WD_KS else [])
        if ks % 2 == 0: stamp(k, f"z_{ks}")
        m = 0
        for dt2 in range(2):
            for e in range(2):
                mf(ks, dt2, e)
                if ks + 8 < 28 and m >= 2:
                    kn = ks + 8
                    if m == 2 and kn % 4 == 0: g2_hbase(k, kn // 4)
                    hl(kn, m - 2)
                if ks < WD_KS: emit(k, [wr1[4 * ks + m]])
                if ks >= 6 and xfill and m < 2: emit(k, [xfill.pop(0) for _ in range(min(2, len(xfill)))])
                if m == 3 and ks == YPOLL: k.op(f"s_load_dword s{sU2}, s[{sPWS}:{sPWS+1}], s{sU1}")
                if m == 3 and ks == YLOAD: y_loads()
                m += 1
    assert not xfill
    k.wait(vm="h27", lg=["wr27_1_1"])
    def wr(t):
        dt2, e = divmod(t, 2)
        return [("lg", f"ds_write_b128 v11, {vr(vA2 + 16*t + 4*g, 4)} offset:{e*32*RROW + dt2*128 + g*32}", f"rw{t}{g}") for g in range(4)]
    for t in range(4):
        dt2, e = divmod(t, 2)
        for ks in range(LASTK, 28):
            mf(ks, dt2, e)
        if t == 2: k.op("s_nop 3")
        if t >= 2: emit(k, wr(t - 2))
    stamp(k, "d_loop")
    k.op(f"v_mov_b32 v10, {hex(f2u(-1.4426950408889634))}")
    k.op(f"v_mul_u32_u24 v8, {RROW}, v5")
    k.op("v_lshl_add_u32 v8, v6, 5, v8")
    k.op(f"v_add_u32 v8, {RED}, v8")
    k.op("v_mul_u32_u24 v9, 1040, v6")
    k.op("v_lshl_add_u32 v9, v5, 1, v9")
    k.op(f"v_add_u32 v9, {YT}, v9")
    emit(k, wr(2))
    emit(k, wr(3))
    k.op("v_mov_b32 v11, 1.0")
    k.wait(lg=k.lgq[-1])
    stamp(k, "t_wr")
    k.op("s_barrier")
    stamp(k, "t_bar")
    for ps in range(2):
        B = 16 + 64 * ps
        for w in range(4):
            for hh in range(2):
                k.lg(f"ds_read_b128 {vr(B + 8*w + 4*hh, 4)}, v8 offset:{w*RW + ps*32*RROW + hh*16}", f"p{ps}_{w}{hh}")
    for ps in range(2):
        B = 16 + 64 * ps if ps == 0 else 80
        N = 112 + 16 * ps + 8
        k.wait(lg=f"p{ps}_31")
        for q in range(4):
            k.op(f"v_pk_add_f32 {vr(B+2*q,2)}, {vr(B+2*q,2)}, {vr(B+8+2*q,2)}")
            k.op(f"v_pk_add_f32 {vr(B+16+2*q,2)}, {vr(B+16+2*q,2)}, {vr(B+24+2*q,2)}")
        for q in range(4):
            k.op(f"v_pk_add_f32 {vr(B+2*q,2)}, {vr(B+2*q,2)}, {vr(B+16+2*q,2)}")
        E = B + 16
        for q in range(4):
            k.op(f"v_pk_mul_f32 {vr(E+2*q,2)}, {vr(B+2*q,2)}, {vr(10,2)} op_sel_hi:[1,0]")
        for q in range(8): k.op(f"v_exp_f32 v{E+q}, v{E+q}")
        for q in range(4): k.op(f"v_pk_mul_f32 {vr(N+2*q,2)}, {vr(N+2*q,2)}, {vr(B+2*q,2)}")
        for q in range(4): k.op(f"v_pk_add_f32 {vr(E+2*q,2)}, {vr(E+2*q,2)}, {vr(10,2)} op_sel:[0,1] op_sel_hi:[1,1]")
        for q in range(8): k.op(f"v_rcp_f32 v{E+q}, v{E+q}")
        k.op("s_nop 0")
        for q in range(4): k.op(f"v_pk_mul_f32 {vr(N+2*q,2)}, {vr(N+2*q,2)}, {vr(E+2*q,2)}")
    stamp(k, "t_silu")
    k.wait(vm="ey")
    k.op("s_barrier")
    stamp(k, "t_ey")
    for ps in range(2):
        for e in range(8):
            if len(k.lgq) >= 14: k.wait(lg=k.lgq[3])
            k.lg(f"ds_read_u16_d16_hi v{160+8*ps+e}, v9 offset:{e*128 + ps*64}", f"y{ps}_{e}")
    for ps in range(2):
        X = 112 + 16 * ps; N = X + 8; Yr = 160 + 8 * ps; T = 144 + 8 * ps
        k.wait(lg=f"y{ps}_7")
        for q in range(4): k.op(f"v_pk_fma_f32 {vr(N+2*q,2)}, {vr(N+2*q,2)}, {vr(Yr+2*q,2)}, {vr(X+2*q,2)}")
        for q in range(4): k.op(f"v_cvt_pk_bf16_f32 v{T+q}, v{N+2*q}, v{N+2*q+1}")
        k.vm(f"buffer_store_dwordx4 {vr(T,4)}, v7, s[{rOUT}:{rOUT+3}], s{78+ps} offen", "ost")
    stamp(k, "d_end")

PP_ROW = 900
PP_K = 0
PP_V = 67 * PP_ROW + 4
def prepass(k):
    k.op(f"s_sub_u32 s{sT0}, s{sSLOT}, 28")
    k.op(f"s_lshl_b32 s{sT0}, s{sT0}, 3")
    k.op(f"s_add_u32 s{sI}, s{sT0}, s{sXCD}")
    k.op("v_lshlrev_b32 v1, 4, v0")
    k.op("s_waitcnt lgkmcnt(0)")
    srd(k, rWS, sPWS, (16 << 20) if STAMPS else WS_USED)
    lab = k.newlabel("Lnolead")
    k.op(f"s_or_b32 s{sT0}, s{sI}, s{sW}")
    k.op(f"s_cmp_lg_u32 s{sT0}, 0")
    k.op(f"s_cbranch_scc1 {lab}")
    k.op("v_lshlrev_b32 v2, 7, v0")
    k.op(f"v_add_u32 v2, {CNT_OFF}, v2")
    k.op("v_mov_b32 v3, 0")
    k.op("s_mov_b32 exec_hi, 0")
    k.op(f"global_store_dword v2, v3, s[{sPWS}:{sPWS+1}] sc1")
    k.op("s_waitcnt vmcnt(0)")
    k.op("v_mov_b32 v2, 1")
    k.op("s_mov_b64 exec, 1")
    k.op(f"global_store_dword v3, v2, s[{sPDBG}:{sPDBG+1}] sc1")
    k.op("s_mov_b64 exec, -1")
    k.label(lab)
    srd(k, rK, sPK, S * D * 2)
    srd(k, rV, sPV, S * D * 2)
    srd(k, rSK, sPSK, D * 4 * 2)
    k.op("s_mov_b32 exec_hi, 0x00ffffff")
    k.op(f"s_lshl_b32 s{sT0}, s{sI}, 6")
    k.op(f"s_add_u32 s{sT0}, s{sT0}, s{sW}")
    k.op(f"s_sub_u32 s{sT1}, s{sT0}, 3")
    k.op(f"s_mul_i32 s{sT1}, s{sT1}, 896")
    k.op(f"s_mul_i32 s{sT2}, s{sW}, {PP_ROW}")
    k.op(f"s_add_u32 m0, s{sT2}, {PP_K}")
    k.op(f"v_add_u32 v2, s{sT1}, v1")
    for n in range(17):
        if n == 16:
            lab = k.newlabel("Lpk")
            k.op(f"s_cmp_eq_u32 s{sW}, 3")
            k.op(f"s_cbranch_scc1 {lab}")
            k.op(f"buffer_load_dwordx4 v2, s[{rK}:{rK+3}], 0 offen lds")
            k.label(lab)
        else:
            k.vm(f"buffer_load_dwordx4 v2, s[{rK}:{rK+3}], 0 offen lds", "k")
            k.op(f"s_add_u32 m0, m0, {4*PP_ROW}")
            k.op(f"v_add_u32 v2, {4*896}, v2")
    k.op(f"s_mul_i32 s{sT1}, s{sT0}, 896")
    k.op(f"s_add_u32 m0, s{sT2}, {PP_V}")
    k.op("s_nop 0")
    for n in range(16):
        k.vm(f"buffer_load_dwordx4 v1, s[{rV}:{rV+3}], s{sT1} offen lds", "v")
        if n < 15:
            k.op(f"s_add_u32 m0, m0, {4*PP_ROW}")
            k.op(f"s_add_u32 s{sT1}, s{sT1}, {4*896}")
    k.op("s_mov_b32 exec_hi, -1")
    k.op("v_and_b32 v2, 3, v0")
    k.op("v_lshrrev_b32 v3, 5, v0")
    k.op("v_lshl_add_u32 v2, v3, 2, v2")
    k.op("v_bfe_u32 v3, v0, 2, 3")
    k.op(f"v_mul_u32_u24 v4, {8*PP_ROW}, v2")
    k.op("v_lshl_add_u32 v4, v3, 2, v4")
    k.op(f"s_lshl_b32 s{sT0}, s{sW}, 5")
    k.op(f"v_add_u32 v4, s{sT0}, v4")
    k.op(f"v_add_u32 v8, {PP_V}, v4")
    k.op("v_lshlrev_b32 v5, 4, v3")
    k.op(f"s_lshl_b32 s{sT0}, s{sW}, 7")
    k.op(f"v_add_u32 v5, s{sT0}, v5")
    k.op("v_lshlrev_b32 v6, 13, v3")
    k.op(f"s_lshl_b32 s{sT0}, s{sW}, 16")
    k.op(f"v_add_u32 v6, s{sT0}, v6")
    k.op("v_lshlrev_b32 v7, 4, v2")
    k.op("v_sub_u32 v6, v6, v7")
    k.op(f"s_lshl_b32 s{sT0}, s{sI}, 7")
    k.op(f"s_sub_u32 s{sT0}, {U_OFF + (2047 - 7) * 2}, s{sT0}")
    k.op(f"v_add_u32 v6, s{sT0}, v6")
    for it in range(7):
        k.vm(f"buffer_load_dwordx4 {vr(100 + 4*it, 4)}, v5, s[{rSK}:{rSK+3}], 0 offen offset:{it*512}", "sk")
    k.wait_all()
    k.op("s_barrier")
    KR, VR = 16, 28
    for it in range(7):
        coff = it * 128
        for j in range(11):
            k.lg(f"ds_read_b32 v{KR+j}, v4 offset:{PP_K + j*PP_ROW + coff}", "kr")
        k.wait(lg="kr")
        for j in range(8):
            k.lg(f"ds_read_b32 v{VR+j}, v8 offset:{j*PP_ROW + coff}", "vr")
        for j in range(11):
            k.op(f"v_lshlrev_b32 v{40+2*j}, 16, v{KR+j}")
            k.op(f"v_and_b32 v{41+2*j}, 0xffff0000, v{KR+j}")
        sk = 100 + 4 * it
        k.op(f"v_lshlrev_b32 v64, 16, v{sk}");   k.op(f"v_lshlrev_b32 v65, 16, v{sk+2}")
        k.op(f"v_and_b32 v66, 0xffff0000, v{sk}"); k.op(f"v_and_b32 v67, 0xffff0000, v{sk+2}")
        k.op(f"v_lshlrev_b32 v68, 16, v{sk+1}"); k.op(f"v_lshlrev_b32 v69, 16, v{sk+3}")
        k.op(f"v_and_b32 v70, 0xffff0000, v{sk+1}"); k.op(f"v_and_b32 v71, 0xffff0000, v{sk+3}")
        k.wait(lg="vr")
        for j in range(8):
            k.op(f"v_lshlrev_b32 v{72+2*j}, 16, v{VR+j}")
            k.op(f"v_and_b32 v{73+2*j}, 0xffff0000, v{VR+j}")
        for t in range(8):
            k.op(f"v_pk_mul_f32 {vr(130+2*t,2)}, {vr(40+2*(t+3),2)}, {vr(64,2)}")
        for j in range(1, 4):
            for t in range(8):
                o = 130 + 2 * t
                k.op(f"v_pk_fma_f32 {vr(o,2)}, {vr(40+2*(t+3-j),2)}, {vr(64+2*j,2)}, {vr(o,2)}")
        for t in range(8):
            o = 130 + 2 * t
            k.op(f"v_pk_mul_f32 {vr(o,2)}, {vr(o,2)}, {vr(72+2*t,2)}")
        O = 150 + 8 * (it % 2)
        for q in range(4):
            k.op(f"v_cvt_pk_bf16_f32 v{O+q}, v{130+2*(7-2*q)}, v{130+2*(6-2*q)}")
            k.op(f"v_cvt_pk_bf16_f32 v{O+4+q}, v{131+2*(7-2*q)}, v{131+2*(6-2*q)}")
        k.op(f"s_mov_b32 s{sT0}, {it * 64 * 4096}")
        k.op(f"s_mov_b32 s{sT1}, {it * 64 * 4096 + 4096}")
        k.vm(f"buffer_store_dwordx4 {vr(O,4)}, v6, s[{rWS}:{rWS+3}], s{sT0} offen sc1", "ust")
        k.vm(f"buffer_store_dwordx4 {vr(O+4,4)}, v6, s[{rWS}:{rWS+3}], s{sT1} offen sc1", "ust")
    k.wait_all()
    k.op("s_barrier")
    lab = k.newlabel("Lpsig")
    k.op(f"s_cmp_lg_u32 s{sW}, 0")
    k.op(f"s_cbranch_scc1 {lab}")
    k.op("v_mov_b32 v9, 0")
    spin_until(k, 9, 8, sPDBG, 1)
    k.label(lab)
    cnt_addr(k, 9, idx=UCNT)
    signal(k, 9, 8)

def kd(name, vgpr=512, acc=256):
    return f""".section .rodata,"a"
.p2align 6
.amdhsa_kernel {name}
  .amdhsa_next_free_vgpr {vgpr}
  .amdhsa_next_free_sgpr 102
  .amdhsa_accum_offset {acc}
  .amdhsa_group_segment_fixed_size 0
  .amdhsa_kernarg_size 104
  .amdhsa_user_sgpr_count 2
  .amdhsa_user_sgpr_kernarg_segment_ptr 1
  .amdhsa_system_sgpr_workgroup_id_x 1
  .amdhsa_float_denorm_mode_32 3
.end_amdhsa_kernel
"""

def build():
    k = K()
    prologue(k, 32768)
    start_main(k)
    gemm1_loop(k)
    gelu_phase(k)
    wr1 = conv_phase(k)
    gemm2_phase(k, wr1)
    for o in OPT:
        if o.startswith("cyc"):
            n = int(o[3:])
            k.op(f"s_add_u32 s10, s73, {n}")
            k.label("L_untilc")
            k.op("s_memtime s[8:9]")
            k.op("s_waitcnt lgkmcnt(0)")
            k.op("s_sub_u32 s11, s10, s8")
            k.op("s_cmp_gt_i32 s11, 0")
            k.op("s_cbranch_scc1 L_untilc")
        if o.startswith("until"):
            n = int(o[5:])
            k.op(f"s_add_u32 s10, s73, {n}")
            k.label("L_until")
            k.op("s_memrealtime s[8:9]")
            k.op("s_waitcnt lgkmcnt(0)")
            k.op("s_sub_u32 s11, s10, s8")
            k.op("s_cmp_gt_i32 s11, 0")
            k.op("s_cbranch_scc1 L_until")
        if o.startswith("delay"):
            n = int(o[5:])
            k.op("s_memtime s[8:9]")
            k.op("s_waitcnt lgkmcnt(0)")
            k.op(f"s_add_u32 s10, s8, {n}")
            k.label("L_delay")
            k.op("s_memtime s[8:9]")
            k.op("s_waitcnt lgkmcnt(0)")
            k.op("s_sub_u32 s11, s10, s8")
            k.op("s_cmp_gt_i32 s11, 0")
            k.op("s_cbranch_scc1 L_delay")
    stamp_flush(k)
    k.op("s_endpgm")
    k.label("L_pre")
    k.vmq = []; k.lgq = []
    prepass(k)
    k.label("L_exit")
    name = NAME + "_kernel"
    header = open("cdna_kernels/" + NAME + ".s.ref").read().split("; Override launch")[0]
    txt = header + f"; @launch grid=(256,1,1) block=(256,1,1) lds={LDS_TOTAL}\n"
    txt += '.amdgcn_target "amdgcn-amd-amdhsa--gfx950"\n.text\n'
    txt += f".globl {name}\n.p2align 8\n.type {name},@function\n{name}:\n"
    txt += k.text() + "s_endpgm\n" + kd(name)
    return txt

if __name__ == "__main__":
    if len(sys.argv) > 2 and sys.argv[2].startswith("stamps"):
        STAMPS = True
        if "=" in sys.argv[2]: STAMPSET = sys.argv[2].split("=")[1].split(",")
    if len(sys.argv) > 3: OPT.update(sys.argv[3].split(","))
    txt = build()
    check_hazards(txt)
    open(sys.argv[1], "w").write(txt)
    if STAMPS: print("stamps:", stamped)
```

```python
import sys, struct
from asmlib import *

NAME = "recurrent_scan__ssm_conv_h3__geglu_ffn__prompt"
S, D, F = 2048, 448, 1792
OPT = set()

H_OFF = 0
U_OFF = H_OFF + 64 * 112 * 1024
Y_OFF = U_OFF + D * 4096
ST_OFF = Y_OFF + D * 4096
CNT_OFF = ST_OFF + S * 8
WS_USED = CNT_OFF + 32 * 128
HCNT, YCNT, UCNT = 0, 16, 24

sPQ, sPK, sPV, sPSK, sPSSM, sPD, sPBX, sPWG = 16, 18, 20, 22, 24, 26, 28, 30
sPWU, sPWD, sPOUT, sPDBG = 32, 34, 36, 38
sPWS = 40
rX, rW, rWS, rWD, rSSM, rOUT, rD = 44, 48, 52, 56, 60, 64, 68
rK, rV, rSK = 48, 56, 60
sT0, sT1, sT2, sT3 = 4, 5, 6, 7
sW, sI, sJ, sWSO, sWM0, sSLOT, sXCD, sONES, sMASK, sWGM = 80, 81, 82, 83, 84, 85, 86, 87, 88, 89
sTT, sDT, sWDS, sWDM, sCH = 90, 91, 92, 93, 94
sHST = 95
sWDG = 75
sROT = 43
sHG = 74
sU0, sU1, sU2, sU3 = 96, 97, 98, 99

SLOT_SZ = 34048
XOFF = 17024
XS = SLOT_SZ
XROW = 912
SLOT = [0, SLOT_SZ, 2 * SLOT_SZ, 3 * SLOT_SZ]
LDS_TOTAL = 163840
HC_STRIDE = 4160
HC_CH = 4 * HC_STRIDE
UR_CH = 4608
WDST = 0
WD_KS = 14
WD_WAVE = WD_KS * 2048
HC = 4 * WD_WAVE
assert HC >= SLOT[3]
UR = HC + 2 * HC_CH
XCH = HC
YT = UR + 2 * UR_CH
assert YT + 8320 <= LDS_TOTAL or True
YT = HC + 16384
RED = 0

vX = 16
vACC = 128

STAMPS = False
STAMP_OFF = 12 << 20
STAMPSET = None
POOL = [8, 10, 72, 18, 20, 22, 28, 16, 24, 26, 30, 32, 34, 36, 12, 14]
stamped = []
def stamp(k, name=""):
    if not STAMPS: return
    if STAMPSET is not None and not any(name.startswith(p) for p in STAMPSET): return
    i = len(stamped)
    assert i < len(POOL)
    stamped.append(name)
    k.op(f"s_memtime s[{POOL[i]}:{POOL[i]+1}]")
def stamp_flush_dbg(k):
    wg = int([o for o in OPT if o.startswith("dbgwg")][0][5:])
    lab = k.newlabel("Ldbg")
    k.op("s_waitcnt vmcnt(0) lgkmcnt(0)")
    k.op(f"s_cmp_lg_u32 s2, {wg}"); k.op(f"s_cbranch_scc1 {lab}")
    k.op(f"s_cmp_lg_u32 s{sW}, 0"); k.op(f"s_cbranch_scc1 {lab}")
    k.op("s_mov_b64 exec, 1")
    for i in range(1, len(stamped)):
        k.op(f"s_sub_u32 s4, s{POOL[i]}, s{POOL[0]}")
        k.op(f"v_mov_b32 v2, s4")
        k.op(f"v_mov_b32 v1, {4*i}")
        k.op(f"global_store_dword v1, v2, s[{sPDBG}:{sPDBG+1}]")
    k.op("s_mov_b64 exec, -1")
    k.label(lab)

def stamp_flush(k):
    if not STAMPS: return
    if any(o.startswith("dbgwg") for o in OPT): return stamp_flush_dbg(k)
    k.op("s_waitcnt vmcnt(0) lgkmcnt(0)")
    k.op("s_memrealtime s[42:43]")
    k.op("s_waitcnt lgkmcnt(0)")
    k.op("s_mov_b32 s101, s42")
    k.op("s_lshl_b32 s4, s2, 2")
    k.op(f"s_add_u32 s4, s4, s{sW}")
    k.op("s_lshl_b32 s4, s4, 7")
    k.op(f"s_add_u32 s4, s4, {STAMP_OFF}")
    k.op("v_mov_b32 v1, 0")
    k.op("s_mov_b64 exec, 1")
    for i in range(len(stamped)):
        k.op(f"v_mov_b32 v2, s{POOL[i]}")
        k.op(f"buffer_store_dword v2, v1, s[{rWS}:{rWS+3}], s4 offen offset:{4*i}")
    k.op("v_mov_b32 v2, s100")
    k.op(f"buffer_store_dword v2, v1, s[{rWS}:{rWS+3}], s4 offen offset:{4*30}")
    k.op("v_mov_b32 v2, s101")
    k.op(f"buffer_store_dword v2, v1, s[{rWS}:{rWS+3}], s4 offen offset:{4*31}")
    k.op("s_mov_b64 exec, -1")

def f2u(x):
    return struct.unpack("<I", struct.pack("<f", x))[0]

def srd(k, r, ptr, nbytes):
    k.op(f"s_mov_b32 s{r}, s{ptr}")
    k.op(f"s_and_b32 s{r+1}, s{ptr+1}, 0xffff")
    k.op(f"s_mov_b32 s{r+2}, {nbytes}")
    k.op(f"s_mov_b32 s{r+3}, 0x20000")

def emit(k, items):
    for it in items:
        if it[0] == "op": k.op(it[1])
        elif it[0] == "vm": k.vm(it[1], it[2])
        elif it[0] == "lg": k.lg(it[1], it[2])
        elif it[0] == "fn": it[1]()

def capture(fn, *args):
    t = K()
    fn(t, *args)
    assert not t.vmq and not t.lgq
    return [("op", l) for l in t.L]

def interleave(k, main, fill, every, start=0):
    fill = list(fill)
    for n, it in enumerate(main):
        emit(k, [it])
        if fill and n >= start and (n - start) % every == every - 1:
            emit(k, fill.pop(0))
    for g in fill: emit(k, g)

def cnt_addr(k, vreg, idx_sgpr=None, idx=0):
    if idx_sgpr is None:
        k.op(f"v_mov_b32 v{vreg}, {CNT_OFF + idx * 128}")
    else:
        k.op(f"s_lshl_b32 s{sT0}, s{idx_sgpr}, 7")
        k.op(f"s_add_u32 s{sT0}, s{sT0}, {CNT_OFF + idx * 128}")
        k.op(f"v_mov_b32 v{vreg}, s{sT0}")

def spin_until(k, vaddr, vtmp, base, target, cmp="ge"):
    lab, done = k.newlabel("Lspin"), k.newlabel("Lspun")
    k.op(f"s_mov_b32 s{sT1}, 0x40000")
    k.label(lab)
    k.op(f"global_load_dword v{vtmp}, v{vaddr}, s[{base}:{base+1}] sc1")
    k.op("s_waitcnt vmcnt(0)")
    k.op(f"v_readfirstlane_b32 s{sT2}, v{vtmp}")
    k.op(f"s_sub_u32 s{sT1}, s{sT1}, 1")
    k.op(f"s_cmp_ge_u32 s{sT2}, {target}")
    k.op(f"s_cbranch_scc1 {done}")
    k.op("s_sleep 1")
    k.op(f"s_cmp_lg_u32 s{sT1}, 0")
    k.op(f"s_cbranch_scc1 {lab}")
    k.label(done)
    k.vmq = []

def check_or_spin(k, vval, vaddr, base, target):
    done = k.newlabel("Lok")
    k.op(f"v_readfirstlane_b32 s{sT2}, v{vval}")
    k.op(f"s_cmp_ge_u32 s{sT2}, {target}")
    k.op(f"s_cbranch_scc1 {done}")
    q = list(k.vmq)
    spin_until(k, vaddr, vval, base, target)
    k.vmq = q
    k.label(done)

def signal(k, vaddr, vone):
    lab = k.newlabel("Lsig")
    k.op(f"s_cmp_lg_u32 s{sW}, 0")
    k.op(f"s_cbranch_scc1 {lab}")
    k.op(f"v_mov_b32 v{vone}, 1")
    k.op("s_mov_b64 exec, 1")
    k.op(f"global_atomic_add v{vaddr}, v{vone}, s[{sPWS}:{sPWS+1}] sc1")
    k.op("s_mov_b64 exec, -1")
    k.label(lab)

def prologue(k, codebytes):
    if any(o.startswith("cyc") for o in OPT):
        k.op("s_memtime s[72:73]")
        k.op("s_waitcnt lgkmcnt(0)")
        k.op("s_mov_b32 s73, s72")
    if any(o.startswith("until") for o in OPT):
        k.op("s_memrealtime s[72:73]")
        k.op("s_waitcnt lgkmcnt(0)")
        k.op("s_mov_b32 s73, s72")
    k.op("s_getpc_b64 s[12:13]")
    k.op("s_load_dwordx16 s[16:31], s[0:1], 0")
    k.op("s_load_dwordx8 s[32:39], s[0:1], 64")
    k.op("s_load_dwordx2 s[40:41], s[0:1], 96")
    k.op("v_lshrrev_b32 v1, 6, v0")
    k.op("v_and_b32 v0, 63, v0")
    k.op("s_cmp_ge_u32 s2, 256")
    k.op(f"v_readfirstlane_b32 s{sW}, v1")
    k.op("s_cbranch_scc1 L_exit")
    if "nocodepf" not in OPT:
        k.op("s_lshr_b32 s14, s2, 3")
        k.op("s_lshl_b32 s14, s14, 2")
        k.op(f"s_add_u32 s14, s14, s{sW}")
        k.op("s_mul_i32 s14, s14, 384")
        k.op("s_add_u32 s12, s12, s14")
        k.op("s_addc_u32 s13, s13, 0")
        k.op("v_lshlrev_b32 v2, 7, v0")
        k.op("s_mov_b64 exec, 7")
        k.vm("global_load_dword a250, v2, s[12:13]", "code")
        k.op("s_mov_b64 exec, -1")
        assert codebytes <= 128 * 384
    if STAMPS and not any(o.startswith("dbgwg") for o in OPT):
        k.op("s_memrealtime s[42:43]")
        k.op("s_waitcnt lgkmcnt(0)")
        k.op("s_mov_b32 s100, s42")
    k.op(f"s_and_b32 s{sXCD}, s2, 7")
    k.op(f"s_lshr_b32 s{sSLOT}, s2, 3")
    k.op(f"s_cmp_ge_u32 s{sSLOT}, 28")
    k.op("s_cbranch_scc1 L_pre")

def wdma(c, e):
    out = []
    if e % 4 == 0:
        out.append(("op", f"s_add_u32 m0, s{sWM0}, {SLOT[c % 4] + e * 1056}"))
    out.append(("op", f"s_add_u32 s{sT3}, s{sWSO}, {(64 * c + e) * 3584 - (e % 4) * 1056}"))
    out.append(("vm", f"buffer_load_dwordx4 v2, s[{rW}:{rW+3}], s{sT3} offen offset:{(e % 4) * 1056} lds", f"w{c}"))
    return out

def start_main(k):
    k.op(f"s_mul_i32 s{sT0}, s{sSLOT}, 37")
    k.op(f"s_lshr_b32 s{sT0}, s{sT0}, 8")
    k.op(f"s_mul_i32 s{sT1}, s{sT0}, 7")
    k.op(f"s_sub_u32 s{sDT}, s{sSLOT}, s{sT1}")
    k.op(f"s_lshr_b32 s{sT2}, s{sXCD}, 1")
    k.op(f"s_lshl_b32 s{sT2}, s{sT2}, 2")
    k.op(f"s_add_u32 s{sI}, s{sT2}, s{sT0}")
    k.op(f"s_lshl_b32 s{sTT}, s{sXCD}, 2")
    k.op(f"s_add_u32 s{sTT}, s{sTT}, s{sT0}")
    k.op("v_lshlrev_b32 v1, 4, v0")
    k.op(f"s_lshl_b32 s{sU0}, s{sI}, 2")
    k.op(f"s_add_u32 s{sU0}, s{sU0}, s{sW}")
    k.op(f"s_mul_i32 s{sU0}, s{sU0}, {32*896}")
    k.op(f"s_mul_i32 s{sU1}, s{sW}, {32*XROW}")
    k.op(f"s_add_u32 s{sU1}, s{sU1}, {XS}")
    k.op(f"s_mul_i32 s{sU2}, s{sDT}, 9")
    k.op(f"s_lshr_b32 s{sU2}, s{sU2}, 1")
    k.op(f"s_mul_i32 s{sT1}, s{sU2}, 896")
    k.op(f"s_mul_i32 s{sT2}, s{sU2}, {XROW}")
    k.op(f"s_add_u32 s{sT1}, s{sT1}, s{sU0}")
    k.op(f"s_add_u32 s{sT2}, s{sT2}, s{sU1}")
    k.op(f"s_add_u32 s{sU3}, s{sU0}, {32*896}")
    k.op(f"s_and_b32 s{sT0}, s{sXCD}, 1")
    k.op(f"s_mul_i32 s{sJ}, s{sT0}, 7")
    k.op(f"s_add_u32 s{sJ}, s{sJ}, s{sDT}")
    k.op("v_lshrrev_b32 v6, 4, v0")
    k.op("v_lshlrev_b32 v6, 6, v6")
    k.op("v_bfe_u32 v7, v0, 1, 3")
    k.op("v_add_u32 v6, v6, v7")
    k.op("v_mul_u32_u24 v6, 3584, v6")
    k.op("v_and_b32 v7, 1, v0")
    k.op("v_lshl_add_u32 v5, v7, 7, v6")
    k.op(f"s_and_b32 s{sT0}, s{sI}, 3")
    k.op(f"s_lshl_b32 s{sT0}, s{sT0}, 1")
    k.op(f"s_lshr_b32 s{sWDG}, s{sW}, 1")
    k.op(f"s_add_u32 s{sT0}, s{sT0}, s{sWDG}")
    k.op(f"s_mul_i32 s{sT0}, s{sT0}, {8*3584}")
    k.op(f"s_lshl_b32 s{sWDG}, s{sJ}, 8")
    k.op(f"s_add_u32 s{sWDG}, s{sWDG}, s{sT0}")
    stamp(k, "b_pre")
    k.op("s_waitcnt lgkmcnt(0)")
    if "tlb" in OPT:
        for i, p in enumerate((sPWG, sPWU, sPWD, sPSSM, sPOUT, sPD)):
            k.op(f"s_load_dword s{96 if False else 100 if not STAMPS else 15}, s[{p}:{p+1}], 0") if False else None
        for p in (sPWG, sPWU, sPWD, sPSSM, sPOUT):
            k.op(f"s_load_dword s15, s[{p}:{p+1}], 0x0")
        for off in (H_OFF, 2 << 20, 4 << 20, 6 << 20, U_OFF + (1 << 20), Y_OFF + (1 << 20)):
            k.op(f"s_mov_b32 s14, {off}")
            k.op(f"s_load_dword s15, s[{sPWS}:{sPWS+1}], s14")
    srd(k, rX, sPQ, S * D * 2)
    k.op(f"s_bitcmp1_b32 s{sW}, 0")
    k.op(f"s_cselect_b32 s{rW}, s{sPWU}, s{sPWG}")
    k.op(f"s_cselect_b32 s{rW+1}, s{sPWU+1}, s{sPWG+1}")
    k.op(f"s_and_b32 s{rW+1}, s{rW+1}, 0xffff")
    k.op(f"s_mov_b32 s{rW+2}, {D*F*2}")
    k.op(f"s_mov_b32 s{rW+3}, 0x20000")
    stamp(k, "start")
    if "earlypf" in OPT:
        k.op("s_mov_b32 exec_hi, 0")
        k.vm(f"buffer_load_dword a250, v5, s[{rW}:{rW+3}], s{sWDG} offen", "pf")
    k.op("s_mov_b32 exec_hi, 0x00ffffff")
    k.op(f"s_mov_b32 s{sT0}, 32")
    lx = k.newlabel("Lxd")
    k.label(lx)
    k.op(f"s_mov_b32 m0, s{sT2}")
    k.op(f"s_add_u32 s{sT2}, s{sT2}, {XROW}")
    k.op(f"buffer_load_dwordx4 v1, s[{rX}:{rX+3}], s{sT1} offen lds")
    k.op(f"s_add_u32 s{sT1}, s{sT1}, 896")
    k.op(f"s_cmp_eq_u32 s{sT1}, s{sU3}")
    k.op(f"s_cselect_b32 s{sT1}, s{sU0}, s{sT1}")
    k.op(f"s_cselect_b32 s{sT2}, s{sU1}, s{sT2}")
    k.op(f"s_sub_u32 s{sT0}, s{sT0}, 1")
    k.op(f"s_cmp_lg_u32 s{sT0}, 0")
    k.op(f"s_cbranch_scc1 {lx}")
    for n in range(32): k.vmq.append("x")
    k.op("s_mov_b32 exec_hi, -1")
    stamp(k, "a_xiss")
    k.op("v_lshrrev_b32 v10, 4, v0")
    k.op(f"v_mul_u32_u24 v2, {16*3584}, v10")
    k.op("v_and_b32 v11, 15, v0")
    k.op("v_lshl_add_u32 v2, v11, 4, v2")
    k.op(f"s_lshr_b32 s{sT0}, s{sW}, 1")
    k.op(f"s_lshl_b32 s{sT0}, s{sT0}, 3")
    k.op(f"s_mul_i32 s{sWSO}, s{sT0}, 3584")
    k.op(f"s_lshl_b32 s{sT1}, s{sJ}, 8")
    k.op(f"s_add_u32 s{sWSO}, s{sWSO}, s{sT1}")
    k.op(f"s_mul_i32 s{sWM0}, s{sT0}, 1056")
    k.op(f"s_and_b32 s{sT1}, s{sW}, 1")
    k.op(f"s_mul_i32 s{sT1}, s{sT1}, {XOFF}")
    k.op(f"s_add_u32 s{sWM0}, s{sWM0}, s{sT1}")
    for e in range(8): emit(k, wdma(0, e))
    stamp(k, "a_issued")
    k.op(f"s_mul_i32 s{sWGM}, s{sXCD}, 28")
    k.op(f"s_add_u32 s{sWGM}, s{sWGM}, s{sSLOT}")
    srd(k, rWS, sPWS, (16 << 20) if STAMPS else WS_USED)
    srd(k, rWD, sPWD, F * D * 2)
    srd(k, rSSM, sPSSM, D * S * 2)
    srd(k, rOUT, sPOUT, S * D * 2)
    srd(k, rD, sPD, D * 2)
    k.op("v_and_b32 v11, 1, v10")
    k.op(f"v_mul_u32_u24 v3, {XOFF}, v11")
    k.op("v_lshrrev_b32 v11, 5, v0")
    k.op("v_lshlrev_b32 v12, 3, v11")
    k.op("v_bfe_u32 v13, v0, 2, 2")
    k.op("v_add_u32 v12, v12, v13")
    k.op("v_mul_u32_u24 v12, 1056, v12")
    k.op("v_add_u32 v3, v3, v12")
    k.op("v_and_b32 v13, 3, v0")
    k.op("v_lshl_add_u32 v3, v13, 3, v3")
    k.op(f"v_add_u32 v14, {2*SLOT_SZ}, v3")
    k.op("v_and_b32 v13, 31, v0")
    k.op(f"s_lshl_b32 s{sT0}, s{sW}, 5")
    k.op(f"v_add_u32 v13, s{sT0}, v13")
    k.op(f"v_mul_u32_u24 v15, {XROW}, v13")
    k.op("v_lshl_add_u32 v15, v11, 4, v15")
    k.op(f"v_add_u32 v15, {XS}, v15")
    k.op(f"s_mov_b32 s{sONES}, 0x3f803f80")
    k.op(f"s_mov_b32 s{sMASK}, 0xffff0000")
    for a in range(8): k.op(f"v_mov_b32 v{6+a}, 0")
    k.wait(vm="x")
    stamp(k, "a_xarr")
    def st(n):
        return [("op", f"v_dot2_f32_bf16 v{6 + n % 4}, v{vX+n}, s{sONES}, v{6 + n % 4}"),
                ("op", f"v_dot2_f32_bf16 v{10 + n % 4}, v{vX+n}, v{vX+n}, v{10 + n % 4}")]
    for ks in range(14):
        k.lg(f"ds_read_b128 {vr(vX + 4 * ks, 4)}, v15 offset:{32 * ks}", f"x{ks}")
    for ks in range(14, 28):
        k.wait(lg=f"x{ks-14}")
        k.lg(f"ds_read_b128 {vr(vX + 4 * ks, 4)}, v15 offset:{32 * ks}", f"x{ks}")
        for q in range(4): emit(k, st(4 * (ks - 14) + q))
        if ks == 15 and "nopf" not in OPT and "w1late" not in OPT:
            k.op(f"s_add_u32 s{sWDG}, s{sWDG}, {128*3584}")
            k.vm(f"buffer_load_dword a250, v5, s[{rW}:{rW+3}], s{sWDG} offen", "pf")
    k.wait(lg="x27")
    k.op("v_mov_b32 v15, v5")
    k.op("s_barrier")
    stamp(k, "a_xreg")
    main = []
    for n in range(56, 112): main += st(n)
    fill = [wdma(1, e) for e in range(8)]
    if "w1late" in OPT and "nopf" not in OPT:
        fill.append([("op", f"s_add_u32 s{sWDG}, s{sWDG}, {128*3584}"),
                     ("vm", f"buffer_load_dword a250, v15, s[{rW}:{rW+3}], s{sWDG} offen", "pf")])
    if "nopf" not in OPT:
        fill.append([("op", f"s_add_u32 s{sWDG}, s{sWDG}, {256*3584}"), ("op", "s_mov_b64 exec, 0xffff"),
                        ("vm", f"buffer_load_dword a250, v15, s[{rW}:{rW+3}], s{sWDG} offen", "pf"), ("op", "s_mov_b64 exec, -1")])
    if "w1late" in OPT:
        emit(k, main)
        late = fill
    else:
        interleave(k, main, fill, 11)
        late = []
    stamp(k, "a_dot")
    k.op("s_nop 2")
    k.op("v_add_f32 v6, v6, v7"); k.op("v_add_f32 v8, v8, v9")
    k.op("v_add_f32 v10, v10, v11"); k.op("v_add_f32 v12, v12, v13")
    k.op("v_add_f32 v6, v6, v8"); k.op("v_add_f32 v10, v10, v12")
    k.op("v_mov_b32 v7, v6"); k.op("v_mov_b32 v11, v10")
    k.op("s_nop 1")
    k.op("v_permlane32_swap_b32 v6, v7"); k.op("v_permlane32_swap_b32 v10, v11")
    k.op("s_nop 1")
    k.op("v_add_f32 v6, v6, v7"); k.op("v_add_f32 v10, v10, v11")
    k.op(f"v_mul_f32 v6, {hex(f2u(1.0/448))}, v6")
    k.op(f"v_mul_f32 v10, {hex(f2u(1.0/448))}, v10")
    k.op("v_fma_f32 v10, -v6, v6, v10")
    k.op("v_max_f32 v10, 0, v10")
    k.op("v_cvt_pk_bf16_f32 v7, v6, v10")
    k.op("v_lshlrev_b32 v6, 16, v7")
    k.op(f"v_and_b32 v10, s{sMASK}, v7")
    k.op(f"v_add_f32 v10, {hex(f2u(1e-5))}, v10")
    k.op("v_cvt_pk_bf16_f32 v10, v10, v10")
    k.op("v_lshlrev_b32 v10, 16, v10")
    k.op("v_sqrt_f32 v10, v10")
    k.op("s_nop 0")
    k.op("v_cvt_pk_bf16_f32 v10, v10, v10")
    k.op("v_lshlrev_b32 v10, 16, v10")
    k.op("v_rcp_f32 v4, v10")
    k.op("s_nop 0")
    LATE[:] = late
    k.op("v_mul_f32 v5, v6, v4")
    k.op("v_sub_f32 v5, 0, v5")
    lab = k.newlabel("Lnost")
    k.op(f"s_cmp_lg_u32 s{sJ}, 0")
    k.op(f"s_cbranch_scc1 {lab}")
    k.op(f"s_lshl_b32 s{sT0}, s{sI}, 2")
    k.op(f"s_add_u32 s{sT0}, s{sT0}, s{sW}")
    k.op(f"s_lshl_b32 s{sT0}, s{sT0}, 8")
    k.op(f"s_add_u32 s{sT0}, s{sT0}, {ST_OFF}")
    k.op("v_lshlrev_b32 v6, 3, v0")
    k.op("s_mov_b32 exec_hi, 0")
    k.op(f"buffer_store_dwordx2 v[4:5], v6, s[{rWS}:{rWS+3}], s{sT0} offen sc1")
    k.op("s_mov_b32 exec_hi, -1")
    k.label(lab)

def norm(n, tp):
    t = 6 + 2 * tp
    return [("op", f"v_lshlrev_b32 v{t}, 16, v{vX+n}"),
            ("op", f"v_and_b32 v{t+1}, s{sMASK}, v{vX+n}"),
            ("op", f"v_fma_f32 v{t}, v{t}, v4, v5"),
            ("op", f"v_fma_f32 v{t+1}, v{t+1}, v4, v5"),
            ("op", f"v_cvt_pk_bf16_f32 v{vX+n}, v{t}, v{t+1}")]
def norm_step(ks):
    a = [norm(4 * ks + q, q) for q in range(4)]
    out = []
    for s in range(5):
        for q in range(4): out.append(a[q][s])
    return out

def hc_dma(q):
    rr, qq = divmod(q, 4)
    out = []
    if qq == 0:
        out.append(("op", f"s_add_u32 m0, s{sU0}, {rr * HC_STRIDE}"))
        out.append(("op", f"s_add_u32 s{sU2}, s{sU1}, {rr * 2}"))
    out.append(("vm", f"buffer_load_dwordx4 v1, s[{rSSM}:{rSSM+3}], s{sU2} offen offset:{qq*1024} lds", "hc"))
    return out

LATE = []
def gemm1_loop(k):
    emit(k, norm_step(0))
    for g in LATE: emit(k, g)
    k.op(f"s_lshr_b32 s{sT0}, s{sW}, 1")
    k.op(f"s_lshl_b32 s{sCH}, s{sWGM}, 1")
    k.op(f"s_add_u32 s{sCH}, s{sCH}, s{sT0}")
    k.op(f"s_and_b32 s{sT1}, s{sW}, 1")
    k.op(f"s_lshl_b32 s{sT1}, s{sT1}, 1")
    k.op(f"s_mul_i32 s{sU0}, s{sT0}, {HC_CH}")
    k.op(f"s_mul_i32 s{sT3}, s{sT1}, {HC_STRIDE}")
    k.op(f"s_add_u32 s{sU0}, s{sU0}, s{sT3}")
    k.op(f"s_add_u32 s{sU0}, s{sU0}, {HC + 32}")
    k.op(f"s_lshl_b32 s{sU1}, s{sCH}, 12")
    k.op(f"s_lshl_b32 s{sT1}, s{sT1}, 1")
    k.op(f"s_add_u32 s{sU1}, s{sU1}, s{sT1}")
    k.op(f"s_add_u32 s{sU1}, s{sU1}, 2")
    stamp(k, "a_norm0")
    k.wait(vm="w0")
    stamp(k, "a_w0")
    k.op("s_barrier")
    stamp(k, "a_stats")
    NF = 8; DIST = 7; NM = 224
    def rd(n):
        ks, mt = divmod(n, 8)
        c, kk = divmod(ks, 4)
        sl = c % 4
        base = "v3" if sl < 2 else "v14"
        off = (SLOT_SZ if sl % 2 else 0) + kk * 256 + mt * 32
        f = 4 * (n % NF)
        return [("lg", f"ds_read_b64_tr_b16 {ar(f, 2)}, {base} offset:{off}", f"f{n}"),
                ("lg", f"ds_read_b64_tr_b16 {ar(f + 2, 2)}, {base} offset:{off + 4 * 1056}", f"f{n}")]
    for n in range(DIST): emit(k, rd(n))
    extra = {}
    k.op(f"s_lshl_b32 s{sT0}, s{sSLOT}, 2")
    k.op(f"s_add_u32 s{sT0}, s{sT0}, s{sW}")
    k.op(f"s_mul_i32 s{sU3}, s{sT0}, {112*128}")
    k.op("v_lshlrev_b32 v15, 7, v0")
    def wd_pf(piece):
        return [("op", "s_mov_b64 exec, 0xffff"),
                ("vm", f"buffer_load_dword a250, v15, s[{rWD}:{rWD+3}], s{sU3} offen offset:{piece*2048}", "pf"),
                ("op", "s_mov_b64 exec, -1")]
    if "nopf" not in OPT:
        for p in range(7):
            if p < 2: extra[5 + 3 * p] = wd_pf(p)
            else:
                extra[5 + 3 * p] = [("op", f"s_add_u32 s{sU3}, s{sU3}, 2048"), ("op", "s_mov_b64 exec, 0xffff"),
                    ("vm", f"buffer_load_dword a250, v15, s[{rWD}:{rWD+3}], s{sU3} offen offset:2048", "pf"), ("op", "s_mov_b64 exec, -1")]
    extra[24] = [("op", "s_mov_b64 exec, 1"),
                 ("vm", f"global_load_dword a40, v15, s[{sPDBG}:{sPDBG+1}] sc1", "init"),
                 ("op", "s_mov_b64 exec, -1")]
    tailfill = capture(g2_setup)
    for n in range(NM):
        ks, mt = divmod(n, 8)
        c, kk = divmod(ks, 4)
        if n % 32 == 0: stamp(k, f"g_c{n//32}")
        if n % 4 == 0:
            k.wait(lg=[f"f{n+i}" for i in range(4)])
        f = 4 * (n % NF)
        acc = vr(vACC + 16 * mt, 16)
        cin = "0" if ks == 0 else acc
        k.op(f"v_mfma_f32_32x32x16_bf16 {acc}, {ar(f, 4)}, {vr(vX + 4 * ks, 4)}, {cin}")
        nn = n + DIST
        if nn < NM:
            if nn % 32 == 0:
                k.wait(vm=f"w{nn // 32}")
                k.op("s_barrier")
            emit(k, rd(nn))
        if ks + 1 < 28:
            st = norm_step(ks + 1)
            cut = [0, 3, 6, 9, 12, 15, 18, 20, 20]
            emit(k, st[cut[mt]: cut[mt + 1]])
        if c == 0 and mt in (3, 5, 6, 7):
            e = 4 * (kk % 2) + (3, 5, 6, 7).index(mt)
            emit(k, wdma(2 + kk // 2, e))
        if ks == 27:
            lo_, hi_ = (len(tailfill) * mt) // 8, (len(tailfill) * (mt + 1)) // 8
            emit(k, tailfill[lo_:hi_])
        if mt in (6, 7):
            e = 2 * kk + (mt - 6)
            if c >= 1 and c + 3 < 7: emit(k, wdma(c + 3, e))
            if c in (4, 5) and mt == 7:
                q = (c - 4) * 4 + kk
                emit(k, hc_dma(q))
        if mt == 7 and ks in extra: emit(k, extra[ks])
    stamp(k, "g_end")

def g2_setup(k):
    k.op(f"s_and_b32 s{sT0}, s{sTT}, 3")
    k.op(f"s_lshl_b32 s{sT0}, s{sT0}, 1")
    k.op(f"s_add_u32 s{sROT}, s{sT0}, s{sDT}")
    k.op(f"s_cmp_ge_u32 s{sROT}, 7")
    k.op(f"s_cselect_b32 s{sT0}, 7, 0")
    k.op(f"s_sub_u32 s{sROT}, s{sROT}, s{sT0}")
    k.op("v_lshrrev_b32 v3, 3, v0")
    k.op("v_mul_u32_u24 v2, 896, v3")
    k.op("v_bfe_u32 v3, v0, 4, 1")
    k.op("v_lshlrev_b32 v3, 2, v3")
    k.op("v_and_b32 v4, 7, v0")
    k.op("v_xor_b32 v3, v3, v4")
    k.op("v_lshl_add_u32 v2, v3, 4, v2")
    k.op(f"s_mul_i32 s{sWDS}, s{sW}, {16*28*896}")
    k.op(f"s_lshl_b32 s{sT0}, s{sDT}, 7")
    k.op(f"s_add_u32 s{sWDS}, s{sWDS}, s{sT0}")
    k.op(f"s_sub_u32 s{sWDS}, s{sWDS}, 4096")
    k.op(f"s_mul_i32 s{sWDM}, s{sW}, {WD_WAVE}")
    k.op(f"s_add_u32 s{sWDM}, s{sWDM}, {WDST}")
    k.op("v_lshrrev_b32 v5, 5, v0")
    k.op("v_bfe_u32 v6, v0, 2, 2")
    k.op("v_lshl_add_u32 v5, v5, 2, v6")
    k.op("v_lshlrev_b32 v5, 7, v5")
    k.op("v_bfe_u32 v7, v0, 4, 1")
    k.op("v_lshl_add_u32 v5, v7, 5, v5")
    k.op("v_and_b32 v7, 3, v0")
    k.op("v_lshl_add_u32 v5, v7, 3, v5")
    k.op(f"v_add_u32 v5, s{sWDM}, v5")
    k.op("v_bfe_u32 v6, v0, 3, 1")
    k.op("v_lshlrev_b32 v6, 6, v6")
    k.op("v_add_u32 v3, v5, v6")
    k.op("v_xor_b32 v6, 64, v6")
    k.op("v_add_u32 v4, v5, v6")

def wd_group_base(g):
    return [("op", f"s_add_u32 s{sT3}, s{sROT}, {g}"),
            ("op", f"s_cmp_ge_u32 s{sT3}, 7"),
            ("op", f"s_cselect_b32 s{sWDG}, 7, 0"),
            ("op", f"s_sub_u32 s{sT3}, s{sT3}, s{sWDG}"),
            ("op", f"s_mul_i32 s{sT3}, s{sT3}, {64*896}"),
            ("op", f"s_add_u32 s{sWDG}, s{sT3}, s{sWDS}")]
def wd_dma_groups(ks0, ks1, tag):
    out = []
    q = 0
    for ks in range(ks0, ks1):
        for hh in range(2):
            g = []
            if ks % 4 == 0 and hh == 0: g += wd_group_base(ks // 4)
            if q % 4 == 0:
                g.append(("op", f"s_add_u32 m0, s{sWDM}, {(q // 4) * 4096}"))
            g.append(("op", f"s_add_u32 s{sT3}, s{sWDG}, {(16 * (ks % 4) + 8 * hh) * 896 - (q % 4) * 1024 + 4096}"))
            g.append(("vm", f"buffer_load_dwordx4 v2, s[{rWD}:{rWD+3}], s{sT3} offen offset:{(q % 4) * 1024} lds", tag))
            out.append(g)
            q += 1
    return out

def wd_read_items(ks0, ks1):
    out = []
    for ks in range(ks0, ks1):
        for dt2 in range(2):
            for t in range(2):
                a = 8 * ks + 4 * dt2 + 2 * t
                out.append(("lg", f"ds_read_b64_tr_b16 {ar(a,2)}, v{3+dt2} offset:{(ks-ks0)*2048 + t*1024}", f"wr{ks}_{dt2}_{t}"))
    return out
def emit_lg_limited(k, items):
    for it in items:
        if it[0] == "lg" and len(k.lgq) >= 12: k.wait(lg=k.lgq[5])
        emit(k, [it])

def gelu_phase(k):
    if k.lgq: k.wait(lg=[k.lgq[-1]])
    k.op("s_barrier")
    vC, vONE = 16, 18
    C1 = -2.0 * 0.7978845608028654 * 1.4426950408889634
    C2 = C1 * 0.044715
    k.op(f"v_mov_b32 v{vC}, {hex(f2u(C1))}")
    k.op(f"v_mov_b32 v{vC+1}, {hex(f2u(C2))}")
    k.op(f"v_mov_b32 v{vONE}, 1.0")
    k.op(f"v_mov_b32 v{vONE+1}, 1.0")
    k.op(f"s_lshl_b32 s{sT0}, s{sI}, 2")
    k.op(f"s_add_u32 s{sT0}, s{sT0}, s{sW}")
    k.op(f"s_mul_i32 s{sHST}, s{sT0}, {112*1024}")
    k.op(f"s_lshl_b32 s{sT1}, s{sJ}, 13")
    k.op(f"s_add_u32 s{sHST}, s{sHST}, s{sT1}")
    k.wait(vm="init")
    k.op("v_accvgpr_read_b32 v8, a40")
    k.op("v_mov_b32 v9, 0")
    k.op("s_nop 0")
    check_or_spin(k, 8, 9, sPDBG, 1)
    cnt_addr(k, 9, idx=UCNT)
    k.vm(f"global_load_dword v8, v9, s[{sPWS}:{sPWS+1}] sc1", "ucnt")
    k.op("v_lshrrev_b32 v10, 4, v0")
    k.op("v_and_b32 v11, 15, v0")
    k.op("v_add_u32 v12, v10, v11")
    k.op("v_subrev_u32 v12, 15, v12")
    k.op("v_lshlrev_b32 v12, 1, v12")
    k.op(f"s_lshl_b32 s{sT1}, s{sCH}, 12")
    k.op("v_cmp_gt_i32 vcc, 0, v12")
    k.op("v_mov_b32 v13, 0x7fffffff")
    k.op("s_nop 0")
    k.op("v_cndmask_b32 v12, v12, v13, vcc")
    k.vm(f"buffer_load_ushort v14, v12, s[{rSSM}:{rSSM+3}], s{sT1} offen", "hf")
    k.op(f"s_lshl_b32 s{sT1}, s{sCH}, 1")
    k.op("v_mov_b32 v13, 0")
    k.vm(f"buffer_load_ushort v15, v13, s[{rD}:{rD+3}], s{sT1} offen", "dv")
    k.op(f"v_mul_u32_u24 v10, {HC_STRIDE}, v10")
    k.op("v_lshl_add_u32 v10, v11, 1, v10")
    k.op(f"s_lshr_b32 s{sT0}, s{sW}, 1")
    k.op(f"s_mul_i32 s{sT2}, s{sT0}, {HC_CH}")
    k.op(f"s_add_u32 s{sT2}, s{sT2}, {HC}")
    k.op(f"v_add_u32 v10, s{sT2}, v10")
    k.op(f"s_mul_i32 s{sT2}, s{sT0}, {UR_CH}")
    k.op(f"s_add_u32 s{sT2}, s{sT2}, {UR + 4096}")
    k.op(f"v_add_u32 v11, s{sT2}, v1")
    k.op("v_mov_b32 v20, 0"); k.op("v_mov_b32 v21, 0"); k.op("v_mov_b32 v22, 0"); k.op("v_mov_b32 v23, 0")
    k.op("s_mov_b32 exec_hi, 0")
    k.lg("ds_write_b128 v11, v[20:23]", "z")
    k.op("s_mov_b32 exec_hi, -1")
    wd0 = wd_dma_groups(0, WD_KS, "wd0")
    def ur_dma():
        k.wait(vm="ucnt")
        check_or_spin(k, 8, 9, sPWS, 32)
        k.op(f"s_lshr_b32 s{sT0}, s{sW}, 1")
        k.op(f"s_and_b32 s{sT1}, s{sW}, 1")
        k.op(f"s_lshl_b32 s{sT1}, s{sT1}, 11")
        k.op(f"s_mul_i32 s{sT2}, s{sT0}, {UR_CH}")
        k.op(f"s_add_u32 s{sT2}, s{sT2}, s{sT1}")
        k.op(f"s_add_u32 m0, s{sT2}, {UR}")
        k.op(f"s_lshl_b32 s{sT3}, s{sCH}, 12")
        k.op(f"s_add_u32 s{sT3}, s{sT3}, s{sT1}")
        k.op(f"s_add_u32 s{sT3}, s{sT3}, {U_OFF}")
        k.vm(f"buffer_load_dwordx4 v1, s[{rWS}:{rWS+3}], s{sT3} offen sc1 lds", "ur")
        k.vm(f"buffer_load_dwordx4 v1, s[{rWS}:{rWS+3}], s{sT3} offen offset:1024 sc1 lds", "ur")
        k.wait(vm="hf")
        k.lg("ds_write_b16 v10, v14", "z")
    for mt in range(8):
        stamp(k, f"y_{mt}")
        G = vACC + 16 * mt; U = G + 8
        T = 24 + (mt % 2) * 24
        tp = lambda p: T + 2 * p
        gu = lambda p: T + 8 + 2 * p
        O = T + 16
        P = range(4)
        m = []
        for p in P: m.append(("op", f"v_pk_mul_f32 {vr(tp(p),2)}, {vr(G+2*p,2)}, {vr(G+2*p,2)}"))
        for p in P: m.append(("op", f"v_pk_fma_f32 {vr(tp(p),2)}, {vr(tp(p),2)}, {vr(vC,2)}, {vr(vC,2)} op_sel:[0,1,0] op_sel_hi:[1,1,0]"))
        for p in P: m.append(("op", f"v_pk_mul_f32 {vr(tp(p),2)}, {vr(tp(p),2)}, {vr(G+2*p,2)}"))
        for p in P:
            m.append(("op", f"v_exp_f32 v{tp(p)}, v{tp(p)}")); m.append(("op", f"v_exp_f32 v{tp(p)+1}, v{tp(p)+1}"))
        for p in P: m.append(("op", f"v_pk_mul_f32 {vr(gu(p),2)}, {vr(G+2*p,2)}, {vr(U+2*p,2)}"))
        for p in P: m.append(("op", f"v_pk_add_f32 {vr(tp(p),2)}, {vr(tp(p),2)}, {vr(vONE,2)}"))
        for p in P:
            m.append(("op", f"v_rcp_f32 v{tp(p)}, v{tp(p)}")); m.append(("op", f"v_rcp_f32 v{tp(p)+1}, v{tp(p)+1}"))
        m.append(("op", "s_nop 0"))
        for p in P: m.append(("op", f"v_pk_mul_f32 {vr(gu(p),2)}, {vr(gu(p),2)}, {vr(tp(p),2)}"))
        for p in P: m.append(("op", f"v_cvt_pk_bf16_f32 v{O+p}, v{gu(p)}, v{gu(p)+1}"))
        nf = 4 if mt < 4 else 3
        fill = [wd0.pop(0) for _ in range(nf)]
        if "nowdg" in OPT: fill = [[x for x in g if x[0] != "vm"] for g in fill]
        pos = {8: 0, 20: 1, 32: 2, 42: 3} if nf == 4 else {12: 0, 24: 1, 36: 2}
        for n, it in enumerate(m):
            emit(k, [it])
            if n in pos: emit(k, fill[pos[n]])
        if mt % 4 == 0 and mt > 0:
            k.op(f"s_add_u32 s{sHST}, s{sHST}, 4096")
        if "nohst" not in OPT: k.vm(f"buffer_store_dwordx4 {vr(O,4)}, v1, s[{rWS}:{rWS+3}], s{sHST} offen offset:{(mt%4)*1024}{'' if 'hstplain' in OPT else ' sc1'}", "hst")
        if mt == 3: ur_dma()
    assert not wd0
    stamp(k, "e_gelu")
    k.wait(vm="ur", lg=[k.lgq[-1]] if k.lgq else [])
    k.op("s_barrier")

def h_signal(k):
    k.wait(vm="hst")
    k.op("s_barrier")
    cnt_addr(k, 9, idx_sgpr=sI, idx=HCNT)
    signal(k, 9, 10)
    stamp(k, "e_sig")

def conv_phase(k):
    k.wait(vm="dv")
    k.op("v_lshlrev_b32 v8, 16, v15")
    k.op(f"s_lshr_b32 s{sT0}, s{sW}, 1")
    k.op(f"s_mul_i32 s{sT2}, s{sT0}, {HC_CH}")
    k.op(f"s_add_u32 s{sT2}, s{sT2}, {HC}")
    k.op("v_bfe_u32 v5, v0, 2, 2")
    k.op(f"v_mul_u32_u24 v14, {HC_STRIDE}, v5")
    k.op("v_and_b32 v6, 3, v0")
    k.op("v_lshl_add_u32 v14, v6, 3, v14")
    k.op("v_lshrrev_b32 v6, 4, v0")
    k.op("v_lshl_add_u32 v14, v6, 4, v14")
    k.op(f"s_and_b32 s{sT1}, s{sW}, 1")
    k.op(f"s_lshl_b32 s{sT1}, s{sT1}, 8")
    k.op(f"s_add_u32 s{sT2}, s{sT2}, s{sT1}")
    k.op(f"v_add_u32 v14, s{sT2}, v14")
    k.op("v_and_b32 v7, 15, v0")
    k.op("v_lshlrev_b32 v7, 5, v7")
    k.op("v_lshlrev_b32 v5, 4, v6")
    k.op("v_sub_u32 v15, v5, v7")
    k.op(f"s_mul_i32 s{sT2}, s{sT0}, {UR_CH}")
    k.op(f"s_add_u32 s{sT2}, s{sT2}, {UR + 4064 - 3584}")
    k.op(f"s_add_u32 s{sT3}, s{sT2}, s{sT1}")
    k.op(f"v_add_u32 v15, s{sT3}, v15")
    FB = [16, 48]; GBUF = [80, 112]; ACC = 144
    def rdF(sub, J):
        b = FB[sub % 2] + 4 * J
        off = 64 * (8 * J + sub)
        return [("lg", f"ds_read_b64_tr_b16 {vr(b,2)}, v14 offset:{off}", f"F{sub}"),
                ("lg", f"ds_read_b64_tr_b16 {vr(b+2,2)}, v14 offset:{off+8}", f"F{sub}")]
    def rdG(sub, T):
        b = GBUF[sub % 2] + 4 * T
        return [("lg", f"ds_read_b128 {vr(b,4)}, v15 offset:{512*(7-T) + 64*sub}", f"F{sub}")]
    def fg(sub):
        out = []
        for i in range(8):
            out += rdG(sub, 7 - i) + rdF(sub, i)
        return out
    emit(k, fg(0))
    k.op("v_lshlrev_b32 v5, 3, v6")
    k.op("v_add_u32 v7, v7, v5")
    k.op(f"s_add_u32 s{sT2}, s{sT2}, {4088 - 4064}")
    k.op(f"v_sub_u32 v13, s{sT2}, v7")
    k.op("v_and_b32 v5, 1, v6")
    k.op("v_mul_u32_u24 v5, 504, v5")
    k.op("v_add_u32 v7, v7, v5")
    k.op("v_lshrrev_b32 v184, 3, v0")
    k.op(f"s_lshl_b32 s{sT0}, s{sW}, 3")
    k.op(f"v_add_u32 v184, s{sT0}, v184")
    k.op("v_and_b32 v185, 7, v0")
    k.op("v_mul_u32_u24 v186, 896, v184")
    k.op("v_lshl_add_u32 v186, v185, 4, v186")
    k.op(f"s_mul_i32 s78, s{sTT}, {64*896}")
    k.op(f"s_lshl_b32 s{sT0}, s{sDT}, 7")
    k.op(f"s_add_u32 s78, s78, s{sT0}")
    k.op(f"s_add_u32 s79, s78, {32*896}")
    k.op(f"s_lshr_b32 s{sU0}, s{sTT}, 1")
    cnt_addr(k, 187, idx_sgpr=sU0, idx=HCNT)
    k.op(f"s_lshl_b32 s{sT0}, s{sTT}, 1")
    k.op(f"s_mul_i32 s{sT0}, s{sT0}, 112")
    k.op(f"s_mul_i32 s{sT1}, s{sW}, 28")
    k.op(f"s_add_u32 s{sT0}, s{sT0}, s{sT1}")
    k.op(f"s_lshl_b32 s{sHG}, s{sT0}, 10")
    wd1 = wd_dma_groups(WD_KS, 2 * WD_KS, "wd1")
    for g in wd1[:WD_KS]:
        for i, it in enumerate(g):
            if it[0] == "vm": g[i] = ("vm", it[1], "wd1a")
    wr0 = wd_read_items(0, WD_KS)
    wr1 = wd_read_items(WD_KS, 2 * WD_KS)
    H = WD_KS // 2
    one = lambda items: [[x] for x in items]
    wtag = lambda it: [("fn", lambda t=it[2]: k.wait(lg=t))]
    plan = {0: one(fg(1)) + [[("fn", lambda: k.wait(vm="wd0"))]] + one(wr0[:4*H]),
            1: one(fg(2)) + [wtag(wr0[4*H-1])] + [g for pair in zip(one(wr0[4*H:]), wd1[:2*H] + [[]] * (4*H - 2*H)) for g in pair],
            2: one(fg(3)) + [wtag(wr0[-1])] + wd1[2*H:],
            3: []}
    first = set()
    for sub in range(4):
        stamp(k, f"s_pre{sub}")
        k.wait(lg=f"F{sub}")
        if sub == 1:
            h_signal(k)
            k.vm(f"buffer_load_dwordx4 {ar(224,4)}, v186, s[{rX}:{rX+3}], s78 offen", "ex")
            k.vm(f"buffer_load_dwordx4 {ar(228,4)}, v186, s[{rX}:{rX+3}], s79 offen", "ex")
        if sub == 2:
            k.vm(f"global_load_dword v188, v187, s[{sPWS}:{sPWS+1}] sc1", "hcnt")
        stamp(k, f"s_go{sub}")
        fill = [g for g in plan[sub] if g]
        mf = [(T, J) for T in range(7, -1, -1) for J in range(0, 8 - T)]
        per = len(fill) / 36.0
        done = 0
        for n, (T, J) in enumerate(mf):
            tile = T + J
            a = vr(ACC + 4 * tile, 4)
            cin = a if tile in first else "0"
            first.add(tile)
            k.op(f"v_mfma_f32_16x16x32_bf16 {a}, {vr(FB[sub%2]+4*J,4)}, {vr(GBUF[sub%2]+4*T,4)}, {cin}")
            want = min(len(fill), int(round((n + 1) * per + 0.49)))
            while done < want:
                emit(k, fill[done]); done += 1
        while done < len(fill):
            emit(k, fill[done]); done += 1
    stamp(k, "c_mfma")
    k.wait(vm="hcnt")
    check_or_spin(k, 188, 187, sPWS, 14)
    stamp(k, "d_hrdy")
    k.op("v_lshlrev_b32 v189, 3, v184")
    k.op(f"s_lshl_b32 s{sT0}, s{sTT}, 9")
    k.op(f"s_add_u32 s{sT0}, s{sT0}, {ST_OFF}")
    k.vm(f"buffer_load_dwordx2 {ar(232,2)}, v189, s[{rWS}:{rWS+3}], s{sT0} offen sc1", "ex")
    k.vm(f"buffer_load_dwordx2 {ar(234,2)}, v189, s[{rWS}:{rWS+3}], s{sT0} offen offset:256 sc1", "ex")
    for ks in range(PD):
        g2_hload(k, ks)
    k.op(f"s_lshl_b32 s{sT0}, s{sW}, 12")
    k.op(f"s_add_u32 s{sT0}, s{sT0}, {XCH}")
    k.op(f"v_add_u32 v5, s{sT0}, v1")
    k.op(f"s_xor_b32 s{sT1}, s{sW}, 1")
    k.op(f"s_lshl_b32 s{sT1}, s{sT1}, 12")
    k.op(f"s_add_u32 s{sT1}, s{sT1}, {XCH}")
    k.op(f"v_add_u32 v6, s{sT1}, v1")
    k.op(f"s_lshl_b32 s{sT2}, s{sCH}, 12")
    k.op(f"s_add_u32 s{sT2}, s{sT2}, {Y_OFF}")
    if k.lgq: k.wait(lg=k.lgq[-1])
    k.op("s_barrier")
    lo, le = k.newlabel("Lcodd"), k.newlabel("Lcend")
    k.op("s_nop 1")
    def finish(keep, send):
        for i in range(4):
            k.op(f"ds_write_b128 v5, {vr(ACC + 4*(send+i), 4)} offset:{1024*i}")
        for i in range(4):
            k.op(f"ds_read_b64 {vr(64+2*i,2)}, v13 offset:{512*(7-(keep+i))}")
        k.op("s_waitcnt lgkmcnt(0)")
        k.op("s_barrier")
        for i in range(4):
            k.op(f"ds_read_b128 {vr(48+4*i,4)}, v6 offset:{1024*i}")
        for i in range(4):
            U = 64 + 2 * i
            k.op(f"v_and_b32 v{112+4*i}, s{sMASK}, v{U+1}")
            k.op(f"v_lshlrev_b32 v{113+4*i}, 16, v{U+1}")
            k.op(f"v_and_b32 v{114+4*i}, s{sMASK}, v{U}")
            k.op(f"v_lshlrev_b32 v{115+4*i}, 16, v{U}")
            A = ACC + 4 * (keep + i)
            for r in range(4):
                k.op(f"v_fmac_f32 v{A+r}, v{112+4*i+r}, v8")
        k.op("s_waitcnt lgkmcnt(0)")
        for i in range(4):
            A = ACC + 4 * (keep + i)
            k.op(f"v_pk_add_f32 {vr(A,2)}, {vr(A,2)}, {vr(48+4*i,2)}")
            k.op(f"v_pk_add_f32 {vr(A+2,2)}, {vr(A+2,2)}, {vr(50+4*i,2)}")
        for i in range(4):
            A = ACC + 4 * (keep + i)
            k.op(f"v_cvt_pk_bf16_f32 v{72+2*i}, v{A}, v{A+1}")
            k.op(f"v_cvt_pk_bf16_f32 v{73+2*i}, v{A+2}, v{A+3}")
        k.op("s_nop 1")
        for i in (0, 2):
            k.op(f"v_permlane16_swap_b32 v{72+2*i}, v{74+2*i}")
            k.op(f"v_permlane16_swap_b32 v{73+2*i}, v{75+2*i}")
        k.op("s_nop 0")
        for i in (0, 2):
            k.op(f"buffer_store_dwordx4 {vr(72+2*i,4)}, v7, s[{rWS}:{rWS+3}], s{sT2} offen offset:{512*(keep+i)} sc1")
    k.op(f"s_bitcmp1_b32 s{sW}, 0")
    k.op(f"s_cbranch_scc1 {lo}")
    finish(0, 4)
    k.op(f"s_branch {le}")
    k.label(lo)
    finish(4, 0)
    k.label(le)
    for i in range(2): k.vmq.append("yst")
    stamp(k, "c_end")
    return wr1

NHS = 8; vA2 = 192
def hreg(ks, e):
    sl = ks % NHS
    return (16 + 8 * sl if sl < 4 else 80 + 8 * (sl - 4)) + 4 * e
PD = 4
def g2_hbase(k, g):
    k.op(f"s_add_u32 s{sT3}, s{sROT}, {g}")
    k.op(f"s_cmp_ge_u32 s{sT3}, 7")
    k.op(f"s_cselect_b32 s76, 7, 0")
    k.op(f"s_sub_u32 s{sT3}, s{sT3}, s76")
    k.op(f"s_lshl_b32 s{sT3}, s{sT3}, 12")
    k.op(f"s_add_u32 s76, s{sT3}, s{sHG}")
    k.op(f"s_add_u32 s77, s76, {112*1024}")
def g2_hload(k, ks):
    if ks % 4 == 0: g2_hbase(k, ks // 4)
    for e in range(2):
        b = hreg(ks, e)
        k.vm(f"buffer_load_dwordx4 {vr(b,4)}, v1, s[{rWS}:{rWS+3}], s{76+e} offen offset:{(ks%4)*1024}{'' if 'hplain' in OPT else ' sc1'}", f"h{ks}")

def gemm2_phase(k, wr1):
    k.op("v_mov_b32 v5, v184"); k.op("v_mov_b32 v6, v185"); k.op("v_mov_b32 v7, v186")
    for ks in range(PD, 2 * PD):
        g2_hload(k, ks)
    k.op(f"s_lshr_b32 s{sU0}, s{sWGM}, 5")
    cnt_addr(k, 9, idx_sgpr=sU0, idx=YCNT)
    k.op(f"s_lshl_b32 s{sU1}, s{sDT}, 7")
    k.op(f"s_add_u32 s{sU1}, s{sU1}, {CNT_OFF + YCNT * 128}")
    def y_loads():
        done = k.newlabel("Lyok")
        stamp(k, "t_y0")
        k.op("s_waitcnt lgkmcnt(0)")
        k.lgq = []
        stamp(k, "t_y1")
        k.op(f"s_cmp_ge_u32 s{sU2}, 32")
        k.op(f"s_cbranch_scc1 {done}")
        k.op(f"v_mov_b32 v9, s{sU1}")
        q = list(k.vmq)
        spin_until(k, 9, 10, sPWS, 32)
        k.vmq = q
        k.label(done)
        stamp(k, "t_y2")
        k.op("v_lshrrev_b32 v8, 3, v0")
        k.op("v_lshlrev_b32 v8, 12, v8")
        k.op("v_lshl_add_u32 v8, v6, 4, v8")
        k.op(f"s_lshl_b32 s{sT0}, s{sDT}, 18")
        k.op(f"s_lshl_b32 s{sT1}, s{sW}, 16")
        k.op(f"s_add_u32 s{sT0}, s{sT0}, s{sT1}")
        k.op(f"s_lshl_b32 s{sT1}, s{sTT}, 7")
        k.op(f"s_add_u32 s{sT0}, s{sT0}, s{sT1}")
        k.op(f"s_add_u32 s{sT0}, s{sT0}, {Y_OFF}")
        k.op(f"s_mul_i32 s{sT1}, s{sW}, 2080")
        k.op(f"s_add_u32 m0, s{sT1}, {YT}")
        k.op(f"s_add_u32 s{sT2}, s{sT0}, {8*4096 - 1040}")
        k.vm(f"buffer_load_dwordx4 v8, s[{rWS}:{rWS+3}], s{sT0} offen sc1 lds", "ey")
        k.vm(f"buffer_load_dwordx4 v8, s[{rWS}:{rWS+3}], s{sT2} offen offset:1040 sc1 lds", "ey")
    RROW = 272; RW = 64 * RROW
    k.op("v_and_b32 v11, 31, v0")
    k.op(f"v_mul_u32_u24 v11, {RROW}, v11")
    k.op("v_lshrrev_b32 v12, 5, v0")
    k.op("v_lshl_add_u32 v11, v12, 4, v11")
    k.op(f"s_mul_i32 s{sT0}, s{sW}, {RW}")
    k.op(f"s_add_u32 s{sT0}, s{sT0}, {RED}")
    k.op(f"v_add_u32 v11, s{sT0}, v11")
    first = set()
    def mf(ks, dt2, e):
        t = 2 * dt2 + e
        acc = vr(vA2 + 16 * t, 16)
        cin = acc if t in first else "0"
        first.add(t)
        hb = hreg(ks, e)
        k.op(f"v_mfma_f32_32x32x16_bf16 {acc}, {ar(8*ks+4*dt2,4)}, {vr(hb,4)}, {cin}")
    LASTK = 24
    YPOLL, YLOAD = (11, 20) if 'y11' in OPT else (14, 21) if 'y14' in OPT else (13, 22)
    xfill = []
    for ps in range(2):
        X = 112 + 16 * ps; N = X + 8; T = 144 + 8 * ps
        for q in range(4): xfill.append(("op", f"v_accvgpr_read_b32 v{T+q}, a{224+4*ps+q}"))
        xfill.append(("op", f"v_accvgpr_read_b32 v{T+4}, a{232+2*ps}"))
        xfill.append(("op", f"v_accvgpr_read_b32 v{T+5}, a{233+2*ps}"))
        for q in range(4):
            xfill.append(("op", f"v_lshlrev_b32 v{X+2*q}, 16, v{T+q}"))
            xfill.append(("op", f"v_and_b32 v{X+2*q+1}, s{sMASK}, v{T+q}"))
        for q in range(8): xfill.append(("op", f"v_fma_f32 v{N+q}, v{X+q}, v{T+4}, v{T+5}"))
        for q in range(8): xfill.append(("op", f"v_mov_b32 v{160+8*ps+q}, 0"))
    def hl(kn, e):
        k.vm(f"buffer_load_dwordx4 {vr(hreg(kn, e),4)}, v1, s[{rWS}:{rWS+3}], s{76+e} offen offset:{(kn%4)*1024}{'' if 'hplain' in OPT else ' sc1'}", f"h{kn}")
    for ks in range(LASTK):
        if ks == 3:
            k.wait(vm="yst")
            k.op("s_barrier")
            signal(k, 9, 8)
            stamp(k, "c_sig")
        k.wait(vm=f"h{ks}", lg=[f"wr{ks}_1_1"] if ks >= WD_KS else [])
        if ks % 2 == 0: stamp(k, f"z_{ks}")
        m = 0
        for dt2 in range(2):
            for e in range(2):
                mf(ks, dt2, e)
                if ks + 8 < 28 and m >= 2:
                    kn = ks + 8
                    if m == 2 and kn % 4 == 0: g2_hbase(k, kn // 4)
                    hl(kn, m - 2)
                if ks < WD_KS: emit(k, [wr1[4 * ks + m]])
                if ks >= 6 and xfill and m < 2: emit(k, [xfill.pop(0) for _ in range(min(2, len(xfill)))])
                if m == 3 and ks == YPOLL: k.op(f"s_load_dword s{sU2}, s[{sPWS}:{sPWS+1}], s{sU1}")
                if m == 3 and ks == YLOAD: y_loads()
                m += 1
    assert not xfill
    k.wait(vm="h27", lg=["wr27_1_1"])
    def wr(t):
        dt2, e = divmod(t, 2)
        return [("lg", f"ds_write_b128 v11, {vr(vA2 + 16*t + 4*g, 4)} offset:{e*32*RROW + dt2*128 + g*32}", f"rw{t}{g}") for g in range(4)]
    for t in range(4):
        dt2, e = divmod(t, 2)
        for ks in range(LASTK, 28):
            mf(ks, dt2, e)
        if t == 2: k.op("s_nop 3")
        if t >= 2: emit(k, wr(t - 2))
    stamp(k, "d_loop")
    k.op(f"v_mov_b32 v10, {hex(f2u(-1.4426950408889634))}")
    k.op(f"v_mul_u32_u24 v8, {RROW}, v5")
    k.op("v_lshl_add_u32 v8, v6, 5, v8")
    k.op(f"v_add_u32 v8, {RED}, v8")
    k.op("v_mul_u32_u24 v9, 1040, v6")
    k.op("v_lshl_add_u32 v9, v5, 1, v9")
    k.op(f"v_add_u32 v9, {YT}, v9")
    emit(k, wr(2))
    emit(k, wr(3))
    k.op("v_mov_b32 v11, 1.0")
    k.wait(lg=k.lgq[-1])
    stamp(k, "t_wr")
    k.op("s_barrier")
    stamp(k, "t_bar")
    for ps in range(2):
        B = 16 + 64 * ps
        for w in range(4):
            for hh in range(2):
                k.lg(f"ds_read_b128 {vr(B + 8*w + 4*hh, 4)}, v8 offset:{w*RW + ps*32*RROW + hh*16}", f"p{ps}_{w}{hh}")
    for ps in range(2):
        B = 16 + 64 * ps if ps == 0 else 80
        N = 112 + 16 * ps + 8
        k.wait(lg=f"p{ps}_31")
        for q in range(4):
            k.op(f"v_pk_add_f32 {vr(B+2*q,2)}, {vr(B+2*q,2)}, {vr(B+8+2*q,2)}")
            k.op(f"v_pk_add_f32 {vr(B+16+2*q,2)}, {vr(B+16+2*q,2)}, {vr(B+24+2*q,2)}")
        for q in range(4):
            k.op(f"v_pk_add_f32 {vr(B+2*q,2)}, {vr(B+2*q,2)}, {vr(B+16+2*q,2)}")
        E = B + 16
        for q in range(4):
            k.op(f"v_pk_mul_f32 {vr(E+2*q,2)}, {vr(B+2*q,2)}, {vr(10,2)} op_sel_hi:[1,0]")
        for q in range(8): k.op(f"v_exp_f32 v{E+q}, v{E+q}")
        for q in range(4): k.op(f"v_pk_mul_f32 {vr(N+2*q,2)}, {vr(N+2*q,2)}, {vr(B+2*q,2)}")
        for q in range(4): k.op(f"v_pk_add_f32 {vr(E+2*q,2)}, {vr(E+2*q,2)}, {vr(10,2)} op_sel:[0,1] op_sel_hi:[1,1]")
        for q in range(8): k.op(f"v_rcp_f32 v{E+q}, v{E+q}")
        k.op("s_nop 0")
        for q in range(4): k.op(f"v_pk_mul_f32 {vr(N+2*q,2)}, {vr(N+2*q,2)}, {vr(E+2*q,2)}")
    stamp(k, "t_silu")
    k.wait(vm="ey")
    k.op("s_barrier")
    stamp(k, "t_ey")
    for ps in range(2):
        for e in range(8):
            if len(k.lgq) >= 14: k.wait(lg=k.lgq[3])
            k.lg(f"ds_read_u16_d16_hi v{160+8*ps+e}, v9 offset:{e*128 + ps*64}", f"y{ps}_{e}")
    for ps in range(2):
        X = 112 + 16 * ps; N = X + 8; Yr = 160 + 8 * ps; T = 144 + 8 * ps
        k.wait(lg=f"y{ps}_7")
        for q in range(4): k.op(f"v_pk_fma_f32 {vr(N+2*q,2)}, {vr(N+2*q,2)}, {vr(Yr+2*q,2)}, {vr(X+2*q,2)}")
        for q in range(4): k.op(f"v_cvt_pk_bf16_f32 v{T+q}, v{N+2*q}, v{N+2*q+1}")
        k.vm(f"buffer_store_dwordx4 {vr(T,4)}, v7, s[{rOUT}:{rOUT+3}], s{78+ps} offen", "ost")
    stamp(k, "d_end")

PP_ROW = 900
PP_K = 0
PP_V = 67 * PP_ROW + 4
def prepass(k):
    k.op(f"s_sub_u32 s{sT0}, s{sSLOT}, 28")
    k.op(f"s_lshl_b32 s{sT0}, s{sT0}, 3")
    k.op(f"s_add_u32 s{sI}, s{sT0}, s{sXCD}")
    k.op("v_lshlrev_b32 v1, 4, v0")
    k.op("s_waitcnt lgkmcnt(0)")
    srd(k, rWS, sPWS, (16 << 20) if STAMPS else WS_USED)
    lab = k.newlabel("Lnolead")
    k.op(f"s_or_b32 s{sT0}, s{sI}, s{sW}")
    k.op(f"s_cmp_lg_u32 s{sT0}, 0")
    k.op(f"s_cbranch_scc1 {lab}")
    k.op("v_lshlrev_b32 v2, 7, v0")
    k.op(f"v_add_u32 v2, {CNT_OFF}, v2")
    k.op("v_mov_b32 v3, 0")
    k.op("s_mov_b32 exec_hi, 0")
    k.op(f"global_store_dword v2, v3, s[{sPWS}:{sPWS+1}] sc1")
    k.op("s_waitcnt vmcnt(0)")
    k.op("v_mov_b32 v2, 1")
    k.op("s_mov_b64 exec, 1")
    k.op(f"global_store_dword v3, v2, s[{sPDBG}:{sPDBG+1}] sc1")
    k.op("s_mov_b64 exec, -1")
    k.label(lab)
    srd(k, rK, sPK, S * D * 2)
    srd(k, rV, sPV, S * D * 2)
    srd(k, rSK, sPSK, D * 4 * 2)
    k.op("s_mov_b32 exec_hi, 0x00ffffff")
    k.op(f"s_lshl_b32 s{sT0}, s{sI}, 6")
    k.op(f"s_add_u32 s{sT0}, s{sT0}, s{sW}")
    k.op(f"s_sub_u32 s{sT1}, s{sT0}, 3")
    k.op(f"s_mul_i32 s{sT1}, s{sT1}, 896")
    k.op(f"s_mul_i32 s{sT2}, s{sW}, {PP_ROW}")
    k.op(f"s_add_u32 m0, s{sT2}, {PP_K}")
    k.op(f"v_add_u32 v2, s{sT1}, v1")
    for n in range(17):
        if n == 16:
            lab = k.newlabel("Lpk")
            k.op(f"s_cmp_eq_u32 s{sW}, 3")
            k.op(f"s_cbranch_scc1 {lab}")
            k.op(f"buffer_load_dwordx4 v2, s[{rK}:{rK+3}], 0 offen lds")
            k.label(lab)
        else:
            k.vm(f"buffer_load_dwordx4 v2, s[{rK}:{rK+3}], 0 offen lds", "k")
            k.op(f"s_add_u32 m0, m0, {4*PP_ROW}")
            k.op(f"v_add_u32 v2, {4*896}, v2")
    k.op(f"s_mul_i32 s{sT1}, s{sT0}, 896")
    k.op(f"s_add_u32 m0, s{sT2}, {PP_V}")
    k.op("s_nop 0")
    for n in range(16):
        k.vm(f"buffer_load_dwordx4 v1, s[{rV}:{rV+3}], s{sT1} offen lds", "v")
        if n < 15:
            k.op(f"s_add_u32 m0, m0, {4*PP_ROW}")
            k.op(f"s_add_u32 s{sT1}, s{sT1}, {4*896}")
    k.op("s_mov_b32 exec_hi, -1")
    k.op("v_and_b32 v2, 3, v0")
    k.op("v_lshrrev_b32 v3, 5, v0")
    k.op("v_lshl_add_u32 v2, v3, 2, v2")
    k.op("v_bfe_u32 v3, v0, 2, 3")
    k.op(f"v_mul_u32_u24 v4, {8*PP_ROW}, v2")
    k.op("v_lshl_add_u32 v4, v3, 2, v4")
    k.op(f"s_lshl_b32 s{sT0}, s{sW}, 5")
    k.op(f"v_add_u32 v4, s{sT0}, v4")
    k.op(f"v_add_u32 v8, {PP_V}, v4")
    k.op("v_lshlrev_b32 v5, 4, v3")
    k.op(f"s_lshl_b32 s{sT0}, s{sW}, 7")
    k.op(f"v_add_u32 v5, s{sT0}, v5")
    k.op("v_lshlrev_b32 v6, 13, v3")
    k.op(f"s_lshl_b32 s{sT0}, s{sW}, 16")
    k.op(f"v_add_u32 v6, s{sT0}, v6")
    k.op("v_lshlrev_b32 v7, 4, v2")
    k.op("v_sub_u32 v6, v6, v7")
    k.op(f"s_lshl_b32 s{sT0}, s{sI}, 7")
    k.op(f"s_sub_u32 s{sT0}, {U_OFF + (2047 - 7) * 2}, s{sT0}")
    k.op(f"v_add_u32 v6, s{sT0}, v6")
    for it in range(7):
        k.vm(f"buffer_load_dwordx4 {vr(100 + 4*it, 4)}, v5, s[{rSK}:{rSK+3}], 0 offen offset:{it*512}", "sk")
    k.wait_all()
    k.op("s_barrier")
    KR, VR = 16, 28
    for it in range(7):
        coff = it * 128
        for j in range(11):
            k.lg(f"ds_read_b32 v{KR+j}, v4 offset:{PP_K + j*PP_ROW + coff}", "kr")
        k.wait(lg="kr")
        for j in range(8):
            k.lg(f"ds_read_b32 v{VR+j}, v8 offset:{j*PP_ROW + coff}", "vr")
        for j in range(11):
            k.op(f"v_lshlrev_b32 v{40+2*j}, 16, v{KR+j}")
            k.op(f"v_and_b32 v{41+2*j}, 0xffff0000, v{KR+j}")
        sk = 100 + 4 * it
        k.op(f"v_lshlrev_b32 v64, 16, v{sk}");   k.op(f"v_lshlrev_b32 v65, 16, v{sk+2}")
        k.op(f"v_and_b32 v66, 0xffff0000, v{sk}"); k.op(f"v_and_b32 v67, 0xffff0000, v{sk+2}")
        k.op(f"v_lshlrev_b32 v68, 16, v{sk+1}"); k.op(f"v_lshlrev_b32 v69, 16, v{sk+3}")
        k.op(f"v_and_b32 v70, 0xffff0000, v{sk+1}"); k.op(f"v_and_b32 v71, 0xffff0000, v{sk+3}")
        k.wait(lg="vr")
        for j in range(8):
            k.op(f"v_lshlrev_b32 v{72+2*j}, 16, v{VR+j}")
            k.op(f"v_and_b32 v{73+2*j}, 0xffff0000, v{VR+j}")
        for t in range(8):
            k.op(f"v_pk_mul_f32 {vr(130+2*t,2)}, {vr(40+2*(t+3),2)}, {vr(64,2)}")
        for j in range(1, 4):
            for t in range(8):
                o = 130 + 2 * t
                k.op(f"v_pk_fma_f32 {vr(o,2)}, {vr(40+2*(t+3-j),2)}, {vr(64+2*j,2)}, {vr(o,2)}")
        for t in range(8):
            o = 130 + 2 * t
            k.op(f"v_pk_mul_f32 {vr(o,2)}, {vr(o,2)}, {vr(72+2*t,2)}")
        O = 150 + 8 * (it % 2)
        for q in range(4):
            k.op(f"v_cvt_pk_bf16_f32 v{O+q}, v{130+2*(7-2*q)}, v{130+2*(6-2*q)}")
            k.op(f"v_cvt_pk_bf16_f32 v{O+4+q}, v{131+2*(7-2*q)}, v{131+2*(6-2*q)}")
        k.op(f"s_mov_b32 s{sT0}, {it * 64 * 4096}")
        k.op(f"s_mov_b32 s{sT1}, {it * 64 * 4096 + 4096}")
        k.vm(f"buffer_store_dwordx4 {vr(O,4)}, v6, s[{rWS}:{rWS+3}], s{sT0} offen sc1", "ust")
        k.vm(f"buffer_store_dwordx4 {vr(O+4,4)}, v6, s[{rWS}:{rWS+3}], s{sT1} offen sc1", "ust")
    k.wait_all()
    k.op("s_barrier")
    lab = k.newlabel("Lpsig")
    k.op(f"s_cmp_lg_u32 s{sW}, 0")
    k.op(f"s_cbranch_scc1 {lab}")
    k.op("v_mov_b32 v9, 0")
    spin_until(k, 9, 8, sPDBG, 1)
    k.label(lab)
    cnt_addr(k, 9, idx=UCNT)
    signal(k, 9, 8)

def kd(name, vgpr=512, acc=256):
    return f""".section .rodata,"a"
.p2align 6
.amdhsa_kernel {name}
  .amdhsa_next_free_vgpr {vgpr}
  .amdhsa_next_free_sgpr 102
  .amdhsa_accum_offset {acc}
  .amdhsa_group_segment_fixed_size 0
  .amdhsa_kernarg_size 104
  .amdhsa_user_sgpr_count 2
  .amdhsa_user_sgpr_kernarg_segment_ptr 1
  .amdhsa_system_sgpr_workgroup_id_x 1
  .amdhsa_float_denorm_mode_32 3
.end_amdhsa_kernel
"""

def build():
    k = K()
    prologue(k, 32768)
    start_main(k)
    gemm1_loop(k)
    gelu_phase(k)
    wr1 = conv_phase(k)
    gemm2_phase(k, wr1)
    for o in OPT:
        if o.startswith("cyc"):
            n = int(o[3:])
            k.op(f"s_add_u32 s10, s73, {n}")
            k.label("L_untilc")
            k.op("s_memtime s[8:9]")
            k.op("s_waitcnt lgkmcnt(0)")
            k.op("s_sub_u32 s11, s10, s8")
            k.op("s_cmp_gt_i32 s11, 0")
            k.op("s_cbranch_scc1 L_untilc")
        if o.startswith("until"):
            n = int(o[5:])
            k.op(f"s_add_u32 s10, s73, {n}")
            k.label("L_until")
            k.op("s_memrealtime s[8:9]")
            k.op("s_waitcnt lgkmcnt(0)")
            k.op("s_sub_u32 s11, s10, s8")
            k.op("s_cmp_gt_i32 s11, 0")
            k.op("s_cbranch_scc1 L_until")
        if o.startswith("delay"):
            n = int(o[5:])
            k.op("s_memtime s[8:9]")
            k.op("s_waitcnt lgkmcnt(0)")
            k.op(f"s_add_u32 s10, s8, {n}")
            k.label("L_delay")
            k.op("s_memtime s[8:9]")
            k.op("s_waitcnt lgkmcnt(0)")
            k.op("s_sub_u32 s11, s10, s8")
            k.op("s_cmp_gt_i32 s11, 0")
            k.op("s_cbranch_scc1 L_delay")
    stamp_flush(k)
    k.op("s_endpgm")
    k.label("L_pre")
    k.vmq = []; k.lgq = []
    prepass(k)
    k.label("L_exit")
    name = NAME + "_kernel"
    header = open("cdna_kernels/" + NAME + ".s.ref").read().split("; Override launch")[0]
    txt = header + f"; @launch grid=(256,1,1) block=(256,1,1) lds={LDS_TOTAL}\n"
    txt += '.amdgcn_target "amdgcn-amd-amdhsa--gfx950"\n.text\n'
    txt += f".globl {name}\n.p2align 8\n.type {name},@function\n{name}:\n"
    txt += k.text() + "s_endpgm\n" + kd(name)
    return txt

if __name__ == "__main__":
    if len(sys.argv) > 2 and sys.argv[2].startswith("stamps"):
        STAMPS = True
        if "=" in sys.argv[2]: STAMPSET = sys.argv[2].split("=")[1].split(",")
    if len(sys.argv) > 3: OPT.update(sys.argv[3].split(","))
    txt = build()
    check_hazards(txt)
    open(sys.argv[1], "w").write(txt)
    if STAMPS: print("stamps:", stamped)
```

```python
import sys, struct
from asmlib import *

NAME = "recurrent_scan__ssm_conv_h3__geglu_ffn__prompt"
S, D, F = 2048, 448, 1792
OPT = set()

H_OFF = 0
U_OFF = H_OFF + 64 * 112 * 1024
Y_OFF = U_OFF + D * 4096
ST_OFF = Y_OFF + D * 4096
CNT_OFF = ST_OFF + S * 8
WS_USED = CNT_OFF + 32 * 128
HCNT, YCNT, UCNT = 0, 16, 24

sPQ, sPK, sPV, sPSK, sPSSM, sPD, sPBX, sPWG = 16, 18, 20, 22, 24, 26, 28, 30
sPWU, sPWD, sPOUT, sPDBG = 32, 34, 36, 38
sPWS = 40
rX, rW, rWS, rWD, rSSM, rOUT, rD = 44, 48, 52, 56, 60, 64, 68
rK, rV, rSK = 48, 56, 60
sT0, sT1, sT2, sT3 = 4, 5, 6, 7
sW, sI, sJ, sWSO, sWM0, sSLOT, sXCD, sONES, sMASK, sWGM = 80, 81, 82, 83, 84, 85, 86, 87, 88, 89
sTT, sDT, sWDS, sWDM, sCH = 90, 91, 92, 93, 94
sHST = 95
sWDG = 75
sWDM4 = 42
sROT = 43
sHG = 74
sU0, sU1, sU2, sU3 = 96, 97, 98, 99

SLOT_SZ = 34048
XOFF = 17024
XS = SLOT_SZ
XROW = 912
SLOT = [0, SLOT_SZ, 2 * SLOT_SZ, 3 * SLOT_SZ]
LDS_TOTAL = 163840
HC_STRIDE = 4160
HC_CH = 4 * HC_STRIDE
UR_CH = 4608
WDST = 0
WD_KS = 14
WD_WAVE = WD_KS * 2048
def stg_const(s_):
    g = s_ >> 2
    return g * SLOT_SZ + (s_ & 3) * 2048 if g < 3 else 3 * SLOT_SZ + (s_ & 1) * 2048
HC = 3 * SLOT_SZ + 4 * 4096
UR = HC + 2 * HC_CH
XCH = HC
YT = UR + 2 * UR_CH
assert YT + 8320 <= LDS_TOTAL or True
YT = HC + 16384
RED = 0

vX = 16
vACC = 128

STAMPS = False
STAMP_OFF = 12 << 20
STAMPSET = None
POOL = [8, 10, 72, 18, 20, 22, 28, 16, 24, 26, 30, 32, 34, 36, 12, 14]
stamped = []
def stamp(k, name=""):
    if not STAMPS: return
    if STAMPSET is not None and not any((name == p[:-1]) if p.endswith("$") else name.startswith(p) for p in STAMPSET): return
    i = len(stamped)
    assert i < len(POOL)
    stamped.append(name)
    k.op(f"s_memtime s[{POOL[i]}:{POOL[i]+1}]")
def stamp_flush_dbg(k):
    wg = int([o for o in OPT if o.startswith("dbgwg")][0][5:])
    lab = k.newlabel("Ldbg")
    k.op("s_waitcnt vmcnt(0) lgkmcnt(0)")
    k.op(f"s_cmp_lg_u32 s2, {wg}"); k.op(f"s_cbranch_scc1 {lab}")
    k.op(f"s_cmp_lg_u32 s{sW}, 0"); k.op(f"s_cbranch_scc1 {lab}")
    k.op("s_mov_b64 exec, 1")
    for i in range(1, len(stamped)):
        k.op(f"s_sub_u32 s4, s{POOL[i]}, s{POOL[0]}")
        k.op(f"v_mov_b32 v2, s4")
        k.op(f"v_mov_b32 v1, {4*i}")
        k.op(f"global_store_dword v1, v2, s[{sPDBG}:{sPDBG+1}]")
    k.op("s_mov_b64 exec, -1")
    k.label(lab)

def stamp_leak(k):
    KL = 3
    k.op("s_waitcnt vmcnt(0) lgkmcnt(0)")
    k.op(f"s_sub_u32 s4, s{POOL[1]}, s{POOL[0]}")
    k.op(f"s_mul_i32 s4, s4, {KL}")
    k.op("s_memtime s[6:7]")
    k.op("s_waitcnt lgkmcnt(0)")
    k.op("s_add_u32 s4, s4, s6")
    k.label("L_leak")
    k.op("s_memtime s[6:7]")
    k.op("s_waitcnt lgkmcnt(0)")
    k.op("s_sub_u32 s5, s4, s6")
    k.op("s_cmp_gt_i32 s5, 0")
    k.op("s_cbranch_scc1 L_leak")

def stamp_flush(k):
    if not STAMPS: return
    if "leak" in OPT: return stamp_leak(k)
    if any(o.startswith("dbgwg") for o in OPT): return stamp_flush_dbg(k)
    k.op("s_waitcnt vmcnt(0) lgkmcnt(0)")
    k.op("s_memrealtime s[42:43]")
    k.op("s_waitcnt lgkmcnt(0)")
    k.op("s_mov_b32 s101, s42")
    k.op("s_lshl_b32 s4, s2, 2")
    k.op(f"s_add_u32 s4, s4, s{sW}")
    k.op("s_lshl_b32 s4, s4, 7")
    k.op(f"s_add_u32 s4, s4, {STAMP_OFF}")
    k.op("v_mov_b32 v1, 0")
    k.op("s_mov_b64 exec, 1")
    for i in range(len(stamped)):
        k.op(f"v_mov_b32 v2, s{POOL[i]}")
        k.op(f"buffer_store_dword v2, v1, s[{rWS}:{rWS+3}], s4 offen offset:{4*i}")
    k.op("v_mov_b32 v2, s100")
    k.op(f"buffer_store_dword v2, v1, s[{rWS}:{rWS+3}], s4 offen offset:{4*30}")
    k.op("v_mov_b32 v2, s101")
    k.op(f"buffer_store_dword v2, v1, s[{rWS}:{rWS+3}], s4 offen offset:{4*31}")
    k.op("s_mov_b64 exec, -1")

def f2u(x):
    return struct.unpack("<I", struct.pack("<f", x))[0]

def srd(k, r, ptr, nbytes):
    k.op(f"s_mov_b32 s{r}, s{ptr}")
    k.op(f"s_and_b32 s{r+1}, s{ptr+1}, 0xffff")
    k.op(f"s_mov_b32 s{r+2}, {nbytes}")
    k.op(f"s_mov_b32 s{r+3}, 0x20000")

def emit(k, items):
    for it in items:
        if it[0] == "op": k.op(it[1])
        elif it[0] == "vm": k.vm(it[1], it[2])
        elif it[0] == "lg": k.lg(it[1], it[2])
        elif it[0] == "fn": it[1]()

def capture(fn, *args):
    t = K()
    fn(t, *args)
    assert not t.vmq and not t.lgq
    return [("op", l) for l in t.L]

def interleave(k, main, fill, every, start=0):
    fill = list(fill)
    for n, it in enumerate(main):
        emit(k, [it])
        if fill and n >= start and (n - start) % every == every - 1:
            emit(k, fill.pop(0))
    for g in fill: emit(k, g)

def cnt_addr(k, vreg, idx_sgpr=None, idx=0):
    if idx_sgpr is None:
        k.op(f"v_mov_b32 v{vreg}, {CNT_OFF + idx * 128}")
    else:
        k.op(f"s_lshl_b32 s{sT0}, s{idx_sgpr}, 7")
        k.op(f"s_add_u32 s{sT0}, s{sT0}, {CNT_OFF + idx * 128}")
        k.op(f"v_mov_b32 v{vreg}, s{sT0}")

def spin_until(k, vaddr, vtmp, base, target, cmp="ge"):
    lab, done = k.newlabel("Lspin"), k.newlabel("Lspun")
    k.op(f"s_mov_b32 s{sT1}, 0x40000")
    k.label(lab)
    k.op(f"global_load_dword v{vtmp}, v{vaddr}, s[{base}:{base+1}] sc1")
    k.op("s_waitcnt vmcnt(0)")
    k.op(f"v_readfirstlane_b32 s{sT2}, v{vtmp}")
    k.op(f"s_sub_u32 s{sT1}, s{sT1}, 1")
    k.op(f"s_cmp_ge_u32 s{sT2}, {target}")
    k.op(f"s_cbranch_scc1 {done}")
    k.op("s_sleep 1")
    k.op(f"s_cmp_lg_u32 s{sT1}, 0")
    k.op(f"s_cbranch_scc1 {lab}")
    k.label(done)
    k.vmq = []

def check_or_spin(k, vval, vaddr, base, target):
    done = k.newlabel("Lok")
    k.op(f"v_readfirstlane_b32 s{sT2}, v{vval}")
    k.op(f"s_cmp_ge_u32 s{sT2}, {target}")
    k.op(f"s_cbranch_scc1 {done}")
    q = list(k.vmq)
    spin_until(k, vaddr, vval, base, target)
    k.vmq = q
    k.label(done)

def signal(k, vaddr, vone):
    lab = k.newlabel("Lsig")
    k.op(f"s_cmp_lg_u32 s{sW}, 0")
    k.op(f"s_cbranch_scc1 {lab}")
    k.op(f"v_mov_b32 v{vone}, 1")
    k.op("s_mov_b64 exec, 1")
    k.op(f"global_atomic_add v{vaddr}, v{vone}, s[{sPWS}:{sPWS+1}] sc1")
    k.op("s_mov_b64 exec, -1")
    k.label(lab)

def prologue(k, codebytes):
    if any(o.startswith("cyc") for o in OPT):
        k.op("s_memtime s[72:73]")
        k.op("s_waitcnt lgkmcnt(0)")
        k.op("s_mov_b32 s73, s72")
    if any(o.startswith("until") for o in OPT):
        k.op("s_memrealtime s[72:73]")
        k.op("s_waitcnt lgkmcnt(0)")
        k.op("s_mov_b32 s73, s72")
    k.op("s_getpc_b64 s[12:13]")
    k.op("s_load_dwordx16 s[16:31], s[0:1], 0")
    k.op("s_load_dwordx8 s[32:39], s[0:1], 64")
    k.op("s_load_dwordx2 s[40:41], s[0:1], 96")
    k.op("v_lshrrev_b32 v1, 6, v0")
    k.op("v_and_b32 v0, 63, v0")
    k.op("s_cmp_ge_u32 s2, 256")
    k.op(f"v_readfirstlane_b32 s{sW}, v1")
    k.op("s_cbranch_scc1 L_exit")
    if "nocodepf" not in OPT:
        k.op("s_lshr_b32 s14, s2, 3")
        k.op("s_lshl_b32 s14, s14, 2")
        k.op(f"s_add_u32 s14, s14, s{sW}")
        k.op("s_mul_i32 s14, s14, 384")
        k.op("s_add_u32 s12, s12, s14")
        k.op("s_addc_u32 s13, s13, 0")
        k.op("v_lshlrev_b32 v2, 7, v0")
        k.op("s_mov_b64 exec, 7")
        k.vm("global_load_dword a250, v2, s[12:13]", "code")
        k.op("s_mov_b64 exec, -1")
        assert codebytes <= 128 * 384
    if STAMPS and not any(o.startswith("dbgwg") for o in OPT) and "leak" not in OPT:
        k.op("s_memrealtime s[42:43]")
        k.op("s_waitcnt lgkmcnt(0)")
        k.op("s_mov_b32 s100, s42")
    k.op(f"s_and_b32 s{sXCD}, s2, 7")
    k.op(f"s_lshr_b32 s{sSLOT}, s2, 3")
    k.op(f"s_cmp_ge_u32 s{sSLOT}, 28")
    k.op("s_cbranch_scc1 L_pre")

def wdma(c, e):
    out = []
    if e % 4 == 0:
        out.append(("op", f"s_add_u32 m0, s{sWM0}, {SLOT[c % 4] + e * 1056}"))
    out.append(("op", f"s_add_u32 s{sT3}, s{sWSO}, {(64 * c + e) * 3584 - (e % 4) * 1056}"))
    out.append(("vm", f"buffer_load_dwordx4 v2, s[{rW}:{rW+3}], s{sT3} offen offset:{(e % 4) * 1056} lds", f"w{c}"))
    return out

def start_main(k):
    k.op(f"s_mul_i32 s{sT0}, s{sSLOT}, 37")
    k.op(f"s_lshr_b32 s{sT0}, s{sT0}, 8")
    k.op(f"s_mul_i32 s{sT1}, s{sT0}, 7")
    k.op(f"s_sub_u32 s{sDT}, s{sSLOT}, s{sT1}")
    k.op(f"s_lshr_b32 s{sT2}, s{sXCD}, 1")
    k.op(f"s_lshl_b32 s{sT2}, s{sT2}, 2")
    k.op(f"s_add_u32 s{sI}, s{sT2}, s{sT0}")
    k.op(f"s_lshl_b32 s{sTT}, s{sXCD}, 2")
    k.op(f"s_add_u32 s{sTT}, s{sTT}, s{sT0}")
    k.op("v_lshlrev_b32 v1, 4, v0")
    k.op(f"s_lshl_b32 s{sU0}, s{sI}, 2")
    k.op(f"s_add_u32 s{sU0}, s{sU0}, s{sW}")
    k.op(f"s_mul_i32 s{sU0}, s{sU0}, {32*896}")
    k.op(f"s_mul_i32 s{sU1}, s{sW}, {32*XROW}")
    k.op(f"s_add_u32 s{sU1}, s{sU1}, {XS}")
    k.op(f"s_mul_i32 s{sU2}, s{sDT}, 9")
    k.op(f"s_lshr_b32 s{sU2}, s{sU2}, 1")
    k.op(f"s_mul_i32 s{sT1}, s{sU2}, 896")
    k.op(f"s_mul_i32 s{sT2}, s{sU2}, {XROW}")
    k.op(f"s_add_u32 s{sT1}, s{sT1}, s{sU0}")
    k.op(f"s_add_u32 s{sT2}, s{sT2}, s{sU1}")
    k.op(f"s_add_u32 s{sU3}, s{sU0}, {32*896}")
    k.op(f"s_and_b32 s{sT0}, s{sXCD}, 1")
    k.op(f"s_mul_i32 s{sJ}, s{sT0}, 7")
    k.op(f"s_add_u32 s{sJ}, s{sJ}, s{sDT}")
    k.op("v_lshrrev_b32 v6, 4, v0")
    k.op("v_lshlrev_b32 v6, 6, v6")
    k.op("v_bfe_u32 v7, v0, 1, 3")
    k.op("v_add_u32 v6, v6, v7")
    k.op("v_mul_u32_u24 v6, 3584, v6")
    k.op("v_and_b32 v7, 1, v0")
    k.op("v_lshl_add_u32 v5, v7, 7, v6")
    k.op(f"s_and_b32 s{sT0}, s{sI}, 3")
    k.op(f"s_lshl_b32 s{sT0}, s{sT0}, 1")
    k.op(f"s_lshr_b32 s{sWDG}, s{sW}, 1")
    k.op(f"s_add_u32 s{sT0}, s{sT0}, s{sWDG}")
    k.op(f"s_mul_i32 s{sT0}, s{sT0}, {8*3584}")
    k.op(f"s_lshl_b32 s{sWDG}, s{sJ}, 8")
    k.op(f"s_add_u32 s{sWDG}, s{sWDG}, s{sT0}")
    stamp(k, "b_pre")
    k.op("s_waitcnt lgkmcnt(0)")
    if "tlb" in OPT:
        for i, p in enumerate((sPWG, sPWU, sPWD, sPSSM, sPOUT, sPD)):
            k.op(f"s_load_dword s{96 if False else 100 if not STAMPS else 15}, s[{p}:{p+1}], 0") if False else None
        for p in (sPWG, sPWU, sPWD, sPSSM, sPOUT):
            k.op(f"s_load_dword s15, s[{p}:{p+1}], 0x0")
        for off in (H_OFF, 2 << 20, 4 << 20, 6 << 20, U_OFF + (1 << 20), Y_OFF + (1 << 20)):
            k.op(f"s_mov_b32 s14, {off}")
            k.op(f"s_load_dword s15, s[{sPWS}:{sPWS+1}], s14")
    srd(k, rX, sPQ, S * D * 2)
    k.op(f"s_bitcmp1_b32 s{sW}, 0")
    k.op(f"s_cselect_b32 s{rW}, s{sPWU}, s{sPWG}")
    k.op(f"s_cselect_b32 s{rW+1}, s{sPWU+1}, s{sPWG+1}")
    k.op(f"s_and_b32 s{rW+1}, s{rW+1}, 0xffff")
    k.op(f"s_mov_b32 s{rW+2}, {D*F*2}")
    k.op(f"s_mov_b32 s{rW+3}, 0x20000")
    stamp(k, "start")
    if "earlypf" in OPT:
        k.op("s_mov_b32 exec_hi, 0")
        k.vm(f"buffer_load_dword a250, v5, s[{rW}:{rW+3}], s{sWDG} offen", "pf")
    k.op("s_mov_b32 exec_hi, 0x00ffffff")
    k.op(f"s_mov_b32 s{sT0}, 32")
    lx = k.newlabel("Lxd")
    k.label(lx)
    k.op(f"s_mov_b32 m0, s{sT2}")
    k.op(f"s_add_u32 s{sT2}, s{sT2}, {XROW}")
    k.op(f"buffer_load_dwordx4 v1, s[{rX}:{rX+3}], s{sT1} offen lds")
    k.op(f"s_add_u32 s{sT1}, s{sT1}, 896")
    k.op(f"s_cmp_eq_u32 s{sT1}, s{sU3}")
    k.op(f"s_cselect_b32 s{sT1}, s{sU0}, s{sT1}")
    k.op(f"s_cselect_b32 s{sT2}, s{sU1}, s{sT2}")
    k.op(f"s_sub_u32 s{sT0}, s{sT0}, 1")
    k.op(f"s_cmp_lg_u32 s{sT0}, 0")
    k.op(f"s_cbranch_scc1 {lx}")
    for n in range(32): k.vmq.append("x")
    k.op("s_mov_b32 exec_hi, -1")
    stamp(k, "a_xiss")
    k.op("v_lshrrev_b32 v10, 4, v0")
    k.op(f"v_mul_u32_u24 v2, {16*3584}, v10")
    k.op("v_and_b32 v11, 15, v0")
    k.op("v_lshl_add_u32 v2, v11, 4, v2")
    k.op(f"s_lshr_b32 s{sT0}, s{sW}, 1")
    k.op(f"s_lshl_b32 s{sT0}, s{sT0}, 3")
    k.op(f"s_mul_i32 s{sWSO}, s{sT0}, 3584")
    k.op(f"s_lshl_b32 s{sT1}, s{sJ}, 8")
    k.op(f"s_add_u32 s{sWSO}, s{sWSO}, s{sT1}")
    k.op(f"s_mul_i32 s{sWM0}, s{sT0}, 1056")
    k.op(f"s_and_b32 s{sT1}, s{sW}, 1")
    k.op(f"s_mul_i32 s{sT1}, s{sT1}, {XOFF}")
    k.op(f"s_add_u32 s{sWM0}, s{sWM0}, s{sT1}")
    for e in range(8): emit(k, wdma(0, e))
    stamp(k, "a_issued")
    k.op(f"s_mul_i32 s{sWGM}, s{sXCD}, 28")
    k.op(f"s_add_u32 s{sWGM}, s{sWGM}, s{sSLOT}")
    srd(k, rWS, sPWS, (16 << 20) if (STAMPS and 'leak' not in OPT) else WS_USED)
    srd(k, rWD, sPWD, F * D * 2)
    srd(k, rSSM, sPSSM, D * S * 2)
    srd(k, rOUT, sPOUT, S * D * 2)
    srd(k, rD, sPD, D * 2)
    k.op("v_and_b32 v11, 1, v10")
    k.op(f"v_mul_u32_u24 v3, {XOFF}, v11")
    k.op("v_lshrrev_b32 v11, 5, v0")
    k.op("v_lshlrev_b32 v12, 3, v11")
    k.op("v_bfe_u32 v13, v0, 2, 2")
    k.op("v_add_u32 v12, v12, v13")
    k.op("v_mul_u32_u24 v12, 1056, v12")
    k.op("v_add_u32 v3, v3, v12")
    k.op("v_and_b32 v13, 3, v0")
    k.op("v_lshl_add_u32 v3, v13, 3, v3")
    k.op(f"v_add_u32 v14, {2*SLOT_SZ}, v3")
    k.op("v_and_b32 v13, 31, v0")
    k.op(f"s_lshl_b32 s{sT0}, s{sW}, 5")
    k.op(f"v_add_u32 v13, s{sT0}, v13")
    k.op(f"v_mul_u32_u24 v15, {XROW}, v13")
    k.op("v_lshl_add_u32 v15, v11, 4, v15")
    k.op(f"v_add_u32 v15, {XS}, v15")
    k.op(f"s_mov_b32 s{sONES}, 0x3f803f80")
    k.op(f"s_mov_b32 s{sMASK}, 0xffff0000")
    for a in range(8): k.op(f"v_mov_b32 v{6+a}, 0")
    k.wait(vm="x")
    stamp(k, "a_xarr")
    def st(n):
        return [("op", f"v_dot2_f32_bf16 v{6 + n % 4}, v{vX+n}, s{sONES}, v{6 + n % 4}"),
                ("op", f"v_dot2_f32_bf16 v{10 + n % 4}, v{vX+n}, v{vX+n}, v{10 + n % 4}")]
    for ks in range(14):
        k.lg(f"ds_read_b128 {vr(vX + 4 * ks, 4)}, v15 offset:{32 * ks}", f"x{ks}")
    for ks in range(14, 28):
        k.wait(lg=f"x{ks-14}")
        k.lg(f"ds_read_b128 {vr(vX + 4 * ks, 4)}, v15 offset:{32 * ks}", f"x{ks}")
        for q in range(4): emit(k, st(4 * (ks - 14) + q))
        if ks == 15 and "nopf" not in OPT and "w1late" not in OPT:
            k.op(f"s_add_u32 s{sWDG}, s{sWDG}, {128*3584}")
            k.vm(f"buffer_load_dword a250, v5, s[{rW}:{rW+3}], s{sWDG} offen", "pf")
    k.wait(lg="x27")
    k.op("v_mov_b32 v15, v5")
    k.op("s_barrier")
    stamp(k, "a_xreg")
    main = []
    for n in range(56, 112): main += st(n)
    fill = [wdma(1, e) for e in range(8)]
    if "w1late" in OPT and "nopf" not in OPT:
        fill.append([("op", f"s_add_u32 s{sWDG}, s{sWDG}, {128*3584}"),
                     ("vm", f"buffer_load_dword a250, v15, s[{rW}:{rW+3}], s{sWDG} offen", "pf")])
    if "nopf" not in OPT:
        fill.append([("op", f"s_add_u32 s{sWDG}, s{sWDG}, {256*3584}"), ("op", "s_mov_b64 exec, 0xffff"),
                        ("vm", f"buffer_load_dword a250, v15, s[{rW}:{rW+3}], s{sWDG} offen", "pf"), ("op", "s_mov_b64 exec, -1")])
    if "w1late" in OPT:
        emit(k, main)
        late = fill
    else:
        interleave(k, main, fill, 11)
        late = []
    stamp(k, "a_dot")
    k.op("s_nop 2")
    k.op("v_add_f32 v6, v6, v7"); k.op("v_add_f32 v8, v8, v9")
    k.op("v_add_f32 v10, v10, v11"); k.op("v_add_f32 v12, v12, v13")
    k.op("v_add_f32 v6, v6, v8"); k.op("v_add_f32 v10, v10, v12")
    k.op("v_mov_b32 v7, v6"); k.op("v_mov_b32 v11, v10")
    k.op("s_nop 1")
    k.op("v_permlane32_swap_b32 v6, v7"); k.op("v_permlane32_swap_b32 v10, v11")
    k.op("s_nop 1")
    k.op("v_add_f32 v6, v6, v7"); k.op("v_add_f32 v10, v10, v11")
    k.op(f"v_mul_f32 v6, {hex(f2u(1.0/448))}, v6")
    k.op(f"v_mul_f32 v10, {hex(f2u(1.0/448))}, v10")
    k.op("v_fma_f32 v10, -v6, v6, v10")
    k.op("v_max_f32 v10, 0, v10")
    k.op("v_cvt_pk_bf16_f32 v7, v6, v10")
    k.op("v_lshlrev_b32 v6, 16, v7")
    k.op(f"v_and_b32 v10, s{sMASK}, v7")
    k.op(f"v_add_f32 v10, {hex(f2u(1e-5))}, v10")
    k.op("v_cvt_pk_bf16_f32 v10, v10, v10")
    k.op("v_lshlrev_b32 v10, 16, v10")
    k.op("v_sqrt_f32 v10, v10")
    k.op("s_nop 0")
    k.op("v_cvt_pk_bf16_f32 v10, v10, v10")
    k.op("v_lshlrev_b32 v10, 16, v10")
    k.op("v_rcp_f32 v4, v10")
    k.op("s_nop 0")
    LATE[:] = late
    k.op("v_mul_f32 v5, v6, v4")
    k.op("v_sub_f32 v5, 0, v5")
    lab = k.newlabel("Lnost")
    k.op(f"s_cmp_lg_u32 s{sJ}, 0")
    k.op(f"s_cbranch_scc1 {lab}")
    k.op(f"s_lshl_b32 s{sT0}, s{sI}, 2")
    k.op(f"s_add_u32 s{sT0}, s{sT0}, s{sW}")
    k.op(f"s_lshl_b32 s{sT0}, s{sT0}, 8")
    k.op(f"s_add_u32 s{sT0}, s{sT0}, {ST_OFF}")
    k.op("v_lshlrev_b32 v6, 3, v0")
    k.op("s_mov_b32 exec_hi, 0")
    k.op(f"buffer_store_dwordx2 v[4:5], v6, s[{rWS}:{rWS+3}], s{sT0} offen sc1")
    k.op("s_mov_b32 exec_hi, -1")
    k.label(lab)

def norm(n, tp):
    t = 6 + 2 * tp
    return [("op", f"v_lshlrev_b32 v{t}, 16, v{vX+n}"),
            ("op", f"v_and_b32 v{t+1}, s{sMASK}, v{vX+n}"),
            ("op", f"v_fma_f32 v{t}, v{t}, v4, v5"),
            ("op", f"v_fma_f32 v{t+1}, v{t+1}, v4, v5"),
            ("op", f"v_cvt_pk_bf16_f32 v{vX+n}, v{t}, v{t+1}")]
def norm_step(ks):
    a = [norm(4 * ks + q, q) for q in range(4)]
    out = []
    for s in range(5):
        for q in range(4): out.append(a[q][s])
    return out

def hc_dma(q):
    rr, qq = divmod(q, 4)
    out = []
    if qq == 0:
        out.append(("op", f"s_add_u32 m0, s{sU0}, {rr * HC_STRIDE}"))
        out.append(("op", f"s_add_u32 s{sU2}, s{sU1}, {rr * 2}"))
    out.append(("vm", f"buffer_load_dwordx4 v1, s[{rSSM}:{rSSM+3}], s{sU2} offen offset:{qq*1024} lds", "hc"))
    return out

LATE = []
WD0 = []
def gemm1_loop(k):
    emit(k, norm_step(0))
    for g in LATE: emit(k, g)
    k.op(f"s_lshr_b32 s{sT0}, s{sW}, 1")
    k.op(f"s_lshl_b32 s{sCH}, s{sWGM}, 1")
    k.op(f"s_add_u32 s{sCH}, s{sCH}, s{sT0}")
    k.op(f"s_and_b32 s{sT1}, s{sW}, 1")
    k.op(f"s_lshl_b32 s{sT1}, s{sT1}, 1")
    k.op(f"s_mul_i32 s{sU0}, s{sT0}, {HC_CH}")
    k.op(f"s_mul_i32 s{sT3}, s{sT1}, {HC_STRIDE}")
    k.op(f"s_add_u32 s{sU0}, s{sU0}, s{sT3}")
    k.op(f"s_add_u32 s{sU0}, s{sU0}, {HC + 32}")
    k.op(f"s_lshl_b32 s{sU1}, s{sCH}, 12")
    k.op(f"s_lshl_b32 s{sT1}, s{sT1}, 1")
    k.op(f"s_add_u32 s{sU1}, s{sU1}, s{sT1}")
    k.op(f"s_add_u32 s{sU1}, s{sU1}, 2")
    stamp(k, "a_norm0")
    k.wait(vm="w0")
    stamp(k, "a_w0")
    k.op("s_barrier")
    stamp(k, "a_stats")
    NF = 8; DIST = 7; NM = 224
    def rd(n):
        ks, mt = divmod(n, 8)
        c, kk = divmod(ks, 4)
        sl = c % 4
        base = "v3" if sl < 2 else "v14"
        off = (SLOT_SZ if sl % 2 else 0) + kk * 256 + mt * 32
        f = 4 * (n % NF)
        return [("lg", f"ds_read_b64_tr_b16 {ar(f, 2)}, {base} offset:{off}", f"f{n}"),
                ("lg", f"ds_read_b64_tr_b16 {ar(f + 2, 2)}, {base} offset:{off + 4 * 1056}", f"f{n}")]
    for n in range(DIST): emit(k, rd(n))
    extra = {}
    k.op(f"s_lshl_b32 s{sT0}, s{sSLOT}, 2")
    k.op(f"s_add_u32 s{sT0}, s{sT0}, s{sW}")
    k.op(f"s_mul_i32 s{sU3}, s{sT0}, {112*128}")
    k.op("v_lshlrev_b32 v15, 7, v0")
    def wd_pf(piece):
        return [("op", "s_mov_b64 exec, 0xffff"),
                ("vm", f"buffer_load_dword a250, v15, s[{rWD}:{rWD+3}], s{sU3} offen offset:{piece*2048}", "pf"),
                ("op", "s_mov_b64 exec, -1")]
    if "nopf" not in OPT:
        P0, PSTEP = (4, 2) if "pfslow" not in OPT else (6, 3)
        for p in range(7):
            if p < 2: extra[P0 + PSTEP * p] = wd_pf(p)
            else:
                extra[P0 + PSTEP * p] = [("op", f"s_add_u32 s{sU3}, s{sU3}, 2048"), ("op", "s_mov_b64 exec, 0xffff"),
                    ("vm", f"buffer_load_dword a250, v15, s[{rWD}:{rWD+3}], s{sU3} offen offset:2048", "pf"), ("op", "s_mov_b64 exec, -1")]
        k.op(f"s_lshl_b32 s{sHST}, s{sWGM}, 13")
        k.op(f"s_lshl_b32 s{sT0}, s{sW}, 11")
        k.op(f"s_add_u32 s{sHST}, s{sHST}, s{sT0}")
        extra[5] = [("op", "s_mov_b64 exec, 0xffff"),
                    ("vm", f"buffer_load_dword a250, v15, s[{rSSM}:{rSSM+3}], s{sHST} offen", "pf"), ("op", "s_mov_b64 exec, -1")]
    extra[24] = [("op", "s_mov_b64 exec, 1"),
                 ("vm", f"global_load_dword a40, v15, s[{sPDBG}:{sPDBG+1}] sc1", "init"),
                 ("op", "s_mov_b64 exec, -1")]
    tailfill = capture(g2_setup2)
    setup1 = capture(g2_setup1)
    WD0[:] = wd_dma_groups(0, WD_KS, "wd0", 0)
    def bigs(ks):
        c, kk = divmod(ks, 4)
        out = []
        if "x_now" not in OPT:
            if c == 0: out += [wdma(2 + kk // 2, 4 * (kk % 2) + i) for i in range(4)]
            elif c + 3 < 7: out += [wdma(c + 3, 2 * kk + i) for i in range(2)]
        if c == 4 and "x_nohc" not in OPT: out += [hc_dma(2 * kk + i) for i in range(2)]
        if c in (5, 6): out += WD0[(c - 5) * 8 + 2 * kk: (c - 5) * 8 + 2 * kk + 2]
        if ks in extra and ("x_noex" not in OPT or ks == 24): out.append(extra[ks])
        return out
    VAR = [o for o in OPT if o.startswith("sch")]
    VAR = VAR[0] if VAR else "sch1"
    POS = {"sch0": {0: [], 1: [7], 2: [6, 7], 3: [5, 6, 7], 4: [3, 5, 6, 7]},
           "sch1": {0: [], 1: [7], 2: [3, 7], 3: [2, 5, 7], 4: [1, 3, 5, 7]},
           "sch2": {0: [], 1: [6], 2: [2, 6], 3: [1, 4, 6], 4: [0, 2, 4, 6]},
           "sch3": {0: [], 1: [7], 2: [3, 7], 3: [2, 5, 7], 4: [1, 3, 5, 7]}}[VAR]
    pending_reads = []
    for ks in range(28):
        c, kk = divmod(ks, 4)
        bg = bigs(ks)
        pos = POS[len(bg)]
        nrm = norm_step(ks + 1) if (ks + 1 < 28 and "x_nonorm" not in OPT) else []
        if ks == 27: nrm = list(tailfill)
        if ks in (16, 17, 18, 19):
            i0 = (ks - 16) * 6
            nrm = nrm + setup1[i0: i0 + 6 if ks < 19 else len(setup1)]
        if VAR == "sch0":
            cut = [0, 3, 6, 9, 12, 15, 18, 20, 20] if ks < 27 else [(len(nrm) * i) // 8 for i in range(9)]
            share = {g: nrm[cut[g]:cut[g + 1]] for g in range(8)}
        else:
            wts = {g: (0 if (g in pos or (g == 7 and ks < 27)) else 1) for g in range(8)}
            if VAR == "sch3":
                wts = {g: (1 if g in pos else 0 if (g == 7 and ks < 27) else 3) for g in range(8)}
            tot = sum(wts.values()); acc_ = 0; done = 0; share = {}
            for g in range(8):
                acc_ += wts[g]
                upto = (len(nrm) * acc_ + tot - 1) // tot
                share[g] = nrm[done:upto]; done = upto
        for mt in range(8):
            n = 8 * ks + mt
            if n % 32 == 0: stamp(k, f"g_c{n//32}")
            if n % 4 == 0:
                k.wait(lg=[f"f{n+i}" for i in range(4)])
            f = 4 * (n % NF)
            acc = vr(vACC + 16 * mt, 16)
            cin = "0" if ks == 0 else acc
            k.op(f"v_mfma_f32_32x32x16_bf16 {acc}, {ar(f, 4)}, {vr(vX + 4 * ks, 4)}, {cin}")
            nn = n + DIST
            if nn < NM:
                if nn % 32 == 0:
                    k.wait(vm=f"w{nn // 32}")
                    if "x_nobar" not in OPT: k.op("s_barrier")
                emit(k, rd(nn))
            emit(k, share[mt])
            if mt in pos: emit(k, bg[pos.index(mt)])
    assert not pending_reads
    stamp(k, "g_end")

def g2_setup1(k):
    k.op(f"s_and_b32 s{sT0}, s{sTT}, 3")
    k.op(f"s_lshl_b32 s{sT0}, s{sT0}, 1")
    k.op(f"s_add_u32 s{sROT}, s{sT0}, s{sDT}")
    k.op(f"s_sub_u32 s{sT0}, s{sROT}, 7")
    k.op(f"s_min_u32 s{sROT}, s{sROT}, s{sT0}")
    k.op("v_lshrrev_b32 v16, 3, v0")
    k.op("v_mul_u32_u24 v2, 896, v16")
    k.op("v_bfe_u32 v16, v0, 4, 1")
    k.op("v_lshlrev_b32 v16, 2, v16")
    k.op("v_and_b32 v17, 7, v0")
    k.op("v_xor_b32 v16, v16, v17")
    k.op("v_lshl_add_u32 v2, v16, 4, v2")
    k.op(f"s_mul_i32 s{sWDS}, s{sW}, {16*28*896}")
    k.op(f"s_lshl_b32 s{sT0}, s{sDT}, 7")
    k.op(f"s_add_u32 s{sWDS}, s{sWDS}, s{sT0}")
    k.op(f"s_sub_u32 s{sWDS}, s{sWDS}, 4096")
    k.op(f"s_lshl_b32 s{sWDM}, s{sW}, 13")
    k.op(f"s_lshl_b32 s{sWDM4}, s{sW}, 12")
def g2_setup2(k):
    k.op("v_lshrrev_b32 v5, 5, v0")
    k.op("v_bfe_u32 v6, v0, 2, 2")
    k.op("v_lshl_add_u32 v5, v5, 2, v6")
    k.op("v_lshlrev_b32 v5, 7, v5")
    k.op("v_bfe_u32 v7, v0, 4, 1")
    k.op("v_lshl_add_u32 v5, v7, 5, v5")
    k.op("v_and_b32 v7, 3, v0")
    k.op("v_lshl_add_u32 v5, v7, 3, v5")
    k.op(f"v_add_u32 v5, s{sWDM}, v5")
    k.op("v_bfe_u32 v6, v0, 3, 1")
    k.op("v_lshlrev_b32 v6, 6, v6")
    k.op("v_add_u32 v3, v5, v6")
    k.op("v_xor_b32 v6, 64, v6")
    k.op("v_add_u32 v4, v5, v6")
def g2_setup3(k):
    k.op(f"v_add_u32 v176, {2*SLOT_SZ}, v3")
    k.op(f"v_add_u32 v177, {2*SLOT_SZ}, v4")
    k.op(f"s_sub_u32 s{sT0}, {3*SLOT_SZ}, s{sWDM4}")
    k.op(f"v_add_u32 v178, s{sT0}, v3")
    k.op(f"v_add_u32 v179, s{sT0}, v4")

def wd_group_base(g):
    return [("op", f"s_add_u32 s{sT3}, s{sROT}, {g}"),
            ("op", f"s_sub_u32 s{sWDG}, s{sT3}, 7"),
            ("op", f"s_min_u32 s{sT3}, s{sT3}, s{sWDG}"),
            ("op", f"s_mul_i32 s{sT3}, s{sT3}, {64*896}"),
            ("op", f"s_add_u32 s{sWDG}, s{sT3}, s{sWDS}")]
def wd_dma_groups(ks0, ks1, tag, s0):
    out = []
    q = 0
    for ks in range(ks0, ks1):
        sl = ks - s0
        for hh in range(2):
            g = []
            if ks % 4 == 0 and hh == 0: g += wd_group_base(ks // 4)
            qq = 2 * (sl & 1) + hh
            if qq == 0:
                g.append(("op", f"s_add_u32 m0, s{sWDM if sl < 12 else sWDM4}, {stg_const(sl)}"))
            g.append(("op", f"s_add_u32 s{sT3}, s{sWDG}, {(16 * (ks % 4) + 8 * hh) * 896 - qq * 1024 + 4096}"))
            g.append(("vm", f"buffer_load_dwordx4 v2, s[{rWD}:{rWD+3}], s{sT3} offen offset:{qq * 1024} lds", tag))
            out.append(g)
    return out

def wd_read_items(ks0, ks1, s0):
    out = []
    for ks in range(ks0, ks1):
        sl = ks - s0
        g = sl >> 2
        for dt2 in range(2):
            for t in range(2):
                a = 8 * ks + 4 * dt2 + 2 * t
                if g < 2: base, off = 3 + dt2, stg_const(sl)
                elif g == 2: base, off = 176 + dt2, stg_const(sl) - 2 * SLOT_SZ
                else: base, off = 178 + dt2, stg_const(sl) - 3 * SLOT_SZ
                out.append(("lg", f"ds_read_b64_tr_b16 {ar(a,2)}, v{base} offset:{off + t*1024}", f"wr{ks}_{dt2}_{t}"))
    return out
def emit_lg_limited(k, items):
    for it in items:
        if it[0] == "lg" and len(k.lgq) >= 12: k.wait(lg=k.lgq[5])
        emit(k, [it])

def gelu_phase(k):
    if k.lgq: k.wait(lg=[k.lgq[-1]])
    k.op("s_barrier")
    vC, vONE = 16, 18
    C1 = -2.0 * 0.7978845608028654 * 1.4426950408889634
    C2 = C1 * 0.044715
    k.op(f"v_mov_b32 v{vC}, {hex(f2u(C1))}")
    k.op(f"v_mov_b32 v{vC+1}, {hex(f2u(C2))}")
    k.op(f"v_mov_b32 v{vONE}, 1.0")
    k.op(f"v_mov_b32 v{vONE+1}, 1.0")
    k.op(f"s_lshl_b32 s{sT0}, s{sI}, 2")
    k.op(f"s_add_u32 s{sT0}, s{sT0}, s{sW}")
    k.op(f"s_mul_i32 s{sHST}, s{sT0}, {112*1024}")
    k.op(f"s_lshl_b32 s{sT1}, s{sJ}, 13")
    k.op(f"s_add_u32 s{sHST}, s{sHST}, s{sT1}")
    k.wait(vm="init")
    k.op("v_accvgpr_read_b32 v8, a40")
    k.op("v_mov_b32 v9, 0")
    k.op("s_nop 0")
    check_or_spin(k, 8, 9, sPDBG, 1)
    cnt_addr(k, 9, idx=UCNT)
    k.vm(f"global_load_dword v8, v9, s[{sPWS}:{sPWS+1}] sc1", "ucnt")
    k.op("v_lshrrev_b32 v10, 4, v0")
    k.op("v_and_b32 v11, 15, v0")
    k.op("v_add_u32 v12, v10, v11")
    k.op("v_subrev_u32 v12, 15, v12")
    k.op("v_lshlrev_b32 v12, 1, v12")
    k.op(f"s_lshl_b32 s{sT1}, s{sCH}, 12")
    k.op("v_cmp_gt_i32 vcc, 0, v12")
    k.op("v_mov_b32 v13, 0x7fffffff")
    k.op("s_nop 0")
    k.op("v_cndmask_b32 v12, v12, v13, vcc")
    k.vm(f"buffer_load_ushort v14, v12, s[{rSSM}:{rSSM+3}], s{sT1} offen", "hf")
    k.op(f"s_lshl_b32 s{sT1}, s{sCH}, 1")
    k.op("v_mov_b32 v13, 0")
    k.vm(f"buffer_load_ushort v15, v13, s[{rD}:{rD+3}], s{sT1} offen", "dv")
    k.op(f"v_mul_u32_u24 v10, {HC_STRIDE}, v10")
    k.op("v_lshl_add_u32 v10, v11, 1, v10")
    k.op(f"s_lshr_b32 s{sT0}, s{sW}, 1")
    k.op(f"s_mul_i32 s{sT2}, s{sT0}, {HC_CH}")
    k.op(f"s_add_u32 s{sT2}, s{sT2}, {HC}")
    k.op(f"v_add_u32 v10, s{sT2}, v10")
    k.op(f"s_mul_i32 s{sT2}, s{sT0}, {UR_CH}")
    k.op(f"s_add_u32 s{sT2}, s{sT2}, {UR + 4096}")
    k.op(f"v_add_u32 v11, s{sT2}, v1")
    k.op("v_mov_b32 v20, 0"); k.op("v_mov_b32 v21, 0"); k.op("v_mov_b32 v22, 0"); k.op("v_mov_b32 v23, 0")
    k.op("s_mov_b32 exec_hi, 0")
    k.lg("ds_write_b128 v11, v[20:23]", "z")
    k.op("s_mov_b32 exec_hi, -1")
    wd0 = WD0[16:]
    g2_setup3_done = False
    def ur_dma():
        k.wait(vm="ucnt")
        check_or_spin(k, 8, 9, sPWS, 32)
        k.op(f"s_lshr_b32 s{sT0}, s{sW}, 1")
        k.op(f"s_and_b32 s{sT1}, s{sW}, 1")
        k.op(f"s_lshl_b32 s{sT1}, s{sT1}, 11")
        k.op(f"s_mul_i32 s{sT2}, s{sT0}, {UR_CH}")
        k.op(f"s_add_u32 s{sT2}, s{sT2}, s{sT1}")
        k.op(f"s_add_u32 m0, s{sT2}, {UR}")
        k.op(f"s_lshl_b32 s{sT3}, s{sCH}, 12")
        k.op(f"s_add_u32 s{sT3}, s{sT3}, s{sT1}")
        k.op(f"s_add_u32 s{sT3}, s{sT3}, {U_OFF}")
        k.vm(f"buffer_load_dwordx4 v1, s[{rWS}:{rWS+3}], s{sT3} offen sc1 lds", "ur")
        k.vm(f"buffer_load_dwordx4 v1, s[{rWS}:{rWS+3}], s{sT3} offen offset:1024 sc1 lds", "ur")
        k.wait(vm="hf")
        k.lg("ds_write_b16 v10, v14", "z")
    for mt in range(8):
        stamp(k, f"y_{mt}")
        G = vACC + 16 * mt; U = G + 8
        T = 24 + (mt % 2) * 24
        tp = lambda p: T + 2 * p
        gu = lambda p: T + 8 + 2 * p
        O = T + 16
        P = range(4)
        m = []
        for p in P: m.append(("op", f"v_pk_mul_f32 {vr(tp(p),2)}, {vr(G+2*p,2)}, {vr(G+2*p,2)}"))
        for p in P: m.append(("op", f"v_pk_fma_f32 {vr(tp(p),2)}, {vr(tp(p),2)}, {vr(vC,2)}, {vr(vC,2)} op_sel:[0,1,0] op_sel_hi:[1,1,0]"))
        for p in P: m.append(("op", f"v_pk_mul_f32 {vr(tp(p),2)}, {vr(tp(p),2)}, {vr(G+2*p,2)}"))
        for p in P:
            m.append(("op", f"v_exp_f32 v{tp(p)}, v{tp(p)}")); m.append(("op", f"v_exp_f32 v{tp(p)+1}, v{tp(p)+1}"))
        for p in P: m.append(("op", f"v_pk_mul_f32 {vr(gu(p),2)}, {vr(G+2*p,2)}, {vr(U+2*p,2)}"))
        for p in P: m.append(("op", f"v_pk_add_f32 {vr(tp(p),2)}, {vr(tp(p),2)}, {vr(vONE,2)}"))
        for p in P:
            m.append(("op", f"v_rcp_f32 v{tp(p)}, v{tp(p)}")); m.append(("op", f"v_rcp_f32 v{tp(p)+1}, v{tp(p)+1}"))
        m.append(("op", "s_nop 0"))
        for p in P: m.append(("op", f"v_pk_mul_f32 {vr(gu(p),2)}, {vr(gu(p),2)}, {vr(tp(p),2)}"))
        for p in P: m.append(("op", f"v_cvt_pk_bf16_f32 v{O+p}, v{gu(p)}, v{gu(p)+1}"))
        nf = 4 if mt < 3 else 0
        fill = [wd0.pop(0) for _ in range(nf)]
        if "nowdg" in OPT: fill = [[x for x in g if x[0] != "vm"] for g in fill]
        pos = {8: 0, 20: 1, 32: 2, 42: 3} if nf == 4 else {}
        for n, it in enumerate(m):
            emit(k, [it])
            if n in pos: emit(k, fill[pos[n]])
        if mt % 4 == 0 and mt > 0:
            k.op(f"s_add_u32 s{sHST}, s{sHST}, 4096")
        if "nohst" not in OPT: k.vm(f"buffer_store_dwordx4 {vr(O,4)}, v1, s[{rWS}:{rWS+3}], s{sHST} offen offset:{(mt%4)*1024}{'' if 'hstplain' in OPT else ' sc1'}", "hst")
        if mt == 3: ur_dma()
    assert not wd0
    stamp(k, "e_gelu")
    k.wait(vm="ur", lg=[k.lgq[-1]] if k.lgq else [])
    k.op("s_barrier")

def h_signal(k):
    k.wait(vm="hst")
    k.op("s_barrier")
    cnt_addr(k, 9, idx_sgpr=sI, idx=HCNT)
    signal(k, 9, 10)
    stamp(k, "e_sig")

def conv_phase(k):
    k.wait(vm="dv")
    k.op("v_lshlrev_b32 v8, 16, v15")
    k.op(f"s_lshr_b32 s{sT0}, s{sW}, 1")
    k.op(f"s_mul_i32 s{sT2}, s{sT0}, {HC_CH}")
    k.op(f"s_add_u32 s{sT2}, s{sT2}, {HC}")
    k.op("v_bfe_u32 v5, v0, 2, 2")
    k.op(f"v_mul_u32_u24 v14, {HC_STRIDE}, v5")
    k.op("v_and_b32 v6, 3, v0")
    k.op("v_lshl_add_u32 v14, v6, 3, v14")
    k.op("v_lshrrev_b32 v6, 4, v0")
    k.op("v_lshl_add_u32 v14, v6, 4, v14")
    k.op(f"s_and_b32 s{sT1}, s{sW}, 1")
    k.op(f"s_lshl_b32 s{sT1}, s{sT1}, 8")
    k.op(f"s_add_u32 s{sT2}, s{sT2}, s{sT1}")
    k.op(f"v_add_u32 v14, s{sT2}, v14")
    k.op("v_and_b32 v7, 15, v0")
    k.op("v_lshlrev_b32 v7, 5, v7")
    k.op("v_lshlrev_b32 v5, 4, v6")
    k.op("v_sub_u32 v15, v5, v7")
    k.op(f"s_mul_i32 s{sT2}, s{sT0}, {UR_CH}")
    k.op(f"s_add_u32 s{sT2}, s{sT2}, {UR + 4064 - 3584}")
    k.op(f"s_add_u32 s{sT3}, s{sT2}, s{sT1}")
    k.op(f"v_add_u32 v15, s{sT3}, v15")
    FB = [16, 48]; GBUF = [80, 112]; ACC = 144
    def rdF(sub, J):
        b = FB[sub % 2] + 4 * J
        off = 64 * (8 * J + sub)
        return [("lg", f"ds_read_b64_tr_b16 {vr(b,2)}, v14 offset:{off}", f"F{sub}"),
                ("lg", f"ds_read_b64_tr_b16 {vr(b+2,2)}, v14 offset:{off+8}", f"F{sub}")]
    def rdG(sub, T):
        b = GBUF[sub % 2] + 4 * T
        return [("lg", f"ds_read_b128 {vr(b,4)}, v15 offset:{512*(7-T) + 64*sub}", f"F{sub}")]
    def fg(sub):
        out = []
        for i in range(8):
            out += rdG(sub, 7 - i) + rdF(sub, i)
        return out
    emit(k, fg(0))
    k.op("v_lshlrev_b32 v5, 3, v6")
    k.op("v_add_u32 v7, v7, v5")
    k.op(f"s_add_u32 s{sT2}, s{sT2}, {4088 - 4064}")
    k.op(f"v_sub_u32 v13, s{sT2}, v7")
    k.op("v_and_b32 v5, 1, v6")
    k.op("v_mul_u32_u24 v5, 504, v5")
    k.op("v_add_u32 v7, v7, v5")
    k.op("v_lshrrev_b32 v184, 3, v0")
    k.op(f"s_lshl_b32 s{sT0}, s{sW}, 3")
    k.op(f"v_add_u32 v184, s{sT0}, v184")
    k.op("v_and_b32 v185, 7, v0")
    k.op("v_mul_u32_u24 v186, 896, v184")
    k.op("v_lshl_add_u32 v186, v185, 4, v186")
    k.op(f"s_mul_i32 s78, s{sTT}, {64*896}")
    k.op(f"s_lshl_b32 s{sT0}, s{sDT}, 7")
    k.op(f"s_add_u32 s78, s78, s{sT0}")
    k.op(f"s_add_u32 s79, s78, {32*896}")
    k.op(f"s_lshr_b32 s{sU0}, s{sTT}, 1")
    cnt_addr(k, 187, idx_sgpr=sU0, idx=HCNT)
    k.op(f"s_lshl_b32 s{sT0}, s{sTT}, 1")
    k.op(f"s_mul_i32 s{sT0}, s{sT0}, 112")
    k.op(f"s_mul_i32 s{sT1}, s{sW}, 28")
    k.op(f"s_add_u32 s{sT0}, s{sT0}, s{sT1}")
    k.op(f"s_lshl_b32 s{sHG}, s{sT0}, 10")
    g2_setup3(k)
    wd1 = wd_dma_groups(WD_KS, 2 * WD_KS, "wd1", WD_KS)
    for g in wd1[:WD_KS]:
        for i, it in enumerate(g):
            if it[0] == "vm": g[i] = ("vm", it[1], "wd1a")
    wr0 = wd_read_items(0, WD_KS, 0)
    wr1 = wd_read_items(WD_KS, 2 * WD_KS, WD_KS)
    H = WD_KS // 2
    one = lambda items: [[x] for x in items]
    wtag = lambda it: [("fn", lambda t=it[2]: k.wait(lg=t))]
    def mix(a, b):
        if not b: return a
        out = []; j = 0
        for i, g in enumerate(a):
            out.append(g)
            while j < len(b) and (j + 1) * len(a) <= (i + 1) * len(b) + len(a) // 2: out.append(b[j]); j += 1
        return out + b[j:]
    N1, N2 = (6, 14) if 'n1' not in OPT else (4, 14)
    plan = {0: one(fg(1)) + [[("fn", lambda: k.wait(vm="wd0"))]] + one(wr0[:4*H]),
            1: one(fg(2)) + [wtag(wr0[4*H-1])] + mix(one(wr0[4*H:]), wd1[:N1]),
            2: mix(one(fg(3)), wd1[N1:N2] + [wtag(wr0[-1])] + wd1[N2:N2 + 4]),
            3: wd1[N2 + 4:]}
    first = set()
    for sub in range(4):
        stamp(k, f"s_pre{sub}")
        k.wait(lg=f"F{sub}")
        if sub == 1:
            h_signal(k)
            k.vm(f"buffer_load_dwordx4 {ar(224,4)}, v186, s[{rX}:{rX+3}], s78 offen", "ex")
            k.vm(f"buffer_load_dwordx4 {ar(228,4)}, v186, s[{rX}:{rX+3}], s79 offen", "ex")
        if sub == 2:
            k.vm(f"global_load_dword v188, v187, s[{sPWS}:{sPWS+1}] sc1", "hcnt")
        stamp(k, f"s_go{sub}")
        fill = [g for g in plan[sub] if g]
        mf = [(T, J) for T in range(7, -1, -1) for J in range(0, 8 - T)]
        per = len(fill) / (36.0 if sub < 3 else 20.0)
        done = 0
        for n, (T, J) in enumerate(mf):
            tile = T + J
            a = vr(ACC + 4 * tile, 4)
            cin = a if tile in first else "0"
            first.add(tile)
            k.op(f"v_mfma_f32_16x16x32_bf16 {a}, {vr(FB[sub%2]+4*J,4)}, {vr(GBUF[sub%2]+4*T,4)}, {cin}")
            want = min(len(fill), int(round((n + 1) * per + 0.49)))
            while done < want:
                emit(k, fill[done]); done += 1
        while done < len(fill):
            emit(k, fill[done]); done += 1
    stamp(k, "c_mfma")
    k.wait(vm="hcnt")
    check_or_spin(k, 188, 187, sPWS, 14)
    stamp(k, "d_hrdy")
    k.op("v_lshlrev_b32 v189, 3, v184")
    k.op(f"s_lshl_b32 s{sT0}, s{sTT}, 9")
    k.op(f"s_add_u32 s{sT0}, s{sT0}, {ST_OFF}")
    k.vm(f"buffer_load_dwordx2 {ar(232,2)}, v189, s[{rWS}:{rWS+3}], s{sT0} offen sc1", "ex")
    k.vm(f"buffer_load_dwordx2 {ar(234,2)}, v189, s[{rWS}:{rWS+3}], s{sT0} offen offset:256 sc1", "ex")
    for ks in range(PD):
        g2_hload(k, ks)
    k.op(f"s_lshl_b32 s{sT0}, s{sW}, 12")
    k.op(f"s_add_u32 s{sT0}, s{sT0}, {XCH}")
    k.op(f"v_add_u32 v5, s{sT0}, v1")
    k.op(f"s_xor_b32 s{sT1}, s{sW}, 1")
    k.op(f"s_lshl_b32 s{sT1}, s{sT1}, 12")
    k.op(f"s_add_u32 s{sT1}, s{sT1}, {XCH}")
    k.op(f"v_add_u32 v6, s{sT1}, v1")
    k.op(f"s_lshl_b32 s{sT2}, s{sCH}, 12")
    k.op(f"s_add_u32 s{sT2}, s{sT2}, {Y_OFF}")
    if k.lgq: k.wait(lg=k.lgq[-1])
    k.op("s_barrier")
    lo, le = k.newlabel("Lcodd"), k.newlabel("Lcend")
    k.op("s_nop 1")
    def finish(keep, send):
        for i in range(4):
            k.op(f"ds_write_b128 v5, {vr(ACC + 4*(send+i), 4)} offset:{1024*i}")
        for i in range(4):
            k.op(f"ds_read_b64 {vr(64+2*i,2)}, v13 offset:{512*(7-(keep+i))}")
        k.op("s_waitcnt lgkmcnt(0)")
        k.op("s_barrier")
        for i in range(4):
            k.op(f"ds_read_b128 {vr(48+4*i,4)}, v6 offset:{1024*i}")
        for i in range(4):
            U = 64 + 2 * i
            k.op(f"v_and_b32 v{112+4*i}, s{sMASK}, v{U+1}")
            k.op(f"v_lshlrev_b32 v{113+4*i}, 16, v{U+1}")
            k.op(f"v_and_b32 v{114+4*i}, s{sMASK}, v{U}")
            k.op(f"v_lshlrev_b32 v{115+4*i}, 16, v{U}")
            A = ACC + 4 * (keep + i)
            for r in range(4):
                k.op(f"v_fmac_f32 v{A+r}, v{112+4*i+r}, v8")
        k.op("s_waitcnt lgkmcnt(0)")
        for i in range(4):
            A = ACC + 4 * (keep + i)
            k.op(f"v_pk_add_f32 {vr(A,2)}, {vr(A,2)}, {vr(48+4*i,2)}")
            k.op(f"v_pk_add_f32 {vr(A+2,2)}, {vr(A+2,2)}, {vr(50+4*i,2)}")
        for i in range(4):
            A = ACC + 4 * (keep + i)
            k.op(f"v_cvt_pk_bf16_f32 v{72+2*i}, v{A}, v{A+1}")
            k.op(f"v_cvt_pk_bf16_f32 v{73+2*i}, v{A+2}, v{A+3}")
        k.op("s_nop 1")
        for i in (0, 2):
            k.op(f"v_permlane16_swap_b32 v{72+2*i}, v{74+2*i}")
            k.op(f"v_permlane16_swap_b32 v{73+2*i}, v{75+2*i}")
        k.op("s_nop 0")
        for i in (0, 2):
            k.op(f"buffer_store_dwordx4 {vr(72+2*i,4)}, v7, s[{rWS}:{rWS+3}], s{sT2} offen offset:{512*(keep+i)} sc1")
    k.op(f"s_bitcmp1_b32 s{sW}, 0")
    k.op(f"s_cbranch_scc1 {lo}")
    finish(0, 4)
    k.op(f"s_branch {le}")
    k.label(lo)
    finish(4, 0)
    k.label(le)
    for i in range(2): k.vmq.append("yst")
    stamp(k, "c_end")
    return wr1

NHS = 8; vA2 = 192
def hreg(ks, e):
    sl = ks % NHS
    return (16 + 8 * sl if sl < 4 else 80 + 8 * (sl - 4)) + 4 * e
PD = 4
def g2_hbase(k, g):
    k.op(f"s_add_u32 s{sT3}, s{sROT}, {g}")
    k.op(f"s_sub_u32 s76, s{sT3}, 7")
    k.op(f"s_min_u32 s{sT3}, s{sT3}, s76")
    k.op(f"s_lshl_b32 s{sT3}, s{sT3}, 12")
    k.op(f"s_add_u32 s76, s{sT3}, s{sHG}")
    k.op(f"s_add_u32 s77, s76, {112*1024}")
def g2_hload(k, ks):
    if ks % 4 == 0: g2_hbase(k, ks // 4)
    for e in range(2):
        b = hreg(ks, e)
        k.vm(f"buffer_load_dwordx4 {vr(b,4)}, v1, s[{rWS}:{rWS+3}], s{76+e} offen offset:{(ks%4)*1024}{'' if 'hplain' in OPT else ' sc1'}", f"h{ks}")

def gemm2_phase(k, wr1):
    k.op("v_mov_b32 v5, v184"); k.op("v_mov_b32 v6, v185"); k.op("v_mov_b32 v7, v186")
    for ks in range(PD, 2 * PD):
        g2_hload(k, ks)
    k.op(f"s_lshr_b32 s{sU0}, s{sWGM}, 5")
    cnt_addr(k, 9, idx_sgpr=sU0, idx=YCNT)
    k.op(f"s_lshl_b32 s{sU1}, s{sDT}, 7")
    k.op(f"s_add_u32 s{sU1}, s{sU1}, {CNT_OFF + YCNT * 128}")
    def y_loads():
        done = k.newlabel("Lyok")
        stamp(k, "t_y0")
        k.op("s_waitcnt lgkmcnt(0)")
        k.lgq = []
        stamp(k, "t_y1")
        k.op(f"s_cmp_ge_u32 s{sU2}, 32")
        k.op(f"s_cbranch_scc1 {done}")
        k.op(f"v_mov_b32 v9, s{sU1}")
        q = list(k.vmq)
        spin_until(k, 9, 10, sPWS, 32)
        k.vmq = q
        k.label(done)
        stamp(k, "t_y2")
        k.op("v_lshrrev_b32 v8, 3, v0")
        k.op("v_lshlrev_b32 v8, 12, v8")
        k.op("v_lshl_add_u32 v8, v6, 4, v8")
        k.op(f"s_lshl_b32 s{sT0}, s{sDT}, 18")
        k.op(f"s_lshl_b32 s{sT1}, s{sW}, 16")
        k.op(f"s_add_u32 s{sT0}, s{sT0}, s{sT1}")
        k.op(f"s_lshl_b32 s{sT1}, s{sTT}, 7")
        k.op(f"s_add_u32 s{sT0}, s{sT0}, s{sT1}")
        k.op(f"s_add_u32 s{sT0}, s{sT0}, {Y_OFF}")
        k.op(f"s_mul_i32 s{sT1}, s{sW}, 2080")
        k.op(f"s_add_u32 m0, s{sT1}, {YT}")
        k.op(f"s_add_u32 s{sT2}, s{sT0}, {8*4096 - 1040}")
        k.vm(f"buffer_load_dwordx4 v8, s[{rWS}:{rWS+3}], s{sT0} offen sc1 lds", "ey")
        k.vm(f"buffer_load_dwordx4 v8, s[{rWS}:{rWS+3}], s{sT2} offen offset:1040 sc1 lds", "ey")
    RROW = 272; RW = 64 * RROW
    k.op("v_and_b32 v11, 31, v0")
    k.op(f"v_mul_u32_u24 v11, {RROW}, v11")
    k.op("v_lshrrev_b32 v12, 5, v0")
    k.op("v_lshl_add_u32 v11, v12, 4, v11")
    k.op(f"s_mul_i32 s{sT0}, s{sW}, {RW}")
    k.op(f"s_add_u32 s{sT0}, s{sT0}, {RED}")
    k.op(f"v_add_u32 v11, s{sT0}, v11")
    first = set()
    def mf(ks, dt2, e):
        t = 2 * dt2 + e
        acc = vr(vA2 + 16 * t, 16)
        cin = acc if t in first else "0"
        first.add(t)
        hb = hreg(ks, e)
        k.op(f"v_mfma_f32_32x32x16_bf16 {acc}, {ar(8*ks+4*dt2,4)}, {vr(hb,4)}, {cin}")
    LASTK = 24
    YSIG, YPOLL, YLOAD = (3, 13, 22) if 'y3' in OPT else (5, 15, 23) if 'y5' not in OPT else (6, 16, 23)
    xfill = []
    for ps in range(2):
        X = 112 + 16 * ps; N = X + 8; T = 144 + 8 * ps
        for q in range(4): xfill.append(("op", f"v_accvgpr_read_b32 v{T+q}, a{224+4*ps+q}"))
        xfill.append(("op", f"v_accvgpr_read_b32 v{T+4}, a{232+2*ps}"))
        xfill.append(("op", f"v_accvgpr_read_b32 v{T+5}, a{233+2*ps}"))
        for q in range(4):
            xfill.append(("op", f"v_lshlrev_b32 v{X+2*q}, 16, v{T+q}"))
            xfill.append(("op", f"v_and_b32 v{X+2*q+1}, s{sMASK}, v{T+q}"))
        for q in range(8): xfill.append(("op", f"v_fma_f32 v{N+q}, v{X+q}, v{T+4}, v{T+5}"))
        for q in range(8): xfill.append(("op", f"v_mov_b32 v{160+8*ps+q}, 0"))
    def hl(kn, e):
        k.vm(f"buffer_load_dwordx4 {vr(hreg(kn, e),4)}, v1, s[{rWS}:{rWS+3}], s{76+e} offen offset:{(kn%4)*1024}{'' if 'hplain' in OPT else ' sc1'}", f"h{kn}")
    for ks in range(LASTK):
        if ks == YSIG:
            k.wait(vm="yst")
            k.op("s_barrier")
            signal(k, 9, 8)
            stamp(k, "c_sig")
        stamp(k, f"w_{ks}_")
        k.wait(vm=f"h{ks}", lg=[f"wr{ks}_1_1"] if ks >= WD_KS else [])
        if ks % 2 == 0: stamp(k, f"z_{ks}")
        else: stamp(k, f"q_{ks}")
        m = 0
        for dt2 in range(2):
            for e in range(2):
                mf(ks, dt2, e)
                todo = []
                if ks == 2: todo = {1: [(8, 0), (8, 1)], 3: [(9, 0), (9, 1)]}.get(m, [])
                elif ks == 3: todo = {1: [(10, 0), (10, 1)], 3: [(11, 0), (11, 1)]}.get(m, [])
                elif ks >= 4 and ks + 8 < 28 and m >= 2: todo = [(ks + 8, m - 2)]
                for kn, e2 in todo:
                    if kn % 4 == 0 and e2 == 0: g2_hbase(k, kn // 4)
                    hl(kn, e2)
                if ks < WD_KS: emit(k, [wr1[4 * ks + m]])
                if ks >= 6 and xfill and m < 2: emit(k, [xfill.pop(0) for _ in range(min(2, len(xfill)))])
                if m == 3 and ks == YPOLL: k.op(f"s_load_dword s{sU2}, s[{sPWS}:{sPWS+1}], s{sU1}")
                if m == 3 and ks == YLOAD: y_loads()
                m += 1
    assert not xfill
    k.wait(vm="h27", lg=["wr27_1_1"])
    def wr(t):
        dt2, e = divmod(t, 2)
        return [("lg", f"ds_write_b128 v11, {vr(vA2 + 16*t + 4*g, 4)} offset:{e*32*RROW + dt2*128 + g*32}", f"rw{t}{g}") for g in range(4)]
    for t in range(4):
        dt2, e = divmod(t, 2)
        for ks in range(LASTK, 28):
            mf(ks, dt2, e)
        if t == 2: k.op("s_nop 3")
        if t >= 2: emit(k, wr(t - 2))
    stamp(k, "d_loop")
    k.op(f"v_mov_b32 v10, {hex(f2u(-1.4426950408889634))}")
    k.op(f"v_mul_u32_u24 v8, {RROW}, v5")
    k.op("v_lshl_add_u32 v8, v6, 5, v8")
    k.op(f"v_add_u32 v8, {RED}, v8")
    k.op("v_mul_u32_u24 v9, 1040, v6")
    k.op("v_lshl_add_u32 v9, v5, 1, v9")
    k.op(f"v_add_u32 v9, {YT}, v9")
    emit(k, wr(2))
    emit(k, wr(3))
    k.op("v_mov_b32 v11, 1.0")
    k.wait(lg=k.lgq[-1])
    stamp(k, "t_wr")
    k.op("s_barrier")
    stamp(k, "t_bar")
    for ps in range(2):
        B = 16 + 64 * ps
        for w in range(4):
            for hh in range(2):
                k.lg(f"ds_read_b128 {vr(B + 8*w + 4*hh, 4)}, v8 offset:{w*RW + ps*32*RROW + hh*16}", f"p{ps}_{w}{hh}")
    for ps in range(2):
        B = 16 + 64 * ps if ps == 0 else 80
        N = 112 + 16 * ps + 8
        k.wait(lg=f"p{ps}_31")
        for q in range(4):
            k.op(f"v_pk_add_f32 {vr(B+2*q,2)}, {vr(B+2*q,2)}, {vr(B+8+2*q,2)}")
            k.op(f"v_pk_add_f32 {vr(B+16+2*q,2)}, {vr(B+16+2*q,2)}, {vr(B+24+2*q,2)}")
        for q in range(4):
            k.op(f"v_pk_add_f32 {vr(B+2*q,2)}, {vr(B+2*q,2)}, {vr(B+16+2*q,2)}")
        E = B + 16
        for q in range(4):
            k.op(f"v_pk_mul_f32 {vr(E+2*q,2)}, {vr(B+2*q,2)}, {vr(10,2)} op_sel_hi:[1,0]")
        for q in range(8): k.op(f"v_exp_f32 v{E+q}, v{E+q}")
        for q in range(4): k.op(f"v_pk_mul_f32 {vr(N+2*q,2)}, {vr(N+2*q,2)}, {vr(B+2*q,2)}")
        for q in range(4): k.op(f"v_pk_add_f32 {vr(E+2*q,2)}, {vr(E+2*q,2)}, {vr(10,2)} op_sel:[0,1] op_sel_hi:[1,1]")
        for q in range(8): k.op(f"v_rcp_f32 v{E+q}, v{E+q}")
        k.op("s_nop 0")
        for q in range(4): k.op(f"v_pk_mul_f32 {vr(N+2*q,2)}, {vr(N+2*q,2)}, {vr(E+2*q,2)}")
    stamp(k, "t_silu")
    k.wait(vm="ey")
    k.op("s_barrier")
    stamp(k, "t_ey")
    for ps in range(2):
        for e in range(8):
            if len(k.lgq) >= 14: k.wait(lg=k.lgq[3])
            k.lg(f"ds_read_u16_d16_hi v{160+8*ps+e}, v9 offset:{e*128 + ps*64}", f"y{ps}_{e}")
    for ps in range(2):
        X = 112 + 16 * ps; N = X + 8; Yr = 160 + 8 * ps; T = 144 + 8 * ps
        k.wait(lg=f"y{ps}_7")
        for q in range(4): k.op(f"v_pk_fma_f32 {vr(N+2*q,2)}, {vr(N+2*q,2)}, {vr(Yr+2*q,2)}, {vr(X+2*q,2)}")
        for q in range(4): k.op(f"v_cvt_pk_bf16_f32 v{T+q}, v{N+2*q}, v{N+2*q+1}")
        k.vm(f"buffer_store_dwordx4 {vr(T,4)}, v7, s[{rOUT}:{rOUT+3}], s{78+ps} offen", "ost")
    stamp(k, "d_end")

PP_ROW = 900
PP_K = 0
PP_V = 67 * PP_ROW + 4
def prepass(k):
    if "ppst" in OPT: k.op("s_memtime s[8:9]")
    k.op(f"s_sub_u32 s{sT0}, s{sSLOT}, 28")
    k.op(f"s_lshl_b32 s{sT0}, s{sT0}, 3")
    k.op(f"s_add_u32 s{sI}, s{sT0}, s{sXCD}")
    k.op("v_lshlrev_b32 v1, 4, v0")
    k.op("s_waitcnt lgkmcnt(0)")
    srd(k, rWS, sPWS, (16 << 20) if (STAMPS and 'leak' not in OPT) else WS_USED)
    lab = k.newlabel("Lnolead")
    k.op(f"s_or_b32 s{sT0}, s{sI}, s{sW}")
    k.op(f"s_cmp_lg_u32 s{sT0}, 0")
    k.op(f"s_cbranch_scc1 {lab}")
    k.op("v_lshlrev_b32 v2, 7, v0")
    k.op(f"v_add_u32 v2, {CNT_OFF}, v2")
    k.op("v_mov_b32 v3, 0")
    k.op("s_mov_b32 exec_hi, 0")
    k.op(f"global_store_dword v2, v3, s[{sPWS}:{sPWS+1}] sc1")
    k.op("s_waitcnt vmcnt(0)")
    k.op("v_mov_b32 v2, 1")
    k.op("s_mov_b64 exec, 1")
    k.op(f"global_store_dword v3, v2, s[{sPDBG}:{sPDBG+1}] sc1")
    k.op("s_mov_b64 exec, -1")
    k.label(lab)
    if "ppf" in OPT:
        k.op(f"s_bitcmp1_b32 s{sW}, 1")
        k.op(f"s_cselect_b32 s{rX}, s{sPWU}, s{sPWG}")
        k.op(f"s_cselect_b32 s{rX+1}, s{sPWU+1}, s{sPWG+1}")
        k.op(f"s_and_b32 s{rX+1}, s{rX+1}, 0xffff")
        k.op(f"s_mov_b32 s{rX+2}, {D*F*2}")
        k.op(f"s_mov_b32 s{rX+3}, 0x20000")
        k.op(f"s_sub_u32 s{sT0}, s{sSLOT}, 28")
        k.op(f"s_mul_i32 s{sT0}, s{sT0}, 224")
        k.op(f"s_and_b32 s{sT1}, s{sW}, 1")
        k.op(f"s_lshl_b32 s{sT1}, s{sT1}, 7")
        k.op(f"s_add_u32 s{sT0}, s{sT0}, s{sT1}")
        k.op(f"s_and_b32 s{sT1}, s{sXCD}, 1")
        k.op(f"s_mul_i32 s{sT1}, s{sT1}, 1792")
        k.op(f"s_mov_b32 s{sT2}, {(1 << 32) // 14 + 1}")
        for rnd in range(2):
            k.op(f"v_add_u32 v2, s{sT0}, v0")
            if rnd: k.op("v_add_u32 v2, 64, v2")
            k.op(f"v_mul_hi_u32 v3, v2, s{sT2}")
            k.op("v_mul_u32_u24 v4, 14, v3")
            k.op("v_sub_u32 v4, v2, v4")
            k.op("v_mul_u32_u24 v3, 3584, v3")
            k.op("v_lshl_add_u32 v3, v4, 7, v3")
            k.vm(f"buffer_load_dword a250, v3, s[{rX}:{rX+3}], s{sT1} offen", "pf")
    srd(k, rK, sPK, S * D * 2)
    srd(k, rV, sPV, S * D * 2)
    srd(k, rSK, sPSK, D * 4 * 2)
    k.op("s_mov_b32 exec_hi, 0x00ffffff")
    k.op(f"s_lshl_b32 s{sT0}, s{sI}, 6")
    k.op(f"s_add_u32 s{sT0}, s{sT0}, s{sW}")
    k.op(f"s_sub_u32 s{sT1}, s{sT0}, 3")
    k.op(f"s_mul_i32 s{sT1}, s{sT1}, 896")
    k.op(f"s_mul_i32 s{sT2}, s{sW}, {PP_ROW}")
    k.op(f"s_add_u32 m0, s{sT2}, {PP_K}")
    k.op(f"v_add_u32 v2, s{sT1}, v1")
    for n in range(17):
        if n == 16:
            lab = k.newlabel("Lpk")
            k.op(f"s_cmp_eq_u32 s{sW}, 3")
            k.op(f"s_cbranch_scc1 {lab}")
            k.op(f"buffer_load_dwordx4 v2, s[{rK}:{rK+3}], 0 offen lds")
            k.label(lab)
        else:
            k.vm(f"buffer_load_dwordx4 v2, s[{rK}:{rK+3}], 0 offen lds", "k")
            k.op(f"s_add_u32 m0, m0, {4*PP_ROW}")
            k.op(f"v_add_u32 v2, {4*896}, v2")
    k.op(f"s_mul_i32 s{sT1}, s{sT0}, 896")
    k.op(f"s_add_u32 m0, s{sT2}, {PP_V}")
    k.op("s_nop 0")
    for n in range(16):
        k.vm(f"buffer_load_dwordx4 v1, s[{rV}:{rV+3}], s{sT1} offen lds", "v")
        if n < 15:
            k.op(f"s_add_u32 m0, m0, {4*PP_ROW}")
            k.op(f"s_add_u32 s{sT1}, s{sT1}, {4*896}")
    k.op("s_mov_b32 exec_hi, -1")
    k.op(f"s_mov_b32 s{sMASK}, 0xffff0000")
    k.op("v_and_b32 v2, 3, v0")
    k.op("v_lshrrev_b32 v3, 5, v0")
    k.op("v_lshl_add_u32 v2, v3, 2, v2")
    k.op("v_bfe_u32 v3, v0, 2, 3")
    k.op(f"v_mul_u32_u24 v4, {8*PP_ROW}, v2")
    k.op("v_lshl_add_u32 v4, v3, 2, v4")
    k.op(f"s_lshl_b32 s{sT0}, s{sW}, 5")
    k.op(f"v_add_u32 v4, s{sT0}, v4")
    k.op(f"v_add_u32 v8, {PP_V}, v4")
    k.op("v_lshlrev_b32 v5, 4, v3")
    k.op(f"s_lshl_b32 s{sT0}, s{sW}, 7")
    k.op(f"v_add_u32 v5, s{sT0}, v5")
    k.op("v_lshlrev_b32 v6, 13, v3")
    k.op(f"s_lshl_b32 s{sT0}, s{sW}, 16")
    k.op(f"v_add_u32 v6, s{sT0}, v6")
    k.op("v_lshlrev_b32 v7, 4, v2")
    k.op("v_sub_u32 v6, v6, v7")
    k.op(f"s_lshl_b32 s{sT0}, s{sI}, 7")
    k.op(f"s_sub_u32 s{sT0}, {U_OFF + (2047 - 7) * 2}, s{sT0}")
    k.op(f"v_add_u32 v6, s{sT0}, v6")
    for it in range(7):
        k.vm(f"buffer_load_dwordx4 {vr(100 + 4*it, 4)}, v5, s[{rSK}:{rSK+3}], 0 offen offset:{it*512}", "sk")
    if "ppst" in OPT: k.op("s_memtime s[10:11]")
    k.wait_all()
    if "ppst" in OPT: k.op("s_memtime s[12:13]")
    k.op("s_barrier")
    RAW = [16, 176]
    def reads(it):
        base = RAW[it % 2]; coff = it * 128
        for j in range(11):
            k.lg(f"ds_read_b32 v{base+j}, v4 offset:{PP_K + j*PP_ROW + coff}", f"r{it}")
        for j in range(8):
            k.lg(f"ds_read_b32 v{base+11+j}, v8 offset:{j*PP_ROW + coff}", f"r{it}")
    reads(0)
    for it in range(7):
        KR = RAW[it % 2]; VR = KR + 11
        sk = 100 + 4 * it
        k.op(f"v_lshlrev_b32 v64, 16, v{sk}");   k.op(f"v_lshlrev_b32 v65, 16, v{sk+2}")
        k.op(f"v_and_b32 v66, 0xffff0000, v{sk}"); k.op(f"v_and_b32 v67, 0xffff0000, v{sk+2}")
        k.op(f"v_lshlrev_b32 v68, 16, v{sk+1}"); k.op(f"v_lshlrev_b32 v69, 16, v{sk+3}")
        k.op(f"v_and_b32 v70, 0xffff0000, v{sk+1}"); k.op(f"v_and_b32 v71, 0xffff0000, v{sk+3}")
        k.wait(lg=f"r{it}")
        for j in range(11):
            k.op(f"v_lshlrev_b32 v{40+2*j}, 16, v{KR+j}")
            k.op(f"v_and_b32 v{41+2*j}, s{sMASK}, v{KR+j}")
        for j in range(8):
            k.op(f"v_lshlrev_b32 v{72+2*j}, 16, v{VR+j}")
            k.op(f"v_and_b32 v{73+2*j}, s{sMASK}, v{VR+j}")
        if it + 1 < 7: reads(it + 1)
        for t in range(8):
            k.op(f"v_pk_mul_f32 {vr(130+2*t,2)}, {vr(40+2*(t+3),2)}, {vr(64,2)}")
        for j in range(1, 4):
            for t in range(8):
                o = 130 + 2 * t
                k.op(f"v_pk_fma_f32 {vr(o,2)}, {vr(40+2*(t+3-j),2)}, {vr(64+2*j,2)}, {vr(o,2)}")
        for t in range(8):
            o = 130 + 2 * t
            k.op(f"v_pk_mul_f32 {vr(o,2)}, {vr(o,2)}, {vr(72+2*t,2)}")
        O = 150 + 8 * (it % 2)
        for q in range(4):
            k.op(f"v_cvt_pk_bf16_f32 v{O+q}, v{130+2*(7-2*q)}, v{130+2*(6-2*q)}")
            k.op(f"v_cvt_pk_bf16_f32 v{O+4+q}, v{131+2*(7-2*q)}, v{131+2*(6-2*q)}")
        k.op(f"s_mov_b32 s{sT0}, {it * 64 * 4096}")
        k.op(f"s_mov_b32 s{sT1}, {it * 64 * 4096 + 4096}")
        k.vm(f"buffer_store_dwordx4 {vr(O,4)}, v6, s[{rWS}:{rWS+3}], s{sT0} offen sc1", "ust")
        k.vm(f"buffer_store_dwordx4 {vr(O+4,4)}, v6, s[{rWS}:{rWS+3}], s{sT1} offen sc1", "ust")
    if "ppst" in OPT: k.op("s_memtime s[14:15]")
    k.wait_all()
    if "ppst" in OPT: k.op("s_memtime s[72:73]")
    k.op("s_barrier")
    lab = k.newlabel("Lpsig")
    k.op(f"s_cmp_lg_u32 s{sW}, 0")
    k.op(f"s_cbranch_scc1 {lab}")
    k.op("v_mov_b32 v9, 0")
    spin_until(k, 9, 8, sPDBG, 1)
    k.label(lab)
    cnt_addr(k, 9, idx=UCNT)
    signal(k, 9, 8)
    if "ppst" in OPT:
        k.op("s_waitcnt vmcnt(0) lgkmcnt(0)")
        k.op("s_memtime s[74:75]")
        k.op("s_waitcnt lgkmcnt(0)")
        k.op("s_lshl_b32 s4, s2, 2"); k.op(f"s_add_u32 s4, s4, s{sW}"); k.op("s_lshl_b32 s4, s4, 7"); k.op(f"s_add_u32 s4, s4, {STAMP_OFF}")
        k.op("v_mov_b32 v1, 0"); k.op("s_mov_b64 exec, 1")
        for i, r in enumerate((8, 10, 12, 14, 72, 74)):
            k.op(f"v_mov_b32 v2, s{r}")
            k.op(f"buffer_store_dword v2, v1, s[{rWS}:{rWS+3}], s4 offen offset:{4*i}")
        k.op("s_mov_b64 exec, -1")

def kd(name, vgpr=512, acc=256):
    return f""".section .rodata,"a"
.p2align 6
.amdhsa_kernel {name}
  .amdhsa_next_free_vgpr {vgpr}
  .amdhsa_next_free_sgpr 102
  .amdhsa_accum_offset {acc}
  .amdhsa_group_segment_fixed_size 0
  .amdhsa_kernarg_size 104
  .amdhsa_user_sgpr_count 2
  .amdhsa_user_sgpr_kernarg_segment_ptr 1
  .amdhsa_system_sgpr_workgroup_id_x 1
  .amdhsa_float_denorm_mode_32 3
.end_amdhsa_kernel
"""

def build():
    k = K()
    prologue(k, 32768)
    start_main(k)
    gemm1_loop(k)
    gelu_phase(k)
    wr1 = conv_phase(k)
    gemm2_phase(k, wr1)
    for o in OPT:
        if o.startswith("cyc"):
            n = int(o[3:])
            k.op(f"s_add_u32 s10, s73, {n}")
            k.label("L_untilc")
            k.op("s_memtime s[8:9]")
            k.op("s_waitcnt lgkmcnt(0)")
            k.op("s_sub_u32 s11, s10, s8")
            k.op("s_cmp_gt_i32 s11, 0")
            k.op("s_cbranch_scc1 L_untilc")
        if o.startswith("until"):
            n = int(o[5:])
            k.op(f"s_add_u32 s10, s73, {n}")
            k.label("L_until")
            k.op("s_memrealtime s[8:9]")
            k.op("s_waitcnt lgkmcnt(0)")
            k.op("s_sub_u32 s11, s10, s8")
            k.op("s_cmp_gt_i32 s11, 0")
            k.op("s_cbranch_scc1 L_until")
        if o.startswith("delay"):
            n = int(o[5:])
            k.op("s_memtime s[8:9]")
            k.op("s_waitcnt lgkmcnt(0)")
            k.op(f"s_add_u32 s10, s8, {n}")
            k.label("L_delay")
            k.op("s_memtime s[8:9]")
            k.op("s_waitcnt lgkmcnt(0)")
            k.op("s_sub_u32 s11, s10, s8")
            k.op("s_cmp_gt_i32 s11, 0")
            k.op("s_cbranch_scc1 L_delay")
    stamp_flush(k)
    k.op("s_endpgm")
    k.label("L_pre")
    k.vmq = []; k.lgq = []
    prepass(k)
    k.label("L_exit")
    name = NAME + "_kernel"
    header = open("cdna_kernels/" + NAME + ".s.ref").read().split("; Override launch")[0]
    txt = header + f"; @launch grid=(256,1,1) block=(256,1,1) lds={LDS_TOTAL}\n"
    txt += '.amdgcn_target "amdgcn-amd-amdhsa--gfx950"\n.text\n'
    txt += f".globl {name}\n.p2align 8\n.type {name},@function\n{name}:\n"
    txt += k.text() + "s_endpgm\n" + kd(name)
    return txt

if __name__ == "__main__":
    if len(sys.argv) > 2 and sys.argv[2].startswith("stamps"):
        STAMPS = True
        if "=" in sys.argv[2]: STAMPSET = sys.argv[2].split("=")[1].split(",")
    if len(sys.argv) > 3: OPT.update(sys.argv[3].split(","))
    txt = build()
    check_hazards(txt)
    open(sys.argv[1], "w").write(txt)
    if STAMPS: print("stamps:", stamped)
```

```python
import sys, struct
from asmlib import *

NAME = "recurrent_scan__ssm_conv_h3__geglu_ffn__prompt"
S, D, F = 2048, 448, 1792
OPT = set()

H_OFF = 0
U_OFF = H_OFF + 64 * 112 * 1024
Y_OFF = U_OFF + D * 4096
ST_OFF = Y_OFF + D * 4096
CNT_OFF = ST_OFF + S * 8
WS_USED = CNT_OFF + 32 * 128
HCNT, YCNT, UCNT = 0, 16, 24

sPQ, sPK, sPV, sPSK, sPSSM, sPD, sPBX, sPWG = 16, 18, 20, 22, 24, 26, 28, 30
sPWU, sPWD, sPOUT, sPDBG = 32, 34, 36, 38
sPWS = 40
rX, rW, rWS, rWD, rSSM, rOUT, rD = 44, 48, 52, 56, 60, 64, 68
rK, rV, rSK = 48, 56, 60
sT0, sT1, sT2, sT3 = 4, 5, 6, 7
sW, sI, sJ, sWSO, sWM0, sSLOT, sXCD, sONES, sMASK, sWGM = 80, 81, 82, 83, 84, 85, 86, 87, 88, 89
sTT, sDT, sWDS, sWDM, sCH = 90, 91, 92, 93, 94
sHST = 95
sWDG = 75
sWDM4 = 42
sROT = 43
sHG = 74
sU0, sU1, sU2, sU3 = 96, 97, 98, 99

SLOT_SZ = 34048
XOFF = 17024
XS = SLOT_SZ
XROW = 912
SLOT = [0, SLOT_SZ, 2 * SLOT_SZ, 3 * SLOT_SZ]
LDS_TOTAL = 163840
HC_STRIDE = 4160
HC_CH = 4 * HC_STRIDE
UR_CH = 4608
WDST = 0
WD_KS = 14
WD_WAVE = WD_KS * 2048
def stg_const(s_):
    g = s_ >> 2
    return g * SLOT_SZ + (s_ & 3) * 2048 if g < 3 else 3 * SLOT_SZ + (s_ & 1) * 2048
HC = 3 * SLOT_SZ + 4 * 4096
UR = HC + 2 * HC_CH
XCH = HC
YT = UR + 2 * UR_CH
assert YT + 8320 <= LDS_TOTAL or True
YT = HC + 16384
RED = 0

vX = 16
vACC = 128

STAMPS = False
STAMP_OFF = 12 << 20
STAMPSET = None
POOL = [8, 10, 72, 18, 20, 22, 28, 16, 24, 26, 30, 32, 34, 36, 12, 14]
stamped = []
def stamp(k, name=""):
    if not STAMPS: return
    if STAMPSET is not None and not any((name == p[:-1]) if p.endswith("$") else name.startswith(p) for p in STAMPSET): return
    i = len(stamped)
    assert i < len(POOL)
    stamped.append(name)
    k.op(f"s_memtime s[{POOL[i]}:{POOL[i]+1}]")
def stamp_flush_dbg(k):
    wg = int([o for o in OPT if o.startswith("dbgwg")][0][5:])
    lab = k.newlabel("Ldbg")
    k.op("s_waitcnt vmcnt(0) lgkmcnt(0)")
    k.op(f"s_cmp_lg_u32 s2, {wg}"); k.op(f"s_cbranch_scc1 {lab}")
    k.op(f"s_cmp_lg_u32 s{sW}, 0"); k.op(f"s_cbranch_scc1 {lab}")
    k.op("s_mov_b64 exec, 1")
    for i in range(1, len(stamped)):
        k.op(f"s_sub_u32 s4, s{POOL[i]}, s{POOL[0]}")
        k.op(f"v_mov_b32 v2, s4")
        k.op(f"v_mov_b32 v1, {4*i}")
        k.op(f"global_store_dword v1, v2, s[{sPDBG}:{sPDBG+1}]")
    k.op("s_mov_b64 exec, -1")
    k.label(lab)

def stamp_leak(k):
    KL = 3
    k.op("s_waitcnt vmcnt(0) lgkmcnt(0)")
    k.op(f"s_sub_u32 s4, s{POOL[1]}, s{POOL[0]}")
    k.op(f"s_mul_i32 s4, s4, {KL}")
    k.op("s_memtime s[6:7]")
    k.op("s_waitcnt lgkmcnt(0)")
    k.op("s_add_u32 s4, s4, s6")
    k.label("L_leak")
    k.op("s_memtime s[6:7]")
    k.op("s_waitcnt lgkmcnt(0)")
    k.op("s_sub_u32 s5, s4, s6")
    k.op("s_cmp_gt_i32 s5, 0")
    k.op("s_cbranch_scc1 L_leak")

def stamp_flush(k):
    if not STAMPS: return
    if "leak" in OPT: return stamp_leak(k)
    if any(o.startswith("dbgwg") for o in OPT): return stamp_flush_dbg(k)
    k.op("s_waitcnt vmcnt(0) lgkmcnt(0)")
    k.op("s_memrealtime s[42:43]")
    k.op("s_waitcnt lgkmcnt(0)")
    k.op("s_mov_b32 s101, s42")
    k.op("s_lshl_b32 s4, s2, 2")
    k.op(f"s_add_u32 s4, s4, s{sW}")
    k.op("s_lshl_b32 s4, s4, 7")
    k.op(f"s_add_u32 s4, s4, {STAMP_OFF}")
    k.op("v_mov_b32 v1, 0")
    k.op("s_mov_b64 exec, 1")
    for i in range(len(stamped)):
        k.op(f"v_mov_b32 v2, s{POOL[i]}")
        k.op(f"buffer_store_dword v2, v1, s[{rWS}:{rWS+3}], s4 offen offset:{4*i}")
    k.op("v_mov_b32 v2, s100")
    k.op(f"buffer_store_dword v2, v1, s[{rWS}:{rWS+3}], s4 offen offset:{4*30}")
    k.op("v_mov_b32 v2, s101")
    k.op(f"buffer_store_dword v2, v1, s[{rWS}:{rWS+3}], s4 offen offset:{4*31}")
    k.op("s_mov_b64 exec, -1")

def f2u(x):
    return struct.unpack("<I", struct.pack("<f", x))[0]

def srd(k, r, ptr, nbytes):
    k.op(f"s_mov_b32 s{r}, s{ptr}")
    k.op(f"s_and_b32 s{r+1}, s{ptr+1}, 0xffff")
    k.op(f"s_mov_b32 s{r+2}, {nbytes}")
    k.op(f"s_mov_b32 s{r+3}, 0x20000")

def emit(k, items):
    for it in items:
        if it[0] == "op": k.op(it[1])
        elif it[0] == "vm": k.vm(it[1], it[2])
        elif it[0] == "lg": k.lg(it[1], it[2])
        elif it[0] == "fn": it[1]()

def capture(fn, *args):
    t = K()
    fn(t, *args)
    assert not t.vmq and not t.lgq
    return [("op", l) for l in t.L]

def interleave(k, main, fill, every, start=0):
    fill = list(fill)
    for n, it in enumerate(main):
        emit(k, [it])
        if fill and n >= start and (n - start) % every == every - 1:
            emit(k, fill.pop(0))
    for g in fill: emit(k, g)

def cnt_addr(k, vreg, idx_sgpr=None, idx=0):
    if idx_sgpr is None:
        k.op(f"v_mov_b32 v{vreg}, {CNT_OFF + idx * 128}")
    else:
        k.op(f"s_lshl_b32 s{sT0}, s{idx_sgpr}, 7")
        k.op(f"s_add_u32 s{sT0}, s{sT0}, {CNT_OFF + idx * 128}")
        k.op(f"v_mov_b32 v{vreg}, s{sT0}")

def spin_until(k, vaddr, vtmp, base, target, cmp="ge"):
    lab, done = k.newlabel("Lspin"), k.newlabel("Lspun")
    if "cntspin" in OPT:
        slot = {32: 4, 14: 5, 1: 7}[target] if vaddr != 9 or target != 32 else 4
        if getattr(k, "spin_tag", None): slot = k.spin_tag
        k.op(f"v_mov_b32 v{vtmp}, 1")
        k.op("s_mov_b64 exec, 1")
        k.op(f"v_mov_b32 v190, {4*slot}")
        k.op(f"global_atomic_add v190, v{vtmp}, s[{sPDBG}:{sPDBG+1}]")
        k.op("s_mov_b64 exec, -1")
    k.op(f"s_mov_b32 s{sT1}, 0x40000")
    k.label(lab)
    k.op(f"global_load_dword v{vtmp}, v{vaddr}, s[{base}:{base+1}] sc1")
    k.op("s_waitcnt vmcnt(0)")
    k.op(f"v_readfirstlane_b32 s{sT2}, v{vtmp}")
    k.op(f"s_sub_u32 s{sT1}, s{sT1}, 1")
    k.op(f"s_cmp_ge_u32 s{sT2}, {target}")
    k.op(f"s_cbranch_scc1 {done}")
    k.op("s_sleep %d" % int(([o for o in OPT if o.startswith("slp")] or ["slp1"])[0][3:]))
    k.op(f"s_cmp_lg_u32 s{sT1}, 0")
    k.op(f"s_cbranch_scc1 {lab}")
    k.label(done)
    k.vmq = []

def check_or_spin(k, vval, vaddr, base, target):
    done = k.newlabel("Lok")
    k.op(f"v_readfirstlane_b32 s{sT2}, v{vval}")
    k.op(f"s_cmp_ge_u32 s{sT2}, {target}")
    k.op(f"s_cbranch_scc1 {done}")
    q = list(k.vmq)
    spin_until(k, vaddr, vval, base, target)
    k.vmq = q
    k.label(done)

def signal(k, vaddr, vone):
    lab = k.newlabel("Lsig")
    k.op(f"s_cmp_lg_u32 s{sW}, 0")
    k.op(f"s_cbranch_scc1 {lab}")
    k.op(f"v_mov_b32 v{vone}, 1")
    k.op("s_mov_b64 exec, 1")
    k.op(f"global_atomic_add v{vaddr}, v{vone}, s[{sPWS}:{sPWS+1}] sc1")
    k.op("s_mov_b64 exec, -1")
    k.label(lab)

def prologue(k, codebytes):
    if any(o.startswith("cyc") for o in OPT):
        k.op("s_memtime s[72:73]")
        k.op("s_waitcnt lgkmcnt(0)")
        k.op("s_mov_b32 s73, s72")
    if any(o.startswith("until") for o in OPT):
        k.op("s_memrealtime s[72:73]")
        k.op("s_waitcnt lgkmcnt(0)")
        k.op("s_mov_b32 s73, s72")
    k.op("s_getpc_b64 s[12:13]")
    k.op("s_load_dwordx16 s[16:31], s[0:1], 0")
    k.op("s_load_dwordx8 s[32:39], s[0:1], 64")
    k.op("s_load_dwordx2 s[40:41], s[0:1], 96")
    k.op("v_lshrrev_b32 v1, 6, v0")
    k.op("v_and_b32 v0, 63, v0")
    k.op("s_cmp_ge_u32 s2, 256")
    k.op(f"v_readfirstlane_b32 s{sW}, v1")
    k.op("s_cbranch_scc1 L_exit")
    if "nocodepf" not in OPT:
        k.op("s_lshr_b32 s14, s2, 3")
        k.op("s_lshl_b32 s14, s14, 2")
        k.op(f"s_add_u32 s14, s14, s{sW}")
        k.op("s_mul_i32 s14, s14, 384")
        k.op("s_add_u32 s12, s12, s14")
        k.op("s_addc_u32 s13, s13, 0")
        k.op("v_lshlrev_b32 v2, 7, v0")
        k.op("s_mov_b64 exec, 7")
        k.vm("global_load_dword a250, v2, s[12:13]", "code")
        k.op("s_mov_b64 exec, -1")
        assert codebytes <= 128 * 384
    if STAMPS and not any(o.startswith("dbgwg") for o in OPT) and "leak" not in OPT:
        k.op("s_memrealtime s[42:43]")
        k.op("s_waitcnt lgkmcnt(0)")
        k.op("s_mov_b32 s100, s42")
    k.op(f"s_and_b32 s{sXCD}, s2, 7")
    k.op(f"s_lshr_b32 s{sSLOT}, s2, 3")
    k.op(f"s_cmp_ge_u32 s{sSLOT}, 28")
    k.op("s_cbranch_scc1 L_pre")

def wdma(c, e):
    out = []
    if e % 4 == 0:
        out.append(("op", f"s_add_u32 m0, s{sWM0}, {SLOT[c % 4] + e * 1056}"))
    out.append(("op", f"s_add_u32 s{sT3}, s{sWSO}, {(64 * c + e) * 3584 - (e % 4) * 1056}"))
    out.append(("vm", f"buffer_load_dwordx4 v2, s[{rW}:{rW+3}], s{sT3} offen offset:{(e % 4) * 1056} lds", f"w{c}"))
    return out

def start_main(k):
    k.op(f"s_mul_i32 s{sT0}, s{sSLOT}, 37")
    k.op(f"s_lshr_b32 s{sT0}, s{sT0}, 8")
    k.op(f"s_mul_i32 s{sT1}, s{sT0}, 7")
    k.op(f"s_sub_u32 s{sDT}, s{sSLOT}, s{sT1}")
    k.op(f"s_lshr_b32 s{sT2}, s{sXCD}, 1")
    k.op(f"s_lshl_b32 s{sT2}, s{sT2}, 2")
    k.op(f"s_add_u32 s{sI}, s{sT2}, s{sT0}")
    k.op(f"s_lshl_b32 s{sTT}, s{sXCD}, 2")
    k.op(f"s_add_u32 s{sTT}, s{sTT}, s{sT0}")
    k.op("v_lshlrev_b32 v1, 4, v0")
    k.op(f"s_lshl_b32 s{sU0}, s{sI}, 2")
    k.op(f"s_add_u32 s{sU0}, s{sU0}, s{sW}")
    k.op(f"s_mul_i32 s{sU0}, s{sU0}, {32*896}")
    k.op(f"s_mul_i32 s{sU1}, s{sW}, {32*XROW}")
    k.op(f"s_add_u32 s{sU1}, s{sU1}, {XS}")
    k.op(f"s_mul_i32 s{sU2}, s{sDT}, 9")
    k.op(f"s_lshr_b32 s{sU2}, s{sU2}, 1")
    k.op(f"s_mul_i32 s{sT1}, s{sU2}, 896")
    k.op(f"s_mul_i32 s{sT2}, s{sU2}, {XROW}")
    k.op(f"s_add_u32 s{sT1}, s{sT1}, s{sU0}")
    k.op(f"s_add_u32 s{sT2}, s{sT2}, s{sU1}")
    k.op(f"s_add_u32 s{sU3}, s{sU0}, {32*896}")
    k.op(f"s_and_b32 s{sT0}, s{sXCD}, 1")
    k.op(f"s_mul_i32 s{sJ}, s{sT0}, 7")
    k.op(f"s_add_u32 s{sJ}, s{sJ}, s{sDT}")
    k.op("v_lshrrev_b32 v6, 4, v0")
    k.op("v_lshlrev_b32 v6, 6, v6")
    k.op("v_bfe_u32 v7, v0, 1, 3")
    k.op("v_add_u32 v6, v6, v7")
    k.op("v_mul_u32_u24 v6, 3584, v6")
    k.op("v_and_b32 v7, 1, v0")
    k.op("v_lshl_add_u32 v5, v7, 7, v6")
    k.op(f"s_and_b32 s{sT0}, s{sI}, 3")
    k.op(f"s_lshl_b32 s{sT0}, s{sT0}, 1")
    k.op(f"s_lshr_b32 s{sWDG}, s{sW}, 1")
    k.op(f"s_add_u32 s{sT0}, s{sT0}, s{sWDG}")
    k.op(f"s_mul_i32 s{sT0}, s{sT0}, {8*3584}")
    k.op(f"s_lshl_b32 s{sWDG}, s{sJ}, 8")
    k.op(f"s_add_u32 s{sWDG}, s{sWDG}, s{sT0}")
    stamp(k, "b_pre")
    k.op("s_waitcnt lgkmcnt(0)")
    if "tlb" in OPT:
        for i, p in enumerate((sPWG, sPWU, sPWD, sPSSM, sPOUT, sPD)):
            k.op(f"s_load_dword s{96 if False else 100 if not STAMPS else 15}, s[{p}:{p+1}], 0") if False else None
        for p in (sPWG, sPWU, sPWD, sPSSM, sPOUT):
            k.op(f"s_load_dword s15, s[{p}:{p+1}], 0x0")
        for off in (H_OFF, 2 << 20, 4 << 20, 6 << 20, U_OFF + (1 << 20), Y_OFF + (1 << 20)):
            k.op(f"s_mov_b32 s14, {off}")
            k.op(f"s_load_dword s15, s[{sPWS}:{sPWS+1}], s14")
    srd(k, rX, sPQ, S * D * 2)
    k.op(f"s_bitcmp1_b32 s{sW}, 0")
    k.op(f"s_cselect_b32 s{rW}, s{sPWU}, s{sPWG}")
    k.op(f"s_cselect_b32 s{rW+1}, s{sPWU+1}, s{sPWG+1}")
    k.op(f"s_and_b32 s{rW+1}, s{rW+1}, 0xffff")
    k.op(f"s_mov_b32 s{rW+2}, {D*F*2}")
    k.op(f"s_mov_b32 s{rW+3}, 0x20000")
    stamp(k, "start")
    if "earlypf" in OPT:
        k.op("s_mov_b32 exec_hi, 0")
        k.vm(f"buffer_load_dword a250, v5, s[{rW}:{rW+3}], s{sWDG} offen", "pf")
    k.op("s_mov_b32 exec_hi, 0x00ffffff")
    k.op(f"s_mov_b32 s{sT0}, 32")
    lx = k.newlabel("Lxd")
    k.label(lx)
    k.op(f"s_mov_b32 m0, s{sT2}")
    k.op(f"s_add_u32 s{sT2}, s{sT2}, {XROW}")
    k.op(f"buffer_load_dwordx4 v1, s[{rX}:{rX+3}], s{sT1} offen lds")
    k.op(f"s_add_u32 s{sT1}, s{sT1}, 896")
    k.op(f"s_cmp_eq_u32 s{sT1}, s{sU3}")
    k.op(f"s_cselect_b32 s{sT1}, s{sU0}, s{sT1}")
    k.op(f"s_cselect_b32 s{sT2}, s{sU1}, s{sT2}")
    k.op(f"s_sub_u32 s{sT0}, s{sT0}, 1")
    k.op(f"s_cmp_lg_u32 s{sT0}, 0")
    k.op(f"s_cbranch_scc1 {lx}")
    for n in range(32): k.vmq.append("x")
    k.op("s_mov_b32 exec_hi, -1")
    stamp(k, "a_xiss")
    k.op("v_lshrrev_b32 v10, 4, v0")
    k.op(f"v_mul_u32_u24 v2, {16*3584}, v10")
    k.op("v_and_b32 v11, 15, v0")
    k.op("v_lshl_add_u32 v2, v11, 4, v2")
    k.op(f"s_lshr_b32 s{sT0}, s{sW}, 1")
    k.op(f"s_lshl_b32 s{sT0}, s{sT0}, 3")
    k.op(f"s_mul_i32 s{sWSO}, s{sT0}, 3584")
    k.op(f"s_lshl_b32 s{sT1}, s{sJ}, 8")
    k.op(f"s_add_u32 s{sWSO}, s{sWSO}, s{sT1}")
    k.op(f"s_mul_i32 s{sWM0}, s{sT0}, 1056")
    k.op(f"s_and_b32 s{sT1}, s{sW}, 1")
    k.op(f"s_mul_i32 s{sT1}, s{sT1}, {XOFF}")
    k.op(f"s_add_u32 s{sWM0}, s{sWM0}, s{sT1}")
    for e in range(8): emit(k, wdma(0, e))
    stamp(k, "a_issued")
    k.op(f"s_mul_i32 s{sWGM}, s{sXCD}, 28")
    k.op(f"s_add_u32 s{sWGM}, s{sWGM}, s{sSLOT}")
    srd(k, rWS, sPWS, (16 << 20) if (STAMPS and 'leak' not in OPT) else WS_USED)
    srd(k, rWD, sPWD, F * D * 2)
    srd(k, rSSM, sPSSM, D * S * 2)
    srd(k, rOUT, sPOUT, S * D * 2)
    srd(k, rD, sPD, D * 2)
    k.op("v_and_b32 v11, 1, v10")
    k.op(f"v_mul_u32_u24 v3, {XOFF}, v11")
    k.op("v_lshrrev_b32 v11, 5, v0")
    k.op("v_lshlrev_b32 v12, 3, v11")
    k.op("v_bfe_u32 v13, v0, 2, 2")
    k.op("v_add_u32 v12, v12, v13")
    k.op("v_mul_u32_u24 v12, 1056, v12")
    k.op("v_add_u32 v3, v3, v12")
    k.op("v_and_b32 v13, 3, v0")
    k.op("v_lshl_add_u32 v3, v13, 3, v3")
    k.op(f"v_add_u32 v14, {2*SLOT_SZ}, v3")
    k.op("v_and_b32 v13, 31, v0")
    k.op(f"s_lshl_b32 s{sT0}, s{sW}, 5")
    k.op(f"v_add_u32 v13, s{sT0}, v13")
    k.op(f"v_mul_u32_u24 v15, {XROW}, v13")
    k.op("v_lshl_add_u32 v15, v11, 4, v15")
    k.op(f"v_add_u32 v15, {XS}, v15")
    k.op(f"s_mov_b32 s{sONES}, 0x3f803f80")
    k.op(f"s_mov_b32 s{sMASK}, 0xffff0000")
    for a in range(8): k.op(f"v_mov_b32 v{6+a}, 0")
    k.wait(vm="x")
    stamp(k, "a_xarr")
    def st(n):
        return [("op", f"v_dot2_f32_bf16 v{6 + n % 4}, v{vX+n}, s{sONES}, v{6 + n % 4}"),
                ("op", f"v_dot2_f32_bf16 v{10 + n % 4}, v{vX+n}, v{vX+n}, v{10 + n % 4}")]
    for ks in range(14):
        k.lg(f"ds_read_b128 {vr(vX + 4 * ks, 4)}, v15 offset:{32 * ks}", f"x{ks}")
    for ks in range(14, 28):
        k.wait(lg=f"x{ks-14}")
        k.lg(f"ds_read_b128 {vr(vX + 4 * ks, 4)}, v15 offset:{32 * ks}", f"x{ks}")
        for q in range(4): emit(k, st(4 * (ks - 14) + q))
        if ks == 15 and "nopf" not in OPT and "w1late" not in OPT:
            k.op(f"s_add_u32 s{sWDG}, s{sWDG}, {128*3584}")
            k.vm(f"buffer_load_dword a250, v5, s[{rW}:{rW+3}], s{sWDG} offen", "pf")
    k.wait(lg="x27")
    k.op("v_mov_b32 v15, v5")
    k.op("s_barrier")
    stamp(k, "a_xreg")
    main = []
    for n in range(56, 112): main += st(n)
    fill = [wdma(1, e) for e in range(8)]
    if "w1late" in OPT and "nopf" not in OPT:
        fill.append([("op", f"s_add_u32 s{sWDG}, s{sWDG}, {128*3584}"),
                     ("vm", f"buffer_load_dword a250, v15, s[{rW}:{rW+3}], s{sWDG} offen", "pf")])
    if "nopf" not in OPT:
        fill.append([("op", f"s_add_u32 s{sWDG}, s{sWDG}, {256*3584}"), ("op", "s_mov_b64 exec, 0xffff"),
                        ("vm", f"buffer_load_dword a250, v15, s[{rW}:{rW+3}], s{sWDG} offen", "pf"), ("op", "s_mov_b64 exec, -1")])
    if "w1late" in OPT:
        emit(k, main)
        late = fill
    else:
        interleave(k, main, fill, 11)
        late = []
    stamp(k, "a_dot")
    k.op("s_nop 2")
    k.op("v_add_f32 v6, v6, v7"); k.op("v_add_f32 v8, v8, v9")
    k.op("v_add_f32 v10, v10, v11"); k.op("v_add_f32 v12, v12, v13")
    k.op("v_add_f32 v6, v6, v8"); k.op("v_add_f32 v10, v10, v12")
    k.op("v_mov_b32 v7, v6"); k.op("v_mov_b32 v11, v10")
    k.op("s_nop 1")
    k.op("v_permlane32_swap_b32 v6, v7"); k.op("v_permlane32_swap_b32 v10, v11")
    k.op("s_nop 1")
    k.op("v_add_f32 v6, v6, v7"); k.op("v_add_f32 v10, v10, v11")
    k.op(f"v_mul_f32 v6, {hex(f2u(1.0/448))}, v6")
    k.op(f"v_mul_f32 v10, {hex(f2u(1.0/448))}, v10")
    k.op("v_fma_f32 v10, -v6, v6, v10")
    k.op("v_max_f32 v10, 0, v10")
    k.op("v_cvt_pk_bf16_f32 v7, v6, v10")
    k.op("v_lshlrev_b32 v6, 16, v7")
    k.op(f"v_and_b32 v10, s{sMASK}, v7")
    k.op(f"v_add_f32 v10, {hex(f2u(1e-5))}, v10")
    k.op("v_cvt_pk_bf16_f32 v10, v10, v10")
    k.op("v_lshlrev_b32 v10, 16, v10")
    k.op("v_sqrt_f32 v10, v10")
    k.op("s_nop 0")
    k.op("v_cvt_pk_bf16_f32 v10, v10, v10")
    k.op("v_lshlrev_b32 v10, 16, v10")
    k.op("v_rcp_f32 v4, v10")
    k.op("s_nop 0")
    LATE[:] = late
    k.op("v_mul_f32 v5, v6, v4")
    k.op("v_sub_f32 v5, 0, v5")
    lab = k.newlabel("Lnost")
    k.op(f"s_cmp_lg_u32 s{sJ}, 0")
    k.op(f"s_cbranch_scc1 {lab}")
    k.op(f"s_lshl_b32 s{sT0}, s{sI}, 2")
    k.op(f"s_add_u32 s{sT0}, s{sT0}, s{sW}")
    k.op(f"s_lshl_b32 s{sT0}, s{sT0}, 8")
    k.op(f"s_add_u32 s{sT0}, s{sT0}, {ST_OFF}")
    k.op("v_lshlrev_b32 v6, 3, v0")
    k.op("s_mov_b32 exec_hi, 0")
    k.op(f"buffer_store_dwordx2 v[4:5], v6, s[{rWS}:{rWS+3}], s{sT0} offen sc1")
    k.op("s_mov_b32 exec_hi, -1")
    k.label(lab)

def norm(n, tp):
    t = 6 + 2 * tp
    return [("op", f"v_lshlrev_b32 v{t}, 16, v{vX+n}"),
            ("op", f"v_and_b32 v{t+1}, s{sMASK}, v{vX+n}"),
            ("op", f"v_fma_f32 v{t}, v{t}, v4, v5"),
            ("op", f"v_fma_f32 v{t+1}, v{t+1}, v4, v5"),
            ("op", f"v_cvt_pk_bf16_f32 v{vX+n}, v{t}, v{t+1}")]
def norm_step(ks):
    a = [norm(4 * ks + q, q) for q in range(4)]
    out = []
    for s in range(5):
        for q in range(4): out.append(a[q][s])
    return out

def hc_dma(q):
    rr, qq = divmod(q, 4)
    out = []
    if qq == 0:
        out.append(("op", f"s_add_u32 m0, s{sU0}, {rr * HC_STRIDE}"))
        out.append(("op", f"s_add_u32 s{sU2}, s{sU1}, {rr * 2}"))
    out.append(("vm", f"buffer_load_dwordx4 v1, s[{rSSM}:{rSSM+3}], s{sU2} offen offset:{qq*1024} lds", "hc"))
    return out

LATE = []
WD0 = []
def gemm1_loop(k):
    emit(k, norm_step(0))
    for g in LATE: emit(k, g)
    k.op(f"s_lshr_b32 s{sT0}, s{sW}, 1")
    k.op(f"s_lshl_b32 s{sCH}, s{sWGM}, 1")
    k.op(f"s_add_u32 s{sCH}, s{sCH}, s{sT0}")
    k.op(f"s_and_b32 s{sT1}, s{sW}, 1")
    k.op(f"s_lshl_b32 s{sT1}, s{sT1}, 1")
    k.op(f"s_mul_i32 s{sU0}, s{sT0}, {HC_CH}")
    k.op(f"s_mul_i32 s{sT3}, s{sT1}, {HC_STRIDE}")
    k.op(f"s_add_u32 s{sU0}, s{sU0}, s{sT3}")
    k.op(f"s_add_u32 s{sU0}, s{sU0}, {HC + 32}")
    k.op(f"s_lshl_b32 s{sU1}, s{sCH}, 12")
    k.op(f"s_lshl_b32 s{sT1}, s{sT1}, 1")
    k.op(f"s_add_u32 s{sU1}, s{sU1}, s{sT1}")
    k.op(f"s_add_u32 s{sU1}, s{sU1}, 2")
    stamp(k, "a_norm0")
    k.wait(vm="w0")
    stamp(k, "a_w0")
    k.op("s_barrier")
    stamp(k, "a_stats")
    NF = 8; DIST = 7; NM = 224
    def rd(n):
        ks, mt = divmod(n, 8)
        c, kk = divmod(ks, 4)
        sl = c % 4
        base = "v3" if sl < 2 else "v14"
        off = (SLOT_SZ if sl % 2 else 0) + kk * 256 + mt * 32
        f = 4 * (n % NF)
        return [("lg", f"ds_read_b64_tr_b16 {ar(f, 2)}, {base} offset:{off}", f"f{n}"),
                ("lg", f"ds_read_b64_tr_b16 {ar(f + 2, 2)}, {base} offset:{off + 4 * 1056}", f"f{n}")]
    for n in range(DIST): emit(k, rd(n))
    extra = {}
    k.op(f"s_lshl_b32 s{sT0}, s{sSLOT}, 2")
    k.op(f"s_add_u32 s{sT0}, s{sT0}, s{sW}")
    k.op(f"s_mul_i32 s{sU3}, s{sT0}, {112*128}")
    k.op("v_lshlrev_b32 v15, 7, v0")
    def wd_pf(piece):
        return [("op", "s_mov_b64 exec, 0xffff"),
                ("vm", f"buffer_load_dword a250, v15, s[{rWD}:{rWD+3}], s{sU3} offen offset:{piece*2048}", "pf"),
                ("op", "s_mov_b64 exec, -1")]
    if "nopf" not in OPT:
        P0, PSTEP = (4, 2) if "pfslow" not in OPT else (6, 3)
        for p in range(7):
            if p < 2: extra[P0 + PSTEP * p] = wd_pf(p)
            else:
                extra[P0 + PSTEP * p] = [("op", f"s_add_u32 s{sU3}, s{sU3}, 2048"), ("op", "s_mov_b64 exec, 0xffff"),
                    ("vm", f"buffer_load_dword a250, v15, s[{rWD}:{rWD+3}], s{sU3} offen offset:2048", "pf"), ("op", "s_mov_b64 exec, -1")]
        k.op(f"s_lshl_b32 s{sHST}, s{sWGM}, 13")
        k.op(f"s_lshl_b32 s{sT0}, s{sW}, 11")
        k.op(f"s_add_u32 s{sHST}, s{sHST}, s{sT0}")
        extra[5] = [("op", "s_mov_b64 exec, 0xffff"),
                    ("vm", f"buffer_load_dword a250, v15, s[{rSSM}:{rSSM+3}], s{sHST} offen", "pf"), ("op", "s_mov_b64 exec, -1")]
    extra[24] = [("op", "s_mov_b64 exec, 1"),
                 ("vm", f"global_load_dword a40, v15, s[{sPDBG}:{sPDBG+1}] sc1", "init"),
                 ("op", "s_mov_b64 exec, -1")]
    tailfill = capture(g2_setup2)
    setup1 = capture(g2_setup1)
    WD0[:] = wd_dma_groups(0, WD_KS, "wd0", 0)
    def bigs(ks):
        c, kk = divmod(ks, 4)
        out = []
        if "x_now" not in OPT:
            if c == 0: out += [wdma(2 + kk // 2, 4 * (kk % 2) + i) for i in range(4)]
            elif c + 3 < 7: out += [wdma(c + 3, 2 * kk + i) for i in range(2)]
        if c == 4 and "x_nohc" not in OPT: out += [hc_dma(2 * kk + i) for i in range(2)]
        if c in (5, 6) and 'wdgelu' not in OPT: out += WD0[(c - 5) * 8 + 2 * kk: (c - 5) * 8 + 2 * kk + 2]
        if ks in extra and ("x_noex" not in OPT or ks == 24): out.append(extra[ks])
        return out
    VAR = [o for o in OPT if o.startswith("sch")]
    VAR = VAR[0] if VAR else "sch1"
    POS = {"sch0": {0: [], 1: [7], 2: [6, 7], 3: [5, 6, 7], 4: [3, 5, 6, 7]},
           "sch1": {0: [], 1: [7], 2: [3, 7], 3: [2, 5, 7], 4: [1, 3, 5, 7]},
           "sch2": {0: [], 1: [6], 2: [2, 6], 3: [1, 4, 6], 4: [0, 2, 4, 6]},
           "sch3": {0: [], 1: [7], 2: [3, 7], 3: [2, 5, 7], 4: [1, 3, 5, 7]}}[VAR]
    pending_reads = []
    for ks in range(28):
        c, kk = divmod(ks, 4)
        bg = bigs(ks)
        pos = POS[len(bg)]
        nrm = norm_step(ks + 1) if (ks + 1 < 28 and "x_nonorm" not in OPT) else []
        if ks == 27: nrm = list(tailfill)
        if ks in (16, 17, 18, 19):
            i0 = (ks - 16) * 6
            nrm = nrm + setup1[i0: i0 + 6 if ks < 19 else len(setup1)]
        if VAR == "sch0":
            cut = [0, 3, 6, 9, 12, 15, 18, 20, 20] if ks < 27 else [(len(nrm) * i) // 8 for i in range(9)]
            share = {g: nrm[cut[g]:cut[g + 1]] for g in range(8)}
        else:
            wts = {g: (0 if (g in pos or (g == 7 and ks < 27)) else 1) for g in range(8)}
            if VAR == "sch3":
                wts = {g: (1 if g in pos else 0 if (g == 7 and ks < 27) else 3) for g in range(8)}
            tot = sum(wts.values()); acc_ = 0; done = 0; share = {}
            for g in range(8):
                acc_ += wts[g]
                upto = (len(nrm) * acc_ + tot - 1) // tot
                share[g] = nrm[done:upto]; done = upto
        for mt in range(8):
            n = 8 * ks + mt
            if n % 32 == 0: stamp(k, f"g_c{n//32}")
            if n % 4 == 0:
                k.wait(lg=[f"f{n+i}" for i in range(4)])
            f = 4 * (n % NF)
            acc = vr(vACC + 16 * mt, 16)
            cin = "0" if ks == 0 else acc
            k.op(f"v_mfma_f32_32x32x16_bf16 {acc}, {ar(f, 4)}, {vr(vX + 4 * ks, 4)}, {cin}")
            nn = n + DIST
            if nn < NM:
                if nn % 32 == 0:
                    k.wait(vm=f"w{nn // 32}")
                    if "x_nobar" not in OPT: k.op("s_barrier")
                emit(k, rd(nn))
            emit(k, share[mt])
            if mt in pos: emit(k, bg[pos.index(mt)])
    assert not pending_reads
    stamp(k, "g_end")

def g2_setup1(k):
    k.op(f"s_and_b32 s{sT0}, s{sTT}, 3")
    k.op(f"s_lshl_b32 s{sT0}, s{sT0}, 1")
    k.op(f"s_add_u32 s{sROT}, s{sT0}, s{sDT}")
    k.op(f"s_sub_u32 s{sT0}, s{sROT}, 7")
    k.op(f"s_min_u32 s{sROT}, s{sROT}, s{sT0}")
    k.op("v_lshrrev_b32 v16, 3, v0")
    k.op("v_mul_u32_u24 v2, 896, v16")
    k.op("v_bfe_u32 v16, v0, 4, 1")
    k.op("v_lshlrev_b32 v16, 2, v16")
    k.op("v_and_b32 v17, 7, v0")
    k.op("v_xor_b32 v16, v16, v17")
    k.op("v_lshl_add_u32 v2, v16, 4, v2")
    k.op(f"s_mul_i32 s{sWDS}, s{sW}, {16*28*896}")
    k.op(f"s_lshl_b32 s{sT0}, s{sDT}, 7")
    k.op(f"s_add_u32 s{sWDS}, s{sWDS}, s{sT0}")
    k.op(f"s_sub_u32 s{sWDS}, s{sWDS}, 4096")
    k.op(f"s_lshl_b32 s{sWDM}, s{sW}, 13")
    k.op(f"s_lshl_b32 s{sWDM4}, s{sW}, 12")
def g2_setup2(k):
    k.op("v_lshrrev_b32 v5, 5, v0")
    k.op("v_bfe_u32 v6, v0, 2, 2")
    k.op("v_lshl_add_u32 v5, v5, 2, v6")
    k.op("v_lshlrev_b32 v5, 7, v5")
    k.op("v_bfe_u32 v7, v0, 4, 1")
    k.op("v_lshl_add_u32 v5, v7, 5, v5")
    k.op("v_and_b32 v7, 3, v0")
    k.op("v_lshl_add_u32 v5, v7, 3, v5")
    k.op(f"v_add_u32 v5, s{sWDM}, v5")
    k.op("v_bfe_u32 v6, v0, 3, 1")
    k.op("v_lshlrev_b32 v6, 6, v6")
    k.op("v_add_u32 v3, v5, v6")
    k.op("v_xor_b32 v6, 64, v6")
    k.op("v_add_u32 v4, v5, v6")
def g2_setup3(k):
    k.op(f"v_add_u32 v176, {2*SLOT_SZ}, v3")
    k.op(f"v_add_u32 v177, {2*SLOT_SZ}, v4")
    k.op(f"s_sub_u32 s{sT0}, {3*SLOT_SZ}, s{sWDM4}")
    k.op(f"v_add_u32 v178, s{sT0}, v3")
    k.op(f"v_add_u32 v179, s{sT0}, v4")

def wd_group_base(g):
    return [("op", f"s_add_u32 s{sT3}, s{sROT}, {g}"),
            ("op", f"s_sub_u32 s{sWDG}, s{sT3}, 7"),
            ("op", f"s_min_u32 s{sT3}, s{sT3}, s{sWDG}"),
            ("op", f"s_mul_i32 s{sT3}, s{sT3}, {64*896}"),
            ("op", f"s_add_u32 s{sWDG}, s{sT3}, s{sWDS}")]
def wd_dma_groups(ks0, ks1, tag, s0):
    out = []
    q = 0
    for ks in range(ks0, ks1):
        sl = ks - s0
        for hh in range(2):
            g = []
            if ks % 4 == 0 and hh == 0: g += wd_group_base(ks // 4)
            qq = 2 * (sl & 1) + hh
            if qq == 0:
                g.append(("op", f"s_add_u32 m0, s{sWDM if sl < 12 else sWDM4}, {stg_const(sl)}"))
            g.append(("op", f"s_add_u32 s{sT3}, s{sWDG}, {(16 * (ks % 4) + 8 * hh) * 896 - qq * 1024 + 4096}"))
            g.append(("vm", f"buffer_load_dwordx4 v2, s[{rWD}:{rWD+3}], s{sT3} offen offset:{qq * 1024} lds", tag))
            out.append(g)
    return out

def wd_read_items(ks0, ks1, s0):
    out = []
    for ks in range(ks0, ks1):
        sl = ks - s0
        g = sl >> 2
        for dt2 in range(2):
            for t in range(2):
                a = 8 * ks + 4 * dt2 + 2 * t
                if g < 2: base, off = 3 + dt2, stg_const(sl)
                elif g == 2: base, off = 176 + dt2, stg_const(sl) - 2 * SLOT_SZ
                else: base, off = 178 + dt2, stg_const(sl) - 3 * SLOT_SZ
                out.append(("lg", f"ds_read_b64_tr_b16 {ar(a,2)}, v{base} offset:{off + t*1024}", f"wr{ks}_{dt2}_{t}"))
    return out
def emit_lg_limited(k, items):
    for it in items:
        if it[0] == "lg" and len(k.lgq) >= 12: k.wait(lg=k.lgq[5])
        emit(k, [it])

def gelu_phase(k):
    if k.lgq: k.wait(lg=[k.lgq[-1]])
    k.op("s_barrier")
    vC, vONE = 16, 18
    C1 = -2.0 * 0.7978845608028654 * 1.4426950408889634
    C2 = C1 * 0.044715
    k.op(f"v_mov_b32 v{vC}, {hex(f2u(C1))}")
    k.op(f"v_mov_b32 v{vC+1}, {hex(f2u(C2))}")
    k.op(f"v_mov_b32 v{vONE}, 1.0")
    k.op(f"v_mov_b32 v{vONE+1}, 1.0")
    k.op(f"s_lshl_b32 s{sT0}, s{sI}, 2")
    k.op(f"s_add_u32 s{sT0}, s{sT0}, s{sW}")
    k.op(f"s_mul_i32 s{sHST}, s{sT0}, {112*1024}")
    k.op(f"s_lshl_b32 s{sT1}, s{sJ}, 13")
    k.op(f"s_add_u32 s{sHST}, s{sHST}, s{sT1}")
    k.wait(vm="init")
    k.op("v_accvgpr_read_b32 v8, a40")
    k.op("v_mov_b32 v9, 0")
    k.op("s_nop 0")
    check_or_spin(k, 8, 9, sPDBG, 1)
    cnt_addr(k, 9, idx=UCNT)
    k.vm(f"global_load_dword v8, v9, s[{sPWS}:{sPWS+1}] sc1", "ucnt")
    k.op("v_lshrrev_b32 v10, 4, v0")
    k.op("v_and_b32 v11, 15, v0")
    k.op("v_add_u32 v12, v10, v11")
    k.op("v_subrev_u32 v12, 15, v12")
    k.op("v_lshlrev_b32 v12, 1, v12")
    k.op(f"s_lshl_b32 s{sT1}, s{sCH}, 12")
    k.op("v_cmp_gt_i32 vcc, 0, v12")
    k.op("v_mov_b32 v13, 0x7fffffff")
    k.op("s_nop 0")
    k.op("v_cndmask_b32 v12, v12, v13, vcc")
    k.vm(f"buffer_load_ushort v14, v12, s[{rSSM}:{rSSM+3}], s{sT1} offen", "hf")
    k.op(f"s_lshl_b32 s{sT1}, s{sCH}, 1")
    k.op("v_mov_b32 v13, 0")
    k.vm(f"buffer_load_ushort v15, v13, s[{rD}:{rD+3}], s{sT1} offen", "dv")
    k.op(f"v_mul_u32_u24 v10, {HC_STRIDE}, v10")
    k.op("v_lshl_add_u32 v10, v11, 1, v10")
    k.op(f"s_lshr_b32 s{sT0}, s{sW}, 1")
    k.op(f"s_mul_i32 s{sT2}, s{sT0}, {HC_CH}")
    k.op(f"s_add_u32 s{sT2}, s{sT2}, {HC}")
    k.op(f"v_add_u32 v10, s{sT2}, v10")
    k.op(f"s_mul_i32 s{sT2}, s{sT0}, {UR_CH}")
    k.op(f"s_add_u32 s{sT2}, s{sT2}, {UR + 4096}")
    k.op(f"v_add_u32 v11, s{sT2}, v1")
    k.op("v_mov_b32 v20, 0"); k.op("v_mov_b32 v21, 0"); k.op("v_mov_b32 v22, 0"); k.op("v_mov_b32 v23, 0")
    k.op("s_mov_b32 exec_hi, 0")
    k.lg("ds_write_b128 v11, v[20:23]", "z")
    k.op("s_mov_b32 exec_hi, -1")
    wd0 = WD0[16:] if 'wdgelu' not in OPT else WD0[:]
    g2_setup3_done = False
    def ur_dma():
        k.wait(vm="ucnt")
        k.spin_tag = 6
        check_or_spin(k, 8, 9, sPWS, 32)
        k.spin_tag = None
        k.op(f"s_lshr_b32 s{sT0}, s{sW}, 1")
        k.op(f"s_and_b32 s{sT1}, s{sW}, 1")
        k.op(f"s_lshl_b32 s{sT1}, s{sT1}, 11")
        k.op(f"s_mul_i32 s{sT2}, s{sT0}, {UR_CH}")
        k.op(f"s_add_u32 s{sT2}, s{sT2}, s{sT1}")
        k.op(f"s_add_u32 m0, s{sT2}, {UR}")
        k.op(f"s_lshl_b32 s{sT3}, s{sCH}, 12")
        k.op(f"s_add_u32 s{sT3}, s{sT3}, s{sT1}")
        k.op(f"s_add_u32 s{sT3}, s{sT3}, {U_OFF}")
        k.vm(f"buffer_load_dwordx4 v1, s[{rWS}:{rWS+3}], s{sT3} offen sc1 lds", "ur")
        k.vm(f"buffer_load_dwordx4 v1, s[{rWS}:{rWS+3}], s{sT3} offen offset:1024 sc1 lds", "ur")
        k.wait(vm="hf")
        k.lg("ds_write_b16 v10, v14", "z")
    for mt in range(8):
        stamp(k, f"y_{mt}")
        G = vACC + 16 * mt; U = G + 8
        T = 24 + (mt % 2) * 24
        tp = lambda p: T + 2 * p
        gu = lambda p: T + 8 + 2 * p
        O = T + 16
        P = range(4)
        m = []
        for p in P: m.append(("op", f"v_pk_mul_f32 {vr(tp(p),2)}, {vr(G+2*p,2)}, {vr(G+2*p,2)}"))
        for p in P: m.append(("op", f"v_pk_fma_f32 {vr(tp(p),2)}, {vr(tp(p),2)}, {vr(vC,2)}, {vr(vC,2)} op_sel:[0,1,0] op_sel_hi:[1,1,0]"))
        for p in P: m.append(("op", f"v_pk_mul_f32 {vr(tp(p),2)}, {vr(tp(p),2)}, {vr(G+2*p,2)}"))
        for p in P:
            m.append(("op", f"v_exp_f32 v{tp(p)}, v{tp(p)}")); m.append(("op", f"v_exp_f32 v{tp(p)+1}, v{tp(p)+1}"))
        for p in P: m.append(("op", f"v_pk_mul_f32 {vr(gu(p),2)}, {vr(G+2*p,2)}, {vr(U+2*p,2)}"))
        for p in P: m.append(("op", f"v_pk_add_f32 {vr(tp(p),2)}, {vr(tp(p),2)}, {vr(vONE,2)}"))
        for p in P:
            m.append(("op", f"v_rcp_f32 v{tp(p)}, v{tp(p)}")); m.append(("op", f"v_rcp_f32 v{tp(p)+1}, v{tp(p)+1}"))
        m.append(("op", "s_nop 0"))
        for p in P: m.append(("op", f"v_pk_mul_f32 {vr(gu(p),2)}, {vr(gu(p),2)}, {vr(tp(p),2)}"))
        for p in P: m.append(("op", f"v_cvt_pk_bf16_f32 v{O+p}, v{gu(p)}, v{gu(p)+1}"))
        nf = (4 if mt < 3 else 0) if 'wdgelu' not in OPT else (4 if mt < 4 else 3)
        fill = [wd0.pop(0) for _ in range(nf)]
        if "nowdg" in OPT: fill = [[x for x in g if x[0] != "vm"] for g in fill]
        pos = {8: 0, 20: 1, 32: 2, 42: 3} if nf == 4 else {12: 0, 24: 1, 36: 2} if nf == 3 else {}
        for n, it in enumerate(m):
            emit(k, [it])
            if n in pos: emit(k, fill[pos[n]])
        if mt % 4 == 0 and mt > 0:
            k.op(f"s_add_u32 s{sHST}, s{sHST}, 4096")
        if "nohst" not in OPT: k.vm(f"buffer_store_dwordx4 {vr(O,4)}, v1, s[{rWS}:{rWS+3}], s{sHST} offen offset:{(mt%4)*1024}{'' if 'hstplain' in OPT else ' sc1'}", "hst")
        if mt == 3: ur_dma()
    assert not wd0
    stamp(k, "e_gelu")
    k.wait(vm="ur", lg=[k.lgq[-1]] if k.lgq else [])
    k.op("s_barrier")

def h_signal(k):
    k.wait(vm="hst")
    k.op("s_barrier")
    cnt_addr(k, 9, idx_sgpr=sI, idx=HCNT)
    signal(k, 9, 10)
    stamp(k, "e_sig")

def conv_phase(k):
    k.wait(vm="dv")
    k.op("v_lshlrev_b32 v8, 16, v15")
    k.op(f"s_lshr_b32 s{sT0}, s{sW}, 1")
    k.op(f"s_mul_i32 s{sT2}, s{sT0}, {HC_CH}")
    k.op(f"s_add_u32 s{sT2}, s{sT2}, {HC}")
    k.op("v_bfe_u32 v5, v0, 2, 2")
    k.op(f"v_mul_u32_u24 v14, {HC_STRIDE}, v5")
    k.op("v_and_b32 v6, 3, v0")
    k.op("v_lshl_add_u32 v14, v6, 3, v14")
    k.op("v_lshrrev_b32 v6, 4, v0")
    k.op("v_lshl_add_u32 v14, v6, 4, v14")
    k.op(f"s_and_b32 s{sT1}, s{sW}, 1")
    k.op(f"s_lshl_b32 s{sT1}, s{sT1}, 8")
    k.op(f"s_add_u32 s{sT2}, s{sT2}, s{sT1}")
    k.op(f"v_add_u32 v14, s{sT2}, v14")
    k.op("v_and_b32 v7, 15, v0")
    k.op("v_lshlrev_b32 v7, 5, v7")
    k.op("v_lshlrev_b32 v5, 4, v6")
    k.op("v_sub_u32 v15, v5, v7")
    k.op(f"s_mul_i32 s{sT2}, s{sT0}, {UR_CH}")
    k.op(f"s_add_u32 s{sT2}, s{sT2}, {UR + 4064 - 3584}")
    k.op(f"s_add_u32 s{sT3}, s{sT2}, s{sT1}")
    k.op(f"v_add_u32 v15, s{sT3}, v15")
    FB = [16, 48]; GBUF = [80, 112]; ACC = 144
    def rdF(sub, J):
        b = FB[sub % 2] + 4 * J
        off = 64 * (8 * J + sub)
        return [("lg", f"ds_read_b64_tr_b16 {vr(b,2)}, v14 offset:{off}", f"F{sub}"),
                ("lg", f"ds_read_b64_tr_b16 {vr(b+2,2)}, v14 offset:{off+8}", f"F{sub}")]
    def rdG(sub, T):
        b = GBUF[sub % 2] + 4 * T
        return [("lg", f"ds_read_b128 {vr(b,4)}, v15 offset:{512*(7-T) + 64*sub}", f"F{sub}")]
    def fg(sub):
        out = []
        for i in range(8):
            out += rdG(sub, 7 - i) + rdF(sub, i)
        return out
    emit(k, fg(0))
    k.op("v_lshlrev_b32 v5, 3, v6")
    k.op("v_add_u32 v7, v7, v5")
    k.op(f"s_add_u32 s{sT2}, s{sT2}, {4088 - 4064}")
    k.op(f"v_sub_u32 v13, s{sT2}, v7")
    k.op("v_and_b32 v5, 1, v6")
    k.op("v_mul_u32_u24 v5, 504, v5")
    k.op("v_add_u32 v7, v7, v5")
    k.op("v_lshrrev_b32 v184, 3, v0")
    k.op(f"s_lshl_b32 s{sT0}, s{sW}, 3")
    k.op(f"v_add_u32 v184, s{sT0}, v184")
    k.op("v_and_b32 v185, 7, v0")
    k.op("v_mul_u32_u24 v186, 896, v184")
    k.op("v_lshl_add_u32 v186, v185, 4, v186")
    k.op(f"s_mul_i32 s78, s{sTT}, {64*896}")
    k.op(f"s_lshl_b32 s{sT0}, s{sDT}, 7")
    k.op(f"s_add_u32 s78, s78, s{sT0}")
    k.op(f"s_add_u32 s79, s78, {32*896}")
    k.op(f"s_lshr_b32 s{sU0}, s{sTT}, 1")
    cnt_addr(k, 187, idx_sgpr=sU0, idx=HCNT)
    k.op(f"s_lshl_b32 s{sT0}, s{sTT}, 1")
    k.op(f"s_mul_i32 s{sT0}, s{sT0}, 112")
    k.op(f"s_mul_i32 s{sT1}, s{sW}, 28")
    k.op(f"s_add_u32 s{sT0}, s{sT0}, s{sT1}")
    k.op(f"s_lshl_b32 s{sHG}, s{sT0}, 10")
    g2_setup3(k)
    wd1 = wd_dma_groups(WD_KS, 2 * WD_KS, "wd1", WD_KS)
    for g in wd1[:WD_KS]:
        for i, it in enumerate(g):
            if it[0] == "vm": g[i] = ("vm", it[1], "wd1a")
    wr0 = wd_read_items(0, WD_KS, 0)
    wr1 = wd_read_items(WD_KS, 2 * WD_KS, WD_KS)
    H = WD_KS // 2
    one = lambda items: [[x] for x in items]
    wtag = lambda it: [("fn", lambda t=it[2]: k.wait(lg=t))]
    def mix(a, b):
        if not b: return a
        out = []; j = 0
        for i, g in enumerate(a):
            out.append(g)
            while j < len(b) and (j + 1) * len(a) <= (i + 1) * len(b) + len(a) // 2: out.append(b[j]); j += 1
        return out + b[j:]
    N1, N2 = (6, 14) if 'n1' not in OPT else (4, 14)
    plan = {0: one(fg(1)) + [[("fn", lambda: k.wait(vm="wd0"))]] + one(wr0[:4*H]),
            1: one(fg(2)) + [wtag(wr0[4*H-1])] + mix(one(wr0[4*H:]), wd1[:N1]),
            2: mix(one(fg(3)), wd1[N1:N2] + [wtag(wr0[-1])] + wd1[N2:N2 + 4]),
            3: wd1[N2 + 4:]}
    first = set()
    for sub in range(4):
        stamp(k, f"s_pre{sub}")
        k.wait(lg=f"F{sub}")
        if sub == 1:
            h_signal(k)
            k.vm(f"buffer_load_dwordx4 {ar(224,4)}, v186, s[{rX}:{rX+3}], s78 offen", "ex")
            k.vm(f"buffer_load_dwordx4 {ar(228,4)}, v186, s[{rX}:{rX+3}], s79 offen", "ex")
        if sub == 2:
            k.vm(f"global_load_dword v188, v187, s[{sPWS}:{sPWS+1}] sc1", "hcnt")
        stamp(k, f"s_go{sub}")
        fill = [g for g in plan[sub] if g]
        mf = [(T, J) for T in range(7, -1, -1) for J in range(0, 8 - T)]
        per = len(fill) / (36.0 if sub < 3 else 20.0)
        done = 0
        for n, (T, J) in enumerate(mf):
            tile = T + J
            a = vr(ACC + 4 * tile, 4)
            cin = a if tile in first else "0"
            first.add(tile)
            k.op(f"v_mfma_f32_16x16x32_bf16 {a}, {vr(FB[sub%2]+4*J,4)}, {vr(GBUF[sub%2]+4*T,4)}, {cin}")
            want = min(len(fill), int(round((n + 1) * per + 0.49)))
            while done < want:
                emit(k, fill[done]); done += 1
        while done < len(fill):
            emit(k, fill[done]); done += 1
    stamp(k, "c_mfma")
    k.wait(vm="hcnt")
    check_or_spin(k, 188, 187, sPWS, 14)
    stamp(k, "d_hrdy")
    k.op("v_lshlrev_b32 v189, 3, v184")
    k.op(f"s_lshl_b32 s{sT0}, s{sTT}, 9")
    k.op(f"s_add_u32 s{sT0}, s{sT0}, {ST_OFF}")
    k.vm(f"buffer_load_dwordx2 {ar(232,2)}, v189, s[{rWS}:{rWS+3}], s{sT0} offen sc1", "ex")
    k.vm(f"buffer_load_dwordx2 {ar(234,2)}, v189, s[{rWS}:{rWS+3}], s{sT0} offen offset:256 sc1", "ex")
    for ks in range(PD):
        g2_hload(k, ks)
    k.op(f"s_lshl_b32 s{sT0}, s{sW}, 12")
    k.op(f"s_add_u32 s{sT0}, s{sT0}, {XCH}")
    k.op(f"v_add_u32 v5, s{sT0}, v1")
    k.op(f"s_xor_b32 s{sT1}, s{sW}, 1")
    k.op(f"s_lshl_b32 s{sT1}, s{sT1}, 12")
    k.op(f"s_add_u32 s{sT1}, s{sT1}, {XCH}")
    k.op(f"v_add_u32 v6, s{sT1}, v1")
    k.op(f"s_lshl_b32 s{sT2}, s{sCH}, 12")
    k.op(f"s_add_u32 s{sT2}, s{sT2}, {Y_OFF}")
    if k.lgq: k.wait(lg=k.lgq[-1])
    k.op("s_barrier")
    lo, le = k.newlabel("Lcodd"), k.newlabel("Lcend")
    k.op("s_nop 1")
    def finish(keep, send):
        for i in range(4):
            k.op(f"ds_write_b128 v5, {vr(ACC + 4*(send+i), 4)} offset:{1024*i}")
        for i in range(4):
            k.op(f"ds_read_b64 {vr(64+2*i,2)}, v13 offset:{512*(7-(keep+i))}")
        k.op("s_waitcnt lgkmcnt(0)")
        k.op("s_barrier")
        for i in range(4):
            k.op(f"ds_read_b128 {vr(48+4*i,4)}, v6 offset:{1024*i}")
        for i in range(4):
            U = 64 + 2 * i
            k.op(f"v_and_b32 v{112+4*i}, s{sMASK}, v{U+1}")
            k.op(f"v_lshlrev_b32 v{113+4*i}, 16, v{U+1}")
            k.op(f"v_and_b32 v{114+4*i}, s{sMASK}, v{U}")
            k.op(f"v_lshlrev_b32 v{115+4*i}, 16, v{U}")
            A = ACC + 4 * (keep + i)
            for r in range(4):
                k.op(f"v_fmac_f32 v{A+r}, v{112+4*i+r}, v8")
        k.op("s_waitcnt lgkmcnt(0)")
        for i in range(4):
            A = ACC + 4 * (keep + i)
            k.op(f"v_pk_add_f32 {vr(A,2)}, {vr(A,2)}, {vr(48+4*i,2)}")
            k.op(f"v_pk_add_f32 {vr(A+2,2)}, {vr(A+2,2)}, {vr(50+4*i,2)}")
        for i in range(4):
            A = ACC + 4 * (keep + i)
            k.op(f"v_cvt_pk_bf16_f32 v{72+2*i}, v{A}, v{A+1}")
            k.op(f"v_cvt_pk_bf16_f32 v{73+2*i}, v{A+2}, v{A+3}")
        k.op("s_nop 1")
        for i in (0, 2):
            k.op(f"v_permlane16_swap_b32 v{72+2*i}, v{74+2*i}")
            k.op(f"v_permlane16_swap_b32 v{73+2*i}, v{75+2*i}")
        k.op("s_nop 0")
        for i in (0, 2):
            k.op(f"buffer_store_dwordx4 {vr(72+2*i,4)}, v7, s[{rWS}:{rWS+3}], s{sT2} offen offset:{512*(keep+i)} sc1")
    k.op(f"s_bitcmp1_b32 s{sW}, 0")
    k.op(f"s_cbranch_scc1 {lo}")
    finish(0, 4)
    k.op(f"s_branch {le}")
    k.label(lo)
    finish(4, 0)
    k.label(le)
    for i in range(2): k.vmq.append("yst")
    stamp(k, "c_end")
    return wr1

NHS = 8; vA2 = 192
def hreg(ks, e):
    sl = ks % NHS
    return (16 + 8 * sl if sl < 4 else 80 + 8 * (sl - 4)) + 4 * e
PD = 4
def g2_hbase(k, g):
    k.op(f"s_add_u32 s{sT3}, s{sROT}, {g}")
    k.op(f"s_sub_u32 s76, s{sT3}, 7")
    k.op(f"s_min_u32 s{sT3}, s{sT3}, s76")
    k.op(f"s_lshl_b32 s{sT3}, s{sT3}, 12")
    k.op(f"s_add_u32 s76, s{sT3}, s{sHG}")
    k.op(f"s_add_u32 s77, s76, {112*1024}")
def g2_hload(k, ks):
    if ks % 4 == 0: g2_hbase(k, ks // 4)
    for e in range(2):
        b = hreg(ks, e)
        k.vm(f"buffer_load_dwordx4 {vr(b,4)}, v1, s[{rWS}:{rWS+3}], s{76+e} offen offset:{(ks%4)*1024}{'' if 'hplain' in OPT else ' sc1'}", f"h{ks}")

def gemm2_phase(k, wr1):
    k.op("v_mov_b32 v5, v184"); k.op("v_mov_b32 v6, v185"); k.op("v_mov_b32 v7, v186")
    for ks in range(PD, 2 * PD):
        g2_hload(k, ks)
    k.op(f"s_lshr_b32 s{sU0}, s{sWGM}, 5")
    cnt_addr(k, 9, idx_sgpr=sU0, idx=YCNT)
    k.op(f"s_lshl_b32 s{sU1}, s{sDT}, 7")
    k.op(f"s_add_u32 s{sU1}, s{sU1}, {CNT_OFF + YCNT * 128}")
    def y_loads():
        done = k.newlabel("Lyok")
        stamp(k, "t_y0")
        if 'yvec' in OPT:
            k.wait(vm="ycnt")
            k.op(f"v_readfirstlane_b32 s{sU2}, v10")
        else:
            k.op("s_waitcnt lgkmcnt(0)")
            k.lgq = []
        stamp(k, "t_y1")
        k.op(f"s_cmp_ge_u32 s{sU2}, 32")
        k.op(f"s_cbranch_scc1 {done}")
        k.op(f"v_mov_b32 v9, s{sU1}")
        q = list(k.vmq)
        spin_until(k, 9, 10, sPWS, 32)
        k.vmq = q
        k.label(done)
        stamp(k, "t_y2")
        k.op("v_lshrrev_b32 v8, 3, v0")
        k.op("v_lshlrev_b32 v8, 12, v8")
        k.op("v_lshl_add_u32 v8, v6, 4, v8")
        k.op(f"s_lshl_b32 s{sT0}, s{sDT}, 18")
        k.op(f"s_lshl_b32 s{sT1}, s{sW}, 16")
        k.op(f"s_add_u32 s{sT0}, s{sT0}, s{sT1}")
        k.op(f"s_lshl_b32 s{sT1}, s{sTT}, 7")
        k.op(f"s_add_u32 s{sT0}, s{sT0}, s{sT1}")
        k.op(f"s_add_u32 s{sT0}, s{sT0}, {Y_OFF}")
        k.op(f"s_mul_i32 s{sT1}, s{sW}, 2080")
        k.op(f"s_add_u32 m0, s{sT1}, {YT}")
        k.op(f"s_add_u32 s{sT2}, s{sT0}, {8*4096 - 1040}")
        k.vm(f"buffer_load_dwordx4 v8, s[{rWS}:{rWS+3}], s{sT0} offen sc1 lds", "ey")
        k.vm(f"buffer_load_dwordx4 v8, s[{rWS}:{rWS+3}], s{sT2} offen offset:1040 sc1 lds", "ey")
    RROW = 272; RW = 64 * RROW
    k.op("v_and_b32 v11, 31, v0")
    k.op(f"v_mul_u32_u24 v11, {RROW}, v11")
    k.op("v_lshrrev_b32 v12, 5, v0")
    k.op("v_lshl_add_u32 v11, v12, 4, v11")
    k.op(f"s_mul_i32 s{sT0}, s{sW}, {RW}")
    k.op(f"s_add_u32 s{sT0}, s{sT0}, {RED}")
    k.op(f"v_add_u32 v11, s{sT0}, v11")
    first = set()
    def mf(ks, dt2, e):
        t = 2 * dt2 + e
        acc = vr(vA2 + 16 * t, 16)
        cin = acc if t in first else "0"
        first.add(t)
        hb = hreg(ks, e)
        k.op(f"v_mfma_f32_32x32x16_bf16 {acc}, {ar(8*ks+4*dt2,4)}, {vr(hb,4)}, {cin}")
    LASTK = 24
    YSIG, YPOLL, YLOAD = (3, 13, 22) if 'y3' in OPT else (3, 17, 23) if 'y17' in OPT else (5, 15, 23)
    xfill = []
    for ps in range(2):
        X = 112 + 16 * ps; N = X + 8; T = 144 + 8 * ps
        for q in range(4): xfill.append(("op", f"v_accvgpr_read_b32 v{T+q}, a{224+4*ps+q}"))
        xfill.append(("op", f"v_accvgpr_read_b32 v{T+4}, a{232+2*ps}"))
        xfill.append(("op", f"v_accvgpr_read_b32 v{T+5}, a{233+2*ps}"))
        for q in range(4):
            xfill.append(("op", f"v_lshlrev_b32 v{X+2*q}, 16, v{T+q}"))
            xfill.append(("op", f"v_and_b32 v{X+2*q+1}, s{sMASK}, v{T+q}"))
        for q in range(8): xfill.append(("op", f"v_fma_f32 v{N+q}, v{X+q}, v{T+4}, v{T+5}"))
        for q in range(8): xfill.append(("op", f"v_mov_b32 v{160+8*ps+q}, 0"))
    def hl(kn, e):
        k.vm(f"buffer_load_dwordx4 {vr(hreg(kn, e),4)}, v1, s[{rWS}:{rWS+3}], s{76+e} offen offset:{(kn%4)*1024}{'' if 'hplain' in OPT else ' sc1'}", f"h{kn}")
    for ks in range(LASTK):
        if ks == YSIG:
            k.wait(vm="yst")
            k.op("s_barrier")
            signal(k, 9, 8)
            stamp(k, "c_sig")
        stamp(k, f"w_{ks}_")
        k.wait(vm=f"h{ks}", lg=[f"wr{ks}_1_1"] if ks >= WD_KS else [])
        if ks % 2 == 0: stamp(k, f"z_{ks}")
        else: stamp(k, f"q_{ks}")
        m = 0
        for dt2 in range(2):
            for e in range(2):
                mf(ks, dt2, e)
                todo = []
                if ks == 2: todo = {1: [(8, 0), (8, 1)], 3: [(9, 0), (9, 1)]}.get(m, [])
                elif ks == 3: todo = {1: [(10, 0), (10, 1)], 3: [(11, 0), (11, 1)]}.get(m, [])
                elif ks >= 4 and ks + 8 < 28 and m >= 2: todo = [(ks + 8, m - 2)]
                for kn, e2 in todo:
                    if kn % 4 == 0 and e2 == 0: g2_hbase(k, kn // 4)
                    hl(kn, e2)
                if ks < WD_KS: emit(k, [wr1[4 * ks + m]])
                if ks >= 6 and xfill and m < 2: emit(k, [xfill.pop(0) for _ in range(min(2, len(xfill)))])
                if m == 3 and ks == YPOLL and 'yvec' not in OPT: k.op(f"s_load_dword s{sU2}, s[{sPWS}:{sPWS+1}], s{sU1}")
                if m == 3 and ks == 19 and 'yvec' in OPT:
                    k.op(f"v_mov_b32 v9, s{sU1}")
                    k.vm(f"global_load_dword v10, v9, s[{sPWS}:{sPWS+1}] sc1", "ycnt")
                if m == 3 and ks == YLOAD: y_loads()
                m += 1
    assert not xfill
    k.wait(vm="h27", lg=["wr27_1_1"])
    def wr(t):
        dt2, e = divmod(t, 2)
        return [("lg", f"ds_write_b128 v11, {vr(vA2 + 16*t + 4*g, 4)} offset:{e*32*RROW + dt2*128 + g*32}", f"rw{t}{g}") for g in range(4)]
    for t in range(4):
        dt2, e = divmod(t, 2)
        for ks in range(LASTK, 28):
            mf(ks, dt2, e)
        if t == 2: k.op("s_nop 3")
        if t >= 2: emit(k, wr(t - 2))
    stamp(k, "d_loop")
    k.op(f"v_mov_b32 v10, {hex(f2u(-1.4426950408889634))}")
    k.op(f"v_mul_u32_u24 v8, {RROW}, v5")
    k.op("v_lshl_add_u32 v8, v6, 5, v8")
    k.op(f"v_add_u32 v8, {RED}, v8")
    k.op("v_mul_u32_u24 v9, 1040, v6")
    k.op("v_lshl_add_u32 v9, v5, 1, v9")
    k.op(f"v_add_u32 v9, {YT}, v9")
    emit(k, wr(2))
    emit(k, wr(3))
    k.op("v_mov_b32 v11, 1.0")
    k.wait(lg=k.lgq[-1])
    stamp(k, "t_wr")
    k.op("s_barrier")
    stamp(k, "t_bar")
    for ps in range(2):
        B = 16 + 64 * ps
        for w in range(4):
            for hh in range(2):
                k.lg(f"ds_read_b128 {vr(B + 8*w + 4*hh, 4)}, v8 offset:{w*RW + ps*32*RROW + hh*16}", f"p{ps}_{w}{hh}")
    for ps in range(2):
        B = 16 + 64 * ps if ps == 0 else 80
        N = 112 + 16 * ps + 8
        k.wait(lg=f"p{ps}_31")
        for q in range(4):
            k.op(f"v_pk_add_f32 {vr(B+2*q,2)}, {vr(B+2*q,2)}, {vr(B+8+2*q,2)}")
            k.op(f"v_pk_add_f32 {vr(B+16+2*q,2)}, {vr(B+16+2*q,2)}, {vr(B+24+2*q,2)}")
        for q in range(4):
            k.op(f"v_pk_add_f32 {vr(B+2*q,2)}, {vr(B+2*q,2)}, {vr(B+16+2*q,2)}")
        E = B + 16
        for q in range(4):
            k.op(f"v_pk_mul_f32 {vr(E+2*q,2)}, {vr(B+2*q,2)}, {vr(10,2)} op_sel_hi:[1,0]")
        for q in range(8): k.op(f"v_exp_f32 v{E+q}, v{E+q}")
        for q in range(4): k.op(f"v_pk_mul_f32 {vr(N+2*q,2)}, {vr(N+2*q,2)}, {vr(B+2*q,2)}")
        for q in range(4): k.op(f"v_pk_add_f32 {vr(E+2*q,2)}, {vr(E+2*q,2)}, {vr(10,2)} op_sel:[0,1] op_sel_hi:[1,1]")
        for q in range(8): k.op(f"v_rcp_f32 v{E+q}, v{E+q}")
        k.op("s_nop 0")
        for q in range(4): k.op(f"v_pk_mul_f32 {vr(N+2*q,2)}, {vr(N+2*q,2)}, {vr(E+2*q,2)}")
    stamp(k, "t_silu")
    k.wait(vm="ey")
    k.op("s_barrier")
    stamp(k, "t_ey")
    for ps in range(2):
        for e in range(8):
            if len(k.lgq) >= 14: k.wait(lg=k.lgq[3])
            k.lg(f"ds_read_u16_d16_hi v{160+8*ps+e}, v9 offset:{e*128 + ps*64}", f"y{ps}_{e}")
    for ps in range(2):
        X = 112 + 16 * ps; N = X + 8; Yr = 160 + 8 * ps; T = 144 + 8 * ps
        k.wait(lg=f"y{ps}_7")
        for q in range(4): k.op(f"v_pk_fma_f32 {vr(N+2*q,2)}, {vr(N+2*q,2)}, {vr(Yr+2*q,2)}, {vr(X+2*q,2)}")
        for q in range(4): k.op(f"v_cvt_pk_bf16_f32 v{T+q}, v{N+2*q}, v{N+2*q+1}")
        k.vm(f"buffer_store_dwordx4 {vr(T,4)}, v7, s[{rOUT}:{rOUT+3}], s{78+ps} offen", "ost")
    stamp(k, "d_end")

PP_ROW = 900
PP_K = 0
PP_V = 67 * PP_ROW + 4
def prepass(k):
    if "ppst" in OPT: k.op("s_memtime s[8:9]")
    k.op(f"s_sub_u32 s{sT0}, s{sSLOT}, 28")
    k.op(f"s_lshl_b32 s{sT0}, s{sT0}, 3")
    k.op(f"s_add_u32 s{sI}, s{sT0}, s{sXCD}")
    k.op("v_lshlrev_b32 v1, 4, v0")
    k.op("s_waitcnt lgkmcnt(0)")
    srd(k, rWS, sPWS, (16 << 20) if (STAMPS and 'leak' not in OPT) else WS_USED)
    lab = k.newlabel("Lnolead")
    k.op(f"s_or_b32 s{sT0}, s{sI}, s{sW}")
    k.op(f"s_cmp_lg_u32 s{sT0}, 0")
    k.op(f"s_cbranch_scc1 {lab}")
    k.op("v_lshlrev_b32 v2, 7, v0")
    k.op(f"v_add_u32 v2, {CNT_OFF}, v2")
    k.op("v_mov_b32 v3, 0")
    k.op("s_mov_b32 exec_hi, 0")
    k.op(f"global_store_dword v2, v3, s[{sPWS}:{sPWS+1}] sc1")
    k.op("s_waitcnt vmcnt(0)")
    k.op("v_mov_b32 v2, 1")
    k.op("s_mov_b64 exec, 1")
    k.op(f"global_store_dword v3, v2, s[{sPDBG}:{sPDBG+1}] sc1")
    k.op("s_mov_b64 exec, -1")
    k.label(lab)
    if "ppf" in OPT:
        k.op(f"s_bitcmp1_b32 s{sW}, 1")
        k.op(f"s_cselect_b32 s{rX}, s{sPWU}, s{sPWG}")
        k.op(f"s_cselect_b32 s{rX+1}, s{sPWU+1}, s{sPWG+1}")
        k.op(f"s_and_b32 s{rX+1}, s{rX+1}, 0xffff")
        k.op(f"s_mov_b32 s{rX+2}, {D*F*2}")
        k.op(f"s_mov_b32 s{rX+3}, 0x20000")
        k.op(f"s_sub_u32 s{sT0}, s{sSLOT}, 28")
        k.op(f"s_mul_i32 s{sT0}, s{sT0}, 224")
        k.op(f"s_and_b32 s{sT1}, s{sW}, 1")
        k.op(f"s_lshl_b32 s{sT1}, s{sT1}, 7")
        k.op(f"s_add_u32 s{sT0}, s{sT0}, s{sT1}")
        k.op(f"s_and_b32 s{sT1}, s{sXCD}, 1")
        k.op(f"s_mul_i32 s{sT1}, s{sT1}, 1792")
        k.op(f"s_mov_b32 s{sT2}, {(1 << 32) // 14 + 1}")
        for rnd in range(2):
            k.op(f"v_add_u32 v2, s{sT0}, v0")
            if rnd: k.op("v_add_u32 v2, 64, v2")
            k.op(f"v_mul_hi_u32 v3, v2, s{sT2}")
            k.op("v_mul_u32_u24 v4, 14, v3")
            k.op("v_sub_u32 v4, v2, v4")
            k.op("v_mul_u32_u24 v3, 3584, v3")
            k.op("v_lshl_add_u32 v3, v4, 7, v3")
            k.vm(f"buffer_load_dword a250, v3, s[{rX}:{rX+3}], s{sT1} offen", "pf")
    srd(k, rK, sPK, S * D * 2)
    srd(k, rV, sPV, S * D * 2)
    srd(k, rSK, sPSK, D * 4 * 2)
    k.op("s_mov_b32 exec_hi, 0x00ffffff")
    k.op(f"s_lshl_b32 s{sT0}, s{sI}, 6")
    k.op(f"s_add_u32 s{sT0}, s{sT0}, s{sW}")
    k.op(f"s_sub_u32 s{sT1}, s{sT0}, 3")
    k.op(f"s_mul_i32 s{sT1}, s{sT1}, 896")
    k.op(f"s_mul_i32 s{sT2}, s{sW}, {PP_ROW}")
    k.op(f"s_add_u32 m0, s{sT2}, {PP_K}")
    k.op(f"v_add_u32 v2, s{sT1}, v1")
    for n in range(17):
        if n == 16:
            lab = k.newlabel("Lpk")
            k.op(f"s_cmp_eq_u32 s{sW}, 3")
            k.op(f"s_cbranch_scc1 {lab}")
            k.op(f"buffer_load_dwordx4 v2, s[{rK}:{rK+3}], 0 offen lds")
            k.label(lab)
        else:
            k.vm(f"buffer_load_dwordx4 v2, s[{rK}:{rK+3}], 0 offen lds", "k")
            k.op(f"s_add_u32 m0, m0, {4*PP_ROW}")
            k.op(f"v_add_u32 v2, {4*896}, v2")
    k.op(f"s_mul_i32 s{sT1}, s{sT0}, 896")
    k.op(f"s_add_u32 m0, s{sT2}, {PP_V}")
    k.op("s_nop 0")
    for n in range(16):
        k.vm(f"buffer_load_dwordx4 v1, s[{rV}:{rV+3}], s{sT1} offen lds", "v")
        if n < 15:
            k.op(f"s_add_u32 m0, m0, {4*PP_ROW}")
            k.op(f"s_add_u32 s{sT1}, s{sT1}, {4*896}")
    k.op("s_mov_b32 exec_hi, -1")
    k.op(f"s_mov_b32 s{sMASK}, 0xffff0000")
    k.op("v_and_b32 v2, 3, v0")
    k.op("v_lshrrev_b32 v3, 5, v0")
    k.op("v_lshl_add_u32 v2, v3, 2, v2")
    k.op("v_bfe_u32 v3, v0, 2, 3")
    k.op(f"v_mul_u32_u24 v4, {8*PP_ROW}, v2")
    k.op("v_lshl_add_u32 v4, v3, 2, v4")
    k.op(f"s_lshl_b32 s{sT0}, s{sW}, 5")
    k.op(f"v_add_u32 v4, s{sT0}, v4")
    k.op(f"v_add_u32 v8, {PP_V}, v4")
    k.op("v_lshlrev_b32 v5, 4, v3")
    k.op(f"s_lshl_b32 s{sT0}, s{sW}, 7")
    k.op(f"v_add_u32 v5, s{sT0}, v5")
    k.op("v_lshlrev_b32 v6, 13, v3")
    k.op(f"s_lshl_b32 s{sT0}, s{sW}, 16")
    k.op(f"v_add_u32 v6, s{sT0}, v6")
    k.op("v_lshlrev_b32 v7, 4, v2")
    k.op("v_sub_u32 v6, v6, v7")
    k.op(f"s_lshl_b32 s{sT0}, s{sI}, 7")
    k.op(f"s_sub_u32 s{sT0}, {U_OFF + (2047 - 7) * 2}, s{sT0}")
    k.op(f"v_add_u32 v6, s{sT0}, v6")
    for it in range(7):
        k.vm(f"buffer_load_dwordx4 {vr(100 + 4*it, 4)}, v5, s[{rSK}:{rSK+3}], 0 offen offset:{it*512}", "sk")
    if "ppst" in OPT: k.op("s_memtime s[10:11]")
    k.wait_all()
    if "ppst" in OPT: k.op("s_memtime s[12:13]")
    k.op("s_barrier")
    RAW = [16, 176]
    def reads(it):
        base = RAW[it % 2]; coff = it * 128
        for j in range(11):
            k.lg(f"ds_read_b32 v{base+j}, v4 offset:{PP_K + j*PP_ROW + coff}", f"r{it}")
        for j in range(8):
            k.lg(f"ds_read_b32 v{base+11+j}, v8 offset:{j*PP_ROW + coff}", f"r{it}")
    reads(0)
    for it in range(7):
        KR = RAW[it % 2]; VR = KR + 11
        sk = 100 + 4 * it
        k.op(f"v_lshlrev_b32 v64, 16, v{sk}");   k.op(f"v_lshlrev_b32 v65, 16, v{sk+2}")
        k.op(f"v_and_b32 v66, 0xffff0000, v{sk}"); k.op(f"v_and_b32 v67, 0xffff0000, v{sk+2}")
        k.op(f"v_lshlrev_b32 v68, 16, v{sk+1}"); k.op(f"v_lshlrev_b32 v69, 16, v{sk+3}")
        k.op(f"v_and_b32 v70, 0xffff0000, v{sk+1}"); k.op(f"v_and_b32 v71, 0xffff0000, v{sk+3}")
        k.wait(lg=f"r{it}")
        for j in range(11):
            k.op(f"v_lshlrev_b32 v{40+2*j}, 16, v{KR+j}")
            k.op(f"v_and_b32 v{41+2*j}, s{sMASK}, v{KR+j}")
        for j in range(8):
            k.op(f"v_lshlrev_b32 v{72+2*j}, 16, v{VR+j}")
            k.op(f"v_and_b32 v{73+2*j}, s{sMASK}, v{VR+j}")
        if it + 1 < 7: reads(it + 1)
        for t in range(8):
            k.op(f"v_pk_mul_f32 {vr(130+2*t,2)}, {vr(40+2*(t+3),2)}, {vr(64,2)}")
        for j in range(1, 4):
            for t in range(8):
                o = 130 + 2 * t
                k.op(f"v_pk_fma_f32 {vr(o,2)}, {vr(40+2*(t+3-j),2)}, {vr(64+2*j,2)}, {vr(o,2)}")
        for t in range(8):
            o = 130 + 2 * t
            k.op(f"v_pk_mul_f32 {vr(o,2)}, {vr(o,2)}, {vr(72+2*t,2)}")
        O = 150 + 8 * (it % 2)
        for q in range(4):
            k.op(f"v_cvt_pk_bf16_f32 v{O+q}, v{130+2*(7-2*q)}, v{130+2*(6-2*q)}")
            k.op(f"v_cvt_pk_bf16_f32 v{O+4+q}, v{131+2*(7-2*q)}, v{131+2*(6-2*q)}")
        k.op(f"s_mov_b32 s{sT0}, {it * 64 * 4096}")
        k.op(f"s_mov_b32 s{sT1}, {it * 64 * 4096 + 4096}")
        k.vm(f"buffer_store_dwordx4 {vr(O,4)}, v6, s[{rWS}:{rWS+3}], s{sT0} offen sc1", "ust")
        k.vm(f"buffer_store_dwordx4 {vr(O+4,4)}, v6, s[{rWS}:{rWS+3}], s{sT1} offen sc1", "ust")
    if "ppst" in OPT: k.op("s_memtime s[14:15]")
    k.wait_all()
    if "ppst" in OPT: k.op("s_memtime s[72:73]")
    k.op("s_barrier")
    lab = k.newlabel("Lpsig")
    k.op(f"s_cmp_lg_u32 s{sW}, 0")
    k.op(f"s_cbranch_scc1 {lab}")
    k.op("v_mov_b32 v9, 0")
    spin_until(k, 9, 8, sPDBG, 1)
    k.label(lab)
    cnt_addr(k, 9, idx=UCNT)
    signal(k, 9, 8)
    if "ppst" in OPT:
        k.op("s_waitcnt vmcnt(0) lgkmcnt(0)")
        k.op("s_memtime s[74:75]")
        k.op("s_waitcnt lgkmcnt(0)")
        k.op("s_lshl_b32 s4, s2, 2"); k.op(f"s_add_u32 s4, s4, s{sW}"); k.op("s_lshl_b32 s4, s4, 7"); k.op(f"s_add_u32 s4, s4, {STAMP_OFF}")
        k.op("v_mov_b32 v1, 0"); k.op("s_mov_b64 exec, 1")
        for i, r in enumerate((8, 10, 12, 14, 72, 74)):
            k.op(f"v_mov_b32 v2, s{r}")
            k.op(f"buffer_store_dword v2, v1, s[{rWS}:{rWS+3}], s4 offen offset:{4*i}")
        k.op("s_mov_b64 exec, -1")

def kd(name, vgpr=512, acc=256):
    return f""".section .rodata,"a"
.p2align 6
.amdhsa_kernel {name}
  .amdhsa_next_free_vgpr {vgpr}
  .amdhsa_next_free_sgpr 102
  .amdhsa_accum_offset {acc}
  .amdhsa_group_segment_fixed_size 0
  .amdhsa_kernarg_size 104
  .amdhsa_user_sgpr_count 2
  .amdhsa_user_sgpr_kernarg_segment_ptr 1
  .amdhsa_system_sgpr_workgroup_id_x 1
  .amdhsa_float_denorm_mode_32 3
.end_amdhsa_kernel
"""

def build():
    k = K()
    prologue(k, 32768)
    start_main(k)
    gemm1_loop(k)
    gelu_phase(k)
    wr1 = conv_phase(k)
    gemm2_phase(k, wr1)
    for o in OPT:
        if o.startswith("cyc"):
            n = int(o[3:])
            k.op(f"s_add_u32 s10, s73, {n}")
            k.label("L_untilc")
            k.op("s_memtime s[8:9]")
            k.op("s_waitcnt lgkmcnt(0)")
            k.op("s_sub_u32 s11, s10, s8")
            k.op("s_cmp_gt_i32 s11, 0")
            k.op("s_cbranch_scc1 L_untilc")
        if o.startswith("until"):
            n = int(o[5:])
            k.op(f"s_add_u32 s10, s73, {n}")
            k.label("L_until")
            k.op("s_memrealtime s[8:9]")
            k.op("s_waitcnt lgkmcnt(0)")
            k.op("s_sub_u32 s11, s10, s8")
            k.op("s_cmp_gt_i32 s11, 0")
            k.op("s_cbranch_scc1 L_until")
        if o.startswith("delay"):
            n = int(o[5:])
            k.op("s_memtime s[8:9]")
            k.op("s_waitcnt lgkmcnt(0)")
            k.op(f"s_add_u32 s10, s8, {n}")
            k.label("L_delay")
            k.op("s_memtime s[8:9]")
            k.op("s_waitcnt lgkmcnt(0)")
            k.op("s_sub_u32 s11, s10, s8")
            k.op("s_cmp_gt_i32 s11, 0")
            k.op("s_cbranch_scc1 L_delay")
    stamp_flush(k)
    k.op("s_endpgm")
    k.label("L_pre")
    k.vmq = []; k.lgq = []
    prepass(k)
    k.label("L_exit")
    name = NAME + "_kernel"
    header = open("cdna_kernels/" + NAME + ".s.ref").read().split("; Override launch")[0]
    txt = header + f"; @launch grid=(256,1,1) block=(256,1,1) lds={LDS_TOTAL}\n"
    txt += '.amdgcn_target "amdgcn-amd-amdhsa--gfx950"\n.text\n'
    txt += f".globl {name}\n.p2align 8\n.type {name},@function\n{name}:\n"
    txt += k.text() + "s_endpgm\n" + kd(name)
    return txt

if __name__ == "__main__":
    if len(sys.argv) > 2 and sys.argv[2].startswith("stamps"):
        STAMPS = True
        if "=" in sys.argv[2]: STAMPSET = sys.argv[2].split("=")[1].split(",")
    if len(sys.argv) > 3: OPT.update(sys.argv[3].split(","))
    txt = build()
    check_hazards(txt)
    open(sys.argv[1], "w").write(txt)
    if STAMPS: print("stamps:", stamped)
```

```python
import sys, struct
from asmlib import *

NAME = "recurrent_scan__ssm_conv_h3__geglu_ffn__prompt"
S, D, F = 2048, 448, 1792
OPT = set()

H_OFF = 0
U_OFF = H_OFF + 64 * 112 * 1024
Y_OFF = U_OFF + D * 4096
ST_OFF = Y_OFF + D * 4096
CNT_OFF = ST_OFF + S * 8
WS_USED = CNT_OFF + 32 * 128
HCNT, YCNT, UCNT = 0, 16, 24

sPQ, sPK, sPV, sPSK, sPSSM, sPD, sPBX, sPWG = 16, 18, 20, 22, 24, 26, 28, 30
sPWU, sPWD, sPOUT, sPDBG = 32, 34, 36, 38
sPWS = 40
rX, rW, rWS, rWD, rSSM, rOUT, rD = 44, 48, 52, 56, 60, 64, 68
rK, rV, rSK = 48, 56, 60
sT0, sT1, sT2, sT3 = 4, 5, 6, 7
sW, sI, sJ, sWSO, sWM0, sSLOT, sXCD, sONES, sMASK, sWGM = 80, 81, 82, 83, 84, 85, 86, 87, 88, 89
sTT, sDT, sWDS, sWDM, sCH = 90, 91, 92, 93, 94
sHST = 95
sWDG = 75
sWDM4 = 42
sROT = 43
sHG = 74
sU0, sU1, sU2, sU3 = 96, 97, 98, 99

SLOT_SZ = 34048
XOFF = 17024
XS = SLOT_SZ
XROW = 912
SLOT = [0, SLOT_SZ, 2 * SLOT_SZ, 3 * SLOT_SZ]
LDS_TOTAL = 163840
HC_STRIDE = 4160
HC_CH = 4 * HC_STRIDE
UR_CH = 4608
WDST = 0
WD_KS = 14
WD_WAVE = WD_KS * 2048
def stg_const(s_):
    g = s_ >> 2
    return g * SLOT_SZ + (s_ & 3) * 2048 if g < 3 else 3 * SLOT_SZ + (s_ & 1) * 2048
HC = 3 * SLOT_SZ + 4 * 4096
UR = HC + 2 * HC_CH
XCH = HC
YT = UR + 2 * UR_CH
assert YT + 8320 <= LDS_TOTAL or True
YT = HC + 16384
RED = 0

vX = 16
vACC = 128

STAMPS = False
STAMP_OFF = 12 << 20
STAMPSET = None
POOL = [8, 10, 72, 18, 20, 22, 28, 16, 24, 26, 30, 32, 34, 36, 12, 14]
stamped = []
def stamp(k, name=""):
    if not STAMPS: return
    if STAMPSET is not None and not any((name == p[:-1]) if p.endswith("$") else name.startswith(p) for p in STAMPSET): return
    i = len(stamped)
    assert i < len(POOL)
    stamped.append(name)
    k.op(f"{'s_memrealtime' if 'rtst' in OPT else 's_memtime'} s[{POOL[i]}:{POOL[i]+1}]")
def stamp_flush_dbg(k):
    wg = int([o for o in OPT if o.startswith("dbgwg")][0][5:])
    lab = k.newlabel("Ldbg")
    k.op("s_waitcnt vmcnt(0) lgkmcnt(0)")
    k.op(f"s_cmp_lg_u32 s2, {wg}"); k.op(f"s_cbranch_scc1 {lab}")
    k.op(f"s_cmp_lg_u32 s{sW}, 0"); k.op(f"s_cbranch_scc1 {lab}")
    k.op("s_mov_b64 exec, 1")
    for i in range(1, len(stamped)):
        k.op(f"s_sub_u32 s4, s{POOL[i]}, s{POOL[0]}")
        k.op(f"v_mov_b32 v2, s4")
        k.op(f"v_mov_b32 v1, {4*i}")
        k.op(f"global_store_dword v1, v2, s[{sPDBG}:{sPDBG+1}]")
    k.op("s_mov_b64 exec, -1")
    k.label(lab)

def stamp_leak(k):
    KL = 3
    k.op("s_waitcnt vmcnt(0) lgkmcnt(0)")
    k.op(f"s_sub_u32 s4, s{POOL[1]}, s{POOL[0]}")
    k.op(f"s_mul_i32 s4, s4, {KL}")
    k.op("s_memtime s[6:7]")
    k.op("s_waitcnt lgkmcnt(0)")
    k.op("s_add_u32 s4, s4, s6")
    k.label("L_leak")
    k.op("s_memtime s[6:7]")
    k.op("s_waitcnt lgkmcnt(0)")
    k.op("s_sub_u32 s5, s4, s6")
    k.op("s_cmp_gt_i32 s5, 0")
    k.op("s_cbranch_scc1 L_leak")

def stamp_flush(k):
    if not STAMPS: return
    if "leak" in OPT: return stamp_leak(k)
    if any(o.startswith("dbgwg") for o in OPT): return stamp_flush_dbg(k)
    k.op("s_waitcnt vmcnt(0) lgkmcnt(0)")
    k.op("s_memrealtime s[42:43]")
    k.op("s_waitcnt lgkmcnt(0)")
    k.op("s_mov_b32 s101, s42")
    k.op("s_lshl_b32 s4, s2, 2")
    k.op(f"s_add_u32 s4, s4, s{sW}")
    k.op("s_lshl_b32 s4, s4, 7")
    k.op(f"s_add_u32 s4, s4, {STAMP_OFF}")
    k.op("v_mov_b32 v1, 0")
    k.op("s_mov_b64 exec, 1")
    for i in range(len(stamped)):
        k.op(f"v_mov_b32 v2, s{POOL[i]}")
        k.op(f"buffer_store_dword v2, v1, s[{rWS}:{rWS+3}], s4 offen offset:{4*i}")
    k.op("v_mov_b32 v2, s100")
    k.op(f"buffer_store_dword v2, v1, s[{rWS}:{rWS+3}], s4 offen offset:{4*30}")
    k.op("v_mov_b32 v2, s101")
    k.op(f"buffer_store_dword v2, v1, s[{rWS}:{rWS+3}], s4 offen offset:{4*31}")
    k.op("s_mov_b64 exec, -1")

def f2u(x):
    return struct.unpack("<I", struct.pack("<f", x))[0]

def srd(k, r, ptr, nbytes):
    k.op(f"s_mov_b32 s{r}, s{ptr}")
    k.op(f"s_and_b32 s{r+1}, s{ptr+1}, 0xffff")
    k.op(f"s_mov_b32 s{r+2}, {nbytes}")
    k.op(f"s_mov_b32 s{r+3}, 0x20000")

def emit(k, items):
    for it in items:
        if it[0] == "op": k.op(it[1])
        elif it[0] == "vm": k.vm(it[1], it[2])
        elif it[0] == "lg": k.lg(it[1], it[2])
        elif it[0] == "fn": it[1]()

def capture(fn, *args):
    t = K()
    fn(t, *args)
    assert not t.vmq and not t.lgq
    return [("op", l) for l in t.L]

def interleave(k, main, fill, every, start=0):
    fill = list(fill)
    for n, it in enumerate(main):
        emit(k, [it])
        if fill and n >= start and (n - start) % every == every - 1:
            emit(k, fill.pop(0))
    for g in fill: emit(k, g)

def cnt_addr(k, vreg, idx_sgpr=None, idx=0):
    if idx_sgpr is None:
        k.op(f"v_mov_b32 v{vreg}, {CNT_OFF + idx * 128}")
    else:
        k.op(f"s_lshl_b32 s{sT0}, s{idx_sgpr}, 7")
        k.op(f"s_add_u32 s{sT0}, s{sT0}, {CNT_OFF + idx * 128}")
        k.op(f"v_mov_b32 v{vreg}, s{sT0}")

def spin_until(k, vaddr, vtmp, base, target, cmp="ge"):
    lab, done = k.newlabel("Lspin"), k.newlabel("Lspun")
    if "cntspin" in OPT:
        slot = {32: 4, 14: 5, 1: 7}[target] if vaddr != 9 or target != 32 else 4
        if getattr(k, "spin_tag", None): slot = k.spin_tag
        k.op(f"v_mov_b32 v{vtmp}, 1")
        k.op("s_mov_b64 exec, 1")
        k.op(f"v_mov_b32 v190, {4*slot}")
        k.op(f"global_atomic_add v190, v{vtmp}, s[{sPDBG}:{sPDBG+1}]")
        k.op("s_mov_b64 exec, -1")
    k.op(f"s_mov_b32 s{sT1}, 0x40000")
    k.label(lab)
    k.op(f"global_load_dword v{vtmp}, v{vaddr}, s[{base}:{base+1}] sc1")
    k.op("s_waitcnt vmcnt(0)")
    k.op(f"v_readfirstlane_b32 s{sT2}, v{vtmp}")
    k.op(f"s_sub_u32 s{sT1}, s{sT1}, 1")
    k.op(f"s_cmp_ge_u32 s{sT2}, {target}")
    k.op(f"s_cbranch_scc1 {done}")
    k.op("s_sleep %d" % int(([o for o in OPT if o.startswith("slp")] or ["slp1"])[0][3:]))
    k.op(f"s_cmp_lg_u32 s{sT1}, 0")
    k.op(f"s_cbranch_scc1 {lab}")
    k.label(done)
    k.vmq = []

def check_or_spin(k, vval, vaddr, base, target):
    done = k.newlabel("Lok")
    k.op(f"v_readfirstlane_b32 s{sT2}, v{vval}")
    k.op(f"s_cmp_ge_u32 s{sT2}, {target}")
    k.op(f"s_cbranch_scc1 {done}")
    q = list(k.vmq)
    spin_until(k, vaddr, vval, base, target)
    k.vmq = q
    k.label(done)

def signal(k, vaddr, vone):
    lab = k.newlabel("Lsig")
    k.op(f"s_cmp_lg_u32 s{sW}, 0")
    k.op(f"s_cbranch_scc1 {lab}")
    k.op(f"v_mov_b32 v{vone}, 1")
    k.op("s_mov_b64 exec, 1")
    k.op(f"global_atomic_add v{vaddr}, v{vone}, s[{sPWS}:{sPWS+1}] sc1")
    k.op("s_mov_b64 exec, -1")
    k.label(lab)

def prologue(k, codebytes):
    if any(o.startswith("cyc") for o in OPT):
        k.op("s_memtime s[72:73]")
        k.op("s_waitcnt lgkmcnt(0)")
        k.op("s_mov_b32 s73, s72")
    if any(o.startswith("until") for o in OPT):
        k.op("s_memrealtime s[72:73]")
        k.op("s_waitcnt lgkmcnt(0)")
        k.op("s_mov_b32 s73, s72")
    k.op("s_getpc_b64 s[12:13]")
    k.op("s_load_dwordx16 s[16:31], s[0:1], 0")
    k.op("s_load_dwordx8 s[32:39], s[0:1], 64")
    k.op("s_load_dwordx2 s[40:41], s[0:1], 96")
    k.op("v_lshrrev_b32 v1, 6, v0")
    k.op("v_and_b32 v0, 63, v0")
    k.op("s_cmp_ge_u32 s2, 256")
    k.op(f"v_readfirstlane_b32 s{sW}, v1")
    k.op("s_cbranch_scc1 L_exit")
    if "nocodepf" not in OPT:
        k.op("s_lshr_b32 s14, s2, 3")
        k.op("s_lshl_b32 s14, s14, 2")
        k.op(f"s_add_u32 s14, s14, s{sW}")
        k.op("s_mul_i32 s14, s14, 384")
        k.op("s_add_u32 s12, s12, s14")
        k.op("s_addc_u32 s13, s13, 0")
        k.op("v_lshlrev_b32 v2, 7, v0")
        k.op("s_mov_b64 exec, 7")
        k.vm("global_load_dword a250, v2, s[12:13]", "code")
        k.op("s_mov_b64 exec, -1")
        assert codebytes <= 128 * 384
    if STAMPS and not any(o.startswith("dbgwg") for o in OPT) and "leak" not in OPT:
        k.op("s_memrealtime s[42:43]")
        k.op("s_waitcnt lgkmcnt(0)")
        k.op("s_mov_b32 s100, s42")
    k.op(f"s_and_b32 s{sXCD}, s2, 7")
    k.op(f"s_lshr_b32 s{sSLOT}, s2, 3")
    k.op(f"s_cmp_ge_u32 s{sSLOT}, 28")
    k.op("s_cbranch_scc1 L_pre")

def wdma(c, e):
    out = []
    if e % 4 == 0:
        out.append(("op", f"s_add_u32 m0, s{sWM0}, {SLOT[c % 4] + e * 1056}"))
    out.append(("op", f"s_add_u32 s{sT3}, s{sWSO}, {(64 * c + e) * 3584 - (e % 4) * 1056}"))
    out.append(("vm", f"buffer_load_dwordx4 v2, s[{rW}:{rW+3}], s{sT3} offen offset:{(e % 4) * 1056} lds", f"w{c}"))
    return out

def start_main(k):
    k.op(f"s_mul_i32 s{sT0}, s{sSLOT}, 37")
    k.op(f"s_lshr_b32 s{sT0}, s{sT0}, 8")
    k.op(f"s_mul_i32 s{sT1}, s{sT0}, 7")
    k.op(f"s_sub_u32 s{sDT}, s{sSLOT}, s{sT1}")
    k.op(f"s_lshr_b32 s{sT2}, s{sXCD}, 1")
    k.op(f"s_lshl_b32 s{sT2}, s{sT2}, 2")
    k.op(f"s_add_u32 s{sI}, s{sT2}, s{sT0}")
    k.op(f"s_lshl_b32 s{sTT}, s{sXCD}, 2")
    k.op(f"s_add_u32 s{sTT}, s{sTT}, s{sT0}")
    k.op("v_lshlrev_b32 v1, 4, v0")
    k.op(f"s_lshl_b32 s{sU0}, s{sI}, 2")
    k.op(f"s_add_u32 s{sU0}, s{sU0}, s{sW}")
    k.op(f"s_mul_i32 s{sU0}, s{sU0}, {32*896}")
    k.op(f"s_mul_i32 s{sU1}, s{sW}, {32*XROW}")
    k.op(f"s_add_u32 s{sU1}, s{sU1}, {XS}")
    k.op(f"s_mul_i32 s{sU2}, s{sDT}, 9")
    k.op(f"s_lshr_b32 s{sU2}, s{sU2}, 1")
    k.op(f"s_mul_i32 s{sT1}, s{sU2}, 896")
    k.op(f"s_mul_i32 s{sT2}, s{sU2}, {XROW}")
    k.op(f"s_add_u32 s{sT1}, s{sT1}, s{sU0}")
    k.op(f"s_add_u32 s{sT2}, s{sT2}, s{sU1}")
    k.op(f"s_add_u32 s{sU3}, s{sU0}, {32*896}")
    k.op(f"s_and_b32 s{sT0}, s{sXCD}, 1")
    k.op(f"s_mul_i32 s{sJ}, s{sT0}, 7")
    k.op(f"s_add_u32 s{sJ}, s{sJ}, s{sDT}")
    k.op("v_lshrrev_b32 v6, 4, v0")
    k.op("v_lshlrev_b32 v6, 6, v6")
    k.op("v_bfe_u32 v7, v0, 1, 3")
    k.op("v_add_u32 v6, v6, v7")
    k.op("v_mul_u32_u24 v6, 3584, v6")
    k.op("v_and_b32 v7, 1, v0")
    k.op("v_lshl_add_u32 v5, v7, 7, v6")
    k.op(f"s_and_b32 s{sT0}, s{sI}, 3")
    k.op(f"s_lshl_b32 s{sT0}, s{sT0}, 1")
    k.op(f"s_lshr_b32 s{sWDG}, s{sW}, 1")
    k.op(f"s_add_u32 s{sT0}, s{sT0}, s{sWDG}")
    k.op(f"s_mul_i32 s{sT0}, s{sT0}, {8*3584}")
    k.op(f"s_lshl_b32 s{sWDG}, s{sJ}, 8")
    k.op(f"s_add_u32 s{sWDG}, s{sWDG}, s{sT0}")
    stamp(k, "b_pre")
    k.op("s_waitcnt lgkmcnt(0)")
    if "tlb" in OPT:
        for i, p in enumerate((sPWG, sPWU, sPWD, sPSSM, sPOUT, sPD)):
            k.op(f"s_load_dword s{96 if False else 100 if not STAMPS else 15}, s[{p}:{p+1}], 0") if False else None
        for p in (sPWG, sPWU, sPWD, sPSSM, sPOUT):
            k.op(f"s_load_dword s15, s[{p}:{p+1}], 0x0")
        for off in (H_OFF, 2 << 20, 4 << 20, 6 << 20, U_OFF + (1 << 20), Y_OFF + (1 << 20)):
            k.op(f"s_mov_b32 s14, {off}")
            k.op(f"s_load_dword s15, s[{sPWS}:{sPWS+1}], s14")
    srd(k, rX, sPQ, S * D * 2)
    k.op(f"s_bitcmp1_b32 s{sW}, 0")
    k.op(f"s_cselect_b32 s{rW}, s{sPWU}, s{sPWG}")
    k.op(f"s_cselect_b32 s{rW+1}, s{sPWU+1}, s{sPWG+1}")
    k.op(f"s_and_b32 s{rW+1}, s{rW+1}, 0xffff")
    k.op(f"s_mov_b32 s{rW+2}, {D*F*2}")
    k.op(f"s_mov_b32 s{rW+3}, 0x20000")
    stamp(k, "start")
    if "earlypf" in OPT:
        k.op("s_mov_b32 exec_hi, 0")
        k.vm(f"buffer_load_dword a250, v5, s[{rW}:{rW+3}], s{sWDG} offen", "pf")
    k.op("s_mov_b32 exec_hi, 0x00ffffff")
    k.op(f"s_mov_b32 s{sT0}, 32")
    lx = k.newlabel("Lxd")
    k.label(lx)
    k.op(f"s_mov_b32 m0, s{sT2}")
    k.op(f"s_add_u32 s{sT2}, s{sT2}, {XROW}")
    k.op(f"buffer_load_dwordx4 v1, s[{rX}:{rX+3}], s{sT1} offen lds")
    k.op(f"s_add_u32 s{sT1}, s{sT1}, 896")
    k.op(f"s_cmp_eq_u32 s{sT1}, s{sU3}")
    k.op(f"s_cselect_b32 s{sT1}, s{sU0}, s{sT1}")
    k.op(f"s_cselect_b32 s{sT2}, s{sU1}, s{sT2}")
    k.op(f"s_sub_u32 s{sT0}, s{sT0}, 1")
    k.op(f"s_cmp_lg_u32 s{sT0}, 0")
    k.op(f"s_cbranch_scc1 {lx}")
    for n in range(32): k.vmq.append("x")
    k.op("s_mov_b32 exec_hi, -1")
    stamp(k, "a_xiss")
    k.op("v_lshrrev_b32 v10, 4, v0")
    k.op(f"v_mul_u32_u24 v2, {16*3584}, v10")
    k.op("v_and_b32 v11, 15, v0")
    k.op("v_lshl_add_u32 v2, v11, 4, v2")
    k.op(f"s_lshr_b32 s{sT0}, s{sW}, 1")
    k.op(f"s_lshl_b32 s{sT0}, s{sT0}, 3")
    k.op(f"s_mul_i32 s{sWSO}, s{sT0}, 3584")
    k.op(f"s_lshl_b32 s{sT1}, s{sJ}, 8")
    k.op(f"s_add_u32 s{sWSO}, s{sWSO}, s{sT1}")
    k.op(f"s_mul_i32 s{sWM0}, s{sT0}, 1056")
    k.op(f"s_and_b32 s{sT1}, s{sW}, 1")
    k.op(f"s_mul_i32 s{sT1}, s{sT1}, {XOFF}")
    k.op(f"s_add_u32 s{sWM0}, s{sWM0}, s{sT1}")
    for e in range(8): emit(k, wdma(0, e))
    stamp(k, "a_issued")
    k.op(f"s_mul_i32 s{sWGM}, s{sXCD}, 28")
    k.op(f"s_add_u32 s{sWGM}, s{sWGM}, s{sSLOT}")
    srd(k, rWS, sPWS, (16 << 20) if (STAMPS and 'leak' not in OPT) else WS_USED)
    srd(k, rWD, sPWD, F * D * 2)
    srd(k, rSSM, sPSSM, D * S * 2)
    srd(k, rOUT, sPOUT, S * D * 2)
    srd(k, rD, sPD, D * 2)
    k.op("v_and_b32 v11, 1, v10")
    k.op(f"v_mul_u32_u24 v3, {XOFF}, v11")
    k.op("v_lshrrev_b32 v11, 5, v0")
    k.op("v_lshlrev_b32 v12, 3, v11")
    k.op("v_bfe_u32 v13, v0, 2, 2")
    k.op("v_add_u32 v12, v12, v13")
    k.op("v_mul_u32_u24 v12, 1056, v12")
    k.op("v_add_u32 v3, v3, v12")
    k.op("v_and_b32 v13, 3, v0")
    k.op("v_lshl_add_u32 v3, v13, 3, v3")
    k.op(f"v_add_u32 v14, {2*SLOT_SZ}, v3")
    k.op("v_and_b32 v13, 31, v0")
    k.op(f"s_lshl_b32 s{sT0}, s{sW}, 5")
    k.op(f"v_add_u32 v13, s{sT0}, v13")
    k.op(f"v_mul_u32_u24 v15, {XROW}, v13")
    k.op("v_lshl_add_u32 v15, v11, 4, v15")
    k.op(f"v_add_u32 v15, {XS}, v15")
    k.op(f"s_mov_b32 s{sONES}, 0x3f803f80")
    k.op(f"s_mov_b32 s{sMASK}, 0xffff0000")
    for a in range(8): k.op(f"v_mov_b32 v{6+a}, 0")
    k.wait(vm="x")
    stamp(k, "a_xarr")
    def st(n):
        return [("op", f"v_dot2_f32_bf16 v{6 + n % 4}, v{vX+n}, s{sONES}, v{6 + n % 4}"),
                ("op", f"v_dot2_f32_bf16 v{10 + n % 4}, v{vX+n}, v{vX+n}, v{10 + n % 4}")]
    for ks in range(14):
        k.lg(f"ds_read_b128 {vr(vX + 4 * ks, 4)}, v15 offset:{32 * ks}", f"x{ks}")
    for ks in range(14, 28):
        k.wait(lg=f"x{ks-14}")
        k.lg(f"ds_read_b128 {vr(vX + 4 * ks, 4)}, v15 offset:{32 * ks}", f"x{ks}")
        for q in range(4): emit(k, st(4 * (ks - 14) + q))
        if ks == 15 and "nopf" not in OPT and "w1late" not in OPT:
            k.op(f"s_add_u32 s{sWDG}, s{sWDG}, {128*3584}")
            k.vm(f"buffer_load_dword a250, v5, s[{rW}:{rW+3}], s{sWDG} offen", "pf")
    k.wait(lg="x27")
    k.op("v_mov_b32 v15, v5")
    k.op("s_barrier")
    stamp(k, "a_xreg")
    main = []
    for n in range(56, 112): main += st(n)
    fill = [wdma(1, e) for e in range(8)]
    if "w1late" in OPT and "nopf" not in OPT:
        fill.append([("op", f"s_add_u32 s{sWDG}, s{sWDG}, {128*3584}"),
                     ("vm", f"buffer_load_dword a250, v15, s[{rW}:{rW+3}], s{sWDG} offen", "pf")])
    if "nopf" not in OPT:
        fill.append([("op", f"s_add_u32 s{sWDG}, s{sWDG}, {256*3584}"), ("op", "s_mov_b64 exec, 0xffff"),
                        ("vm", f"buffer_load_dword a250, v15, s[{rW}:{rW+3}], s{sWDG} offen", "pf"), ("op", "s_mov_b64 exec, -1")])
    if "w1late" in OPT:
        emit(k, main)
        late = fill
    else:
        interleave(k, main, fill, 11)
        late = []
    stamp(k, "a_dot")
    k.op("s_nop 2")
    k.op("v_add_f32 v6, v6, v7"); k.op("v_add_f32 v8, v8, v9")
    k.op("v_add_f32 v10, v10, v11"); k.op("v_add_f32 v12, v12, v13")
    k.op("v_add_f32 v6, v6, v8"); k.op("v_add_f32 v10, v10, v12")
    k.op("v_mov_b32 v7, v6"); k.op("v_mov_b32 v11, v10")
    k.op("s_nop 1")
    k.op("v_permlane32_swap_b32 v6, v7"); k.op("v_permlane32_swap_b32 v10, v11")
    k.op("s_nop 1")
    k.op("v_add_f32 v6, v6, v7"); k.op("v_add_f32 v10, v10, v11")
    k.op(f"v_mul_f32 v6, {hex(f2u(1.0/448))}, v6")
    k.op(f"v_mul_f32 v10, {hex(f2u(1.0/448))}, v10")
    k.op("v_fma_f32 v10, -v6, v6, v10")
    k.op("v_max_f32 v10, 0, v10")
    k.op("v_cvt_pk_bf16_f32 v7, v6, v10")
    k.op("v_lshlrev_b32 v6, 16, v7")
    k.op(f"v_and_b32 v10, s{sMASK}, v7")
    k.op(f"v_add_f32 v10, {hex(f2u(1e-5))}, v10")
    k.op("v_cvt_pk_bf16_f32 v10, v10, v10")
    k.op("v_lshlrev_b32 v10, 16, v10")
    k.op("v_sqrt_f32 v10, v10")
    k.op("s_nop 0")
    k.op("v_cvt_pk_bf16_f32 v10, v10, v10")
    k.op("v_lshlrev_b32 v10, 16, v10")
    k.op("v_rcp_f32 v4, v10")
    k.op("s_nop 0")
    LATE[:] = late
    k.op("v_mul_f32 v5, v6, v4")
    k.op("v_sub_f32 v5, 0, v5")
    lab = k.newlabel("Lnost")
    k.op(f"s_cmp_lg_u32 s{sJ}, 0")
    k.op(f"s_cbranch_scc1 {lab}")
    k.op(f"s_lshl_b32 s{sT0}, s{sI}, 2")
    k.op(f"s_add_u32 s{sT0}, s{sT0}, s{sW}")
    k.op(f"s_lshl_b32 s{sT0}, s{sT0}, 8")
    k.op(f"s_add_u32 s{sT0}, s{sT0}, {ST_OFF}")
    k.op("v_lshlrev_b32 v6, 3, v0")
    k.op("s_mov_b32 exec_hi, 0")
    k.op(f"buffer_store_dwordx2 v[4:5], v6, s[{rWS}:{rWS+3}], s{sT0} offen sc1")
    k.op("s_mov_b32 exec_hi, -1")
    k.label(lab)

def norm(n, tp):
    t = 6 + 2 * tp
    return [("op", f"v_lshlrev_b32 v{t}, 16, v{vX+n}"),
            ("op", f"v_and_b32 v{t+1}, s{sMASK}, v{vX+n}"),
            ("op", f"v_fma_f32 v{t}, v{t}, v4, v5"),
            ("op", f"v_fma_f32 v{t+1}, v{t+1}, v4, v5"),
            ("op", f"v_cvt_pk_bf16_f32 v{vX+n}, v{t}, v{t+1}")]
def norm_step(ks):
    a = [norm(4 * ks + q, q) for q in range(4)]
    out = []
    for s in range(5):
        for q in range(4): out.append(a[q][s])
    return out

def hc_dma(q):
    rr, qq = divmod(q, 4)
    out = []
    if qq == 0:
        out.append(("op", f"s_add_u32 m0, s{sU0}, {rr * HC_STRIDE}"))
        out.append(("op", f"s_add_u32 s{sU2}, s{sU1}, {rr * 2}"))
    out.append(("vm", f"buffer_load_dwordx4 v1, s[{rSSM}:{rSSM+3}], s{sU2} offen offset:{qq*1024} lds", "hc"))
    return out

LATE = []
WD0 = []
def gemm1_loop(k):
    emit(k, norm_step(0))
    for g in LATE: emit(k, g)
    k.op(f"s_lshr_b32 s{sT0}, s{sW}, 1")
    k.op(f"s_lshl_b32 s{sCH}, s{sWGM}, 1")
    k.op(f"s_add_u32 s{sCH}, s{sCH}, s{sT0}")
    k.op(f"s_and_b32 s{sT1}, s{sW}, 1")
    k.op(f"s_lshl_b32 s{sT1}, s{sT1}, 1")
    k.op(f"s_mul_i32 s{sU0}, s{sT0}, {HC_CH}")
    k.op(f"s_mul_i32 s{sT3}, s{sT1}, {HC_STRIDE}")
    k.op(f"s_add_u32 s{sU0}, s{sU0}, s{sT3}")
    k.op(f"s_add_u32 s{sU0}, s{sU0}, {HC + 32}")
    k.op(f"s_lshl_b32 s{sU1}, s{sCH}, 12")
    k.op(f"s_lshl_b32 s{sT1}, s{sT1}, 1")
    k.op(f"s_add_u32 s{sU1}, s{sU1}, s{sT1}")
    k.op(f"s_add_u32 s{sU1}, s{sU1}, 2")
    stamp(k, "a_norm0")
    k.wait(vm="w0")
    stamp(k, "a_w0")
    k.op("s_barrier")
    stamp(k, "a_stats")
    NF = 8; DIST = 7; NM = 224
    def rd(n):
        ks, mt = divmod(n, 8)
        c, kk = divmod(ks, 4)
        sl = c % 4
        base = "v3" if sl < 2 else "v14"
        off = (SLOT_SZ if sl % 2 else 0) + kk * 256 + mt * 32
        f = 4 * (n % NF)
        return [("lg", f"ds_read_b64_tr_b16 {ar(f, 2)}, {base} offset:{off}", f"f{n}"),
                ("lg", f"ds_read_b64_tr_b16 {ar(f + 2, 2)}, {base} offset:{off + 4 * 1056}", f"f{n}")]
    for n in range(DIST): emit(k, rd(n))
    extra = {}
    k.op(f"s_lshl_b32 s{sT0}, s{sSLOT}, 2")
    k.op(f"s_add_u32 s{sT0}, s{sT0}, s{sW}")
    k.op(f"s_mul_i32 s{sU3}, s{sT0}, {112*128}")
    k.op("v_lshlrev_b32 v15, 7, v0")
    def wd_pf(piece):
        return [("op", "s_mov_b64 exec, 0xffff"),
                ("vm", f"buffer_load_dword a250, v15, s[{rWD}:{rWD+3}], s{sU3} offen offset:{piece*2048}", "pf"),
                ("op", "s_mov_b64 exec, -1")]
    if "nopf" not in OPT:
        P0, PSTEP = (4, 2) if "pfslow" not in OPT else (6, 3)
        for p in range(7):
            if p < 2: extra[P0 + PSTEP * p] = wd_pf(p)
            else:
                extra[P0 + PSTEP * p] = [("op", f"s_add_u32 s{sU3}, s{sU3}, 2048"), ("op", "s_mov_b64 exec, 0xffff"),
                    ("vm", f"buffer_load_dword a250, v15, s[{rWD}:{rWD+3}], s{sU3} offen offset:2048", "pf"), ("op", "s_mov_b64 exec, -1")]
        k.op(f"s_lshl_b32 s{sHST}, s{sWGM}, 13")
        k.op(f"s_lshl_b32 s{sT0}, s{sW}, 11")
        k.op(f"s_add_u32 s{sHST}, s{sHST}, s{sT0}")
        extra[5] = [("op", "s_mov_b64 exec, 0xffff"),
                    ("vm", f"buffer_load_dword a250, v15, s[{rSSM}:{rSSM+3}], s{sHST} offen", "pf"), ("op", "s_mov_b64 exec, -1")]
    extra[24] = [("op", "s_mov_b64 exec, 1"),
                 ("vm", f"global_load_dword a40, v15, s[{sPDBG}:{sPDBG+1}] sc1", "init"),
                 ("op", "s_mov_b64 exec, -1")]
    tailfill = capture(g2_setup2) + gelu_setup_items()
    setup1 = capture(g2_setup1)
    WD0[:] = wd_dma_groups(0, WD_KS, "wd0", 0)
    def bigs(ks):
        c, kk = divmod(ks, 4)
        out = []
        if "x_now" not in OPT:
            if c == 0: out += [wdma(2 + kk // 2, 4 * (kk % 2) + i) for i in range(4)]
            elif c + 3 < 7: out += [wdma(c + 3, 2 * kk + i) for i in range(2)]
        if c == 4 and "x_nohc" not in OPT: out += [hc_dma(2 * kk + i) for i in range(2)]
        if c in (5, 6) and 'wdgelu' not in OPT: out += WD0[(c - 5) * 8 + 2 * kk: (c - 5) * 8 + 2 * kk + 2]
        if ks in extra and ("x_noex" not in OPT or ks == 24): out.append(extra[ks])
        return out
    VAR = [o for o in OPT if o.startswith("sch")]
    VAR = VAR[0] if VAR else "sch1"
    POS = {"sch0": {0: [], 1: [7], 2: [6, 7], 3: [5, 6, 7], 4: [3, 5, 6, 7]},
           "sch1": {0: [], 1: [7], 2: [3, 7], 3: [2, 5, 7], 4: [1, 3, 5, 7]},
           "sch2": {0: [], 1: [6], 2: [2, 6], 3: [1, 4, 6], 4: [0, 2, 4, 6]},
           "sch3": {0: [], 1: [7], 2: [3, 7], 3: [2, 5, 7], 4: [1, 3, 5, 7]}}[VAR]
    pending_reads = []
    for ks in range(28):
        c, kk = divmod(ks, 4)
        bg = bigs(ks)
        pos = POS[len(bg)]
        nrm = norm_step(ks + 1) if (ks + 1 < 28 and "x_nonorm" not in OPT) else []
        if ks == 27: nrm = list(tailfill)
        if ks in (16, 17, 18, 19):
            i0 = (ks - 16) * 6
            nrm = nrm + setup1[i0: i0 + 6 if ks < 19 else len(setup1)]
        if VAR == "sch0":
            cut = [0, 3, 6, 9, 12, 15, 18, 20, 20] if ks < 27 else [(len(nrm) * i) // 8 for i in range(9)]
            share = {g: nrm[cut[g]:cut[g + 1]] for g in range(8)}
        else:
            wts = {g: (0 if (g in pos or (g == 7 and ks < 27)) else 1) for g in range(8)}
            if VAR == "sch3":
                wts = {g: (1 if g in pos else 0 if (g == 7 and ks < 27) else 3) for g in range(8)}
            tot = sum(wts.values()); acc_ = 0; done = 0; share = {}
            for g in range(8):
                acc_ += wts[g]
                upto = (len(nrm) * acc_ + tot - 1) // tot
                share[g] = nrm[done:upto]; done = upto
        for mt in range(8):
            n = 8 * ks + mt
            if n % 32 == 0: stamp(k, f"g_c{n//32}")
            if n % 4 == 0:
                k.wait(lg=[f"f{n+i}" for i in range(4)])
            f = 4 * (n % NF)
            acc = vr(vACC + 16 * mt, 16)
            cin = "0" if ks == 0 else acc
            if "x_m16" in OPT:
                for hh_ in range(2):
                    a4 = vr(vACC + 16 * mt + 4 * hh_ + 8 * (ks % 2), 4)
                    k.op(f"v_mfma_f32_16x16x32_bf16 {a4}, {ar(f, 4)}, {vr(vX + 4 * ks, 4)}, {a4}")
            else:
                k.op(f"v_mfma_f32_32x32x16_bf16 {acc}, {ar(f, 4)}, {vr(vX + 4 * ks, 4)}, {cin}")
            if "x_halfrd" in OPT and n % 2 == 1:
                emit(k, share[mt])
                if mt in pos: emit(k, bg[pos.index(mt)])
                nn = n + DIST
                if nn < NM and nn % 32 == 0:
                    k.wait(vm=f"w{nn // 32}"); k.op("s_barrier")
                continue
            nn = n + DIST
            if nn < NM:
                if nn % 32 == 0:
                    k.wait(vm=f"w{nn // 32}")
                    if "x_nobar" not in OPT: k.op("s_barrier")
                emit(k, rd(nn))
            emit(k, share[mt])
            if mt in pos: emit(k, bg[pos.index(mt)])
    assert not pending_reads
    stamp(k, "g_end")

def g2_setup1(k):
    k.op(f"s_and_b32 s{sT0}, s{sTT}, 3")
    k.op(f"s_lshl_b32 s{sT0}, s{sT0}, 1")
    k.op(f"s_add_u32 s{sROT}, s{sT0}, s{sDT}")
    k.op(f"s_sub_u32 s{sT0}, s{sROT}, 7")
    k.op(f"s_min_u32 s{sROT}, s{sROT}, s{sT0}")
    k.op("v_lshrrev_b32 v16, 3, v0")
    k.op("v_mul_u32_u24 v2, 896, v16")
    k.op("v_bfe_u32 v16, v0, 4, 1")
    k.op("v_lshlrev_b32 v16, 2, v16")
    k.op("v_and_b32 v17, 7, v0")
    k.op("v_xor_b32 v16, v16, v17")
    k.op("v_lshl_add_u32 v2, v16, 4, v2")
    k.op(f"s_mul_i32 s{sWDS}, s{sW}, {16*28*896}")
    k.op(f"s_lshl_b32 s{sT0}, s{sDT}, 7")
    k.op(f"s_add_u32 s{sWDS}, s{sWDS}, s{sT0}")
    k.op(f"s_sub_u32 s{sWDS}, s{sWDS}, 4096")
    k.op(f"s_lshl_b32 s{sWDM}, s{sW}, 13")
    k.op(f"s_lshl_b32 s{sWDM4}, s{sW}, 12")
def g2_setup2(k):
    k.op("v_lshrrev_b32 v5, 5, v0")
    k.op("v_bfe_u32 v6, v0, 2, 2")
    k.op("v_lshl_add_u32 v5, v5, 2, v6")
    k.op("v_lshlrev_b32 v5, 7, v5")
    k.op("v_bfe_u32 v7, v0, 4, 1")
    k.op("v_lshl_add_u32 v5, v7, 5, v5")
    k.op("v_and_b32 v7, 3, v0")
    k.op("v_lshl_add_u32 v5, v7, 3, v5")
    k.op(f"v_add_u32 v5, s{sWDM}, v5")
    k.op("v_bfe_u32 v6, v0, 3, 1")
    k.op("v_lshlrev_b32 v6, 6, v6")
    k.op("v_add_u32 v3, v5, v6")
    k.op("v_xor_b32 v6, 64, v6")
    k.op("v_add_u32 v4, v5, v6")
def gelu_setup_items():
    C1 = -2.0 * 0.7978845608028654 * 1.4426950408889634
    C2 = C1 * 0.044715
    it = []
    op = lambda t: it.append(("op", t))
    op("v_lshrrev_b32 v10, 4, v0")
    op("v_and_b32 v11, 15, v0")
    op("v_add_u32 v12, v10, v11")
    op("v_subrev_u32 v12, 15, v12")
    op("v_lshlrev_b32 v12, 1, v12")
    op("v_cmp_gt_i32 vcc, 0, v12")
    op("v_mov_b32 v13, 0x7fffffff")
    op(f"s_lshl_b32 s{sT1}, s{sCH}, 12")
    op("v_cndmask_b32 v12, v12, v13, vcc")
    op("v_mov_b32 v13, 0")
    it.append(("vm", f"buffer_load_ushort v12, v12, s[{rSSM}:{rSSM+3}], s{sT1} offen", "hf"))
    op(f"s_lshl_b32 s{sT1}, s{sCH}, 1")
    it.append(("vm", f"buffer_load_ushort v15, v13, s[{rD}:{rD+3}], s{sT1} offen", "dv"))
    op(f"v_mul_u32_u24 v10, {HC_STRIDE}, v10")
    op("v_lshl_add_u32 v10, v11, 1, v10")
    op(f"s_lshr_b32 s{sT0}, s{sW}, 1")
    op(f"s_mul_i32 s{sT2}, s{sT0}, {HC_CH}")
    op(f"s_add_u32 s{sT2}, s{sT2}, {HC}")
    op(f"v_add_u32 v10, s{sT2}, v10")
    op(f"s_mul_i32 s{sT2}, s{sT0}, {UR_CH}")
    op(f"s_add_u32 s{sT2}, s{sT2}, {UR + 4096}")
    op(f"v_add_u32 v11, s{sT2}, v1")
    op("v_mov_b32 v20, 0"); op("v_mov_b32 v21, 0"); op("v_mov_b32 v22, 0"); op("v_mov_b32 v23, 0")
    op(f"v_mov_b32 v16, {hex(f2u(C1))}")
    op(f"v_mov_b32 v17, {hex(f2u(C2))}")
    op("v_mov_b32 v18, 1.0")
    op("v_mov_b32 v19, 1.0")
    op(f"s_lshl_b32 s{sT0}, s{sI}, 2")
    op(f"s_add_u32 s{sT0}, s{sT0}, s{sW}")
    op(f"s_mul_i32 s{sHST}, s{sT0}, {112*1024}")
    op(f"s_lshl_b32 s{sT1}, s{sJ}, 13")
    op(f"s_add_u32 s{sHST}, s{sHST}, s{sT1}")
    return it

def g2_setup3(k):
    k.op(f"v_add_u32 v176, {2*SLOT_SZ}, v3")
    k.op(f"v_add_u32 v177, {2*SLOT_SZ}, v4")
    k.op(f"s_sub_u32 s{sT0}, {3*SLOT_SZ}, s{sWDM4}")
    k.op(f"v_add_u32 v178, s{sT0}, v3")
    k.op(f"v_add_u32 v179, s{sT0}, v4")

def wd_group_base(g):
    return [("op", f"s_add_u32 s{sT3}, s{sROT}, {g}"),
            ("op", f"s_sub_u32 s{sWDG}, s{sT3}, 7"),
            ("op", f"s_min_u32 s{sT3}, s{sT3}, s{sWDG}"),
            ("op", f"s_mul_i32 s{sT3}, s{sT3}, {64*896}"),
            ("op", f"s_add_u32 s{sWDG}, s{sT3}, s{sWDS}")]
def wd_dma_groups(ks0, ks1, tag, s0):
    out = []
    q = 0
    for ks in range(ks0, ks1):
        sl = ks - s0
        for hh in range(2):
            g = []
            if ks % 4 == 0 and hh == 0: g += wd_group_base(ks // 4)
            qq = 2 * (sl & 1) + hh
            if qq == 0:
                g.append(("op", f"s_add_u32 m0, s{sWDM if sl < 12 else sWDM4}, {stg_const(sl)}"))
            g.append(("op", f"s_add_u32 s{sT3}, s{sWDG}, {(16 * (ks % 4) + 8 * hh) * 896 - qq * 1024 + 4096}"))
            g.append(("vm", f"buffer_load_dwordx4 v2, s[{rWD}:{rWD+3}], s{sT3} offen offset:{qq * 1024} lds", tag))
            out.append(g)
    return out

def wd_read_items(ks0, ks1, s0):
    out = []
    for ks in range(ks0, ks1):
        sl = ks - s0
        g = sl >> 2
        for dt2 in range(2):
            for t in range(2):
                a = 8 * ks + 4 * dt2 + 2 * t
                if g < 2: base, off = 3 + dt2, stg_const(sl)
                elif g == 2: base, off = 176 + dt2, stg_const(sl) - 2 * SLOT_SZ
                else: base, off = 178 + dt2, stg_const(sl) - 3 * SLOT_SZ
                out.append(("lg", f"ds_read_b64_tr_b16 {ar(a,2)}, v{base} offset:{off + t*1024}", f"wr{ks}_{dt2}_{t}"))
    return out
def emit_lg_limited(k, items):
    for it in items:
        if it[0] == "lg" and len(k.lgq) >= 12: k.wait(lg=k.lgq[5])
        emit(k, [it])

def gelu_phase(k):
    if k.lgq: k.wait(lg=[k.lgq[-1]])
    k.op("s_barrier")
    vC, vONE = 16, 18
    k.wait(vm="init")
    k.op("v_accvgpr_read_b32 v8, a40")
    k.op("v_mov_b32 v9, 0")
    k.op("s_nop 0")
    check_or_spin(k, 8, 9, sPDBG, 1)
    cnt_addr(k, 9, idx=UCNT)
    k.vm(f"global_load_dword v8, v9, s[{sPWS}:{sPWS+1}] sc1", "ucnt")
    k.op("s_mov_b32 exec_hi, 0")
    k.lg("ds_write_b128 v11, v[20:23]", "z")
    k.op("s_mov_b32 exec_hi, -1")
    wd0 = WD0[16:] if 'wdgelu' not in OPT else WD0[:]
    g2_setup3_done = False
    def ur_dma():
        k.wait(vm="ucnt")
        k.spin_tag = 6
        check_or_spin(k, 8, 9, sPWS, 32)
        k.spin_tag = None
        k.op(f"s_lshr_b32 s{sT0}, s{sW}, 1")
        k.op(f"s_and_b32 s{sT1}, s{sW}, 1")
        k.op(f"s_lshl_b32 s{sT1}, s{sT1}, 11")
        k.op(f"s_mul_i32 s{sT2}, s{sT0}, {UR_CH}")
        k.op(f"s_add_u32 s{sT2}, s{sT2}, s{sT1}")
        k.op(f"s_add_u32 m0, s{sT2}, {UR}")
        k.op(f"s_lshl_b32 s{sT3}, s{sCH}, 12")
        k.op(f"s_add_u32 s{sT3}, s{sT3}, s{sT1}")
        k.op(f"s_add_u32 s{sT3}, s{sT3}, {U_OFF}")
        k.vm(f"buffer_load_dwordx4 v1, s[{rWS}:{rWS+3}], s{sT3} offen sc1 lds", "ur")
        k.vm(f"buffer_load_dwordx4 v1, s[{rWS}:{rWS+3}], s{sT3} offen offset:1024 sc1 lds", "ur")
        k.wait(vm="hf")
        k.lg("ds_write_b16 v10, v12", "z")
    for mt in range(8):
        stamp(k, f"y_{mt}")
        G = vACC + 16 * mt; U = G + 8
        T = 24 + (mt % 2) * 24
        tp = lambda p: T + 2 * p
        gu = lambda p: T + 8 + 2 * p
        O = T + 16
        P = range(4)
        m = []
        for p in P: m.append(("op", f"v_pk_mul_f32 {vr(tp(p),2)}, {vr(G+2*p,2)}, {vr(G+2*p,2)}"))
        for p in P: m.append(("op", f"v_pk_fma_f32 {vr(tp(p),2)}, {vr(tp(p),2)}, {vr(vC,2)}, {vr(vC,2)} op_sel:[0,1,0] op_sel_hi:[1,1,0]"))
        for p in P: m.append(("op", f"v_pk_mul_f32 {vr(tp(p),2)}, {vr(tp(p),2)}, {vr(G+2*p,2)}"))
        for p in P:
            m.append(("op", f"v_exp_f32 v{tp(p)}, v{tp(p)}")); m.append(("op", f"v_exp_f32 v{tp(p)+1}, v{tp(p)+1}"))
        for p in P: m.append(("op", f"v_pk_mul_f32 {vr(gu(p),2)}, {vr(G+2*p,2)}, {vr(U+2*p,2)}"))
        for p in P: m.append(("op", f"v_pk_add_f32 {vr(tp(p),2)}, {vr(tp(p),2)}, {vr(vONE,2)}"))
        for p in P:
            m.append(("op", f"v_rcp_f32 v{tp(p)}, v{tp(p)}")); m.append(("op", f"v_rcp_f32 v{tp(p)+1}, v{tp(p)+1}"))
        m.append(("op", "s_nop 0"))
        for p in P: m.append(("op", f"v_pk_mul_f32 {vr(gu(p),2)}, {vr(gu(p),2)}, {vr(tp(p),2)}"))
        for p in P: m.append(("op", f"v_cvt_pk_bf16_f32 v{O+p}, v{gu(p)}, v{gu(p)+1}"))
        nf = (4 if mt < 3 else 0) if 'wdgelu' not in OPT else (4 if mt < 4 else 3)
        fill = [wd0.pop(0) for _ in range(nf)]
        if "nowdg" in OPT: fill = [[x for x in g if x[0] != "vm"] for g in fill]
        pos = {8: 0, 20: 1, 32: 2, 42: 3} if nf == 4 else {12: 0, 24: 1, 36: 2} if nf == 3 else {}
        for n, it in enumerate(m):
            emit(k, [it])
            if n in pos: emit(k, fill[pos[n]])
        if mt % 4 == 0 and mt > 0:
            k.op(f"s_add_u32 s{sHST}, s{sHST}, 4096")
        if "nohst" not in OPT: k.vm(f"buffer_store_dwordx4 {vr(O,4)}, v1, s[{rWS}:{rWS+3}], s{sHST} offen offset:{(mt%4)*1024}{'' if 'hstplain' in OPT else ' sc1'}", "hst")
        if mt == 3: ur_dma()
    assert not wd0
    stamp(k, "e_gelu")
    k.wait(vm="ur", lg=[k.lgq[-1]] if k.lgq else [])
    k.op("s_barrier")

def h_signal(k):
    k.wait(vm="hst")
    k.op("s_barrier")
    cnt_addr(k, 9, idx_sgpr=sI, idx=HCNT)
    signal(k, 9, 10)
    stamp(k, "e_sig")

def conv_phase(k):
    k.wait(vm="dv")
    k.op("v_lshlrev_b32 v8, 16, v15")
    k.op(f"s_lshr_b32 s{sT0}, s{sW}, 1")
    k.op(f"s_mul_i32 s{sT2}, s{sT0}, {HC_CH}")
    k.op(f"s_add_u32 s{sT2}, s{sT2}, {HC}")
    k.op("v_bfe_u32 v5, v0, 2, 2")
    k.op(f"v_mul_u32_u24 v14, {HC_STRIDE}, v5")
    k.op("v_and_b32 v6, 3, v0")
    k.op("v_lshl_add_u32 v14, v6, 3, v14")
    k.op("v_lshrrev_b32 v6, 4, v0")
    k.op("v_lshl_add_u32 v14, v6, 4, v14")
    k.op(f"s_and_b32 s{sT1}, s{sW}, 1")
    k.op(f"s_lshl_b32 s{sT1}, s{sT1}, 8")
    k.op(f"s_add_u32 s{sT2}, s{sT2}, s{sT1}")
    k.op(f"v_add_u32 v14, s{sT2}, v14")
    k.op("v_and_b32 v7, 15, v0")
    k.op("v_lshlrev_b32 v7, 5, v7")
    k.op("v_lshlrev_b32 v5, 4, v6")
    k.op("v_sub_u32 v15, v5, v7")
    k.op(f"s_mul_i32 s{sT2}, s{sT0}, {UR_CH}")
    k.op(f"s_add_u32 s{sT2}, s{sT2}, {UR + 4064 - 3584}")
    k.op(f"s_add_u32 s{sT3}, s{sT2}, s{sT1}")
    k.op(f"v_add_u32 v15, s{sT3}, v15")
    FB = [16, 48]; GBUF = [80, 112]; ACC = 144
    def rdF(sub, J):
        b = FB[sub % 2] + 4 * J
        off = 64 * (8 * J + sub)
        return [("lg", f"ds_read_b64_tr_b16 {vr(b,2)}, v14 offset:{off}", f"F{sub}"),
                ("lg", f"ds_read_b64_tr_b16 {vr(b+2,2)}, v14 offset:{off+8}", f"F{sub}")]
    def rdG(sub, T):
        b = GBUF[sub % 2] + 4 * T
        return [("lg", f"ds_read_b128 {vr(b,4)}, v15 offset:{512*(7-T) + 64*sub}", f"F{sub}")]
    def fg(sub):
        out = []
        for i in range(8):
            out += rdG(sub, 7 - i) + rdF(sub, i)
        return out
    emit(k, fg(0))
    k.op("v_lshlrev_b32 v5, 3, v6")
    k.op("v_add_u32 v7, v7, v5")
    k.op(f"s_add_u32 s{sT2}, s{sT2}, {4088 - 4064}")
    k.op(f"v_sub_u32 v13, s{sT2}, v7")
    k.op("v_and_b32 v5, 1, v6")
    k.op("v_mul_u32_u24 v5, 504, v5")
    k.op("v_add_u32 v7, v7, v5")
    k.op("v_lshrrev_b32 v184, 3, v0")
    k.op(f"s_lshl_b32 s{sT0}, s{sW}, 3")
    k.op(f"v_add_u32 v184, s{sT0}, v184")
    k.op("v_and_b32 v185, 7, v0")
    k.op("v_mul_u32_u24 v186, 896, v184")
    k.op("v_lshl_add_u32 v186, v185, 4, v186")
    k.op(f"s_mul_i32 s78, s{sTT}, {64*896}")
    k.op(f"s_lshl_b32 s{sT0}, s{sDT}, 7")
    k.op(f"s_add_u32 s78, s78, s{sT0}")
    k.op(f"s_add_u32 s79, s78, {32*896}")
    k.op(f"s_lshr_b32 s{sU0}, s{sTT}, 1")
    cnt_addr(k, 187, idx_sgpr=sU0, idx=HCNT)
    k.op(f"s_lshl_b32 s{sT0}, s{sTT}, 1")
    k.op(f"s_mul_i32 s{sT0}, s{sT0}, 112")
    k.op(f"s_mul_i32 s{sT1}, s{sW}, 28")
    k.op(f"s_add_u32 s{sT0}, s{sT0}, s{sT1}")
    k.op(f"s_lshl_b32 s{sHG}, s{sT0}, 10")
    g2_setup3(k)
    wd1 = wd_dma_groups(WD_KS, 2 * WD_KS, "wd1", WD_KS)
    for g in wd1[:WD_KS]:
        for i, it in enumerate(g):
            if it[0] == "vm": g[i] = ("vm", it[1], "wd1a")
    wr0 = wd_read_items(0, WD_KS, 0)
    wr1 = wd_read_items(WD_KS, 2 * WD_KS, WD_KS)
    H = WD_KS // 2
    one = lambda items: [[x] for x in items]
    wtag = lambda it: [("fn", lambda t=it[2]: k.wait(lg=t))]
    def mix(a, b):
        if not b: return a
        out = []; j = 0
        for i, g in enumerate(a):
            out.append(g)
            while j < len(b) and (j + 1) * len(a) <= (i + 1) * len(b) + len(a) // 2: out.append(b[j]); j += 1
        return out + b[j:]
    N1, N2 = (6, 14) if 'n1' not in OPT else (4, 14)
    plan = {0: one(fg(1)) + [[("fn", lambda: k.wait(vm="wd0"))]] + one(wr0[:4*H]),
            1: one(fg(2)) + [wtag(wr0[4*H-1])] + mix(one(wr0[4*H:]), wd1[:N1]),
            2: mix(one(fg(3)), wd1[N1:N2] + [wtag(wr0[-1])] + wd1[N2:N2 + 4]),
            3: wd1[N2 + 4:]}
    first = set()
    for sub in range(4):
        stamp(k, f"s_pre{sub}")
        k.wait(lg=f"F{sub}")
        if sub == 1:
            h_signal(k)
            k.vm(f"buffer_load_dwordx4 {ar(224,4)}, v186, s[{rX}:{rX+3}], s78 offen", "ex")
            k.vm(f"buffer_load_dwordx4 {ar(228,4)}, v186, s[{rX}:{rX+3}], s79 offen", "ex")
        if sub == 2:
            k.vm(f"global_load_dword v188, v187, s[{sPWS}:{sPWS+1}] sc1", "hcnt")
        stamp(k, f"s_go{sub}")
        fill = [g for g in plan[sub] if g]
        mf = [(T, J) for T in range(7, -1, -1) for J in range(0, 8 - T)]
        per = len(fill) / (36.0 if sub < 3 else 20.0)
        done = 0
        for n, (T, J) in enumerate(mf):
            tile = T + J
            a = vr(ACC + 4 * tile, 4)
            cin = a if tile in first else "0"
            first.add(tile)
            k.op(f"v_mfma_f32_16x16x32_bf16 {a}, {vr(FB[sub%2]+4*J,4)}, {vr(GBUF[sub%2]+4*T,4)}, {cin}")
            want = min(len(fill), int(round((n + 1) * per + 0.49)))
            while done < want:
                emit(k, fill[done]); done += 1
        while done < len(fill):
            emit(k, fill[done]); done += 1
    stamp(k, "c_mfma")
    k.wait(vm="hcnt")
    check_or_spin(k, 188, 187, sPWS, 14)
    stamp(k, "d_hrdy")
    k.op("v_lshlrev_b32 v189, 3, v184")
    k.op(f"s_lshl_b32 s{sT0}, s{sTT}, 9")
    k.op(f"s_add_u32 s{sT0}, s{sT0}, {ST_OFF}")
    k.vm(f"buffer_load_dwordx2 {ar(232,2)}, v189, s[{rWS}:{rWS+3}], s{sT0} offen sc1", "ex")
    k.vm(f"buffer_load_dwordx2 {ar(234,2)}, v189, s[{rWS}:{rWS+3}], s{sT0} offen offset:256 sc1", "ex")
    for ks in range(PD):
        g2_hload(k, ks)
    k.op(f"s_lshl_b32 s{sT0}, s{sW}, 12")
    k.op(f"s_add_u32 s{sT0}, s{sT0}, {XCH}")
    k.op(f"v_add_u32 v5, s{sT0}, v1")
    k.op(f"s_xor_b32 s{sT1}, s{sW}, 1")
    k.op(f"s_lshl_b32 s{sT1}, s{sT1}, 12")
    k.op(f"s_add_u32 s{sT1}, s{sT1}, {XCH}")
    k.op(f"v_add_u32 v6, s{sT1}, v1")
    k.op(f"s_lshl_b32 s{sT2}, s{sCH}, 12")
    k.op(f"s_add_u32 s{sT2}, s{sT2}, {Y_OFF}")
    if k.lgq: k.wait(lg=k.lgq[-1])
    k.op("s_barrier")
    lo, le = k.newlabel("Lcodd"), k.newlabel("Lcend")
    k.op("s_nop 1")
    def finish(keep, send):
        for i in range(4):
            k.op(f"ds_write_b128 v5, {vr(ACC + 4*(send+i), 4)} offset:{1024*i}")
        for i in range(4):
            k.op(f"ds_read_b64 {vr(64+2*i,2)}, v13 offset:{512*(7-(keep+i))}")
        k.op("s_waitcnt lgkmcnt(0)")
        k.op("s_barrier")
        for i in range(4):
            k.op(f"ds_read_b128 {vr(48+4*i,4)}, v6 offset:{1024*i}")
        for i in range(4):
            U = 64 + 2 * i
            k.op(f"v_and_b32 v{112+4*i}, s{sMASK}, v{U+1}")
            k.op(f"v_lshlrev_b32 v{113+4*i}, 16, v{U+1}")
            k.op(f"v_and_b32 v{114+4*i}, s{sMASK}, v{U}")
            k.op(f"v_lshlrev_b32 v{115+4*i}, 16, v{U}")
            A = ACC + 4 * (keep + i)
            for r in range(4):
                k.op(f"v_fmac_f32 v{A+r}, v{112+4*i+r}, v8")
        k.op("s_waitcnt lgkmcnt(0)")
        for i in range(4):
            A = ACC + 4 * (keep + i)
            k.op(f"v_pk_add_f32 {vr(A,2)}, {vr(A,2)}, {vr(48+4*i,2)}")
            k.op(f"v_pk_add_f32 {vr(A+2,2)}, {vr(A+2,2)}, {vr(50+4*i,2)}")
        for i in range(4):
            A = ACC + 4 * (keep + i)
            k.op(f"v_cvt_pk_bf16_f32 v{72+2*i}, v{A}, v{A+1}")
            k.op(f"v_cvt_pk_bf16_f32 v{73+2*i}, v{A+2}, v{A+3}")
        k.op("s_nop 1")
        for i in (0, 2):
            k.op(f"v_permlane16_swap_b32 v{72+2*i}, v{74+2*i}")
            k.op(f"v_permlane16_swap_b32 v{73+2*i}, v{75+2*i}")
        k.op("s_nop 0")
        for i in (0, 2):
            k.op(f"buffer_store_dwordx4 {vr(72+2*i,4)}, v7, s[{rWS}:{rWS+3}], s{sT2} offen offset:{512*(keep+i)} sc1")
    k.op(f"s_bitcmp1_b32 s{sW}, 0")
    k.op(f"s_cbranch_scc1 {lo}")
    finish(0, 4)
    k.op(f"s_branch {le}")
    k.label(lo)
    finish(4, 0)
    k.label(le)
    for i in range(2): k.vmq.append("yst")
    stamp(k, "c_end")
    return wr1

NHS = 8; vA2 = 192
def hreg(ks, e):
    sl = ks % NHS
    return (16 + 8 * sl if sl < 4 else 80 + 8 * (sl - 4)) + 4 * e
PD = 4
def g2_hbase(k, g):
    k.op(f"s_add_u32 s{sT3}, s{sROT}, {g}")
    k.op(f"s_sub_u32 s76, s{sT3}, 7")
    k.op(f"s_min_u32 s{sT3}, s{sT3}, s76")
    k.op(f"s_lshl_b32 s{sT3}, s{sT3}, 12")
    k.op(f"s_add_u32 s76, s{sT3}, s{sHG}")
    k.op(f"s_add_u32 s77, s76, {112*1024}")
def g2_hload(k, ks):
    if ks % 4 == 0: g2_hbase(k, ks // 4)
    for e in range(2):
        b = hreg(ks, e)
        k.vm(f"buffer_load_dwordx4 {vr(b,4)}, v1, s[{rWS}:{rWS+3}], s{76+e} offen offset:{(ks%4)*1024}{'' if 'hplain' in OPT else ' sc1'}", f"h{ks}")

def gemm2_phase(k, wr1):
    k.op("v_mov_b32 v5, v184"); k.op("v_mov_b32 v6, v185"); k.op("v_mov_b32 v7, v186")
    for ks in range(PD, 2 * PD):
        g2_hload(k, ks)
    k.op(f"s_lshr_b32 s{sU0}, s{sWGM}, 5")
    cnt_addr(k, 9, idx_sgpr=sU0, idx=YCNT)
    k.op(f"s_lshl_b32 s{sU1}, s{sDT}, 7")
    k.op(f"s_add_u32 s{sU1}, s{sU1}, {CNT_OFF + YCNT * 128}")
    def y_loads():
        done = k.newlabel("Lyok")
        stamp(k, "t_y0")
        if 'ysmem' not in OPT:
            k.wait(vm="ycnt")
            k.op(f"v_readfirstlane_b32 s{sU2}, v10")
        else:
            k.op("s_waitcnt lgkmcnt(0)")
            k.lgq = []
        stamp(k, "t_y1")
        k.op(f"s_cmp_ge_u32 s{sU2}, 32")
        k.op(f"s_cbranch_scc1 {done}")
        k.op(f"v_mov_b32 v9, s{sU1}")
        q = list(k.vmq)
        spin_until(k, 9, 10, sPWS, 32)
        k.vmq = q
        k.label(done)
        stamp(k, "t_y2")
        k.op("v_lshrrev_b32 v8, 3, v0")
        k.op("v_lshlrev_b32 v8, 12, v8")
        k.op("v_lshl_add_u32 v8, v6, 4, v8")
        k.op(f"s_lshl_b32 s{sT0}, s{sDT}, 18")
        k.op(f"s_lshl_b32 s{sT1}, s{sW}, 16")
        k.op(f"s_add_u32 s{sT0}, s{sT0}, s{sT1}")
        k.op(f"s_lshl_b32 s{sT1}, s{sTT}, 7")
        k.op(f"s_add_u32 s{sT0}, s{sT0}, s{sT1}")
        k.op(f"s_add_u32 s{sT0}, s{sT0}, {Y_OFF}")
        k.op(f"s_mul_i32 s{sT1}, s{sW}, 2080")
        k.op(f"s_add_u32 m0, s{sT1}, {YT}")
        k.op(f"s_add_u32 s{sT2}, s{sT0}, {8*4096 - 1040}")
        k.vm(f"buffer_load_dwordx4 v8, s[{rWS}:{rWS+3}], s{sT0} offen sc1 lds", "ey")
        k.vm(f"buffer_load_dwordx4 v8, s[{rWS}:{rWS+3}], s{sT2} offen offset:1040 sc1 lds", "ey")
    RROW = 272; RW = 64 * RROW
    k.op("v_and_b32 v11, 31, v0")
    k.op(f"v_mul_u32_u24 v11, {RROW}, v11")
    k.op("v_lshrrev_b32 v12, 5, v0")
    k.op("v_lshl_add_u32 v11, v12, 4, v11")
    k.op(f"s_mul_i32 s{sT0}, s{sW}, {RW}")
    k.op(f"s_add_u32 s{sT0}, s{sT0}, {RED}")
    k.op(f"v_add_u32 v11, s{sT0}, v11")
    first = set()
    def mf(ks, dt2, e):
        t = 2 * dt2 + e
        acc = vr(vA2 + 16 * t, 16)
        cin = acc if t in first else "0"
        first.add(t)
        hb = hreg(ks, e)
        k.op(f"v_mfma_f32_32x32x16_bf16 {acc}, {ar(8*ks+4*dt2,4)}, {vr(hb,4)}, {cin}")
    LASTK = 24
    YSIG, YPOLL, YLOAD = (3, 14, 22) if 'ysmem' in OPT else (3, 17, 23)
    xfill = []
    for ps in range(2):
        X = 112 + 16 * ps; N = X + 8; T = 144 + 8 * ps
        for q in range(4): xfill.append(("op", f"v_accvgpr_read_b32 v{T+q}, a{224+4*ps+q}"))
        xfill.append(("op", f"v_accvgpr_read_b32 v{T+4}, a{232+2*ps}"))
        xfill.append(("op", f"v_accvgpr_read_b32 v{T+5}, a{233+2*ps}"))
        for q in range(4):
            xfill.append(("op", f"v_lshlrev_b32 v{X+2*q}, 16, v{T+q}"))
            xfill.append(("op", f"v_and_b32 v{X+2*q+1}, s{sMASK}, v{T+q}"))
        for q in range(8): xfill.append(("op", f"v_fma_f32 v{N+q}, v{X+q}, v{T+4}, v{T+5}"))
        for q in range(8): xfill.append(("op", f"v_mov_b32 v{160+8*ps+q}, 0"))
    def hl(kn, e):
        k.vm(f"buffer_load_dwordx4 {vr(hreg(kn, e),4)}, v1, s[{rWS}:{rWS+3}], s{76+e} offen offset:{(kn%4)*1024}{'' if 'hplain' in OPT else ' sc1'}", f"h{kn}")
    for ks in range(LASTK):
        if ks == YSIG:
            k.wait(vm="yst")
            k.op("s_barrier")
            signal(k, 9, 8)
            stamp(k, "c_sig")
        stamp(k, f"w_{ks}_")
        k.wait(vm=f"h{ks}", lg=[f"wr{ks}_1_1"] if ks >= WD_KS else [])
        if ks % 2 == 0: stamp(k, f"z_{ks}")
        else: stamp(k, f"q_{ks}")
        m = 0
        for dt2 in range(2):
            for e in range(2):
                mf(ks, dt2, e)
                todo = []
                if ks == 2: todo = {1: [(8, 0), (8, 1)], 3: [(9, 0), (9, 1)]}.get(m, [])
                elif ks == 3: todo = {1: [(10, 0), (10, 1)], 3: [(11, 0), (11, 1)]}.get(m, [])
                elif ks >= 4 and ks + 8 < 28 and m >= 2: todo = [(ks + 8, m - 2)]
                for kn, e2 in todo:
                    if kn % 4 == 0 and e2 == 0: g2_hbase(k, kn // 4)
                    hl(kn, e2)
                if ks < WD_KS: emit(k, [wr1[4 * ks + m]])
                if ks >= 6 and xfill and m < 2: emit(k, [xfill.pop(0) for _ in range(min(2, len(xfill)))])
                if m == 3 and ks == YPOLL and 'ysmem' in OPT: k.op(f"s_load_dword s{sU2}, s[{sPWS}:{sPWS+1}], s{sU1}")
                if m == 3 and ks == 19 and 'ysmem' not in OPT:
                    k.op(f"v_mov_b32 v9, s{sU1}")
                    k.vm(f"global_load_dword v10, v9, s[{sPWS}:{sPWS+1}] sc1", "ycnt")
                if m == 3 and ks == YLOAD: y_loads()
                m += 1
    assert not xfill
    k.wait(vm="h27", lg=["wr27_1_1"])
    def wr(t):
        dt2, e = divmod(t, 2)
        return [("lg", f"ds_write_b128 v11, {vr(vA2 + 16*t + 4*g, 4)} offset:{e*32*RROW + dt2*128 + g*32}", f"rw{t}{g}") for g in range(4)]
    for t in range(4):
        dt2, e = divmod(t, 2)
        for ks in range(LASTK, 28):
            mf(ks, dt2, e)
        if t == 2: k.op("s_nop 3")
        if t >= 2: emit(k, wr(t - 2))
    stamp(k, "d_loop")
    k.op(f"v_mov_b32 v10, {hex(f2u(-1.4426950408889634))}")
    k.op(f"v_mul_u32_u24 v8, {RROW}, v5")
    k.op("v_lshl_add_u32 v8, v6, 5, v8")
    k.op(f"v_add_u32 v8, {RED}, v8")
    k.op("v_mul_u32_u24 v9, 1040, v6")
    k.op("v_lshl_add_u32 v9, v5, 1, v9")
    k.op(f"v_add_u32 v9, {YT}, v9")
    emit(k, wr(2))
    emit(k, wr(3))
    k.op("v_mov_b32 v11, 1.0")
    k.wait(lg=k.lgq[-1])
    stamp(k, "t_wr")
    k.op("s_barrier")
    stamp(k, "t_bar")
    for ps in range(2):
        B = 16 + 64 * ps
        for w in range(4):
            for hh in range(2):
                k.lg(f"ds_read_b128 {vr(B + 8*w + 4*hh, 4)}, v8 offset:{w*RW + ps*32*RROW + hh*16}", f"p{ps}_{w}{hh}")
    for ps in range(2):
        B = 16 + 64 * ps if ps == 0 else 80
        N = 112 + 16 * ps + 8
        k.wait(lg=f"p{ps}_31")
        for q in range(4):
            k.op(f"v_pk_add_f32 {vr(B+2*q,2)}, {vr(B+2*q,2)}, {vr(B+8+2*q,2)}")
            k.op(f"v_pk_add_f32 {vr(B+16+2*q,2)}, {vr(B+16+2*q,2)}, {vr(B+24+2*q,2)}")
        for q in range(4):
            k.op(f"v_pk_add_f32 {vr(B+2*q,2)}, {vr(B+2*q,2)}, {vr(B+16+2*q,2)}")
        E = B + 16
        for q in range(4):
            k.op(f"v_pk_mul_f32 {vr(E+2*q,2)}, {vr(B+2*q,2)}, {vr(10,2)} op_sel_hi:[1,0]")
        for q in range(8): k.op(f"v_exp_f32 v{E+q}, v{E+q}")
        for q in range(4): k.op(f"v_pk_mul_f32 {vr(N+2*q,2)}, {vr(N+2*q,2)}, {vr(B+2*q,2)}")
        for q in range(4): k.op(f"v_pk_add_f32 {vr(E+2*q,2)}, {vr(E+2*q,2)}, {vr(10,2)} op_sel:[0,1] op_sel_hi:[1,1]")
        for q in range(8): k.op(f"v_rcp_f32 v{E+q}, v{E+q}")
        k.op("s_nop 0")
        for q in range(4): k.op(f"v_pk_mul_f32 {vr(N+2*q,2)}, {vr(N+2*q,2)}, {vr(E+2*q,2)}")
    stamp(k, "t_silu")
    k.wait(vm="ey")
    k.op("s_barrier")
    stamp(k, "t_ey")
    for ps in range(2):
        for e in range(8):
            if len(k.lgq) >= 14: k.wait(lg=k.lgq[3])
            k.lg(f"ds_read_u16_d16_hi v{160+8*ps+e}, v9 offset:{e*128 + ps*64}", f"y{ps}_{e}")
    for ps in range(2):
        X = 112 + 16 * ps; N = X + 8; Yr = 160 + 8 * ps; T = 144 + 8 * ps
        k.wait(lg=f"y{ps}_7")
        for q in range(4): k.op(f"v_pk_fma_f32 {vr(N+2*q,2)}, {vr(N+2*q,2)}, {vr(Yr+2*q,2)}, {vr(X+2*q,2)}")
        for q in range(4): k.op(f"v_cvt_pk_bf16_f32 v{T+q}, v{N+2*q}, v{N+2*q+1}")
        k.vm(f"buffer_store_dwordx4 {vr(T,4)}, v7, s[{rOUT}:{rOUT+3}], s{78+ps} offen", "ost")
    stamp(k, "d_end")

PP_ROW = 900
PP_K = 0
PP_V = 67 * PP_ROW + 4
def prepass(k):
    if "ppst" in OPT: k.op("s_memtime s[8:9]")
    k.op(f"s_sub_u32 s{sT0}, s{sSLOT}, 28")
    k.op(f"s_lshl_b32 s{sT0}, s{sT0}, 3")
    k.op(f"s_add_u32 s{sI}, s{sT0}, s{sXCD}")
    k.op("v_lshlrev_b32 v1, 4, v0")
    k.op("s_waitcnt lgkmcnt(0)")
    srd(k, rWS, sPWS, (16 << 20) if (STAMPS and 'leak' not in OPT) else WS_USED)
    lab = k.newlabel("Lnolead")
    k.op(f"s_or_b32 s{sT0}, s{sI}, s{sW}")
    k.op(f"s_cmp_lg_u32 s{sT0}, 0")
    k.op(f"s_cbranch_scc1 {lab}")
    k.op("v_lshlrev_b32 v2, 7, v0")
    k.op(f"v_add_u32 v2, {CNT_OFF}, v2")
    k.op("v_mov_b32 v3, 0")
    k.op("s_mov_b32 exec_hi, 0")
    k.op(f"global_store_dword v2, v3, s[{sPWS}:{sPWS+1}] sc1")
    k.op("s_waitcnt vmcnt(0)")
    k.op("v_mov_b32 v2, 1")
    k.op("s_mov_b64 exec, 1")
    k.op(f"global_store_dword v3, v2, s[{sPDBG}:{sPDBG+1}] sc1")
    k.op("s_mov_b64 exec, -1")
    k.label(lab)
    if "ppf" in OPT:
        k.op(f"s_bitcmp1_b32 s{sW}, 1")
        k.op(f"s_cselect_b32 s{rX}, s{sPWU}, s{sPWG}")
        k.op(f"s_cselect_b32 s{rX+1}, s{sPWU+1}, s{sPWG+1}")
        k.op(f"s_and_b32 s{rX+1}, s{rX+1}, 0xffff")
        k.op(f"s_mov_b32 s{rX+2}, {D*F*2}")
        k.op(f"s_mov_b32 s{rX+3}, 0x20000")
        k.op(f"s_sub_u32 s{sT0}, s{sSLOT}, 28")
        k.op(f"s_mul_i32 s{sT0}, s{sT0}, 224")
        k.op(f"s_and_b32 s{sT1}, s{sW}, 1")
        k.op(f"s_lshl_b32 s{sT1}, s{sT1}, 7")
        k.op(f"s_add_u32 s{sT0}, s{sT0}, s{sT1}")
        k.op(f"s_and_b32 s{sT1}, s{sXCD}, 1")
        k.op(f"s_mul_i32 s{sT1}, s{sT1}, 1792")
        k.op(f"s_mov_b32 s{sT2}, {(1 << 32) // 14 + 1}")
        for rnd in range(2):
            k.op(f"v_add_u32 v2, s{sT0}, v0")
            if rnd: k.op("v_add_u32 v2, 64, v2")
            k.op(f"v_mul_hi_u32 v3, v2, s{sT2}")
            k.op("v_mul_u32_u24 v4, 14, v3")
            k.op("v_sub_u32 v4, v2, v4")
            k.op("v_mul_u32_u24 v3, 3584, v3")
            k.op("v_lshl_add_u32 v3, v4, 7, v3")
            k.vm(f"buffer_load_dword a250, v3, s[{rX}:{rX+3}], s{sT1} offen", "pf")
    srd(k, rK, sPK, S * D * 2)
    srd(k, rV, sPV, S * D * 2)
    srd(k, rSK, sPSK, D * 4 * 2)
    k.op("s_mov_b32 exec_hi, 0x00ffffff")
    k.op(f"s_lshl_b32 s{sT0}, s{sI}, 6")
    k.op(f"s_add_u32 s{sT0}, s{sT0}, s{sW}")
    k.op(f"s_sub_u32 s{sT1}, s{sT0}, 3")
    k.op(f"s_mul_i32 s{sT1}, s{sT1}, 896")
    k.op(f"s_mul_i32 s{sT2}, s{sW}, {PP_ROW}")
    k.op(f"s_add_u32 m0, s{sT2}, {PP_K}")
    k.op(f"v_add_u32 v2, s{sT1}, v1")
    for n in range(17):
        if n == 16:
            lab = k.newlabel("Lpk")
            k.op(f"s_cmp_eq_u32 s{sW}, 3")
            k.op(f"s_cbranch_scc1 {lab}")
            k.op(f"buffer_load_dwordx4 v2, s[{rK}:{rK+3}], 0 offen lds")
            k.label(lab)
        else:
            k.vm(f"buffer_load_dwordx4 v2, s[{rK}:{rK+3}], 0 offen lds", "k")
            k.op(f"s_add_u32 m0, m0, {4*PP_ROW}")
            k.op(f"v_add_u32 v2, {4*896}, v2")
    k.op(f"s_mul_i32 s{sT1}, s{sT0}, 896")
    k.op(f"s_add_u32 m0, s{sT2}, {PP_V}")
    k.op("s_nop 0")
    for n in range(16):
        k.vm(f"buffer_load_dwordx4 v1, s[{rV}:{rV+3}], s{sT1} offen lds", "v")
        if n < 15:
            k.op(f"s_add_u32 m0, m0, {4*PP_ROW}")
            k.op(f"s_add_u32 s{sT1}, s{sT1}, {4*896}")
    k.op("s_mov_b32 exec_hi, -1")
    k.op(f"s_mov_b32 s{sMASK}, 0xffff0000")
    k.op("v_and_b32 v2, 3, v0")
    k.op("v_lshrrev_b32 v3, 5, v0")
    k.op("v_lshl_add_u32 v2, v3, 2, v2")
    k.op("v_bfe_u32 v3, v0, 2, 3")
    k.op(f"v_mul_u32_u24 v4, {8*PP_ROW}, v2")
    k.op("v_lshl_add_u32 v4, v3, 2, v4")
    k.op(f"s_lshl_b32 s{sT0}, s{sW}, 5")
    k.op(f"v_add_u32 v4, s{sT0}, v4")
    k.op(f"v_add_u32 v8, {PP_V}, v4")
    k.op("v_lshlrev_b32 v5, 4, v3")
    k.op(f"s_lshl_b32 s{sT0}, s{sW}, 7")
    k.op(f"v_add_u32 v5, s{sT0}, v5")
    k.op("v_lshlrev_b32 v6, 13, v3")
    k.op(f"s_lshl_b32 s{sT0}, s{sW}, 16")
    k.op(f"v_add_u32 v6, s{sT0}, v6")
    k.op("v_lshlrev_b32 v7, 4, v2")
    k.op("v_sub_u32 v6, v6, v7")
    k.op(f"s_lshl_b32 s{sT0}, s{sI}, 7")
    k.op(f"s_sub_u32 s{sT0}, {U_OFF + (2047 - 7) * 2}, s{sT0}")
    k.op(f"v_add_u32 v6, s{sT0}, v6")
    for it in range(7):
        k.vm(f"buffer_load_dwordx4 {vr(100 + 4*it, 4)}, v5, s[{rSK}:{rSK+3}], 0 offen offset:{it*512}", "sk")
    if "ppst" in OPT: k.op("s_memtime s[10:11]")
    k.wait_all()
    if "ppst" in OPT: k.op("s_memtime s[12:13]")
    k.op("s_barrier")
    RAW = [16, 176]
    def reads(it):
        base = RAW[it % 2]; coff = it * 128
        for j in range(11):
            k.lg(f"ds_read_b32 v{base+j}, v4 offset:{PP_K + j*PP_ROW + coff}", f"r{it}")
        for j in range(8):
            k.lg(f"ds_read_b32 v{base+11+j}, v8 offset:{j*PP_ROW + coff}", f"r{it}")
    reads(0)
    for it in range(7):
        KR = RAW[it % 2]; VR = KR + 11
        sk = 100 + 4 * it
        k.op(f"v_lshlrev_b32 v64, 16, v{sk}");   k.op(f"v_lshlrev_b32 v65, 16, v{sk+2}")
        k.op(f"v_and_b32 v66, 0xffff0000, v{sk}"); k.op(f"v_and_b32 v67, 0xffff0000, v{sk+2}")
        k.op(f"v_lshlrev_b32 v68, 16, v{sk+1}"); k.op(f"v_lshlrev_b32 v69, 16, v{sk+3}")
        k.op(f"v_and_b32 v70, 0xffff0000, v{sk+1}"); k.op(f"v_and_b32 v71, 0xffff0000, v{sk+3}")
        k.wait(lg=f"r{it}")
        for j in range(11):
            k.op(f"v_lshlrev_b32 v{40+2*j}, 16, v{KR+j}")
            k.op(f"v_and_b32 v{41+2*j}, s{sMASK}, v{KR+j}")
        for j in range(8):
            k.op(f"v_lshlrev_b32 v{72+2*j}, 16, v{VR+j}")
            k.op(f"v_and_b32 v{73+2*j}, s{sMASK}, v{VR+j}")
        if it + 1 < 7: reads(it + 1)
        for t in range(8):
            k.op(f"v_pk_mul_f32 {vr(130+2*t,2)}, {vr(40+2*(t+3),2)}, {vr(64,2)}")
        for j in range(1, 4):
            for t in range(8):
                o = 130 + 2 * t
                k.op(f"v_pk_fma_f32 {vr(o,2)}, {vr(40+2*(t+3-j),2)}, {vr(64+2*j,2)}, {vr(o,2)}")
        for t in range(8):
            o = 130 + 2 * t
            k.op(f"v_pk_mul_f32 {vr(o,2)}, {vr(o,2)}, {vr(72+2*t,2)}")
        O = 150 + 8 * (it % 2)
        for q in range(4):
            k.op(f"v_cvt_pk_bf16_f32 v{O+q}, v{130+2*(7-2*q)}, v{130+2*(6-2*q)}")
            k.op(f"v_cvt_pk_bf16_f32 v{O+4+q}, v{131+2*(7-2*q)}, v{131+2*(6-2*q)}")
        k.op(f"s_mov_b32 s{sT0}, {it * 64 * 4096}")
        k.op(f"s_mov_b32 s{sT1}, {it * 64 * 4096 + 4096}")
        k.vm(f"buffer_store_dwordx4 {vr(O,4)}, v6, s[{rWS}:{rWS+3}], s{sT0} offen sc1", "ust")
        k.vm(f"buffer_store_dwordx4 {vr(O+4,4)}, v6, s[{rWS}:{rWS+3}], s{sT1} offen sc1", "ust")
    if "ppst" in OPT: k.op("s_memtime s[14:15]")
    k.wait_all()
    if "ppst" in OPT: k.op("s_memtime s[72:73]")
    k.op("s_barrier")
    lab = k.newlabel("Lpsig")
    k.op(f"s_cmp_lg_u32 s{sW}, 0")
    k.op(f"s_cbranch_scc1 {lab}")
    k.op("v_mov_b32 v9, 0")
    spin_until(k, 9, 8, sPDBG, 1)
    k.label(lab)
    cnt_addr(k, 9, idx=UCNT)
    signal(k, 9, 8)
    if "ppst" in OPT:
        k.op("s_waitcnt vmcnt(0) lgkmcnt(0)")
        k.op("s_memtime s[74:75]")
        k.op("s_waitcnt lgkmcnt(0)")
        k.op("s_lshl_b32 s4, s2, 2"); k.op(f"s_add_u32 s4, s4, s{sW}"); k.op("s_lshl_b32 s4, s4, 7"); k.op(f"s_add_u32 s4, s4, {STAMP_OFF}")
        k.op("v_mov_b32 v1, 0"); k.op("s_mov_b64 exec, 1")
        for i, r in enumerate((8, 10, 12, 14, 72, 74)):
            k.op(f"v_mov_b32 v2, s{r}")
            k.op(f"buffer_store_dword v2, v1, s[{rWS}:{rWS+3}], s4 offen offset:{4*i}")
        k.op("s_mov_b64 exec, -1")

def kd(name, vgpr=512, acc=256):
    return f""".section .rodata,"a"
.p2align 6
.amdhsa_kernel {name}
  .amdhsa_next_free_vgpr {vgpr}
  .amdhsa_next_free_sgpr 102
  .amdhsa_accum_offset {acc}
  .amdhsa_group_segment_fixed_size 0
  .amdhsa_kernarg_size 104
  .amdhsa_user_sgpr_count 2
  .amdhsa_user_sgpr_kernarg_segment_ptr 1
  .amdhsa_system_sgpr_workgroup_id_x 1
  .amdhsa_float_denorm_mode_32 3
.end_amdhsa_kernel
"""

def build():
    k = K()
    prologue(k, 32768)
    start_main(k)
    gemm1_loop(k)
    gelu_phase(k)
    wr1 = conv_phase(k)
    gemm2_phase(k, wr1)
    for o in OPT:
        if o.startswith("cyc"):
            n = int(o[3:])
            k.op(f"s_add_u32 s10, s73, {n}")
            k.label("L_untilc")
            k.op("s_memtime s[8:9]")
            k.op("s_waitcnt lgkmcnt(0)")
            k.op("s_sub_u32 s11, s10, s8")
            k.op("s_cmp_gt_i32 s11, 0")
            k.op("s_cbranch_scc1 L_untilc")
        if o.startswith("until"):
            n = int(o[5:])
            k.op(f"s_add_u32 s10, s73, {n}")
            k.label("L_until")
            k.op("s_memrealtime s[8:9]")
            k.op("s_waitcnt lgkmcnt(0)")
            k.op("s_sub_u32 s11, s10, s8")
            k.op("s_cmp_gt_i32 s11, 0")
            k.op("s_cbranch_scc1 L_until")
        if o.startswith("delay"):
            n = int(o[5:])
            k.op("s_memtime s[8:9]")
            k.op("s_waitcnt lgkmcnt(0)")
            k.op(f"s_add_u32 s10, s8, {n}")
            k.label("L_delay")
            k.op("s_memtime s[8:9]")
            k.op("s_waitcnt lgkmcnt(0)")
            k.op("s_sub_u32 s11, s10, s8")
            k.op("s_cmp_gt_i32 s11, 0")
            k.op("s_cbranch_scc1 L_delay")
    stamp_flush(k)
    k.op("s_endpgm")
    k.label("L_pre")
    k.vmq = []; k.lgq = []
    prepass(k)
    k.label("L_exit")
    name = NAME + "_kernel"
    header = open("cdna_kernels/" + NAME + ".s.ref").read().split("; Override launch")[0]
    txt = header + f"; @launch grid=(256,1,1) block=(256,1,1) lds={LDS_TOTAL}\n"
    txt += '.amdgcn_target "amdgcn-amd-amdhsa--gfx950"\n.text\n'
    txt += f".globl {name}\n.p2align 8\n.type {name},@function\n{name}:\n"
    txt += k.text() + "s_endpgm\n" + kd(name)
    return txt

if __name__ == "__main__":
    if len(sys.argv) > 2 and sys.argv[2].startswith("stamps"):
        STAMPS = True
        if "=" in sys.argv[2]: STAMPSET = sys.argv[2].split("=")[1].split(",")
    if len(sys.argv) > 3: OPT.update(sys.argv[3].split(","))
    txt = build()
    if "noalign" not in OPT:
        import align
        txt = align.align(txt)
    check_hazards(txt)
    open(sys.argv[1], "w").write(txt)
    if STAMPS: print("stamps:", stamped)
```

```python
import sys, struct
from asmlib import *

NAME = "recurrent_scan__ssm_conv_h3__geglu_ffn__prompt"
S, D, F = 2048, 448, 1792
OPT = set()

H_OFF = 0
U_OFF = H_OFF + 64 * 112 * 1024
Y_OFF = U_OFF + D * 4096
ST_OFF = Y_OFF + D * 4096
CNT_OFF = ST_OFF + S * 8
WS_USED = CNT_OFF + 32 * 128
HCNT, YCNT, UCNT = 0, 16, 24

sPQ, sPK, sPV, sPSK, sPSSM, sPD, sPBX, sPWG = 16, 18, 20, 22, 24, 26, 28, 30
sPWU, sPWD, sPOUT, sPDBG = 32, 34, 36, 38
sPWS = 40
rX, rW, rWS, rWD, rSSM, rOUT, rD = 44, 48, 52, 56, 60, 64, 68
rK, rV, rSK = 48, 56, 60
sT0, sT1, sT2, sT3 = 4, 5, 6, 7
sW, sI, sJ, sWSO, sWM0, sSLOT, sXCD, sONES, sMASK, sWGM = 80, 81, 82, 83, 84, 85, 86, 87, 88, 89
sTT, sDT, sWDS, sWDM, sCH = 90, 91, 92, 93, 94
sHST = 95
sWDG = 75
sWDM4 = 42
sROT = 43
sHG = 74
sU0, sU1, sU2, sU3 = 96, 97, 98, 99

SLOT_SZ = 34048
XOFF = 17024
XS = SLOT_SZ
XROW = 912
SLOT = [0, SLOT_SZ, 2 * SLOT_SZ, 3 * SLOT_SZ]
LDS_TOTAL = 163840
HC_STRIDE = 4160
HC_CH = 4 * HC_STRIDE
UR_CH = 4608
WDST = 0
WD_KS = 14
WD_WAVE = WD_KS * 2048
def stg_const(s_):
    g = s_ >> 2
    return g * SLOT_SZ + (s_ & 3) * 2048 if g < 3 else 3 * SLOT_SZ + (s_ & 1) * 2048
HC = 3 * SLOT_SZ + 4 * 4096
UR = HC + 2 * HC_CH
XCH = HC
YT = UR + 2 * UR_CH
assert YT + 8320 <= LDS_TOTAL or True
YT = HC + 16384
RED = 0

vX = 16
vACC = 128

STAMPS = False
STAMP_OFF = 12 << 20
STAMPSET = None
POOL = [8, 10, 72, 18, 20, 22, 28, 16, 24, 26, 30, 32, 34, 36, 12, 14]
stamped = []
def stamp(k, name=""):
    if not STAMPS: return
    if STAMPSET is not None and not any((name == p[:-1]) if p.endswith("$") else name.startswith(p) for p in STAMPSET): return
    i = len(stamped)
    assert i < len(POOL)
    stamped.append(name)
    k.op(f"{'s_memrealtime' if 'rtst' in OPT else 's_memtime'} s[{POOL[i]}:{POOL[i]+1}]")
def stamp_flush_dbg(k):
    wg = int([o for o in OPT if o.startswith("dbgwg")][0][5:])
    lab = k.newlabel("Ldbg")
    k.op("s_waitcnt vmcnt(0) lgkmcnt(0)")
    k.op(f"s_cmp_lg_u32 s2, {wg}"); k.op(f"s_cbranch_scc1 {lab}")
    k.op(f"s_cmp_lg_u32 s{sW}, 0"); k.op(f"s_cbranch_scc1 {lab}")
    k.op("s_mov_b64 exec, 1")
    for i in range(1, len(stamped)):
        k.op(f"s_sub_u32 s4, s{POOL[i]}, s{POOL[0]}")
        k.op(f"v_mov_b32 v2, s4")
        k.op(f"v_mov_b32 v1, {4*i}")
        k.op(f"global_store_dword v1, v2, s[{sPDBG}:{sPDBG+1}]")
    k.op("s_mov_b64 exec, -1")
    k.label(lab)

def stamp_leak(k):
    KL = 3
    k.op("s_waitcnt vmcnt(0) lgkmcnt(0)")
    k.op(f"s_sub_u32 s4, s{POOL[1]}, s{POOL[0]}")
    k.op(f"s_mul_i32 s4, s4, {KL}")
    k.op("s_memtime s[6:7]")
    k.op("s_waitcnt lgkmcnt(0)")
    k.op("s_add_u32 s4, s4, s6")
    k.label("L_leak")
    k.op("s_memtime s[6:7]")
    k.op("s_waitcnt lgkmcnt(0)")
    k.op("s_sub_u32 s5, s4, s6")
    k.op("s_cmp_gt_i32 s5, 0")
    k.op("s_cbranch_scc1 L_leak")

def stamp_flush(k):
    if not STAMPS: return
    if "leak" in OPT: return stamp_leak(k)
    if any(o.startswith("dbgwg") for o in OPT): return stamp_flush_dbg(k)
    k.op("s_waitcnt vmcnt(0) lgkmcnt(0)")
    k.op("s_memrealtime s[42:43]")
    k.op("s_waitcnt lgkmcnt(0)")
    k.op("s_mov_b32 s101, s42")
    k.op("s_lshl_b32 s4, s2, 2")
    k.op(f"s_add_u32 s4, s4, s{sW}")
    k.op("s_lshl_b32 s4, s4, 7")
    k.op(f"s_add_u32 s4, s4, {STAMP_OFF}")
    k.op("v_mov_b32 v1, 0")
    k.op("s_mov_b64 exec, 1")
    for i in range(len(stamped)):
        k.op(f"v_mov_b32 v2, s{POOL[i]}")
        k.op(f"buffer_store_dword v2, v1, s[{rWS}:{rWS+3}], s4 offen offset:{4*i}")
    k.op("v_mov_b32 v2, s100")
    k.op(f"buffer_store_dword v2, v1, s[{rWS}:{rWS+3}], s4 offen offset:{4*30}")
    k.op("v_mov_b32 v2, s101")
    k.op(f"buffer_store_dword v2, v1, s[{rWS}:{rWS+3}], s4 offen offset:{4*31}")
    k.op("s_mov_b64 exec, -1")

def f2u(x):
    return struct.unpack("<I", struct.pack("<f", x))[0]

def srd(k, r, ptr, nbytes):
    k.op(f"s_mov_b32 s{r}, s{ptr}")
    k.op(f"s_and_b32 s{r+1}, s{ptr+1}, 0xffff")
    k.op(f"s_mov_b32 s{r+2}, {nbytes}")
    k.op(f"s_mov_b32 s{r+3}, 0x20000")

def emit(k, items):
    for it in items:
        if it[0] == "op": k.op(it[1])
        elif it[0] == "vm": k.vm(it[1], it[2])
        elif it[0] == "lg": k.lg(it[1], it[2])
        elif it[0] == "fn": it[1]()

def capture(fn, *args):
    t = K()
    fn(t, *args)
    assert not t.vmq and not t.lgq
    return [("op", l) for l in t.L]

def interleave(k, main, fill, every, start=0):
    fill = list(fill)
    for n, it in enumerate(main):
        emit(k, [it])
        if fill and n >= start and (n - start) % every == every - 1:
            emit(k, fill.pop(0))
    for g in fill: emit(k, g)

def cnt_addr(k, vreg, idx_sgpr=None, idx=0):
    if idx_sgpr is None:
        k.op(f"v_mov_b32 v{vreg}, {CNT_OFF + idx * 128}")
    else:
        k.op(f"s_lshl_b32 s{sT0}, s{idx_sgpr}, 7")
        k.op(f"s_add_u32 s{sT0}, s{sT0}, {CNT_OFF + idx * 128}")
        k.op(f"v_mov_b32 v{vreg}, s{sT0}")

def spin_until(k, vaddr, vtmp, base, target, cmp="ge"):
    lab, done = k.newlabel("Lspin"), k.newlabel("Lspun")
    if "cntspin" in OPT:
        slot = {32: 4, 14: 5, 1: 7}[target] if vaddr != 9 or target != 32 else 4
        if getattr(k, "spin_tag", None): slot = k.spin_tag
        k.op(f"v_mov_b32 v{vtmp}, 1")
        k.op("s_mov_b64 exec, 1")
        k.op(f"v_mov_b32 v190, {4*slot}")
        k.op(f"global_atomic_add v190, v{vtmp}, s[{sPDBG}:{sPDBG+1}]")
        k.op("s_mov_b64 exec, -1")
    k.op(f"s_mov_b32 s{sT1}, 0x40000")
    k.label(lab)
    k.op(f"global_load_dword v{vtmp}, v{vaddr}, s[{base}:{base+1}] sc1")
    k.op("s_waitcnt vmcnt(0)")
    k.op(f"v_readfirstlane_b32 s{sT2}, v{vtmp}")
    k.op(f"s_sub_u32 s{sT1}, s{sT1}, 1")
    k.op(f"s_cmp_ge_u32 s{sT2}, {target}")
    k.op(f"s_cbranch_scc1 {done}")
    k.op("s_sleep %d" % int(([o for o in OPT if o.startswith("slp")] or ["slp1"])[0][3:]))
    k.op(f"s_cmp_lg_u32 s{sT1}, 0")
    k.op(f"s_cbranch_scc1 {lab}")
    k.label(done)
    k.vmq = []

def check_or_spin(k, vval, vaddr, base, target):
    done = k.newlabel("Lok")
    k.op(f"v_readfirstlane_b32 s{sT2}, v{vval}")
    k.op(f"s_cmp_ge_u32 s{sT2}, {target}")
    k.op(f"s_cbranch_scc1 {done}")
    q = list(k.vmq)
    spin_until(k, vaddr, vval, base, target)
    k.vmq = q
    k.label(done)

def signal(k, vaddr, vone):
    lab = k.newlabel("Lsig")
    k.op(f"s_cmp_lg_u32 s{sW}, 0")
    k.op(f"s_cbranch_scc1 {lab}")
    k.op(f"v_mov_b32 v{vone}, 1")
    k.op("s_mov_b64 exec, 1")
    k.op(f"global_atomic_add v{vaddr}, v{vone}, s[{sPWS}:{sPWS+1}] sc1")
    k.op("s_mov_b64 exec, -1")
    k.label(lab)

def prologue(k, codebytes):
    if any(o.startswith("cyc") for o in OPT):
        k.op("s_memtime s[72:73]")
        k.op("s_waitcnt lgkmcnt(0)")
        k.op("s_mov_b32 s73, s72")
    if any(o.startswith("until") for o in OPT):
        k.op("s_memrealtime s[72:73]")
        k.op("s_waitcnt lgkmcnt(0)")
        k.op("s_mov_b32 s73, s72")
    k.op("s_getpc_b64 s[12:13]")
    k.op("s_load_dwordx16 s[16:31], s[0:1], 0")
    k.op("s_load_dwordx8 s[32:39], s[0:1], 64")
    k.op("s_load_dwordx2 s[40:41], s[0:1], 96")
    k.op("v_lshrrev_b32 v1, 6, v0")
    k.op("v_and_b32 v0, 63, v0")
    k.op("s_cmp_ge_u32 s2, 256")
    k.op(f"v_readfirstlane_b32 s{sW}, v1")
    k.op("s_cbranch_scc1 L_exit")
    if "nocodepf" not in OPT:
        k.op("s_lshr_b32 s14, s2, 3")
        k.op("s_lshl_b32 s14, s14, 2")
        k.op(f"s_add_u32 s14, s14, s{sW}")
        k.op("s_mul_i32 s14, s14, 384")
        k.op("s_add_u32 s12, s12, s14")
        k.op("s_addc_u32 s13, s13, 0")
        k.op("v_lshlrev_b32 v2, 7, v0")
        k.op("s_mov_b64 exec, 7")
        k.vm("global_load_dword a250, v2, s[12:13]", "code")
        k.op("s_mov_b64 exec, -1")
        assert codebytes <= 128 * 384
    if STAMPS and not any(o.startswith("dbgwg") for o in OPT) and "leak" not in OPT:
        k.op("s_memrealtime s[42:43]")
        k.op("s_waitcnt lgkmcnt(0)")
        k.op("s_mov_b32 s100, s42")
    k.op(f"s_and_b32 s{sXCD}, s2, 7")
    k.op(f"s_lshr_b32 s{sSLOT}, s2, 3")
    k.op(f"s_cmp_ge_u32 s{sSLOT}, 28")
    k.op("s_cbranch_scc1 L_pre")

def wdma(c, e):
    out = []
    if e % 4 == 0:
        out.append(("op", f"s_add_u32 m0, s{sWM0}, {SLOT[c % 4] + e * 1056}"))
    out.append(("op", f"s_add_u32 s{sT3}, s{sWSO}, {(64 * c + e) * 3584 - (e % 4) * 1056}"))
    out.append(("vm", f"buffer_load_dwordx4 v2, s[{rW}:{rW+3}], s{sT3} offen offset:{(e % 4) * 1056} lds", f"w{c}"))
    return out

def start_main(k):
    k.op(f"s_mul_i32 s{sT0}, s{sSLOT}, 37")
    k.op(f"s_lshr_b32 s{sT0}, s{sT0}, 8")
    k.op(f"s_mul_i32 s{sT1}, s{sT0}, 7")
    k.op(f"s_sub_u32 s{sDT}, s{sSLOT}, s{sT1}")
    k.op(f"s_lshr_b32 s{sT2}, s{sXCD}, 1")
    k.op(f"s_lshl_b32 s{sT2}, s{sT2}, 2")
    k.op(f"s_add_u32 s{sI}, s{sT2}, s{sT0}")
    k.op(f"s_lshl_b32 s{sTT}, s{sXCD}, 2")
    k.op(f"s_add_u32 s{sTT}, s{sTT}, s{sT0}")
    k.op("v_lshlrev_b32 v1, 4, v0")
    k.op(f"s_lshl_b32 s{sU0}, s{sI}, 2")
    k.op(f"s_add_u32 s{sU0}, s{sU0}, s{sW}")
    k.op(f"s_mul_i32 s{sU0}, s{sU0}, {32*896}")
    k.op(f"s_mul_i32 s{sU1}, s{sW}, {32*XROW}")
    k.op(f"s_add_u32 s{sU1}, s{sU1}, {XS}")
    k.op(f"s_mul_i32 s{sU2}, s{sDT}, 9")
    k.op(f"s_lshr_b32 s{sU2}, s{sU2}, 1")
    k.op(f"s_mul_i32 s{sT1}, s{sU2}, 896")
    k.op(f"s_mul_i32 s{sT2}, s{sU2}, {XROW}")
    k.op(f"s_add_u32 s{sT1}, s{sT1}, s{sU0}")
    k.op(f"s_add_u32 s{sT2}, s{sT2}, s{sU1}")
    k.op(f"s_add_u32 s{sU3}, s{sU0}, {32*896}")
    k.op(f"s_and_b32 s{sT0}, s{sXCD}, 1")
    k.op(f"s_mul_i32 s{sJ}, s{sT0}, 7")
    k.op(f"s_add_u32 s{sJ}, s{sJ}, s{sDT}")
    k.op("v_lshrrev_b32 v6, 4, v0")
    k.op("v_lshlrev_b32 v6, 6, v6")
    k.op("v_bfe_u32 v7, v0, 1, 3")
    k.op("v_add_u32 v6, v6, v7")
    k.op("v_mul_u32_u24 v6, 3584, v6")
    k.op("v_and_b32 v7, 1, v0")
    k.op("v_lshl_add_u32 v5, v7, 7, v6")
    k.op(f"s_and_b32 s{sT0}, s{sI}, 3")
    k.op(f"s_lshl_b32 s{sT0}, s{sT0}, 1")
    k.op(f"s_lshr_b32 s{sWDG}, s{sW}, 1")
    k.op(f"s_add_u32 s{sT0}, s{sT0}, s{sWDG}")
    k.op(f"s_mul_i32 s{sT0}, s{sT0}, {8*3584}")
    k.op(f"s_lshl_b32 s{sWDG}, s{sJ}, 8")
    k.op(f"s_add_u32 s{sWDG}, s{sWDG}, s{sT0}")
    stamp(k, "b_pre")
    k.op("s_waitcnt lgkmcnt(0)")
    if "tlb" in OPT:
        for i, p in enumerate((sPWG, sPWU, sPWD, sPSSM, sPOUT, sPD)):
            k.op(f"s_load_dword s{96 if False else 100 if not STAMPS else 15}, s[{p}:{p+1}], 0") if False else None
        for p in (sPWG, sPWU, sPWD, sPSSM, sPOUT):
            k.op(f"s_load_dword s15, s[{p}:{p+1}], 0x0")
        for off in (H_OFF, 2 << 20, 4 << 20, 6 << 20, U_OFF + (1 << 20), Y_OFF + (1 << 20)):
            k.op(f"s_mov_b32 s14, {off}")
            k.op(f"s_load_dword s15, s[{sPWS}:{sPWS+1}], s14")
    srd(k, rX, sPQ, S * D * 2)
    k.op(f"s_bitcmp1_b32 s{sW}, 0")
    k.op(f"s_cselect_b32 s{rW}, s{sPWU}, s{sPWG}")
    k.op(f"s_cselect_b32 s{rW+1}, s{sPWU+1}, s{sPWG+1}")
    k.op(f"s_and_b32 s{rW+1}, s{rW+1}, 0xffff")
    k.op(f"s_mov_b32 s{rW+2}, {D*F*2}")
    k.op(f"s_mov_b32 s{rW+3}, 0x20000")
    stamp(k, "start")
    if "earlypf" in OPT:
        k.op("s_mov_b32 exec_hi, 0")
        k.vm(f"buffer_load_dword a250, v5, s[{rW}:{rW+3}], s{sWDG} offen", "pf")
    k.op("s_mov_b32 exec_hi, 0x00ffffff")
    k.op(f"s_mov_b32 s{sT0}, 32")
    lx = k.newlabel("Lxd")
    k.label(lx)
    k.op(f"s_mov_b32 m0, s{sT2}")
    k.op(f"s_add_u32 s{sT2}, s{sT2}, {XROW}")
    k.op(f"buffer_load_dwordx4 v1, s[{rX}:{rX+3}], s{sT1} offen lds")
    k.op(f"s_add_u32 s{sT1}, s{sT1}, 896")
    k.op(f"s_cmp_eq_u32 s{sT1}, s{sU3}")
    k.op(f"s_cselect_b32 s{sT1}, s{sU0}, s{sT1}")
    k.op(f"s_cselect_b32 s{sT2}, s{sU1}, s{sT2}")
    k.op(f"s_sub_u32 s{sT0}, s{sT0}, 1")
    k.op(f"s_cmp_lg_u32 s{sT0}, 0")
    k.op(f"s_cbranch_scc1 {lx}")
    for n in range(32): k.vmq.append("x")
    k.op("s_mov_b32 exec_hi, -1")
    stamp(k, "a_xiss")
    k.op("v_lshrrev_b32 v10, 4, v0")
    k.op(f"v_mul_u32_u24 v2, {16*3584}, v10")
    k.op("v_and_b32 v11, 15, v0")
    k.op("v_lshl_add_u32 v2, v11, 4, v2")
    k.op(f"s_lshr_b32 s{sT0}, s{sW}, 1")
    k.op(f"s_lshl_b32 s{sT0}, s{sT0}, 3")
    k.op(f"s_mul_i32 s{sWSO}, s{sT0}, 3584")
    k.op(f"s_lshl_b32 s{sT1}, s{sJ}, 8")
    k.op(f"s_add_u32 s{sWSO}, s{sWSO}, s{sT1}")
    k.op(f"s_mul_i32 s{sWM0}, s{sT0}, 1056")
    k.op(f"s_and_b32 s{sT1}, s{sW}, 1")
    k.op(f"s_mul_i32 s{sT1}, s{sT1}, {XOFF}")
    k.op(f"s_add_u32 s{sWM0}, s{sWM0}, s{sT1}")
    for e in range(8): emit(k, wdma(0, e))
    stamp(k, "a_issued")
    k.op(f"s_mul_i32 s{sWGM}, s{sXCD}, 28")
    k.op(f"s_add_u32 s{sWGM}, s{sWGM}, s{sSLOT}")
    srd(k, rWS, sPWS, (16 << 20) if (STAMPS and 'leak' not in OPT) else WS_USED)
    srd(k, rWD, sPWD, F * D * 2)
    srd(k, rSSM, sPSSM, D * S * 2)
    srd(k, rOUT, sPOUT, S * D * 2)
    srd(k, rD, sPD, D * 2)
    k.op("v_and_b32 v11, 1, v10")
    k.op(f"v_mul_u32_u24 v3, {XOFF}, v11")
    k.op("v_lshrrev_b32 v11, 5, v0")
    k.op("v_lshlrev_b32 v12, 3, v11")
    k.op("v_bfe_u32 v13, v0, 2, 2")
    k.op("v_add_u32 v12, v12, v13")
    k.op("v_mul_u32_u24 v12, 1056, v12")
    k.op("v_add_u32 v3, v3, v12")
    k.op("v_and_b32 v13, 3, v0")
    k.op("v_lshl_add_u32 v3, v13, 3, v3")
    k.op(f"v_add_u32 v14, {2*SLOT_SZ}, v3")
    k.op("v_and_b32 v13, 31, v0")
    k.op(f"s_lshl_b32 s{sT0}, s{sW}, 5")
    k.op(f"v_add_u32 v13, s{sT0}, v13")
    k.op(f"v_mul_u32_u24 v15, {XROW}, v13")
    k.op("v_lshl_add_u32 v15, v11, 4, v15")
    k.op(f"v_add_u32 v15, {XS}, v15")
    k.op(f"s_mov_b32 s{sONES}, 0x3f803f80")
    k.op(f"s_mov_b32 s{sMASK}, 0xffff0000")
    for a in range(8): k.op(f"v_mov_b32 v{6+a}, 0")
    k.wait(vm="x")
    stamp(k, "a_xarr")
    def st(n):
        return [("op", f"v_dot2_f32_bf16 v{6 + n % 4}, v{vX+n}, s{sONES}, v{6 + n % 4}"),
                ("op", f"v_dot2_f32_bf16 v{10 + n % 4}, v{vX+n}, v{vX+n}, v{10 + n % 4}")]
    for ks in range(14):
        k.lg(f"ds_read_b128 {vr(vX + 4 * ks, 4)}, v15 offset:{32 * ks}", f"x{ks}")
    for ks in range(14, 28):
        k.wait(lg=f"x{ks-14}")
        k.lg(f"ds_read_b128 {vr(vX + 4 * ks, 4)}, v15 offset:{32 * ks}", f"x{ks}")
        for q in range(4): emit(k, st(4 * (ks - 14) + q))
        if ks == 15 and "nopf" not in OPT and "w1late" not in OPT:
            k.op(f"s_add_u32 s{sWDG}, s{sWDG}, {128*3584}")
            k.vm(f"buffer_load_dword a250, v5, s[{rW}:{rW+3}], s{sWDG} offen", "pf")
    k.wait(lg="x27")
    k.op("v_mov_b32 v15, v5")
    k.op("s_barrier")
    stamp(k, "a_xreg")
    main = []
    for n in range(56, 112): main += st(n)
    fill = [wdma(1, e) for e in range(8)]
    if "w1late" in OPT and "nopf" not in OPT:
        fill.append([("op", f"s_add_u32 s{sWDG}, s{sWDG}, {128*3584}"),
                     ("vm", f"buffer_load_dword a250, v15, s[{rW}:{rW+3}], s{sWDG} offen", "pf")])
    if "nopf" not in OPT:
        fill.append([("op", f"s_add_u32 s{sWDG}, s{sWDG}, {256*3584}"), ("op", "s_mov_b64 exec, 0xffff"),
                        ("vm", f"buffer_load_dword a250, v15, s[{rW}:{rW+3}], s{sWDG} offen", "pf"), ("op", "s_mov_b64 exec, -1")])
    if "w1late" in OPT:
        emit(k, main)
        late = fill
    else:
        interleave(k, main, fill, 11)
        late = []
    stamp(k, "a_dot")
    k.op("s_nop 2")
    k.op("v_add_f32 v6, v6, v7"); k.op("v_add_f32 v8, v8, v9")
    k.op("v_add_f32 v10, v10, v11"); k.op("v_add_f32 v12, v12, v13")
    k.op("v_add_f32 v6, v6, v8"); k.op("v_add_f32 v10, v10, v12")
    k.op("v_mov_b32 v7, v6"); k.op("v_mov_b32 v11, v10")
    k.op("s_nop 1")
    k.op("v_permlane32_swap_b32 v6, v7"); k.op("v_permlane32_swap_b32 v10, v11")
    k.op("s_nop 1")
    k.op("v_add_f32 v6, v6, v7"); k.op("v_add_f32 v10, v10, v11")
    k.op(f"v_mul_f32 v6, {hex(f2u(1.0/448))}, v6")
    k.op(f"v_mul_f32 v10, {hex(f2u(1.0/448))}, v10")
    k.op("v_fma_f32 v10, -v6, v6, v10")
    k.op("v_max_f32 v10, 0, v10")
    k.op("v_cvt_pk_bf16_f32 v7, v6, v10")
    k.op("v_lshlrev_b32 v6, 16, v7")
    k.op(f"v_and_b32 v10, s{sMASK}, v7")
    k.op(f"v_add_f32 v10, {hex(f2u(1e-5))}, v10")
    k.op("v_cvt_pk_bf16_f32 v10, v10, v10")
    k.op("v_lshlrev_b32 v10, 16, v10")
    k.op("v_sqrt_f32 v10, v10")
    k.op("s_nop 0")
    k.op("v_cvt_pk_bf16_f32 v10, v10, v10")
    k.op("v_lshlrev_b32 v10, 16, v10")
    k.op("v_rcp_f32 v8, v10")
    k.op("v_sub_f32 v4, 0, v6")
    LATE[:] = late
    k.op("v_mul_f32 v9, v4, v8")
    lab = k.newlabel("Lnost")
    k.op(f"s_cmp_lg_u32 s{sJ}, 0")
    k.op(f"s_cbranch_scc1 {lab}")
    k.op(f"s_lshl_b32 s{sT0}, s{sI}, 2")
    k.op(f"s_add_u32 s{sT0}, s{sT0}, s{sW}")
    k.op(f"s_lshl_b32 s{sT0}, s{sT0}, 8")
    k.op(f"s_add_u32 s{sT0}, s{sT0}, {ST_OFF}")
    k.op("v_lshlrev_b32 v6, 3, v0")
    k.op("s_mov_b32 exec_hi, 0")
    k.op(f"buffer_store_dwordx2 v[8:9], v6, s[{rWS}:{rWS+3}], s{sT0} offen sc1")
    k.op("s_mov_b32 exec_hi, -1")
    k.label(lab)
    C1 = -2.0 * 0.7978845608028654 * 1.4426950408889634
    C2 = C1 * 0.044715
    k.op(f"v_mul_f32 v6, {hex(f2u(C1))}, v8")
    k.op("v_mul_f32 v7, v8, v8")
    k.op("v_mul_f32 v11, v10, v10")
    k.op("v_mul_f32 v7, v7, v8")
    k.op("v_accvgpr_write_b32 a144, v6")
    k.op(f"v_mul_f32 v7, {hex(f2u(C2))}, v7")
    k.op("v_accvgpr_write_b32 a146, v11")
    k.op("v_accvgpr_write_b32 a145, v7")

def norm(n, tp):
    t = 6 + 2 * tp
    return [("op", f"v_lshlrev_b32 v{t}, 16, v{vX+n}"),
            ("op", f"v_and_b32 v{t+1}, s{sMASK}, v{vX+n}"),
            ("op", f"v_add_f32 v{t}, v{t}, v4"),
            ("op", f"v_add_f32 v{t+1}, v{t+1}, v4"),
            ("op", f"v_cvt_pk_bf16_f32 v{vX+n}, v{t}, v{t+1}")]
def norm_step(ks):
    a = [norm(4 * ks + q, q) for q in range(4)]
    out = []
    for s in range(5):
        for q in range(4): out.append(a[q][s])
    return out

def hc_dma(q):
    rr, qq = divmod(q, 4)
    out = []
    if qq == 0:
        out.append(("op", f"s_add_u32 m0, s{sU0}, {rr * HC_STRIDE}"))
        out.append(("op", f"s_add_u32 s{sU2}, s{sU1}, {rr * 2}"))
    out.append(("vm", f"buffer_load_dwordx4 v1, s[{rSSM}:{rSSM+3}], s{sU2} offen offset:{qq*1024} lds", "hc"))
    return out

LATE = []
WD0 = []
def gemm1_loop(k):
    emit(k, norm_step(0))
    for g in LATE: emit(k, g)
    k.op(f"s_lshr_b32 s{sT0}, s{sW}, 1")
    k.op(f"s_lshl_b32 s{sCH}, s{sWGM}, 1")
    k.op(f"s_add_u32 s{sCH}, s{sCH}, s{sT0}")
    k.op(f"s_and_b32 s{sT1}, s{sW}, 1")
    k.op(f"s_lshl_b32 s{sT1}, s{sT1}, 1")
    k.op(f"s_mul_i32 s{sU0}, s{sT0}, {HC_CH}")
    k.op(f"s_mul_i32 s{sT3}, s{sT1}, {HC_STRIDE}")
    k.op(f"s_add_u32 s{sU0}, s{sU0}, s{sT3}")
    k.op(f"s_add_u32 s{sU0}, s{sU0}, {HC + 32}")
    k.op(f"s_lshl_b32 s{sU1}, s{sCH}, 12")
    k.op(f"s_lshl_b32 s{sT1}, s{sT1}, 1")
    k.op(f"s_add_u32 s{sU1}, s{sU1}, s{sT1}")
    k.op(f"s_add_u32 s{sU1}, s{sU1}, 2")
    stamp(k, "a_norm0")
    k.wait(vm="w0")
    stamp(k, "a_w0")
    k.op("s_barrier")
    stamp(k, "a_stats")
    NF = 8; DIST = 7; NM = 224
    def rd(n):
        ks, mt = divmod(n, 8)
        c, kk = divmod(ks, 4)
        sl = c % 4
        base = "v3" if sl < 2 else "v14"
        off = (SLOT_SZ if sl % 2 else 0) + kk * 256 + mt * 32
        f = 4 * (n % NF)
        return [("lg", f"ds_read_b64_tr_b16 {ar(f, 2)}, {base} offset:{off}", f"f{n}"),
                ("lg", f"ds_read_b64_tr_b16 {ar(f + 2, 2)}, {base} offset:{off + 4 * 1056}", f"f{n}")]
    for n in range(DIST): emit(k, rd(n))
    extra = {}
    k.op(f"s_lshl_b32 s{sT0}, s{sSLOT}, 2")
    k.op(f"s_add_u32 s{sT0}, s{sT0}, s{sW}")
    k.op(f"s_mul_i32 s{sU3}, s{sT0}, {112*128}")
    k.op("v_lshlrev_b32 v15, 7, v0")
    def wd_pf(piece):
        return [("op", "s_mov_b64 exec, 0xffff"),
                ("vm", f"buffer_load_dword a250, v15, s[{rWD}:{rWD+3}], s{sU3} offen offset:{piece*2048}", "pf"),
                ("op", "s_mov_b64 exec, -1")]
    if "nopf" not in OPT:
        P0, PSTEP = (4, 2) if "pfslow" not in OPT else (6, 3)
        for p in range(7):
            if p < 2: extra[P0 + PSTEP * p] = wd_pf(p)
            else:
                extra[P0 + PSTEP * p] = [("op", f"s_add_u32 s{sU3}, s{sU3}, 2048"), ("op", "s_mov_b64 exec, 0xffff"),
                    ("vm", f"buffer_load_dword a250, v15, s[{rWD}:{rWD+3}], s{sU3} offen offset:2048", "pf"), ("op", "s_mov_b64 exec, -1")]
        k.op(f"s_lshl_b32 s{sHST}, s{sWGM}, 13")
        k.op(f"s_lshl_b32 s{sT0}, s{sW}, 11")
        k.op(f"s_add_u32 s{sHST}, s{sHST}, s{sT0}")
        extra[5] = [("op", "s_mov_b64 exec, 0xffff"),
                    ("vm", f"buffer_load_dword a250, v15, s[{rSSM}:{rSSM+3}], s{sHST} offen", "pf"), ("op", "s_mov_b64 exec, -1")]
    extra[24] = [("op", "s_mov_b64 exec, 1"),
                 ("vm", f"global_load_dword a40, v15, s[{sPDBG}:{sPDBG+1}] sc1", "init"),
                 ("op", "s_mov_b64 exec, -1")]
    tailfill = capture(g2_setup2) + gelu_setup_items()
    setup1 = capture(g2_setup1)
    WD0[:] = wd_dma_groups(0, WD_KS, "wd0", 0)
    def bigs(ks):
        c, kk = divmod(ks, 4)
        out = []
        if "x_now" not in OPT:
            if c == 0: out += [wdma(2 + kk // 2, 4 * (kk % 2) + i) for i in range(4)]
            elif c + 3 < 7: out += [wdma(c + 3, 2 * kk + i) for i in range(2)]
        if c == 4 and "x_nohc" not in OPT: out += [hc_dma(2 * kk + i) for i in range(2)]
        if c in (5, 6) and 'wdgelu' not in OPT: out += WD0[(c - 5) * 8 + 2 * kk: (c - 5) * 8 + 2 * kk + 2]
        if ks in extra and ("x_noex" not in OPT or ks == 24): out.append(extra[ks])
        return out
    VAR = [o for o in OPT if o.startswith("sch")]
    VAR = VAR[0] if VAR else "sch1"
    POS = {"sch0": {0: [], 1: [7], 2: [6, 7], 3: [5, 6, 7], 4: [3, 5, 6, 7]},
           "sch1": {0: [], 1: [7], 2: [3, 7], 3: [2, 5, 7], 4: [1, 3, 5, 7]},
           "sch2": {0: [], 1: [6], 2: [2, 6], 3: [1, 4, 6], 4: [0, 2, 4, 6]},
           "sch3": {0: [], 1: [7], 2: [3, 7], 3: [2, 5, 7], 4: [1, 3, 5, 7]}}[VAR]
    pending_reads = []
    for ks in range(28):
        c, kk = divmod(ks, 4)
        bg = bigs(ks)
        pos = POS[len(bg)]
        nrm = norm_step(ks + 1) if (ks + 1 < 28 and "x_nonorm" not in OPT) else []
        if ks == 27: nrm = list(tailfill)
        if ks in (16, 17, 18, 19):
            i0 = (ks - 16) * 6
            nrm = nrm + setup1[i0: i0 + 6 if ks < 19 else len(setup1)]
        if VAR == "sch0":
            cut = [0, 3, 6, 9, 12, 15, 18, 20, 20] if ks < 27 else [(len(nrm) * i) // 8 for i in range(9)]
            share = {g: nrm[cut[g]:cut[g + 1]] for g in range(8)}
        else:
            wts = {g: (0 if (g in pos or (g == 7 and ks < 27)) else 1) for g in range(8)}
            if VAR == "sch3":
                wts = {g: (1 if g in pos else 0 if (g == 7 and ks < 27) else 3) for g in range(8)}
            tot = sum(wts.values()); acc_ = 0; done = 0; share = {}
            for g in range(8):
                acc_ += wts[g]
                upto = (len(nrm) * acc_ + tot - 1) // tot
                share[g] = nrm[done:upto]; done = upto
        for mt in range(8):
            n = 8 * ks + mt
            if n % 32 == 0: stamp(k, f"g_c{n//32}")
            if n % 4 == 0:
                k.wait(lg=[f"f{n+i}" for i in range(4)])
            f = 4 * (n % NF)
            acc = vr(vACC + 16 * mt, 16)
            cin = "0" if ks == 0 else acc
            if "x_m16" in OPT:
                for hh_ in range(2):
                    a4 = vr(vACC + 16 * mt + 4 * hh_ + 8 * (ks % 2), 4)
                    k.op(f"v_mfma_f32_16x16x32_bf16 {a4}, {ar(f, 4)}, {vr(vX + 4 * ks, 4)}, {a4}")
            else:
                k.op(f"v_mfma_f32_32x32x16_bf16 {acc}, {ar(f, 4)}, {vr(vX + 4 * ks, 4)}, {cin}")
            if "x_halfrd" in OPT and n % 2 == 1:
                emit(k, share[mt])
                if mt in pos: emit(k, bg[pos.index(mt)])
                nn = n + DIST
                if nn < NM and nn % 32 == 0:
                    k.wait(vm=f"w{nn // 32}"); k.op("s_barrier")
                continue
            nn = n + DIST
            if nn < NM:
                if nn % 32 == 0:
                    k.wait(vm=f"w{nn // 32}")
                    if "x_nobar" not in OPT: k.op("s_barrier")
                emit(k, rd(nn))
            emit(k, share[mt])
            if mt in pos: emit(k, bg[pos.index(mt)])
    assert not pending_reads
    stamp(k, "g_end")

def g2_setup1(k):
    k.op(f"s_and_b32 s{sT0}, s{sTT}, 3")
    k.op(f"s_lshl_b32 s{sT0}, s{sT0}, 1")
    k.op(f"s_add_u32 s{sROT}, s{sT0}, s{sDT}")
    k.op(f"s_sub_u32 s{sT0}, s{sROT}, 7")
    k.op(f"s_min_u32 s{sROT}, s{sROT}, s{sT0}")
    k.op("v_lshrrev_b32 v16, 3, v0")
    k.op("v_mul_u32_u24 v2, 896, v16")
    k.op("v_bfe_u32 v16, v0, 4, 1")
    k.op("v_lshlrev_b32 v16, 2, v16")
    k.op("v_and_b32 v17, 7, v0")
    k.op("v_xor_b32 v16, v16, v17")
    k.op("v_lshl_add_u32 v2, v16, 4, v2")
    k.op(f"s_mul_i32 s{sWDS}, s{sW}, {16*28*896}")
    k.op(f"s_lshl_b32 s{sT0}, s{sDT}, 7")
    k.op(f"s_add_u32 s{sWDS}, s{sWDS}, s{sT0}")
    k.op(f"s_sub_u32 s{sWDS}, s{sWDS}, 4096")
    k.op(f"s_lshl_b32 s{sWDM}, s{sW}, 13")
    k.op(f"s_lshl_b32 s{sWDM4}, s{sW}, 12")
def g2_setup2(k):
    k.op("v_lshrrev_b32 v5, 5, v0")
    k.op("v_bfe_u32 v6, v0, 2, 2")
    k.op("v_lshl_add_u32 v5, v5, 2, v6")
    k.op("v_lshlrev_b32 v5, 7, v5")
    k.op("v_bfe_u32 v7, v0, 4, 1")
    k.op("v_lshl_add_u32 v5, v7, 5, v5")
    k.op("v_and_b32 v7, 3, v0")
    k.op("v_lshl_add_u32 v5, v7, 3, v5")
    k.op(f"v_add_u32 v5, s{sWDM}, v5")
    k.op("v_bfe_u32 v6, v0, 3, 1")
    k.op("v_lshlrev_b32 v6, 6, v6")
    k.op("v_add_u32 v3, v5, v6")
    k.op("v_xor_b32 v6, 64, v6")
    k.op("v_add_u32 v4, v5, v6")
def gelu_setup_items():
    C1 = -2.0 * 0.7978845608028654 * 1.4426950408889634
    C2 = C1 * 0.044715
    it = []
    op = lambda t: it.append(("op", t))
    op("v_lshrrev_b32 v10, 4, v0")
    op("v_and_b32 v11, 15, v0")
    op("v_add_u32 v12, v10, v11")
    op("v_subrev_u32 v12, 15, v12")
    op("v_lshlrev_b32 v12, 1, v12")
    op("v_cmp_gt_i32 vcc, 0, v12")
    op("v_mov_b32 v13, 0x7fffffff")
    op(f"s_lshl_b32 s{sT1}, s{sCH}, 12")
    op("v_cndmask_b32 v12, v12, v13, vcc")
    op("v_mov_b32 v13, 0")
    it.append(("vm", f"buffer_load_ushort v12, v12, s[{rSSM}:{rSSM+3}], s{sT1} offen", "hf"))
    op(f"s_lshl_b32 s{sT1}, s{sCH}, 1")
    it.append(("vm", f"buffer_load_ushort v15, v13, s[{rD}:{rD+3}], s{sT1} offen", "dv"))
    op(f"v_mul_u32_u24 v10, {HC_STRIDE}, v10")
    op("v_lshl_add_u32 v10, v11, 1, v10")
    op(f"s_lshr_b32 s{sT0}, s{sW}, 1")
    op(f"s_mul_i32 s{sT2}, s{sT0}, {HC_CH}")
    op(f"s_add_u32 s{sT2}, s{sT2}, {HC}")
    op(f"v_add_u32 v10, s{sT2}, v10")
    op(f"s_mul_i32 s{sT2}, s{sT0}, {UR_CH}")
    op(f"s_add_u32 s{sT2}, s{sT2}, {UR + 4096}")
    op(f"v_add_u32 v11, s{sT2}, v1")
    op("v_mov_b32 v20, 0"); op("v_mov_b32 v21, 0"); op("v_mov_b32 v22, 0"); op("v_mov_b32 v23, 0")
    op("v_accvgpr_read_b32 v16, a144")
    op("v_accvgpr_read_b32 v17, a145")
    op("v_accvgpr_read_b32 v18, a146")
    op(f"s_lshl_b32 s{sT0}, s{sI}, 2")
    op(f"s_add_u32 s{sT0}, s{sT0}, s{sW}")
    op(f"s_mul_i32 s{sHST}, s{sT0}, {112*1024}")
    op(f"s_lshl_b32 s{sT1}, s{sJ}, 13")
    op(f"s_add_u32 s{sHST}, s{sHST}, s{sT1}")
    return it

def g2_setup3(k):
    k.op(f"v_add_u32 v176, {2*SLOT_SZ}, v3")
    k.op(f"v_add_u32 v177, {2*SLOT_SZ}, v4")
    k.op(f"s_sub_u32 s{sT0}, {3*SLOT_SZ}, s{sWDM4}")
    k.op(f"v_add_u32 v178, s{sT0}, v3")
    k.op(f"v_add_u32 v179, s{sT0}, v4")

def wd_group_base(g):
    return [("op", f"s_add_u32 s{sT3}, s{sROT}, {g}"),
            ("op", f"s_sub_u32 s{sWDG}, s{sT3}, 7"),
            ("op", f"s_min_u32 s{sT3}, s{sT3}, s{sWDG}"),
            ("op", f"s_mul_i32 s{sT3}, s{sT3}, {64*896}"),
            ("op", f"s_add_u32 s{sWDG}, s{sT3}, s{sWDS}")]
def wd_dma_groups(ks0, ks1, tag, s0):
    out = []
    q = 0
    for ks in range(ks0, ks1):
        sl = ks - s0
        for hh in range(2):
            g = []
            if ks % 4 == 0 and hh == 0: g += wd_group_base(ks // 4)
            qq = 2 * (sl & 1) + hh
            if qq == 0:
                g.append(("op", f"s_add_u32 m0, s{sWDM if sl < 12 else sWDM4}, {stg_const(sl)}"))
            g.append(("op", f"s_add_u32 s{sT3}, s{sWDG}, {(16 * (ks % 4) + 8 * hh) * 896 - qq * 1024 + 4096}"))
            g.append(("vm", f"buffer_load_dwordx4 v2, s[{rWD}:{rWD+3}], s{sT3} offen offset:{qq * 1024} lds", tag))
            out.append(g)
    return out

def wd_read_items(ks0, ks1, s0):
    out = []
    for ks in range(ks0, ks1):
        sl = ks - s0
        g = sl >> 2
        for dt2 in range(2):
            for t in range(2):
                a = 8 * ks + 4 * dt2 + 2 * t
                if g < 2: base, off = 3 + dt2, stg_const(sl)
                elif g == 2: base, off = 176 + dt2, stg_const(sl) - 2 * SLOT_SZ
                else: base, off = 178 + dt2, stg_const(sl) - 3 * SLOT_SZ
                out.append(("lg", f"ds_read_b64_tr_b16 {ar(a,2)}, v{base} offset:{off + t*1024}", f"wr{ks}_{dt2}_{t}"))
    return out
def emit_lg_limited(k, items):
    for it in items:
        if it[0] == "lg" and len(k.lgq) >= 12: k.wait(lg=k.lgq[5])
        emit(k, [it])

def gelu_phase(k):
    if k.lgq: k.wait(lg=[k.lgq[-1]])
    k.op("s_barrier")
    vC, vONE = 16, 18
    k.wait(vm="init")
    k.op("v_accvgpr_read_b32 v8, a40")
    k.op("v_mov_b32 v9, 0")
    k.op("s_nop 0")
    check_or_spin(k, 8, 9, sPDBG, 1)
    cnt_addr(k, 9, idx=UCNT)
    k.vm(f"global_load_dword v8, v9, s[{sPWS}:{sPWS+1}] sc1", "ucnt")
    k.op("s_mov_b32 exec_hi, 0")
    k.lg("ds_write_b128 v11, v[20:23]", "z")
    k.op("s_mov_b32 exec_hi, -1")
    wd0 = WD0[16:] if 'wdgelu' not in OPT else WD0[:]
    g2_setup3_done = False
    def ur_dma():
        k.wait(vm="ucnt")
        k.spin_tag = 6
        check_or_spin(k, 8, 9, sPWS, 32)
        k.spin_tag = None
        k.op(f"s_lshr_b32 s{sT0}, s{sW}, 1")
        k.op(f"s_and_b32 s{sT1}, s{sW}, 1")
        k.op(f"s_lshl_b32 s{sT1}, s{sT1}, 11")
        k.op(f"s_mul_i32 s{sT2}, s{sT0}, {UR_CH}")
        k.op(f"s_add_u32 s{sT2}, s{sT2}, s{sT1}")
        k.op(f"s_add_u32 m0, s{sT2}, {UR}")
        k.op(f"s_lshl_b32 s{sT3}, s{sCH}, 12")
        k.op(f"s_add_u32 s{sT3}, s{sT3}, s{sT1}")
        k.op(f"s_add_u32 s{sT3}, s{sT3}, {U_OFF}")
        k.vm(f"buffer_load_dwordx4 v1, s[{rWS}:{rWS+3}], s{sT3} offen sc1 lds", "ur")
        k.vm(f"buffer_load_dwordx4 v1, s[{rWS}:{rWS+3}], s{sT3} offen offset:1024 sc1 lds", "ur")
        k.wait(vm="hf")
        k.lg("ds_write_b16 v10, v12", "z")
    for mt in range(8):
        stamp(k, f"y_{mt}")
        G = vACC + 16 * mt; U = G + 8
        T = 24 + (mt % 2) * 24
        tp = lambda p: T + 2 * p
        gu = lambda p: T + 8 + 2 * p
        O = T + 16
        P = range(4)
        m = []
        for p in P: m.append(("op", f"v_pk_mul_f32 {vr(tp(p),2)}, {vr(G+2*p,2)}, {vr(G+2*p,2)}"))
        for p in P: m.append(("op", f"v_pk_fma_f32 {vr(tp(p),2)}, {vr(tp(p),2)}, {vr(vC,2)}, {vr(vC,2)} op_sel:[0,1,0] op_sel_hi:[1,1,0]"))
        for p in P: m.append(("op", f"v_pk_mul_f32 {vr(tp(p),2)}, {vr(tp(p),2)}, {vr(G+2*p,2)}"))
        for p in P:
            m.append(("op", f"v_exp_f32 v{tp(p)}, v{tp(p)}")); m.append(("op", f"v_exp_f32 v{tp(p)+1}, v{tp(p)+1}"))
        for p in P: m.append(("op", f"v_pk_mul_f32 {vr(gu(p),2)}, {vr(G+2*p,2)}, {vr(U+2*p,2)}"))
        for p in P: m.append(("op", f"v_pk_fma_f32 {vr(tp(p),2)}, {vr(tp(p),2)}, {vr(vONE,2)}, {vr(vONE,2)} op_sel_hi:[1,0,0]"))
        for p in P:
            m.append(("op", f"v_rcp_f32 v{tp(p)}, v{tp(p)}")); m.append(("op", f"v_rcp_f32 v{tp(p)+1}, v{tp(p)+1}"))
        m.append(("op", "s_nop 0"))
        for p in P: m.append(("op", f"v_pk_mul_f32 {vr(gu(p),2)}, {vr(gu(p),2)}, {vr(tp(p),2)}"))
        for p in P: m.append(("op", f"v_cvt_pk_bf16_f32 v{O+p}, v{gu(p)}, v{gu(p)+1}"))
        nf = (4 if mt < 3 else 0) if 'wdgelu' not in OPT else (4 if mt < 4 else 3)
        fill = [wd0.pop(0) for _ in range(nf)]
        if "nowdg" in OPT: fill = [[x for x in g if x[0] != "vm"] for g in fill]
        pos = {8: 0, 20: 1, 32: 2, 42: 3} if nf == 4 else {12: 0, 24: 1, 36: 2} if nf == 3 else {}
        for n, it in enumerate(m):
            emit(k, [it])
            if n in pos: emit(k, fill[pos[n]])
        if mt % 4 == 0 and mt > 0:
            k.op(f"s_add_u32 s{sHST}, s{sHST}, 4096")
        if "nohst" not in OPT: k.vm(f"buffer_store_dwordx4 {vr(O,4)}, v1, s[{rWS}:{rWS+3}], s{sHST} offen offset:{(mt%4)*1024}{'' if 'hstplain' in OPT else ' sc1'}", "hst")
        if mt == 3: ur_dma()
    assert not wd0
    stamp(k, "e_gelu")
    k.wait(vm="ur", lg=[k.lgq[-1]] if k.lgq else [])
    k.op("s_barrier")

def h_signal(k):
    k.wait(vm="hst")
    k.op("s_barrier")
    cnt_addr(k, 9, idx_sgpr=sI, idx=HCNT)
    signal(k, 9, 10)
    stamp(k, "e_sig")

def conv_phase(k):
    k.wait(vm="dv")
    k.op("v_lshlrev_b32 v8, 16, v15")
    k.op(f"s_lshr_b32 s{sT0}, s{sW}, 1")
    k.op(f"s_mul_i32 s{sT2}, s{sT0}, {HC_CH}")
    k.op(f"s_add_u32 s{sT2}, s{sT2}, {HC}")
    k.op("v_bfe_u32 v5, v0, 2, 2")
    k.op(f"v_mul_u32_u24 v14, {HC_STRIDE}, v5")
    k.op("v_and_b32 v6, 3, v0")
    k.op("v_lshl_add_u32 v14, v6, 3, v14")
    k.op("v_lshrrev_b32 v6, 4, v0")
    k.op("v_lshl_add_u32 v14, v6, 4, v14")
    k.op(f"s_and_b32 s{sT1}, s{sW}, 1")
    k.op(f"s_lshl_b32 s{sT1}, s{sT1}, 8")
    k.op(f"s_add_u32 s{sT2}, s{sT2}, s{sT1}")
    k.op(f"v_add_u32 v14, s{sT2}, v14")
    k.op("v_and_b32 v7, 15, v0")
    k.op("v_lshlrev_b32 v7, 5, v7")
    k.op("v_lshlrev_b32 v5, 4, v6")
    k.op("v_sub_u32 v15, v5, v7")
    k.op(f"s_mul_i32 s{sT2}, s{sT0}, {UR_CH}")
    k.op(f"s_add_u32 s{sT2}, s{sT2}, {UR + 4064 - 3584}")
    k.op(f"s_add_u32 s{sT3}, s{sT2}, s{sT1}")
    k.op(f"v_add_u32 v15, s{sT3}, v15")
    FB = [16, 48]; GBUF = [80, 112]; ACC = 144
    def rdF(sub, J):
        b = FB[sub % 2] + 4 * J
        off = 64 * (8 * J + sub)
        return [("lg", f"ds_read_b64_tr_b16 {vr(b,2)}, v14 offset:{off}", f"F{sub}"),
                ("lg", f"ds_read_b64_tr_b16 {vr(b+2,2)}, v14 offset:{off+8}", f"F{sub}")]
    def rdG(sub, T):
        b = GBUF[sub % 2] + 4 * T
        return [("lg", f"ds_read_b128 {vr(b,4)}, v15 offset:{512*(7-T) + 64*sub}", f"F{sub}")]
    def fg(sub):
        out = []
        for i in range(8):
            out += rdG(sub, 7 - i) + rdF(sub, i)
        return out
    emit(k, fg(0))
    k.op("v_lshlrev_b32 v5, 3, v6")
    k.op("v_add_u32 v7, v7, v5")
    k.op(f"s_add_u32 s{sT2}, s{sT2}, {4088 - 4064}")
    k.op(f"v_sub_u32 v13, s{sT2}, v7")
    k.op("v_and_b32 v5, 1, v6")
    k.op("v_mul_u32_u24 v5, 504, v5")
    k.op("v_add_u32 v7, v7, v5")
    k.op("v_lshrrev_b32 v184, 3, v0")
    k.op(f"s_lshl_b32 s{sT0}, s{sW}, 3")
    k.op(f"v_add_u32 v184, s{sT0}, v184")
    k.op("v_and_b32 v185, 7, v0")
    k.op("v_mul_u32_u24 v186, 896, v184")
    k.op("v_lshl_add_u32 v186, v185, 4, v186")
    k.op(f"s_mul_i32 s78, s{sTT}, {64*896}")
    k.op(f"s_lshl_b32 s{sT0}, s{sDT}, 7")
    k.op(f"s_add_u32 s78, s78, s{sT0}")
    k.op(f"s_add_u32 s79, s78, {32*896}")
    k.op(f"s_lshr_b32 s{sU0}, s{sTT}, 1")
    cnt_addr(k, 187, idx_sgpr=sU0, idx=HCNT)
    k.op(f"s_lshl_b32 s{sT0}, s{sTT}, 1")
    k.op(f"s_mul_i32 s{sT0}, s{sT0}, 112")
    k.op(f"s_mul_i32 s{sT1}, s{sW}, 28")
    k.op(f"s_add_u32 s{sT0}, s{sT0}, s{sT1}")
    k.op(f"s_lshl_b32 s{sHG}, s{sT0}, 10")
    g2_setup3(k)
    wd1 = wd_dma_groups(WD_KS, 2 * WD_KS, "wd1", WD_KS)
    for g in wd1[:WD_KS]:
        for i, it in enumerate(g):
            if it[0] == "vm": g[i] = ("vm", it[1], "wd1a")
    wr0 = wd_read_items(0, WD_KS, 0)
    wr1 = wd_read_items(WD_KS, 2 * WD_KS, WD_KS)
    H = WD_KS // 2
    one = lambda items: [[x] for x in items]
    wtag = lambda it: [("fn", lambda t=it[2]: k.wait(lg=t))]
    def mix(a, b):
        if not b: return a
        out = []; j = 0
        for i, g in enumerate(a):
            out.append(g)
            while j < len(b) and (j + 1) * len(a) <= (i + 1) * len(b) + len(a) // 2: out.append(b[j]); j += 1
        return out + b[j:]
    N1, N2 = (6, 14) if 'n1' not in OPT else (4, 14)
    plan = {0: one(fg(1)) + [[("fn", lambda: k.wait(vm="wd0"))]] + one(wr0[:4*H]),
            1: one(fg(2)) + [wtag(wr0[4*H-1])] + mix(one(wr0[4*H:]), wd1[:N1]),
            2: mix(one(fg(3)), wd1[N1:N2] + [wtag(wr0[-1])] + wd1[N2:N2 + 4]),
            3: wd1[N2 + 4:]}
    first = set()
    for sub in range(4):
        stamp(k, f"s_pre{sub}")
        k.wait(lg=f"F{sub}")
        if sub == 1:
            h_signal(k)
            k.vm(f"buffer_load_dwordx4 {ar(224,4)}, v186, s[{rX}:{rX+3}], s78 offen", "ex")
            k.vm(f"buffer_load_dwordx4 {ar(228,4)}, v186, s[{rX}:{rX+3}], s79 offen", "ex")
        if sub == 2:
            k.vm(f"global_load_dword v188, v187, s[{sPWS}:{sPWS+1}] sc1", "hcnt")
        stamp(k, f"s_go{sub}")
        fill = [g for g in plan[sub] if g]
        mf = [(T, J) for T in range(7, -1, -1) for J in range(0, 8 - T)]
        per = len(fill) / (36.0 if sub < 3 else 20.0)
        done = 0
        for n, (T, J) in enumerate(mf):
            tile = T + J
            a = vr(ACC + 4 * tile, 4)
            cin = a if tile in first else "0"
            first.add(tile)
            k.op(f"v_mfma_f32_16x16x32_bf16 {a}, {vr(FB[sub%2]+4*J,4)}, {vr(GBUF[sub%2]+4*T,4)}, {cin}")
            want = min(len(fill), int(round((n + 1) * per + 0.49)))
            while done < want:
                emit(k, fill[done]); done += 1
        while done < len(fill):
            emit(k, fill[done]); done += 1
    stamp(k, "c_mfma")
    k.wait(vm="hcnt")
    check_or_spin(k, 188, 187, sPWS, 14)
    stamp(k, "d_hrdy")
    k.op("v_lshlrev_b32 v189, 3, v184")
    k.op(f"s_lshl_b32 s{sT0}, s{sTT}, 9")
    k.op(f"s_add_u32 s{sT0}, s{sT0}, {ST_OFF}")
    k.vm(f"buffer_load_dwordx2 {ar(232,2)}, v189, s[{rWS}:{rWS+3}], s{sT0} offen sc1", "ex")
    k.vm(f"buffer_load_dwordx2 {ar(234,2)}, v189, s[{rWS}:{rWS+3}], s{sT0} offen offset:256 sc1", "ex")
    for ks in range(PD):
        g2_hload(k, ks)
    k.op(f"s_lshl_b32 s{sT0}, s{sW}, 12")
    k.op(f"s_add_u32 s{sT0}, s{sT0}, {XCH}")
    k.op(f"v_add_u32 v5, s{sT0}, v1")
    k.op(f"s_xor_b32 s{sT1}, s{sW}, 1")
    k.op(f"s_lshl_b32 s{sT1}, s{sT1}, 12")
    k.op(f"s_add_u32 s{sT1}, s{sT1}, {XCH}")
    k.op(f"v_add_u32 v6, s{sT1}, v1")
    k.op(f"s_lshl_b32 s{sT2}, s{sCH}, 12")
    k.op(f"s_add_u32 s{sT2}, s{sT2}, {Y_OFF}")
    if k.lgq: k.wait(lg=k.lgq[-1])
    k.op("s_barrier")
    lo, le = k.newlabel("Lcodd"), k.newlabel("Lcend")
    k.op("s_nop 1")
    def finish(keep, send):
        for i in range(4):
            k.op(f"ds_write_b128 v5, {vr(ACC + 4*(send+i), 4)} offset:{1024*i}")
        for i in range(4):
            k.op(f"ds_read_b64 {vr(64+2*i,2)}, v13 offset:{512*(7-(keep+i))}")
        k.op("s_waitcnt lgkmcnt(0)")
        k.op("s_barrier")
        for i in range(4):
            k.op(f"ds_read_b128 {vr(48+4*i,4)}, v6 offset:{1024*i}")
        for i in range(4):
            U = 64 + 2 * i
            k.op(f"v_and_b32 v{112+4*i}, s{sMASK}, v{U+1}")
            k.op(f"v_lshlrev_b32 v{113+4*i}, 16, v{U+1}")
            k.op(f"v_and_b32 v{114+4*i}, s{sMASK}, v{U}")
            k.op(f"v_lshlrev_b32 v{115+4*i}, 16, v{U}")
            A = ACC + 4 * (keep + i)
            for r in range(4):
                k.op(f"v_fmac_f32 v{A+r}, v{112+4*i+r}, v8")
        k.op("s_waitcnt lgkmcnt(0)")
        for i in range(4):
            A = ACC + 4 * (keep + i)
            k.op(f"v_pk_add_f32 {vr(A,2)}, {vr(A,2)}, {vr(48+4*i,2)}")
            k.op(f"v_pk_add_f32 {vr(A+2,2)}, {vr(A+2,2)}, {vr(50+4*i,2)}")
        for i in range(4):
            A = ACC + 4 * (keep + i)
            k.op(f"v_cvt_pk_bf16_f32 v{72+2*i}, v{A}, v{A+1}")
            k.op(f"v_cvt_pk_bf16_f32 v{73+2*i}, v{A+2}, v{A+3}")
        k.op("s_nop 1")
        for i in (0, 2):
            k.op(f"v_permlane16_swap_b32 v{72+2*i}, v{74+2*i}")
            k.op(f"v_permlane16_swap_b32 v{73+2*i}, v{75+2*i}")
        k.op("s_nop 0")
        for i in (0, 2):
            k.op(f"buffer_store_dwordx4 {vr(72+2*i,4)}, v7, s[{rWS}:{rWS+3}], s{sT2} offen offset:{512*(keep+i)} sc1")
    k.op(f"s_bitcmp1_b32 s{sW}, 0")
    k.op(f"s_cbranch_scc1 {lo}")
    finish(0, 4)
    k.op(f"s_branch {le}")
    k.label(lo)
    finish(4, 0)
    k.label(le)
    for i in range(2): k.vmq.append("yst")
    stamp(k, "c_end")
    return wr1

NHS = 8; vA2 = 192
def hreg(ks, e):
    sl = ks % NHS
    return (16 + 8 * sl if sl < 4 else 80 + 8 * (sl - 4)) + 4 * e
PD = 4
def g2_hbase(k, g):
    k.op(f"s_add_u32 s{sT3}, s{sROT}, {g}")
    k.op(f"s_sub_u32 s76, s{sT3}, 7")
    k.op(f"s_min_u32 s{sT3}, s{sT3}, s76")
    k.op(f"s_lshl_b32 s{sT3}, s{sT3}, 12")
    k.op(f"s_add_u32 s76, s{sT3}, s{sHG}")
    k.op(f"s_add_u32 s77, s76, {112*1024}")
def g2_hload(k, ks):
    if ks % 4 == 0: g2_hbase(k, ks // 4)
    for e in range(2):
        b = hreg(ks, e)
        k.vm(f"buffer_load_dwordx4 {vr(b,4)}, v1, s[{rWS}:{rWS+3}], s{76+e} offen offset:{(ks%4)*1024}{'' if 'hplain' in OPT else ' sc1'}", f"h{ks}")

def gemm2_phase(k, wr1):
    k.op("v_mov_b32 v5, v184"); k.op("v_mov_b32 v6, v185"); k.op("v_mov_b32 v7, v186")
    for ks in range(PD, 2 * PD):
        g2_hload(k, ks)
    k.op(f"s_lshr_b32 s{sU0}, s{sWGM}, 5")
    cnt_addr(k, 9, idx_sgpr=sU0, idx=YCNT)
    k.op(f"s_lshl_b32 s{sU1}, s{sDT}, 7")
    k.op(f"s_add_u32 s{sU1}, s{sU1}, {CNT_OFF + YCNT * 128}")
    def y_loads():
        done = k.newlabel("Lyok")
        stamp(k, "t_y0")
        if 'ysmem' not in OPT:
            k.wait(vm="ycnt")
            k.op(f"v_readfirstlane_b32 s{sU2}, v10")
        else:
            k.op("s_waitcnt lgkmcnt(0)")
            k.lgq = []
        stamp(k, "t_y1")
        k.op(f"s_cmp_ge_u32 s{sU2}, 32")
        k.op(f"s_cbranch_scc1 {done}")
        k.op(f"v_mov_b32 v9, s{sU1}")
        q = list(k.vmq)
        spin_until(k, 9, 10, sPWS, 32)
        k.vmq = q
        k.label(done)
        stamp(k, "t_y2")
        k.op("v_lshrrev_b32 v8, 3, v0")
        k.op("v_lshlrev_b32 v8, 12, v8")
        k.op("v_lshl_add_u32 v8, v6, 4, v8")
        k.op(f"s_lshl_b32 s{sT0}, s{sDT}, 18")
        k.op(f"s_lshl_b32 s{sT1}, s{sW}, 16")
        k.op(f"s_add_u32 s{sT0}, s{sT0}, s{sT1}")
        k.op(f"s_lshl_b32 s{sT1}, s{sTT}, 7")
        k.op(f"s_add_u32 s{sT0}, s{sT0}, s{sT1}")
        k.op(f"s_add_u32 s{sT0}, s{sT0}, {Y_OFF}")
        k.op(f"s_mul_i32 s{sT1}, s{sW}, 2080")
        k.op(f"s_add_u32 m0, s{sT1}, {YT}")
        k.op(f"s_add_u32 s{sT2}, s{sT0}, {8*4096 - 1040}")
        k.vm(f"buffer_load_dwordx4 v8, s[{rWS}:{rWS+3}], s{sT0} offen sc1 lds", "ey")
        k.vm(f"buffer_load_dwordx4 v8, s[{rWS}:{rWS+3}], s{sT2} offen offset:1040 sc1 lds", "ey")
    RROW = 272; RW = 64 * RROW
    k.op("v_and_b32 v11, 31, v0")
    k.op(f"v_mul_u32_u24 v11, {RROW}, v11")
    k.op("v_lshrrev_b32 v12, 5, v0")
    k.op("v_lshl_add_u32 v11, v12, 4, v11")
    k.op(f"s_mul_i32 s{sT0}, s{sW}, {RW}")
    k.op(f"s_add_u32 s{sT0}, s{sT0}, {RED}")
    k.op(f"v_add_u32 v11, s{sT0}, v11")
    first = set()
    def mf(ks, dt2, e):
        t = 2 * dt2 + e
        acc = vr(vA2 + 16 * t, 16)
        cin = acc if t in first else "0"
        first.add(t)
        hb = hreg(ks, e)
        k.op(f"v_mfma_f32_32x32x16_bf16 {acc}, {ar(8*ks+4*dt2,4)}, {vr(hb,4)}, {cin}")
    LASTK = 24
    YSIG, YPOLL, YLOAD = (3, 14, 22) if 'ysmem' in OPT else (3, 17, 23)
    xfill = []
    for ps in range(2):
        X = 112 + 16 * ps; N = X + 8; T = 144 + 8 * ps
        for q in range(4): xfill.append(("op", f"v_accvgpr_read_b32 v{T+q}, a{224+4*ps+q}"))
        xfill.append(("op", f"v_accvgpr_read_b32 v{T+4}, a{232+2*ps}"))
        xfill.append(("op", f"v_accvgpr_read_b32 v{T+5}, a{233+2*ps}"))
        for q in range(4):
            xfill.append(("op", f"v_lshlrev_b32 v{X+2*q}, 16, v{T+q}"))
            xfill.append(("op", f"v_and_b32 v{X+2*q+1}, s{sMASK}, v{T+q}"))
        for q in range(8): xfill.append(("op", f"v_fma_f32 v{N+q}, v{X+q}, v{T+4}, v{T+5}"))
        for q in range(8): xfill.append(("op", f"v_mov_b32 v{160+8*ps+q}, 0"))
    def hl(kn, e):
        k.vm(f"buffer_load_dwordx4 {vr(hreg(kn, e),4)}, v1, s[{rWS}:{rWS+3}], s{76+e} offen offset:{(kn%4)*1024}{'' if 'hplain' in OPT else ' sc1'}", f"h{kn}")
    for ks in range(LASTK):
        if ks == YSIG:
            k.wait(vm="yst")
            k.op("s_barrier")
            signal(k, 9, 8)
            stamp(k, "c_sig")
        stamp(k, f"w_{ks}_")
        k.wait(vm=f"h{ks}", lg=[f"wr{ks}_1_1"] if ks >= WD_KS else [])
        if ks % 2 == 0: stamp(k, f"z_{ks}")
        else: stamp(k, f"q_{ks}")
        m = 0
        for dt2 in range(2):
            for e in range(2):
                mf(ks, dt2, e)
                todo = []
                if ks == 2: todo = {1: [(8, 0), (8, 1)], 3: [(9, 0), (9, 1)]}.get(m, [])
                elif ks == 3: todo = {1: [(10, 0), (10, 1)], 3: [(11, 0), (11, 1)]}.get(m, [])
                elif ks >= 4 and ks + 8 < 28 and m >= 2: todo = [(ks + 8, m - 2)]
                for kn, e2 in todo:
                    if kn % 4 == 0 and e2 == 0: g2_hbase(k, kn // 4)
                    hl(kn, e2)
                if ks < WD_KS: emit(k, [wr1[4 * ks + m]])
                if ks >= 6 and xfill and m < 2: emit(k, [xfill.pop(0) for _ in range(min(2, len(xfill)))])
                if m == 3 and ks == YPOLL and 'ysmem' in OPT: k.op(f"s_load_dword s{sU2}, s[{sPWS}:{sPWS+1}], s{sU1}")
                if m == 3 and ks == 19 and 'ysmem' not in OPT:
                    k.op(f"v_mov_b32 v9, s{sU1}")
                    k.vm(f"global_load_dword v10, v9, s[{sPWS}:{sPWS+1}] sc1", "ycnt")
                if m == 3 and ks == YLOAD: y_loads()
                m += 1
    assert not xfill
    k.wait(vm="h27", lg=["wr27_1_1"])
    def wr(t):
        dt2, e = divmod(t, 2)
        return [("lg", f"ds_write_b128 v11, {vr(vA2 + 16*t + 4*g, 4)} offset:{e*32*RROW + dt2*128 + g*32}", f"rw{t}{g}") for g in range(4)]
    for t in range(4):
        dt2, e = divmod(t, 2)
        for ks in range(LASTK, 28):
            mf(ks, dt2, e)
        if t == 2: k.op("s_nop 3")
        if t >= 2: emit(k, wr(t - 2))
    stamp(k, "d_loop")
    k.op(f"v_mov_b32 v10, {hex(f2u(-1.4426950408889634))}")
    k.op(f"v_mul_u32_u24 v8, {RROW}, v5")
    k.op("v_lshl_add_u32 v8, v6, 5, v8")
    k.op(f"v_add_u32 v8, {RED}, v8")
    k.op("v_mul_u32_u24 v9, 1040, v6")
    k.op("v_lshl_add_u32 v9, v5, 1, v9")
    k.op(f"v_add_u32 v9, {YT}, v9")
    emit(k, wr(2))
    emit(k, wr(3))
    k.op("v_mov_b32 v11, 1.0")
    k.wait(lg=k.lgq[-1])
    stamp(k, "t_wr")
    k.op("s_barrier")
    stamp(k, "t_bar")
    for ps in range(2):
        B = 16 + 64 * ps
        for w in range(4):
            for hh in range(2):
                k.lg(f"ds_read_b128 {vr(B + 8*w + 4*hh, 4)}, v8 offset:{w*RW + ps*32*RROW + hh*16}", f"p{ps}_{w}{hh}")
    for ps in range(2):
        B = 16 + 64 * ps if ps == 0 else 80
        N = 112 + 16 * ps + 8
        k.wait(lg=f"p{ps}_31")
        for q in range(4):
            k.op(f"v_pk_add_f32 {vr(B+2*q,2)}, {vr(B+2*q,2)}, {vr(B+8+2*q,2)}")
            k.op(f"v_pk_add_f32 {vr(B+16+2*q,2)}, {vr(B+16+2*q,2)}, {vr(B+24+2*q,2)}")
        for q in range(4):
            k.op(f"v_pk_add_f32 {vr(B+2*q,2)}, {vr(B+2*q,2)}, {vr(B+16+2*q,2)}")
        E = B + 16
        for q in range(4):
            k.op(f"v_pk_mul_f32 {vr(E+2*q,2)}, {vr(B+2*q,2)}, {vr(10,2)} op_sel_hi:[1,0]")
        for q in range(8): k.op(f"v_exp_f32 v{E+q}, v{E+q}")
        for q in range(4): k.op(f"v_pk_mul_f32 {vr(N+2*q,2)}, {vr(N+2*q,2)}, {vr(B+2*q,2)}")
        for q in range(4): k.op(f"v_pk_add_f32 {vr(E+2*q,2)}, {vr(E+2*q,2)}, {vr(10,2)} op_sel:[0,1] op_sel_hi:[1,1]")
        for q in range(8): k.op(f"v_rcp_f32 v{E+q}, v{E+q}")
        k.op("s_nop 0")
        for q in range(4): k.op(f"v_pk_mul_f32 {vr(N+2*q,2)}, {vr(N+2*q,2)}, {vr(E+2*q,2)}")
    stamp(k, "t_silu")
    k.wait(vm="ey")
    k.op("s_barrier")
    stamp(k, "t_ey")
    for ps in range(2):
        for e in range(8):
            if len(k.lgq) >= 14: k.wait(lg=k.lgq[3])
            k.lg(f"ds_read_u16_d16_hi v{160+8*ps+e}, v9 offset:{e*128 + ps*64}", f"y{ps}_{e}")
    for ps in range(2):
        X = 112 + 16 * ps; N = X + 8; Yr = 160 + 8 * ps; T = 144 + 8 * ps
        k.wait(lg=f"y{ps}_7")
        for q in range(4): k.op(f"v_pk_fma_f32 {vr(N+2*q,2)}, {vr(N+2*q,2)}, {vr(Yr+2*q,2)}, {vr(X+2*q,2)}")
        for q in range(4): k.op(f"v_cvt_pk_bf16_f32 v{T+q}, v{N+2*q}, v{N+2*q+1}")
        k.vm(f"buffer_store_dwordx4 {vr(T,4)}, v7, s[{rOUT}:{rOUT+3}], s{78+ps} offen{' sc1' if 'outsc1' in OPT else '' if 'outplain' in OPT else ' nt'}", "ost")
    stamp(k, "d_end")

PP_ROW = 900
PP_K = 0
PP_V = 67 * PP_ROW + 4
def prepass(k):
    if "ppst" in OPT: k.op("s_memtime s[8:9]")
    k.op(f"s_sub_u32 s{sT0}, s{sSLOT}, 28")
    k.op(f"s_lshl_b32 s{sT0}, s{sT0}, 3")
    k.op(f"s_add_u32 s{sI}, s{sT0}, s{sXCD}")
    k.op("v_lshlrev_b32 v1, 4, v0")
    k.op("s_waitcnt lgkmcnt(0)")
    srd(k, rWS, sPWS, (16 << 20) if (STAMPS and 'leak' not in OPT) else WS_USED)
    lab = k.newlabel("Lnolead")
    k.op(f"s_or_b32 s{sT0}, s{sI}, s{sW}")
    k.op(f"s_cmp_lg_u32 s{sT0}, 0")
    k.op(f"s_cbranch_scc1 {lab}")
    k.op("v_lshlrev_b32 v2, 7, v0")
    k.op(f"v_add_u32 v2, {CNT_OFF}, v2")
    k.op("v_mov_b32 v3, 0")
    k.op("s_mov_b32 exec_hi, 0")
    k.op(f"global_store_dword v2, v3, s[{sPWS}:{sPWS+1}] sc1")
    k.op("s_waitcnt vmcnt(0)")
    k.op("v_mov_b32 v2, 1")
    k.op("s_mov_b64 exec, 1")
    k.op(f"global_store_dword v3, v2, s[{sPDBG}:{sPDBG+1}] sc1")
    k.op("s_mov_b64 exec, -1")
    k.label(lab)
    if "ppf" in OPT:
        k.op(f"s_bitcmp1_b32 s{sW}, 1")
        k.op(f"s_cselect_b32 s{rX}, s{sPWU}, s{sPWG}")
        k.op(f"s_cselect_b32 s{rX+1}, s{sPWU+1}, s{sPWG+1}")
        k.op(f"s_and_b32 s{rX+1}, s{rX+1}, 0xffff")
        k.op(f"s_mov_b32 s{rX+2}, {D*F*2}")
        k.op(f"s_mov_b32 s{rX+3}, 0x20000")
        k.op(f"s_sub_u32 s{sT0}, s{sSLOT}, 28")
        k.op(f"s_mul_i32 s{sT0}, s{sT0}, 224")
        k.op(f"s_and_b32 s{sT1}, s{sW}, 1")
        k.op(f"s_lshl_b32 s{sT1}, s{sT1}, 7")
        k.op(f"s_add_u32 s{sT0}, s{sT0}, s{sT1}")
        k.op(f"s_and_b32 s{sT1}, s{sXCD}, 1")
        k.op(f"s_mul_i32 s{sT1}, s{sT1}, 1792")
        k.op(f"s_mov_b32 s{sT2}, {(1 << 32) // 14 + 1}")
        for rnd in range(2):
            k.op(f"v_add_u32 v2, s{sT0}, v0")
            if rnd: k.op("v_add_u32 v2, 64, v2")
            k.op(f"v_mul_hi_u32 v3, v2, s{sT2}")
            k.op("v_mul_u32_u24 v4, 14, v3")
            k.op("v_sub_u32 v4, v2, v4")
            k.op("v_mul_u32_u24 v3, 3584, v3")
            k.op("v_lshl_add_u32 v3, v4, 7, v3")
            k.vm(f"buffer_load_dword a250, v3, s[{rX}:{rX+3}], s{sT1} offen", "pf")
    srd(k, rK, sPK, S * D * 2)
    srd(k, rV, sPV, S * D * 2)
    srd(k, rSK, sPSK, D * 4 * 2)
    k.op("s_mov_b32 exec_hi, 0x00ffffff")
    k.op(f"s_lshl_b32 s{sT0}, s{sI}, 6")
    k.op(f"s_add_u32 s{sT0}, s{sT0}, s{sW}")
    k.op(f"s_sub_u32 s{sT1}, s{sT0}, 3")
    k.op(f"s_mul_i32 s{sT1}, s{sT1}, 896")
    k.op(f"s_mul_i32 s{sT2}, s{sW}, {PP_ROW}")
    k.op(f"s_add_u32 m0, s{sT2}, {PP_K}")
    k.op(f"v_add_u32 v2, s{sT1}, v1")
    for n in range(17):
        if n == 16:
            lab = k.newlabel("Lpk")
            k.op(f"s_cmp_eq_u32 s{sW}, 3")
            k.op(f"s_cbranch_scc1 {lab}")
            k.op(f"buffer_load_dwordx4 v2, s[{rK}:{rK+3}], 0 offen lds")
            k.label(lab)
        else:
            k.vm(f"buffer_load_dwordx4 v2, s[{rK}:{rK+3}], 0 offen lds", "k")
            k.op(f"s_add_u32 m0, m0, {4*PP_ROW}")
            k.op(f"v_add_u32 v2, {4*896}, v2")
    k.op(f"s_mul_i32 s{sT1}, s{sT0}, 896")
    k.op(f"s_add_u32 m0, s{sT2}, {PP_V}")
    k.op("s_nop 0")
    for n in range(16):
        k.vm(f"buffer_load_dwordx4 v1, s[{rV}:{rV+3}], s{sT1} offen lds", "v")
        if n < 15:
            k.op(f"s_add_u32 m0, m0, {4*PP_ROW}")
            k.op(f"s_add_u32 s{sT1}, s{sT1}, {4*896}")
    k.op("s_mov_b32 exec_hi, -1")
    k.op(f"s_mov_b32 s{sMASK}, 0xffff0000")
    k.op("v_and_b32 v2, 3, v0")
    k.op("v_lshrrev_b32 v3, 5, v0")
    k.op("v_lshl_add_u32 v2, v3, 2, v2")
    k.op("v_bfe_u32 v3, v0, 2, 3")
    k.op(f"v_mul_u32_u24 v4, {8*PP_ROW}, v2")
    k.op("v_lshl_add_u32 v4, v3, 2, v4")
    k.op(f"s_lshl_b32 s{sT0}, s{sW}, 5")
    k.op(f"v_add_u32 v4, s{sT0}, v4")
    k.op(f"v_add_u32 v8, {PP_V}, v4")
    k.op("v_lshlrev_b32 v5, 4, v3")
    k.op(f"s_lshl_b32 s{sT0}, s{sW}, 7")
    k.op(f"v_add_u32 v5, s{sT0}, v5")
    k.op("v_lshlrev_b32 v6, 13, v3")
    k.op(f"s_lshl_b32 s{sT0}, s{sW}, 16")
    k.op(f"v_add_u32 v6, s{sT0}, v6")
    k.op("v_lshlrev_b32 v7, 4, v2")
    k.op("v_sub_u32 v6, v6, v7")
    k.op(f"s_lshl_b32 s{sT0}, s{sI}, 7")
    k.op(f"s_sub_u32 s{sT0}, {U_OFF + (2047 - 7) * 2}, s{sT0}")
    k.op(f"v_add_u32 v6, s{sT0}, v6")
    for it in range(7):
        k.vm(f"buffer_load_dwordx4 {vr(100 + 4*it, 4)}, v5, s[{rSK}:{rSK+3}], 0 offen offset:{it*512}", "sk")
    if "ppst" in OPT: k.op("s_memtime s[10:11]")
    k.wait_all()
    if "ppst" in OPT: k.op("s_memtime s[12:13]")
    k.op("s_barrier")
    RAW = [16, 176]
    def reads(it):
        base = RAW[it % 2]; coff = it * 128
        for j in range(11):
            k.lg(f"ds_read_b32 v{base+j}, v4 offset:{PP_K + j*PP_ROW + coff}", f"r{it}")
        for j in range(8):
            k.lg(f"ds_read_b32 v{base+11+j}, v8 offset:{j*PP_ROW + coff}", f"r{it}")
    reads(0)
    for it in range(7):
        KR = RAW[it % 2]; VR = KR + 11
        sk = 100 + 4 * it
        k.op(f"v_lshlrev_b32 v64, 16, v{sk}");   k.op(f"v_lshlrev_b32 v65, 16, v{sk+2}")
        k.op(f"v_and_b32 v66, 0xffff0000, v{sk}"); k.op(f"v_and_b32 v67, 0xffff0000, v{sk+2}")
        k.op(f"v_lshlrev_b32 v68, 16, v{sk+1}"); k.op(f"v_lshlrev_b32 v69, 16, v{sk+3}")
        k.op(f"v_and_b32 v70, 0xffff0000, v{sk+1}"); k.op(f"v_and_b32 v71, 0xffff0000, v{sk+3}")
        k.wait(lg=f"r{it}")
        for j in range(11):
            k.op(f"v_lshlrev_b32 v{40+2*j}, 16, v{KR+j}")
            k.op(f"v_and_b32 v{41+2*j}, s{sMASK}, v{KR+j}")
        for j in range(8):
            k.op(f"v_lshlrev_b32 v{72+2*j}, 16, v{VR+j}")
            k.op(f"v_and_b32 v{73+2*j}, s{sMASK}, v{VR+j}")
        if it + 1 < 7: reads(it + 1)
        for t in range(8):
            k.op(f"v_pk_mul_f32 {vr(130+2*t,2)}, {vr(40+2*(t+3),2)}, {vr(64,2)}")
        for j in range(1, 4):
            for t in range(8):
                o = 130 + 2 * t
                k.op(f"v_pk_fma_f32 {vr(o,2)}, {vr(40+2*(t+3-j),2)}, {vr(64+2*j,2)}, {vr(o,2)}")
        for t in range(8):
            o = 130 + 2 * t
            k.op(f"v_pk_mul_f32 {vr(o,2)}, {vr(o,2)}, {vr(72+2*t,2)}")
        O = 150 + 8 * (it % 2)
        for q in range(4):
            k.op(f"v_cvt_pk_bf16_f32 v{O+q}, v{130+2*(7-2*q)}, v{130+2*(6-2*q)}")
            k.op(f"v_cvt_pk_bf16_f32 v{O+4+q}, v{131+2*(7-2*q)}, v{131+2*(6-2*q)}")
        k.op(f"s_mov_b32 s{sT0}, {it * 64 * 4096}")
        k.op(f"s_mov_b32 s{sT1}, {it * 64 * 4096 + 4096}")
        k.vm(f"buffer_store_dwordx4 {vr(O,4)}, v6, s[{rWS}:{rWS+3}], s{sT0} offen sc1", "ust")
        k.vm(f"buffer_store_dwordx4 {vr(O+4,4)}, v6, s[{rWS}:{rWS+3}], s{sT1} offen sc1", "ust")
    if "ppst" in OPT: k.op("s_memtime s[14:15]")
    k.wait_all()
    if "ppst" in OPT: k.op("s_memtime s[72:73]")
    k.op("s_barrier")
    lab = k.newlabel("Lpsig")
    k.op(f"s_cmp_lg_u32 s{sW}, 0")
    k.op(f"s_cbranch_scc1 {lab}")
    k.op("v_mov_b32 v9, 0")
    spin_until(k, 9, 8, sPDBG, 1)
    k.label(lab)
    cnt_addr(k, 9, idx=UCNT)
    signal(k, 9, 8)
    if "ppst" in OPT:
        k.op("s_waitcnt vmcnt(0) lgkmcnt(0)")
        k.op("s_memtime s[74:75]")
        k.op("s_waitcnt lgkmcnt(0)")
        k.op("s_lshl_b32 s4, s2, 2"); k.op(f"s_add_u32 s4, s4, s{sW}"); k.op("s_lshl_b32 s4, s4, 7"); k.op(f"s_add_u32 s4, s4, {STAMP_OFF}")
        k.op("v_mov_b32 v1, 0"); k.op("s_mov_b64 exec, 1")
        for i, r in enumerate((8, 10, 12, 14, 72, 74)):
            k.op(f"v_mov_b32 v2, s{r}")
            k.op(f"buffer_store_dword v2, v1, s[{rWS}:{rWS+3}], s4 offen offset:{4*i}")
        k.op("s_mov_b64 exec, -1")

def kd(name, vgpr=512, acc=256):
    return f""".section .rodata,"a"
.p2align 6
.amdhsa_kernel {name}
  .amdhsa_next_free_vgpr {vgpr}
  .amdhsa_next_free_sgpr 102
  .amdhsa_accum_offset {acc}
  .amdhsa_group_segment_fixed_size 0
  .amdhsa_kernarg_size 104
  .amdhsa_user_sgpr_count 2
  .amdhsa_user_sgpr_kernarg_segment_ptr 1
  .amdhsa_system_sgpr_workgroup_id_x 1
  .amdhsa_float_denorm_mode_32 3
.end_amdhsa_kernel
"""

def build():
    k = K()
    prologue(k, 32768)
    start_main(k)
    gemm1_loop(k)
    gelu_phase(k)
    wr1 = conv_phase(k)
    gemm2_phase(k, wr1)
    for o in OPT:
        if o.startswith("cyc"):
            n = int(o[3:])
            k.op(f"s_add_u32 s10, s73, {n}")
            k.label("L_untilc")
            k.op("s_memtime s[8:9]")
            k.op("s_waitcnt lgkmcnt(0)")
            k.op("s_sub_u32 s11, s10, s8")
            k.op("s_cmp_gt_i32 s11, 0")
            k.op("s_cbranch_scc1 L_untilc")
        if o.startswith("until"):
            n = int(o[5:])
            k.op(f"s_add_u32 s10, s73, {n}")
            k.label("L_until")
            k.op("s_memrealtime s[8:9]")
            k.op("s_waitcnt lgkmcnt(0)")
            k.op("s_sub_u32 s11, s10, s8")
            k.op("s_cmp_gt_i32 s11, 0")
            k.op("s_cbranch_scc1 L_until")
        if o.startswith("delay"):
            n = int(o[5:])
            k.op("s_memtime s[8:9]")
            k.op("s_waitcnt lgkmcnt(0)")
            k.op(f"s_add_u32 s10, s8, {n}")
            k.label("L_delay")
            k.op("s_memtime s[8:9]")
            k.op("s_waitcnt lgkmcnt(0)")
            k.op("s_sub_u32 s11, s10, s8")
            k.op("s_cmp_gt_i32 s11, 0")
            k.op("s_cbranch_scc1 L_delay")
    stamp_flush(k)
    k.op("s_endpgm")
    k.label("L_pre")
    k.vmq = []; k.lgq = []
    prepass(k)
    k.label("L_exit")
    name = NAME + "_kernel"
    header = open("cdna_kernels/" + NAME + ".s.ref").read().split("; Override launch")[0]
    txt = header + f"; @launch grid=(256,1,1) block=(256,1,1) lds={LDS_TOTAL}\n"
    txt += '.amdgcn_target "amdgcn-amd-amdhsa--gfx950"\n.text\n'
    txt += f".globl {name}\n.p2align 8\n.type {name},@function\n{name}:\n"
    txt += k.text() + "s_endpgm\n" + kd(name)
    return txt

if __name__ == "__main__":
    if len(sys.argv) > 2 and sys.argv[2].startswith("stamps"):
        STAMPS = True
        if "=" in sys.argv[2]: STAMPSET = sys.argv[2].split("=")[1].split(",")
    if len(sys.argv) > 3: OPT.update(sys.argv[3].split(","))
    txt = build()
    if "noalign" not in OPT:
        import align
        txt = align.align(txt)
    check_hazards(txt)
    open(sys.argv[1], "w").write(txt)
    if STAMPS: print("stamps:", stamped)
```

```python
import sys, struct
from asmlib import *

NAME = "recurrent_scan__ssm_conv_h3__geglu_ffn__prompt"
S, D, F = 2048, 448, 1792
OPT = set()

H_OFF = 0
U_OFF = H_OFF + 64 * 112 * 1024
Y_OFF = U_OFF + D * 4096
ST_OFF = Y_OFF + D * 4096
CNT_OFF = ST_OFF + S * 8
WS_USED = CNT_OFF + 32 * 128
HCNT, YCNT, UCNT = 0, 16, 24

sPQ, sPK, sPV, sPSK, sPSSM, sPD, sPBX, sPWG = 16, 18, 20, 22, 24, 26, 28, 30
sPWU, sPWD, sPOUT, sPDBG = 32, 34, 36, 38
sPWS = 40
rX, rW, rWS, rWD, rSSM, rOUT, rD = 44, 48, 52, 56, 60, 64, 68
rK, rV, rSK = 48, 56, 60
sT0, sT1, sT2, sT3 = 4, 5, 6, 7
sW, sI, sJ, sWSO, sWM0, sSLOT, sXCD, sONES, sMASK, sWGM = 80, 81, 82, 83, 84, 85, 86, 87, 88, 89
sTT, sDT, sWDS, sWDM, sCH = 90, 91, 92, 93, 94
sHST = 95
sWDG = 75
sWDM4 = 42
sROT = 43
sHG = 74
sU0, sU1, sU2, sU3 = 96, 97, 98, 99

SLOT_SZ = 34048
XOFF = 17024
XS = SLOT_SZ
XROW = 912
SLOT = [0, SLOT_SZ, 2 * SLOT_SZ, 3 * SLOT_SZ]
LDS_TOTAL = 163840
HC_STRIDE = 4160
HC_CH = 4 * HC_STRIDE
UR_CH = 4608
WDST = 0
WD_KS = 14
WD_WAVE = WD_KS * 2048
def stg_const(s_):
    g = s_ >> 2
    return g * SLOT_SZ + (s_ & 3) * 2048 if g < 3 else 3 * SLOT_SZ + (s_ & 1) * 2048
HC = 3 * SLOT_SZ + 4 * 4096
UR = HC + 2 * HC_CH
XCH = HC
YT = UR + 2 * UR_CH
assert YT + 8320 <= LDS_TOTAL or True
YT = HC + 16384
RED = 0

vX = 16
vACC = 128

STAMPS = False
STAMP_OFF = 12 << 20
STAMPSET = None
POOL = [8, 10, 72, 18, 20, 22, 28, 16, 24, 26, 30, 32, 34, 36, 12, 14]
stamped = []
def stamp(k, name=""):
    if not STAMPS: return
    if STAMPSET is not None and not any((name == p[:-1]) if p.endswith("$") else name.startswith(p) for p in STAMPSET): return
    i = len(stamped)
    assert i < len(POOL)
    stamped.append(name)
    k.op(f"{'s_memrealtime' if 'rtst' in OPT else 's_memtime'} s[{POOL[i]}:{POOL[i]+1}]")
def stamp_flush_dbg(k):
    wg = int([o for o in OPT if o.startswith("dbgwg")][0][5:])
    lab = k.newlabel("Ldbg")
    k.op("s_waitcnt vmcnt(0) lgkmcnt(0)")
    k.op(f"s_cmp_lg_u32 s2, {wg}"); k.op(f"s_cbranch_scc1 {lab}")
    k.op(f"s_cmp_lg_u32 s{sW}, 0"); k.op(f"s_cbranch_scc1 {lab}")
    k.op("s_mov_b64 exec, 1")
    for i in range(1, len(stamped)):
        k.op(f"s_sub_u32 s4, s{POOL[i]}, s{POOL[0]}")
        k.op(f"v_mov_b32 v2, s4")
        k.op(f"v_mov_b32 v1, {4*i}")
        k.op(f"global_store_dword v1, v2, s[{sPDBG}:{sPDBG+1}]")
    k.op("s_mov_b64 exec, -1")
    k.label(lab)

def stamp_leak(k):
    KL = 3
    k.op("s_waitcnt vmcnt(0) lgkmcnt(0)")
    k.op(f"s_sub_u32 s4, s{POOL[1]}, s{POOL[0]}")
    k.op(f"s_mul_i32 s4, s4, {KL}")
    k.op("s_memtime s[6:7]")
    k.op("s_waitcnt lgkmcnt(0)")
    k.op("s_add_u32 s4, s4, s6")
    k.label("L_leak")
    k.op("s_memtime s[6:7]")
    k.op("s_waitcnt lgkmcnt(0)")
    k.op("s_sub_u32 s5, s4, s6")
    k.op("s_cmp_gt_i32 s5, 0")
    k.op("s_cbranch_scc1 L_leak")

def stamp_flush(k):
    if not STAMPS: return
    if "leak" in OPT: return stamp_leak(k)
    if any(o.startswith("dbgwg") for o in OPT): return stamp_flush_dbg(k)
    k.op("s_waitcnt vmcnt(0) lgkmcnt(0)")
    k.op("s_memrealtime s[42:43]")
    k.op("s_waitcnt lgkmcnt(0)")
    k.op("s_mov_b32 s101, s42")
    k.op("s_lshl_b32 s4, s2, 2")
    k.op(f"s_add_u32 s4, s4, s{sW}")
    k.op("s_lshl_b32 s4, s4, 7")
    k.op(f"s_add_u32 s4, s4, {STAMP_OFF}")
    k.op("v_mov_b32 v1, 0")
    k.op("s_mov_b64 exec, 1")
    for i in range(len(stamped)):
        k.op(f"v_mov_b32 v2, s{POOL[i]}")
        k.op(f"buffer_store_dword v2, v1, s[{rWS}:{rWS+3}], s4 offen offset:{4*i}")
    k.op("v_mov_b32 v2, s100")
    k.op(f"buffer_store_dword v2, v1, s[{rWS}:{rWS+3}], s4 offen offset:{4*30}")
    k.op("v_mov_b32 v2, s101")
    k.op(f"buffer_store_dword v2, v1, s[{rWS}:{rWS+3}], s4 offen offset:{4*31}")
    k.op("s_mov_b64 exec, -1")

def f2u(x):
    return struct.unpack("<I", struct.pack("<f", x))[0]

def srd(k, r, ptr, nbytes):
    k.op(f"s_mov_b32 s{r}, s{ptr}")
    k.op(f"s_and_b32 s{r+1}, s{ptr+1}, 0xffff")
    k.op(f"s_mov_b32 s{r+2}, {nbytes}")
    k.op(f"s_mov_b32 s{r+3}, 0x20000")

def emit(k, items):
    for it in items:
        if it[0] == "op": k.op(it[1])
        elif it[0] == "vm": k.vm(it[1], it[2])
        elif it[0] == "lg": k.lg(it[1], it[2])
        elif it[0] == "fn": it[1]()

def capture(fn, *args):
    t = K()
    fn(t, *args)
    assert not t.vmq and not t.lgq
    return [("op", l) for l in t.L]

def interleave(k, main, fill, every, start=0):
    fill = list(fill)
    for n, it in enumerate(main):
        emit(k, [it])
        if fill and n >= start and (n - start) % every == every - 1:
            emit(k, fill.pop(0))
    for g in fill: emit(k, g)

def cnt_addr(k, vreg, idx_sgpr=None, idx=0):
    if idx_sgpr is None:
        k.op(f"v_mov_b32 v{vreg}, {CNT_OFF + idx * 128}")
    else:
        k.op(f"s_lshl_b32 s{sT0}, s{idx_sgpr}, 7")
        k.op(f"s_add_u32 s{sT0}, s{sT0}, {CNT_OFF + idx * 128}")
        k.op(f"v_mov_b32 v{vreg}, s{sT0}")

def spin_until(k, vaddr, vtmp, base, target, cmp="ge"):
    lab, done = k.newlabel("Lspin"), k.newlabel("Lspun")
    if "cntspin" in OPT:
        slot = {32: 4, 14: 5, 1: 7}[target] if vaddr != 9 or target != 32 else 4
        if getattr(k, "spin_tag", None): slot = k.spin_tag
        k.op(f"v_mov_b32 v{vtmp}, 1")
        k.op("s_mov_b64 exec, 1")
        k.op(f"v_mov_b32 v190, {4*slot}")
        k.op(f"global_atomic_add v190, v{vtmp}, s[{sPDBG}:{sPDBG+1}]")
        k.op("s_mov_b64 exec, -1")
    k.op(f"s_mov_b32 s{sT1}, 0x40000")
    k.label(lab)
    k.op(f"global_load_dword v{vtmp}, v{vaddr}, s[{base}:{base+1}] sc1")
    k.op("s_waitcnt vmcnt(0)")
    k.op(f"v_readfirstlane_b32 s{sT2}, v{vtmp}")
    k.op(f"s_sub_u32 s{sT1}, s{sT1}, 1")
    k.op(f"s_cmp_ge_u32 s{sT2}, {target}")
    k.op(f"s_cbranch_scc1 {done}")
    k.op("s_sleep %d" % int(([o for o in OPT if o.startswith("slp")] or ["slp1"])[0][3:]))
    k.op(f"s_cmp_lg_u32 s{sT1}, 0")
    k.op(f"s_cbranch_scc1 {lab}")
    k.label(done)
    k.vmq = []

def check_or_spin(k, vval, vaddr, base, target):
    done = k.newlabel("Lok")
    k.op(f"v_readfirstlane_b32 s{sT2}, v{vval}")
    k.op(f"s_cmp_ge_u32 s{sT2}, {target}")
    k.op(f"s_cbranch_scc1 {done}")
    q = list(k.vmq)
    spin_until(k, vaddr, vval, base, target)
    k.vmq = q
    k.label(done)

def signal(k, vaddr, vone):
    lab = k.newlabel("Lsig")
    k.op(f"s_cmp_lg_u32 s{sW}, 0")
    k.op(f"s_cbranch_scc1 {lab}")
    k.op(f"v_mov_b32 v{vone}, 1")
    k.op("s_mov_b64 exec, 1")
    k.op(f"global_atomic_add v{vaddr}, v{vone}, s[{sPWS}:{sPWS+1}] sc1")
    k.op("s_mov_b64 exec, -1")
    k.label(lab)

def prologue(k, codebytes):
    if any(o.startswith("cyc") for o in OPT):
        k.op("s_memtime s[72:73]")
        k.op("s_waitcnt lgkmcnt(0)")
        k.op("s_mov_b32 s73, s72")
    if any(o.startswith("until") for o in OPT):
        k.op("s_memrealtime s[72:73]")
        k.op("s_waitcnt lgkmcnt(0)")
        k.op("s_mov_b32 s73, s72")
    k.op("s_getpc_b64 s[12:13]")
    k.op("s_load_dwordx16 s[16:31], s[0:1], 0")
    k.op("s_load_dwordx8 s[32:39], s[0:1], 64")
    k.op("s_load_dwordx2 s[40:41], s[0:1], 96")
    k.op("v_lshrrev_b32 v1, 6, v0")
    k.op("v_and_b32 v0, 63, v0")
    k.op("s_cmp_ge_u32 s2, 256")
    k.op(f"v_readfirstlane_b32 s{sW}, v1")
    k.op("s_cbranch_scc1 L_exit")
    if "nocodepf" not in OPT:
        k.op("s_lshr_b32 s14, s2, 3")
        k.op("s_lshl_b32 s14, s14, 2")
        k.op(f"s_add_u32 s14, s14, s{sW}")
        k.op("s_mul_i32 s14, s14, 384")
        k.op("s_add_u32 s12, s12, s14")
        k.op("s_addc_u32 s13, s13, 0")
        k.op("v_lshlrev_b32 v2, 7, v0")
        k.op("s_mov_b64 exec, 7")
        k.vm("global_load_dword a250, v2, s[12:13]", "code")
        k.op("s_mov_b64 exec, -1")
        assert codebytes <= 128 * 384
    if STAMPS and not any(o.startswith("dbgwg") for o in OPT) and "leak" not in OPT:
        k.op("s_memrealtime s[42:43]")
        k.op("s_waitcnt lgkmcnt(0)")
        k.op("s_mov_b32 s100, s42")
    k.op(f"s_and_b32 s{sXCD}, s2, 7")
    k.op(f"s_lshr_b32 s{sSLOT}, s2, 3")
    k.op(f"s_cmp_ge_u32 s{sSLOT}, 28")
    k.op("s_cbranch_scc1 L_pre")

def wdma(c, e):
    out = []
    if e % 4 == 0:
        out.append(("op", f"s_add_u32 m0, s{sWM0}, {SLOT[c % 4] + e * 1056}"))
    out.append(("op", f"s_add_u32 s{sT3}, s{sWSO}, {(64 * c + e) * 3584 - (e % 4) * 1056}"))
    out.append(("vm", f"buffer_load_dwordx4 v2, s[{rW}:{rW+3}], s{sT3} offen offset:{(e % 4) * 1056} lds", f"w{c}"))
    return out

def start_main(k):
    k.op(f"s_mul_i32 s{sT0}, s{sSLOT}, 37")
    k.op(f"s_lshr_b32 s{sT0}, s{sT0}, 8")
    k.op(f"s_mul_i32 s{sT1}, s{sT0}, 7")
    k.op(f"s_sub_u32 s{sDT}, s{sSLOT}, s{sT1}")
    k.op(f"s_lshr_b32 s{sT2}, s{sXCD}, 1")
    k.op(f"s_lshl_b32 s{sT2}, s{sT2}, 2")
    k.op(f"s_add_u32 s{sI}, s{sT2}, s{sT0}")
    k.op(f"s_lshl_b32 s{sTT}, s{sXCD}, 2")
    k.op(f"s_add_u32 s{sTT}, s{sTT}, s{sT0}")
    k.op("v_lshlrev_b32 v1, 4, v0")
    k.op(f"s_lshl_b32 s{sU0}, s{sI}, 2")
    k.op(f"s_add_u32 s{sU0}, s{sU0}, s{sW}")
    k.op(f"s_mul_i32 s{sU0}, s{sU0}, {32*896}")
    k.op(f"s_mul_i32 s{sU1}, s{sW}, {32*XROW}")
    k.op(f"s_add_u32 s{sU1}, s{sU1}, {XS}")
    k.op(f"s_mul_i32 s{sU2}, s{sDT}, 9")
    k.op(f"s_lshr_b32 s{sU2}, s{sU2}, 2")
    k.op("v_lshrrev_b32 v242, 5, v0")
    k.op("v_mul_u32_u24 v240, 896, v242")
    k.op("v_lshlrev_b32 v242, 3, v242")
    k.op("v_and_b32 v243, 31, v0")
    k.op("v_xor_b32 v243, v243, v242")
    k.op("v_lshl_add_u32 v240, v243, 4, v240")
    k.op("v_cmp_le_u32 vcc, 24, v0")
    k.op(f"v_mov_b32 v242, {896 - 24*16}")
    k.op("v_lshlrev_b32 v241, 4, v0")
    k.op("v_cndmask_b32 v242, 0, v242, vcc")
    k.op("v_add_u32 v241, v241, v242")
    k.op(f"s_and_b32 s{sT0}, s{sXCD}, 1")
    k.op(f"s_mul_i32 s{sJ}, s{sT0}, 7")
    k.op(f"s_add_u32 s{sJ}, s{sJ}, s{sDT}")
    k.op("v_lshrrev_b32 v6, 4, v0")
    k.op("v_lshlrev_b32 v6, 6, v6")
    k.op("v_bfe_u32 v7, v0, 1, 3")
    k.op("v_add_u32 v6, v6, v7")
    k.op("v_mul_u32_u24 v6, 3584, v6")
    k.op("v_and_b32 v7, 1, v0")
    k.op("v_lshl_add_u32 v5, v7, 7, v6")
    k.op(f"s_and_b32 s{sT0}, s{sI}, 3")
    k.op(f"s_lshl_b32 s{sT0}, s{sT0}, 1")
    k.op(f"s_lshr_b32 s{sWDG}, s{sW}, 1")
    k.op(f"s_add_u32 s{sT0}, s{sT0}, s{sWDG}")
    k.op(f"s_mul_i32 s{sT0}, s{sT0}, {8*3584}")
    k.op(f"s_lshl_b32 s{sWDG}, s{sJ}, 8")
    k.op(f"s_add_u32 s{sWDG}, s{sWDG}, s{sT0}")
    stamp(k, "b_pre")
    k.op("s_waitcnt lgkmcnt(0)")
    if "tlb" in OPT:
        for i, p in enumerate((sPWG, sPWU, sPWD, sPSSM, sPOUT, sPD)):
            k.op(f"s_load_dword s{96 if False else 100 if not STAMPS else 15}, s[{p}:{p+1}], 0") if False else None
        for p in (sPWG, sPWU, sPWD, sPSSM, sPOUT):
            k.op(f"s_load_dword s15, s[{p}:{p+1}], 0x0")
        for off in (H_OFF, 2 << 20, 4 << 20, 6 << 20, U_OFF + (1 << 20), Y_OFF + (1 << 20)):
            k.op(f"s_mov_b32 s14, {off}")
            k.op(f"s_load_dword s15, s[{sPWS}:{sPWS+1}], s14")
    srd(k, rX, sPQ, S * D * 2)
    k.op(f"s_bitcmp1_b32 s{sW}, 0")
    k.op(f"s_cselect_b32 s{rW}, s{sPWU}, s{sPWG}")
    k.op(f"s_cselect_b32 s{rW+1}, s{sPWU+1}, s{sPWG+1}")
    k.op(f"s_and_b32 s{rW+1}, s{rW+1}, 0xffff")
    k.op(f"s_mov_b32 s{rW+2}, {D*F*2}")
    k.op(f"s_mov_b32 s{rW+3}, 0x20000")
    stamp(k, "start")
    if "earlypf" in OPT:
        k.op("s_mov_b32 exec_hi, 0")
        k.vm(f"buffer_load_dword a250, v5, s[{rW}:{rW+3}], s{sWDG} offen", "pf")
    def xdma(part):
        out = [("op", f"s_mul_i32 s{sT1}, s{sU2}, {1040 if part == 0 else 784}"),
               ("op", f"s_mul_i32 s{sT2}, s{sU2}, 1792"),
               ("op", f"s_add_u32 m0, s{sT1}, s{sU1 if part == 0 else sU3}"),
               ("op", f"s_add_u32 s{sT2}, s{sT2}, s{sU0}"),
               ("op", f"s_add_u32 s{sU2}, s{sU2}, 1"),
               ("vm", f"buffer_load_dwordx4 v{240 + part}, s[{rX}:{rX+3}], s{sT2} offen {'offset:0 ' if False else ''}lds", f"x{part}"),
               ("op", f"s_and_b32 s{sU2}, s{sU2}, 15")]
        return out
    k.op(f"s_add_u32 s{sU3}, s{sU1}, 16640")
    k.op(f"s_mov_b32 s{sT0}, 16")
    lx = k.newlabel("Lxd")
    k.label(lx)
    for it in xdma(0): k.op(it[1])
    k.op(f"s_sub_u32 s{sT0}, s{sT0}, 1")
    k.op(f"s_cmp_lg_u32 s{sT0}, 0")
    k.op(f"s_cbranch_scc1 {lx}")
    for n in range(16): k.vmq.append("x0")
    k.op(f"s_add_u32 s{sU0}, s{sU0}, 512")
    k.op("s_mov_b32 exec_hi, 0xffff")
    for n in range(8): emit(k, xdma(1))
    k.op("s_mov_b32 exec_hi, -1")
    stamp(k, "a_xiss")
    k.op("v_lshrrev_b32 v10, 4, v0")
    k.op(f"v_mul_u32_u24 v2, {16*3584}, v10")
    k.op("v_and_b32 v11, 15, v0")
    k.op("v_lshl_add_u32 v2, v11, 4, v2")
    k.op(f"s_lshr_b32 s{sT0}, s{sW}, 1")
    k.op(f"s_lshl_b32 s{sT0}, s{sT0}, 3")
    k.op(f"s_mul_i32 s{sWSO}, s{sT0}, 3584")
    k.op(f"s_lshl_b32 s{sT1}, s{sJ}, 8")
    k.op(f"s_add_u32 s{sWSO}, s{sWSO}, s{sT1}")
    k.op(f"s_mul_i32 s{sWM0}, s{sT0}, 1056")
    k.op(f"s_and_b32 s{sT1}, s{sW}, 1")
    k.op(f"s_mul_i32 s{sT1}, s{sT1}, {XOFF}")
    k.op(f"s_add_u32 s{sWM0}, s{sWM0}, s{sT1}")
    stamp(k, "a_issued")
    k.op(f"s_mul_i32 s{sWGM}, s{sXCD}, 28")
    k.op(f"s_add_u32 s{sWGM}, s{sWGM}, s{sSLOT}")
    srd(k, rWS, sPWS, (16 << 20) if (STAMPS and 'leak' not in OPT) else WS_USED)
    srd(k, rWD, sPWD, F * D * 2)
    srd(k, rSSM, sPSSM, D * S * 2)
    srd(k, rOUT, sPOUT, S * D * 2)
    srd(k, rD, sPD, D * 2)
    k.op("v_and_b32 v11, 1, v10")
    k.op(f"v_mul_u32_u24 v3, {XOFF}, v11")
    k.op("v_lshrrev_b32 v11, 5, v0")
    k.op("v_lshlrev_b32 v12, 3, v11")
    k.op("v_bfe_u32 v13, v0, 2, 2")
    k.op("v_add_u32 v12, v12, v13")
    k.op("v_mul_u32_u24 v12, 1056, v12")
    k.op("v_add_u32 v3, v3, v12")
    k.op("v_and_b32 v13, 3, v0")
    k.op("v_lshl_add_u32 v3, v13, 3, v3")
    k.op(f"v_add_u32 v14, {2*SLOT_SZ}, v3")
    k.op("v_and_b32 v13, 31, v0")
    k.op("v_lshrrev_b32 v12, 1, v13")
    k.op("v_and_b32 v13, 1, v13")
    k.op("v_mul_u32_u24 v242, 1040, v12")
    k.op("v_lshl_add_u32 v242, v11, 4, v242")
    k.op("v_lshl_add_u32 v242, v13, 9, v242")
    k.op(f"v_add_u32 v242, s{sU1}, v242")
    k.op("v_lshlrev_b32 v15, 7, v13")
    k.op("v_sub_u32 v243, v242, v15")
    k.op("v_add_u32 v242, v242, v15")
    k.op("v_mul_u32_u24 v244, 784, v12")
    k.op("v_lshl_add_u32 v244, v11, 4, v244")
    k.op("v_mul_u32_u24 v13, 384, v13")
    k.op("v_add_u32 v244, v244, v13")
    k.op(f"v_add_u32 v244, s{sU3}, v244")
    k.op(f"s_mov_b32 s{sONES}, 0x3f803f80")
    k.op(f"s_mov_b32 s{sMASK}, 0xffff0000")
    for a in range(8): k.op(f"v_mov_b32 v{6+a}, 0")
    def st(n):
        return [("op", f"v_dot2_f32_bf16 v{6 + n % 4}, v{vX+n}, s{sONES}, v{6 + n % 4}"),
                ("op", f"v_dot2_f32_bf16 v{10 + n % 4}, v{vX+n}, v{vX+n}, v{10 + n % 4}")]
    def xrd(ks):
        if ks < 16: return ("lg", f"ds_read_b128 {vr(vX + 4 * ks, 4)}, v{242 + ((ks >> 2) & 1)} offset:{32 * ks}", f"x{ks}r")
        return ("lg", f"ds_read_b128 {vr(vX + 4 * ks, 4)}, v244 offset:{32 * (ks - 16)}", f"x{ks}r")
    k.wait(vm="x0")
    stamp(k, "a_xarr")
    for ks in range(16): emit(k, [xrd(ks)])
    rest = []
    for n in range(8):
        g = xdma(1)
        rest.append([("op", "s_mov_b32 exec_hi, 0xffff")] + g + [("op", "s_mov_b32 exec_hi, -1")])
    rest += [wdma(0, e) for e in range(8)]
    for ks in range(16):
        k.wait(lg=f"x{ks}r")
        for q in range(4): emit(k, st(4 * ks + q))
        emit(k, rest[ks])
    stamp(k, "a_p1")
    k.wait(vm="x1")
    for ks in range(16, 28): emit(k, [xrd(ks)])
    if "nopf" not in OPT:
        k.op(f"s_add_u32 s{sWDG}, s{sWDG}, {64*3584}")
        if "nopf1" not in OPT: k.vm(f"buffer_load_dword a250, v5, s[{rW}:{rW+3}], s{sWDG} offen", "pf")
    k.wait(lg="x27r")
    k.op("v_mov_b32 v15, v5")
    k.op("s_barrier")
    stamp(k, "a_xreg")
    main = []
    for n in range(64, 112): main += st(n)
    fill = [wdma(1, e) for e in range(8)] if "w1early" in OPT else []
    if "w1late" in OPT and "nopf" not in OPT:
        fill.append([("op", f"s_add_u32 s{sWDG}, s{sWDG}, {128*3584}"),
                     ("vm", f"buffer_load_dword a250, v15, s[{rW}:{rW+3}], s{sWDG} offen", "pf")])
    if "nopf" not in OPT:
        fill.append([("op", f"s_add_u32 s{sWDG}, s{sWDG}, {256*3584}"), ("op", "s_mov_b32 exec_hi, 0"),
                        ("vm", f"buffer_load_dword a250, v15, s[{rW}:{rW+3}], s{sWDG} offen", "pf"), ("op", "s_mov_b64 exec, -1")])
    if "w1late" in OPT:
        emit(k, main)
        late = fill
    else:
        interleave(k, main, fill, 10)
        late = []
    stamp(k, "a_dot")
    k.op("s_nop 2")
    k.op("v_add_f32 v6, v6, v7"); k.op("v_add_f32 v8, v8, v9")
    k.op("v_add_f32 v10, v10, v11"); k.op("v_add_f32 v12, v12, v13")
    k.op("v_add_f32 v6, v6, v8"); k.op("v_add_f32 v10, v10, v12")
    k.op("v_mov_b32 v7, v6"); k.op("v_mov_b32 v11, v10")
    k.op("s_nop 1")
    k.op("v_permlane32_swap_b32 v6, v7"); k.op("v_permlane32_swap_b32 v10, v11")
    k.op("s_nop 1")
    k.op("v_add_f32 v6, v6, v7"); k.op("v_add_f32 v10, v10, v11")
    k.op(f"v_mul_f32 v6, {hex(f2u(1.0/448))}, v6")
    k.op(f"v_mul_f32 v10, {hex(f2u(1.0/448))}, v10")
    k.op("v_fma_f32 v10, -v6, v6, v10")
    k.op("v_max_f32 v10, 0, v10")
    k.op("v_cvt_pk_bf16_f32 v7, v6, v10")
    k.op("v_lshlrev_b32 v6, 16, v7")
    k.op(f"v_and_b32 v10, s{sMASK}, v7")
    k.op(f"v_add_f32 v10, {hex(f2u(1e-5))}, v10")
    k.op("v_cvt_pk_bf16_f32 v10, v10, v10")
    k.op("v_lshlrev_b32 v10, 16, v10")
    k.op("v_sqrt_f32 v10, v10")
    k.op("s_nop 0")
    k.op("v_cvt_pk_bf16_f32 v10, v10, v10")
    k.op("v_lshlrev_b32 v10, 16, v10")
    k.op("v_rcp_f32 v8, v10")
    k.op("v_sub_f32 v4, 0, v6")
    LATE[:] = late
    k.op("v_mul_f32 v9, v4, v8")
    lab = k.newlabel("Lnost")
    k.op(f"s_cmp_lg_u32 s{sJ}, 0")
    k.op(f"s_cbranch_scc1 {lab}")
    k.op(f"s_lshl_b32 s{sT0}, s{sI}, 2")
    k.op(f"s_add_u32 s{sT0}, s{sT0}, s{sW}")
    k.op(f"s_lshl_b32 s{sT0}, s{sT0}, 8")
    k.op(f"s_add_u32 s{sT0}, s{sT0}, {ST_OFF}")
    k.op("v_lshlrev_b32 v6, 3, v0")
    k.op("s_mov_b32 exec_hi, 0")
    k.op(f"buffer_store_dwordx2 v[8:9], v6, s[{rWS}:{rWS+3}], s{sT0} offen sc1")
    k.op("s_mov_b32 exec_hi, -1")
    k.label(lab)
    C1 = -2.0 * 0.7978845608028654 * 1.4426950408889634
    C2 = C1 * 0.044715
    k.op(f"v_mul_f32 v6, {hex(f2u(C1))}, v8")
    k.op("v_mul_f32 v7, v8, v8")
    k.op("v_mul_f32 v11, v10, v10")
    k.op("v_mul_f32 v7, v7, v8")
    k.op("v_accvgpr_write_b32 a144, v6")
    k.op(f"v_mul_f32 v7, {hex(f2u(C2))}, v7")
    k.op("v_accvgpr_write_b32 a146, v11")
    k.op("v_accvgpr_write_b32 a145, v7")

def norm(n, tp):
    t = 6 + 2 * tp
    return [("op", f"v_lshlrev_b32 v{t}, 16, v{vX+n}"),
            ("op", f"v_and_b32 v{t+1}, s{sMASK}, v{vX+n}"),
            ("op", f"v_add_f32 v{t}, v{t}, v4"),
            ("op", f"v_add_f32 v{t+1}, v{t+1}, v4"),
            ("op", f"v_cvt_pk_bf16_f32 v{vX+n}, v{t}, v{t+1}")]
def norm_step(ks):
    a = [norm(4 * ks + q, q) for q in range(4)]
    out = []
    for s in range(5):
        for q in range(4): out.append(a[q][s])
    return out

def hc_dma(q):
    rr, qq = divmod(q, 4)
    out = []
    if qq == 0:
        out.append(("op", f"s_add_u32 m0, s{sU0}, {rr * HC_STRIDE}"))
        out.append(("op", f"s_add_u32 s{sU2}, s{sU1}, {rr * 2}"))
    out.append(("vm", f"buffer_load_dwordx4 v1, s[{rSSM}:{rSSM+3}], s{sU2} offen offset:{qq*1024} lds", "hc"))
    return out

LATE = []
WD0 = []
def gemm1_loop(k):
    emit(k, norm_step(0))
    for g in LATE: emit(k, g)
    k.op(f"s_lshr_b32 s{sT0}, s{sW}, 1")
    k.op(f"s_lshl_b32 s{sCH}, s{sWGM}, 1")
    k.op(f"s_add_u32 s{sCH}, s{sCH}, s{sT0}")
    k.op(f"s_and_b32 s{sT1}, s{sW}, 1")
    k.op(f"s_lshl_b32 s{sT1}, s{sT1}, 1")
    k.op(f"s_mul_i32 s{sU0}, s{sT0}, {HC_CH}")
    k.op(f"s_mul_i32 s{sT3}, s{sT1}, {HC_STRIDE}")
    k.op(f"s_add_u32 s{sU0}, s{sU0}, s{sT3}")
    k.op(f"s_add_u32 s{sU0}, s{sU0}, {HC + 32}")
    k.op(f"s_lshl_b32 s{sU1}, s{sCH}, 12")
    k.op(f"s_lshl_b32 s{sT1}, s{sT1}, 1")
    k.op(f"s_add_u32 s{sU1}, s{sU1}, s{sT1}")
    k.op(f"s_add_u32 s{sU1}, s{sU1}, 2")
    stamp(k, "a_norm0")
    k.wait(vm="w0")
    stamp(k, "a_w0")
    k.op("s_barrier")
    stamp(k, "a_stats")
    NF = 8; DIST = 7; NM = 224
    def rd(n):
        ks, mt = divmod(n, 8)
        c, kk = divmod(ks, 4)
        sl = c % 4
        base = "v3" if sl < 2 else "v14"
        off = (SLOT_SZ if sl % 2 else 0) + kk * 256 + mt * 32
        f = 4 * (n % NF)
        return [("lg", f"ds_read_b64_tr_b16 {ar(f, 2)}, {base} offset:{off}", f"f{n}"),
                ("lg", f"ds_read_b64_tr_b16 {ar(f + 2, 2)}, {base} offset:{off + 4 * 1056}", f"f{n}")]
    for n in range(DIST): emit(k, rd(n))
    extra = {}
    k.op(f"s_lshl_b32 s{sT0}, s{sSLOT}, 2")
    k.op(f"s_add_u32 s{sT0}, s{sT0}, s{sW}")
    k.op(f"s_mul_i32 s{sU3}, s{sT0}, {112*128}")
    k.op("v_lshlrev_b32 v15, 7, v0")
    def wd_pf(piece):
        return [("op", "s_mov_b64 exec, 0xffff"),
                ("vm", f"buffer_load_dword a250, v15, s[{rWD}:{rWD+3}], s{sU3} offen offset:{piece*2048}", "pf"),
                ("op", "s_mov_b64 exec, -1")]
    if "nopf" not in OPT:
        P0, PSTEP = (9, 1)
        for p in range(7):
            if p < 2: extra[P0 + PSTEP * p] = wd_pf(p)
            else:
                extra[P0 + PSTEP * p] = [("op", f"s_add_u32 s{sU3}, s{sU3}, 2048"), ("op", "s_mov_b64 exec, 0xffff"),
                    ("vm", f"buffer_load_dword a250, v15, s[{rWD}:{rWD+3}], s{sU3} offen offset:2048", "pf"), ("op", "s_mov_b64 exec, -1")]
        k.op(f"s_lshl_b32 s{sHST}, s{sWGM}, 13")
        k.op(f"s_lshl_b32 s{sT0}, s{sW}, 11")
        k.op(f"s_add_u32 s{sHST}, s{sHST}, s{sT0}")
        extra[8] = [("op", "s_mov_b64 exec, 0xffff"),
                    ("vm", f"buffer_load_dword a250, v15, s[{rSSM}:{rSSM+3}], s{sHST} offen", "pf"), ("op", "s_mov_b64 exec, -1")]
    extra[24] = [("op", "s_mov_b64 exec, 1"),
                 ("vm", f"global_load_dword a40, v15, s[{sPDBG}:{sPDBG+1}] sc1", "init"),
                 ("op", "s_mov_b64 exec, -1")]
    tailfill = capture(g2_setup2) + gelu_setup_items()
    setup1 = capture(g2_setup1)
    WD0[:] = wd_dma_groups(0, WD_KS, "wd0", 0)
    def bigs(ks):
        c, kk = divmod(ks, 4)
        out = []
        if "x_now" not in OPT:
            if "w1early" in OPT:
                if c == 0: out += [wdma(2 + kk // 2, 4 * (kk % 2) + i) for i in range(4)]
                elif c + 3 < 7: out += [wdma(c + 3, 2 * kk + i) for i in range(2)]
            else:
                if ks < 8: out += [wdma(1 + ks // 2, 4 * (ks % 2) + i) for i in range(4)]
                elif c in (2, 3): out += [wdma(c + 3, 2 * kk + i) for i in range(2)]
        if c == 4 and "x_nohc" not in OPT: out += [hc_dma(2 * kk + i) for i in range(2)]
        if c in (5, 6) and 'wdgelu' not in OPT: out += WD0[(c - 5) * 8 + 2 * kk: (c - 5) * 8 + 2 * kk + 2]
        if ks in extra and ("x_noex" not in OPT or ks == 24): out.append(extra[ks])
        return out
    VAR = [o for o in OPT if o.startswith("sch")]
    VAR = VAR[0] if VAR else "sch1"
    POS = {"sch0": {0: [], 1: [7], 2: [6, 7], 3: [5, 6, 7], 4: [3, 5, 6, 7]},
           "sch1": {0: [], 1: [7], 2: [3, 7], 3: [2, 5, 7], 4: [1, 3, 5, 7]},
           "sch2": {0: [], 1: [6], 2: [2, 6], 3: [1, 4, 6], 4: [0, 2, 4, 6]},
           "sch3": {0: [], 1: [7], 2: [3, 7], 3: [2, 5, 7], 4: [1, 3, 5, 7]}}[VAR]
    pending_reads = []
    for ks in range(28):
        c, kk = divmod(ks, 4)
        bg = bigs(ks)
        pos = POS[len(bg)]
        nrm = norm_step(ks + 1) if (ks + 1 < 28 and "x_nonorm" not in OPT) else []
        if ks == 27: nrm = list(tailfill)
        if ks in (16, 17, 18, 19):
            i0 = (ks - 16) * 6
            nrm = nrm + setup1[i0: i0 + 6 if ks < 19 else len(setup1)]
        if VAR == "sch0":
            cut = [0, 3, 6, 9, 12, 15, 18, 20, 20] if ks < 27 else [(len(nrm) * i) // 8 for i in range(9)]
            share = {g: nrm[cut[g]:cut[g + 1]] for g in range(8)}
        else:
            wts = {g: (0 if (g in pos or (g == 7 and ks < 27)) else 1) for g in range(8)}
            if VAR == "sch3":
                wts = {g: (1 if g in pos else 0 if (g == 7 and ks < 27) else 3) for g in range(8)}
            tot = sum(wts.values()); acc_ = 0; done = 0; share = {}
            for g in range(8):
                acc_ += wts[g]
                upto = (len(nrm) * acc_ + tot - 1) // tot
                share[g] = nrm[done:upto]; done = upto
        for mt in range(8):
            n = 8 * ks + mt
            if n % 32 == 0: stamp(k, f"g_c{n//32}")
            if n % 4 == 0:
                k.wait(lg=[f"f{n+i}" for i in range(4)])
            f = 4 * (n % NF)
            acc = vr(vACC + 16 * mt, 16)
            cin = "0" if ks == 0 else acc
            if "x_m16" in OPT:
                for hh_ in range(2):
                    a4 = vr(vACC + 16 * mt + 4 * hh_ + 8 * (ks % 2), 4)
                    k.op(f"v_mfma_f32_16x16x32_bf16 {a4}, {ar(f, 4)}, {vr(vX + 4 * ks, 4)}, {a4}")
            else:
                k.op(f"v_mfma_f32_32x32x16_bf16 {acc}, {ar(f, 4)}, {vr(vX + 4 * ks, 4)}, {cin}")
            if "x_halfrd" in OPT and n % 2 == 1:
                emit(k, share[mt])
                if mt in pos: emit(k, bg[pos.index(mt)])
                nn = n + DIST
                if nn < NM and nn % 32 == 0:
                    k.wait(vm=f"w{nn // 32}"); k.op("s_barrier")
                continue
            nn = n + DIST
            if nn < NM:
                if nn % 32 == 0:
                    k.wait(vm=f"w{nn // 32}")
                    if "x_nobar" not in OPT: k.op("s_barrier")
                emit(k, rd(nn))
            emit(k, share[mt])
            if mt in pos: emit(k, bg[pos.index(mt)])
    assert not pending_reads
    stamp(k, "g_end")

def g2_setup1(k):
    k.op(f"s_and_b32 s{sT0}, s{sTT}, 3")
    k.op(f"s_lshl_b32 s{sT0}, s{sT0}, 1")
    k.op(f"s_add_u32 s{sROT}, s{sT0}, s{sDT}")
    k.op(f"s_sub_u32 s{sT0}, s{sROT}, 7")
    k.op(f"s_min_u32 s{sROT}, s{sROT}, s{sT0}")
    k.op("v_lshrrev_b32 v16, 3, v0")
    k.op("v_mul_u32_u24 v2, 896, v16")
    k.op("v_bfe_u32 v16, v0, 4, 1")
    k.op("v_lshlrev_b32 v16, 2, v16")
    k.op("v_and_b32 v17, 7, v0")
    k.op("v_xor_b32 v16, v16, v17")
    k.op("v_lshl_add_u32 v2, v16, 4, v2")
    k.op(f"s_mul_i32 s{sWDS}, s{sW}, {16*28*896}")
    k.op(f"s_lshl_b32 s{sT0}, s{sDT}, 7")
    k.op(f"s_add_u32 s{sWDS}, s{sWDS}, s{sT0}")
    k.op(f"s_sub_u32 s{sWDS}, s{sWDS}, 4096")
    k.op(f"s_lshl_b32 s{sWDM}, s{sW}, 13")
    k.op(f"s_lshl_b32 s{sWDM4}, s{sW}, 12")
def g2_setup2(k):
    k.op("v_lshrrev_b32 v5, 5, v0")
    k.op("v_bfe_u32 v6, v0, 2, 2")
    k.op("v_lshl_add_u32 v5, v5, 2, v6")
    k.op("v_lshlrev_b32 v5, 7, v5")
    k.op("v_bfe_u32 v7, v0, 4, 1")
    k.op("v_lshl_add_u32 v5, v7, 5, v5")
    k.op("v_and_b32 v7, 3, v0")
    k.op("v_lshl_add_u32 v5, v7, 3, v5")
    k.op(f"v_add_u32 v5, s{sWDM}, v5")
    k.op("v_bfe_u32 v6, v0, 3, 1")
    k.op("v_lshlrev_b32 v6, 6, v6")
    k.op("v_add_u32 v3, v5, v6")
    k.op("v_xor_b32 v6, 64, v6")
    k.op("v_add_u32 v4, v5, v6")
def gelu_setup_items():
    C1 = -2.0 * 0.7978845608028654 * 1.4426950408889634
    C2 = C1 * 0.044715
    it = []
    op = lambda t: it.append(("op", t))
    op("v_lshrrev_b32 v10, 4, v0")
    op("v_and_b32 v11, 15, v0")
    op("v_add_u32 v12, v10, v11")
    op("v_subrev_u32 v12, 15, v12")
    op("v_lshlrev_b32 v12, 1, v12")
    op("v_cmp_gt_i32 vcc, 0, v12")
    op("v_mov_b32 v13, 0x7fffffff")
    op(f"s_lshl_b32 s{sT1}, s{sCH}, 12")
    op("v_cndmask_b32 v12, v12, v13, vcc")
    op("v_mov_b32 v13, 0")
    it.append(("vm", f"buffer_load_ushort v12, v12, s[{rSSM}:{rSSM+3}], s{sT1} offen", "hf"))
    op(f"s_lshl_b32 s{sT1}, s{sCH}, 1")
    it.append(("vm", f"buffer_load_ushort v15, v13, s[{rD}:{rD+3}], s{sT1} offen", "dv"))
    op(f"v_mul_u32_u24 v10, {HC_STRIDE}, v10")
    op("v_lshl_add_u32 v10, v11, 1, v10")
    op(f"s_lshr_b32 s{sT0}, s{sW}, 1")
    op(f"s_mul_i32 s{sT2}, s{sT0}, {HC_CH}")
    op(f"s_add_u32 s{sT2}, s{sT2}, {HC}")
    op(f"v_add_u32 v10, s{sT2}, v10")
    op(f"s_mul_i32 s{sT2}, s{sT0}, {UR_CH}")
    op(f"s_add_u32 s{sT2}, s{sT2}, {UR + 4096}")
    op(f"v_add_u32 v11, s{sT2}, v1")
    op("v_mov_b32 v20, 0"); op("v_mov_b32 v21, 0"); op("v_mov_b32 v22, 0"); op("v_mov_b32 v23, 0")
    op("v_accvgpr_read_b32 v16, a144")
    op("v_accvgpr_read_b32 v17, a145")
    op("v_accvgpr_read_b32 v18, a146")
    op(f"s_lshl_b32 s{sT0}, s{sI}, 2")
    op(f"s_add_u32 s{sT0}, s{sT0}, s{sW}")
    op(f"s_mul_i32 s{sHST}, s{sT0}, {112*1024}")
    op(f"s_lshl_b32 s{sT1}, s{sJ}, 13")
    op(f"s_add_u32 s{sHST}, s{sHST}, s{sT1}")
    return it

def g2_setup3(k):
    k.op(f"v_add_u32 v176, {2*SLOT_SZ}, v3")
    k.op(f"v_add_u32 v177, {2*SLOT_SZ}, v4")
    k.op(f"s_sub_u32 s{sT0}, {3*SLOT_SZ}, s{sWDM4}")
    k.op(f"v_add_u32 v178, s{sT0}, v3")
    k.op(f"v_add_u32 v179, s{sT0}, v4")

def wd_group_base(g):
    return [("op", f"s_add_u32 s{sT3}, s{sROT}, {g}"),
            ("op", f"s_sub_u32 s{sWDG}, s{sT3}, 7"),
            ("op", f"s_min_u32 s{sT3}, s{sT3}, s{sWDG}"),
            ("op", f"s_mul_i32 s{sT3}, s{sT3}, {64*896}"),
            ("op", f"s_add_u32 s{sWDG}, s{sT3}, s{sWDS}")]
def wd_dma_groups(ks0, ks1, tag, s0):
    out = []
    q = 0
    for ks in range(ks0, ks1):
        sl = ks - s0
        for hh in range(2):
            g = []
            if ks % 4 == 0 and hh == 0: g += wd_group_base(ks // 4)
            qq = 2 * (sl & 1) + hh
            if qq == 0:
                g.append(("op", f"s_add_u32 m0, s{sWDM if sl < 12 else sWDM4}, {stg_const(sl)}"))
            g.append(("op", f"s_add_u32 s{sT3}, s{sWDG}, {(16 * (ks % 4) + 8 * hh) * 896 - qq * 1024 + 4096}"))
            g.append(("vm", f"buffer_load_dwordx4 v2, s[{rWD}:{rWD+3}], s{sT3} offen offset:{qq * 1024} lds", tag))
            out.append(g)
    return out

def wd_read_items(ks0, ks1, s0):
    out = []
    for ks in range(ks0, ks1):
        sl = ks - s0
        g = sl >> 2
        for dt2 in range(2):
            for t in range(2):
                a = 8 * ks + 4 * dt2 + 2 * t
                if g < 2: base, off = 3 + dt2, stg_const(sl)
                elif g == 2: base, off = 176 + dt2, stg_const(sl) - 2 * SLOT_SZ
                else: base, off = 178 + dt2, stg_const(sl) - 3 * SLOT_SZ
                out.append(("lg", f"ds_read_b64_tr_b16 {ar(a,2)}, v{base} offset:{off + t*1024}", f"wr{ks}_{dt2}_{t}"))
    return out
def emit_lg_limited(k, items):
    for it in items:
        if it[0] == "lg" and len(k.lgq) >= 12: k.wait(lg=k.lgq[5])
        emit(k, [it])

def gelu_phase(k):
    if k.lgq: k.wait(lg=[k.lgq[-1]])
    k.op("s_barrier")
    vC, vONE = 16, 18
    k.wait(vm="init")
    k.op("v_accvgpr_read_b32 v8, a40")
    k.op("v_mov_b32 v9, 0")
    k.op("s_nop 0")
    check_or_spin(k, 8, 9, sPDBG, 1)
    cnt_addr(k, 9, idx=UCNT)
    k.vm(f"global_load_dword v8, v9, s[{sPWS}:{sPWS+1}] sc1", "ucnt")
    k.op("s_mov_b32 exec_hi, 0")
    k.lg("ds_write_b128 v11, v[20:23]", "z")
    k.op("s_mov_b32 exec_hi, -1")
    wd0 = WD0[16:] if 'wdgelu' not in OPT else WD0[:]
    g2_setup3_done = False
    def ur_dma():
        k.wait(vm="ucnt")
        k.spin_tag = 6
        check_or_spin(k, 8, 9, sPWS, 32)
        k.spin_tag = None
        k.op(f"s_lshr_b32 s{sT0}, s{sW}, 1")
        k.op(f"s_and_b32 s{sT1}, s{sW}, 1")
        k.op(f"s_lshl_b32 s{sT1}, s{sT1}, 11")
        k.op(f"s_mul_i32 s{sT2}, s{sT0}, {UR_CH}")
        k.op(f"s_add_u32 s{sT2}, s{sT2}, s{sT1}")
        k.op(f"s_add_u32 m0, s{sT2}, {UR}")
        k.op(f"s_lshl_b32 s{sT3}, s{sCH}, 12")
        k.op(f"s_add_u32 s{sT3}, s{sT3}, s{sT1}")
        k.op(f"s_add_u32 s{sT3}, s{sT3}, {U_OFF}")
        k.vm(f"buffer_load_dwordx4 v1, s[{rWS}:{rWS+3}], s{sT3} offen sc1 lds", "ur")
        k.vm(f"buffer_load_dwordx4 v1, s[{rWS}:{rWS+3}], s{sT3} offen offset:1024 sc1 lds", "ur")
        k.wait(vm="hf")
        k.lg("ds_write_b16 v10, v12", "z")
    for mt in range(8):
        stamp(k, f"y_{mt}")
        G = vACC + 16 * mt; U = G + 8
        T = 24 + (mt % 2) * 24
        tp = lambda p: T + 2 * p
        gu = lambda p: T + 8 + 2 * p
        O = T + 16
        P = range(4)
        m = []
        for p in P: m.append(("op", f"v_pk_mul_f32 {vr(tp(p),2)}, {vr(G+2*p,2)}, {vr(G+2*p,2)}"))
        for p in P: m.append(("op", f"v_pk_fma_f32 {vr(tp(p),2)}, {vr(tp(p),2)}, {vr(vC,2)}, {vr(vC,2)} op_sel:[0,1,0] op_sel_hi:[1,1,0]"))
        for p in P: m.append(("op", f"v_pk_mul_f32 {vr(tp(p),2)}, {vr(tp(p),2)}, {vr(G+2*p,2)}"))
        for p in P:
            m.append(("op", f"v_exp_f32 v{tp(p)}, v{tp(p)}")); m.append(("op", f"v_exp_f32 v{tp(p)+1}, v{tp(p)+1}"))
        for p in P: m.append(("op", f"v_pk_mul_f32 {vr(gu(p),2)}, {vr(G+2*p,2)}, {vr(U+2*p,2)}"))
        for p in P: m.append(("op", f"v_pk_fma_f32 {vr(tp(p),2)}, {vr(tp(p),2)}, {vr(vONE,2)}, {vr(vONE,2)} op_sel_hi:[1,0,0]"))
        for p in P:
            m.append(("op", f"v_rcp_f32 v{tp(p)}, v{tp(p)}")); m.append(("op", f"v_rcp_f32 v{tp(p)+1}, v{tp(p)+1}"))
        m.append(("op", "s_nop 0"))
        for p in P: m.append(("op", f"v_pk_mul_f32 {vr(gu(p),2)}, {vr(gu(p),2)}, {vr(tp(p),2)}"))
        for p in P: m.append(("op", f"v_cvt_pk_bf16_f32 v{O+p}, v{gu(p)}, v{gu(p)+1}"))
        nf = (4 if mt < 3 else 0) if 'wdgelu' not in OPT else (4 if mt < 4 else 3)
        fill = [wd0.pop(0) for _ in range(nf)]
        if "nowdg" in OPT: fill = [[x for x in g if x[0] != "vm"] for g in fill]
        pos = {8: 0, 20: 1, 32: 2, 42: 3} if nf == 4 else {12: 0, 24: 1, 36: 2} if nf == 3 else {}
        for n, it in enumerate(m):
            emit(k, [it])
            if n in pos: emit(k, fill[pos[n]])
        if mt % 4 == 0 and mt > 0:
            k.op(f"s_add_u32 s{sHST}, s{sHST}, 4096")
        if "nohst" not in OPT: k.vm(f"buffer_store_dwordx4 {vr(O,4)}, v1, s[{rWS}:{rWS+3}], s{sHST} offen offset:{(mt%4)*1024}{'' if 'hstplain' in OPT else ' sc1'}", "hst")
        if mt == 3: ur_dma()
    assert not wd0
    stamp(k, "e_gelu")
    k.wait(vm="ur", lg=[k.lgq[-1]] if k.lgq else [])
    k.op("s_barrier")

def h_signal(k):
    k.wait(vm="hst")
    k.op("s_barrier")
    cnt_addr(k, 9, idx_sgpr=sI, idx=HCNT)
    signal(k, 9, 10)
    stamp(k, "e_sig")

def conv_phase(k):
    k.wait(vm="dv")
    k.op("v_lshlrev_b32 v8, 16, v15")
    k.op(f"s_lshr_b32 s{sT0}, s{sW}, 1")
    k.op(f"s_mul_i32 s{sT2}, s{sT0}, {HC_CH}")
    k.op(f"s_add_u32 s{sT2}, s{sT2}, {HC}")
    k.op("v_bfe_u32 v5, v0, 2, 2")
    k.op(f"v_mul_u32_u24 v14, {HC_STRIDE}, v5")
    k.op("v_and_b32 v6, 3, v0")
    k.op("v_lshl_add_u32 v14, v6, 3, v14")
    k.op("v_lshrrev_b32 v6, 4, v0")
    k.op("v_lshl_add_u32 v14, v6, 4, v14")
    k.op(f"s_and_b32 s{sT1}, s{sW}, 1")
    k.op(f"s_lshl_b32 s{sT1}, s{sT1}, 8")
    k.op(f"s_add_u32 s{sT2}, s{sT2}, s{sT1}")
    k.op(f"v_add_u32 v14, s{sT2}, v14")
    k.op("v_and_b32 v7, 15, v0")
    k.op("v_lshlrev_b32 v7, 5, v7")
    k.op("v_lshlrev_b32 v5, 4, v6")
    k.op("v_sub_u32 v15, v5, v7")
    k.op(f"s_mul_i32 s{sT2}, s{sT0}, {UR_CH}")
    k.op(f"s_add_u32 s{sT2}, s{sT2}, {UR + 4064 - 3584}")
    k.op(f"s_add_u32 s{sT3}, s{sT2}, s{sT1}")
    k.op(f"v_add_u32 v15, s{sT3}, v15")
    FB = [16, 48]; GBUF = [80, 112]; ACC = 144
    def rdF(sub, J):
        b = FB[sub % 2] + 4 * J
        off = 64 * (8 * J + sub)
        return [("lg", f"ds_read_b64_tr_b16 {vr(b,2)}, v14 offset:{off}", f"F{sub}"),
                ("lg", f"ds_read_b64_tr_b16 {vr(b+2,2)}, v14 offset:{off+8}", f"F{sub}")]
    def rdG(sub, T):
        b = GBUF[sub % 2] + 4 * T
        return [("lg", f"ds_read_b128 {vr(b,4)}, v15 offset:{512*(7-T) + 64*sub}", f"F{sub}")]
    def fg(sub):
        out = []
        for i in range(8):
            out += rdG(sub, 7 - i) + rdF(sub, i)
        return out
    emit(k, fg(0))
    k.op("v_lshlrev_b32 v5, 3, v6")
    k.op("v_add_u32 v7, v7, v5")
    k.op(f"s_add_u32 s{sT2}, s{sT2}, {4088 - 4064}")
    k.op(f"v_sub_u32 v13, s{sT2}, v7")
    k.op("v_and_b32 v5, 1, v6")
    k.op("v_mul_u32_u24 v5, 504, v5")
    k.op("v_add_u32 v7, v7, v5")
    k.op("v_lshrrev_b32 v184, 3, v0")
    k.op(f"s_lshl_b32 s{sT0}, s{sW}, 3")
    k.op(f"v_add_u32 v184, s{sT0}, v184")
    k.op("v_and_b32 v185, 7, v0")
    k.op("v_mul_u32_u24 v186, 896, v184")
    k.op("v_lshl_add_u32 v186, v185, 4, v186")
    k.op(f"s_mul_i32 s78, s{sTT}, {64*896}")
    k.op(f"s_lshl_b32 s{sT0}, s{sDT}, 7")
    k.op(f"s_add_u32 s78, s78, s{sT0}")
    k.op(f"s_add_u32 s79, s78, {32*896}")
    k.op(f"s_lshr_b32 s{sU0}, s{sTT}, 1")
    cnt_addr(k, 187, idx_sgpr=sU0, idx=HCNT)
    k.op(f"s_lshl_b32 s{sT0}, s{sTT}, 1")
    k.op(f"s_mul_i32 s{sT0}, s{sT0}, 112")
    k.op(f"s_mul_i32 s{sT1}, s{sW}, 28")
    k.op(f"s_add_u32 s{sT0}, s{sT0}, s{sT1}")
    k.op(f"s_lshl_b32 s{sHG}, s{sT0}, 10")
    g2_setup3(k)
    wd1 = wd_dma_groups(WD_KS, 2 * WD_KS, "wd1", WD_KS)
    for g in wd1[:WD_KS]:
        for i, it in enumerate(g):
            if it[0] == "vm": g[i] = ("vm", it[1], "wd1a")
    wr0 = wd_read_items(0, WD_KS, 0)
    wr1 = wd_read_items(WD_KS, 2 * WD_KS, WD_KS)
    H = WD_KS // 2
    one = lambda items: [[x] for x in items]
    wtag = lambda it: [("fn", lambda t=it[2]: k.wait(lg=t))]
    def mix(a, b):
        if not b: return a
        out = []; j = 0
        for i, g in enumerate(a):
            out.append(g)
            while j < len(b) and (j + 1) * len(a) <= (i + 1) * len(b) + len(a) // 2: out.append(b[j]); j += 1
        return out + b[j:]
    N1, N2 = (6, 14) if 'n1' not in OPT else (4, 14)
    plan = {0: one(fg(1)) + [[("fn", lambda: k.wait(vm="wd0"))]] + one(wr0[:4*H]),
            1: one(fg(2)) + [wtag(wr0[4*H-1])] + mix(one(wr0[4*H:]), wd1[:N1]),
            2: mix(one(fg(3)), wd1[N1:N2] + [wtag(wr0[-1])] + wd1[N2:N2 + 4]),
            3: wd1[N2 + 4:]}
    first = set()
    for sub in range(4):
        stamp(k, f"s_pre{sub}")
        k.wait(lg=f"F{sub}")
        if sub == 1:
            h_signal(k)
            k.vm(f"buffer_load_dwordx4 {ar(224,4)}, v186, s[{rX}:{rX+3}], s78 offen", "ex")
            k.vm(f"buffer_load_dwordx4 {ar(228,4)}, v186, s[{rX}:{rX+3}], s79 offen", "ex")
        if sub == 2:
            k.vm(f"global_load_dword v188, v187, s[{sPWS}:{sPWS+1}] sc1", "hcnt")
        stamp(k, f"s_go{sub}")
        fill = [g for g in plan[sub] if g]
        mf = [(T, J) for T in range(7, -1, -1) for J in range(0, 8 - T)]
        per = len(fill) / (36.0 if sub < 3 else 20.0)
        done = 0
        for n, (T, J) in enumerate(mf):
            tile = T + J
            a = vr(ACC + 4 * tile, 4)
            cin = a if tile in first else "0"
            first.add(tile)
            k.op(f"v_mfma_f32_16x16x32_bf16 {a}, {vr(FB[sub%2]+4*J,4)}, {vr(GBUF[sub%2]+4*T,4)}, {cin}")
            want = min(len(fill), int(round((n + 1) * per + 0.49)))
            while done < want:
                emit(k, fill[done]); done += 1
        while done < len(fill):
            emit(k, fill[done]); done += 1
    stamp(k, "c_mfma")
    k.wait(vm="hcnt")
    check_or_spin(k, 188, 187, sPWS, 14)
    stamp(k, "d_hrdy")
    k.op("v_lshlrev_b32 v189, 3, v184")
    k.op(f"s_lshl_b32 s{sT0}, s{sTT}, 9")
    k.op(f"s_add_u32 s{sT0}, s{sT0}, {ST_OFF}")
    k.vm(f"buffer_load_dwordx2 {ar(232,2)}, v189, s[{rWS}:{rWS+3}], s{sT0} offen sc1", "ex")
    k.vm(f"buffer_load_dwordx2 {ar(234,2)}, v189, s[{rWS}:{rWS+3}], s{sT0} offen offset:256 sc1", "ex")
    for ks in range(PD):
        g2_hload(k, ks)
    k.op(f"s_lshl_b32 s{sT0}, s{sW}, 12")
    k.op(f"s_add_u32 s{sT0}, s{sT0}, {XCH}")
    k.op(f"v_add_u32 v5, s{sT0}, v1")
    k.op(f"s_xor_b32 s{sT1}, s{sW}, 1")
    k.op(f"s_lshl_b32 s{sT1}, s{sT1}, 12")
    k.op(f"s_add_u32 s{sT1}, s{sT1}, {XCH}")
    k.op(f"v_add_u32 v6, s{sT1}, v1")
    k.op(f"s_lshl_b32 s{sT2}, s{sCH}, 12")
    k.op(f"s_add_u32 s{sT2}, s{sT2}, {Y_OFF}")
    if k.lgq: k.wait(lg=k.lgq[-1])
    k.op("s_barrier")
    lo, le = k.newlabel("Lcodd"), k.newlabel("Lcend")
    k.op("s_nop 1")
    def finish(keep, send):
        for i in range(4):
            k.op(f"ds_write_b128 v5, {vr(ACC + 4*(send+i), 4)} offset:{1024*i}")
        for i in range(4):
            k.op(f"ds_read_b64 {vr(64+2*i,2)}, v13 offset:{512*(7-(keep+i))}")
        k.op("s_waitcnt lgkmcnt(0)")
        k.op("s_barrier")
        for i in range(4):
            k.op(f"ds_read_b128 {vr(48+4*i,4)}, v6 offset:{1024*i}")
        for i in range(4):
            U = 64 + 2 * i
            k.op(f"v_and_b32 v{112+4*i}, s{sMASK}, v{U+1}")
            k.op(f"v_lshlrev_b32 v{113+4*i}, 16, v{U+1}")
            k.op(f"v_and_b32 v{114+4*i}, s{sMASK}, v{U}")
            k.op(f"v_lshlrev_b32 v{115+4*i}, 16, v{U}")
            A = ACC + 4 * (keep + i)
            for r in range(4):
                k.op(f"v_fmac_f32 v{A+r}, v{112+4*i+r}, v8")
        k.op("s_waitcnt lgkmcnt(0)")
        for i in range(4):
            A = ACC + 4 * (keep + i)
            k.op(f"v_pk_add_f32 {vr(A,2)}, {vr(A,2)}, {vr(48+4*i,2)}")
            k.op(f"v_pk_add_f32 {vr(A+2,2)}, {vr(A+2,2)}, {vr(50+4*i,2)}")
        for i in range(4):
            A = ACC + 4 * (keep + i)
            k.op(f"v_cvt_pk_bf16_f32 v{72+2*i}, v{A}, v{A+1}")
            k.op(f"v_cvt_pk_bf16_f32 v{73+2*i}, v{A+2}, v{A+3}")
        k.op("s_nop 1")
        for i in (0, 2):
            k.op(f"v_permlane16_swap_b32 v{72+2*i}, v{74+2*i}")
            k.op(f"v_permlane16_swap_b32 v{73+2*i}, v{75+2*i}")
        k.op("s_nop 0")
        for i in (0, 2):
            k.op(f"buffer_store_dwordx4 {vr(72+2*i,4)}, v7, s[{rWS}:{rWS+3}], s{sT2} offen offset:{512*(keep+i)} sc1")
    k.op(f"s_bitcmp1_b32 s{sW}, 0")
    k.op(f"s_cbranch_scc1 {lo}")
    finish(0, 4)
    k.op(f"s_branch {le}")
    k.label(lo)
    finish(4, 0)
    k.label(le)
    for i in range(2): k.vmq.append("yst")
    stamp(k, "c_end")
    return wr1

NHS = 8; vA2 = 192
def hreg(ks, e):
    sl = ks % NHS
    return (16 + 8 * sl if sl < 4 else 80 + 8 * (sl - 4)) + 4 * e
PD = 4
def g2_hbase(k, g):
    k.op(f"s_add_u32 s{sT3}, s{sROT}, {g}")
    k.op(f"s_sub_u32 s76, s{sT3}, 7")
    k.op(f"s_min_u32 s{sT3}, s{sT3}, s76")
    k.op(f"s_lshl_b32 s{sT3}, s{sT3}, 12")
    k.op(f"s_add_u32 s76, s{sT3}, s{sHG}")
    k.op(f"s_add_u32 s77, s76, {112*1024}")
def g2_hload(k, ks):
    if ks % 4 == 0: g2_hbase(k, ks // 4)
    for e in range(2):
        b = hreg(ks, e)
        k.vm(f"buffer_load_dwordx4 {vr(b,4)}, v1, s[{rWS}:{rWS+3}], s{76+e} offen offset:{(ks%4)*1024}{'' if 'hplain' in OPT else ' sc1'}", f"h{ks}")

def gemm2_phase(k, wr1):
    k.op("v_mov_b32 v5, v184"); k.op("v_mov_b32 v6, v185"); k.op("v_mov_b32 v7, v186")
    for ks in range(PD, 2 * PD):
        g2_hload(k, ks)
    k.op(f"s_lshr_b32 s{sU0}, s{sWGM}, 5")
    cnt_addr(k, 9, idx_sgpr=sU0, idx=YCNT)
    k.op(f"s_lshl_b32 s{sU1}, s{sDT}, 7")
    k.op(f"s_add_u32 s{sU1}, s{sU1}, {CNT_OFF + YCNT * 128}")
    def y_loads():
        done = k.newlabel("Lyok")
        stamp(k, "t_y0")
        if 'ysmem' not in OPT:
            k.wait(vm="ycnt")
            k.op(f"v_readfirstlane_b32 s{sU2}, v10")
        else:
            k.op("s_waitcnt lgkmcnt(0)")
            k.lgq = []
        stamp(k, "t_y1")
        k.op(f"s_cmp_ge_u32 s{sU2}, 32")
        k.op(f"s_cbranch_scc1 {done}")
        k.op(f"v_mov_b32 v9, s{sU1}")
        q = list(k.vmq)
        spin_until(k, 9, 10, sPWS, 32)
        k.vmq = q
        k.label(done)
        stamp(k, "t_y2")
        k.op("v_lshrrev_b32 v8, 3, v0")
        k.op("v_lshlrev_b32 v8, 12, v8")
        k.op("v_lshl_add_u32 v8, v6, 4, v8")
        k.op(f"s_lshl_b32 s{sT0}, s{sDT}, 18")
        k.op(f"s_lshl_b32 s{sT1}, s{sW}, 16")
        k.op(f"s_add_u32 s{sT0}, s{sT0}, s{sT1}")
        k.op(f"s_lshl_b32 s{sT1}, s{sTT}, 7")
        k.op(f"s_add_u32 s{sT0}, s{sT0}, s{sT1}")
        k.op(f"s_add_u32 s{sT0}, s{sT0}, {Y_OFF}")
        k.op(f"s_mul_i32 s{sT1}, s{sW}, 2080")
        k.op(f"s_add_u32 m0, s{sT1}, {YT}")
        k.op(f"s_add_u32 s{sT2}, s{sT0}, {8*4096 - 1040}")
        k.vm(f"buffer_load_dwordx4 v8, s[{rWS}:{rWS+3}], s{sT0} offen sc1 lds", "ey")
        k.vm(f"buffer_load_dwordx4 v8, s[{rWS}:{rWS+3}], s{sT2} offen offset:1040 sc1 lds", "ey")
    RROW = 272; RW = 64 * RROW
    k.op("v_and_b32 v11, 31, v0")
    k.op(f"v_mul_u32_u24 v11, {RROW}, v11")
    k.op("v_lshrrev_b32 v12, 5, v0")
    k.op("v_lshl_add_u32 v11, v12, 4, v11")
    k.op(f"s_mul_i32 s{sT0}, s{sW}, {RW}")
    k.op(f"s_add_u32 s{sT0}, s{sT0}, {RED}")
    k.op(f"v_add_u32 v11, s{sT0}, v11")
    first = set()
    def mf(ks, dt2, e):
        t = 2 * dt2 + e
        acc = vr(vA2 + 16 * t, 16)
        cin = acc if t in first else "0"
        first.add(t)
        hb = hreg(ks, e)
        k.op(f"v_mfma_f32_32x32x16_bf16 {acc}, {ar(8*ks+4*dt2,4)}, {vr(hb,4)}, {cin}")
    LASTK = 24
    YSIG, YPOLL, YLOAD = (3, 14, 22) if 'ysmem' in OPT else (3, 17, 23)
    xfill = []
    for ps in range(2):
        X = 112 + 16 * ps; N = X + 8; T = 144 + 8 * ps
        for q in range(4): xfill.append(("op", f"v_accvgpr_read_b32 v{T+q}, a{224+4*ps+q}"))
        xfill.append(("op", f"v_accvgpr_read_b32 v{T+4}, a{232+2*ps}"))
        xfill.append(("op", f"v_accvgpr_read_b32 v{T+5}, a{233+2*ps}"))
        for q in range(4):
            xfill.append(("op", f"v_lshlrev_b32 v{X+2*q}, 16, v{T+q}"))
            xfill.append(("op", f"v_and_b32 v{X+2*q+1}, s{sMASK}, v{T+q}"))
        for q in range(8): xfill.append(("op", f"v_fma_f32 v{N+q}, v{X+q}, v{T+4}, v{T+5}"))
        for q in range(8): xfill.append(("op", f"v_mov_b32 v{160+8*ps+q}, 0"))
    def hl(kn, e):
        k.vm(f"buffer_load_dwordx4 {vr(hreg(kn, e),4)}, v1, s[{rWS}:{rWS+3}], s{76+e} offen offset:{(kn%4)*1024}{'' if 'hplain' in OPT else ' sc1'}", f"h{kn}")
    for ks in range(LASTK):
        if ks == YSIG:
            k.wait(vm="yst")
            k.op("s_barrier")
            signal(k, 9, 8)
            stamp(k, "c_sig")
        stamp(k, f"w_{ks}_")
        k.wait(vm=f"h{ks}", lg=[f"wr{ks}_1_1"] if ks >= WD_KS else [])
        if ks % 2 == 0: stamp(k, f"z_{ks}")
        else: stamp(k, f"q_{ks}")
        m = 0
        for dt2 in range(2):
            for e in range(2):
                mf(ks, dt2, e)
                todo = []
                if ks == 2: todo = {1: [(8, 0), (8, 1)], 3: [(9, 0), (9, 1)]}.get(m, [])
                elif ks == 3: todo = {1: [(10, 0), (10, 1)], 3: [(11, 0), (11, 1)]}.get(m, [])
                elif ks >= 4 and ks + 8 < 28 and m >= 2: todo = [(ks + 8, m - 2)]
                for kn, e2 in todo:
                    if kn % 4 == 0 and e2 == 0: g2_hbase(k, kn // 4)
                    hl(kn, e2)
                if ks < WD_KS: emit(k, [wr1[4 * ks + m]])
                if ks >= 6 and xfill and m < 2: emit(k, [xfill.pop(0) for _ in range(min(2, len(xfill)))])
                if m == 3 and ks == YPOLL and 'ysmem' in OPT: k.op(f"s_load_dword s{sU2}, s[{sPWS}:{sPWS+1}], s{sU1}")
                if m == 3 and ks == 19 and 'ysmem' not in OPT:
                    k.op(f"v_mov_b32 v9, s{sU1}")
                    k.vm(f"global_load_dword v10, v9, s[{sPWS}:{sPWS+1}] sc1", "ycnt")
                if m == 3 and ks == YLOAD: y_loads()
                m += 1
    assert not xfill
    k.wait(vm="h27", lg=["wr27_1_1"])
    def wr(t):
        dt2, e = divmod(t, 2)
        return [("lg", f"ds_write_b128 v11, {vr(vA2 + 16*t + 4*g, 4)} offset:{e*32*RROW + dt2*128 + g*32}", f"rw{t}{g}") for g in range(4)]
    for t in range(4):
        dt2, e = divmod(t, 2)
        for ks in range(LASTK, 28):
            mf(ks, dt2, e)
        if t == 2: k.op("s_nop 3")
        if t >= 2: emit(k, wr(t - 2))
    stamp(k, "d_loop")
    k.op(f"v_mov_b32 v10, {hex(f2u(-1.4426950408889634))}")
    k.op(f"v_mul_u32_u24 v8, {RROW}, v5")
    k.op("v_lshl_add_u32 v8, v6, 5, v8")
    k.op(f"v_add_u32 v8, {RED}, v8")
    k.op("v_mul_u32_u24 v9, 1040, v6")
    k.op("v_lshl_add_u32 v9, v5, 1, v9")
    k.op(f"v_add_u32 v9, {YT}, v9")
    emit(k, wr(2))
    emit(k, wr(3))
    k.op("v_mov_b32 v11, 1.0")
    k.wait(lg=k.lgq[-1])
    stamp(k, "t_wr")
    k.op("s_barrier")
    stamp(k, "t_bar")
    for ps in range(2):
        B = 16 + 64 * ps
        for w in range(4):
            for hh in range(2):
                k.lg(f"ds_read_b128 {vr(B + 8*w + 4*hh, 4)}, v8 offset:{w*RW + ps*32*RROW + hh*16}", f"p{ps}_{w}{hh}")
    for ps in range(2):
        B = 16 + 64 * ps if ps == 0 else 80
        N = 112 + 16 * ps + 8
        k.wait(lg=f"p{ps}_31")
        for q in range(4):
            k.op(f"v_pk_add_f32 {vr(B+2*q,2)}, {vr(B+2*q,2)}, {vr(B+8+2*q,2)}")
            k.op(f"v_pk_add_f32 {vr(B+16+2*q,2)}, {vr(B+16+2*q,2)}, {vr(B+24+2*q,2)}")
        for q in range(4):
            k.op(f"v_pk_add_f32 {vr(B+2*q,2)}, {vr(B+2*q,2)}, {vr(B+16+2*q,2)}")
        E = B + 16
        for q in range(4):
            k.op(f"v_pk_mul_f32 {vr(E+2*q,2)}, {vr(B+2*q,2)}, {vr(10,2)} op_sel_hi:[1,0]")
        for q in range(8): k.op(f"v_exp_f32 v{E+q}, v{E+q}")
        for q in range(4): k.op(f"v_pk_mul_f32 {vr(N+2*q,2)}, {vr(N+2*q,2)}, {vr(B+2*q,2)}")
        for q in range(4): k.op(f"v_pk_add_f32 {vr(E+2*q,2)}, {vr(E+2*q,2)}, {vr(10,2)} op_sel:[0,1] op_sel_hi:[1,1]")
        for q in range(8): k.op(f"v_rcp_f32 v{E+q}, v{E+q}")
        k.op("s_nop 0")
        for q in range(4): k.op(f"v_pk_mul_f32 {vr(N+2*q,2)}, {vr(N+2*q,2)}, {vr(E+2*q,2)}")
    stamp(k, "t_silu")
    k.wait(vm="ey")
    k.op("s_barrier")
    stamp(k, "t_ey")
    for ps in range(2):
        for e in range(8):
            if len(k.lgq) >= 14: k.wait(lg=k.lgq[3])
            k.lg(f"ds_read_u16_d16_hi v{160+8*ps+e}, v9 offset:{e*128 + ps*64}", f"y{ps}_{e}")
    for ps in range(2):
        X = 112 + 16 * ps; N = X + 8; Yr = 160 + 8 * ps; T = 144 + 8 * ps
        k.wait(lg=f"y{ps}_7")
        for q in range(4): k.op(f"v_pk_fma_f32 {vr(N+2*q,2)}, {vr(N+2*q,2)}, {vr(Yr+2*q,2)}, {vr(X+2*q,2)}")
        for q in range(4): k.op(f"v_cvt_pk_bf16_f32 v{T+q}, v{N+2*q}, v{N+2*q+1}")
        k.vm(f"buffer_store_dwordx4 {vr(T,4)}, v7, s[{rOUT}:{rOUT+3}], s{78+ps} offen{' sc1' if 'outsc1' in OPT else '' if 'outplain' in OPT else ' nt'}", "ost")
    stamp(k, "d_end")

PP_ROW = 900
PP_K = 0
PP_V = 67 * PP_ROW + 4
def prepass(k):
    if "ppst" in OPT: k.op("s_memtime s[8:9]")
    k.op(f"s_sub_u32 s{sT0}, s{sSLOT}, 28")
    k.op(f"s_lshl_b32 s{sT0}, s{sT0}, 3")
    k.op(f"s_add_u32 s{sI}, s{sT0}, s{sXCD}")
    k.op("v_lshlrev_b32 v1, 4, v0")
    k.op("s_waitcnt lgkmcnt(0)")
    srd(k, rWS, sPWS, (16 << 20) if (STAMPS and 'leak' not in OPT) else WS_USED)
    lab = k.newlabel("Lnolead")
    k.op(f"s_or_b32 s{sT0}, s{sI}, s{sW}")
    k.op(f"s_cmp_lg_u32 s{sT0}, 0")
    k.op(f"s_cbranch_scc1 {lab}")
    k.op("v_lshlrev_b32 v2, 7, v0")
    k.op(f"v_add_u32 v2, {CNT_OFF}, v2")
    k.op("v_mov_b32 v3, 0")
    k.op("s_mov_b32 exec_hi, 0")
    k.op(f"global_store_dword v2, v3, s[{sPWS}:{sPWS+1}] sc1")
    k.op("s_waitcnt vmcnt(0)")
    k.op("v_mov_b32 v2, 1")
    k.op("s_mov_b64 exec, 1")
    k.op(f"global_store_dword v3, v2, s[{sPDBG}:{sPDBG+1}] sc1")
    k.op("s_mov_b64 exec, -1")
    k.label(lab)
    if "ppf" in OPT:
        k.op(f"s_bitcmp1_b32 s{sW}, 1")
        k.op(f"s_cselect_b32 s{rX}, s{sPWU}, s{sPWG}")
        k.op(f"s_cselect_b32 s{rX+1}, s{sPWU+1}, s{sPWG+1}")
        k.op(f"s_and_b32 s{rX+1}, s{rX+1}, 0xffff")
        k.op(f"s_mov_b32 s{rX+2}, {D*F*2}")
        k.op(f"s_mov_b32 s{rX+3}, 0x20000")
        k.op(f"s_sub_u32 s{sT0}, s{sSLOT}, 28")
        k.op(f"s_mul_i32 s{sT0}, s{sT0}, 224")
        k.op(f"s_and_b32 s{sT1}, s{sW}, 1")
        k.op(f"s_lshl_b32 s{sT1}, s{sT1}, 7")
        k.op(f"s_add_u32 s{sT0}, s{sT0}, s{sT1}")
        k.op(f"s_and_b32 s{sT1}, s{sXCD}, 1")
        k.op(f"s_mul_i32 s{sT1}, s{sT1}, 1792")
        k.op(f"s_mov_b32 s{sT2}, {(1 << 32) // 14 + 1}")
        for rnd in range(2):
            k.op(f"v_add_u32 v2, s{sT0}, v0")
            if rnd: k.op("v_add_u32 v2, 64, v2")
            k.op(f"v_mul_hi_u32 v3, v2, s{sT2}")
            k.op("v_mul_u32_u24 v4, 14, v3")
            k.op("v_sub_u32 v4, v2, v4")
            k.op("v_mul_u32_u24 v3, 3584, v3")
            k.op("v_lshl_add_u32 v3, v4, 7, v3")
            k.vm(f"buffer_load_dword a250, v3, s[{rX}:{rX+3}], s{sT1} offen", "pf")
    srd(k, rK, sPK, S * D * 2)
    srd(k, rV, sPV, S * D * 2)
    srd(k, rSK, sPSK, D * 4 * 2)
    k.op("s_mov_b32 exec_hi, 0x00ffffff")
    k.op(f"s_lshl_b32 s{sT0}, s{sI}, 6")
    k.op(f"s_add_u32 s{sT0}, s{sT0}, s{sW}")
    k.op(f"s_sub_u32 s{sT1}, s{sT0}, 3")
    k.op(f"s_mul_i32 s{sT1}, s{sT1}, 896")
    k.op(f"s_mul_i32 s{sT2}, s{sW}, {PP_ROW}")
    k.op(f"s_add_u32 m0, s{sT2}, {PP_K}")
    k.op(f"v_add_u32 v2, s{sT1}, v1")
    for n in range(17):
        if n == 16:
            lab = k.newlabel("Lpk")
            k.op(f"s_cmp_eq_u32 s{sW}, 3")
            k.op(f"s_cbranch_scc1 {lab}")
            k.op(f"buffer_load_dwordx4 v2, s[{rK}:{rK+3}], 0 offen lds")
            k.label(lab)
        else:
            k.vm(f"buffer_load_dwordx4 v2, s[{rK}:{rK+3}], 0 offen lds", "k")
            k.op(f"s_add_u32 m0, m0, {4*PP_ROW}")
            k.op(f"v_add_u32 v2, {4*896}, v2")
    k.op(f"s_mul_i32 s{sT1}, s{sT0}, 896")
    k.op(f"s_add_u32 m0, s{sT2}, {PP_V}")
    k.op("s_nop 0")
    for n in range(16):
        k.vm(f"buffer_load_dwordx4 v1, s[{rV}:{rV+3}], s{sT1} offen lds", "v")
        if n < 15:
            k.op(f"s_add_u32 m0, m0, {4*PP_ROW}")
            k.op(f"s_add_u32 s{sT1}, s{sT1}, {4*896}")
    k.op("s_mov_b32 exec_hi, -1")
    k.op(f"s_mov_b32 s{sMASK}, 0xffff0000")
    k.op("v_and_b32 v2, 3, v0")
    k.op("v_lshrrev_b32 v3, 5, v0")
    k.op("v_lshl_add_u32 v2, v3, 2, v2")
    k.op("v_bfe_u32 v3, v0, 2, 3")
    k.op(f"v_mul_u32_u24 v4, {8*PP_ROW}, v2")
    k.op("v_lshl_add_u32 v4, v3, 2, v4")
    k.op(f"s_lshl_b32 s{sT0}, s{sW}, 5")
    k.op(f"v_add_u32 v4, s{sT0}, v4")
    k.op(f"v_add_u32 v8, {PP_V}, v4")
    k.op("v_lshlrev_b32 v5, 4, v3")
    k.op(f"s_lshl_b32 s{sT0}, s{sW}, 7")
    k.op(f"v_add_u32 v5, s{sT0}, v5")
    k.op("v_lshlrev_b32 v6, 13, v3")
    k.op(f"s_lshl_b32 s{sT0}, s{sW}, 16")
    k.op(f"v_add_u32 v6, s{sT0}, v6")
    k.op("v_lshlrev_b32 v7, 4, v2")
    k.op("v_sub_u32 v6, v6, v7")
    k.op(f"s_lshl_b32 s{sT0}, s{sI}, 7")
    k.op(f"s_sub_u32 s{sT0}, {U_OFF + (2047 - 7) * 2}, s{sT0}")
    k.op(f"v_add_u32 v6, s{sT0}, v6")
    for it in range(7):
        k.vm(f"buffer_load_dwordx4 {vr(100 + 4*it, 4)}, v5, s[{rSK}:{rSK+3}], 0 offen offset:{it*512}", "sk")
    if "ppst" in OPT: k.op("s_memtime s[10:11]")
    k.wait_all()
    if "ppst" in OPT: k.op("s_memtime s[12:13]")
    k.op("s_barrier")
    RAW = [16, 176]
    def reads(it):
        base = RAW[it % 2]; coff = it * 128
        for j in range(11):
            k.lg(f"ds_read_b32 v{base+j}, v4 offset:{PP_K + j*PP_ROW + coff}", f"r{it}")
        for j in range(8):
            k.lg(f"ds_read_b32 v{base+11+j}, v8 offset:{j*PP_ROW + coff}", f"r{it}")
    reads(0)
    for it in range(7):
        KR = RAW[it % 2]; VR = KR + 11
        sk = 100 + 4 * it
        k.op(f"v_lshlrev_b32 v64, 16, v{sk}");   k.op(f"v_lshlrev_b32 v65, 16, v{sk+2}")
        k.op(f"v_and_b32 v66, 0xffff0000, v{sk}"); k.op(f"v_and_b32 v67, 0xffff0000, v{sk+2}")
        k.op(f"v_lshlrev_b32 v68, 16, v{sk+1}"); k.op(f"v_lshlrev_b32 v69, 16, v{sk+3}")
        k.op(f"v_and_b32 v70, 0xffff0000, v{sk+1}"); k.op(f"v_and_b32 v71, 0xffff0000, v{sk+3}")
        k.wait(lg=f"r{it}")
        for j in range(11):
            k.op(f"v_lshlrev_b32 v{40+2*j}, 16, v{KR+j}")
            k.op(f"v_and_b32 v{41+2*j}, s{sMASK}, v{KR+j}")
        for j in range(8):
            k.op(f"v_lshlrev_b32 v{72+2*j}, 16, v{VR+j}")
            k.op(f"v_and_b32 v{73+2*j}, s{sMASK}, v{VR+j}")
        if it + 1 < 7: reads(it + 1)
        for t in range(8):
            k.op(f"v_pk_mul_f32 {vr(130+2*t,2)}, {vr(40+2*(t+3),2)}, {vr(64,2)}")
        for j in range(1, 4):
            for t in range(8):
                o = 130 + 2 * t
                k.op(f"v_pk_fma_f32 {vr(o,2)}, {vr(40+2*(t+3-j),2)}, {vr(64+2*j,2)}, {vr(o,2)}")
        for t in range(8):
            o = 130 + 2 * t
            k.op(f"v_pk_mul_f32 {vr(o,2)}, {vr(o,2)}, {vr(72+2*t,2)}")
        O = 150 + 8 * (it % 2)
        for q in range(4):
            k.op(f"v_cvt_pk_bf16_f32 v{O+q}, v{130+2*(7-2*q)}, v{130+2*(6-2*q)}")
            k.op(f"v_cvt_pk_bf16_f32 v{O+4+q}, v{131+2*(7-2*q)}, v{131+2*(6-2*q)}")
        k.op(f"s_mov_b32 s{sT0}, {it * 64 * 4096}")
        k.op(f"s_mov_b32 s{sT1}, {it * 64 * 4096 + 4096}")
        k.vm(f"buffer_store_dwordx4 {vr(O,4)}, v6, s[{rWS}:{rWS+3}], s{sT0} offen sc1", "ust")
        k.vm(f"buffer_store_dwordx4 {vr(O+4,4)}, v6, s[{rWS}:{rWS+3}], s{sT1} offen sc1", "ust")
    if "ppst" in OPT: k.op("s_memtime s[14:15]")
    k.wait_all()
    if "ppst" in OPT: k.op("s_memtime s[72:73]")
    k.op("s_barrier")
    lab = k.newlabel("Lpsig")
    k.op(f"s_cmp_lg_u32 s{sW}, 0")
    k.op(f"s_cbranch_scc1 {lab}")
    k.op("v_mov_b32 v9, 0")
    spin_until(k, 9, 8, sPDBG, 1)
    k.label(lab)
    cnt_addr(k, 9, idx=UCNT)
    signal(k, 9, 8)
    if "ppst" in OPT:
        k.op("s_waitcnt vmcnt(0) lgkmcnt(0)")
        k.op("s_memtime s[74:75]")
        k.op("s_waitcnt lgkmcnt(0)")
        k.op("s_lshl_b32 s4, s2, 2"); k.op(f"s_add_u32 s4, s4, s{sW}"); k.op("s_lshl_b32 s4, s4, 7"); k.op(f"s_add_u32 s4, s4, {STAMP_OFF}")
        k.op("v_mov_b32 v1, 0"); k.op("s_mov_b64 exec, 1")
        for i, r in enumerate((8, 10, 12, 14, 72, 74)):
            k.op(f"v_mov_b32 v2, s{r}")
            k.op(f"buffer_store_dword v2, v1, s[{rWS}:{rWS+3}], s4 offen offset:{4*i}")
        k.op("s_mov_b64 exec, -1")

def kd(name, vgpr=512, acc=256):
    return f""".section .rodata,"a"
.p2align 6
.amdhsa_kernel {name}
  .amdhsa_next_free_vgpr {vgpr}
  .amdhsa_next_free_sgpr 102
  .amdhsa_accum_offset {acc}
  .amdhsa_group_segment_fixed_size 0
  .amdhsa_kernarg_size 104
  .amdhsa_user_sgpr_count 2
  .amdhsa_user_sgpr_kernarg_segment_ptr 1
  .amdhsa_system_sgpr_workgroup_id_x 1
  .amdhsa_float_denorm_mode_32 3
.end_amdhsa_kernel
"""

def build():
    k = K()
    prologue(k, 32768)
    start_main(k)
    gemm1_loop(k)
    gelu_phase(k)
    wr1 = conv_phase(k)
    gemm2_phase(k, wr1)
    for o in OPT:
        if o.startswith("cyc"):
            n = int(o[3:])
            k.op(f"s_add_u32 s10, s73, {n}")
            k.label("L_untilc")
            k.op("s_memtime s[8:9]")
            k.op("s_waitcnt lgkmcnt(0)")
            k.op("s_sub_u32 s11, s10, s8")
            k.op("s_cmp_gt_i32 s11, 0")
            k.op("s_cbranch_scc1 L_untilc")
        if o.startswith("until"):
            n = int(o[5:])
            k.op(f"s_add_u32 s10, s73, {n}")
            k.label("L_until")
            k.op("s_memrealtime s[8:9]")
            k.op("s_waitcnt lgkmcnt(0)")
            k.op("s_sub_u32 s11, s10, s8")
            k.op("s_cmp_gt_i32 s11, 0")
            k.op("s_cbranch_scc1 L_until")
        if o.startswith("delay"):
            n = int(o[5:])
            k.op("s_memtime s[8:9]")
            k.op("s_waitcnt lgkmcnt(0)")
            k.op(f"s_add_u32 s10, s8, {n}")
            k.label("L_delay")
            k.op("s_memtime s[8:9]")
            k.op("s_waitcnt lgkmcnt(0)")
            k.op("s_sub_u32 s11, s10, s8")
            k.op("s_cmp_gt_i32 s11, 0")
            k.op("s_cbranch_scc1 L_delay")
    stamp_flush(k)
    k.op("s_endpgm")
    k.label("L_pre")
    k.vmq = []; k.lgq = []
    prepass(k)
    k.label("L_exit")
    name = NAME + "_kernel"
    header = open("cdna_kernels/" + NAME + ".s.ref").read().split("; Override launch")[0]
    txt = header + f"; @launch grid=(256,1,1) block=(256,1,1) lds={LDS_TOTAL}\n"
    txt += '.amdgcn_target "amdgcn-amd-amdhsa--gfx950"\n.text\n'
    txt += f".globl {name}\n.p2align 8\n.type {name},@function\n{name}:\n"
    txt += k.text() + "s_endpgm\n" + kd(name)
    return txt

if __name__ == "__main__":
    if len(sys.argv) > 2 and sys.argv[2].startswith("stamps"):
        STAMPS = True
        if "=" in sys.argv[2]: STAMPSET = sys.argv[2].split("=")[1].split(",")
    if len(sys.argv) > 3: OPT.update(sys.argv[3].split(","))
    txt = build()
    if "noalign" not in OPT:
        import align
        txt = align.align(txt)
    check_hazards(txt)
    open(sys.argv[1], "w").write(txt)
    if STAMPS: print("stamps:", stamped)
```

```python
import sys, struct
from asmlib import *

NAME = "recurrent_scan__ssm_conv_h3__geglu_ffn__prompt"
S, D, F = 2048, 448, 1792
OPT = set()

H_OFF = 0
U_OFF = H_OFF + 64 * 112 * 1024
Y_OFF = U_OFF + D * 4096
ST_OFF = Y_OFF + D * 4096
CNT_OFF = ST_OFF + S * 8
WS_USED = CNT_OFF + 32 * 128
HCNT, YCNT, UCNT = 0, 16, 24

sPQ, sPK, sPV, sPSK, sPSSM, sPD, sPBX, sPWG = 16, 18, 20, 22, 24, 26, 28, 30
sPWU, sPWD, sPOUT, sPDBG = 32, 34, 36, 38
sPWS = 40
rX, rW, rWS, rWD, rSSM, rOUT, rD = 44, 48, 52, 56, 60, 64, 68
rK, rV, rSK = 48, 56, 60
sT0, sT1, sT2, sT3 = 4, 5, 6, 7
sW, sI, sJ, sWSO, sWM0, sSLOT, sXCD, sONES, sMASK, sWGM = 80, 81, 82, 83, 84, 85, 86, 87, 88, 89
sTT, sDT, sWDS, sWDM, sCH = 90, 91, 92, 93, 94
sHST = 95
sWDG = 75
sWDM4 = 42
sROT = 43
sHG = 74
sU0, sU1, sU2, sU3 = 96, 97, 98, 99

SLOT_SZ = 34048
XOFF = 17024
XS = SLOT_SZ
XROW = 912
SLOT = [0, SLOT_SZ, 2 * SLOT_SZ, 3 * SLOT_SZ]
LDS_TOTAL = 163840
HC_STRIDE = 4160
HC_CH = 4 * HC_STRIDE
UR_CH = 4608
WDST = 0
WD_KS = 14
WD_WAVE = WD_KS * 2048
def stg_const(s_):
    g = s_ >> 2
    return g * SLOT_SZ + (s_ & 3) * 2048 if g < 3 else 3 * SLOT_SZ + (s_ & 1) * 2048
HC = 3 * SLOT_SZ + 4 * 4096
UR = HC + 2 * HC_CH
XCH = HC
YT = UR + 2 * UR_CH
assert YT + 8320 <= LDS_TOTAL or True
YT = HC + 16384
RED = 0

vX = 16
vACC = 128

STAMPS = False
STAMP_OFF = 12 << 20
STAMPSET = None
POOL = [8, 10, 72, 18, 20, 22, 28, 16, 24, 26, 30, 32, 34, 36, 12, 14]
stamped = []
def stamp(k, name=""):
    if not STAMPS: return
    if STAMPSET is not None and not any((name == p[:-1]) if p.endswith("$") else name.startswith(p) for p in STAMPSET): return
    i = len(stamped)
    assert i < len(POOL)
    stamped.append(name)
    k.op(f"{'s_memrealtime' if 'rtst' in OPT else 's_memtime'} s[{POOL[i]}:{POOL[i]+1}]")
def stamp_flush_dbg(k):
    wg = int([o for o in OPT if o.startswith("dbgwg")][0][5:])
    lab = k.newlabel("Ldbg")
    k.op("s_waitcnt vmcnt(0) lgkmcnt(0)")
    k.op(f"s_cmp_lg_u32 s2, {wg}"); k.op(f"s_cbranch_scc1 {lab}")
    k.op(f"s_cmp_lg_u32 s{sW}, 0"); k.op(f"s_cbranch_scc1 {lab}")
    k.op("s_mov_b64 exec, 1")
    for i in range(1, len(stamped)):
        k.op(f"s_sub_u32 s4, s{POOL[i]}, s{POOL[0]}")
        k.op(f"v_mov_b32 v2, s4")
        k.op(f"v_mov_b32 v1, {4*i}")
        k.op(f"global_store_dword v1, v2, s[{sPDBG}:{sPDBG+1}]")
    k.op("s_mov_b64 exec, -1")
    k.label(lab)

def stamp_leak(k):
    KL = 3
    k.op("s_waitcnt vmcnt(0) lgkmcnt(0)")
    k.op(f"s_sub_u32 s4, s{POOL[1]}, s{POOL[0]}")
    k.op(f"s_mul_i32 s4, s4, {KL}")
    k.op("s_memtime s[6:7]")
    k.op("s_waitcnt lgkmcnt(0)")
    k.op("s_add_u32 s4, s4, s6")
    k.label("L_leak")
    k.op("s_memtime s[6:7]")
    k.op("s_waitcnt lgkmcnt(0)")
    k.op("s_sub_u32 s5, s4, s6")
    k.op("s_cmp_gt_i32 s5, 0")
    k.op("s_cbranch_scc1 L_leak")

def stamp_flush(k):
    if not STAMPS: return
    if "leak" in OPT: return stamp_leak(k)
    if any(o.startswith("dbgwg") for o in OPT): return stamp_flush_dbg(k)
    k.op("s_waitcnt vmcnt(0) lgkmcnt(0)")
    k.op("s_memrealtime s[42:43]")
    k.op("s_waitcnt lgkmcnt(0)")
    k.op("s_mov_b32 s101, s42")
    k.op("s_lshl_b32 s4, s2, 2")
    k.op(f"s_add_u32 s4, s4, s{sW}")
    k.op("s_lshl_b32 s4, s4, 7")
    k.op(f"s_add_u32 s4, s4, {STAMP_OFF}")
    k.op("v_mov_b32 v1, 0")
    k.op("s_mov_b64 exec, 1")
    for i in range(len(stamped)):
        k.op(f"v_mov_b32 v2, s{POOL[i]}")
        k.op(f"buffer_store_dword v2, v1, s[{rWS}:{rWS+3}], s4 offen offset:{4*i}")
    k.op("v_mov_b32 v2, s100")
    k.op(f"buffer_store_dword v2, v1, s[{rWS}:{rWS+3}], s4 offen offset:{4*30}")
    k.op("v_mov_b32 v2, s101")
    k.op(f"buffer_store_dword v2, v1, s[{rWS}:{rWS+3}], s4 offen offset:{4*31}")
    k.op("s_mov_b64 exec, -1")

def f2u(x):
    return struct.unpack("<I", struct.pack("<f", x))[0]

def srd(k, r, ptr, nbytes):
    k.op(f"s_mov_b32 s{r}, s{ptr}")
    k.op(f"s_and_b32 s{r+1}, s{ptr+1}, 0xffff")
    k.op(f"s_mov_b32 s{r+2}, {nbytes}")
    k.op(f"s_mov_b32 s{r+3}, 0x20000")

def emit(k, items):
    for it in items:
        if it[0] == "op": k.op(it[1])
        elif it[0] == "vm": k.vm(it[1], it[2])
        elif it[0] == "lg": k.lg(it[1], it[2])
        elif it[0] == "fn": it[1]()

def capture(fn, *args):
    t = K()
    fn(t, *args)
    assert not t.vmq and not t.lgq
    return [("op", l) for l in t.L]

def interleave(k, main, fill, every, start=0):
    fill = list(fill)
    for n, it in enumerate(main):
        emit(k, [it])
        if fill and n >= start and (n - start) % every == every - 1:
            emit(k, fill.pop(0))
    for g in fill: emit(k, g)

def cnt_addr(k, vreg, idx_sgpr=None, idx=0):
    if idx_sgpr is None:
        k.op(f"v_mov_b32 v{vreg}, {CNT_OFF + idx * 128}")
    else:
        k.op(f"s_lshl_b32 s{sT0}, s{idx_sgpr}, 7")
        k.op(f"s_add_u32 s{sT0}, s{sT0}, {CNT_OFF + idx * 128}")
        k.op(f"v_mov_b32 v{vreg}, s{sT0}")

def spin_until(k, vaddr, vtmp, base, target, cmp="ge"):
    lab, done = k.newlabel("Lspin"), k.newlabel("Lspun")
    if "cntspin" in OPT:
        slot = {32: 4, 14: 5, 1: 7}[target] if vaddr != 9 or target != 32 else 4
        if getattr(k, "spin_tag", None): slot = k.spin_tag
        k.op(f"v_mov_b32 v{vtmp}, 1")
        k.op("s_mov_b64 exec, 1")
        k.op(f"v_mov_b32 v190, {4*slot}")
        k.op(f"global_atomic_add v190, v{vtmp}, s[{sPDBG}:{sPDBG+1}]")
        k.op("s_mov_b64 exec, -1")
    k.op(f"s_mov_b32 s{sT1}, 0x40000")
    k.label(lab)
    k.op(f"global_load_dword v{vtmp}, v{vaddr}, s[{base}:{base+1}] sc1")
    k.op("s_waitcnt vmcnt(0)")
    k.op(f"v_readfirstlane_b32 s{sT2}, v{vtmp}")
    k.op(f"s_sub_u32 s{sT1}, s{sT1}, 1")
    k.op(f"s_cmp_ge_u32 s{sT2}, {target}")
    k.op(f"s_cbranch_scc1 {done}")
    k.op("s_sleep %d" % int(([o for o in OPT if o.startswith("slp")] or ["slp1"])[0][3:]))
    k.op(f"s_cmp_lg_u32 s{sT1}, 0")
    k.op(f"s_cbranch_scc1 {lab}")
    k.label(done)
    k.vmq = []

def check_or_spin(k, vval, vaddr, base, target):
    done = k.newlabel("Lok")
    k.op(f"v_readfirstlane_b32 s{sT2}, v{vval}")
    k.op(f"s_cmp_ge_u32 s{sT2}, {target}")
    k.op(f"s_cbranch_scc1 {done}")
    q = list(k.vmq)
    spin_until(k, vaddr, vval, base, target)
    k.vmq = q
    k.label(done)

def signal(k, vaddr, vone):
    lab = k.newlabel("Lsig")
    k.op(f"s_cmp_lg_u32 s{sW}, 0")
    k.op(f"s_cbranch_scc1 {lab}")
    k.op(f"v_mov_b32 v{vone}, 1")
    k.op("s_mov_b64 exec, 1")
    k.op(f"global_atomic_add v{vaddr}, v{vone}, s[{sPWS}:{sPWS+1}] sc1")
    k.op("s_mov_b64 exec, -1")
    k.label(lab)

def prologue(k, codebytes):
    if any(o.startswith("cyc") for o in OPT):
        k.op("s_memtime s[72:73]")
        k.op("s_waitcnt lgkmcnt(0)")
        k.op("s_mov_b32 s73, s72")
    if any(o.startswith("until") for o in OPT):
        k.op("s_memrealtime s[72:73]")
        k.op("s_waitcnt lgkmcnt(0)")
        k.op("s_mov_b32 s73, s72")
    k.op("s_getpc_b64 s[12:13]")
    k.op("s_load_dwordx16 s[16:31], s[0:1], 0")
    k.op("s_load_dwordx8 s[32:39], s[0:1], 64")
    k.op("s_load_dwordx2 s[40:41], s[0:1], 96")
    k.op("v_lshrrev_b32 v1, 6, v0")
    k.op("v_and_b32 v0, 63, v0")
    k.op("s_cmp_ge_u32 s2, 256")
    k.op(f"v_readfirstlane_b32 s{sW}, v1")
    k.op("s_cbranch_scc1 L_exit")
    if "nocodepf" not in OPT:
        k.op("s_lshr_b32 s14, s2, 3")
        k.op("s_lshl_b32 s14, s14, 2")
        k.op(f"s_add_u32 s14, s14, s{sW}")
        k.op("s_mul_i32 s14, s14, 384")
        k.op("s_add_u32 s12, s12, s14")
        k.op("s_addc_u32 s13, s13, 0")
        k.op("v_lshlrev_b32 v2, 7, v0")
        k.op("s_mov_b64 exec, 7")
        k.vm("global_load_dword a250, v2, s[12:13]", "code")
        k.op("s_mov_b64 exec, -1")
        assert codebytes <= 128 * 384
    if STAMPS and not any(o.startswith("dbgwg") for o in OPT) and "leak" not in OPT:
        k.op("s_memrealtime s[42:43]")
        k.op("s_waitcnt lgkmcnt(0)")
        k.op("s_mov_b32 s100, s42")
    k.op(f"s_and_b32 s{sXCD}, s2, 7")
    k.op(f"s_lshr_b32 s{sSLOT}, s2, 3")
    k.op(f"s_cmp_ge_u32 s{sSLOT}, 28")
    k.op("s_cbranch_scc1 L_pre")

def wdma(c, e):
    out = []
    if e % 4 == 0:
        out.append(("op", f"s_add_u32 m0, s{sWM0}, {SLOT[c % 4] + e * 1056}"))
    out.append(("op", f"s_add_u32 s{sT3}, s{sWSO}, {(64 * c + e) * 3584 - (e % 4) * 1056}"))
    out.append(("vm", f"buffer_load_dwordx4 v2, s[{rW}:{rW+3}], s{sT3} offen offset:{(e % 4) * 1056} lds", f"w{c}"))
    return out

def start_main(k):
    k.op(f"s_mul_i32 s{sT0}, s{sSLOT}, 37")
    k.op(f"s_lshr_b32 s{sT0}, s{sT0}, 8")
    k.op(f"s_mul_i32 s{sT1}, s{sT0}, 7")
    k.op(f"s_sub_u32 s{sDT}, s{sSLOT}, s{sT1}")
    k.op(f"s_lshr_b32 s{sT2}, s{sXCD}, 1")
    k.op(f"s_lshl_b32 s{sT2}, s{sT2}, 2")
    k.op(f"s_add_u32 s{sI}, s{sT2}, s{sT0}")
    k.op(f"s_lshl_b32 s{sTT}, s{sXCD}, 2")
    k.op(f"s_add_u32 s{sTT}, s{sTT}, s{sT0}")
    k.op("v_lshlrev_b32 v1, 4, v0")
    k.op(f"s_lshl_b32 s{sU0}, s{sI}, 2")
    k.op(f"s_add_u32 s{sU0}, s{sU0}, s{sW}")
    k.op(f"s_mul_i32 s{sU0}, s{sU0}, {32*896}")
    k.op(f"s_mul_i32 s{sU1}, s{sW}, {32*XROW}")
    k.op(f"s_add_u32 s{sU1}, s{sU1}, {XS}")
    k.op(f"s_mul_i32 s{sU2}, s{sDT}, 9")
    k.op(f"s_lshr_b32 s{sU2}, s{sU2}, 2")
    k.op("v_lshrrev_b32 v242, 5, v0")
    k.op("v_mul_u32_u24 v240, 896, v242")
    k.op("v_lshlrev_b32 v242, 3, v242")
    k.op("v_and_b32 v243, 31, v0")
    k.op("v_xor_b32 v243, v243, v242")
    k.op("v_lshl_add_u32 v240, v243, 4, v240")
    stamp(k, "b_pre")
    k.op("s_waitcnt lgkmcnt(0)")
    if "tlb" in OPT:
        for i, p in enumerate((sPWG, sPWU, sPWD, sPSSM, sPOUT, sPD)):
            k.op(f"s_load_dword s{96 if False else 100 if not STAMPS else 15}, s[{p}:{p+1}], 0") if False else None
        for p in (sPWG, sPWU, sPWD, sPSSM, sPOUT):
            k.op(f"s_load_dword s15, s[{p}:{p+1}], 0x0")
        for off in (H_OFF, 2 << 20, 4 << 20, 6 << 20, U_OFF + (1 << 20), Y_OFF + (1 << 20)):
            k.op(f"s_mov_b32 s14, {off}")
            k.op(f"s_load_dword s15, s[{sPWS}:{sPWS+1}], s14")
    srd(k, rX, sPQ, S * D * 2)
    stamp(k, "start")
    if "earlypf" in OPT:
        k.op("s_mov_b32 exec_hi, 0")
        k.vm(f"buffer_load_dword a250, v5, s[{rW}:{rW+3}], s{sWDG} offen", "pf")
    def xdma(part):
        out = [("op", f"s_mul_i32 s{sT1}, s{sU2}, {1040 if part == 0 else 784}"),
               ("op", f"s_mul_i32 s{sT2}, s{sU2}, 1792"),
               ("op", f"s_add_u32 m0, s{sT1}, s{sU1 if part == 0 else sU3}"),
               ("op", f"s_add_u32 s{sT2}, s{sT2}, s{sU0}"),
               ("op", f"s_add_u32 s{sU2}, s{sU2}, 1"),
               ("vm", f"buffer_load_dwordx4 v{240 + part}, s[{rX}:{rX+3}], s{sT2} offen {'offset:0 ' if False else ''}lds", f"x{part}"),
               ("op", f"s_and_b32 s{sU2}, s{sU2}, 15")]
        return out
    k.op(f"s_add_u32 s{sU3}, s{sU1}, 16640")
    k.op(f"s_mov_b32 s{sT0}, 16")
    lx = k.newlabel("Lxd")
    k.label(lx)
    for it in xdma(0): k.op(it[1])
    k.op(f"s_sub_u32 s{sT0}, s{sT0}, 1")
    k.op(f"s_cmp_lg_u32 s{sT0}, 0")
    k.op(f"s_cbranch_scc1 {lx}")
    for n in range(16): k.vmq.append("x0")
    k.op("v_cmp_le_u32 vcc, 24, v0")
    k.op(f"v_mov_b32 v242, {896 - 24*16}")
    k.op("v_lshlrev_b32 v241, 4, v0")
    k.op("v_cndmask_b32 v242, 0, v242, vcc")
    k.op("v_add_u32 v241, v241, v242")
    k.op(f"s_and_b32 s{sT0}, s{sXCD}, 1")
    k.op(f"s_mul_i32 s{sJ}, s{sT0}, 7")
    k.op(f"s_add_u32 s{sJ}, s{sJ}, s{sDT}")
    k.op("v_lshrrev_b32 v6, 4, v0")
    k.op("v_lshlrev_b32 v6, 6, v6")
    k.op("v_bfe_u32 v7, v0, 1, 3")
    k.op("v_add_u32 v6, v6, v7")
    k.op("v_mul_u32_u24 v6, 3584, v6")
    k.op("v_and_b32 v7, 1, v0")
    k.op("v_lshl_add_u32 v5, v7, 7, v6")
    k.op(f"s_and_b32 s{sT0}, s{sI}, 3")
    k.op(f"s_lshl_b32 s{sT0}, s{sT0}, 1")
    k.op(f"s_lshr_b32 s{sWDG}, s{sW}, 1")
    k.op(f"s_add_u32 s{sT0}, s{sT0}, s{sWDG}")
    k.op(f"s_mul_i32 s{sT0}, s{sT0}, {8*3584}")
    k.op(f"s_lshl_b32 s{sWDG}, s{sJ}, 8")
    k.op(f"s_add_u32 s{sWDG}, s{sWDG}, s{sT0}")
    k.op(f"s_bitcmp1_b32 s{sW}, 0")
    k.op(f"s_cselect_b32 s{rW}, s{sPWU}, s{sPWG}")
    k.op(f"s_cselect_b32 s{rW+1}, s{sPWU+1}, s{sPWG+1}")
    k.op(f"s_and_b32 s{rW+1}, s{rW+1}, 0xffff")
    k.op(f"s_mov_b32 s{rW+2}, {D*F*2}")
    k.op(f"s_mov_b32 s{rW+3}, 0x20000")
    k.op(f"s_add_u32 s{sU0}, s{sU0}, 512")
    k.op("s_mov_b32 exec_hi, 0xffff")
    for n in range(8): emit(k, xdma(1))
    k.op("s_mov_b32 exec_hi, -1")
    stamp(k, "a_xiss")
    k.op("v_lshrrev_b32 v10, 4, v0")
    k.op(f"v_mul_u32_u24 v2, {16*3584}, v10")
    k.op("v_and_b32 v11, 15, v0")
    k.op("v_lshl_add_u32 v2, v11, 4, v2")
    k.op(f"s_lshr_b32 s{sT0}, s{sW}, 1")
    k.op(f"s_lshl_b32 s{sT0}, s{sT0}, 3")
    k.op(f"s_mul_i32 s{sWSO}, s{sT0}, 3584")
    k.op(f"s_lshl_b32 s{sT1}, s{sJ}, 8")
    k.op(f"s_add_u32 s{sWSO}, s{sWSO}, s{sT1}")
    k.op(f"s_mul_i32 s{sWM0}, s{sT0}, 1056")
    k.op(f"s_and_b32 s{sT1}, s{sW}, 1")
    k.op(f"s_mul_i32 s{sT1}, s{sT1}, {XOFF}")
    k.op(f"s_add_u32 s{sWM0}, s{sWM0}, s{sT1}")
    stamp(k, "a_issued")
    k.op(f"s_mul_i32 s{sWGM}, s{sXCD}, 28")
    k.op(f"s_add_u32 s{sWGM}, s{sWGM}, s{sSLOT}")
    srd(k, rWS, sPWS, (16 << 20) if (STAMPS and 'leak' not in OPT) else WS_USED)
    srd(k, rWD, sPWD, F * D * 2)
    srd(k, rSSM, sPSSM, D * S * 2)
    srd(k, rOUT, sPOUT, S * D * 2)
    srd(k, rD, sPD, D * 2)
    k.op("v_and_b32 v11, 1, v10")
    k.op(f"v_mul_u32_u24 v3, {XOFF}, v11")
    k.op("v_lshrrev_b32 v11, 5, v0")
    k.op("v_lshlrev_b32 v12, 3, v11")
    k.op("v_bfe_u32 v13, v0, 2, 2")
    k.op("v_add_u32 v12, v12, v13")
    k.op("v_mul_u32_u24 v12, 1056, v12")
    k.op("v_add_u32 v3, v3, v12")
    k.op("v_and_b32 v13, 3, v0")
    k.op("v_lshl_add_u32 v3, v13, 3, v3")
    k.op(f"v_add_u32 v14, {2*SLOT_SZ}, v3")
    k.op("v_and_b32 v13, 31, v0")
    k.op("v_lshrrev_b32 v12, 1, v13")
    k.op("v_and_b32 v13, 1, v13")
    k.op("v_mul_u32_u24 v242, 1040, v12")
    k.op("v_lshl_add_u32 v242, v11, 4, v242")
    k.op("v_lshl_add_u32 v242, v13, 9, v242")
    k.op(f"v_add_u32 v242, s{sU1}, v242")
    k.op("v_lshlrev_b32 v15, 7, v13")
    k.op("v_sub_u32 v243, v242, v15")
    k.op("v_add_u32 v242, v242, v15")
    k.op("v_mul_u32_u24 v244, 784, v12")
    k.op("v_lshl_add_u32 v244, v11, 4, v244")
    k.op("v_mul_u32_u24 v13, 384, v13")
    k.op("v_add_u32 v244, v244, v13")
    k.op(f"v_add_u32 v244, s{sU3}, v244")
    k.op(f"s_mov_b32 s{sONES}, 0x3f803f80")
    k.op(f"s_mov_b32 s{sMASK}, 0xffff0000")
    for a in range(8): k.op(f"v_mov_b32 v{6+a}, 0")
    def st(n):
        return [("op", f"v_dot2_f32_bf16 v{6 + n % 4}, v{vX+n}, s{sONES}, v{6 + n % 4}"),
                ("op", f"v_dot2_f32_bf16 v{10 + n % 4}, v{vX+n}, v{vX+n}, v{10 + n % 4}")]
    def xrd(ks):
        if ks < 16: return ("lg", f"ds_read_b128 {vr(vX + 4 * ks, 4)}, v{242 + ((ks >> 2) & 1)} offset:{32 * ks}", f"x{ks}r")
        return ("lg", f"ds_read_b128 {vr(vX + 4 * ks, 4)}, v244 offset:{32 * (ks - 16)}", f"x{ks}r")
    k.wait(vm="x0")
    stamp(k, "a_xarr")
    for ks in range(16): emit(k, [xrd(ks)])
    rest = []
    for n in range(8):
        g = xdma(1)
        rest.append([("op", "s_mov_b32 exec_hi, 0xffff")] + g + [("op", "s_mov_b32 exec_hi, -1")])
    rest += [wdma(0, e) for e in range(8)]
    for ks in range(16):
        k.wait(lg=f"x{ks}r")
        for q in range(4): emit(k, st(4 * ks + q))
        emit(k, rest[ks])
    stamp(k, "a_p1")
    k.wait(vm="x1")
    for ks in range(16, 28): emit(k, [xrd(ks)])
    if "nopf" not in OPT:
        k.op(f"s_add_u32 s{sWDG}, s{sWDG}, {64*3584}")
        if "nopf1" not in OPT: k.vm(f"buffer_load_dword a250, v5, s[{rW}:{rW+3}], s{sWDG} offen", "pf")
    k.wait(lg="x27r")
    k.op("v_mov_b32 v15, v5")
    k.op("s_barrier")
    stamp(k, "a_xreg")
    main = []
    for n in range(64, 112): main += st(n)
    fill = [wdma(1, e) for e in range(8)] if "w1early" in OPT else []
    if "w1late" in OPT and "nopf" not in OPT:
        fill.append([("op", f"s_add_u32 s{sWDG}, s{sWDG}, {128*3584}"),
                     ("vm", f"buffer_load_dword a250, v15, s[{rW}:{rW+3}], s{sWDG} offen", "pf")])
    if "nopf" not in OPT:
        fill.append([("op", f"s_add_u32 s{sWDG}, s{sWDG}, {256*3584}"), ("op", "s_mov_b32 exec_hi, 0"),
                        ("vm", f"buffer_load_dword a250, v15, s[{rW}:{rW+3}], s{sWDG} offen", "pf"), ("op", "s_mov_b64 exec, -1")])
    if "w1late" in OPT:
        emit(k, main)
        late = fill
    else:
        interleave(k, main, fill, 10)
        late = []
    stamp(k, "a_dot")
    k.op("s_nop 2")
    k.op("v_add_f32 v6, v6, v7"); k.op("v_add_f32 v8, v8, v9")
    k.op("v_add_f32 v10, v10, v11"); k.op("v_add_f32 v12, v12, v13")
    k.op("v_add_f32 v6, v6, v8"); k.op("v_add_f32 v10, v10, v12")
    k.op("v_mov_b32 v7, v6"); k.op("v_mov_b32 v11, v10")
    k.op("s_nop 1")
    k.op("v_permlane32_swap_b32 v6, v7"); k.op("v_permlane32_swap_b32 v10, v11")
    k.op("s_nop 1")
    k.op("v_add_f32 v6, v6, v7"); k.op("v_add_f32 v10, v10, v11")
    k.op(f"v_mul_f32 v6, {hex(f2u(1.0/448))}, v6")
    k.op(f"v_mul_f32 v10, {hex(f2u(1.0/448))}, v10")
    k.op("v_fma_f32 v10, -v6, v6, v10")
    k.op("v_max_f32 v10, 0, v10")
    k.op("v_cvt_pk_bf16_f32 v7, v6, v10")
    k.op("v_lshlrev_b32 v6, 16, v7")
    k.op(f"v_and_b32 v10, s{sMASK}, v7")
    k.op(f"v_add_f32 v10, {hex(f2u(1e-5))}, v10")
    k.op("v_cvt_pk_bf16_f32 v10, v10, v10")
    k.op("v_lshlrev_b32 v10, 16, v10")
    k.op("v_sqrt_f32 v10, v10")
    k.op("s_nop 0")
    k.op("v_cvt_pk_bf16_f32 v10, v10, v10")
    k.op("v_lshlrev_b32 v10, 16, v10")
    k.op("v_rcp_f32 v8, v10")
    k.op("v_sub_f32 v4, 0, v6")
    LATE[:] = late
    k.op("v_mul_f32 v9, v4, v8")
    lab = k.newlabel("Lnost")
    k.op(f"s_cmp_lg_u32 s{sJ}, 0")
    k.op(f"s_cbranch_scc1 {lab}")
    k.op(f"s_lshl_b32 s{sT0}, s{sI}, 2")
    k.op(f"s_add_u32 s{sT0}, s{sT0}, s{sW}")
    k.op(f"s_lshl_b32 s{sT0}, s{sT0}, 8")
    k.op(f"s_add_u32 s{sT0}, s{sT0}, {ST_OFF}")
    k.op("v_lshlrev_b32 v6, 3, v0")
    k.op("s_mov_b32 exec_hi, 0")
    k.op(f"buffer_store_dwordx2 v[8:9], v6, s[{rWS}:{rWS+3}], s{sT0} offen sc1")
    k.op("s_mov_b32 exec_hi, -1")
    k.label(lab)
    C1 = -2.0 * 0.7978845608028654 * 1.4426950408889634
    C2 = C1 * 0.044715
    k.op(f"v_mul_f32 v6, {hex(f2u(C1))}, v8")
    k.op("v_mul_f32 v7, v8, v8")
    k.op("v_mul_f32 v11, v10, v10")
    k.op("v_mul_f32 v7, v7, v8")
    k.op("v_accvgpr_write_b32 a144, v6")
    k.op(f"v_mul_f32 v7, {hex(f2u(C2))}, v7")
    k.op("v_accvgpr_write_b32 a146, v11")
    k.op("v_accvgpr_write_b32 a145, v7")

def norm(n, tp):
    t = 6 + 2 * tp
    return [("op", f"v_lshlrev_b32 v{t}, 16, v{vX+n}"),
            ("op", f"v_and_b32 v{t+1}, s{sMASK}, v{vX+n}"),
            ("op", f"v_add_f32 v{t}, v{t}, v4"),
            ("op", f"v_add_f32 v{t+1}, v{t+1}, v4"),
            ("op", f"v_cvt_pk_bf16_f32 v{vX+n}, v{t}, v{t+1}")]
def norm_step(ks):
    a = [norm(4 * ks + q, q) for q in range(4)]
    out = []
    for s in range(5):
        for q in range(4): out.append(a[q][s])
    return out

def hc_dma(q):
    rr, qq = divmod(q, 4)
    out = []
    if qq == 0:
        out.append(("op", f"s_add_u32 m0, s{sU0}, {rr * HC_STRIDE}"))
        out.append(("op", f"s_add_u32 s{sU2}, s{sU1}, {rr * 2}"))
    out.append(("vm", f"buffer_load_dwordx4 v1, s[{rSSM}:{rSSM+3}], s{sU2} offen offset:{qq*1024} lds", "hc"))
    return out

LATE = []
WD0 = []
def gemm1_loop(k):
    emit(k, norm_step(0))
    for g in LATE: emit(k, g)
    k.op(f"s_lshr_b32 s{sT0}, s{sW}, 1")
    k.op(f"s_lshl_b32 s{sCH}, s{sWGM}, 1")
    k.op(f"s_add_u32 s{sCH}, s{sCH}, s{sT0}")
    k.op(f"s_and_b32 s{sT1}, s{sW}, 1")
    k.op(f"s_lshl_b32 s{sT1}, s{sT1}, 1")
    k.op(f"s_mul_i32 s{sU0}, s{sT0}, {HC_CH}")
    k.op(f"s_mul_i32 s{sT3}, s{sT1}, {HC_STRIDE}")
    k.op(f"s_add_u32 s{sU0}, s{sU0}, s{sT3}")
    k.op(f"s_add_u32 s{sU0}, s{sU0}, {HC + 32}")
    k.op(f"s_lshl_b32 s{sU1}, s{sCH}, 12")
    k.op(f"s_lshl_b32 s{sT1}, s{sT1}, 1")
    k.op(f"s_add_u32 s{sU1}, s{sU1}, s{sT1}")
    k.op(f"s_add_u32 s{sU1}, s{sU1}, 2")
    stamp(k, "a_norm0")
    k.wait(vm="w0")
    stamp(k, "a_w0")
    k.op("s_barrier")
    stamp(k, "a_stats")
    NF = 8; DIST = 7; NM = 224
    def rd(n):
        ks, mt = divmod(n, 8)
        c, kk = divmod(ks, 4)
        sl = c % 4
        base = "v3" if sl < 2 else "v14"
        off = (SLOT_SZ if sl % 2 else 0) + kk * 256 + mt * 32
        f = 4 * (n % NF)
        return [("lg", f"ds_read_b64_tr_b16 {ar(f, 2)}, {base} offset:{off}", f"f{n}"),
                ("lg", f"ds_read_b64_tr_b16 {ar(f + 2, 2)}, {base} offset:{off + 4 * 1056}", f"f{n}")]
    for n in range(DIST): emit(k, rd(n))
    extra = {}
    k.op(f"s_lshl_b32 s{sT0}, s{sSLOT}, 2")
    k.op(f"s_add_u32 s{sT0}, s{sT0}, s{sW}")
    k.op(f"s_mul_i32 s{sU3}, s{sT0}, {112*128}")
    k.op("v_lshlrev_b32 v15, 7, v0")
    def wd_pf(piece):
        return [("op", "s_mov_b64 exec, 0xffff"),
                ("vm", f"buffer_load_dword a250, v15, s[{rWD}:{rWD+3}], s{sU3} offen offset:{piece*2048}", "pf"),
                ("op", "s_mov_b64 exec, -1")]
    if "nopf" not in OPT:
        P0, PSTEP = (9, 1)
        for p in range(7):
            if p < 2: extra[P0 + PSTEP * p] = wd_pf(p)
            else:
                extra[P0 + PSTEP * p] = [("op", f"s_add_u32 s{sU3}, s{sU3}, 2048"), ("op", "s_mov_b64 exec, 0xffff"),
                    ("vm", f"buffer_load_dword a250, v15, s[{rWD}:{rWD+3}], s{sU3} offen offset:2048", "pf"), ("op", "s_mov_b64 exec, -1")]
        k.op(f"s_lshl_b32 s{sHST}, s{sWGM}, 13")
        k.op(f"s_lshl_b32 s{sT0}, s{sW}, 11")
        k.op(f"s_add_u32 s{sHST}, s{sHST}, s{sT0}")
        extra[8] = [("op", "s_mov_b64 exec, 0xffff"),
                    ("vm", f"buffer_load_dword a250, v15, s[{rSSM}:{rSSM+3}], s{sHST} offen", "pf"), ("op", "s_mov_b64 exec, -1")]
    extra[24] = [("op", "s_mov_b64 exec, 1"),
                 ("vm", f"global_load_dword a40, v15, s[{sPDBG}:{sPDBG+1}] sc1", "init"),
                 ("op", "s_mov_b64 exec, -1")]
    tailfill = capture(g2_setup2) + gelu_setup_items()
    setup1 = capture(g2_setup1)
    WD0[:] = wd_dma_groups(0, WD_KS, "wd0", 0)
    def bigs(ks):
        c, kk = divmod(ks, 4)
        out = []
        if "x_now" not in OPT:
            if "w1early" in OPT:
                if c == 0: out += [wdma(2 + kk // 2, 4 * (kk % 2) + i) for i in range(4)]
                elif c + 3 < 7: out += [wdma(c + 3, 2 * kk + i) for i in range(2)]
            else:
                if ks < 8: out += [wdma(1 + ks // 2, 4 * (ks % 2) + i) for i in range(4)]
                elif c in (2, 3): out += [wdma(c + 3, 2 * kk + i) for i in range(2)]
        if c == 4 and "x_nohc" not in OPT: out += [hc_dma(2 * kk + i) for i in range(2)]
        if c in (5, 6) and 'wdgelu' not in OPT: out += WD0[(c - 5) * 8 + 2 * kk: (c - 5) * 8 + 2 * kk + 2]
        if ks in extra and ("x_noex" not in OPT or ks == 24): out.append(extra[ks])
        return out
    VAR = [o for o in OPT if o.startswith("sch")]
    VAR = VAR[0] if VAR else "sch1"
    POS = {"sch0": {0: [], 1: [7], 2: [6, 7], 3: [5, 6, 7], 4: [3, 5, 6, 7]},
           "sch1": {0: [], 1: [7], 2: [3, 7], 3: [2, 5, 7], 4: [1, 3, 5, 7]},
           "sch2": {0: [], 1: [6], 2: [2, 6], 3: [1, 4, 6], 4: [0, 2, 4, 6]},
           "sch3": {0: [], 1: [7], 2: [3, 7], 3: [2, 5, 7], 4: [1, 3, 5, 7]}}[VAR]
    pending_reads = []
    for ks in range(28):
        c, kk = divmod(ks, 4)
        bg = bigs(ks)
        pos = POS[len(bg)]
        nrm = norm_step(ks + 1) if (ks + 1 < 28 and "x_nonorm" not in OPT) else []
        if ks == 27: nrm = list(tailfill)
        if ks in (16, 17, 18, 19):
            i0 = (ks - 16) * 6
            nrm = nrm + setup1[i0: i0 + 6 if ks < 19 else len(setup1)]
        if VAR == "sch0":
            cut = [0, 3, 6, 9, 12, 15, 18, 20, 20] if ks < 27 else [(len(nrm) * i) // 8 for i in range(9)]
            share = {g: nrm[cut[g]:cut[g + 1]] for g in range(8)}
        else:
            wts = {g: (0 if (g in pos or (g == 7 and ks < 27)) else 1) for g in range(8)}
            if VAR == "sch3":
                wts = {g: (1 if g in pos else 0 if (g == 7 and ks < 27) else 3) for g in range(8)}
            tot = sum(wts.values()); acc_ = 0; done = 0; share = {}
            for g in range(8):
                acc_ += wts[g]
                upto = (len(nrm) * acc_ + tot - 1) // tot
                share[g] = nrm[done:upto]; done = upto
        for mt in range(8):
            n = 8 * ks + mt
            if n % 32 == 0: stamp(k, f"g_c{n//32}")
            if n % 4 == 0:
                k.wait(lg=[f"f{n+i}" for i in range(4)])
            f = 4 * (n % NF)
            acc = vr(vACC + 16 * mt, 16)
            cin = "0" if ks == 0 else acc
            if "x_m16" in OPT:
                for hh_ in range(2):
                    a4 = vr(vACC + 16 * mt + 4 * hh_ + 8 * (ks % 2), 4)
                    k.op(f"v_mfma_f32_16x16x32_bf16 {a4}, {ar(f, 4)}, {vr(vX + 4 * ks, 4)}, {a4}")
            else:
                k.op(f"v_mfma_f32_32x32x16_bf16 {acc}, {ar(f, 4)}, {vr(vX + 4 * ks, 4)}, {cin}")
            if "x_halfrd" in OPT and n % 2 == 1:
                emit(k, share[mt])
                if mt in pos: emit(k, bg[pos.index(mt)])
                nn = n + DIST
                if nn < NM and nn % 32 == 0:
                    k.wait(vm=f"w{nn // 32}"); k.op("s_barrier")
                continue
            nn = n + DIST
            if nn < NM:
                if nn % 32 == 0:
                    k.wait(vm=f"w{nn // 32}")
                    if "x_nobar" not in OPT: k.op("s_barrier")
                emit(k, rd(nn))
            emit(k, share[mt])
            if mt in pos: emit(k, bg[pos.index(mt)])
    assert not pending_reads
    stamp(k, "g_end")

def g2_setup1(k):
    k.op(f"s_and_b32 s{sT0}, s{sTT}, 3")
    k.op(f"s_lshl_b32 s{sT0}, s{sT0}, 1")
    k.op(f"s_add_u32 s{sROT}, s{sT0}, s{sDT}")
    k.op(f"s_sub_u32 s{sT0}, s{sROT}, 7")
    k.op(f"s_min_u32 s{sROT}, s{sROT}, s{sT0}")
    k.op("v_lshrrev_b32 v16, 3, v0")
    k.op("v_mul_u32_u24 v2, 896, v16")
    k.op("v_bfe_u32 v16, v0, 4, 1")
    k.op("v_lshlrev_b32 v16, 2, v16")
    k.op("v_and_b32 v17, 7, v0")
    k.op("v_xor_b32 v16, v16, v17")
    k.op("v_lshl_add_u32 v2, v16, 4, v2")
    k.op(f"s_mul_i32 s{sWDS}, s{sW}, {16*28*896}")
    k.op(f"s_lshl_b32 s{sT0}, s{sDT}, 7")
    k.op(f"s_add_u32 s{sWDS}, s{sWDS}, s{sT0}")
    k.op(f"s_sub_u32 s{sWDS}, s{sWDS}, 4096")
    k.op(f"s_lshl_b32 s{sWDM}, s{sW}, 13")
    k.op(f"s_lshl_b32 s{sWDM4}, s{sW}, 12")
def g2_setup2(k):
    k.op("v_lshrrev_b32 v5, 5, v0")
    k.op("v_bfe_u32 v6, v0, 2, 2")
    k.op("v_lshl_add_u32 v5, v5, 2, v6")
    k.op("v_lshlrev_b32 v5, 7, v5")
    k.op("v_bfe_u32 v7, v0, 4, 1")
    k.op("v_lshl_add_u32 v5, v7, 5, v5")
    k.op("v_and_b32 v7, 3, v0")
    k.op("v_lshl_add_u32 v5, v7, 3, v5")
    k.op(f"v_add_u32 v5, s{sWDM}, v5")
    k.op("v_bfe_u32 v6, v0, 3, 1")
    k.op("v_lshlrev_b32 v6, 6, v6")
    k.op("v_add_u32 v3, v5, v6")
    k.op("v_xor_b32 v6, 64, v6")
    k.op("v_add_u32 v4, v5, v6")
def gelu_setup_items():
    C1 = -2.0 * 0.7978845608028654 * 1.4426950408889634
    C2 = C1 * 0.044715
    it = []
    op = lambda t: it.append(("op", t))
    op("v_lshrrev_b32 v10, 4, v0")
    op("v_and_b32 v11, 15, v0")
    op("v_add_u32 v12, v10, v11")
    op("v_subrev_u32 v12, 15, v12")
    op("v_lshlrev_b32 v12, 1, v12")
    op("v_cmp_gt_i32 vcc, 0, v12")
    op("v_mov_b32 v13, 0x7fffffff")
    op(f"s_lshl_b32 s{sT1}, s{sCH}, 12")
    op("v_cndmask_b32 v12, v12, v13, vcc")
    op("v_mov_b32 v13, 0")
    it.append(("vm", f"buffer_load_ushort v12, v12, s[{rSSM}:{rSSM+3}], s{sT1} offen", "hf"))
    op(f"s_lshl_b32 s{sT1}, s{sCH}, 1")
    it.append(("vm", f"buffer_load_ushort v15, v13, s[{rD}:{rD+3}], s{sT1} offen", "dv"))
    op(f"v_mul_u32_u24 v10, {HC_STRIDE}, v10")
    op("v_lshl_add_u32 v10, v11, 1, v10")
    op(f"s_lshr_b32 s{sT0}, s{sW}, 1")
    op(f"s_mul_i32 s{sT2}, s{sT0}, {HC_CH}")
    op(f"s_add_u32 s{sT2}, s{sT2}, {HC}")
    op(f"v_add_u32 v10, s{sT2}, v10")
    op(f"s_mul_i32 s{sT2}, s{sT0}, {UR_CH}")
    op(f"s_add_u32 s{sT2}, s{sT2}, {UR + 4096}")
    op(f"v_add_u32 v11, s{sT2}, v1")
    op("v_mov_b32 v20, 0"); op("v_mov_b32 v21, 0"); op("v_mov_b32 v22, 0"); op("v_mov_b32 v23, 0")
    op("v_accvgpr_read_b32 v16, a144")
    op("v_accvgpr_read_b32 v17, a145")
    op("v_accvgpr_read_b32 v18, a146")
    op(f"s_lshl_b32 s{sT0}, s{sI}, 2")
    op(f"s_add_u32 s{sT0}, s{sT0}, s{sW}")
    op(f"s_mul_i32 s{sHST}, s{sT0}, {112*1024}")
    op(f"s_lshl_b32 s{sT1}, s{sJ}, 13")
    op(f"s_add_u32 s{sHST}, s{sHST}, s{sT1}")
    return it

def g2_setup3(k):
    k.op(f"v_add_u32 v176, {2*SLOT_SZ}, v3")
    k.op(f"v_add_u32 v177, {2*SLOT_SZ}, v4")
    k.op(f"s_sub_u32 s{sT0}, {3*SLOT_SZ}, s{sWDM4}")
    k.op(f"v_add_u32 v178, s{sT0}, v3")
    k.op(f"v_add_u32 v179, s{sT0}, v4")

def wd_group_base(g):
    return [("op", f"s_add_u32 s{sT3}, s{sROT}, {g}"),
            ("op", f"s_sub_u32 s{sWDG}, s{sT3}, 7"),
            ("op", f"s_min_u32 s{sT3}, s{sT3}, s{sWDG}"),
            ("op", f"s_mul_i32 s{sT3}, s{sT3}, {64*896}"),
            ("op", f"s_add_u32 s{sWDG}, s{sT3}, s{sWDS}")]
def wd_dma_groups(ks0, ks1, tag, s0):
    out = []
    q = 0
    for ks in range(ks0, ks1):
        sl = ks - s0
        for hh in range(2):
            g = []
            if ks % 4 == 0 and hh == 0: g += wd_group_base(ks // 4)
            qq = 2 * (sl & 1) + hh
            if qq == 0:
                g.append(("op", f"s_add_u32 m0, s{sWDM if sl < 12 else sWDM4}, {stg_const(sl)}"))
            g.append(("op", f"s_add_u32 s{sT3}, s{sWDG}, {(16 * (ks % 4) + 8 * hh) * 896 - qq * 1024 + 4096}"))
            g.append(("vm", f"buffer_load_dwordx4 v2, s[{rWD}:{rWD+3}], s{sT3} offen offset:{qq * 1024} lds", tag))
            out.append(g)
    return out

def wd_read_items(ks0, ks1, s0):
    out = []
    for ks in range(ks0, ks1):
        sl = ks - s0
        g = sl >> 2
        for dt2 in range(2):
            for t in range(2):
                a = 8 * ks + 4 * dt2 + 2 * t
                if g < 2: base, off = 3 + dt2, stg_const(sl)
                elif g == 2: base, off = 176 + dt2, stg_const(sl) - 2 * SLOT_SZ
                else: base, off = 178 + dt2, stg_const(sl) - 3 * SLOT_SZ
                out.append(("lg", f"ds_read_b64_tr_b16 {ar(a,2)}, v{base} offset:{off + t*1024}", f"wr{ks}_{dt2}_{t}"))
    return out
def emit_lg_limited(k, items):
    for it in items:
        if it[0] == "lg" and len(k.lgq) >= 12: k.wait(lg=k.lgq[5])
        emit(k, [it])

def gelu_phase(k):
    if k.lgq: k.wait(lg=[k.lgq[-1]])
    k.op("s_barrier")
    vC, vONE = 16, 18
    k.wait(vm="init")
    k.op("v_accvgpr_read_b32 v8, a40")
    k.op("v_mov_b32 v9, 0")
    k.op("s_nop 0")
    check_or_spin(k, 8, 9, sPDBG, 1)
    cnt_addr(k, 9, idx=UCNT)
    k.vm(f"global_load_dword v8, v9, s[{sPWS}:{sPWS+1}] sc1", "ucnt")
    k.op("s_mov_b32 exec_hi, 0")
    k.lg("ds_write_b128 v11, v[20:23]", "z")
    k.op("s_mov_b32 exec_hi, -1")
    wd0 = WD0[16:] if 'wdgelu' not in OPT else WD0[:]
    g2_setup3_done = False
    def ur_dma():
        k.wait(vm="ucnt")
        k.spin_tag = 6
        check_or_spin(k, 8, 9, sPWS, 32)
        k.spin_tag = None
        k.op(f"s_lshr_b32 s{sT0}, s{sW}, 1")
        k.op(f"s_and_b32 s{sT1}, s{sW}, 1")
        k.op(f"s_lshl_b32 s{sT1}, s{sT1}, 11")
        k.op(f"s_mul_i32 s{sT2}, s{sT0}, {UR_CH}")
        k.op(f"s_add_u32 s{sT2}, s{sT2}, s{sT1}")
        k.op(f"s_add_u32 m0, s{sT2}, {UR}")
        k.op(f"s_lshl_b32 s{sT3}, s{sCH}, 12")
        k.op(f"s_add_u32 s{sT3}, s{sT3}, s{sT1}")
        k.op(f"s_add_u32 s{sT3}, s{sT3}, {U_OFF}")
        k.vm(f"buffer_load_dwordx4 v1, s[{rWS}:{rWS+3}], s{sT3} offen sc1 lds", "ur")
        k.vm(f"buffer_load_dwordx4 v1, s[{rWS}:{rWS+3}], s{sT3} offen offset:1024 sc1 lds", "ur")
        k.wait(vm="hf")
        k.lg("ds_write_b16 v10, v12", "z")
    for mt in range(8):
        stamp(k, f"y_{mt}")
        G = vACC + 16 * mt; U = G + 8
        T = 24 + (mt % 2) * 24
        tp = lambda p: T + 2 * p
        gu = lambda p: T + 8 + 2 * p
        O = T + 16
        P = range(4)
        m = []
        for p in P: m.append(("op", f"v_pk_mul_f32 {vr(tp(p),2)}, {vr(G+2*p,2)}, {vr(G+2*p,2)}"))
        for p in P: m.append(("op", f"v_pk_fma_f32 {vr(tp(p),2)}, {vr(tp(p),2)}, {vr(vC,2)}, {vr(vC,2)} op_sel:[0,1,0] op_sel_hi:[1,1,0]"))
        for p in P: m.append(("op", f"v_pk_mul_f32 {vr(tp(p),2)}, {vr(tp(p),2)}, {vr(G+2*p,2)}"))
        for p in P:
            m.append(("op", f"v_exp_f32 v{tp(p)}, v{tp(p)}")); m.append(("op", f"v_exp_f32 v{tp(p)+1}, v{tp(p)+1}"))
        for p in P: m.append(("op", f"v_pk_mul_f32 {vr(gu(p),2)}, {vr(G+2*p,2)}, {vr(U+2*p,2)}"))
        for p in P: m.append(("op", f"v_pk_fma_f32 {vr(tp(p),2)}, {vr(tp(p),2)}, {vr(vONE,2)}, {vr(vONE,2)} op_sel_hi:[1,0,0]"))
        for p in P:
            m.append(("op", f"v_rcp_f32 v{tp(p)}, v{tp(p)}")); m.append(("op", f"v_rcp_f32 v{tp(p)+1}, v{tp(p)+1}"))
        m.append(("op", "s_nop 0"))
        for p in P: m.append(("op", f"v_pk_mul_f32 {vr(gu(p),2)}, {vr(gu(p),2)}, {vr(tp(p),2)}"))
        for p in P: m.append(("op", f"v_cvt_pk_bf16_f32 v{O+p}, v{gu(p)}, v{gu(p)+1}"))
        nf = (4 if mt < 3 else 0) if 'wdgelu' not in OPT else (4 if mt < 4 else 3)
        fill = [wd0.pop(0) for _ in range(nf)]
        if "nowdg" in OPT: fill = [[x for x in g if x[0] != "vm"] for g in fill]
        pos = {8: 0, 20: 1, 32: 2, 42: 3} if nf == 4 else {12: 0, 24: 1, 36: 2} if nf == 3 else {}
        for n, it in enumerate(m):
            emit(k, [it])
            if n in pos: emit(k, fill[pos[n]])
        if mt % 4 == 0 and mt > 0:
            k.op(f"s_add_u32 s{sHST}, s{sHST}, 4096")
        if "nohst" not in OPT: k.vm(f"buffer_store_dwordx4 {vr(O,4)}, v1, s[{rWS}:{rWS+3}], s{sHST} offen offset:{(mt%4)*1024}{'' if 'hstplain' in OPT else ' sc1'}", "hst")
        if mt == 3: ur_dma()
    assert not wd0
    stamp(k, "e_gelu")
    k.wait(vm="ur", lg=[k.lgq[-1]] if k.lgq else [])
    k.op("s_barrier")

def h_signal(k):
    k.wait(vm="hst")
    k.op("s_barrier")
    cnt_addr(k, 9, idx_sgpr=sI, idx=HCNT)
    signal(k, 9, 10)
    stamp(k, "e_sig")

def conv_phase(k):
    k.wait(vm="dv")
    k.op("v_lshlrev_b32 v8, 16, v15")
    k.op(f"s_lshr_b32 s{sT0}, s{sW}, 1")
    k.op(f"s_mul_i32 s{sT2}, s{sT0}, {HC_CH}")
    k.op(f"s_add_u32 s{sT2}, s{sT2}, {HC}")
    k.op("v_bfe_u32 v5, v0, 2, 2")
    k.op(f"v_mul_u32_u24 v14, {HC_STRIDE}, v5")
    k.op("v_and_b32 v6, 3, v0")
    k.op("v_lshl_add_u32 v14, v6, 3, v14")
    k.op("v_lshrrev_b32 v6, 4, v0")
    k.op("v_lshl_add_u32 v14, v6, 4, v14")
    k.op(f"s_and_b32 s{sT1}, s{sW}, 1")
    k.op(f"s_lshl_b32 s{sT1}, s{sT1}, 8")
    k.op(f"s_add_u32 s{sT2}, s{sT2}, s{sT1}")
    k.op(f"v_add_u32 v14, s{sT2}, v14")
    k.op("v_and_b32 v7, 15, v0")
    k.op("v_lshlrev_b32 v7, 5, v7")
    k.op("v_lshlrev_b32 v5, 4, v6")
    k.op("v_sub_u32 v15, v5, v7")
    k.op(f"s_mul_i32 s{sT2}, s{sT0}, {UR_CH}")
    k.op(f"s_add_u32 s{sT2}, s{sT2}, {UR + 4064 - 3584}")
    k.op(f"s_add_u32 s{sT3}, s{sT2}, s{sT1}")
    k.op(f"v_add_u32 v15, s{sT3}, v15")
    FB = [16, 48]; GBUF = [80, 112]; ACC = 144
    def rdF(sub, J):
        b = FB[sub % 2] + 4 * J
        off = 64 * (8 * J + sub)
        return [("lg", f"ds_read_b64_tr_b16 {vr(b,2)}, v14 offset:{off}", f"F{sub}"),
                ("lg", f"ds_read_b64_tr_b16 {vr(b+2,2)}, v14 offset:{off+8}", f"F{sub}")]
    def rdG(sub, T):
        b = GBUF[sub % 2] + 4 * T
        return [("lg", f"ds_read_b128 {vr(b,4)}, v15 offset:{512*(7-T) + 64*sub}", f"F{sub}")]
    def fg(sub):
        out = []
        for i in range(8):
            out += rdG(sub, 7 - i) + rdF(sub, i)
        return out
    emit(k, fg(0))
    k.op("v_lshlrev_b32 v5, 3, v6")
    k.op("v_add_u32 v7, v7, v5")
    k.op(f"s_add_u32 s{sT2}, s{sT2}, {4088 - 4064}")
    k.op(f"v_sub_u32 v13, s{sT2}, v7")
    k.op("v_and_b32 v5, 1, v6")
    k.op("v_mul_u32_u24 v5, 504, v5")
    k.op("v_add_u32 v7, v7, v5")
    k.op("v_lshrrev_b32 v184, 3, v0")
    k.op(f"s_lshl_b32 s{sT0}, s{sW}, 3")
    k.op(f"v_add_u32 v184, s{sT0}, v184")
    k.op("v_and_b32 v185, 7, v0")
    k.op("v_mul_u32_u24 v186, 896, v184")
    k.op("v_lshl_add_u32 v186, v185, 4, v186")
    k.op(f"s_mul_i32 s78, s{sTT}, {64*896}")
    k.op(f"s_lshl_b32 s{sT0}, s{sDT}, 7")
    k.op(f"s_add_u32 s78, s78, s{sT0}")
    k.op(f"s_add_u32 s79, s78, {32*896}")
    k.op(f"s_lshr_b32 s{sU0}, s{sTT}, 1")
    cnt_addr(k, 187, idx_sgpr=sU0, idx=HCNT)
    k.op(f"s_lshl_b32 s{sT0}, s{sTT}, 1")
    k.op(f"s_mul_i32 s{sT0}, s{sT0}, 112")
    k.op(f"s_mul_i32 s{sT1}, s{sW}, 28")
    k.op(f"s_add_u32 s{sT0}, s{sT0}, s{sT1}")
    k.op(f"s_lshl_b32 s{sHG}, s{sT0}, 10")
    g2_setup3(k)
    wd1 = wd_dma_groups(WD_KS, 2 * WD_KS, "wd1", WD_KS)
    for g in wd1[:WD_KS]:
        for i, it in enumerate(g):
            if it[0] == "vm": g[i] = ("vm", it[1], "wd1a")
    wr0 = wd_read_items(0, WD_KS, 0)
    wr1 = wd_read_items(WD_KS, 2 * WD_KS, WD_KS)
    H = WD_KS // 2
    one = lambda items: [[x] for x in items]
    wtag = lambda it: [("fn", lambda t=it[2]: k.wait(lg=t))]
    def mix(a, b):
        if not b: return a
        out = []; j = 0
        for i, g in enumerate(a):
            out.append(g)
            while j < len(b) and (j + 1) * len(a) <= (i + 1) * len(b) + len(a) // 2: out.append(b[j]); j += 1
        return out + b[j:]
    N1, N2 = (6, 14) if 'n1' not in OPT else (4, 14)
    plan = {0: one(fg(1)) + [[("fn", lambda: k.wait(vm="wd0"))]] + one(wr0[:4*H]),
            1: one(fg(2)) + [wtag(wr0[4*H-1])] + mix(one(wr0[4*H:]), wd1[:N1]),
            2: mix(one(fg(3)), wd1[N1:N2] + [wtag(wr0[-1])] + wd1[N2:N2 + 4]),
            3: wd1[N2 + 4:]}
    first = set()
    for sub in range(4):
        stamp(k, f"s_pre{sub}")
        k.wait(lg=f"F{sub}")
        if sub == 1:
            h_signal(k)
            k.vm(f"buffer_load_dwordx4 {ar(224,4)}, v186, s[{rX}:{rX+3}], s78 offen", "ex")
            k.vm(f"buffer_load_dwordx4 {ar(228,4)}, v186, s[{rX}:{rX+3}], s79 offen", "ex")
        if sub == 2:
            k.vm(f"global_load_dword v188, v187, s[{sPWS}:{sPWS+1}] sc1", "hcnt")
        stamp(k, f"s_go{sub}")
        fill = [g for g in plan[sub] if g]
        mf = [(T, J) for T in range(7, -1, -1) for J in range(0, 8 - T)]
        per = len(fill) / (36.0 if sub < 3 else 20.0)
        done = 0
        for n, (T, J) in enumerate(mf):
            tile = T + J
            a = vr(ACC + 4 * tile, 4)
            cin = a if tile in first else "0"
            first.add(tile)
            k.op(f"v_mfma_f32_16x16x32_bf16 {a}, {vr(FB[sub%2]+4*J,4)}, {vr(GBUF[sub%2]+4*T,4)}, {cin}")
            want = min(len(fill), int(round((n + 1) * per + 0.49)))
            while done < want:
                emit(k, fill[done]); done += 1
        while done < len(fill):
            emit(k, fill[done]); done += 1
    stamp(k, "c_mfma")
    k.wait(vm="hcnt")
    check_or_spin(k, 188, 187, sPWS, 14)
    stamp(k, "d_hrdy")
    k.op("v_lshlrev_b32 v189, 3, v184")
    k.op(f"s_lshl_b32 s{sT0}, s{sTT}, 9")
    k.op(f"s_add_u32 s{sT0}, s{sT0}, {ST_OFF}")
    k.vm(f"buffer_load_dwordx2 {ar(232,2)}, v189, s[{rWS}:{rWS+3}], s{sT0} offen sc1", "ex")
    k.vm(f"buffer_load_dwordx2 {ar(234,2)}, v189, s[{rWS}:{rWS+3}], s{sT0} offen offset:256 sc1", "ex")
    for ks in range(PD):
        g2_hload(k, ks)
    k.op(f"s_lshl_b32 s{sT0}, s{sW}, 12")
    k.op(f"s_add_u32 s{sT0}, s{sT0}, {XCH}")
    k.op(f"v_add_u32 v5, s{sT0}, v1")
    k.op(f"s_xor_b32 s{sT1}, s{sW}, 1")
    k.op(f"s_lshl_b32 s{sT1}, s{sT1}, 12")
    k.op(f"s_add_u32 s{sT1}, s{sT1}, {XCH}")
    k.op(f"v_add_u32 v6, s{sT1}, v1")
    k.op(f"s_lshl_b32 s{sT2}, s{sCH}, 12")
    k.op(f"s_add_u32 s{sT2}, s{sT2}, {Y_OFF}")
    if k.lgq: k.wait(lg=k.lgq[-1])
    k.op("s_barrier")
    lo, le = k.newlabel("Lcodd"), k.newlabel("Lcend")
    k.op("s_nop 1")
    def finish(keep, send):
        for i in range(4):
            k.op(f"ds_write_b128 v5, {vr(ACC + 4*(send+i), 4)} offset:{1024*i}")
        for i in range(4):
            k.op(f"ds_read_b64 {vr(64+2*i,2)}, v13 offset:{512*(7-(keep+i))}")
        k.op("s_waitcnt lgkmcnt(0)")
        k.op("s_barrier")
        for i in range(4):
            k.op(f"ds_read_b128 {vr(48+4*i,4)}, v6 offset:{1024*i}")
        for i in range(4):
            U = 64 + 2 * i
            k.op(f"v_and_b32 v{112+4*i}, s{sMASK}, v{U+1}")
            k.op(f"v_lshlrev_b32 v{113+4*i}, 16, v{U+1}")
            k.op(f"v_and_b32 v{114+4*i}, s{sMASK}, v{U}")
            k.op(f"v_lshlrev_b32 v{115+4*i}, 16, v{U}")
            A = ACC + 4 * (keep + i)
            for r in range(4):
                k.op(f"v_fmac_f32 v{A+r}, v{112+4*i+r}, v8")
        k.op("s_waitcnt lgkmcnt(0)")
        for i in range(4):
            A = ACC + 4 * (keep + i)
            k.op(f"v_pk_add_f32 {vr(A,2)}, {vr(A,2)}, {vr(48+4*i,2)}")
            k.op(f"v_pk_add_f32 {vr(A+2,2)}, {vr(A+2,2)}, {vr(50+4*i,2)}")
        for i in range(4):
            A = ACC + 4 * (keep + i)
            k.op(f"v_cvt_pk_bf16_f32 v{72+2*i}, v{A}, v{A+1}")
            k.op(f"v_cvt_pk_bf16_f32 v{73+2*i}, v{A+2}, v{A+3}")
        k.op("s_nop 1")
        for i in (0, 2):
            k.op(f"v_permlane16_swap_b32 v{72+2*i}, v{74+2*i}")
            k.op(f"v_permlane16_swap_b32 v{73+2*i}, v{75+2*i}")
        k.op("s_nop 0")
        for i in (0, 2):
            k.op(f"buffer_store_dwordx4 {vr(72+2*i,4)}, v7, s[{rWS}:{rWS+3}], s{sT2} offen offset:{512*(keep+i)} sc1")
    k.op(f"s_bitcmp1_b32 s{sW}, 0")
    k.op(f"s_cbranch_scc1 {lo}")
    finish(0, 4)
    k.op(f"s_branch {le}")
    k.label(lo)
    finish(4, 0)
    k.label(le)
    for i in range(2): k.vmq.append("yst")
    stamp(k, "c_end")
    return wr1

NHS = 8; vA2 = 192
def hreg(ks, e):
    sl = ks % NHS
    return (16 + 8 * sl if sl < 4 else 80 + 8 * (sl - 4)) + 4 * e
PD = 4
def g2_hbase(k, g):
    k.op(f"s_add_u32 s{sT3}, s{sROT}, {g}")
    k.op(f"s_sub_u32 s76, s{sT3}, 7")
    k.op(f"s_min_u32 s{sT3}, s{sT3}, s76")
    k.op(f"s_lshl_b32 s{sT3}, s{sT3}, 12")
    k.op(f"s_add_u32 s76, s{sT3}, s{sHG}")
    k.op(f"s_add_u32 s77, s76, {112*1024}")
def g2_hload(k, ks):
    if ks % 4 == 0: g2_hbase(k, ks // 4)
    for e in range(2):
        b = hreg(ks, e)
        k.vm(f"buffer_load_dwordx4 {vr(b,4)}, v1, s[{rWS}:{rWS+3}], s{76+e} offen offset:{(ks%4)*1024}{'' if 'hplain' in OPT else ' sc1'}", f"h{ks}")

def gemm2_phase(k, wr1):
    k.op("v_mov_b32 v5, v184"); k.op("v_mov_b32 v6, v185"); k.op("v_mov_b32 v7, v186")
    for ks in range(PD, 2 * PD):
        g2_hload(k, ks)
    k.op(f"s_lshr_b32 s{sU0}, s{sWGM}, 5")
    cnt_addr(k, 9, idx_sgpr=sU0, idx=YCNT)
    k.op(f"s_lshl_b32 s{sU1}, s{sDT}, 7")
    k.op(f"s_add_u32 s{sU1}, s{sU1}, {CNT_OFF + YCNT * 128}")
    def y_loads():
        done = k.newlabel("Lyok")
        stamp(k, "t_y0")
        if 'ysmem' not in OPT:
            k.wait(vm="ycnt")
            k.op(f"v_readfirstlane_b32 s{sU2}, v10")
        else:
            k.op("s_waitcnt lgkmcnt(0)")
            k.lgq = []
        stamp(k, "t_y1")
        k.op(f"s_cmp_ge_u32 s{sU2}, 32")
        k.op(f"s_cbranch_scc1 {done}")
        k.op(f"v_mov_b32 v9, s{sU1}")
        q = list(k.vmq)
        spin_until(k, 9, 10, sPWS, 32)
        k.vmq = q
        k.label(done)
        stamp(k, "t_y2")
        k.op("v_lshrrev_b32 v8, 3, v0")
        k.op("v_lshlrev_b32 v8, 12, v8")
        k.op("v_lshl_add_u32 v8, v6, 4, v8")
        k.op(f"s_lshl_b32 s{sT0}, s{sDT}, 18")
        k.op(f"s_lshl_b32 s{sT1}, s{sW}, 16")
        k.op(f"s_add_u32 s{sT0}, s{sT0}, s{sT1}")
        k.op(f"s_lshl_b32 s{sT1}, s{sTT}, 7")
        k.op(f"s_add_u32 s{sT0}, s{sT0}, s{sT1}")
        k.op(f"s_add_u32 s{sT0}, s{sT0}, {Y_OFF}")
        k.op(f"s_mul_i32 s{sT1}, s{sW}, 2080")
        k.op(f"s_add_u32 m0, s{sT1}, {YT}")
        k.op(f"s_add_u32 s{sT2}, s{sT0}, {8*4096 - 1040}")
        k.vm(f"buffer_load_dwordx4 v8, s[{rWS}:{rWS+3}], s{sT0} offen sc1 lds", "ey")
        k.vm(f"buffer_load_dwordx4 v8, s[{rWS}:{rWS+3}], s{sT2} offen offset:1040 sc1 lds", "ey")
    RROW = 272; RW = 64 * RROW
    k.op("v_and_b32 v11, 31, v0")
    k.op(f"v_mul_u32_u24 v11, {RROW}, v11")
    k.op("v_lshrrev_b32 v12, 5, v0")
    k.op("v_lshl_add_u32 v11, v12, 4, v11")
    k.op(f"s_mul_i32 s{sT0}, s{sW}, {RW}")
    k.op(f"s_add_u32 s{sT0}, s{sT0}, {RED}")
    k.op(f"v_add_u32 v11, s{sT0}, v11")
    first = set()
    def mf(ks, dt2, e):
        t = 2 * dt2 + e
        acc = vr(vA2 + 16 * t, 16)
        cin = acc if t in first else "0"
        first.add(t)
        hb = hreg(ks, e)
        k.op(f"v_mfma_f32_32x32x16_bf16 {acc}, {ar(8*ks+4*dt2,4)}, {vr(hb,4)}, {cin}")
    LASTK = 24
    YSIG, YPOLL, YLOAD = (3, 14, 22) if 'ysmem' in OPT else (3, 17, 23)
    xfill = []
    for ps in range(2):
        X = 112 + 16 * ps; N = X + 8; T = 144 + 8 * ps
        for q in range(4): xfill.append(("op", f"v_accvgpr_read_b32 v{T+q}, a{224+4*ps+q}"))
        xfill.append(("op", f"v_accvgpr_read_b32 v{T+4}, a{232+2*ps}"))
        xfill.append(("op", f"v_accvgpr_read_b32 v{T+5}, a{233+2*ps}"))
        for q in range(4):
            xfill.append(("op", f"v_lshlrev_b32 v{X+2*q}, 16, v{T+q}"))
            xfill.append(("op", f"v_and_b32 v{X+2*q+1}, s{sMASK}, v{T+q}"))
        for q in range(8): xfill.append(("op", f"v_fma_f32 v{N+q}, v{X+q}, v{T+4}, v{T+5}"))
        for q in range(8): xfill.append(("op", f"v_mov_b32 v{160+8*ps+q}, 0"))
    def hl(kn, e):
        k.vm(f"buffer_load_dwordx4 {vr(hreg(kn, e),4)}, v1, s[{rWS}:{rWS+3}], s{76+e} offen offset:{(kn%4)*1024}{'' if 'hplain' in OPT else ' sc1'}", f"h{kn}")
    for ks in range(LASTK):
        if ks == YSIG:
            k.wait(vm="yst")
            k.op("s_barrier")
            signal(k, 9, 8)
            stamp(k, "c_sig")
        stamp(k, f"w_{ks}_")
        k.wait(vm=f"h{ks}", lg=[f"wr{ks}_1_1"] if ks >= WD_KS else [])
        if ks % 2 == 0: stamp(k, f"z_{ks}")
        else: stamp(k, f"q_{ks}")
        m = 0
        for dt2 in range(2):
            for e in range(2):
                mf(ks, dt2, e)
                todo = []
                if ks == 2: todo = {1: [(8, 0), (8, 1)], 3: [(9, 0), (9, 1)]}.get(m, [])
                elif ks == 3: todo = {1: [(10, 0), (10, 1)], 3: [(11, 0), (11, 1)]}.get(m, [])
                elif ks >= 4 and ks + 8 < 28 and m >= 2: todo = [(ks + 8, m - 2)]
                for kn, e2 in todo:
                    if kn % 4 == 0 and e2 == 0: g2_hbase(k, kn // 4)
                    hl(kn, e2)
                if ks < WD_KS: emit(k, [wr1[4 * ks + m]])
                if ks >= 6 and xfill and m < 2: emit(k, [xfill.pop(0) for _ in range(min(2, len(xfill)))])
                if m == 3 and ks == YPOLL and 'ysmem' in OPT: k.op(f"s_load_dword s{sU2}, s[{sPWS}:{sPWS+1}], s{sU1}")
                if m == 3 and ks == 19 and 'ysmem' not in OPT:
                    k.op(f"v_mov_b32 v9, s{sU1}")
                    k.vm(f"global_load_dword v10, v9, s[{sPWS}:{sPWS+1}] sc1", "ycnt")
                if m == 3 and ks == YLOAD: y_loads()
                m += 1
    assert not xfill
    k.wait(vm="h27", lg=["wr27_1_1"])
    def wr(t):
        dt2, e = divmod(t, 2)
        return [("lg", f"ds_write_b128 v11, {vr(vA2 + 16*t + 4*g, 4)} offset:{e*32*RROW + dt2*128 + g*32}", f"rw{t}{g}") for g in range(4)]
    for t in range(4):
        dt2, e = divmod(t, 2)
        for ks in range(LASTK, 28):
            mf(ks, dt2, e)
        if t == 2: k.op("s_nop 3")
        if t >= 2: emit(k, wr(t - 2))
    stamp(k, "d_loop")
    k.op(f"v_mov_b32 v10, {hex(f2u(-1.4426950408889634))}")
    k.op(f"v_mul_u32_u24 v8, {RROW}, v5")
    k.op("v_lshl_add_u32 v8, v6, 5, v8")
    k.op(f"v_add_u32 v8, {RED}, v8")
    k.op("v_mul_u32_u24 v9, 1040, v6")
    k.op("v_lshl_add_u32 v9, v5, 1, v9")
    k.op(f"v_add_u32 v9, {YT}, v9")
    emit(k, wr(2))
    emit(k, wr(3))
    k.op("v_mov_b32 v11, 1.0")
    k.wait(lg=k.lgq[-1])
    stamp(k, "t_wr")
    k.op("s_barrier")
    stamp(k, "t_bar")
    for ps in range(2):
        B = 16 + 64 * ps
        for w in range(4):
            for hh in range(2):
                k.lg(f"ds_read_b128 {vr(B + 8*w + 4*hh, 4)}, v8 offset:{w*RW + ps*32*RROW + hh*16}", f"p{ps}_{w}{hh}")
    for ps in range(2):
        B = 16 + 64 * ps if ps == 0 else 80
        N = 112 + 16 * ps + 8
        k.wait(lg=f"p{ps}_31")
        for q in range(4):
            k.op(f"v_pk_add_f32 {vr(B+2*q,2)}, {vr(B+2*q,2)}, {vr(B+8+2*q,2)}")
            k.op(f"v_pk_add_f32 {vr(B+16+2*q,2)}, {vr(B+16+2*q,2)}, {vr(B+24+2*q,2)}")
        for q in range(4):
            k.op(f"v_pk_add_f32 {vr(B+2*q,2)}, {vr(B+2*q,2)}, {vr(B+16+2*q,2)}")
        E = B + 16
        for q in range(4):
            k.op(f"v_pk_mul_f32 {vr(E+2*q,2)}, {vr(B+2*q,2)}, {vr(10,2)} op_sel_hi:[1,0]")
        for q in range(8): k.op(f"v_exp_f32 v{E+q}, v{E+q}")
        for q in range(4): k.op(f"v_pk_mul_f32 {vr(N+2*q,2)}, {vr(N+2*q,2)}, {vr(B+2*q,2)}")
        for q in range(4): k.op(f"v_pk_add_f32 {vr(E+2*q,2)}, {vr(E+2*q,2)}, {vr(10,2)} op_sel:[0,1] op_sel_hi:[1,1]")
        for q in range(8): k.op(f"v_rcp_f32 v{E+q}, v{E+q}")
        k.op("s_nop 0")
        for q in range(4): k.op(f"v_pk_mul_f32 {vr(N+2*q,2)}, {vr(N+2*q,2)}, {vr(E+2*q,2)}")
    stamp(k, "t_silu")
    k.wait(vm="ey")
    k.op("s_barrier")
    stamp(k, "t_ey")
    for ps in range(2):
        for e in range(8):
            if len(k.lgq) >= 14: k.wait(lg=k.lgq[3])
            k.lg(f"ds_read_u16_d16_hi v{160+8*ps+e}, v9 offset:{e*128 + ps*64}", f"y{ps}_{e}")
    for ps in range(2):
        X = 112 + 16 * ps; N = X + 8; Yr = 160 + 8 * ps; T = 144 + 8 * ps
        k.wait(lg=f"y{ps}_7")
        for q in range(4): k.op(f"v_pk_fma_f32 {vr(N+2*q,2)}, {vr(N+2*q,2)}, {vr(Yr+2*q,2)}, {vr(X+2*q,2)}")
        for q in range(4): k.op(f"v_cvt_pk_bf16_f32 v{T+q}, v{N+2*q}, v{N+2*q+1}")
        k.vm(f"buffer_store_dwordx4 {vr(T,4)}, v7, s[{rOUT}:{rOUT+3}], s{78+ps} offen{' sc1' if 'outsc1' in OPT else '' if 'outplain' in OPT else ' nt'}", "ost")
    stamp(k, "d_end")

PP_ROW = 900
PP_K = 0
PP_V = 67 * PP_ROW + 4
def prepass(k):
    if "ppst" in OPT: k.op("s_memtime s[8:9]")
    k.op(f"s_sub_u32 s{sT0}, s{sSLOT}, 28")
    k.op(f"s_lshl_b32 s{sT0}, s{sT0}, 3")
    k.op(f"s_add_u32 s{sI}, s{sT0}, s{sXCD}")
    k.op("v_lshlrev_b32 v1, 4, v0")
    k.op("s_waitcnt lgkmcnt(0)")
    srd(k, rWS, sPWS, (16 << 20) if (STAMPS and 'leak' not in OPT) else WS_USED)
    lab = k.newlabel("Lnolead")
    k.op(f"s_or_b32 s{sT0}, s{sI}, s{sW}")
    k.op(f"s_cmp_lg_u32 s{sT0}, 0")
    k.op(f"s_cbranch_scc1 {lab}")
    k.op("v_lshlrev_b32 v2, 7, v0")
    k.op(f"v_add_u32 v2, {CNT_OFF}, v2")
    k.op("v_mov_b32 v3, 0")
    k.op("s_mov_b32 exec_hi, 0")
    k.op(f"global_store_dword v2, v3, s[{sPWS}:{sPWS+1}] sc1")
    k.op("s_waitcnt vmcnt(0)")
    k.op("v_mov_b32 v2, 1")
    k.op("s_mov_b64 exec, 1")
    k.op(f"global_store_dword v3, v2, s[{sPDBG}:{sPDBG+1}] sc1")
    k.op("s_mov_b64 exec, -1")
    k.label(lab)
    if "ppf" in OPT:
        k.op(f"s_bitcmp1_b32 s{sW}, 1")
        k.op(f"s_cselect_b32 s{rX}, s{sPWU}, s{sPWG}")
        k.op(f"s_cselect_b32 s{rX+1}, s{sPWU+1}, s{sPWG+1}")
        k.op(f"s_and_b32 s{rX+1}, s{rX+1}, 0xffff")
        k.op(f"s_mov_b32 s{rX+2}, {D*F*2}")
        k.op(f"s_mov_b32 s{rX+3}, 0x20000")
        k.op(f"s_sub_u32 s{sT0}, s{sSLOT}, 28")
        k.op(f"s_mul_i32 s{sT0}, s{sT0}, 224")
        k.op(f"s_and_b32 s{sT1}, s{sW}, 1")
        k.op(f"s_lshl_b32 s{sT1}, s{sT1}, 7")
        k.op(f"s_add_u32 s{sT0}, s{sT0}, s{sT1}")
        k.op(f"s_and_b32 s{sT1}, s{sXCD}, 1")
        k.op(f"s_mul_i32 s{sT1}, s{sT1}, 1792")
        k.op(f"s_mov_b32 s{sT2}, {(1 << 32) // 14 + 1}")
        for rnd in range(2):
            k.op(f"v_add_u32 v2, s{sT0}, v0")
            if rnd: k.op("v_add_u32 v2, 64, v2")
            k.op(f"v_mul_hi_u32 v3, v2, s{sT2}")
            k.op("v_mul_u32_u24 v4, 14, v3")
            k.op("v_sub_u32 v4, v2, v4")
            k.op("v_mul_u32_u24 v3, 3584, v3")
            k.op("v_lshl_add_u32 v3, v4, 7, v3")
            k.vm(f"buffer_load_dword a250, v3, s[{rX}:{rX+3}], s{sT1} offen", "pf")
    srd(k, rK, sPK, S * D * 2)
    srd(k, rV, sPV, S * D * 2)
    srd(k, rSK, sPSK, D * 4 * 2)
    k.op("s_mov_b32 exec_hi, 0x00ffffff")
    k.op(f"s_lshl_b32 s{sT0}, s{sI}, 6")
    k.op(f"s_add_u32 s{sT0}, s{sT0}, s{sW}")
    k.op(f"s_sub_u32 s{sT1}, s{sT0}, 3")
    k.op(f"s_mul_i32 s{sT1}, s{sT1}, 896")
    k.op(f"s_mul_i32 s{sT2}, s{sW}, {PP_ROW}")
    k.op(f"s_add_u32 m0, s{sT2}, {PP_K}")
    k.op(f"v_add_u32 v2, s{sT1}, v1")
    for n in range(17):
        if n == 16:
            lab = k.newlabel("Lpk")
            k.op(f"s_cmp_eq_u32 s{sW}, 3")
            k.op(f"s_cbranch_scc1 {lab}")
            k.op(f"buffer_load_dwordx4 v2, s[{rK}:{rK+3}], 0 offen lds")
            k.label(lab)
        else:
            k.vm(f"buffer_load_dwordx4 v2, s[{rK}:{rK+3}], 0 offen lds", "k")
            k.op(f"s_add_u32 m0, m0, {4*PP_ROW}")
            k.op(f"v_add_u32 v2, {4*896}, v2")
    k.op(f"s_mul_i32 s{sT1}, s{sT0}, 896")
    k.op(f"s_add_u32 m0, s{sT2}, {PP_V}")
    k.op("s_nop 0")
    for n in range(16):
        k.vm(f"buffer_load_dwordx4 v1, s[{rV}:{rV+3}], s{sT1} offen lds", "v")
        if n < 15:
            k.op(f"s_add_u32 m0, m0, {4*PP_ROW}")
            k.op(f"s_add_u32 s{sT1}, s{sT1}, {4*896}")
    k.op("s_mov_b32 exec_hi, -1")
    k.op(f"s_mov_b32 s{sMASK}, 0xffff0000")
    k.op("v_and_b32 v2, 3, v0")
    k.op("v_lshrrev_b32 v3, 5, v0")
    k.op("v_lshl_add_u32 v2, v3, 2, v2")
    k.op("v_bfe_u32 v3, v0, 2, 3")
    k.op(f"v_mul_u32_u24 v4, {8*PP_ROW}, v2")
    k.op("v_lshl_add_u32 v4, v3, 2, v4")
    k.op(f"s_lshl_b32 s{sT0}, s{sW}, 5")
    k.op(f"v_add_u32 v4, s{sT0}, v4")
    k.op(f"v_add_u32 v8, {PP_V}, v4")
    k.op("v_lshlrev_b32 v5, 4, v3")
    k.op(f"s_lshl_b32 s{sT0}, s{sW}, 7")
    k.op(f"v_add_u32 v5, s{sT0}, v5")
    k.op("v_lshlrev_b32 v6, 13, v3")
    k.op(f"s_lshl_b32 s{sT0}, s{sW}, 16")
    k.op(f"v_add_u32 v6, s{sT0}, v6")
    k.op("v_lshlrev_b32 v7, 4, v2")
    k.op("v_sub_u32 v6, v6, v7")
    k.op(f"s_lshl_b32 s{sT0}, s{sI}, 7")
    k.op(f"s_sub_u32 s{sT0}, {U_OFF + (2047 - 7) * 2}, s{sT0}")
    k.op(f"v_add_u32 v6, s{sT0}, v6")
    for it in range(7):
        k.vm(f"buffer_load_dwordx4 {vr(100 + 4*it, 4)}, v5, s[{rSK}:{rSK+3}], 0 offen offset:{it*512}", "sk")
    if "ppst" in OPT: k.op("s_memtime s[10:11]")
    k.wait_all()
    if "ppst" in OPT: k.op("s_memtime s[12:13]")
    k.op("s_barrier")
    RAW = [16, 176]
    def reads(it):
        base = RAW[it % 2]; coff = it * 128
        for j in range(11):
            k.lg(f"ds_read_b32 v{base+j}, v4 offset:{PP_K + j*PP_ROW + coff}", f"r{it}")
        for j in range(8):
            k.lg(f"ds_read_b32 v{base+11+j}, v8 offset:{j*PP_ROW + coff}", f"r{it}")
    reads(0)
    for it in range(7):
        KR = RAW[it % 2]; VR = KR + 11
        sk = 100 + 4 * it
        k.op(f"v_lshlrev_b32 v64, 16, v{sk}");   k.op(f"v_lshlrev_b32 v65, 16, v{sk+2}")
        k.op(f"v_and_b32 v66, 0xffff0000, v{sk}"); k.op(f"v_and_b32 v67, 0xffff0000, v{sk+2}")
        k.op(f"v_lshlrev_b32 v68, 16, v{sk+1}"); k.op(f"v_lshlrev_b32 v69, 16, v{sk+3}")
        k.op(f"v_and_b32 v70, 0xffff0000, v{sk+1}"); k.op(f"v_and_b32 v71, 0xffff0000, v{sk+3}")
        k.wait(lg=f"r{it}")
        for j in range(11):
            k.op(f"v_lshlrev_b32 v{40+2*j}, 16, v{KR+j}")
            k.op(f"v_and_b32 v{41+2*j}, s{sMASK}, v{KR+j}")
        for j in range(8):
            k.op(f"v_lshlrev_b32 v{72+2*j}, 16, v{VR+j}")
            k.op(f"v_and_b32 v{73+2*j}, s{sMASK}, v{VR+j}")
        if it + 1 < 7: reads(it + 1)
        for t in range(8):
            k.op(f"v_pk_mul_f32 {vr(130+2*t,2)}, {vr(40+2*(t+3),2)}, {vr(64,2)}")
        for j in range(1, 4):
            for t in range(8):
                o = 130 + 2 * t
                k.op(f"v_pk_fma_f32 {vr(o,2)}, {vr(40+2*(t+3-j),2)}, {vr(64+2*j,2)}, {vr(o,2)}")
        for t in range(8):
            o = 130 + 2 * t
            k.op(f"v_pk_mul_f32 {vr(o,2)}, {vr(o,2)}, {vr(72+2*t,2)}")
        O = 150 + 8 * (it % 2)
        for q in range(4):
            k.op(f"v_cvt_pk_bf16_f32 v{O+q}, v{130+2*(7-2*q)}, v{130+2*(6-2*q)}")
            k.op(f"v_cvt_pk_bf16_f32 v{O+4+q}, v{131+2*(7-2*q)}, v{131+2*(6-2*q)}")
        k.op(f"s_mov_b32 s{sT0}, {it * 64 * 4096}")
        k.op(f"s_mov_b32 s{sT1}, {it * 64 * 4096 + 4096}")
        k.vm(f"buffer_store_dwordx4 {vr(O,4)}, v6, s[{rWS}:{rWS+3}], s{sT0} offen sc1", "ust")
        k.vm(f"buffer_store_dwordx4 {vr(O+4,4)}, v6, s[{rWS}:{rWS+3}], s{sT1} offen sc1", "ust")
    if "ppst" in OPT: k.op("s_memtime s[14:15]")
    k.wait_all()
    if "ppst" in OPT: k.op("s_memtime s[72:73]")
    k.op("s_barrier")
    lab = k.newlabel("Lpsig")
    k.op(f"s_cmp_lg_u32 s{sW}, 0")
    k.op(f"s_cbranch_scc1 {lab}")
    k.op("v_mov_b32 v9, 0")
    spin_until(k, 9, 8, sPDBG, 1)
    k.label(lab)
    cnt_addr(k, 9, idx=UCNT)
    signal(k, 9, 8)
    if "ppst" in OPT:
        k.op("s_waitcnt vmcnt(0) lgkmcnt(0)")
        k.op("s_memtime s[74:75]")
        k.op("s_waitcnt lgkmcnt(0)")
        k.op("s_lshl_b32 s4, s2, 2"); k.op(f"s_add_u32 s4, s4, s{sW}"); k.op("s_lshl_b32 s4, s4, 7"); k.op(f"s_add_u32 s4, s4, {STAMP_OFF}")
        k.op("v_mov_b32 v1, 0"); k.op("s_mov_b64 exec, 1")
        for i, r in enumerate((8, 10, 12, 14, 72, 74)):
            k.op(f"v_mov_b32 v2, s{r}")
            k.op(f"buffer_store_dword v2, v1, s[{rWS}:{rWS+3}], s4 offen offset:{4*i}")
        k.op("s_mov_b64 exec, -1")

def kd(name, vgpr=512, acc=256):
    return f""".section .rodata,"a"
.p2align 6
.amdhsa_kernel {name}
  .amdhsa_next_free_vgpr {vgpr}
  .amdhsa_next_free_sgpr 102
  .amdhsa_accum_offset {acc}
  .amdhsa_group_segment_fixed_size 0
  .amdhsa_kernarg_size 104
  .amdhsa_user_sgpr_count 2
  .amdhsa_user_sgpr_kernarg_segment_ptr 1
  .amdhsa_system_sgpr_workgroup_id_x 1
  .amdhsa_float_denorm_mode_32 3
.end_amdhsa_kernel
"""

def build():
    k = K()
    prologue(k, 32768)
    start_main(k)
    gemm1_loop(k)
    gelu_phase(k)
    wr1 = conv_phase(k)
    gemm2_phase(k, wr1)
    for o in OPT:
        if o.startswith("cyc"):
            n = int(o[3:])
            k.op(f"s_add_u32 s10, s73, {n}")
            k.label("L_untilc")
            k.op("s_memtime s[8:9]")
            k.op("s_waitcnt lgkmcnt(0)")
            k.op("s_sub_u32 s11, s10, s8")
            k.op("s_cmp_gt_i32 s11, 0")
            k.op("s_cbranch_scc1 L_untilc")
        if o.startswith("until"):
            n = int(o[5:])
            k.op(f"s_add_u32 s10, s73, {n}")
            k.label("L_until")
            k.op("s_memrealtime s[8:9]")
            k.op("s_waitcnt lgkmcnt(0)")
            k.op("s_sub_u32 s11, s10, s8")
            k.op("s_cmp_gt_i32 s11, 0")
            k.op("s_cbranch_scc1 L_until")
        if o.startswith("delay"):
            n = int(o[5:])
            k.op("s_memtime s[8:9]")
            k.op("s_waitcnt lgkmcnt(0)")
            k.op(f"s_add_u32 s10, s8, {n}")
            k.label("L_delay")
            k.op("s_memtime s[8:9]")
            k.op("s_waitcnt lgkmcnt(0)")
            k.op("s_sub_u32 s11, s10, s8")
            k.op("s_cmp_gt_i32 s11, 0")
            k.op("s_cbranch_scc1 L_delay")
    stamp_flush(k)
    k.op("s_endpgm")
    k.label("L_pre")
    k.vmq = []; k.lgq = []
    prepass(k)
    k.label("L_exit")
    name = NAME + "_kernel"
    header = open("cdna_kernels/" + NAME + ".s.ref").read().split("; Override launch")[0]
    txt = header + f"; @launch grid=(256,1,1) block=(256,1,1) lds={LDS_TOTAL}\n"
    txt += '.amdgcn_target "amdgcn-amd-amdhsa--gfx950"\n.text\n'
    txt += f".globl {name}\n.p2align 8\n.type {name},@function\n{name}:\n"
    txt += k.text() + "s_endpgm\n" + kd(name)
    return txt

if __name__ == "__main__":
    if len(sys.argv) > 2 and sys.argv[2].startswith("stamps"):
        STAMPS = True
        if "=" in sys.argv[2]: STAMPSET = sys.argv[2].split("=")[1].split(",")
    if len(sys.argv) > 3: OPT.update(sys.argv[3].split(","))
    txt = build()
    if "noalign" not in OPT:
        import align
        txt = align.align(txt)
    check_hazards(txt)
    open(sys.argv[1], "w").write(txt)
    if STAMPS: print("stamps:", stamped)
```

```python
import sys, struct
from asmlib import *

NAME = "recurrent_scan__ssm_conv_h3__geglu_ffn__prompt"
S, D, F = 2048, 448, 1792
OPT = set()

H_OFF = 0
U_OFF = H_OFF + 64 * 112 * 1024
Y_OFF = U_OFF + D * 4096
ST_OFF = Y_OFF + D * 4096
CNT_OFF = ST_OFF + S * 8
WS_USED = CNT_OFF + 32 * 128
HCNT, YCNT, UCNT = 0, 16, 24

sPQ, sPK, sPV, sPSK, sPSSM, sPD, sPBX, sPWG = 16, 18, 20, 22, 24, 26, 28, 30
sPWU, sPWD, sPOUT, sPDBG = 32, 34, 36, 38
sPWS = 40
rX, rW, rWS, rWD, rSSM, rOUT, rD = 44, 48, 52, 56, 60, 64, 68
rK, rV, rSK = 48, 56, 60
sT0, sT1, sT2, sT3 = 4, 5, 6, 7
sW, sI, sJ, sWSO, sWM0, sSLOT, sXCD, sONES, sMASK, sWGM = 80, 81, 82, 83, 84, 85, 86, 87, 88, 89
sTT, sDT, sWDS, sWDM, sCH = 90, 91, 92, 93, 94
sHST = 95
sWDG = 75
sWDM4 = 42
sROT = 43
sHG = 74
sU0, sU1, sU2, sU3 = 96, 97, 98, 99

SLOT_SZ = 34048
XOFF = 17024
XS = SLOT_SZ
XROW = 912
SLOT = [0, SLOT_SZ, 2 * SLOT_SZ, 3 * SLOT_SZ]
LDS_TOTAL = 163840
HC_STRIDE = 4160
HC_CH = 4 * HC_STRIDE
UR_CH = 4608
WDST = 0
WD_KS = 14
WD_WAVE = WD_KS * 2048
def stg_const(s_):
    g = s_ >> 2
    return g * SLOT_SZ + (s_ & 3) * 2048 if g < 3 else 3 * SLOT_SZ + (s_ & 1) * 2048
HC = 3 * SLOT_SZ + 4 * 4096
UR = HC + 2 * HC_CH
XCH = HC
YT = UR + 2 * UR_CH
assert YT + 8320 <= LDS_TOTAL or True
YT = HC + 16384
RED = 0

vX = 16
vACC = 128

STAMPS = False
STAMP_OFF = 12 << 20
STAMPSET = None
POOL = [8, 10, 72, 18, 20, 22, 28, 16, 24, 26, 30, 32, 34, 36, 12, 14]
stamped = []
def stamp(k, name=""):
    if not STAMPS: return
    if STAMPSET is not None and not any((name == p[:-1]) if p.endswith("$") else name.startswith(p) for p in STAMPSET): return
    i = len(stamped)
    assert i < len(POOL)
    stamped.append(name)
    k.op(f"{'s_memrealtime' if 'rtst' in OPT else 's_memtime'} s[{POOL[i]}:{POOL[i]+1}]")
def stamp_flush_dbg(k):
    wg = int([o for o in OPT if o.startswith("dbgwg")][0][5:])
    lab = k.newlabel("Ldbg")
    k.op("s_waitcnt vmcnt(0) lgkmcnt(0)")
    k.op(f"s_cmp_lg_u32 s2, {wg}"); k.op(f"s_cbranch_scc1 {lab}")
    k.op(f"s_cmp_lg_u32 s{sW}, 0"); k.op(f"s_cbranch_scc1 {lab}")
    k.op("s_mov_b64 exec, 1")
    for i in range(1, len(stamped)):
        k.op(f"s_sub_u32 s4, s{POOL[i]}, s{POOL[0]}")
        k.op(f"v_mov_b32 v2, s4")
        k.op(f"v_mov_b32 v1, {4*i}")
        k.op(f"global_store_dword v1, v2, s[{sPDBG}:{sPDBG+1}]")
    k.op("s_mov_b64 exec, -1")
    k.label(lab)

def stamp_leak(k):
    KL = 3
    k.op("s_waitcnt vmcnt(0) lgkmcnt(0)")
    k.op(f"s_sub_u32 s4, s{POOL[1]}, s{POOL[0]}")
    k.op(f"s_mul_i32 s4, s4, {KL}")
    k.op("s_memtime s[6:7]")
    k.op("s_waitcnt lgkmcnt(0)")
    k.op("s_add_u32 s4, s4, s6")
    k.label("L_leak")
    k.op("s_memtime s[6:7]")
    k.op("s_waitcnt lgkmcnt(0)")
    k.op("s_sub_u32 s5, s4, s6")
    k.op("s_cmp_gt_i32 s5, 0")
    k.op("s_cbranch_scc1 L_leak")

def stamp_flush(k):
    if not STAMPS: return
    if "leak" in OPT: return stamp_leak(k)
    if any(o.startswith("dbgwg") for o in OPT): return stamp_flush_dbg(k)
    k.op("s_waitcnt vmcnt(0) lgkmcnt(0)")
    k.op("s_memrealtime s[42:43]")
    k.op("s_waitcnt lgkmcnt(0)")
    k.op("s_mov_b32 s101, s42")
    k.op("s_lshl_b32 s4, s2, 2")
    k.op(f"s_add_u32 s4, s4, s{sW}")
    k.op("s_lshl_b32 s4, s4, 7")
    k.op(f"s_add_u32 s4, s4, {STAMP_OFF}")
    k.op("v_mov_b32 v1, 0")
    k.op("s_mov_b64 exec, 1")
    for i in range(len(stamped)):
        k.op(f"v_mov_b32 v2, s{POOL[i]}")
        k.op(f"buffer_store_dword v2, v1, s[{rWS}:{rWS+3}], s4 offen offset:{4*i}")
    k.op("v_mov_b32 v2, s100")
    k.op(f"buffer_store_dword v2, v1, s[{rWS}:{rWS+3}], s4 offen offset:{4*30}")
    k.op("v_mov_b32 v2, s101")
    k.op(f"buffer_store_dword v2, v1, s[{rWS}:{rWS+3}], s4 offen offset:{4*31}")
    k.op("s_mov_b64 exec, -1")

def f2u(x):
    return struct.unpack("<I", struct.pack("<f", x))[0]

def srd(k, r, ptr, nbytes):
    k.op(f"s_mov_b32 s{r}, s{ptr}")
    k.op(f"s_and_b32 s{r+1}, s{ptr+1}, 0xffff")
    k.op(f"s_mov_b32 s{r+2}, {nbytes}")
    k.op(f"s_mov_b32 s{r+3}, 0x20000")

def emit(k, items):
    for it in items:
        if it[0] == "op": k.op(it[1])
        elif it[0] == "vm": k.vm(it[1], it[2])
        elif it[0] == "lg": k.lg(it[1], it[2])
        elif it[0] == "fn": it[1]()

def capture(fn, *args):
    t = K()
    fn(t, *args)
    assert not t.vmq and not t.lgq
    return [("op", l) for l in t.L]

def interleave(k, main, fill, every, start=0):
    fill = list(fill)
    for n, it in enumerate(main):
        emit(k, [it])
        if fill and n >= start and (n - start) % every == every - 1:
            emit(k, fill.pop(0))
    for g in fill: emit(k, g)

def cnt_addr(k, vreg, idx_sgpr=None, idx=0):
    if idx_sgpr is None:
        k.op(f"v_mov_b32 v{vreg}, {CNT_OFF + idx * 128}")
    else:
        k.op(f"s_lshl_b32 s{sT0}, s{idx_sgpr}, 7")
        k.op(f"s_add_u32 s{sT0}, s{sT0}, {CNT_OFF + idx * 128}")
        k.op(f"v_mov_b32 v{vreg}, s{sT0}")

def spin_until(k, vaddr, vtmp, base, target, cmp="ge"):
    lab, done = k.newlabel("Lspin"), k.newlabel("Lspun")
    if "cntspin" in OPT:
        slot = {32: 4, 14: 5, 1: 7}[target] if vaddr != 9 or target != 32 else 4
        if getattr(k, "spin_tag", None): slot = k.spin_tag
        k.op(f"v_mov_b32 v{vtmp}, 1")
        k.op("s_mov_b64 exec, 1")
        k.op(f"v_mov_b32 v190, {4*slot}")
        k.op(f"global_atomic_add v190, v{vtmp}, s[{sPDBG}:{sPDBG+1}]")
        k.op("s_mov_b64 exec, -1")
    k.op(f"s_mov_b32 s{sT1}, 0x40000")
    k.label(lab)
    k.op(f"global_load_dword v{vtmp}, v{vaddr}, s[{base}:{base+1}] sc1")
    k.op("s_waitcnt vmcnt(0)")
    k.op(f"v_readfirstlane_b32 s{sT2}, v{vtmp}")
    k.op(f"s_sub_u32 s{sT1}, s{sT1}, 1")
    k.op(f"s_cmp_ge_u32 s{sT2}, {target}")
    k.op(f"s_cbranch_scc1 {done}")
    k.op("s_sleep %d" % int(([o for o in OPT if o.startswith("slp")] or ["slp1"])[0][3:]))
    k.op(f"s_cmp_lg_u32 s{sT1}, 0")
    k.op(f"s_cbranch_scc1 {lab}")
    k.label(done)
    k.vmq = []

def check_or_spin(k, vval, vaddr, base, target):
    done = k.newlabel("Lok")
    k.op(f"v_readfirstlane_b32 s{sT2}, v{vval}")
    k.op(f"s_cmp_ge_u32 s{sT2}, {target}")
    k.op(f"s_cbranch_scc1 {done}")
    q = list(k.vmq)
    spin_until(k, vaddr, vval, base, target)
    k.vmq = q
    k.label(done)

def signal(k, vaddr, vone):
    lab = k.newlabel("Lsig")
    k.op(f"s_cmp_lg_u32 s{sW}, 0")
    k.op(f"s_cbranch_scc1 {lab}")
    k.op(f"v_mov_b32 v{vone}, 1")
    k.op("s_mov_b64 exec, 1")
    k.op(f"global_atomic_add v{vaddr}, v{vone}, s[{sPWS}:{sPWS+1}] sc1")
    k.op("s_mov_b64 exec, -1")
    k.label(lab)

def prologue(k, codebytes):
    if any(o.startswith("cyc") for o in OPT):
        k.op("s_memtime s[72:73]")
        k.op("s_waitcnt lgkmcnt(0)")
        k.op("s_mov_b32 s73, s72")
    if any(o.startswith("until") for o in OPT):
        k.op("s_memrealtime s[72:73]")
        k.op("s_waitcnt lgkmcnt(0)")
        k.op("s_mov_b32 s73, s72")
    k.op("s_getpc_b64 s[12:13]")
    k.op("s_load_dwordx16 s[16:31], s[0:1], 0")
    k.op("s_load_dwordx8 s[32:39], s[0:1], 64")
    k.op("s_load_dwordx2 s[40:41], s[0:1], 96")
    k.op("v_lshrrev_b32 v1, 6, v0")
    k.op("v_and_b32 v0, 63, v0")
    k.op("s_cmp_ge_u32 s2, 256")
    k.op(f"v_readfirstlane_b32 s{sW}, v1")
    k.op("s_cbranch_scc1 L_exit")
    if "nocodepf" not in OPT:
        k.op("s_lshr_b32 s14, s2, 3")
        k.op("s_lshl_b32 s14, s14, 2")
        k.op(f"s_add_u32 s14, s14, s{sW}")
        k.op("s_mul_i32 s14, s14, 384")
        k.op("s_add_u32 s12, s12, s14")
        k.op("s_addc_u32 s13, s13, 0")
        k.op("v_lshlrev_b32 v2, 7, v0")
        k.op("s_mov_b64 exec, 7")
        k.vm("global_load_dword a250, v2, s[12:13]", "code")
        k.op("s_mov_b64 exec, -1")
        assert codebytes <= 128 * 384
    if STAMPS and not any(o.startswith("dbgwg") for o in OPT) and "leak" not in OPT:
        k.op("s_memrealtime s[42:43]")
        k.op("s_waitcnt lgkmcnt(0)")
        k.op("s_mov_b32 s100, s42")
    k.op(f"s_and_b32 s{sXCD}, s2, 7")
    k.op(f"s_lshr_b32 s{sSLOT}, s2, 3")
    k.op(f"s_cmp_ge_u32 s{sSLOT}, 28")
    k.op("s_cbranch_scc1 L_pre")

def wdma(c, e):
    out = []
    if e % 4 == 0:
        out.append(("op", f"s_add_u32 m0, s{sWM0}, {SLOT[c % 4] + e * 1056}"))
    out.append(("op", f"s_add_u32 s{sT3}, s{sWSO}, {(64 * c + e) * 3584 - (e % 4) * 1056}"))
    out.append(("vm", f"buffer_load_dwordx4 v2, s[{rW}:{rW+3}], s{sT3} offen offset:{(e % 4) * 1056} lds", f"w{c}"))
    return out

def start_main(k):
    k.op(f"s_mul_i32 s{sT0}, s{sSLOT}, 37")
    k.op(f"s_lshr_b32 s{sT0}, s{sT0}, 8")
    k.op(f"s_mul_i32 s{sT1}, s{sT0}, 7")
    k.op(f"s_sub_u32 s{sDT}, s{sSLOT}, s{sT1}")
    k.op(f"s_lshr_b32 s{sT2}, s{sXCD}, 1")
    k.op(f"s_lshl_b32 s{sT2}, s{sT2}, 2")
    k.op(f"s_add_u32 s{sI}, s{sT2}, s{sT0}")
    k.op(f"s_lshl_b32 s{sTT}, s{sXCD}, 2")
    k.op(f"s_add_u32 s{sTT}, s{sTT}, s{sT0}")
    k.op("v_lshlrev_b32 v1, 4, v0")
    k.op(f"s_lshl_b32 s{sU0}, s{sI}, 2")
    k.op(f"s_add_u32 s{sU0}, s{sU0}, s{sW}")
    k.op(f"s_mul_i32 s{sU0}, s{sU0}, {32*896}")
    k.op(f"s_mul_i32 s{sU1}, s{sW}, {32*XROW}")
    k.op(f"s_add_u32 s{sU1}, s{sU1}, {XS}")
    k.op(f"s_mul_i32 s{sU2}, s{sDT}, 9")
    k.op(f"s_lshr_b32 s{sU2}, s{sU2}, 2")
    k.op("v_lshrrev_b32 v242, 5, v0")
    k.op("v_mul_u32_u24 v240, 896, v242")
    k.op("v_lshlrev_b32 v242, 3, v242")
    k.op("v_and_b32 v243, 31, v0")
    k.op("v_xor_b32 v243, v243, v242")
    k.op("v_lshl_add_u32 v240, v243, 4, v240")
    stamp(k, "b_pre")
    k.op("s_waitcnt lgkmcnt(0)")
    if "tlb" in OPT:
        for i, p in enumerate((sPWG, sPWU, sPWD, sPSSM, sPOUT, sPD)):
            k.op(f"s_load_dword s{96 if False else 100 if not STAMPS else 15}, s[{p}:{p+1}], 0") if False else None
        for p in (sPWG, sPWU, sPWD, sPSSM, sPOUT):
            k.op(f"s_load_dword s15, s[{p}:{p+1}], 0x0")
        for off in (H_OFF, 2 << 20, 4 << 20, 6 << 20, U_OFF + (1 << 20), Y_OFF + (1 << 20)):
            k.op(f"s_mov_b32 s14, {off}")
            k.op(f"s_load_dword s15, s[{sPWS}:{sPWS+1}], s14")
    srd(k, rX, sPQ, S * D * 2)
    stamp(k, "start")
    if "earlypf" in OPT:
        k.op("s_mov_b32 exec_hi, 0")
        k.vm(f"buffer_load_dword a250, v5, s[{rW}:{rW+3}], s{sWDG} offen", "pf")
    def xdma(part):
        out = [("op", f"s_mul_i32 s{sT1}, s{sU2}, {1040 if part == 0 else 784}"),
               ("op", f"s_mul_i32 s{sT2}, s{sU2}, 1792"),
               ("op", f"s_add_u32 m0, s{sT1}, s{sU1 if part == 0 else sU3}"),
               ("op", f"s_add_u32 s{sT2}, s{sT2}, s{sU0}"),
               ("op", f"s_add_u32 s{sU2}, s{sU2}, 1"),
               ("vm", f"buffer_load_dwordx4 v{240 + part}, s[{rX}:{rX+3}], s{sT2} offen {'offset:0 ' if False else ''}lds", f"x{part}"),
               ("op", f"s_and_b32 s{sU2}, s{sU2}, 15")]
        return out
    k.op(f"s_add_u32 s{sU3}, s{sU1}, 16640")
    k.op(f"s_mov_b32 s{sT0}, 16")
    lx = k.newlabel("Lxd")
    k.label(lx)
    for it in xdma(0): k.op(it[1])
    k.op(f"s_sub_u32 s{sT0}, s{sT0}, 1")
    k.op(f"s_cmp_lg_u32 s{sT0}, 0")
    k.op(f"s_cbranch_scc1 {lx}")
    for n in range(16): k.vmq.append("x0")
    k.op("v_cmp_le_u32 vcc, 24, v0")
    k.op(f"v_mov_b32 v242, {896 - 24*16}")
    k.op("v_lshlrev_b32 v241, 4, v0")
    k.op("v_cndmask_b32 v242, 0, v242, vcc")
    k.op("v_add_u32 v241, v241, v242")
    k.op(f"s_and_b32 s{sT0}, s{sXCD}, 1")
    k.op(f"s_mul_i32 s{sJ}, s{sT0}, 7")
    k.op(f"s_add_u32 s{sJ}, s{sJ}, s{sDT}")
    k.op("v_lshrrev_b32 v6, 4, v0")
    k.op("v_lshlrev_b32 v6, 6, v6")
    k.op("v_bfe_u32 v7, v0, 1, 3")
    k.op("v_add_u32 v6, v6, v7")
    k.op("v_mul_u32_u24 v6, 3584, v6")
    k.op("v_and_b32 v7, 1, v0")
    k.op("v_lshl_add_u32 v5, v7, 7, v6")
    k.op(f"s_and_b32 s{sT0}, s{sI}, 3")
    k.op(f"s_lshl_b32 s{sT0}, s{sT0}, 1")
    k.op(f"s_lshr_b32 s{sWDG}, s{sW}, 1")
    k.op(f"s_add_u32 s{sT0}, s{sT0}, s{sWDG}")
    k.op(f"s_mul_i32 s{sT0}, s{sT0}, {8*3584}")
    k.op(f"s_lshl_b32 s{sWDG}, s{sJ}, 8")
    k.op(f"s_add_u32 s{sWDG}, s{sWDG}, s{sT0}")
    k.op(f"s_bitcmp1_b32 s{sW}, 0")
    k.op(f"s_cselect_b32 s{rW}, s{sPWU}, s{sPWG}")
    k.op(f"s_cselect_b32 s{rW+1}, s{sPWU+1}, s{sPWG+1}")
    k.op(f"s_and_b32 s{rW+1}, s{rW+1}, 0xffff")
    k.op(f"s_mov_b32 s{rW+2}, {D*F*2}")
    k.op(f"s_mov_b32 s{rW+3}, 0x20000")
    k.op(f"s_add_u32 s{sU0}, s{sU0}, 512")
    if "w0first" not in OPT:
        k.op("s_mov_b32 exec_hi, 0xffff")
        for n in range(8): emit(k, xdma(1))
        k.op("s_mov_b32 exec_hi, -1")
    stamp(k, "a_xiss")
    k.op("v_lshrrev_b32 v10, 4, v0")
    k.op(f"v_mul_u32_u24 v2, {16*3584}, v10")
    k.op("v_and_b32 v11, 15, v0")
    k.op("v_lshl_add_u32 v2, v11, 4, v2")
    k.op(f"s_lshr_b32 s{sT0}, s{sW}, 1")
    k.op(f"s_lshl_b32 s{sT0}, s{sT0}, 3")
    k.op(f"s_mul_i32 s{sWSO}, s{sT0}, 3584")
    k.op(f"s_lshl_b32 s{sT1}, s{sJ}, 8")
    k.op(f"s_add_u32 s{sWSO}, s{sWSO}, s{sT1}")
    k.op(f"s_mul_i32 s{sWM0}, s{sT0}, 1056")
    k.op(f"s_and_b32 s{sT1}, s{sW}, 1")
    k.op(f"s_mul_i32 s{sT1}, s{sT1}, {XOFF}")
    k.op(f"s_add_u32 s{sWM0}, s{sWM0}, s{sT1}")
    if "w0first" in OPT:
        for e in range(8): emit(k, wdma(0, e))
    stamp(k, "a_issued")
    k.op(f"s_mul_i32 s{sWGM}, s{sXCD}, 28")
    k.op(f"s_add_u32 s{sWGM}, s{sWGM}, s{sSLOT}")
    srd(k, rWS, sPWS, (16 << 20) if (STAMPS and 'leak' not in OPT) else WS_USED)
    srd(k, rWD, sPWD, F * D * 2)
    srd(k, rSSM, sPSSM, D * S * 2)
    srd(k, rOUT, sPOUT, S * D * 2)
    srd(k, rD, sPD, D * 2)
    k.op("v_and_b32 v11, 1, v10")
    k.op(f"v_mul_u32_u24 v3, {XOFF}, v11")
    k.op("v_lshrrev_b32 v11, 5, v0")
    k.op("v_lshlrev_b32 v12, 3, v11")
    k.op("v_bfe_u32 v13, v0, 2, 2")
    k.op("v_add_u32 v12, v12, v13")
    k.op("v_mul_u32_u24 v12, 1056, v12")
    k.op("v_add_u32 v3, v3, v12")
    k.op("v_and_b32 v13, 3, v0")
    k.op("v_lshl_add_u32 v3, v13, 3, v3")
    k.op(f"v_add_u32 v14, {2*SLOT_SZ}, v3")
    k.op("v_and_b32 v13, 31, v0")
    k.op("v_lshrrev_b32 v12, 1, v13")
    k.op("v_and_b32 v13, 1, v13")
    k.op("v_mul_u32_u24 v242, 1040, v12")
    k.op("v_lshl_add_u32 v242, v11, 4, v242")
    k.op("v_lshl_add_u32 v242, v13, 9, v242")
    k.op(f"v_add_u32 v242, s{sU1}, v242")
    k.op("v_lshlrev_b32 v15, 7, v13")
    k.op("v_sub_u32 v243, v242, v15")
    k.op("v_add_u32 v242, v242, v15")
    k.op("v_mul_u32_u24 v244, 784, v12")
    k.op("v_lshl_add_u32 v244, v11, 4, v244")
    k.op("v_mul_u32_u24 v13, 384, v13")
    k.op("v_add_u32 v244, v244, v13")
    k.op(f"v_add_u32 v244, s{sU3}, v244")
    k.op(f"s_mov_b32 s{sONES}, 0x3f803f80")
    k.op(f"s_mov_b32 s{sMASK}, 0xffff0000")
    for a in range(8): k.op(f"v_mov_b32 v{6+a}, 0")
    def st(n):
        return [("op", f"v_dot2_f32_bf16 v{6 + n % 4}, v{vX+n}, s{sONES}, v{6 + n % 4}"),
                ("op", f"v_dot2_f32_bf16 v{10 + n % 4}, v{vX+n}, v{vX+n}, v{10 + n % 4}")]
    def xrd(ks):
        if ks < 16: return ("lg", f"ds_read_b128 {vr(vX + 4 * ks, 4)}, v{242 + ((ks >> 2) & 1)} offset:{32 * ks}", f"x{ks}r")
        return ("lg", f"ds_read_b128 {vr(vX + 4 * ks, 4)}, v244 offset:{32 * (ks - 16)}", f"x{ks}r")
    k.wait(vm="x0")
    stamp(k, "a_xarr")
    for ks in range(16): emit(k, [xrd(ks)])
    rest = []
    for n in range(8 if "w0first" not in OPT else 16):
        g = xdma(1)
        rest.append([("op", "s_mov_b32 exec_hi, 0xffff")] + g + [("op", "s_mov_b32 exec_hi, -1")])
    if "w0first" not in OPT: rest += [wdma(0, e) for e in range(8)]
    for ks in range(16):
        k.wait(lg=f"x{ks}r")
        for q in range(4): emit(k, st(4 * ks + q))
        emit(k, rest[ks])
    stamp(k, "a_p1")
    k.wait(vm="x1")
    for ks in range(16, 28): emit(k, [xrd(ks)])
    if "nopf" not in OPT:
        k.op(f"s_add_u32 s{sWDG}, s{sWDG}, {64*3584}")
        if "pf1" in OPT: k.vm(f"buffer_load_dword a250, v5, s[{rW}:{rW+3}], s{sWDG} offen", "pf")
    k.wait(lg="x27r")
    k.op("v_mov_b32 v15, v5")
    k.op("s_barrier")
    stamp(k, "a_xreg")
    main = []
    for n in range(64, 112): main += st(n)
    fill = [wdma(1, e) for e in range(8)] if "w1late2" not in OPT else []
    if "w1late" in OPT and "nopf" not in OPT:
        fill.append([("op", f"s_add_u32 s{sWDG}, s{sWDG}, {128*3584}"),
                     ("vm", f"buffer_load_dword a250, v15, s[{rW}:{rW+3}], s{sWDG} offen", "pf")])
    if "nopf" not in OPT:
        fill.append([("op", f"s_add_u32 s{sWDG}, s{sWDG}, {256*3584}"), ("op", "s_mov_b32 exec_hi, 0"),
                        ("vm", f"buffer_load_dword a250, v15, s[{rW}:{rW+3}], s{sWDG} offen", "pf"), ("op", "s_mov_b64 exec, -1")])
    if "w1late" in OPT:
        emit(k, main)
        late = fill
    else:
        interleave(k, main, fill, 10)
        late = []
    stamp(k, "a_dot")
    k.op("s_nop 2")
    k.op("v_add_f32 v6, v6, v7"); k.op("v_add_f32 v8, v8, v9")
    k.op("v_add_f32 v10, v10, v11"); k.op("v_add_f32 v12, v12, v13")
    k.op("v_add_f32 v6, v6, v8"); k.op("v_add_f32 v10, v10, v12")
    k.op("v_mov_b32 v7, v6"); k.op("v_mov_b32 v11, v10")
    k.op("s_nop 1")
    k.op("v_permlane32_swap_b32 v6, v7"); k.op("v_permlane32_swap_b32 v10, v11")
    k.op("s_nop 1")
    k.op("v_add_f32 v6, v6, v7"); k.op("v_add_f32 v10, v10, v11")
    k.op(f"v_mul_f32 v6, {hex(f2u(1.0/448))}, v6")
    k.op(f"v_mul_f32 v10, {hex(f2u(1.0/448))}, v10")
    k.op("v_fma_f32 v10, -v6, v6, v10")
    k.op("v_max_f32 v10, 0, v10")
    k.op("v_cvt_pk_bf16_f32 v7, v6, v10")
    k.op("v_lshlrev_b32 v6, 16, v7")
    k.op(f"v_and_b32 v10, s{sMASK}, v7")
    k.op(f"v_add_f32 v10, {hex(f2u(1e-5))}, v10")
    k.op("v_cvt_pk_bf16_f32 v10, v10, v10")
    k.op("v_lshlrev_b32 v10, 16, v10")
    k.op("v_sqrt_f32 v10, v10")
    k.op("s_nop 0")
    k.op("v_cvt_pk_bf16_f32 v10, v10, v10")
    k.op("v_lshlrev_b32 v10, 16, v10")
    k.op("v_rcp_f32 v8, v10")
    k.op("v_sub_f32 v4, 0, v6")
    LATE[:] = late
    k.op("v_mul_f32 v9, v4, v8")
    lab = k.newlabel("Lnost")
    k.op(f"s_cmp_lg_u32 s{sJ}, 0")
    k.op(f"s_cbranch_scc1 {lab}")
    k.op(f"s_lshl_b32 s{sT0}, s{sI}, 2")
    k.op(f"s_add_u32 s{sT0}, s{sT0}, s{sW}")
    k.op(f"s_lshl_b32 s{sT0}, s{sT0}, 8")
    k.op(f"s_add_u32 s{sT0}, s{sT0}, {ST_OFF}")
    k.op("v_lshlrev_b32 v6, 3, v0")
    k.op("s_mov_b32 exec_hi, 0")
    k.op(f"buffer_store_dwordx2 v[8:9], v6, s[{rWS}:{rWS+3}], s{sT0} offen sc1")
    k.op("s_mov_b32 exec_hi, -1")
    k.label(lab)
    C1 = -2.0 * 0.7978845608028654 * 1.4426950408889634
    C2 = C1 * 0.044715
    k.op(f"v_mul_f32 v6, {hex(f2u(C1))}, v8")
    k.op("v_mul_f32 v7, v8, v8")
    k.op("v_mul_f32 v11, v10, v10")
    k.op("v_mul_f32 v7, v7, v8")
    k.op("v_accvgpr_write_b32 a144, v6")
    k.op(f"v_mul_f32 v7, {hex(f2u(C2))}, v7")
    k.op("v_accvgpr_write_b32 a146, v11")
    k.op("v_accvgpr_write_b32 a145, v7")

def norm(n, tp):
    t = 6 + 2 * tp
    return [("op", f"v_lshlrev_b32 v{t}, 16, v{vX+n}"),
            ("op", f"v_and_b32 v{t+1}, s{sMASK}, v{vX+n}"),
            ("op", f"v_add_f32 v{t}, v{t}, v4"),
            ("op", f"v_add_f32 v{t+1}, v{t+1}, v4"),
            ("op", f"v_cvt_pk_bf16_f32 v{vX+n}, v{t}, v{t+1}")]
def norm_step(ks):
    a = [norm(4 * ks + q, q) for q in range(4)]
    out = []
    for s in range(5):
        for q in range(4): out.append(a[q][s])
    return out

def hc_dma(q):
    rr, qq = divmod(q, 4)
    out = []
    if qq == 0:
        out.append(("op", f"s_add_u32 m0, s{sU0}, {rr * HC_STRIDE}"))
        out.append(("op", f"s_add_u32 s{sU2}, s{sU1}, {rr * 2}"))
    out.append(("vm", f"buffer_load_dwordx4 v1, s[{rSSM}:{rSSM+3}], s{sU2} offen offset:{qq*1024} lds", "hc"))
    return out

LATE = []
WD0 = []
def gemm1_loop(k):
    emit(k, norm_step(0))
    for g in LATE: emit(k, g)
    k.op(f"s_lshr_b32 s{sT0}, s{sW}, 1")
    k.op(f"s_lshl_b32 s{sCH}, s{sWGM}, 1")
    k.op(f"s_add_u32 s{sCH}, s{sCH}, s{sT0}")
    k.op(f"s_and_b32 s{sT1}, s{sW}, 1")
    k.op(f"s_lshl_b32 s{sT1}, s{sT1}, 1")
    k.op(f"s_mul_i32 s{sU0}, s{sT0}, {HC_CH}")
    k.op(f"s_mul_i32 s{sT3}, s{sT1}, {HC_STRIDE}")
    k.op(f"s_add_u32 s{sU0}, s{sU0}, s{sT3}")
    k.op(f"s_add_u32 s{sU0}, s{sU0}, {HC + 32}")
    k.op(f"s_lshl_b32 s{sU1}, s{sCH}, 12")
    k.op(f"s_lshl_b32 s{sT1}, s{sT1}, 1")
    k.op(f"s_add_u32 s{sU1}, s{sU1}, s{sT1}")
    k.op(f"s_add_u32 s{sU1}, s{sU1}, 2")
    stamp(k, "a_norm0")
    k.wait(vm="w0")
    stamp(k, "a_w0")
    k.op("s_barrier")
    stamp(k, "a_stats")
    NF = 8; DIST = 7; NM = 224
    def rd(n):
        ks, mt = divmod(n, 8)
        c, kk = divmod(ks, 4)
        sl = c % 4
        base = "v3" if sl < 2 else "v14"
        off = (SLOT_SZ if sl % 2 else 0) + kk * 256 + mt * 32
        f = 4 * (n % NF)
        return [("lg", f"ds_read_b64_tr_b16 {ar(f, 2)}, {base} offset:{off}", f"f{n}"),
                ("lg", f"ds_read_b64_tr_b16 {ar(f + 2, 2)}, {base} offset:{off + 4 * 1056}", f"f{n}")]
    for n in range(DIST): emit(k, rd(n))
    extra = {}
    k.op(f"s_lshl_b32 s{sT0}, s{sSLOT}, 2")
    k.op(f"s_add_u32 s{sT0}, s{sT0}, s{sW}")
    k.op(f"s_mul_i32 s{sU3}, s{sT0}, {112*128}")
    k.op("v_lshlrev_b32 v15, 7, v0")
    def wd_pf(piece):
        return [("op", "s_mov_b64 exec, 0xffff"),
                ("vm", f"buffer_load_dword a250, v15, s[{rWD}:{rWD+3}], s{sU3} offen offset:{piece*2048}", "pf"),
                ("op", "s_mov_b64 exec, -1")]
    if "nopf" not in OPT:
        P0, PSTEP = (9, 1)
        for p in range(7):
            if p < 2: extra[P0 + PSTEP * p] = wd_pf(p)
            else:
                extra[P0 + PSTEP * p] = [("op", f"s_add_u32 s{sU3}, s{sU3}, 2048"), ("op", "s_mov_b64 exec, 0xffff"),
                    ("vm", f"buffer_load_dword a250, v15, s[{rWD}:{rWD+3}], s{sU3} offen offset:2048", "pf"), ("op", "s_mov_b64 exec, -1")]
        k.op(f"s_lshl_b32 s{sHST}, s{sWGM}, 13")
        k.op(f"s_lshl_b32 s{sT0}, s{sW}, 11")
        k.op(f"s_add_u32 s{sHST}, s{sHST}, s{sT0}")
        extra[8] = [("op", "s_mov_b64 exec, 0xffff"),
                    ("vm", f"buffer_load_dword a250, v15, s[{rSSM}:{rSSM+3}], s{sHST} offen", "pf"), ("op", "s_mov_b64 exec, -1")]
    extra[24] = [("op", "s_mov_b64 exec, 1"),
                 ("vm", f"global_load_dword a40, v15, s[{sPDBG}:{sPDBG+1}] sc1", "init"),
                 ("op", "s_mov_b64 exec, -1")]
    tailfill = capture(g2_setup2) + gelu_setup_items()
    setup1 = capture(g2_setup1)
    WD0[:] = wd_dma_groups(0, WD_KS, "wd0", 0)
    def bigs(ks):
        c, kk = divmod(ks, 4)
        out = []
        if "x_now" not in OPT:
            if "w1late2" not in OPT:
                if c == 0: out += [wdma(2 + kk // 2, 4 * (kk % 2) + i) for i in range(4)]
                elif c + 3 < 7: out += [wdma(c + 3, 2 * kk + i) for i in range(2)]
            else:
                if ks < 8: out += [wdma(1 + ks // 2, 4 * (ks % 2) + i) for i in range(4)]
                elif c in (2, 3): out += [wdma(c + 3, 2 * kk + i) for i in range(2)]
        if c == 4 and "x_nohc" not in OPT: out += [hc_dma(2 * kk + i) for i in range(2)]
        if c in (5, 6) and 'wdgelu' not in OPT: out += WD0[(c - 5) * 8 + 2 * kk: (c - 5) * 8 + 2 * kk + 2]
        if ks in extra and ("x_noex" not in OPT or ks == 24): out.append(extra[ks])
        return out
    VAR = [o for o in OPT if o.startswith("sch")]
    VAR = VAR[0] if VAR else "sch1"
    POS = {"sch0": {0: [], 1: [7], 2: [6, 7], 3: [5, 6, 7], 4: [3, 5, 6, 7]},
           "sch1": {0: [], 1: [7], 2: [3, 7], 3: [2, 5, 7], 4: [1, 3, 5, 7]},
           "sch2": {0: [], 1: [6], 2: [2, 6], 3: [1, 4, 6], 4: [0, 2, 4, 6]},
           "sch3": {0: [], 1: [7], 2: [3, 7], 3: [2, 5, 7], 4: [1, 3, 5, 7]}}[VAR]
    pending_reads = []
    for ks in range(28):
        c, kk = divmod(ks, 4)
        bg = bigs(ks)
        pos = POS[len(bg)]
        nrm = norm_step(ks + 1) if (ks + 1 < 28 and "x_nonorm" not in OPT) else []
        if ks == 27: nrm = list(tailfill)
        if ks in (16, 17, 18, 19):
            i0 = (ks - 16) * 6
            nrm = nrm + setup1[i0: i0 + 6 if ks < 19 else len(setup1)]
        if VAR == "sch0":
            cut = [0, 3, 6, 9, 12, 15, 18, 20, 20] if ks < 27 else [(len(nrm) * i) // 8 for i in range(9)]
            share = {g: nrm[cut[g]:cut[g + 1]] for g in range(8)}
        else:
            wts = {g: (0 if (g in pos or (g == 7 and ks < 27)) else 1) for g in range(8)}
            if VAR == "sch3":
                wts = {g: (1 if g in pos else 0 if (g == 7 and ks < 27) else 3) for g in range(8)}
            tot = sum(wts.values()); acc_ = 0; done = 0; share = {}
            for g in range(8):
                acc_ += wts[g]
                upto = (len(nrm) * acc_ + tot - 1) // tot
                share[g] = nrm[done:upto]; done = upto
        for mt in range(8):
            n = 8 * ks + mt
            if n % 32 == 0: stamp(k, f"g_c{n//32}")
            if n % 4 == 0:
                k.wait(lg=[f"f{n+i}" for i in range(4)])
            f = 4 * (n % NF)
            acc = vr(vACC + 16 * mt, 16)
            cin = "0" if ks == 0 else acc
            if "x_m16" in OPT:
                for hh_ in range(2):
                    a4 = vr(vACC + 16 * mt + 4 * hh_ + 8 * (ks % 2), 4)
                    k.op(f"v_mfma_f32_16x16x32_bf16 {a4}, {ar(f, 4)}, {vr(vX + 4 * ks, 4)}, {a4}")
            else:
                k.op(f"v_mfma_f32_32x32x16_bf16 {acc}, {ar(f, 4)}, {vr(vX + 4 * ks, 4)}, {cin}")
            if "x_halfrd" in OPT and n % 2 == 1:
                emit(k, share[mt])
                if mt in pos: emit(k, bg[pos.index(mt)])
                nn = n + DIST
                if nn < NM and nn % 32 == 0:
                    k.wait(vm=f"w{nn // 32}"); k.op("s_barrier")
                continue
            nn = n + DIST
            if nn < NM:
                if nn % 32 == 0:
                    k.wait(vm=f"w{nn // 32}")
                    if "x_nobar" not in OPT: k.op("s_barrier")
                emit(k, rd(nn))
            emit(k, share[mt])
            if mt in pos: emit(k, bg[pos.index(mt)])
    assert not pending_reads
    stamp(k, "g_end")

def g2_setup1(k):
    k.op(f"s_and_b32 s{sT0}, s{sTT}, 3")
    k.op(f"s_lshl_b32 s{sT0}, s{sT0}, 1")
    k.op(f"s_add_u32 s{sROT}, s{sT0}, s{sDT}")
    k.op(f"s_sub_u32 s{sT0}, s{sROT}, 7")
    k.op(f"s_min_u32 s{sROT}, s{sROT}, s{sT0}")
    k.op("v_lshrrev_b32 v16, 3, v0")
    k.op("v_mul_u32_u24 v2, 896, v16")
    k.op("v_bfe_u32 v16, v0, 4, 1")
    k.op("v_lshlrev_b32 v16, 2, v16")
    k.op("v_and_b32 v17, 7, v0")
    k.op("v_xor_b32 v16, v16, v17")
    k.op("v_lshl_add_u32 v2, v16, 4, v2")
    k.op(f"s_mul_i32 s{sWDS}, s{sW}, {16*28*896}")
    k.op(f"s_lshl_b32 s{sT0}, s{sDT}, 7")
    k.op(f"s_add_u32 s{sWDS}, s{sWDS}, s{sT0}")
    k.op(f"s_sub_u32 s{sWDS}, s{sWDS}, 4096")
    k.op(f"s_lshl_b32 s{sWDM}, s{sW}, 13")
    k.op(f"s_lshl_b32 s{sWDM4}, s{sW}, 12")
def g2_setup2(k):
    k.op("v_lshrrev_b32 v5, 5, v0")
    k.op("v_bfe_u32 v6, v0, 2, 2")
    k.op("v_lshl_add_u32 v5, v5, 2, v6")
    k.op("v_lshlrev_b32 v5, 7, v5")
    k.op("v_bfe_u32 v7, v0, 4, 1")
    k.op("v_lshl_add_u32 v5, v7, 5, v5")
    k.op("v_and_b32 v7, 3, v0")
    k.op("v_lshl_add_u32 v5, v7, 3, v5")
    k.op(f"v_add_u32 v5, s{sWDM}, v5")
    k.op("v_bfe_u32 v6, v0, 3, 1")
    k.op("v_lshlrev_b32 v6, 6, v6")
    k.op("v_add_u32 v3, v5, v6")
    k.op("v_xor_b32 v6, 64, v6")
    k.op("v_add_u32 v4, v5, v6")
def gelu_setup_items():
    C1 = -2.0 * 0.7978845608028654 * 1.4426950408889634
    C2 = C1 * 0.044715
    it = []
    op = lambda t: it.append(("op", t))
    op("v_lshrrev_b32 v10, 4, v0")
    op("v_and_b32 v11, 15, v0")
    op("v_add_u32 v12, v10, v11")
    op("v_subrev_u32 v12, 15, v12")
    op("v_lshlrev_b32 v12, 1, v12")
    op("v_cmp_gt_i32 vcc, 0, v12")
    op("v_mov_b32 v13, 0x7fffffff")
    op(f"s_lshl_b32 s{sT1}, s{sCH}, 12")
    op("v_cndmask_b32 v12, v12, v13, vcc")
    op("v_mov_b32 v13, 0")
    it.append(("vm", f"buffer_load_ushort v12, v12, s[{rSSM}:{rSSM+3}], s{sT1} offen", "hf"))
    op(f"s_lshl_b32 s{sT1}, s{sCH}, 1")
    it.append(("vm", f"buffer_load_ushort v15, v13, s[{rD}:{rD+3}], s{sT1} offen", "dv"))
    op(f"v_mul_u32_u24 v10, {HC_STRIDE}, v10")
    op("v_lshl_add_u32 v10, v11, 1, v10")
    op(f"s_lshr_b32 s{sT0}, s{sW}, 1")
    op(f"s_mul_i32 s{sT2}, s{sT0}, {HC_CH}")
    op(f"s_add_u32 s{sT2}, s{sT2}, {HC}")
    op(f"v_add_u32 v10, s{sT2}, v10")
    op(f"s_mul_i32 s{sT2}, s{sT0}, {UR_CH}")
    op(f"s_add_u32 s{sT2}, s{sT2}, {UR + 4096}")
    op(f"v_add_u32 v11, s{sT2}, v1")
    op("v_mov_b32 v20, 0"); op("v_mov_b32 v21, 0"); op("v_mov_b32 v22, 0"); op("v_mov_b32 v23, 0")
    op("v_accvgpr_read_b32 v16, a144")
    op("v_accvgpr_read_b32 v17, a145")
    op("v_accvgpr_read_b32 v18, a146")
    op(f"s_lshl_b32 s{sT0}, s{sI}, 2")
    op(f"s_add_u32 s{sT0}, s{sT0}, s{sW}")
    op(f"s_mul_i32 s{sHST}, s{sT0}, {112*1024}")
    op(f"s_lshl_b32 s{sT1}, s{sJ}, 13")
    op(f"s_add_u32 s{sHST}, s{sHST}, s{sT1}")
    return it

def g2_setup3(k):
    k.op(f"v_add_u32 v176, {2*SLOT_SZ}, v3")
    k.op(f"v_add_u32 v177, {2*SLOT_SZ}, v4")
    k.op(f"s_sub_u32 s{sT0}, {3*SLOT_SZ}, s{sWDM4}")
    k.op(f"v_add_u32 v178, s{sT0}, v3")
    k.op(f"v_add_u32 v179, s{sT0}, v4")

def wd_group_base(g):
    return [("op", f"s_add_u32 s{sT3}, s{sROT}, {g}"),
            ("op", f"s_sub_u32 s{sWDG}, s{sT3}, 7"),
            ("op", f"s_min_u32 s{sT3}, s{sT3}, s{sWDG}"),
            ("op", f"s_mul_i32 s{sT3}, s{sT3}, {64*896}"),
            ("op", f"s_add_u32 s{sWDG}, s{sT3}, s{sWDS}")]
def wd_dma_groups(ks0, ks1, tag, s0):
    out = []
    q = 0
    for ks in range(ks0, ks1):
        sl = ks - s0
        for hh in range(2):
            g = []
            if ks % 4 == 0 and hh == 0: g += wd_group_base(ks // 4)
            qq = 2 * (sl & 1) + hh
            if qq == 0:
                g.append(("op", f"s_add_u32 m0, s{sWDM if sl < 12 else sWDM4}, {stg_const(sl)}"))
            g.append(("op", f"s_add_u32 s{sT3}, s{sWDG}, {(16 * (ks % 4) + 8 * hh) * 896 - qq * 1024 + 4096}"))
            g.append(("vm", f"buffer_load_dwordx4 v2, s[{rWD}:{rWD+3}], s{sT3} offen offset:{qq * 1024} lds", tag))
            out.append(g)
    return out

def wd_read_items(ks0, ks1, s0):
    out = []
    for ks in range(ks0, ks1):
        sl = ks - s0
        g = sl >> 2
        for dt2 in range(2):
            for t in range(2):
                a = 8 * ks + 4 * dt2 + 2 * t
                if g < 2: base, off = 3 + dt2, stg_const(sl)
                elif g == 2: base, off = 176 + dt2, stg_const(sl) - 2 * SLOT_SZ
                else: base, off = 178 + dt2, stg_const(sl) - 3 * SLOT_SZ
                out.append(("lg", f"ds_read_b64_tr_b16 {ar(a,2)}, v{base} offset:{off + t*1024}", f"wr{ks}_{dt2}_{t}"))
    return out
def emit_lg_limited(k, items):
    for it in items:
        if it[0] == "lg" and len(k.lgq) >= 12: k.wait(lg=k.lgq[5])
        emit(k, [it])

def gelu_phase(k):
    if k.lgq: k.wait(lg=[k.lgq[-1]])
    k.op("s_barrier")
    vC, vONE = 16, 18
    k.wait(vm="init")
    k.op("v_accvgpr_read_b32 v8, a40")
    k.op("v_mov_b32 v9, 0")
    k.op("s_nop 0")
    check_or_spin(k, 8, 9, sPDBG, 1)
    cnt_addr(k, 9, idx=UCNT)
    k.vm(f"global_load_dword v8, v9, s[{sPWS}:{sPWS+1}] sc1", "ucnt")
    k.op("s_mov_b32 exec_hi, 0")
    k.lg("ds_write_b128 v11, v[20:23]", "z")
    k.op("s_mov_b32 exec_hi, -1")
    wd0 = WD0[16:] if 'wdgelu' not in OPT else WD0[:]
    g2_setup3_done = False
    def ur_dma():
        k.wait(vm="ucnt")
        k.spin_tag = 6
        check_or_spin(k, 8, 9, sPWS, 32)
        k.spin_tag = None
        k.op(f"s_lshr_b32 s{sT0}, s{sW}, 1")
        k.op(f"s_and_b32 s{sT1}, s{sW}, 1")
        k.op(f"s_lshl_b32 s{sT1}, s{sT1}, 11")
        k.op(f"s_mul_i32 s{sT2}, s{sT0}, {UR_CH}")
        k.op(f"s_add_u32 s{sT2}, s{sT2}, s{sT1}")
        k.op(f"s_add_u32 m0, s{sT2}, {UR}")
        k.op(f"s_lshl_b32 s{sT3}, s{sCH}, 12")
        k.op(f"s_add_u32 s{sT3}, s{sT3}, s{sT1}")
        k.op(f"s_add_u32 s{sT3}, s{sT3}, {U_OFF}")
        k.vm(f"buffer_load_dwordx4 v1, s[{rWS}:{rWS+3}], s{sT3} offen sc1 lds", "ur")
        k.vm(f"buffer_load_dwordx4 v1, s[{rWS}:{rWS+3}], s{sT3} offen offset:1024 sc1 lds", "ur")
        k.wait(vm="hf")
        k.lg("ds_write_b16 v10, v12", "z")
    for mt in range(8):
        stamp(k, f"y_{mt}")
        G = vACC + 16 * mt; U = G + 8
        T = 24 + (mt % 2) * 24
        tp = lambda p: T + 2 * p
        gu = lambda p: T + 8 + 2 * p
        O = T + 16
        P = range(4)
        m = []
        for p in P: m.append(("op", f"v_pk_mul_f32 {vr(tp(p),2)}, {vr(G+2*p,2)}, {vr(G+2*p,2)}"))
        for p in P: m.append(("op", f"v_pk_fma_f32 {vr(tp(p),2)}, {vr(tp(p),2)}, {vr(vC,2)}, {vr(vC,2)} op_sel:[0,1,0] op_sel_hi:[1,1,0]"))
        for p in P: m.append(("op", f"v_pk_mul_f32 {vr(tp(p),2)}, {vr(tp(p),2)}, {vr(G+2*p,2)}"))
        for p in P:
            m.append(("op", f"v_exp_f32 v{tp(p)}, v{tp(p)}")); m.append(("op", f"v_exp_f32 v{tp(p)+1}, v{tp(p)+1}"))
        for p in P: m.append(("op", f"v_pk_mul_f32 {vr(gu(p),2)}, {vr(G+2*p,2)}, {vr(U+2*p,2)}"))
        for p in P: m.append(("op", f"v_pk_fma_f32 {vr(tp(p),2)}, {vr(tp(p),2)}, {vr(vONE,2)}, {vr(vONE,2)} op_sel_hi:[1,0,0]"))
        for p in P:
            m.append(("op", f"v_rcp_f32 v{tp(p)}, v{tp(p)}")); m.append(("op", f"v_rcp_f32 v{tp(p)+1}, v{tp(p)+1}"))
        m.append(("op", "s_nop 0"))
        for p in P: m.append(("op", f"v_pk_mul_f32 {vr(gu(p),2)}, {vr(gu(p),2)}, {vr(tp(p),2)}"))
        for p in P: m.append(("op", f"v_cvt_pk_bf16_f32 v{O+p}, v{gu(p)}, v{gu(p)+1}"))
        nf = (4 if mt < 3 else 0) if 'wdgelu' not in OPT else (4 if mt < 4 else 3)
        fill = [wd0.pop(0) for _ in range(nf)]
        if "nowdg" in OPT: fill = [[x for x in g if x[0] != "vm"] for g in fill]
        pos = {8: 0, 20: 1, 32: 2, 42: 3} if nf == 4 else {12: 0, 24: 1, 36: 2} if nf == 3 else {}
        for n, it in enumerate(m):
            emit(k, [it])
            if n in pos: emit(k, fill[pos[n]])
        if mt % 4 == 0 and mt > 0:
            k.op(f"s_add_u32 s{sHST}, s{sHST}, 4096")
        if "nohst" not in OPT: k.vm(f"buffer_store_dwordx4 {vr(O,4)}, v1, s[{rWS}:{rWS+3}], s{sHST} offen offset:{(mt%4)*1024}{'' if 'hstplain' in OPT else ' sc1'}", "hst")
        if mt == 3: ur_dma()
    assert not wd0
    stamp(k, "e_gelu")
    k.wait(vm="ur", lg=[k.lgq[-1]] if k.lgq else [])
    k.op("s_barrier")

def h_signal(k):
    k.wait(vm="hst")
    k.op("s_barrier")
    cnt_addr(k, 9, idx_sgpr=sI, idx=HCNT)
    signal(k, 9, 10)
    stamp(k, "e_sig")

def conv_phase(k):
    k.wait(vm="dv")
    k.op("v_lshlrev_b32 v8, 16, v15")
    k.op(f"s_lshr_b32 s{sT0}, s{sW}, 1")
    k.op(f"s_mul_i32 s{sT2}, s{sT0}, {HC_CH}")
    k.op(f"s_add_u32 s{sT2}, s{sT2}, {HC}")
    k.op("v_bfe_u32 v5, v0, 2, 2")
    k.op(f"v_mul_u32_u24 v14, {HC_STRIDE}, v5")
    k.op("v_and_b32 v6, 3, v0")
    k.op("v_lshl_add_u32 v14, v6, 3, v14")
    k.op("v_lshrrev_b32 v6, 4, v0")
    k.op("v_lshl_add_u32 v14, v6, 4, v14")
    k.op(f"s_and_b32 s{sT1}, s{sW}, 1")
    k.op(f"s_lshl_b32 s{sT1}, s{sT1}, 8")
    k.op(f"s_add_u32 s{sT2}, s{sT2}, s{sT1}")
    k.op(f"v_add_u32 v14, s{sT2}, v14")
    k.op("v_and_b32 v7, 15, v0")
    k.op("v_lshlrev_b32 v7, 5, v7")
    k.op("v_lshlrev_b32 v5, 4, v6")
    k.op("v_sub_u32 v15, v5, v7")
    k.op(f"s_mul_i32 s{sT2}, s{sT0}, {UR_CH}")
    k.op(f"s_add_u32 s{sT2}, s{sT2}, {UR + 4064 - 3584}")
    k.op(f"s_add_u32 s{sT3}, s{sT2}, s{sT1}")
    k.op(f"v_add_u32 v15, s{sT3}, v15")
    FB = [16, 48]; GBUF = [80, 112]; ACC = 144
    def rdF(sub, J):
        b = FB[sub % 2] + 4 * J
        off = 64 * (8 * J + sub)
        return [("lg", f"ds_read_b64_tr_b16 {vr(b,2)}, v14 offset:{off}", f"F{sub}"),
                ("lg", f"ds_read_b64_tr_b16 {vr(b+2,2)}, v14 offset:{off+8}", f"F{sub}")]
    def rdG(sub, T):
        b = GBUF[sub % 2] + 4 * T
        return [("lg", f"ds_read_b128 {vr(b,4)}, v15 offset:{512*(7-T) + 64*sub}", f"F{sub}")]
    def fg(sub):
        out = []
        for i in range(8):
            out += rdG(sub, 7 - i) + rdF(sub, i)
        return out
    emit(k, fg(0))
    k.op("v_lshlrev_b32 v5, 3, v6")
    k.op("v_add_u32 v7, v7, v5")
    k.op(f"s_add_u32 s{sT2}, s{sT2}, {4088 - 4064}")
    k.op(f"v_sub_u32 v13, s{sT2}, v7")
    k.op("v_and_b32 v5, 1, v6")
    k.op("v_mul_u32_u24 v5, 504, v5")
    k.op("v_add_u32 v7, v7, v5")
    k.op("v_lshrrev_b32 v184, 3, v0")
    k.op(f"s_lshl_b32 s{sT0}, s{sW}, 3")
    k.op(f"v_add_u32 v184, s{sT0}, v184")
    k.op("v_and_b32 v185, 7, v0")
    k.op("v_mul_u32_u24 v186, 896, v184")
    k.op("v_lshl_add_u32 v186, v185, 4, v186")
    k.op(f"s_mul_i32 s78, s{sTT}, {64*896}")
    k.op(f"s_lshl_b32 s{sT0}, s{sDT}, 7")
    k.op(f"s_add_u32 s78, s78, s{sT0}")
    k.op(f"s_add_u32 s79, s78, {32*896}")
    k.op(f"s_lshr_b32 s{sU0}, s{sTT}, 1")
    cnt_addr(k, 187, idx_sgpr=sU0, idx=HCNT)
    k.op(f"s_lshl_b32 s{sT0}, s{sTT}, 1")
    k.op(f"s_mul_i32 s{sT0}, s{sT0}, 112")
    k.op(f"s_mul_i32 s{sT1}, s{sW}, 28")
    k.op(f"s_add_u32 s{sT0}, s{sT0}, s{sT1}")
    k.op(f"s_lshl_b32 s{sHG}, s{sT0}, 10")
    g2_setup3(k)
    wd1 = wd_dma_groups(WD_KS, 2 * WD_KS, "wd1", WD_KS)
    for g in wd1[:WD_KS]:
        for i, it in enumerate(g):
            if it[0] == "vm": g[i] = ("vm", it[1], "wd1a")
    wr0 = wd_read_items(0, WD_KS, 0)
    wr1 = wd_read_items(WD_KS, 2 * WD_KS, WD_KS)
    H = WD_KS // 2
    one = lambda items: [[x] for x in items]
    wtag = lambda it: [("fn", lambda t=it[2]: k.wait(lg=t))]
    def mix(a, b):
        if not b: return a
        out = []; j = 0
        for i, g in enumerate(a):
            out.append(g)
            while j < len(b) and (j + 1) * len(a) <= (i + 1) * len(b) + len(a) // 2: out.append(b[j]); j += 1
        return out + b[j:]
    N1, N2 = (6, 14) if 'n1' not in OPT else (4, 14)
    plan = {0: one(fg(1)) + [[("fn", lambda: k.wait(vm="wd0"))]] + one(wr0[:4*H]),
            1: one(fg(2)) + [wtag(wr0[4*H-1])] + mix(one(wr0[4*H:]), wd1[:N1]),
            2: mix(one(fg(3)), wd1[N1:N2] + [wtag(wr0[-1])] + wd1[N2:N2 + 4]),
            3: wd1[N2 + 4:]}
    first = set()
    for sub in range(4):
        stamp(k, f"s_pre{sub}")
        k.wait(lg=f"F{sub}")
        if sub == 1:
            h_signal(k)
            k.vm(f"buffer_load_dwordx4 {ar(224,4)}, v186, s[{rX}:{rX+3}], s78 offen", "ex")
            k.vm(f"buffer_load_dwordx4 {ar(228,4)}, v186, s[{rX}:{rX+3}], s79 offen", "ex")
        if sub == 2:
            k.vm(f"global_load_dword v188, v187, s[{sPWS}:{sPWS+1}] sc1", "hcnt")
        stamp(k, f"s_go{sub}")
        fill = [g for g in plan[sub] if g]
        mf = [(T, J) for T in range(7, -1, -1) for J in range(0, 8 - T)]
        per = len(fill) / (36.0 if sub < 3 else 20.0)
        done = 0
        for n, (T, J) in enumerate(mf):
            tile = T + J
            a = vr(ACC + 4 * tile, 4)
            cin = a if tile in first else "0"
            first.add(tile)
            k.op(f"v_mfma_f32_16x16x32_bf16 {a}, {vr(FB[sub%2]+4*J,4)}, {vr(GBUF[sub%2]+4*T,4)}, {cin}")
            want = min(len(fill), int(round((n + 1) * per + 0.49)))
            while done < want:
                emit(k, fill[done]); done += 1
        while done < len(fill):
            emit(k, fill[done]); done += 1
    stamp(k, "c_mfma")
    k.wait(vm="hcnt")
    check_or_spin(k, 188, 187, sPWS, 14)
    stamp(k, "d_hrdy")
    k.op("v_lshlrev_b32 v189, 3, v184")
    k.op(f"s_lshl_b32 s{sT0}, s{sTT}, 9")
    k.op(f"s_add_u32 s{sT0}, s{sT0}, {ST_OFF}")
    k.vm(f"buffer_load_dwordx2 {ar(232,2)}, v189, s[{rWS}:{rWS+3}], s{sT0} offen sc1", "ex")
    k.vm(f"buffer_load_dwordx2 {ar(234,2)}, v189, s[{rWS}:{rWS+3}], s{sT0} offen offset:256 sc1", "ex")
    for ks in range(PD):
        g2_hload(k, ks)
    k.op(f"s_lshl_b32 s{sT0}, s{sW}, 12")
    k.op(f"s_add_u32 s{sT0}, s{sT0}, {XCH}")
    k.op(f"v_add_u32 v5, s{sT0}, v1")
    k.op(f"s_xor_b32 s{sT1}, s{sW}, 1")
    k.op(f"s_lshl_b32 s{sT1}, s{sT1}, 12")
    k.op(f"s_add_u32 s{sT1}, s{sT1}, {XCH}")
    k.op(f"v_add_u32 v6, s{sT1}, v1")
    k.op(f"s_lshl_b32 s{sT2}, s{sCH}, 12")
    k.op(f"s_add_u32 s{sT2}, s{sT2}, {Y_OFF}")
    if k.lgq: k.wait(lg=k.lgq[-1])
    k.op("s_barrier")
    lo, le = k.newlabel("Lcodd"), k.newlabel("Lcend")
    k.op("s_nop 1")
    def finish(keep, send):
        for i in range(4):
            k.op(f"ds_write_b128 v5, {vr(ACC + 4*(send+i), 4)} offset:{1024*i}")
        for i in range(4):
            k.op(f"ds_read_b64 {vr(64+2*i,2)}, v13 offset:{512*(7-(keep+i))}")
        k.op("s_waitcnt lgkmcnt(0)")
        k.op("s_barrier")
        for i in range(4):
            k.op(f"ds_read_b128 {vr(48+4*i,4)}, v6 offset:{1024*i}")
        for i in range(4):
            U = 64 + 2 * i
            k.op(f"v_and_b32 v{112+4*i}, s{sMASK}, v{U+1}")
            k.op(f"v_lshlrev_b32 v{113+4*i}, 16, v{U+1}")
            k.op(f"v_and_b32 v{114+4*i}, s{sMASK}, v{U}")
            k.op(f"v_lshlrev_b32 v{115+4*i}, 16, v{U}")
            A = ACC + 4 * (keep + i)
            for r in range(4):
                k.op(f"v_fmac_f32 v{A+r}, v{112+4*i+r}, v8")
        k.op("s_waitcnt lgkmcnt(0)")
        for i in range(4):
            A = ACC + 4 * (keep + i)
            k.op(f"v_pk_add_f32 {vr(A,2)}, {vr(A,2)}, {vr(48+4*i,2)}")
            k.op(f"v_pk_add_f32 {vr(A+2,2)}, {vr(A+2,2)}, {vr(50+4*i,2)}")
        for i in range(4):
            A = ACC + 4 * (keep + i)
            k.op(f"v_cvt_pk_bf16_f32 v{72+2*i}, v{A}, v{A+1}")
            k.op(f"v_cvt_pk_bf16_f32 v{73+2*i}, v{A+2}, v{A+3}")
        k.op("s_nop 1")
        for i in (0, 2):
            k.op(f"v_permlane16_swap_b32 v{72+2*i}, v{74+2*i}")
            k.op(f"v_permlane16_swap_b32 v{73+2*i}, v{75+2*i}")
        k.op("s_nop 0")
        for i in (0, 2):
            k.op(f"buffer_store_dwordx4 {vr(72+2*i,4)}, v7, s[{rWS}:{rWS+3}], s{sT2} offen offset:{512*(keep+i)} sc1")
    k.op(f"s_bitcmp1_b32 s{sW}, 0")
    k.op(f"s_cbranch_scc1 {lo}")
    finish(0, 4)
    k.op(f"s_branch {le}")
    k.label(lo)
    finish(4, 0)
    k.label(le)
    for i in range(2): k.vmq.append("yst")
    stamp(k, "c_end")
    return wr1

NHS = 8; vA2 = 192
def hreg(ks, e):
    sl = ks % NHS
    return (16 + 8 * sl if sl < 4 else 80 + 8 * (sl - 4)) + 4 * e
PD = 4
def g2_hbase(k, g):
    k.op(f"s_add_u32 s{sT3}, s{sROT}, {g}")
    k.op(f"s_sub_u32 s76, s{sT3}, 7")
    k.op(f"s_min_u32 s{sT3}, s{sT3}, s76")
    k.op(f"s_lshl_b32 s{sT3}, s{sT3}, 12")
    k.op(f"s_add_u32 s76, s{sT3}, s{sHG}")
    k.op(f"s_add_u32 s77, s76, {112*1024}")
def g2_hload(k, ks):
    if ks % 4 == 0: g2_hbase(k, ks // 4)
    for e in range(2):
        b = hreg(ks, e)
        k.vm(f"buffer_load_dwordx4 {vr(b,4)}, v1, s[{rWS}:{rWS+3}], s{76+e} offen offset:{(ks%4)*1024}{'' if 'hplain' in OPT else ' sc1'}", f"h{ks}")

def gemm2_phase(k, wr1):
    k.op("v_mov_b32 v5, v184"); k.op("v_mov_b32 v6, v185"); k.op("v_mov_b32 v7, v186")
    for ks in range(PD, 2 * PD):
        g2_hload(k, ks)
    k.op(f"s_lshr_b32 s{sU0}, s{sWGM}, 5")
    cnt_addr(k, 9, idx_sgpr=sU0, idx=YCNT)
    k.op(f"s_lshl_b32 s{sU1}, s{sDT}, 7")
    k.op(f"s_add_u32 s{sU1}, s{sU1}, {CNT_OFF + YCNT * 128}")
    def y_loads():
        done = k.newlabel("Lyok")
        stamp(k, "t_y0")
        if 'ysmem' not in OPT:
            k.wait(vm="ycnt")
            k.op(f"v_readfirstlane_b32 s{sU2}, v10")
        else:
            k.op("s_waitcnt lgkmcnt(0)")
            k.lgq = []
        stamp(k, "t_y1")
        k.op(f"s_cmp_ge_u32 s{sU2}, 32")
        k.op(f"s_cbranch_scc1 {done}")
        k.op(f"v_mov_b32 v9, s{sU1}")
        q = list(k.vmq)
        spin_until(k, 9, 10, sPWS, 32)
        k.vmq = q
        k.label(done)
        stamp(k, "t_y2")
        k.op("v_lshrrev_b32 v8, 3, v0")
        k.op("v_lshlrev_b32 v8, 12, v8")
        k.op("v_lshl_add_u32 v8, v6, 4, v8")
        k.op(f"s_lshl_b32 s{sT0}, s{sDT}, 18")
        k.op(f"s_lshl_b32 s{sT1}, s{sW}, 16")
        k.op(f"s_add_u32 s{sT0}, s{sT0}, s{sT1}")
        k.op(f"s_lshl_b32 s{sT1}, s{sTT}, 7")
        k.op(f"s_add_u32 s{sT0}, s{sT0}, s{sT1}")
        k.op(f"s_add_u32 s{sT0}, s{sT0}, {Y_OFF}")
        k.op(f"s_mul_i32 s{sT1}, s{sW}, 2080")
        k.op(f"s_add_u32 m0, s{sT1}, {YT}")
        k.op(f"s_add_u32 s{sT2}, s{sT0}, {8*4096 - 1040}")
        k.vm(f"buffer_load_dwordx4 v8, s[{rWS}:{rWS+3}], s{sT0} offen sc1 lds", "ey")
        k.vm(f"buffer_load_dwordx4 v8, s[{rWS}:{rWS+3}], s{sT2} offen offset:1040 sc1 lds", "ey")
    RROW = 272; RW = 64 * RROW
    k.op("v_and_b32 v11, 31, v0")
    k.op(f"v_mul_u32_u24 v11, {RROW}, v11")
    k.op("v_lshrrev_b32 v12, 5, v0")
    k.op("v_lshl_add_u32 v11, v12, 4, v11")
    k.op(f"s_mul_i32 s{sT0}, s{sW}, {RW}")
    k.op(f"s_add_u32 s{sT0}, s{sT0}, {RED}")
    k.op(f"v_add_u32 v11, s{sT0}, v11")
    first = set()
    def mf(ks, dt2, e):
        t = 2 * dt2 + e
        acc = vr(vA2 + 16 * t, 16)
        cin = acc if t in first else "0"
        first.add(t)
        hb = hreg(ks, e)
        k.op(f"v_mfma_f32_32x32x16_bf16 {acc}, {ar(8*ks+4*dt2,4)}, {vr(hb,4)}, {cin}")
    LASTK = 24
    YSIG, YPOLL, YLOAD = (3, 14, 22) if 'ysmem' in OPT else (3, 17, 23)
    xfill = []
    for ps in range(2):
        X = 112 + 16 * ps; N = X + 8; T = 144 + 8 * ps
        for q in range(4): xfill.append(("op", f"v_accvgpr_read_b32 v{T+q}, a{224+4*ps+q}"))
        xfill.append(("op", f"v_accvgpr_read_b32 v{T+4}, a{232+2*ps}"))
        xfill.append(("op", f"v_accvgpr_read_b32 v{T+5}, a{233+2*ps}"))
        for q in range(4):
            xfill.append(("op", f"v_lshlrev_b32 v{X+2*q}, 16, v{T+q}"))
            xfill.append(("op", f"v_and_b32 v{X+2*q+1}, s{sMASK}, v{T+q}"))
        for q in range(8): xfill.append(("op", f"v_fma_f32 v{N+q}, v{X+q}, v{T+4}, v{T+5}"))
        for q in range(8): xfill.append(("op", f"v_mov_b32 v{160+8*ps+q}, 0"))
    def hl(kn, e):
        k.vm(f"buffer_load_dwordx4 {vr(hreg(kn, e),4)}, v1, s[{rWS}:{rWS+3}], s{76+e} offen offset:{(kn%4)*1024}{'' if 'hplain' in OPT else ' sc1'}", f"h{kn}")
    for ks in range(LASTK):
        if ks == YSIG:
            k.wait(vm="yst")
            k.op("s_barrier")
            signal(k, 9, 8)
            stamp(k, "c_sig")
        stamp(k, f"w_{ks}_")
        k.wait(vm=f"h{ks}", lg=[f"wr{ks}_1_1"] if ks >= WD_KS else [])
        if ks % 2 == 0: stamp(k, f"z_{ks}")
        else: stamp(k, f"q_{ks}")
        m = 0
        for dt2 in range(2):
            for e in range(2):
                mf(ks, dt2, e)
                todo = []
                if ks == 2: todo = {1: [(8, 0), (8, 1)], 3: [(9, 0), (9, 1)]}.get(m, [])
                elif ks == 3: todo = {1: [(10, 0), (10, 1)], 3: [(11, 0), (11, 1)]}.get(m, [])
                elif ks >= 4 and ks + 8 < 28 and m >= 2: todo = [(ks + 8, m - 2)]
                for kn, e2 in todo:
                    if kn % 4 == 0 and e2 == 0: g2_hbase(k, kn // 4)
                    hl(kn, e2)
                if ks < WD_KS: emit(k, [wr1[4 * ks + m]])
                if ks >= 6 and xfill and m < 2: emit(k, [xfill.pop(0) for _ in range(min(2, len(xfill)))])
                if m == 3 and ks == YPOLL and 'ysmem' in OPT: k.op(f"s_load_dword s{sU2}, s[{sPWS}:{sPWS+1}], s{sU1}")
                if m == 3 and ks == 19 and 'ysmem' not in OPT:
                    k.op(f"v_mov_b32 v9, s{sU1}")
                    k.vm(f"global_load_dword v10, v9, s[{sPWS}:{sPWS+1}] sc1", "ycnt")
                if m == 3 and ks == YLOAD: y_loads()
                m += 1
    assert not xfill
    k.wait(vm="h27", lg=["wr27_1_1"])
    k.op("s_barrier")
    def wr(t):
        dt2, e = divmod(t, 2)
        return [("lg", f"ds_write_b128 v11, {vr(vA2 + 16*t + 4*g, 4)} offset:{e*32*RROW + dt2*128 + g*32}", f"rw{t}{g}") for g in range(4)]
    for t in range(4):
        dt2, e = divmod(t, 2)
        for ks in range(LASTK, 28):
            mf(ks, dt2, e)
        if t == 2: k.op("s_nop 3")
        if t >= 2: emit(k, wr(t - 2))
    stamp(k, "d_loop")
    k.op(f"v_mov_b32 v10, {hex(f2u(-1.4426950408889634))}")
    k.op(f"v_mul_u32_u24 v8, {RROW}, v5")
    k.op("v_lshl_add_u32 v8, v6, 5, v8")
    k.op(f"v_add_u32 v8, {RED}, v8")
    k.op("v_mul_u32_u24 v9, 1040, v6")
    k.op("v_lshl_add_u32 v9, v5, 1, v9")
    k.op(f"v_add_u32 v9, {YT}, v9")
    emit(k, wr(2))
    emit(k, wr(3))
    k.op("v_mov_b32 v11, 1.0")
    k.wait(lg=k.lgq[-1])
    stamp(k, "t_wr")
    k.op("s_barrier")
    stamp(k, "t_bar")
    for ps in range(2):
        B = 16 + 64 * ps
        for w in range(4):
            for hh in range(2):
                k.lg(f"ds_read_b128 {vr(B + 8*w + 4*hh, 4)}, v8 offset:{w*RW + ps*32*RROW + hh*16}", f"p{ps}_{w}{hh}")
    for ps in range(2):
        B = 16 + 64 * ps if ps == 0 else 80
        N = 112 + 16 * ps + 8
        k.wait(lg=f"p{ps}_31")
        for q in range(4):
            k.op(f"v_pk_add_f32 {vr(B+2*q,2)}, {vr(B+2*q,2)}, {vr(B+8+2*q,2)}")
            k.op(f"v_pk_add_f32 {vr(B+16+2*q,2)}, {vr(B+16+2*q,2)}, {vr(B+24+2*q,2)}")
        for q in range(4):
            k.op(f"v_pk_add_f32 {vr(B+2*q,2)}, {vr(B+2*q,2)}, {vr(B+16+2*q,2)}")
        E = B + 16
        for q in range(4):
            k.op(f"v_pk_mul_f32 {vr(E+2*q,2)}, {vr(B+2*q,2)}, {vr(10,2)} op_sel_hi:[1,0]")
        for q in range(8): k.op(f"v_exp_f32 v{E+q}, v{E+q}")
        for q in range(4): k.op(f"v_pk_mul_f32 {vr(N+2*q,2)}, {vr(N+2*q,2)}, {vr(B+2*q,2)}")
        for q in range(4): k.op(f"v_pk_add_f32 {vr(E+2*q,2)}, {vr(E+2*q,2)}, {vr(10,2)} op_sel:[0,1] op_sel_hi:[1,1]")
        for q in range(8): k.op(f"v_rcp_f32 v{E+q}, v{E+q}")
        k.op("s_nop 0")
        for q in range(4): k.op(f"v_pk_mul_f32 {vr(N+2*q,2)}, {vr(N+2*q,2)}, {vr(E+2*q,2)}")
    stamp(k, "t_silu")
    k.wait(vm="ey")
    k.op("s_barrier")
    stamp(k, "t_ey")
    for ps in range(2):
        for e in range(8):
            if len(k.lgq) >= 14: k.wait(lg=k.lgq[3])
            k.lg(f"ds_read_u16_d16_hi v{160+8*ps+e}, v9 offset:{e*128 + ps*64}", f"y{ps}_{e}")
    for ps in range(2):
        X = 112 + 16 * ps; N = X + 8; Yr = 160 + 8 * ps; T = 144 + 8 * ps
        k.wait(lg=f"y{ps}_7")
        for q in range(4): k.op(f"v_pk_fma_f32 {vr(N+2*q,2)}, {vr(N+2*q,2)}, {vr(Yr+2*q,2)}, {vr(X+2*q,2)}")
        for q in range(4): k.op(f"v_cvt_pk_bf16_f32 v{T+q}, v{N+2*q}, v{N+2*q+1}")
        k.vm(f"buffer_store_dwordx4 {vr(T,4)}, v7, s[{rOUT}:{rOUT+3}], s{78+ps} offen{' sc1' if 'outsc1' in OPT else '' if 'outplain' in OPT else ' nt'}", "ost")
    stamp(k, "d_end")

PP_ROW = 900
PP_K = 0
PP_V = 67 * PP_ROW + 4
def prepass(k):
    if "ppst" in OPT: k.op("s_memtime s[8:9]")
    k.op(f"s_sub_u32 s{sT0}, s{sSLOT}, 28")
    k.op(f"s_lshl_b32 s{sT0}, s{sT0}, 3")
    k.op(f"s_add_u32 s{sI}, s{sT0}, s{sXCD}")
    k.op("v_lshlrev_b32 v1, 4, v0")
    k.op("s_waitcnt lgkmcnt(0)")
    srd(k, rWS, sPWS, (16 << 20) if (STAMPS and 'leak' not in OPT) else WS_USED)
    lab = k.newlabel("Lnolead")
    k.op(f"s_or_b32 s{sT0}, s{sI}, s{sW}")
    k.op(f"s_cmp_lg_u32 s{sT0}, 0")
    k.op(f"s_cbranch_scc1 {lab}")
    k.op("v_lshlrev_b32 v2, 7, v0")
    k.op(f"v_add_u32 v2, {CNT_OFF}, v2")
    k.op("v_mov_b32 v3, 0")
    k.op("s_mov_b32 exec_hi, 0")
    k.op(f"global_store_dword v2, v3, s[{sPWS}:{sPWS+1}] sc1")
    k.op("s_waitcnt vmcnt(0)")
    k.op("v_mov_b32 v2, 1")
    k.op("s_mov_b64 exec, 1")
    k.op(f"global_store_dword v3, v2, s[{sPDBG}:{sPDBG+1}] sc1")
    k.op("s_mov_b64 exec, -1")
    k.label(lab)
    if "ppf" in OPT:
        k.op(f"s_bitcmp1_b32 s{sW}, 1")
        k.op(f"s_cselect_b32 s{rX}, s{sPWU}, s{sPWG}")
        k.op(f"s_cselect_b32 s{rX+1}, s{sPWU+1}, s{sPWG+1}")
        k.op(f"s_and_b32 s{rX+1}, s{rX+1}, 0xffff")
        k.op(f"s_mov_b32 s{rX+2}, {D*F*2}")
        k.op(f"s_mov_b32 s{rX+3}, 0x20000")
        k.op(f"s_sub_u32 s{sT0}, s{sSLOT}, 28")
        k.op(f"s_mul_i32 s{sT0}, s{sT0}, 224")
        k.op(f"s_and_b32 s{sT1}, s{sW}, 1")
        k.op(f"s_lshl_b32 s{sT1}, s{sT1}, 7")
        k.op(f"s_add_u32 s{sT0}, s{sT0}, s{sT1}")
        k.op(f"s_and_b32 s{sT1}, s{sXCD}, 1")
        k.op(f"s_mul_i32 s{sT1}, s{sT1}, 1792")
        k.op(f"s_mov_b32 s{sT2}, {(1 << 32) // 14 + 1}")
        for rnd in range(2):
            k.op(f"v_add_u32 v2, s{sT0}, v0")
            if rnd: k.op("v_add_u32 v2, 64, v2")
            k.op(f"v_mul_hi_u32 v3, v2, s{sT2}")
            k.op("v_mul_u32_u24 v4, 14, v3")
            k.op("v_sub_u32 v4, v2, v4")
            k.op("v_mul_u32_u24 v3, 3584, v3")
            k.op("v_lshl_add_u32 v3, v4, 7, v3")
            k.vm(f"buffer_load_dword a250, v3, s[{rX}:{rX+3}], s{sT1} offen", "pf")
    srd(k, rK, sPK, S * D * 2)
    srd(k, rV, sPV, S * D * 2)
    srd(k, rSK, sPSK, D * 4 * 2)
    k.op("s_mov_b32 exec_hi, 0x00ffffff")
    k.op(f"s_lshl_b32 s{sT0}, s{sI}, 6")
    k.op(f"s_add_u32 s{sT0}, s{sT0}, s{sW}")
    k.op(f"s_sub_u32 s{sT1}, s{sT0}, 3")
    k.op(f"s_mul_i32 s{sT1}, s{sT1}, 896")
    k.op(f"s_mul_i32 s{sT2}, s{sW}, {PP_ROW}")
    k.op(f"s_add_u32 m0, s{sT2}, {PP_K}")
    k.op(f"v_add_u32 v2, s{sT1}, v1")
    for n in range(17):
        if n == 16:
            lab = k.newlabel("Lpk")
            k.op(f"s_cmp_eq_u32 s{sW}, 3")
            k.op(f"s_cbranch_scc1 {lab}")
            k.op(f"buffer_load_dwordx4 v2, s[{rK}:{rK+3}], 0 offen lds")
            k.label(lab)
        else:
            k.vm(f"buffer_load_dwordx4 v2, s[{rK}:{rK+3}], 0 offen lds", "k")
            k.op(f"s_add_u32 m0, m0, {4*PP_ROW}")
            k.op(f"v_add_u32 v2, {4*896}, v2")
    k.op(f"s_mul_i32 s{sT1}, s{sT0}, 896")
    k.op(f"s_add_u32 m0, s{sT2}, {PP_V}")
    k.op("s_nop 0")
    for n in range(16):
        k.vm(f"buffer_load_dwordx4 v1, s[{rV}:{rV+3}], s{sT1} offen lds", "v")
        if n < 15:
            k.op(f"s_add_u32 m0, m0, {4*PP_ROW}")
            k.op(f"s_add_u32 s{sT1}, s{sT1}, {4*896}")
    k.op("s_mov_b32 exec_hi, -1")
    k.op(f"s_mov_b32 s{sMASK}, 0xffff0000")
    k.op("v_and_b32 v2, 3, v0")
    k.op("v_lshrrev_b32 v3, 5, v0")
    k.op("v_lshl_add_u32 v2, v3, 2, v2")
    k.op("v_bfe_u32 v3, v0, 2, 3")
    k.op(f"v_mul_u32_u24 v4, {8*PP_ROW}, v2")
    k.op("v_lshl_add_u32 v4, v3, 2, v4")
    k.op(f"s_lshl_b32 s{sT0}, s{sW}, 5")
    k.op(f"v_add_u32 v4, s{sT0}, v4")
    k.op(f"v_add_u32 v8, {PP_V}, v4")
    k.op("v_lshlrev_b32 v5, 4, v3")
    k.op(f"s_lshl_b32 s{sT0}, s{sW}, 7")
    k.op(f"v_add_u32 v5, s{sT0}, v5")
    k.op("v_lshlrev_b32 v6, 13, v3")
    k.op(f"s_lshl_b32 s{sT0}, s{sW}, 16")
    k.op(f"v_add_u32 v6, s{sT0}, v6")
    k.op("v_lshlrev_b32 v7, 4, v2")
    k.op("v_sub_u32 v6, v6, v7")
    k.op(f"s_lshl_b32 s{sT0}, s{sI}, 7")
    k.op(f"s_sub_u32 s{sT0}, {U_OFF + (2047 - 7) * 2}, s{sT0}")
    k.op(f"v_add_u32 v6, s{sT0}, v6")
    for it in range(7):
        k.vm(f"buffer_load_dwordx4 {vr(100 + 4*it, 4)}, v5, s[{rSK}:{rSK+3}], 0 offen offset:{it*512}", "sk")
    if "ppst" in OPT: k.op("s_memtime s[10:11]")
    k.wait_all()
    if "ppst" in OPT: k.op("s_memtime s[12:13]")
    k.op("s_barrier")
    RAW = [16, 176]
    def reads(it):
        base = RAW[it % 2]; coff = it * 128
        for j in range(11):
            k.lg(f"ds_read_b32 v{base+j}, v4 offset:{PP_K + j*PP_ROW + coff}", f"r{it}")
        for j in range(8):
            k.lg(f"ds_read_b32 v{base+11+j}, v8 offset:{j*PP_ROW + coff}", f"r{it}")
    reads(0)
    for it in range(7):
        KR = RAW[it % 2]; VR = KR + 11
        sk = 100 + 4 * it
        k.op(f"v_lshlrev_b32 v64, 16, v{sk}");   k.op(f"v_lshlrev_b32 v65, 16, v{sk+2}")
        k.op(f"v_and_b32 v66, 0xffff0000, v{sk}"); k.op(f"v_and_b32 v67, 0xffff0000, v{sk+2}")
        k.op(f"v_lshlrev_b32 v68, 16, v{sk+1}"); k.op(f"v_lshlrev_b32 v69, 16, v{sk+3}")
        k.op(f"v_and_b32 v70, 0xffff0000, v{sk+1}"); k.op(f"v_and_b32 v71, 0xffff0000, v{sk+3}")
        k.wait(lg=f"r{it}")
        for j in range(11):
            k.op(f"v_lshlrev_b32 v{40+2*j}, 16, v{KR+j}")
            k.op(f"v_and_b32 v{41+2*j}, s{sMASK}, v{KR+j}")
        for j in range(8):
            k.op(f"v_lshlrev_b32 v{72+2*j}, 16, v{VR+j}")
            k.op(f"v_and_b32 v{73+2*j}, s{sMASK}, v{VR+j}")
        if it + 1 < 7: reads(it + 1)
        for t in range(8):
            k.op(f"v_pk_mul_f32 {vr(130+2*t,2)}, {vr(40+2*(t+3),2)}, {vr(64,2)}")
        for j in range(1, 4):
            for t in range(8):
                o = 130 + 2 * t
                k.op(f"v_pk_fma_f32 {vr(o,2)}, {vr(40+2*(t+3-j),2)}, {vr(64+2*j,2)}, {vr(o,2)}")
        for t in range(8):
            o = 130 + 2 * t
            k.op(f"v_pk_mul_f32 {vr(o,2)}, {vr(o,2)}, {vr(72+2*t,2)}")
        O = 150 + 8 * (it % 2)
        for q in range(4):
            k.op(f"v_cvt_pk_bf16_f32 v{O+q}, v{130+2*(7-2*q)}, v{130+2*(6-2*q)}")
            k.op(f"v_cvt_pk_bf16_f32 v{O+4+q}, v{131+2*(7-2*q)}, v{131+2*(6-2*q)}")
        k.op(f"s_mov_b32 s{sT0}, {it * 64 * 4096}")
        k.op(f"s_mov_b32 s{sT1}, {it * 64 * 4096 + 4096}")
        k.vm(f"buffer_store_dwordx4 {vr(O,4)}, v6, s[{rWS}:{rWS+3}], s{sT0} offen sc1", "ust")
        k.vm(f"buffer_store_dwordx4 {vr(O+4,4)}, v6, s[{rWS}:{rWS+3}], s{sT1} offen sc1", "ust")
    if "ppst" in OPT: k.op("s_memtime s[14:15]")
    k.wait_all()
    if "ppst" in OPT: k.op("s_memtime s[72:73]")
    k.op("s_barrier")
    lab = k.newlabel("Lpsig")
    k.op(f"s_cmp_lg_u32 s{sW}, 0")
    k.op(f"s_cbranch_scc1 {lab}")
    k.op("v_mov_b32 v9, 0")
    spin_until(k, 9, 8, sPDBG, 1)
    k.label(lab)
    cnt_addr(k, 9, idx=UCNT)
    signal(k, 9, 8)
    if "ppst" in OPT:
        k.op("s_waitcnt vmcnt(0) lgkmcnt(0)")
        k.op("s_memtime s[74:75]")
        k.op("s_waitcnt lgkmcnt(0)")
        k.op("s_lshl_b32 s4, s2, 2"); k.op(f"s_add_u32 s4, s4, s{sW}"); k.op("s_lshl_b32 s4, s4, 7"); k.op(f"s_add_u32 s4, s4, {STAMP_OFF}")
        k.op("v_mov_b32 v1, 0"); k.op("s_mov_b64 exec, 1")
        for i, r in enumerate((8, 10, 12, 14, 72, 74)):
            k.op(f"v_mov_b32 v2, s{r}")
            k.op(f"buffer_store_dword v2, v1, s[{rWS}:{rWS+3}], s4 offen offset:{4*i}")
        k.op("s_mov_b64 exec, -1")

def kd(name, vgpr=512, acc=256):
    return f""".section .rodata,"a"
.p2align 6
.amdhsa_kernel {name}
  .amdhsa_next_free_vgpr {vgpr}
  .amdhsa_next_free_sgpr 102
  .amdhsa_accum_offset {acc}
  .amdhsa_group_segment_fixed_size 0
  .amdhsa_kernarg_size 104
  .amdhsa_user_sgpr_count 2
  .amdhsa_user_sgpr_kernarg_segment_ptr 1
  .amdhsa_system_sgpr_workgroup_id_x 1
  .amdhsa_float_denorm_mode_32 3
.end_amdhsa_kernel
"""

def build():
    k = K()
    prologue(k, 32768)
    start_main(k)
    gemm1_loop(k)
    gelu_phase(k)
    wr1 = conv_phase(k)
    gemm2_phase(k, wr1)
    for o in OPT:
        if o.startswith("cyc"):
            n = int(o[3:])
            k.op(f"s_add_u32 s10, s73, {n}")
            k.label("L_untilc")
            k.op("s_memtime s[8:9]")
            k.op("s_waitcnt lgkmcnt(0)")
            k.op("s_sub_u32 s11, s10, s8")
            k.op("s_cmp_gt_i32 s11, 0")
            k.op("s_cbranch_scc1 L_untilc")
        if o.startswith("until"):
            n = int(o[5:])
            k.op(f"s_add_u32 s10, s73, {n}")
            k.label("L_until")
            k.op("s_memrealtime s[8:9]")
            k.op("s_waitcnt lgkmcnt(0)")
            k.op("s_sub_u32 s11, s10, s8")
            k.op("s_cmp_gt_i32 s11, 0")
            k.op("s_cbranch_scc1 L_until")
        if o.startswith("delay"):
            n = int(o[5:])
            k.op("s_memtime s[8:9]")
            k.op("s_waitcnt lgkmcnt(0)")
            k.op(f"s_add_u32 s10, s8, {n}")
            k.label("L_delay")
            k.op("s_memtime s[8:9]")
            k.op("s_waitcnt lgkmcnt(0)")
            k.op("s_sub_u32 s11, s10, s8")
            k.op("s_cmp_gt_i32 s11, 0")
            k.op("s_cbranch_scc1 L_delay")
    stamp_flush(k)
    k.op("s_endpgm")
    k.label("L_pre")
    k.vmq = []; k.lgq = []
    prepass(k)
    k.label("L_exit")
    name = NAME + "_kernel"
    header = open("cdna_kernels/" + NAME + ".s.ref").read().split("; Override launch")[0]
    txt = header + f"; @launch grid=(256,1,1) block=(256,1,1) lds={LDS_TOTAL}\n"
    txt += '.amdgcn_target "amdgcn-amd-amdhsa--gfx950"\n.text\n'
    txt += f".globl {name}\n.p2align 8\n.type {name},@function\n{name}:\n"
    txt += k.text() + "s_endpgm\n" + kd(name)
    return txt

if __name__ == "__main__":
    if len(sys.argv) > 2 and sys.argv[2].startswith("stamps"):
        STAMPS = True
        if "=" in sys.argv[2]: STAMPSET = sys.argv[2].split("=")[1].split(",")
    if len(sys.argv) > 3: OPT.update(sys.argv[3].split(","))
    txt = build()
    if "noalign" not in OPT:
        import align
        txt = align.align(txt)
    check_hazards(txt)
    open(sys.argv[1], "w").write(txt)
    if STAMPS: print("stamps:", stamped)
```

```python
import sys, struct
from asmlib import *

NAME = "recurrent_scan__ssm_conv_h3__geglu_ffn__prompt"
S, D, F = 2048, 448, 1792
OPT = set()

H_OFF = 0
U_OFF = H_OFF + 64 * 112 * 1024
Y_OFF = U_OFF + D * 4096
ST_OFF = Y_OFF + D * 4096
CNT_OFF = ST_OFF + S * 8
WS_USED = CNT_OFF + 32 * 128
HCNT, YCNT, UCNT = 0, 16, 24

sPQ, sPK, sPV, sPSK, sPSSM, sPD, sPBX, sPWG = 16, 18, 20, 22, 24, 26, 28, 30
sPWU, sPWD, sPOUT, sPDBG = 32, 34, 36, 38
sPWS = 40
rX, rW, rWS, rWD, rSSM, rOUT, rD = 44, 48, 52, 56, 60, 64, 68
rK, rV, rSK = 48, 56, 60
sT0, sT1, sT2, sT3 = 4, 5, 6, 7
sW, sI, sJ, sWSO, sWM0, sSLOT, sXCD, sONES, sMASK, sWGM = 80, 81, 82, 83, 84, 85, 86, 87, 88, 89
sTT, sDT, sWDS, sWDM, sCH = 90, 91, 92, 93, 94
sHST = 95
sWDG = 75
sWDM4 = 42
sROT = 43
sHG = 74
sU0, sU1, sU2, sU3 = 96, 97, 98, 99

SLOT_SZ = 34048
XOFF = 17024
XS = SLOT_SZ
XROW = 912
SLOT = [0, SLOT_SZ, 2 * SLOT_SZ, 3 * SLOT_SZ]
LDS_TOTAL = 163840
HC_STRIDE = 4160
HC_CH = 4 * HC_STRIDE
UR_CH = 4608
WDST = 0
WD_KS = 14
WD_WAVE = WD_KS * 2048
def stg_const(s_):
    g = s_ >> 2
    return g * SLOT_SZ + (s_ & 3) * 2048 if g < 3 else 3 * SLOT_SZ + (s_ & 1) * 2048
HC = 3 * SLOT_SZ + 4 * 4096
UR = HC + 2 * HC_CH
XCH = HC
YT = UR + 2 * UR_CH
assert YT + 8320 <= LDS_TOTAL or True
YT = HC + 16384
RED = 0

vX = 16
vACC = 128

STAMPS = False
STAMP_OFF = 12 << 20
STAMPSET = None
POOL = [8, 10, 72, 18, 20, 22, 28, 16, 24, 26, 30, 32, 34, 36, 12, 14]
stamped = []
def stamp(k, name=""):
    if not STAMPS: return
    if STAMPSET is not None and not any((name == p[:-1]) if p.endswith("$") else name.startswith(p) for p in STAMPSET): return
    i = len(stamped)
    assert i < len(POOL)
    stamped.append(name)
    k.op(f"{'s_memrealtime' if 'rtst' in OPT else 's_memtime'} s[{POOL[i]}:{POOL[i]+1}]")
def stamp_flush_dbg(k):
    wg = int([o for o in OPT if o.startswith("dbgwg")][0][5:])
    lab = k.newlabel("Ldbg")
    k.op("s_waitcnt vmcnt(0) lgkmcnt(0)")
    k.op(f"s_cmp_lg_u32 s2, {wg}"); k.op(f"s_cbranch_scc1 {lab}")
    k.op(f"s_cmp_lg_u32 s{sW}, 0"); k.op(f"s_cbranch_scc1 {lab}")
    k.op("s_mov_b64 exec, 1")
    for i in range(1, len(stamped)):
        k.op(f"s_sub_u32 s4, s{POOL[i]}, s{POOL[0]}")
        k.op(f"v_mov_b32 v2, s4")
        k.op(f"v_mov_b32 v1, {4*i}")
        k.op(f"global_store_dword v1, v2, s[{sPDBG}:{sPDBG+1}]")
    k.op("s_mov_b64 exec, -1")
    k.label(lab)

def stamp_leak(k):
    KL = 3
    k.op("s_waitcnt vmcnt(0) lgkmcnt(0)")
    k.op(f"s_sub_u32 s4, s{POOL[1]}, s{POOL[0]}")
    k.op(f"s_mul_i32 s4, s4, {KL}")
    k.op("s_memtime s[6:7]")
    k.op("s_waitcnt lgkmcnt(0)")
    k.op("s_add_u32 s4, s4, s6")
    k.label("L_leak")
    k.op("s_memtime s[6:7]")
    k.op("s_waitcnt lgkmcnt(0)")
    k.op("s_sub_u32 s5, s4, s6")
    k.op("s_cmp_gt_i32 s5, 0")
    k.op("s_cbranch_scc1 L_leak")

def stamp_flush(k):
    if not STAMPS: return
    if "leak" in OPT: return stamp_leak(k)
    if any(o.startswith("dbgwg") for o in OPT): return stamp_flush_dbg(k)
    k.op("s_waitcnt vmcnt(0) lgkmcnt(0)")
    k.op("s_memrealtime s[42:43]")
    k.op("s_waitcnt lgkmcnt(0)")
    k.op("s_mov_b32 s101, s42")
    k.op("s_lshl_b32 s4, s2, 2")
    k.op(f"s_add_u32 s4, s4, s{sW}")
    k.op("s_lshl_b32 s4, s4, 7")
    k.op(f"s_add_u32 s4, s4, {STAMP_OFF}")
    k.op("v_mov_b32 v1, 0")
    k.op("s_mov_b64 exec, 1")
    for i in range(len(stamped)):
        k.op(f"v_mov_b32 v2, s{POOL[i]}")
        k.op(f"buffer_store_dword v2, v1, s[{rWS}:{rWS+3}], s4 offen offset:{4*i}")
    k.op("v_mov_b32 v2, s100")
    k.op(f"buffer_store_dword v2, v1, s[{rWS}:{rWS+3}], s4 offen offset:{4*30}")
    k.op("v_mov_b32 v2, s101")
    k.op(f"buffer_store_dword v2, v1, s[{rWS}:{rWS+3}], s4 offen offset:{4*31}")
    k.op("s_mov_b64 exec, -1")

def f2u(x):
    return struct.unpack("<I", struct.pack("<f", x))[0]

def srd(k, r, ptr, nbytes):
    k.op(f"s_mov_b32 s{r}, s{ptr}")
    k.op(f"s_and_b32 s{r+1}, s{ptr+1}, 0xffff")
    k.op(f"s_mov_b32 s{r+2}, {nbytes}")
    k.op(f"s_mov_b32 s{r+3}, 0x20000")

def emit(k, items):
    for it in items:
        if it[0] == "op": k.op(it[1])
        elif it[0] == "vm": k.vm(it[1], it[2])
        elif it[0] == "lg": k.lg(it[1], it[2])
        elif it[0] == "fn": it[1]()

def capture(fn, *args):
    t = K()
    fn(t, *args)
    assert not t.vmq and not t.lgq
    return [("op", l) for l in t.L]

def interleave(k, main, fill, every, start=0):
    fill = list(fill)
    for n, it in enumerate(main):
        emit(k, [it])
        if fill and n >= start and (n - start) % every == every - 1:
            emit(k, fill.pop(0))
    for g in fill: emit(k, g)

def cnt_addr(k, vreg, idx_sgpr=None, idx=0):
    if idx_sgpr is None:
        k.op(f"v_mov_b32 v{vreg}, {CNT_OFF + idx * 128}")
    else:
        k.op(f"s_lshl_b32 s{sT0}, s{idx_sgpr}, 7")
        k.op(f"s_add_u32 s{sT0}, s{sT0}, {CNT_OFF + idx * 128}")
        k.op(f"v_mov_b32 v{vreg}, s{sT0}")

def spin_until(k, vaddr, vtmp, base, target, cmp="ge"):
    lab, done = k.newlabel("Lspin"), k.newlabel("Lspun")
    if "cntspin" in OPT:
        slot = {32: 4, 14: 5, 1: 7}[target] if vaddr != 9 or target != 32 else 4
        if getattr(k, "spin_tag", None): slot = k.spin_tag
        k.op(f"v_mov_b32 v{vtmp}, 1")
        k.op("s_mov_b64 exec, 1")
        k.op(f"v_mov_b32 v190, {4*slot}")
        k.op(f"global_atomic_add v190, v{vtmp}, s[{sPDBG}:{sPDBG+1}]")
        k.op("s_mov_b64 exec, -1")
    k.op(f"s_mov_b32 s{sT1}, 0x40000")
    k.label(lab)
    k.op(f"global_load_dword v{vtmp}, v{vaddr}, s[{base}:{base+1}] sc1")
    k.op("s_waitcnt vmcnt(0)")
    k.op(f"v_readfirstlane_b32 s{sT2}, v{vtmp}")
    k.op(f"s_sub_u32 s{sT1}, s{sT1}, 1")
    k.op(f"s_cmp_ge_u32 s{sT2}, {target}")
    k.op(f"s_cbranch_scc1 {done}")
    k.op("s_sleep %d" % int(([o for o in OPT if o.startswith("slp")] or ["slp1"])[0][3:]))
    k.op(f"s_cmp_lg_u32 s{sT1}, 0")
    k.op(f"s_cbranch_scc1 {lab}")
    k.label(done)
    k.vmq = []

def check_or_spin(k, vval, vaddr, base, target):
    done = k.newlabel("Lok")
    k.op(f"v_readfirstlane_b32 s{sT2}, v{vval}")
    k.op(f"s_cmp_ge_u32 s{sT2}, {target}")
    k.op(f"s_cbranch_scc1 {done}")
    q = list(k.vmq)
    spin_until(k, vaddr, vval, base, target)
    k.vmq = q
    k.label(done)

def signal(k, vaddr, vone):
    lab = k.newlabel("Lsig")
    k.op(f"s_cmp_lg_u32 s{sW}, 0")
    k.op(f"s_cbranch_scc1 {lab}")
    k.op(f"v_mov_b32 v{vone}, 1")
    k.op("s_mov_b64 exec, 1")
    k.op(f"global_atomic_add v{vaddr}, v{vone}, s[{sPWS}:{sPWS+1}] sc1")
    k.op("s_mov_b64 exec, -1")
    k.label(lab)

def prologue(k, codebytes):
    if any(o.startswith("cyc") for o in OPT):
        k.op("s_memtime s[72:73]")
        k.op("s_waitcnt lgkmcnt(0)")
        k.op("s_mov_b32 s73, s72")
    if any(o.startswith("until") for o in OPT):
        k.op("s_memrealtime s[72:73]")
        k.op("s_waitcnt lgkmcnt(0)")
        k.op("s_mov_b32 s73, s72")
    k.op("s_getpc_b64 s[12:13]")
    k.label("L_code_pc")
    k.op("s_load_dwordx16 s[16:31], s[0:1], 0")
    k.op("s_load_dwordx8 s[32:39], s[0:1], 64")
    k.op("s_load_dwordx2 s[40:41], s[0:1], 96")
    k.op("v_lshrrev_b32 v1, 6, v0")
    k.op("v_and_b32 v0, 63, v0")
    k.op("s_cmp_ge_u32 s2, 256")
    k.op(f"v_readfirstlane_b32 s{sW}, v1")
    k.op("s_cbranch_scc1 L_exit")
    if "nocodepf" not in OPT:
        k.op("s_lshr_b32 s14, s2, 3")
        k.op("s_lshl_b32 s14, s14, 2")
        k.op(f"s_add_u32 s14, s14, s{sW}")
        k.op("s_mul_i32 s14, s14, 384")
        k.op("v_lshlrev_b32 v2, 7, v0")
        k.op("v_add_u32 v2, s14, v2")
        k.op("v_min_u32 v2, L_code_end-L_code_pc-4, v2")
        k.op("s_mov_b64 exec, 7")
        k.vm("global_load_dword a250, v2, s[12:13]", "code")
        k.op("s_mov_b64 exec, -1")
        assert codebytes <= 128 * 384
    if STAMPS and not any(o.startswith("dbgwg") for o in OPT) and "leak" not in OPT:
        k.op("s_memrealtime s[42:43]")
        k.op("s_waitcnt lgkmcnt(0)")
        k.op("s_mov_b32 s100, s42")
    k.op(f"s_and_b32 s{sXCD}, s2, 7")
    k.op(f"s_lshr_b32 s{sSLOT}, s2, 3")
    k.op(f"s_cmp_ge_u32 s{sSLOT}, 28")
    k.op("s_cbranch_scc1 L_pre")

def wdma(c, e):
    out = []
    if e % 4 == 0:
        out.append(("op", f"s_add_u32 m0, s{sWM0}, {SLOT[c % 4] + e * 1056}"))
    out.append(("op", f"s_add_u32 s{sT3}, s{sWSO}, {(64 * c + e) * 3584 - (e % 4) * 1056}"))
    out.append(("vm", f"buffer_load_dwordx4 v2, s[{rW}:{rW+3}], s{sT3} offen offset:{(e % 4) * 1056} lds", f"w{c}"))
    return out

def start_main(k):
    k.op(f"s_mul_i32 s{sT0}, s{sSLOT}, 37")
    k.op(f"s_lshr_b32 s{sT0}, s{sT0}, 8")
    k.op(f"s_mul_i32 s{sT1}, s{sT0}, 7")
    k.op(f"s_sub_u32 s{sDT}, s{sSLOT}, s{sT1}")
    k.op(f"s_lshr_b32 s{sT2}, s{sXCD}, 1")
    k.op(f"s_lshl_b32 s{sT2}, s{sT2}, 2")
    k.op(f"s_add_u32 s{sI}, s{sT2}, s{sT0}")
    k.op(f"s_lshl_b32 s{sTT}, s{sXCD}, 2")
    k.op(f"s_add_u32 s{sTT}, s{sTT}, s{sT0}")
    k.op("v_lshlrev_b32 v1, 4, v0")
    k.op(f"s_lshl_b32 s{sU0}, s{sI}, 2")
    k.op(f"s_add_u32 s{sU0}, s{sU0}, s{sW}")
    k.op(f"s_mul_i32 s{sU0}, s{sU0}, {32*896}")
    k.op(f"s_mul_i32 s{sU1}, s{sW}, {32*XROW}")
    k.op(f"s_add_u32 s{sU1}, s{sU1}, {XS}")
    k.op(f"s_mul_i32 s{sU2}, s{sDT}, 9")
    k.op(f"s_lshr_b32 s{sU2}, s{sU2}, 2")
    k.op("v_lshrrev_b32 v242, 5, v0")
    k.op("v_mul_u32_u24 v240, 896, v242")
    k.op("v_lshlrev_b32 v242, 3, v242")
    k.op("v_and_b32 v243, 31, v0")
    k.op("v_xor_b32 v243, v243, v242")
    k.op("v_lshl_add_u32 v240, v243, 4, v240")
    stamp(k, "b_pre")
    k.op("s_waitcnt lgkmcnt(0)")
    if "tlb" in OPT:
        for i, p in enumerate((sPWG, sPWU, sPWD, sPSSM, sPOUT, sPD)):
            k.op(f"s_load_dword s{96 if False else 100 if not STAMPS else 15}, s[{p}:{p+1}], 0") if False else None
        for p in (sPWG, sPWU, sPWD, sPSSM, sPOUT):
            k.op(f"s_load_dword s15, s[{p}:{p+1}], 0x0")
        for off in (H_OFF, 2 << 20, 4 << 20, 6 << 20, U_OFF + (1 << 20), Y_OFF + (1 << 20)):
            k.op(f"s_mov_b32 s14, {off}")
            k.op(f"s_load_dword s15, s[{sPWS}:{sPWS+1}], s14")
    srd(k, rX, sPQ, S * D * 2)
    stamp(k, "start")
    if "earlypf" in OPT:
        k.op("s_mov_b32 exec_hi, 0")
        k.vm(f"buffer_load_dword a250, v5, s[{rW}:{rW+3}], s{sWDG} offen", "pf")
    def xdma(part):
        out = [("op", f"s_mul_i32 s{sT1}, s{sU2}, {1040 if part == 0 else 784}"),
               ("op", f"s_mul_i32 s{sT2}, s{sU2}, 1792"),
               ("op", f"s_add_u32 m0, s{sT1}, s{sU1 if part == 0 else sU3}"),
               ("op", f"s_add_u32 s{sT2}, s{sT2}, s{sU0}"),
               ("op", f"s_add_u32 s{sU2}, s{sU2}, 1"),
               ("vm", f"buffer_load_dwordx4 v{240 + part}, s[{rX}:{rX+3}], s{sT2} offen {'offset:0 ' if False else ''}lds", f"x{part}"),
               ("op", f"s_and_b32 s{sU2}, s{sU2}, 15")]
        return out
    k.op(f"s_add_u32 s{sU3}, s{sU1}, 16640")
    k.op(f"s_mov_b32 s{sT0}, 16")
    lx = k.newlabel("Lxd")
    k.label(lx)
    for it in xdma(0): k.op(it[1])
    k.op(f"s_sub_u32 s{sT0}, s{sT0}, 1")
    k.op(f"s_cmp_lg_u32 s{sT0}, 0")
    k.op(f"s_cbranch_scc1 {lx}")
    for n in range(16): k.vmq.append("x0")
    k.op("v_cmp_le_u32 vcc, 24, v0")
    k.op(f"v_mov_b32 v242, {896 - 24*16}")
    k.op("v_lshlrev_b32 v241, 4, v0")
    k.op("v_cndmask_b32 v242, 0, v242, vcc")
    k.op("v_add_u32 v241, v241, v242")
    k.op(f"s_and_b32 s{sT0}, s{sXCD}, 1")
    k.op(f"s_mul_i32 s{sJ}, s{sT0}, 7")
    k.op(f"s_add_u32 s{sJ}, s{sJ}, s{sDT}")
    k.op("v_lshrrev_b32 v6, 4, v0")
    k.op("v_lshlrev_b32 v6, 6, v6")
    k.op("v_bfe_u32 v7, v0, 1, 3")
    k.op("v_add_u32 v6, v6, v7")
    k.op("v_mul_u32_u24 v6, 3584, v6")
    k.op("v_and_b32 v7, 1, v0")
    k.op("v_lshl_add_u32 v5, v7, 7, v6")
    k.op(f"s_and_b32 s{sT0}, s{sI}, 3")
    k.op(f"s_lshl_b32 s{sT0}, s{sT0}, 1")
    k.op(f"s_lshr_b32 s{sWDG}, s{sW}, 1")
    k.op(f"s_add_u32 s{sT0}, s{sT0}, s{sWDG}")
    k.op(f"s_mul_i32 s{sT0}, s{sT0}, {8*3584}")
    k.op(f"s_lshl_b32 s{sWDG}, s{sJ}, 8")
    k.op(f"s_add_u32 s{sWDG}, s{sWDG}, s{sT0}")
    k.op(f"s_bitcmp1_b32 s{sW}, 0")
    k.op(f"s_cselect_b32 s{rW}, s{sPWU}, s{sPWG}")
    k.op(f"s_cselect_b32 s{rW+1}, s{sPWU+1}, s{sPWG+1}")
    k.op(f"s_and_b32 s{rW+1}, s{rW+1}, 0xffff")
    k.op(f"s_mov_b32 s{rW+2}, {D*F*2}")
    k.op(f"s_mov_b32 s{rW+3}, 0x20000")
    k.op(f"s_add_u32 s{sU0}, s{sU0}, 512")
    if "w0first" not in OPT:
        k.op("s_mov_b32 exec_hi, 0xffff")
        for n in range(8): emit(k, xdma(1))
        k.op("s_mov_b32 exec_hi, -1")
    stamp(k, "a_xiss")
    k.op("v_lshrrev_b32 v10, 4, v0")
    k.op(f"v_mul_u32_u24 v2, {16*3584}, v10")
    k.op("v_and_b32 v11, 15, v0")
    k.op("v_lshl_add_u32 v2, v11, 4, v2")
    k.op(f"s_lshr_b32 s{sT0}, s{sW}, 1")
    k.op(f"s_lshl_b32 s{sT0}, s{sT0}, 3")
    k.op(f"s_mul_i32 s{sWSO}, s{sT0}, 3584")
    k.op(f"s_lshl_b32 s{sT1}, s{sJ}, 8")
    k.op(f"s_add_u32 s{sWSO}, s{sWSO}, s{sT1}")
    k.op(f"s_mul_i32 s{sWM0}, s{sT0}, 1056")
    k.op(f"s_and_b32 s{sT1}, s{sW}, 1")
    k.op(f"s_mul_i32 s{sT1}, s{sT1}, {XOFF}")
    k.op(f"s_add_u32 s{sWM0}, s{sWM0}, s{sT1}")
    if "w0first" in OPT:
        for e in range(8): emit(k, wdma(0, e))
    stamp(k, "a_issued")
    k.op(f"s_mul_i32 s{sWGM}, s{sXCD}, 28")
    k.op(f"s_add_u32 s{sWGM}, s{sWGM}, s{sSLOT}")
    srd(k, rWS, sPWS, (16 << 20) if (STAMPS and 'leak' not in OPT) else WS_USED)
    srd(k, rWD, sPWD, F * D * 2)
    srd(k, rSSM, sPSSM, D * S * 2)
    srd(k, rOUT, sPOUT, S * D * 2)
    srd(k, rD, sPD, D * 2)
    k.op("v_and_b32 v11, 1, v10")
    k.op(f"v_mul_u32_u24 v3, {XOFF}, v11")
    k.op("v_lshrrev_b32 v11, 5, v0")
    k.op("v_lshlrev_b32 v12, 3, v11")
    k.op("v_bfe_u32 v13, v0, 2, 2")
    k.op("v_add_u32 v12, v12, v13")
    k.op("v_mul_u32_u24 v12, 1056, v12")
    k.op("v_add_u32 v3, v3, v12")
    k.op("v_and_b32 v13, 3, v0")
    k.op("v_lshl_add_u32 v3, v13, 3, v3")
    k.op(f"v_add_u32 v14, {2*SLOT_SZ}, v3")
    k.op("v_and_b32 v13, 31, v0")
    k.op("v_lshrrev_b32 v12, 1, v13")
    k.op("v_and_b32 v13, 1, v13")
    k.op("v_mul_u32_u24 v242, 1040, v12")
    k.op("v_lshl_add_u32 v242, v11, 4, v242")
    k.op("v_lshl_add_u32 v242, v13, 9, v242")
    k.op(f"v_add_u32 v242, s{sU1}, v242")
    k.op("v_lshlrev_b32 v15, 7, v13")
    k.op("v_sub_u32 v243, v242, v15")
    k.op("v_add_u32 v242, v242, v15")
    k.op("v_mul_u32_u24 v244, 784, v12")
    k.op("v_lshl_add_u32 v244, v11, 4, v244")
    k.op("v_mul_u32_u24 v13, 384, v13")
    k.op("v_add_u32 v244, v244, v13")
    k.op(f"v_add_u32 v244, s{sU3}, v244")
    k.op(f"s_mov_b32 s{sONES}, 0x3f803f80")
    k.op(f"s_mov_b32 s{sMASK}, 0xffff0000")
    for a in range(8): k.op(f"v_mov_b32 v{6+a}, 0")
    def st(n):
        return [("op", f"v_dot2_f32_bf16 v{6 + n % 4}, v{vX+n}, s{sONES}, v{6 + n % 4}"),
                ("op", f"v_dot2_f32_bf16 v{10 + n % 4}, v{vX+n}, v{vX+n}, v{10 + n % 4}")]
    def xrd(ks):
        if ks < 16: return ("lg", f"ds_read_b128 {vr(vX + 4 * ks, 4)}, v{242 + ((ks >> 2) & 1)} offset:{32 * ks}", f"x{ks}r")
        return ("lg", f"ds_read_b128 {vr(vX + 4 * ks, 4)}, v244 offset:{32 * (ks - 16)}", f"x{ks}r")
    k.wait(vm="x0")
    stamp(k, "a_xarr")
    for ks in range(16): emit(k, [xrd(ks)])
    rest = []
    for n in range(8 if "w0first" not in OPT else 16):
        g = xdma(1)
        rest.append([("op", "s_mov_b32 exec_hi, 0xffff")] + g + [("op", "s_mov_b32 exec_hi, -1")])
    if "w0first" not in OPT: rest += [wdma(0, e) for e in range(8)]
    for ks in range(16):
        k.wait(lg=f"x{ks}r")
        for q in range(4): emit(k, st(4 * ks + q))
        emit(k, rest[ks])
    stamp(k, "a_p1")
    k.wait(vm="x1")
    for ks in range(16, 28): emit(k, [xrd(ks)])
    if "nopf" not in OPT:
        k.op(f"s_add_u32 s{sWDG}, s{sWDG}, {64*3584}")
        if "pf1" in OPT: k.vm(f"buffer_load_dword a250, v5, s[{rW}:{rW+3}], s{sWDG} offen", "pf")
    k.wait(lg="x27r")
    k.op("v_mov_b32 v15, v5")
    k.op("s_barrier")
    stamp(k, "a_xreg")
    main = []
    for n in range(64, 112): main += st(n)
    fill = [wdma(1, e) for e in range(8)] if "w1late2" not in OPT else []
    if "w1late" in OPT and "nopf" not in OPT:
        fill.append([("op", f"s_add_u32 s{sWDG}, s{sWDG}, {128*3584}"),
                     ("vm", f"buffer_load_dword a250, v15, s[{rW}:{rW+3}], s{sWDG} offen", "pf")])
    if "nopf" not in OPT:
        fill.append([("op", f"s_add_u32 s{sWDG}, s{sWDG}, {256*3584}"), ("op", "s_mov_b32 exec_hi, 0"),
                        ("vm", f"buffer_load_dword a250, v15, s[{rW}:{rW+3}], s{sWDG} offen", "pf"), ("op", "s_mov_b64 exec, -1")])
    if "w1late" in OPT:
        emit(k, main)
        late = fill
    else:
        interleave(k, main, fill, 10)
        late = []
    stamp(k, "a_dot")
    k.op("s_nop 2")
    k.op("v_add_f32 v6, v6, v7"); k.op("v_add_f32 v8, v8, v9")
    k.op("v_add_f32 v10, v10, v11"); k.op("v_add_f32 v12, v12, v13")
    k.op("v_add_f32 v6, v6, v8"); k.op("v_add_f32 v10, v10, v12")
    k.op("v_mov_b32 v7, v6"); k.op("v_mov_b32 v11, v10")
    k.op("s_nop 1")
    k.op("v_permlane32_swap_b32 v6, v7"); k.op("v_permlane32_swap_b32 v10, v11")
    k.op("s_nop 1")
    k.op("v_add_f32 v6, v6, v7"); k.op("v_add_f32 v10, v10, v11")
    k.op(f"v_mul_f32 v6, {hex(f2u(1.0/448))}, v6")
    k.op(f"v_mul_f32 v10, {hex(f2u(1.0/448))}, v10")
    k.op("v_fma_f32 v10, -v6, v6, v10")
    k.op("v_max_f32 v10, 0, v10")
    k.op("v_cvt_pk_bf16_f32 v7, v6, v10")
    k.op("v_lshlrev_b32 v6, 16, v7")
    k.op(f"v_and_b32 v10, s{sMASK}, v7")
    k.op(f"v_add_f32 v10, {hex(f2u(1e-5))}, v10")
    k.op("v_cvt_pk_bf16_f32 v10, v10, v10")
    k.op("v_lshlrev_b32 v10, 16, v10")
    k.op("v_sqrt_f32 v10, v10")
    k.op("s_nop 0")
    k.op("v_cvt_pk_bf16_f32 v10, v10, v10")
    k.op("v_lshlrev_b32 v10, 16, v10")
    k.op("v_rcp_f32 v8, v10")
    k.op("v_sub_f32 v4, 0, v6")
    LATE[:] = late
    k.op("v_mul_f32 v9, v4, v8")
    lab = k.newlabel("Lnost")
    k.op(f"s_cmp_lg_u32 s{sJ}, 0")
    k.op(f"s_cbranch_scc1 {lab}")
    k.op(f"s_lshl_b32 s{sT0}, s{sI}, 2")
    k.op(f"s_add_u32 s{sT0}, s{sT0}, s{sW}")
    k.op(f"s_lshl_b32 s{sT0}, s{sT0}, 8")
    k.op(f"s_add_u32 s{sT0}, s{sT0}, {ST_OFF}")
    k.op("v_lshlrev_b32 v6, 3, v0")
    k.op("s_mov_b32 exec_hi, 0")
    k.op(f"buffer_store_dwordx2 v[8:9], v6, s[{rWS}:{rWS+3}], s{sT0} offen sc1")
    k.op("s_mov_b32 exec_hi, -1")
    k.label(lab)
    C1 = -2.0 * 0.7978845608028654 * 1.4426950408889634
    C2 = C1 * 0.044715
    k.op(f"v_mul_f32 v6, {hex(f2u(C1))}, v8")
    k.op("v_mul_f32 v7, v8, v8")
    k.op("v_mul_f32 v11, v10, v10")
    k.op("v_mul_f32 v7, v7, v8")
    k.op("v_accvgpr_write_b32 a144, v6")
    k.op(f"v_mul_f32 v7, {hex(f2u(C2))}, v7")
    k.op("v_accvgpr_write_b32 a146, v11")
    k.op("v_accvgpr_write_b32 a145, v7")

def norm(n, tp):
    t = 6 + 2 * tp
    return [("op", f"v_lshlrev_b32 v{t}, 16, v{vX+n}"),
            ("op", f"v_and_b32 v{t+1}, s{sMASK}, v{vX+n}"),
            ("op", f"v_add_f32 v{t}, v{t}, v4"),
            ("op", f"v_add_f32 v{t+1}, v{t+1}, v4"),
            ("op", f"v_cvt_pk_bf16_f32 v{vX+n}, v{t}, v{t+1}")]
def norm_step(ks):
    a = [norm(4 * ks + q, q) for q in range(4)]
    out = []
    for s in range(5):
        for q in range(4): out.append(a[q][s])
    return out

def hc_dma(q):
    rr, qq = divmod(q, 4)
    out = []
    if qq == 0:
        out.append(("op", f"s_add_u32 m0, s{sU0}, {rr * HC_STRIDE}"))
        out.append(("op", f"s_add_u32 s{sU2}, s{sU1}, {rr * 2}"))
    out.append(("vm", f"buffer_load_dwordx4 v1, s[{rSSM}:{rSSM+3}], s{sU2} offen offset:{qq*1024} lds", "hc"))
    return out

LATE = []
WD0 = []
def gemm1_loop(k):
    emit(k, norm_step(0))
    for g in LATE: emit(k, g)
    k.op(f"s_lshr_b32 s{sT0}, s{sW}, 1")
    k.op(f"s_lshl_b32 s{sCH}, s{sWGM}, 1")
    k.op(f"s_add_u32 s{sCH}, s{sCH}, s{sT0}")
    k.op(f"s_and_b32 s{sT1}, s{sW}, 1")
    k.op(f"s_lshl_b32 s{sT1}, s{sT1}, 1")
    k.op(f"s_mul_i32 s{sU0}, s{sT0}, {HC_CH}")
    k.op(f"s_mul_i32 s{sT3}, s{sT1}, {HC_STRIDE}")
    k.op(f"s_add_u32 s{sU0}, s{sU0}, s{sT3}")
    k.op(f"s_add_u32 s{sU0}, s{sU0}, {HC + 32}")
    k.op(f"s_lshl_b32 s{sU1}, s{sCH}, 12")
    k.op(f"s_lshl_b32 s{sT1}, s{sT1}, 1")
    k.op(f"s_add_u32 s{sU1}, s{sU1}, s{sT1}")
    k.op(f"s_add_u32 s{sU1}, s{sU1}, 2")
    stamp(k, "a_norm0")
    k.wait(vm="w0")
    stamp(k, "a_w0")
    k.op("s_barrier")
    stamp(k, "a_stats")
    NF = 8; DIST = 7; NM = 224
    def rd(n):
        ks, mt = divmod(n, 8)
        c, kk = divmod(ks, 4)
        sl = c % 4
        base = "v3" if sl < 2 else "v14"
        off = (SLOT_SZ if sl % 2 else 0) + kk * 256 + mt * 32
        f = 4 * (n % NF)
        return [("lg", f"ds_read_b64_tr_b16 {ar(f, 2)}, {base} offset:{off}", f"f{n}"),
                ("lg", f"ds_read_b64_tr_b16 {ar(f + 2, 2)}, {base} offset:{off + 4 * 1056}", f"f{n}")]
    for n in range(DIST): emit(k, rd(n))
    extra = {}
    k.op(f"s_lshl_b32 s{sT0}, s{sSLOT}, 2")
    k.op(f"s_add_u32 s{sT0}, s{sT0}, s{sW}")
    k.op(f"s_mul_i32 s{sU3}, s{sT0}, {112*128}")
    k.op("v_lshlrev_b32 v15, 7, v0")
    def wd_pf(piece):
        return [("op", "s_mov_b64 exec, 0xffff"),
                ("vm", f"buffer_load_dword a250, v15, s[{rWD}:{rWD+3}], s{sU3} offen offset:{piece*2048}", "pf"),
                ("op", "s_mov_b64 exec, -1")]
    if "nopf" not in OPT:
        P0, PSTEP = (9, 1)
        for p in range(7):
            if p < 2: extra[P0 + PSTEP * p] = wd_pf(p)
            else:
                extra[P0 + PSTEP * p] = [("op", f"s_add_u32 s{sU3}, s{sU3}, 2048"), ("op", "s_mov_b64 exec, 0xffff"),
                    ("vm", f"buffer_load_dword a250, v15, s[{rWD}:{rWD+3}], s{sU3} offen offset:2048", "pf"), ("op", "s_mov_b64 exec, -1")]
        k.op(f"s_lshl_b32 s{sHST}, s{sWGM}, 13")
        k.op(f"s_lshl_b32 s{sT0}, s{sW}, 11")
        k.op(f"s_add_u32 s{sHST}, s{sHST}, s{sT0}")
        extra[8] = [("op", "s_mov_b64 exec, 0xffff"),
                    ("vm", f"buffer_load_dword a250, v15, s[{rSSM}:{rSSM+3}], s{sHST} offen", "pf"), ("op", "s_mov_b64 exec, -1")]
    extra[24] = [("op", "s_mov_b64 exec, 1"),
                 ("vm", f"global_load_dword a40, v15, s[{sPDBG}:{sPDBG+1}] sc1", "init"),
                 ("op", "s_mov_b64 exec, -1")]
    tailfill = capture(g2_setup2) + gelu_setup_items()
    setup1 = capture(g2_setup1)
    WD0[:] = wd_dma_groups(0, WD_KS, "wd0", 0)
    def bigs(ks):
        c, kk = divmod(ks, 4)
        out = []
        if "x_now" not in OPT:
            if "w1late2" not in OPT:
                if c == 0: out += [wdma(2 + kk // 2, 4 * (kk % 2) + i) for i in range(4)]
                elif c + 3 < 7: out += [wdma(c + 3, 2 * kk + i) for i in range(2)]
            else:
                if ks < 8: out += [wdma(1 + ks // 2, 4 * (ks % 2) + i) for i in range(4)]
                elif c in (2, 3): out += [wdma(c + 3, 2 * kk + i) for i in range(2)]
        if c == 4 and "x_nohc" not in OPT: out += [hc_dma(2 * kk + i) for i in range(2)]
        if c in (5, 6) and 'wdgelu' not in OPT: out += WD0[(c - 5) * 8 + 2 * kk: (c - 5) * 8 + 2 * kk + 2]
        if ks in extra and ("x_noex" not in OPT or ks == 24): out.append(extra[ks])
        return out
    VAR = [o for o in OPT if o.startswith("sch")]
    VAR = VAR[0] if VAR else "sch1"
    POS = {"sch0": {0: [], 1: [7], 2: [6, 7], 3: [5, 6, 7], 4: [3, 5, 6, 7]},
           "sch1": {0: [], 1: [7], 2: [3, 7], 3: [2, 5, 7], 4: [1, 3, 5, 7]},
           "sch2": {0: [], 1: [6], 2: [2, 6], 3: [1, 4, 6], 4: [0, 2, 4, 6]},
           "sch3": {0: [], 1: [7], 2: [3, 7], 3: [2, 5, 7], 4: [1, 3, 5, 7]}}[VAR]
    pending_reads = []
    for ks in range(28):
        c, kk = divmod(ks, 4)
        bg = bigs(ks)
        pos = POS[len(bg)]
        nrm = norm_step(ks + 1) if (ks + 1 < 28 and "x_nonorm" not in OPT) else []
        if ks == 27: nrm = list(tailfill)
        if ks in (16, 17, 18, 19):
            i0 = (ks - 16) * 6
            nrm = nrm + setup1[i0: i0 + 6 if ks < 19 else len(setup1)]
        if VAR == "sch0":
            cut = [0, 3, 6, 9, 12, 15, 18, 20, 20] if ks < 27 else [(len(nrm) * i) // 8 for i in range(9)]
            share = {g: nrm[cut[g]:cut[g + 1]] for g in range(8)}
        else:
            wts = {g: (0 if (g in pos or (g == 7 and ks < 27)) else 1) for g in range(8)}
            if VAR == "sch3":
                wts = {g: (1 if g in pos else 0 if (g == 7 and ks < 27) else 3) for g in range(8)}
            tot = sum(wts.values()); acc_ = 0; done = 0; share = {}
            for g in range(8):
                acc_ += wts[g]
                upto = (len(nrm) * acc_ + tot - 1) // tot
                share[g] = nrm[done:upto]; done = upto
        for mt in range(8):
            n = 8 * ks + mt
            if n % 32 == 0: stamp(k, f"g_c{n//32}")
            if n % 4 == 0:
                k.wait(lg=[f"f{n+i}" for i in range(4)])
            f = 4 * (n % NF)
            acc = vr(vACC + 16 * mt, 16)
            cin = "0" if ks == 0 else acc
            if "x_m16" in OPT:
                for hh_ in range(2):
                    a4 = vr(vACC + 16 * mt + 4 * hh_ + 8 * (ks % 2), 4)
                    k.op(f"v_mfma_f32_16x16x32_bf16 {a4}, {ar(f, 4)}, {vr(vX + 4 * ks, 4)}, {a4}")
            else:
                k.op(f"v_mfma_f32_32x32x16_bf16 {acc}, {ar(f, 4)}, {vr(vX + 4 * ks, 4)}, {cin}")
            if "x_halfrd" in OPT and n % 2 == 1:
                emit(k, share[mt])
                if mt in pos: emit(k, bg[pos.index(mt)])
                nn = n + DIST
                if nn < NM and nn % 32 == 0:
                    k.wait(vm=f"w{nn // 32}"); k.op("s_barrier")
                continue
            nn = n + DIST
            if nn < NM:
                if nn % 32 == 0:
                    k.wait(vm=f"w{nn // 32}")
                    if "x_nobar" not in OPT: k.op("s_barrier")
                emit(k, rd(nn))
            emit(k, share[mt])
            if mt in pos: emit(k, bg[pos.index(mt)])
    assert not pending_reads
    stamp(k, "g_end")

def g2_setup1(k):
    k.op(f"s_and_b32 s{sT0}, s{sTT}, 3")
    k.op(f"s_lshl_b32 s{sT0}, s{sT0}, 1")
    k.op(f"s_add_u32 s{sROT}, s{sT0}, s{sDT}")
    k.op(f"s_sub_u32 s{sT0}, s{sROT}, 7")
    k.op(f"s_min_u32 s{sROT}, s{sROT}, s{sT0}")
    k.op("v_lshrrev_b32 v16, 3, v0")
    k.op("v_mul_u32_u24 v2, 896, v16")
    k.op("v_bfe_u32 v16, v0, 4, 1")
    k.op("v_lshlrev_b32 v16, 2, v16")
    k.op("v_and_b32 v17, 7, v0")
    k.op("v_xor_b32 v16, v16, v17")
    k.op("v_lshl_add_u32 v2, v16, 4, v2")
    k.op(f"s_mul_i32 s{sWDS}, s{sW}, {16*28*896}")
    k.op(f"s_lshl_b32 s{sT0}, s{sDT}, 7")
    k.op(f"s_add_u32 s{sWDS}, s{sWDS}, s{sT0}")
    k.op(f"s_sub_u32 s{sWDS}, s{sWDS}, 4096")
    k.op(f"s_lshl_b32 s{sWDM}, s{sW}, 13")
    k.op(f"s_lshl_b32 s{sWDM4}, s{sW}, 12")
def g2_setup2(k):
    k.op("v_lshrrev_b32 v5, 5, v0")
    k.op("v_bfe_u32 v6, v0, 2, 2")
    k.op("v_lshl_add_u32 v5, v5, 2, v6")
    k.op("v_lshlrev_b32 v5, 7, v5")
    k.op("v_bfe_u32 v7, v0, 4, 1")
    k.op("v_lshl_add_u32 v5, v7, 5, v5")
    k.op("v_and_b32 v7, 3, v0")
    k.op("v_lshl_add_u32 v5, v7, 3, v5")
    k.op(f"v_add_u32 v5, s{sWDM}, v5")
    k.op("v_bfe_u32 v6, v0, 3, 1")
    k.op("v_lshlrev_b32 v6, 6, v6")
    k.op("v_add_u32 v3, v5, v6")
    k.op("v_xor_b32 v6, 64, v6")
    k.op("v_add_u32 v4, v5, v6")
def gelu_setup_items():
    C1 = -2.0 * 0.7978845608028654 * 1.4426950408889634
    C2 = C1 * 0.044715
    it = []
    op = lambda t: it.append(("op", t))
    op("v_lshrrev_b32 v10, 4, v0")
    op("v_and_b32 v11, 15, v0")
    op("v_add_u32 v12, v10, v11")
    op("v_subrev_u32 v12, 15, v12")
    op("v_lshlrev_b32 v12, 1, v12")
    op("v_cmp_gt_i32 vcc, 0, v12")
    op("v_mov_b32 v13, 0x7fffffff")
    op(f"s_lshl_b32 s{sT1}, s{sCH}, 12")
    op("v_cndmask_b32 v12, v12, v13, vcc")
    op("v_mov_b32 v13, 0")
    it.append(("vm", f"buffer_load_ushort v12, v12, s[{rSSM}:{rSSM+3}], s{sT1} offen", "hf"))
    op(f"s_lshl_b32 s{sT1}, s{sCH}, 1")
    it.append(("vm", f"buffer_load_ushort v15, v13, s[{rD}:{rD+3}], s{sT1} offen", "dv"))
    op(f"v_mul_u32_u24 v10, {HC_STRIDE}, v10")
    op("v_lshl_add_u32 v10, v11, 1, v10")
    op(f"s_lshr_b32 s{sT0}, s{sW}, 1")
    op(f"s_mul_i32 s{sT2}, s{sT0}, {HC_CH}")
    op(f"s_add_u32 s{sT2}, s{sT2}, {HC}")
    op(f"v_add_u32 v10, s{sT2}, v10")
    op(f"s_mul_i32 s{sT2}, s{sT0}, {UR_CH}")
    op(f"s_add_u32 s{sT2}, s{sT2}, {UR + 4096}")
    op(f"v_add_u32 v11, s{sT2}, v1")
    op("v_mov_b32 v20, 0"); op("v_mov_b32 v21, 0"); op("v_mov_b32 v22, 0"); op("v_mov_b32 v23, 0")
    op("v_accvgpr_read_b32 v16, a144")
    op("v_accvgpr_read_b32 v17, a145")
    op("v_accvgpr_read_b32 v18, a146")
    op(f"s_lshl_b32 s{sT0}, s{sI}, 2")
    op(f"s_add_u32 s{sT0}, s{sT0}, s{sW}")
    op(f"s_mul_i32 s{sHST}, s{sT0}, {112*1024}")
    op(f"s_lshl_b32 s{sT1}, s{sJ}, 13")
    op(f"s_add_u32 s{sHST}, s{sHST}, s{sT1}")
    return it

def g2_setup3(k):
    k.op(f"v_add_u32 v176, {2*SLOT_SZ}, v3")
    k.op(f"v_add_u32 v177, {2*SLOT_SZ}, v4")
    k.op(f"s_sub_u32 s{sT0}, {3*SLOT_SZ}, s{sWDM4}")
    k.op(f"v_add_u32 v178, s{sT0}, v3")
    k.op(f"v_add_u32 v179, s{sT0}, v4")

def wd_group_base(g):
    return [("op", f"s_add_u32 s{sT3}, s{sROT}, {g}"),
            ("op", f"s_sub_u32 s{sWDG}, s{sT3}, 7"),
            ("op", f"s_min_u32 s{sT3}, s{sT3}, s{sWDG}"),
            ("op", f"s_mul_i32 s{sT3}, s{sT3}, {64*896}"),
            ("op", f"s_add_u32 s{sWDG}, s{sT3}, s{sWDS}")]
def wd_dma_groups(ks0, ks1, tag, s0):
    out = []
    q = 0
    for ks in range(ks0, ks1):
        sl = ks - s0
        for hh in range(2):
            g = []
            if ks % 4 == 0 and hh == 0: g += wd_group_base(ks // 4)
            qq = 2 * (sl & 1) + hh
            if qq == 0:
                g.append(("op", f"s_add_u32 m0, s{sWDM if sl < 12 else sWDM4}, {stg_const(sl)}"))
            g.append(("op", f"s_add_u32 s{sT3}, s{sWDG}, {(16 * (ks % 4) + 8 * hh) * 896 - qq * 1024 + 4096}"))
            g.append(("vm", f"buffer_load_dwordx4 v2, s[{rWD}:{rWD+3}], s{sT3} offen offset:{qq * 1024} lds", tag))
            out.append(g)
    return out

def wd_read_items(ks0, ks1, s0):
    out = []
    for ks in range(ks0, ks1):
        sl = ks - s0
        g = sl >> 2
        for dt2 in range(2):
            for t in range(2):
                a = 8 * ks + 4 * dt2 + 2 * t
                if g < 2: base, off = 3 + dt2, stg_const(sl)
                elif g == 2: base, off = 176 + dt2, stg_const(sl) - 2 * SLOT_SZ
                else: base, off = 178 + dt2, stg_const(sl) - 3 * SLOT_SZ
                out.append(("lg", f"ds_read_b64_tr_b16 {ar(a,2)}, v{base} offset:{off + t*1024}", f"wr{ks}_{dt2}_{t}"))
    return out
def emit_lg_limited(k, items):
    for it in items:
        if it[0] == "lg" and len(k.lgq) >= 12: k.wait(lg=k.lgq[5])
        emit(k, [it])

def gelu_phase(k):
    if k.lgq: k.wait(lg=[k.lgq[-1]])
    k.op("s_barrier")
    vC, vONE = 16, 18
    k.wait(vm="init")
    k.op("v_accvgpr_read_b32 v8, a40")
    k.op("v_mov_b32 v9, 0")
    k.op("s_nop 0")
    check_or_spin(k, 8, 9, sPDBG, 1)
    cnt_addr(k, 9, idx=UCNT)
    k.vm(f"global_load_dword v8, v9, s[{sPWS}:{sPWS+1}] sc1", "ucnt")
    k.op("s_mov_b32 exec_hi, 0")
    k.lg("ds_write_b128 v11, v[20:23]", "z")
    k.op("s_mov_b32 exec_hi, -1")
    wd0 = WD0[16:] if 'wdgelu' not in OPT else WD0[:]
    g2_setup3_done = False
    def ur_dma():
        k.wait(vm="ucnt")
        k.spin_tag = 6
        check_or_spin(k, 8, 9, sPWS, 32)
        k.spin_tag = None
        k.op(f"s_lshr_b32 s{sT0}, s{sW}, 1")
        k.op(f"s_and_b32 s{sT1}, s{sW}, 1")
        k.op(f"s_lshl_b32 s{sT1}, s{sT1}, 11")
        k.op(f"s_mul_i32 s{sT2}, s{sT0}, {UR_CH}")
        k.op(f"s_add_u32 s{sT2}, s{sT2}, s{sT1}")
        k.op(f"s_add_u32 m0, s{sT2}, {UR}")
        k.op(f"s_lshl_b32 s{sT3}, s{sCH}, 12")
        k.op(f"s_add_u32 s{sT3}, s{sT3}, s{sT1}")
        k.op(f"s_add_u32 s{sT3}, s{sT3}, {U_OFF}")
        k.vm(f"buffer_load_dwordx4 v1, s[{rWS}:{rWS+3}], s{sT3} offen sc1 lds", "ur")
        k.vm(f"buffer_load_dwordx4 v1, s[{rWS}:{rWS+3}], s{sT3} offen offset:1024 sc1 lds", "ur")
        k.wait(vm="hf")
        k.lg("ds_write_b16 v10, v12", "z")
    for mt in range(8):
        stamp(k, f"y_{mt}")
        G = vACC + 16 * mt; U = G + 8
        T = 24 + (mt % 2) * 24
        tp = lambda p: T + 2 * p
        gu = lambda p: T + 8 + 2 * p
        O = T + 16
        P = range(4)
        m = []
        for p in P: m.append(("op", f"v_pk_mul_f32 {vr(tp(p),2)}, {vr(G+2*p,2)}, {vr(G+2*p,2)}"))
        for p in P: m.append(("op", f"v_pk_fma_f32 {vr(tp(p),2)}, {vr(tp(p),2)}, {vr(vC,2)}, {vr(vC,2)} op_sel:[0,1,0] op_sel_hi:[1,1,0]"))
        for p in P: m.append(("op", f"v_pk_mul_f32 {vr(tp(p),2)}, {vr(tp(p),2)}, {vr(G+2*p,2)}"))
        for p in P:
            m.append(("op", f"v_exp_f32 v{tp(p)}, v{tp(p)}")); m.append(("op", f"v_exp_f32 v{tp(p)+1}, v{tp(p)+1}"))
        for p in P: m.append(("op", f"v_pk_mul_f32 {vr(gu(p),2)}, {vr(G+2*p,2)}, {vr(U+2*p,2)}"))
        for p in P: m.append(("op", f"v_pk_fma_f32 {vr(tp(p),2)}, {vr(tp(p),2)}, {vr(vONE,2)}, {vr(vONE,2)} op_sel_hi:[1,0,0]"))
        for p in P:
            m.append(("op", f"v_rcp_f32 v{tp(p)}, v{tp(p)}")); m.append(("op", f"v_rcp_f32 v{tp(p)+1}, v{tp(p)+1}"))
        m.append(("op", "s_nop 0"))
        for p in P: m.append(("op", f"v_pk_mul_f32 {vr(gu(p),2)}, {vr(gu(p),2)}, {vr(tp(p),2)}"))
        for p in P: m.append(("op", f"v_cvt_pk_bf16_f32 v{O+p}, v{gu(p)}, v{gu(p)+1}"))
        nf = (4 if mt < 3 else 0) if 'wdgelu' not in OPT else (4 if mt < 4 else 3)
        fill = [wd0.pop(0) for _ in range(nf)]
        if "nowdg" in OPT: fill = [[x for x in g if x[0] != "vm"] for g in fill]
        pos = {8: 0, 20: 1, 32: 2, 42: 3} if nf == 4 else {12: 0, 24: 1, 36: 2} if nf == 3 else {}
        for n, it in enumerate(m):
            emit(k, [it])
            if n in pos: emit(k, fill[pos[n]])
        if mt % 4 == 0 and mt > 0:
            k.op(f"s_add_u32 s{sHST}, s{sHST}, 4096")
        if "nohst" not in OPT: k.vm(f"buffer_store_dwordx4 {vr(O,4)}, v1, s[{rWS}:{rWS+3}], s{sHST} offen offset:{(mt%4)*1024}{'' if 'hstplain' in OPT else ' sc1'}", "hst")
        if mt == 3: ur_dma()
    assert not wd0
    stamp(k, "e_gelu")
    k.wait(vm="ur", lg=[k.lgq[-1]] if k.lgq else [])
    k.op("s_barrier")

def h_signal(k):
    k.wait(vm="hst")
    k.op("s_barrier")
    cnt_addr(k, 9, idx_sgpr=sI, idx=HCNT)
    signal(k, 9, 10)
    stamp(k, "e_sig")

def conv_phase(k):
    k.wait(vm="dv")
    k.op("v_lshlrev_b32 v8, 16, v15")
    k.op(f"s_lshr_b32 s{sT0}, s{sW}, 1")
    k.op(f"s_mul_i32 s{sT2}, s{sT0}, {HC_CH}")
    k.op(f"s_add_u32 s{sT2}, s{sT2}, {HC}")
    k.op("v_bfe_u32 v5, v0, 2, 2")
    k.op(f"v_mul_u32_u24 v14, {HC_STRIDE}, v5")
    k.op("v_and_b32 v6, 3, v0")
    k.op("v_lshl_add_u32 v14, v6, 3, v14")
    k.op("v_lshrrev_b32 v6, 4, v0")
    k.op("v_lshl_add_u32 v14, v6, 4, v14")
    k.op(f"s_and_b32 s{sT1}, s{sW}, 1")
    k.op(f"s_lshl_b32 s{sT1}, s{sT1}, 8")
    k.op(f"s_add_u32 s{sT2}, s{sT2}, s{sT1}")
    k.op(f"v_add_u32 v14, s{sT2}, v14")
    k.op("v_and_b32 v7, 15, v0")
    k.op("v_lshlrev_b32 v7, 5, v7")
    k.op("v_lshlrev_b32 v5, 4, v6")
    k.op("v_sub_u32 v15, v5, v7")
    k.op(f"s_mul_i32 s{sT2}, s{sT0}, {UR_CH}")
    k.op(f"s_add_u32 s{sT2}, s{sT2}, {UR + 4064 - 3584}")
    k.op(f"s_add_u32 s{sT3}, s{sT2}, s{sT1}")
    k.op(f"v_add_u32 v15, s{sT3}, v15")
    FB = [16, 48]; GBUF = [80, 112]; ACC = 144
    def rdF(sub, J):
        b = FB[sub % 2] + 4 * J
        off = 64 * (8 * J + sub)
        return [("lg", f"ds_read_b64_tr_b16 {vr(b,2)}, v14 offset:{off}", f"F{sub}"),
                ("lg", f"ds_read_b64_tr_b16 {vr(b+2,2)}, v14 offset:{off+8}", f"F{sub}")]
    def rdG(sub, T):
        b = GBUF[sub % 2] + 4 * T
        return [("lg", f"ds_read_b128 {vr(b,4)}, v15 offset:{512*(7-T) + 64*sub}", f"F{sub}")]
    def fg(sub):
        out = []
        for i in range(8):
            out += rdG(sub, 7 - i) + rdF(sub, i)
        return out
    emit(k, fg(0))
    k.op("v_lshlrev_b32 v5, 3, v6")
    k.op("v_add_u32 v7, v7, v5")
    k.op(f"s_add_u32 s{sT2}, s{sT2}, {4088 - 4064}")
    k.op(f"v_sub_u32 v13, s{sT2}, v7")
    k.op("v_and_b32 v5, 1, v6")
    k.op("v_mul_u32_u24 v5, 504, v5")
    k.op("v_add_u32 v7, v7, v5")
    k.op("v_lshrrev_b32 v184, 3, v0")
    k.op(f"s_lshl_b32 s{sT0}, s{sW}, 3")
    k.op(f"v_add_u32 v184, s{sT0}, v184")
    k.op("v_and_b32 v185, 7, v0")
    k.op("v_mul_u32_u24 v186, 896, v184")
    k.op("v_lshl_add_u32 v186, v185, 4, v186")
    k.op(f"s_mul_i32 s78, s{sTT}, {64*896}")
    k.op(f"s_lshl_b32 s{sT0}, s{sDT}, 7")
    k.op(f"s_add_u32 s78, s78, s{sT0}")
    k.op(f"s_add_u32 s79, s78, {32*896}")
    k.op(f"s_lshr_b32 s{sU0}, s{sTT}, 1")
    cnt_addr(k, 187, idx_sgpr=sU0, idx=HCNT)
    k.op(f"s_lshl_b32 s{sT0}, s{sTT}, 1")
    k.op(f"s_mul_i32 s{sT0}, s{sT0}, 112")
    k.op(f"s_mul_i32 s{sT1}, s{sW}, 28")
    k.op(f"s_add_u32 s{sT0}, s{sT0}, s{sT1}")
    k.op(f"s_lshl_b32 s{sHG}, s{sT0}, 10")
    g2_setup3(k)
    wd1 = wd_dma_groups(WD_KS, 2 * WD_KS, "wd1", WD_KS)
    for g in wd1[:WD_KS]:
        for i, it in enumerate(g):
            if it[0] == "vm": g[i] = ("vm", it[1], "wd1a")
    wr0 = wd_read_items(0, WD_KS, 0)
    wr1 = wd_read_items(WD_KS, 2 * WD_KS, WD_KS)
    H = WD_KS // 2
    one = lambda items: [[x] for x in items]
    wtag = lambda it: [("fn", lambda t=it[2]: k.wait(lg=t))]
    def mix(a, b):
        if not b: return a
        out = []; j = 0
        for i, g in enumerate(a):
            out.append(g)
            while j < len(b) and (j + 1) * len(a) <= (i + 1) * len(b) + len(a) // 2: out.append(b[j]); j += 1
        return out + b[j:]
    N1, N2 = (6, 14) if 'n1' not in OPT else (4, 14)
    plan = {0: one(fg(1)) + [[("fn", lambda: k.wait(vm="wd0"))]] + one(wr0[:4*H]),
            1: one(fg(2)) + [wtag(wr0[4*H-1])] + mix(one(wr0[4*H:]), wd1[:N1]),
            2: mix(one(fg(3)), wd1[N1:N2] + [wtag(wr0[-1])] + wd1[N2:N2 + 4]),
            3: wd1[N2 + 4:]}
    first = set()
    for sub in range(4):
        stamp(k, f"s_pre{sub}")
        k.wait(lg=f"F{sub}")
        if sub == 1:
            h_signal(k)
            k.vm(f"buffer_load_dwordx4 {ar(224,4)}, v186, s[{rX}:{rX+3}], s78 offen", "ex")
            k.vm(f"buffer_load_dwordx4 {ar(228,4)}, v186, s[{rX}:{rX+3}], s79 offen", "ex")
        if sub == 2:
            k.vm(f"global_load_dword v188, v187, s[{sPWS}:{sPWS+1}] sc1", "hcnt")
        stamp(k, f"s_go{sub}")
        fill = [g for g in plan[sub] if g]
        mf = [(T, J) for T in range(7, -1, -1) for J in range(0, 8 - T)]
        per = len(fill) / (36.0 if sub < 3 else 20.0)
        done = 0
        for n, (T, J) in enumerate(mf):
            tile = T + J
            a = vr(ACC + 4 * tile, 4)
            cin = a if tile in first else "0"
            first.add(tile)
            k.op(f"v_mfma_f32_16x16x32_bf16 {a}, {vr(FB[sub%2]+4*J,4)}, {vr(GBUF[sub%2]+4*T,4)}, {cin}")
            want = min(len(fill), int(round((n + 1) * per + 0.49)))
            while done < want:
                emit(k, fill[done]); done += 1
        while done < len(fill):
            emit(k, fill[done]); done += 1
    stamp(k, "c_mfma")
    k.wait(vm="hcnt")
    check_or_spin(k, 188, 187, sPWS, 14)
    stamp(k, "d_hrdy")
    k.op("v_lshlrev_b32 v189, 3, v184")
    k.op(f"s_lshl_b32 s{sT0}, s{sTT}, 9")
    k.op(f"s_add_u32 s{sT0}, s{sT0}, {ST_OFF}")
    k.vm(f"buffer_load_dwordx2 {ar(232,2)}, v189, s[{rWS}:{rWS+3}], s{sT0} offen sc1", "ex")
    k.vm(f"buffer_load_dwordx2 {ar(234,2)}, v189, s[{rWS}:{rWS+3}], s{sT0} offen offset:256 sc1", "ex")
    for ks in range(PD):
        g2_hload(k, ks)
    k.op(f"s_lshl_b32 s{sT0}, s{sW}, 12")
    k.op(f"s_add_u32 s{sT0}, s{sT0}, {XCH}")
    k.op(f"v_add_u32 v5, s{sT0}, v1")
    k.op(f"s_xor_b32 s{sT1}, s{sW}, 1")
    k.op(f"s_lshl_b32 s{sT1}, s{sT1}, 12")
    k.op(f"s_add_u32 s{sT1}, s{sT1}, {XCH}")
    k.op(f"v_add_u32 v6, s{sT1}, v1")
    k.op(f"s_lshl_b32 s{sT2}, s{sCH}, 12")
    k.op(f"s_add_u32 s{sT2}, s{sT2}, {Y_OFF}")
    if k.lgq: k.wait(lg=k.lgq[-1])
    k.op("s_barrier")
    lo, le = k.newlabel("Lcodd"), k.newlabel("Lcend")
    k.op("s_nop 1")
    def finish(keep, send):
        for i in range(4):
            k.op(f"ds_write_b128 v5, {vr(ACC + 4*(send+i), 4)} offset:{1024*i}")
        for i in range(4):
            k.op(f"ds_read_b64 {vr(64+2*i,2)}, v13 offset:{512*(7-(keep+i))}")
        k.op("s_waitcnt lgkmcnt(0)")
        k.op("s_barrier")
        for i in range(4):
            k.op(f"ds_read_b128 {vr(48+4*i,4)}, v6 offset:{1024*i}")
        for i in range(4):
            U = 64 + 2 * i
            k.op(f"v_and_b32 v{112+4*i}, s{sMASK}, v{U+1}")
            k.op(f"v_lshlrev_b32 v{113+4*i}, 16, v{U+1}")
            k.op(f"v_and_b32 v{114+4*i}, s{sMASK}, v{U}")
            k.op(f"v_lshlrev_b32 v{115+4*i}, 16, v{U}")
            A = ACC + 4 * (keep + i)
            for r in range(4):
                k.op(f"v_fmac_f32 v{A+r}, v{112+4*i+r}, v8")
        k.op("s_waitcnt lgkmcnt(0)")
        for i in range(4):
            A = ACC + 4 * (keep + i)
            k.op(f"v_pk_add_f32 {vr(A,2)}, {vr(A,2)}, {vr(48+4*i,2)}")
            k.op(f"v_pk_add_f32 {vr(A+2,2)}, {vr(A+2,2)}, {vr(50+4*i,2)}")
        for i in range(4):
            A = ACC + 4 * (keep + i)
            k.op(f"v_cvt_pk_bf16_f32 v{72+2*i}, v{A}, v{A+1}")
            k.op(f"v_cvt_pk_bf16_f32 v{73+2*i}, v{A+2}, v{A+3}")
        k.op("s_nop 1")
        for i in (0, 2):
            k.op(f"v_permlane16_swap_b32 v{72+2*i}, v{74+2*i}")
            k.op(f"v_permlane16_swap_b32 v{73+2*i}, v{75+2*i}")
        k.op("s_nop 0")
        for i in (0, 2):
            k.op(f"buffer_store_dwordx4 {vr(72+2*i,4)}, v7, s[{rWS}:{rWS+3}], s{sT2} offen offset:{512*(keep+i)} sc1")
    k.op(f"s_bitcmp1_b32 s{sW}, 0")
    k.op(f"s_cbranch_scc1 {lo}")
    finish(0, 4)
    k.op(f"s_branch {le}")
    k.label(lo)
    finish(4, 0)
    k.label(le)
    for i in range(2): k.vmq.append("yst")
    stamp(k, "c_end")
    return wr1

NHS = 8; vA2 = 192
def hreg(ks, e):
    sl = ks % NHS
    return (16 + 8 * sl if sl < 4 else 80 + 8 * (sl - 4)) + 4 * e
PD = 4
def g2_hbase(k, g):
    k.op(f"s_add_u32 s{sT3}, s{sROT}, {g}")
    k.op(f"s_sub_u32 s76, s{sT3}, 7")
    k.op(f"s_min_u32 s{sT3}, s{sT3}, s76")
    k.op(f"s_lshl_b32 s{sT3}, s{sT3}, 12")
    k.op(f"s_add_u32 s76, s{sT3}, s{sHG}")
    k.op(f"s_add_u32 s77, s76, {112*1024}")
def g2_hload(k, ks):
    if ks % 4 == 0: g2_hbase(k, ks // 4)
    for e in range(2):
        b = hreg(ks, e)
        k.vm(f"buffer_load_dwordx4 {vr(b,4)}, v1, s[{rWS}:{rWS+3}], s{76+e} offen offset:{(ks%4)*1024}{'' if 'hplain' in OPT else ' sc1'}", f"h{ks}")

def gemm2_phase(k, wr1):
    k.op("v_mov_b32 v5, v184"); k.op("v_mov_b32 v6, v185"); k.op("v_mov_b32 v7, v186")
    for ks in range(PD, 2 * PD):
        g2_hload(k, ks)
    k.op(f"s_lshr_b32 s{sU0}, s{sWGM}, 5")
    cnt_addr(k, 9, idx_sgpr=sU0, idx=YCNT)
    k.op(f"s_lshl_b32 s{sU1}, s{sDT}, 7")
    k.op(f"s_add_u32 s{sU1}, s{sU1}, {CNT_OFF + YCNT * 128}")
    def y_loads():
        done = k.newlabel("Lyok")
        stamp(k, "t_y0")
        if 'ysmem' not in OPT:
            k.wait(vm="ycnt")
            k.op(f"v_readfirstlane_b32 s{sU2}, v10")
        else:
            k.op("s_waitcnt lgkmcnt(0)")
            k.lgq = []
        stamp(k, "t_y1")
        k.op(f"s_cmp_ge_u32 s{sU2}, 32")
        k.op(f"s_cbranch_scc1 {done}")
        k.op(f"v_mov_b32 v9, s{sU1}")
        q = list(k.vmq)
        spin_until(k, 9, 10, sPWS, 32)
        k.vmq = q
        k.label(done)
        stamp(k, "t_y2")
        k.op("v_lshrrev_b32 v8, 3, v0")
        k.op("v_lshlrev_b32 v8, 12, v8")
        k.op("v_lshl_add_u32 v8, v6, 4, v8")
        k.op(f"s_lshl_b32 s{sT0}, s{sDT}, 18")
        k.op(f"s_lshl_b32 s{sT1}, s{sW}, 16")
        k.op(f"s_add_u32 s{sT0}, s{sT0}, s{sT1}")
        k.op(f"s_lshl_b32 s{sT1}, s{sTT}, 7")
        k.op(f"s_add_u32 s{sT0}, s{sT0}, s{sT1}")
        k.op(f"s_add_u32 s{sT0}, s{sT0}, {Y_OFF}")
        k.op(f"s_mul_i32 s{sT1}, s{sW}, 2080")
        k.op(f"s_add_u32 m0, s{sT1}, {YT}")
        k.op(f"s_add_u32 s{sT2}, s{sT0}, {8*4096 - 1040}")
        k.vm(f"buffer_load_dwordx4 v8, s[{rWS}:{rWS+3}], s{sT0} offen sc1 lds", "ey")
        k.vm(f"buffer_load_dwordx4 v8, s[{rWS}:{rWS+3}], s{sT2} offen offset:1040 sc1 lds", "ey")
    RROW = 272; RW = 64 * RROW
    k.op("v_and_b32 v11, 31, v0")
    k.op(f"v_mul_u32_u24 v11, {RROW}, v11")
    k.op("v_lshrrev_b32 v12, 5, v0")
    k.op("v_lshl_add_u32 v11, v12, 4, v11")
    k.op(f"s_mul_i32 s{sT0}, s{sW}, {RW}")
    k.op(f"s_add_u32 s{sT0}, s{sT0}, {RED}")
    k.op(f"v_add_u32 v11, s{sT0}, v11")
    first = set()
    def mf(ks, dt2, e):
        t = 2 * dt2 + e
        acc = vr(vA2 + 16 * t, 16)
        cin = acc if t in first else "0"
        first.add(t)
        hb = hreg(ks, e)
        k.op(f"v_mfma_f32_32x32x16_bf16 {acc}, {ar(8*ks+4*dt2,4)}, {vr(hb,4)}, {cin}")
    LASTK = 24
    YSIG, YPOLL, YLOAD = (3, 14, 22) if 'ysmem' in OPT else (3, 17, 23)
    xfill = []
    for ps in range(2):
        X = 112 + 16 * ps; N = X + 8; T = 144 + 8 * ps
        for q in range(4): xfill.append(("op", f"v_accvgpr_read_b32 v{T+q}, a{224+4*ps+q}"))
        xfill.append(("op", f"v_accvgpr_read_b32 v{T+4}, a{232+2*ps}"))
        xfill.append(("op", f"v_accvgpr_read_b32 v{T+5}, a{233+2*ps}"))
        for q in range(4):
            xfill.append(("op", f"v_lshlrev_b32 v{X+2*q}, 16, v{T+q}"))
            xfill.append(("op", f"v_and_b32 v{X+2*q+1}, s{sMASK}, v{T+q}"))
        for q in range(8): xfill.append(("op", f"v_fma_f32 v{N+q}, v{X+q}, v{T+4}, v{T+5}"))
        for q in range(8): xfill.append(("op", f"v_mov_b32 v{160+8*ps+q}, 0"))
    def hl(kn, e):
        k.vm(f"buffer_load_dwordx4 {vr(hreg(kn, e),4)}, v1, s[{rWS}:{rWS+3}], s{76+e} offen offset:{(kn%4)*1024}{'' if 'hplain' in OPT else ' sc1'}", f"h{kn}")
    for ks in range(LASTK):
        if ks == YSIG:
            k.wait(vm="yst")
            k.op("s_barrier")
            signal(k, 9, 8)
            stamp(k, "c_sig")
        stamp(k, f"w_{ks}_")
        k.wait(vm=f"h{ks}", lg=[f"wr{ks}_1_1"] if ks >= WD_KS else [])
        if ks % 2 == 0: stamp(k, f"z_{ks}")
        else: stamp(k, f"q_{ks}")
        m = 0
        for dt2 in range(2):
            for e in range(2):
                mf(ks, dt2, e)
                todo = []
                if ks == 2: todo = {1: [(8, 0), (8, 1)], 3: [(9, 0), (9, 1)]}.get(m, [])
                elif ks == 3: todo = {1: [(10, 0), (10, 1)], 3: [(11, 0), (11, 1)]}.get(m, [])
                elif ks >= 4 and ks + 8 < 28 and m >= 2: todo = [(ks + 8, m - 2)]
                for kn, e2 in todo:
                    if kn % 4 == 0 and e2 == 0: g2_hbase(k, kn // 4)
                    hl(kn, e2)
                if ks < WD_KS: emit(k, [wr1[4 * ks + m]])
                if ks >= 6 and xfill and m < 2: emit(k, [xfill.pop(0) for _ in range(min(2, len(xfill)))])
                if m == 3 and ks == YPOLL and 'ysmem' in OPT: k.op(f"s_load_dword s{sU2}, s[{sPWS}:{sPWS+1}], s{sU1}")
                if m == 3 and ks == 19 and 'ysmem' not in OPT:
                    k.op(f"v_mov_b32 v9, s{sU1}")
                    k.vm(f"global_load_dword v10, v9, s[{sPWS}:{sPWS+1}] sc1", "ycnt")
                if m == 3 and ks == YLOAD: y_loads()
                m += 1
    assert not xfill
    k.wait(vm="h27", lg=["wr27_1_1"])
    k.op("s_barrier")
    def wr(t):
        dt2, e = divmod(t, 2)
        return [("lg", f"ds_write_b128 v11, {vr(vA2 + 16*t + 4*g, 4)} offset:{e*32*RROW + dt2*128 + g*32}", f"rw{t}{g}") for g in range(4)]
    for t in range(4):
        dt2, e = divmod(t, 2)
        for ks in range(LASTK, 28):
            mf(ks, dt2, e)
        if t == 2: k.op("s_nop 3")
        if t >= 2: emit(k, wr(t - 2))
    stamp(k, "d_loop")
    k.op(f"v_mov_b32 v10, {hex(f2u(-1.4426950408889634))}")
    k.op(f"v_mul_u32_u24 v8, {RROW}, v5")
    k.op("v_lshl_add_u32 v8, v6, 5, v8")
    k.op(f"v_add_u32 v8, {RED}, v8")
    k.op("v_mul_u32_u24 v9, 1040, v6")
    k.op("v_lshl_add_u32 v9, v5, 1, v9")
    k.op(f"v_add_u32 v9, {YT}, v9")
    emit(k, wr(2))
    emit(k, wr(3))
    k.op("v_mov_b32 v11, 1.0")
    k.wait(lg=k.lgq[-1])
    stamp(k, "t_wr")
    k.op("s_barrier")
    stamp(k, "t_bar")
    for ps in range(2):
        B = 16 + 64 * ps
        for w in range(4):
            for hh in range(2):
                k.lg(f"ds_read_b128 {vr(B + 8*w + 4*hh, 4)}, v8 offset:{w*RW + ps*32*RROW + hh*16}", f"p{ps}_{w}{hh}")
    for ps in range(2):
        B = 16 + 64 * ps if ps == 0 else 80
        N = 112 + 16 * ps + 8
        k.wait(lg=f"p{ps}_31")
        for q in range(4):
            k.op(f"v_pk_add_f32 {vr(B+2*q,2)}, {vr(B+2*q,2)}, {vr(B+8+2*q,2)}")
            k.op(f"v_pk_add_f32 {vr(B+16+2*q,2)}, {vr(B+16+2*q,2)}, {vr(B+24+2*q,2)}")
        for q in range(4):
            k.op(f"v_pk_add_f32 {vr(B+2*q,2)}, {vr(B+2*q,2)}, {vr(B+16+2*q,2)}")
        E = B + 16
        for q in range(4):
            k.op(f"v_pk_mul_f32 {vr(E+2*q,2)}, {vr(B+2*q,2)}, {vr(10,2)} op_sel_hi:[1,0]")
        for q in range(8): k.op(f"v_exp_f32 v{E+q}, v{E+q}")
        for q in range(4): k.op(f"v_pk_mul_f32 {vr(N+2*q,2)}, {vr(N+2*q,2)}, {vr(B+2*q,2)}")
        for q in range(4): k.op(f"v_pk_add_f32 {vr(E+2*q,2)}, {vr(E+2*q,2)}, {vr(10,2)} op_sel:[0,1] op_sel_hi:[1,1]")
        for q in range(8): k.op(f"v_rcp_f32 v{E+q}, v{E+q}")
        k.op("s_nop 0")
        for q in range(4): k.op(f"v_pk_mul_f32 {vr(N+2*q,2)}, {vr(N+2*q,2)}, {vr(E+2*q,2)}")
    stamp(k, "t_silu")
    k.wait(vm="ey")
    k.op("s_barrier")
    stamp(k, "t_ey")
    for ps in range(2):
        for e in range(8):
            if len(k.lgq) >= 14: k.wait(lg=k.lgq[3])
            k.lg(f"ds_read_u16_d16_hi v{160+8*ps+e}, v9 offset:{e*128 + ps*64}", f"y{ps}_{e}")
    for ps in range(2):
        X = 112 + 16 * ps; N = X + 8; Yr = 160 + 8 * ps; T = 144 + 8 * ps
        k.wait(lg=f"y{ps}_7")
        for q in range(4): k.op(f"v_pk_fma_f32 {vr(N+2*q,2)}, {vr(N+2*q,2)}, {vr(Yr+2*q,2)}, {vr(X+2*q,2)}")
        for q in range(4): k.op(f"v_cvt_pk_bf16_f32 v{T+q}, v{N+2*q}, v{N+2*q+1}")
        k.vm(f"buffer_store_dwordx4 {vr(T,4)}, v7, s[{rOUT}:{rOUT+3}], s{78+ps} offen{' sc1' if 'outsc1' in OPT else '' if 'outplain' in OPT else ' nt'}", "ost")
    stamp(k, "d_end")

PP_ROW = 900
PP_K = 0
PP_V = 67 * PP_ROW + 4
def prepass(k):
    if "ppst" in OPT: k.op("s_memtime s[8:9]")
    k.op(f"s_sub_u32 s{sT0}, s{sSLOT}, 28")
    k.op(f"s_lshl_b32 s{sT0}, s{sT0}, 3")
    k.op(f"s_add_u32 s{sI}, s{sT0}, s{sXCD}")
    k.op("v_lshlrev_b32 v1, 4, v0")
    k.op("s_waitcnt lgkmcnt(0)")
    srd(k, rWS, sPWS, (16 << 20) if (STAMPS and 'leak' not in OPT) else WS_USED)
    lab = k.newlabel("Lnolead")
    k.op(f"s_or_b32 s{sT0}, s{sI}, s{sW}")
    k.op(f"s_cmp_lg_u32 s{sT0}, 0")
    k.op(f"s_cbranch_scc1 {lab}")
    k.op("v_lshlrev_b32 v2, 7, v0")
    k.op(f"v_add_u32 v2, {CNT_OFF}, v2")
    k.op("v_mov_b32 v3, 0")
    k.op("s_mov_b32 exec_hi, 0")
    k.op(f"global_store_dword v2, v3, s[{sPWS}:{sPWS+1}] sc1")
    k.op("s_waitcnt vmcnt(0)")
    k.op("v_mov_b32 v2, 1")
    k.op("s_mov_b64 exec, 1")
    k.op(f"global_store_dword v3, v2, s[{sPDBG}:{sPDBG+1}] sc1")
    k.op("s_mov_b64 exec, -1")
    k.label(lab)
    if "ppf" in OPT:
        k.op(f"s_bitcmp1_b32 s{sW}, 1")
        k.op(f"s_cselect_b32 s{rX}, s{sPWU}, s{sPWG}")
        k.op(f"s_cselect_b32 s{rX+1}, s{sPWU+1}, s{sPWG+1}")
        k.op(f"s_and_b32 s{rX+1}, s{rX+1}, 0xffff")
        k.op(f"s_mov_b32 s{rX+2}, {D*F*2}")
        k.op(f"s_mov_b32 s{rX+3}, 0x20000")
        k.op(f"s_sub_u32 s{sT0}, s{sSLOT}, 28")
        k.op(f"s_mul_i32 s{sT0}, s{sT0}, 224")
        k.op(f"s_and_b32 s{sT1}, s{sW}, 1")
        k.op(f"s_lshl_b32 s{sT1}, s{sT1}, 7")
        k.op(f"s_add_u32 s{sT0}, s{sT0}, s{sT1}")
        k.op(f"s_and_b32 s{sT1}, s{sXCD}, 1")
        k.op(f"s_mul_i32 s{sT1}, s{sT1}, 1792")
        k.op(f"s_mov_b32 s{sT2}, {(1 << 32) // 14 + 1}")
        for rnd in range(2):
            k.op(f"v_add_u32 v2, s{sT0}, v0")
            if rnd: k.op("v_add_u32 v2, 64, v2")
            k.op(f"v_mul_hi_u32 v3, v2, s{sT2}")
            k.op("v_mul_u32_u24 v4, 14, v3")
            k.op("v_sub_u32 v4, v2, v4")
            k.op("v_mul_u32_u24 v3, 3584, v3")
            k.op("v_lshl_add_u32 v3, v4, 7, v3")
            k.vm(f"buffer_load_dword a250, v3, s[{rX}:{rX+3}], s{sT1} offen", "pf")
    srd(k, rK, sPK, S * D * 2)
    srd(k, rV, sPV, S * D * 2)
    srd(k, rSK, sPSK, D * 4 * 2)
    k.op("s_mov_b32 exec_hi, 0x00ffffff")
    k.op(f"s_lshl_b32 s{sT0}, s{sI}, 6")
    k.op(f"s_add_u32 s{sT0}, s{sT0}, s{sW}")
    k.op(f"s_sub_u32 s{sT1}, s{sT0}, 3")
    k.op(f"s_mul_i32 s{sT1}, s{sT1}, 896")
    k.op(f"s_mul_i32 s{sT2}, s{sW}, {PP_ROW}")
    k.op(f"s_add_u32 m0, s{sT2}, {PP_K}")
    k.op(f"v_add_u32 v2, s{sT1}, v1")
    for n in range(17):
        if n == 16:
            lab = k.newlabel("Lpk")
            k.op(f"s_cmp_eq_u32 s{sW}, 3")
            k.op(f"s_cbranch_scc1 {lab}")
            k.op(f"buffer_load_dwordx4 v2, s[{rK}:{rK+3}], 0 offen lds")
            k.label(lab)
        else:
            k.vm(f"buffer_load_dwordx4 v2, s[{rK}:{rK+3}], 0 offen lds", "k")
            k.op(f"s_add_u32 m0, m0, {4*PP_ROW}")
            k.op(f"v_add_u32 v2, {4*896}, v2")
    k.op(f"s_mul_i32 s{sT1}, s{sT0}, 896")
    k.op(f"s_add_u32 m0, s{sT2}, {PP_V}")
    k.op("s_nop 0")
    for n in range(16):
        k.vm(f"buffer_load_dwordx4 v1, s[{rV}:{rV+3}], s{sT1} offen lds", "v")
        if n < 15:
            k.op(f"s_add_u32 m0, m0, {4*PP_ROW}")
            k.op(f"s_add_u32 s{sT1}, s{sT1}, {4*896}")
    k.op("s_mov_b32 exec_hi, -1")
    k.op(f"s_mov_b32 s{sMASK}, 0xffff0000")
    k.op("v_and_b32 v2, 3, v0")
    k.op("v_lshrrev_b32 v3, 5, v0")
    k.op("v_lshl_add_u32 v2, v3, 2, v2")
    k.op("v_bfe_u32 v3, v0, 2, 3")
    k.op(f"v_mul_u32_u24 v4, {8*PP_ROW}, v2")
    k.op("v_lshl_add_u32 v4, v3, 2, v4")
    k.op(f"s_lshl_b32 s{sT0}, s{sW}, 5")
    k.op(f"v_add_u32 v4, s{sT0}, v4")
    k.op(f"v_add_u32 v8, {PP_V}, v4")
    k.op("v_lshlrev_b32 v5, 4, v3")
    k.op(f"s_lshl_b32 s{sT0}, s{sW}, 7")
    k.op(f"v_add_u32 v5, s{sT0}, v5")
    k.op("v_lshlrev_b32 v6, 13, v3")
    k.op(f"s_lshl_b32 s{sT0}, s{sW}, 16")
    k.op(f"v_add_u32 v6, s{sT0}, v6")
    k.op("v_lshlrev_b32 v7, 4, v2")
    k.op("v_sub_u32 v6, v6, v7")
    k.op(f"s_lshl_b32 s{sT0}, s{sI}, 7")
    k.op(f"s_sub_u32 s{sT0}, {U_OFF + (2047 - 7) * 2}, s{sT0}")
    k.op(f"v_add_u32 v6, s{sT0}, v6")
    for it in range(7):
        k.vm(f"buffer_load_dwordx4 {vr(100 + 4*it, 4)}, v5, s[{rSK}:{rSK+3}], 0 offen offset:{it*512}", "sk")
    if "ppst" in OPT: k.op("s_memtime s[10:11]")
    k.wait_all()
    if "ppst" in OPT: k.op("s_memtime s[12:13]")
    k.op("s_barrier")
    RAW = [16, 176]
    def reads(it):
        base = RAW[it % 2]; coff = it * 128
        for j in range(11):
            k.lg(f"ds_read_b32 v{base+j}, v4 offset:{PP_K + j*PP_ROW + coff}", f"r{it}")
        for j in range(8):
            k.lg(f"ds_read_b32 v{base+11+j}, v8 offset:{j*PP_ROW + coff}", f"r{it}")
    reads(0)
    for it in range(7):
        KR = RAW[it % 2]; VR = KR + 11
        sk = 100 + 4 * it
        k.op(f"v_lshlrev_b32 v64, 16, v{sk}");   k.op(f"v_lshlrev_b32 v65, 16, v{sk+2}")
        k.op(f"v_and_b32 v66, 0xffff0000, v{sk}"); k.op(f"v_and_b32 v67, 0xffff0000, v{sk+2}")
        k.op(f"v_lshlrev_b32 v68, 16, v{sk+1}"); k.op(f"v_lshlrev_b32 v69, 16, v{sk+3}")
        k.op(f"v_and_b32 v70, 0xffff0000, v{sk+1}"); k.op(f"v_and_b32 v71, 0xffff0000, v{sk+3}")
        k.wait(lg=f"r{it}")
        for j in range(11):
            k.op(f"v_lshlrev_b32 v{40+2*j}, 16, v{KR+j}")
            k.op(f"v_and_b32 v{41+2*j}, s{sMASK}, v{KR+j}")
        for j in range(8):
            k.op(f"v_lshlrev_b32 v{72+2*j}, 16, v{VR+j}")
            k.op(f"v_and_b32 v{73+2*j}, s{sMASK}, v{VR+j}")
        if it + 1 < 7: reads(it + 1)
        for t in range(8):
            k.op(f"v_pk_mul_f32 {vr(130+2*t,2)}, {vr(40+2*(t+3),2)}, {vr(64,2)}")
        for j in range(1, 4):
            for t in range(8):
                o = 130 + 2 * t
                k.op(f"v_pk_fma_f32 {vr(o,2)}, {vr(40+2*(t+3-j),2)}, {vr(64+2*j,2)}, {vr(o,2)}")
        for t in range(8):
            o = 130 + 2 * t
            k.op(f"v_pk_mul_f32 {vr(o,2)}, {vr(o,2)}, {vr(72+2*t,2)}")
        O = 150 + 8 * (it % 2)
        for q in range(4):
            k.op(f"v_cvt_pk_bf16_f32 v{O+q}, v{130+2*(7-2*q)}, v{130+2*(6-2*q)}")
            k.op(f"v_cvt_pk_bf16_f32 v{O+4+q}, v{131+2*(7-2*q)}, v{131+2*(6-2*q)}")
        k.op(f"s_mov_b32 s{sT0}, {it * 64 * 4096}")
        k.op(f"s_mov_b32 s{sT1}, {it * 64 * 4096 + 4096}")
        k.vm(f"buffer_store_dwordx4 {vr(O,4)}, v6, s[{rWS}:{rWS+3}], s{sT0} offen sc1", "ust")
        k.vm(f"buffer_store_dwordx4 {vr(O+4,4)}, v6, s[{rWS}:{rWS+3}], s{sT1} offen sc1", "ust")
    if "ppst" in OPT: k.op("s_memtime s[14:15]")
    k.wait_all()
    if "ppst" in OPT: k.op("s_memtime s[72:73]")
    k.op("s_barrier")
    lab = k.newlabel("Lpsig")
    k.op(f"s_cmp_lg_u32 s{sW}, 0")
    k.op(f"s_cbranch_scc1 {lab}")
    k.op("v_mov_b32 v9, 0")
    spin_until(k, 9, 8, sPDBG, 1)
    k.label(lab)
    cnt_addr(k, 9, idx=UCNT)
    signal(k, 9, 8)
    if "ppst" in OPT:
        k.op("s_waitcnt vmcnt(0) lgkmcnt(0)")
        k.op("s_memtime s[74:75]")
        k.op("s_waitcnt lgkmcnt(0)")
        k.op("s_lshl_b32 s4, s2, 2"); k.op(f"s_add_u32 s4, s4, s{sW}"); k.op("s_lshl_b32 s4, s4, 7"); k.op(f"s_add_u32 s4, s4, {STAMP_OFF}")
        k.op("v_mov_b32 v1, 0"); k.op("s_mov_b64 exec, 1")
        for i, r in enumerate((8, 10, 12, 14, 72, 74)):
            k.op(f"v_mov_b32 v2, s{r}")
            k.op(f"buffer_store_dword v2, v1, s[{rWS}:{rWS+3}], s4 offen offset:{4*i}")
        k.op("s_mov_b64 exec, -1")

def kd(name, vgpr=512, acc=256):
    return f""".section .rodata,"a"
.p2align 6
.amdhsa_kernel {name}
  .amdhsa_next_free_vgpr {vgpr}
  .amdhsa_next_free_sgpr 102
  .amdhsa_accum_offset {acc}
  .amdhsa_group_segment_fixed_size 0
  .amdhsa_kernarg_size 104
  .amdhsa_user_sgpr_count 2
  .amdhsa_user_sgpr_kernarg_segment_ptr 1
  .amdhsa_system_sgpr_workgroup_id_x 1
  .amdhsa_float_denorm_mode_32 3
.end_amdhsa_kernel
"""

def build():
    k = K()
    prologue(k, 32768)
    start_main(k)
    gemm1_loop(k)
    gelu_phase(k)
    wr1 = conv_phase(k)
    gemm2_phase(k, wr1)
    for o in OPT:
        if o.startswith("cyc"):
            n = int(o[3:])
            k.op(f"s_add_u32 s10, s73, {n}")
            k.label("L_untilc")
            k.op("s_memtime s[8:9]")
            k.op("s_waitcnt lgkmcnt(0)")
            k.op("s_sub_u32 s11, s10, s8")
            k.op("s_cmp_gt_i32 s11, 0")
            k.op("s_cbranch_scc1 L_untilc")
        if o.startswith("until"):
            n = int(o[5:])
            k.op(f"s_add_u32 s10, s73, {n}")
            k.label("L_until")
            k.op("s_memrealtime s[8:9]")
            k.op("s_waitcnt lgkmcnt(0)")
            k.op("s_sub_u32 s11, s10, s8")
            k.op("s_cmp_gt_i32 s11, 0")
            k.op("s_cbranch_scc1 L_until")
        if o.startswith("delay"):
            n = int(o[5:])
            k.op("s_memtime s[8:9]")
            k.op("s_waitcnt lgkmcnt(0)")
            k.op(f"s_add_u32 s10, s8, {n}")
            k.label("L_delay")
            k.op("s_memtime s[8:9]")
            k.op("s_waitcnt lgkmcnt(0)")
            k.op("s_sub_u32 s11, s10, s8")
            k.op("s_cmp_gt_i32 s11, 0")
            k.op("s_cbranch_scc1 L_delay")
    stamp_flush(k)
    k.op("s_endpgm")
    k.label("L_pre")
    k.vmq = []; k.lgq = []
    prepass(k)
    k.label("L_exit")
    name = NAME + "_kernel"
    header = open("cdna_kernels/" + NAME + ".s.ref").read().split("; Override launch")[0]
    txt = header + f"; @launch grid=(256,1,1) block=(256,1,1) lds={LDS_TOTAL}\n"
    txt += '.amdgcn_target "amdgcn-amd-amdhsa--gfx950"\n.text\n'
    txt += f".globl {name}\n.p2align 8\n.type {name},@function\n{name}:\n"
    txt += k.text() + "s_endpgm\nL_code_end:\n" + kd(name)
    return txt

if __name__ == "__main__":
    if len(sys.argv) > 2 and sys.argv[2].startswith("stamps"):
        STAMPS = True
        if "=" in sys.argv[2]: STAMPSET = sys.argv[2].split("=")[1].split(",")
    if len(sys.argv) > 3: OPT.update(sys.argv[3].split(","))
    txt = build()
    if "noalign" not in OPT:
        import align
        txt = align.align(txt)
    check_hazards(txt)
    open(sys.argv[1], "w").write(txt)
    if STAMPS: print("stamps:", stamped)
```
